```python
import torch

def _softmax(x, axis=-1):
    return torch.softmax(x, dim=axis)
def _gelu(x):
    return torch.nn.functional.gelu(x, approximate="tanh")
def _silu(x):
    return torch.nn.functional.silu(x)
def _sigmoid(x):
    return torch.sigmoid(x)
def _layernorm(x, axis=-1, eps=1e-5):
    m = x.mean(dim=axis, keepdim=True)
    v = x.var(dim=axis, keepdim=True, unbiased=False)
    return (x - m) / torch.sqrt(v + eps)
def _scatter_add(tgt, idx, src, axis=0):
    return tgt.clone().index_add_(axis, idx, src)
def _segment_sum(src, seg, n):
    out = torch.zeros((n,) + src.shape[1:], dtype=src.dtype)
    return out.index_add_(0, seg, src)
def _pad(x, pw):
    flat = tuple(v for pair in reversed(pw) for v in pair)
    return torch.nn.functional.pad(x, flat)

kernel_name = 'interleave_layers__ssm_conv_h3__glu_gated_swiglu__prompt'

def setup_inputs():

    _w = (lambda a: (lambda t: t.to(torch.bfloat16) if t.is_floating_point() else t)(torch.as_tensor(a)))
    def _A_setup():
        B, S, D = 1, 2048, 512
        ks = 4
        return {
            "q": _w((lambda *s: torch.randn(*s, dtype=torch.bfloat16) * 0.05)(B, S, D)),
            "k": _w((lambda *s: torch.randn(*s, dtype=torch.bfloat16) * 0.2)(B, S, D)),
            "v": _w((lambda *s: torch.randn(*s, dtype=torch.bfloat16) * 0.2)(B, S, D)),
            "shift_k": _w((lambda *s: torch.randn(*s, dtype=torch.bfloat16) * 0.2)(D, ks) * 0.5),
            "ssm_k": _w((lambda *s: torch.randn(*s, dtype=torch.bfloat16) * 0.4)(D, S) * (1.0 / S ** 0.5)),
            "ssm_D": _w((lambda *s: torch.randn(*s, dtype=torch.bfloat16) * 0.2)(D)),
        }
    _A_in = _A_setup()

    def _B_setup():
        B, S, D, F = 1, 2048, 512, 1376
        return {
            "x": _w((lambda *s: torch.randn(*s, dtype=torch.bfloat16) * 0.05)(B, S, D)),
            "w1": _w((lambda *s: torch.randn(*s, dtype=torch.bfloat16) * 0.2)(D, F) * (2.0 / D) ** 0.5),
            "w3": _w((lambda *s: torch.randn(*s, dtype=torch.bfloat16) * 0.2)(D, F) * (2.0 / D) ** 0.5),
            "w2": _w((lambda *s: torch.randn(*s, dtype=torch.bfloat16) * 0.2)(F, D) * (2.0 / F) ** 0.5),
        }
    _B_in = _B_setup()

    return {
        "A_q": _A_in["q"],
        "A_k": _A_in["k"],
        "A_v": _A_in["v"],
        "A_shift_k": _A_in["shift_k"],
        "A_ssm_k": _A_in["ssm_k"],
        "A_ssm_D": _A_in["ssm_D"],
        "B_x": _B_in["x"],
        "B_w1": _B_in["w1"],
        "B_w3": _B_in["w3"],
        "B_w2": _B_in["w2"],
    }

def reference(A_q, A_k, A_v, A_shift_k, A_ssm_k, A_ssm_D, B_x, B_w1, B_w3, B_w2):
    def _A_ref(q, k, v, shift_k, ssm_k, ssm_D):
        B, S, D = q.shape
        ks = shift_k.shape[-1]
        k_pad = _pad(k, ((0, 0), (ks - 1, 0), (0, 0)))
        k_shift = torch.zeros_like(k)
        for t in range(ks):
            k_shift = k_shift + k_pad[:, t:t + S, :] * shift_k[:, ks - 1 - t][None, None, :]
        kv = k_shift * v
        L = 2 * S
        kv_pad = _pad(kv, ((0, 0), (0, S), (0, 0)))
        kf_pad = _pad(ssm_k, ((0, 0), (0, S)))
        kv_f = (lambda x, axes=(-2,-1): torch.fft.rfft2(x.float(), dim=axes))(kv_pad[:, None, :, :], axes=(1, 2))
        kf_f = (lambda x, axes=(-2,-1): torch.fft.rfft2(x.float(), dim=axes))(kf_pad[:, None, :], axes=(1, 2))
        kf_f = (lambda x, *d: x.permute(*d))(kf_f, 1, 2, 0)
        y_f = kv_f * kf_f[None, :, :, :]
        y = (lambda x, s, axes=(-2,-1): torch.fft.irfft2(x, s=s, dim=axes).to(torch.bfloat16))(y_f, (1, L), axes=(1, 2))[:, 0, :S, :]
        y = y + kv * ssm_D[None, None, :]
        return q * y

    def _B_ref(x, w1, w3, w2):
        gate = torch.einsum("bsd,df->bsf", x, w1)
        up = torch.einsum("bsd,df->bsf", x, w3)
        h = _silu(gate) * up
        out = torch.einsum("bsf,fd->bsd", h, w2)
        return out

    x = A_q
    x = x + _A_ref(_layernorm(x, axis=-1), A_k, A_v, A_shift_k, A_ssm_k, A_ssm_D)
    x = x + _B_ref(_layernorm(x, axis=-1), B_w1, B_w3, B_w2)
    x = x + _A_ref(_layernorm(x, axis=-1), A_k, A_v, A_shift_k, A_ssm_k, A_ssm_D)
    x = x + _B_ref(_layernorm(x, axis=-1), B_w1, B_w3, B_w2)
    return x
```

```python
import sys
NAME = "interleave_layers__ssm_conv_h3__glu_gated_swiglu__prompt"
S, D, F = 2048, 512, 1376
MB = 1 << 20
WS = dict(KV=0, Y=2*MB, X1=4*MB, XN=6*MB, H=8*MB, X2=16*MB, X3=18*MB)
ARG = dict(q=0, k=8, v=16, sk=24, h=32, sd=40, bx=48, w1=56, w3=64, w2=72, out=80, dbg=88, ws=96)
out = []
def e(s): out.append("    " + s)
def lab(s): out.append(s + ":")
def srd(reg, arg, size, off=0):
    e(f"s_load_dwordx2 s[{reg}:{reg+1}], s[0:1], {ARG[arg]}")
    e("s_waitcnt lgkmcnt(0)")
    if off:
        e(f"s_add_u32 s{reg}, s{reg}, {off}")
        e(f"s_addc_u32 s{reg+1}, s{reg+1}, 0")
    e(f"s_mov_b32 s{reg+2}, {size}")
    e(f"s_mov_b32 s{reg+3}, 0x20000")
def begin(name, nwg):
    out.append(f".globl {name}\n.p2align 8\n.type {name},@function\n{name}:")
    e(f"s_cmp_ge_u32 s2, {nwg}")
    e(f"s_cbranch_scc1 {name}_end")
    e("s_lshl_b32 s3, s2, 8")
    e("v_add_u32 v1, s3, v0")
def end(name):
    lab(f"{name}_end")
    e("s_endpgm")
def rnd(v):
    e(f"v_cvt_pk_bf16_f32 v{v}, v{v}, v{v}")
    e(f"v_and_b32 v{v}, 0xffff0000, v{v}")
kernels = []
def k_kv():
    n = "kv_kernel"; kernels.append((n, S*D//256)); begin(n, S*D//256)
    srd(8, "k", S*D*2); srd(12, "v", S*D*2); srd(16, "sk", D*4*2); srd(20, "ws", S*D*2, WS["KV"])
    e("v_lshlrev_b32 v2, 1, v1")
    e("v_and_b32 v3, 511, v1")
    e("v_lshlrev_b32 v3, 3, v3")
    for t in range(4):
        e(f"v_subrev_u32 v4, {(3-t)*1024}, v2")
        e(f"buffer_load_ushort v{10+t}, v4, s[8:11], 0 offen")
        e(f"buffer_load_ushort v{14+t}, v3, s[16:19], 0 offen offset:{(3-t)*2}")
    e("buffer_load_ushort v18, v2, s[12:15], 0 offen")
    e("s_waitcnt vmcnt(0)")
    for r in list(range(10, 19)): e(f"v_lshlrev_b32 v{r}, 16, v{r}")
    e("v_mul_f32 v20, v10, v14"); rnd(20)
    for t in range(1, 4):
        e(f"v_mul_f32 v21, v{10+t}, v{14+t}"); rnd(21)
        e("v_add_f32 v20, v20, v21"); rnd(20)
    e("v_mul_f32 v20, v20, v18")
    e("v_cvt_pk_bf16_f32 v20, v20, v20")
    e("buffer_store_short v20, v2, s[20:23], 0 offen")
    end(n)
def k_conv():
    n = "conv_kernel"; kernels.append((n, S*D//256)); begin(n, S*D//256)
    srd(8, "ws", S*D*2, WS["KV"]); srd(12, "h", S*D*2); srd(16, "sd", D*2); srd(20, "ws", S*D*2, WS["Y"])
    e("s_lshr_b32 s4, s2, 1")
    e("v_and_b32 v3, 511, v1")
    e("v_lshlrev_b32 v4, 1, v3")
    e("v_lshlrev_b32 v5, 12, v3")
    e("s_lshl_b32 s5, s4, 1")
    e("v_add_u32 v5, s5, v5")
    e("v_mov_b32 v20, 0")
    e("s_mov_b32 s6, 0")
    lab("conv_loop")
    e("buffer_load_ushort v10, v4, s[8:11], 0 offen")
    e("buffer_load_ushort v11, v5, s[12:15], 0 offen")
    e("v_add_u32 v4, 1024, v4")
    e("v_subrev_u32 v5, 2, v5")
    e("s_waitcnt vmcnt(0)")
    e("v_lshlrev_b32 v10, 16, v10"); e("v_lshlrev_b32 v11, 16, v11")
    e("v_fmac_f32 v20, v10, v11")
    e("s_add_u32 s6, s6, 1")
    e("s_cmp_le_u32 s6, s4")
    e("s_cbranch_scc1 conv_loop")
    rnd(20)
    e("v_lshlrev_b32 v2, 1, v1")
    e("buffer_load_ushort v10, v2, s[8:11], 0 offen")
    e("v_lshlrev_b32 v4, 1, v3")
    e("buffer_load_ushort v11, v4, s[16:19], 0 offen")
    e("s_waitcnt vmcnt(0)")
    e("v_lshlrev_b32 v10, 16, v10"); e("v_lshlrev_b32 v11, 16, v11")
    e("v_mul_f32 v10, v10, v11"); rnd(10)
    e("v_add_f32 v20, v20, v10")
    e("v_cvt_pk_bf16_f32 v20, v20, v20")
    e("buffer_store_short v20, v2, s[20:23], 0 offen")
    end(n)
def wave_sum(v, tmp, addr):
    for m in (1, 2, 4, 8, 16, 32):
        e(f"v_xor_b32 v{addr}, {m}, v30")
        e(f"v_lshlrev_b32 v{addr}, 2, v{addr}")
        e(f"ds_bpermute_b32 v{tmp}, v{addr}, v{v}")
        e("s_waitcnt lgkmcnt(0)")
        e(f"v_add_f32 v{v}, v{v}, v{tmp}")
def layernorm(x, o):
    e(f"v_add_f32 v24, v{x}, v{x+1}")
    for i in range(2, 8): e(f"v_add_f32 v24, v24, v{x+i}")
    wave_sum(24, 25, 26)
    e("v_mul_f32 v24, 0x3b000000, v24")
    e(f"v_sub_f32 v27, v{x}, v24"); e("v_mul_f32 v28, v27, v27")
    for i in range(1, 8):
        e(f"v_sub_f32 v27, v{x+i}, v24"); e("v_fmac_f32 v28, v27, v27")
    wave_sum(28, 25, 26)
    e("v_mul_f32 v28, 0x3b000000, v28"); rnd(28)
    e("v_add_f32 v28, 0x3727c5ac, v28"); rnd(28)
    e("v_sqrt_f32 v28, v28"); e("s_nop 0"); rnd(28)
    e("v_rcp_f32 v28, v28"); e("s_nop 0")
    rnd(24)
    for i in range(8):
        e(f"v_sub_f32 v{o+i}, v{x+i}, v24"); rnd(o+i)
        e(f"v_mul_f32 v{o+i}, v{o+i}, v28"); rnd(o+i)
def unpack8(src, dst):
    for i in range(4):
        e(f"v_lshlrev_b32 v{dst+2*i}, 16, v{src+i}")
        e(f"v_and_b32 v{dst+2*i+1}, 0xffff0000, v{src+i}")
def pack8(src, dst):
    for i in range(4): e(f"v_cvt_pk_bf16_f32 v{dst+i}, v{src+2*i}, v{src+2*i+1}")
def k_row(n, xin_arg, xin_off, xo_off):
    kernels.append((n, S//4)); begin(n, S//4)
    srd(8, xin_arg, S*D*2, xin_off); srd(12, "ws", S*D*2, WS["Y"]); srd(16, "ws", S*D*2, xo_off); srd(20, "ws", S*D*2, WS["XN"])
    e("v_and_b32 v30, 63, v0")
    e("v_lshlrev_b32 v2, 4, v1")
    e("buffer_load_dwordx4 v[4:7], v2, s[8:11], 0 offen")
    e("buffer_load_dwordx4 v[8:11], v2, s[12:15], 0 offen")
    e("s_waitcnt vmcnt(0)")
    unpack8(4, 32); unpack8(8, 40)
    layernorm(32, 48)
    for i in range(8):
        e(f"v_mul_f32 v{48+i}, v{48+i}, v{40+i}"); rnd(48+i)
        e(f"v_add_f32 v{32+i}, v{32+i}, v{48+i}"); rnd(32+i)
    pack8(32, 4)
    e("buffer_store_dwordx4 v[4:7], v2, s[16:19], 0 offen")
    layernorm(32, 48)
    pack8(48, 8)
    e("buffer_store_dwordx4 v[8:11], v2, s[20:23], 0 offen")
    end(n)
def k_g1():
    n = "g1_kernel"; nw = S * 6
    kernels.append((n, nw)); begin(n, nw)
    srd(8, "ws", S*D*2, WS["XN"]); srd(12, "w1", D*F*2); srd(16, "w3", D*F*2); srd(20, "ws", S*F*2, WS["H"])
    e("s_mul_hi_u32 s4, s2, 0x2aaaaaab")
    e("s_mul_i32 s5, s4, 6"); e("s_sub_u32 s5, s2, s5")
    e("s_lshl_b32 s5, s5, 8")
    e("v_add_u32 v3, s5, v0")
    e(f"v_cmp_gt_u32 vcc, {F}, v3")
    e("s_and_saveexec_b64 s[24:25], vcc")
    e(f"s_cbranch_execz {n}_end")
    e("v_lshlrev_b32 v4, 1, v3")
    e("s_lshl_b32 s6, s4, 10")
    e("v_mov_b32 v5, s6")
    e("v_mov_b32 v20, 0"); e("v_mov_b32 v21, 0")
    e("s_mov_b32 s7, 0")
    lab("g1_loop")
    e("buffer_load_ushort v10, v5, s[8:11], 0 offen")
    e("buffer_load_ushort v11, v4, s[12:15], 0 offen")
    e("buffer_load_ushort v12, v4, s[16:19], 0 offen")
    e("v_add_u32 v5, 2, v5"); e(f"v_add_u32 v4, {F*2}, v4")
    e("s_waitcnt vmcnt(0)")
    for r in (10, 11, 12): e(f"v_lshlrev_b32 v{r}, 16, v{r}")
    e("v_fmac_f32 v20, v10, v11"); e("v_fmac_f32 v21, v10, v12")
    e("s_add_u32 s7, s7, 1"); e(f"s_cmp_lt_u32 s7, {D}"); e("s_cbranch_scc1 g1_loop")
    rnd(20); rnd(21)
    e("v_mul_f32 v22, 0xbfb8aa3b, v20")
    e("v_exp_f32 v22, v22"); e("s_nop 0")
    e("v_add_f32 v22, 1.0, v22")
    e("v_rcp_f32 v22, v22"); e("s_nop 0")
    e("v_mul_f32 v22, v22, v20"); rnd(22)
    e("v_mul_f32 v22, v22, v21")
    e("v_cvt_pk_bf16_f32 v22, v22, v22")
    e(f"s_mul_i32 s6, s4, {F*2}")
    e("v_lshlrev_b32 v4, 1, v3"); e("v_add_u32 v4, s6, v4")
    e("buffer_store_short v22, v4, s[20:23], 0 offen")
    end(n)
def k_g2(n, res_off, to_out):
    kernels.append((n, S*D//256)); begin(n, S*D//256)
    srd(8, "ws", S*F*2, WS["H"]); srd(12, "w2", D*F*2); srd(16, "ws", S*D*2, res_off)
    if to_out: srd(20, "out", S*D*2)
    else: srd(20, "ws", S*D*2, WS["X2"])
    e("s_lshr_b32 s4, s2, 1")
    e("v_and_b32 v3, 511, v1")
    e("v_lshlrev_b32 v4, 1, v3")
    e(f"s_mul_i32 s6, s4, {F*2}")
    e("v_mov_b32 v5, s6")
    e("v_mov_b32 v20, 0"); e("s_mov_b32 s7, 0")
    lab(f"{n}_loop")
    e("buffer_load_ushort v10, v5, s[8:11], 0 offen")
    e("buffer_load_ushort v11, v4, s[12:15], 0 offen")
    e("v_add_u32 v5, 2, v5"); e("v_add_u32 v4, 1024, v4")
    e("s_waitcnt vmcnt(0)")
    e("v_lshlrev_b32 v10, 16, v10"); e("v_lshlrev_b32 v11, 16, v11")
    e("v_fmac_f32 v20, v10, v11")
    e("s_add_u32 s7, s7, 1"); e(f"s_cmp_lt_u32 s7, {F}"); e(f"s_cbranch_scc1 {n}_loop")
    rnd(20)
    e("v_lshlrev_b32 v2, 1, v1")
    e("buffer_load_ushort v10, v2, s[16:19], 0 offen")
    e("s_waitcnt vmcnt(0)")
    e("v_lshlrev_b32 v10, 16, v10")
    e("v_add_f32 v20, v20, v10")
    e("v_cvt_pk_bf16_f32 v20, v20, v20")
    e("buffer_store_short v20, v2, s[20:23], 0 offen")
    end(n)
def k_nop():
    n = "nop_kernel"; kernels.append((n, 256)); begin(n, 256); end(n)
ndummy = int(sys.argv[1]) if len(sys.argv) > 1 else 0
k_kv(); k_conv(); k_row("rowa_kernel", "q", 0, WS["X1"]); k_g1(); k_g2("g2a_kernel", WS["X1"], False)
k_row("rowb_kernel", "ws", WS["X2"], WS["X3"]); k_g2("g2b_kernel", WS["X3"], True); k_nop()
kd = dict(kernels)
order = ["kv_kernel", "conv_kernel", "rowa_kernel", "g1_kernel", "g2a_kernel", "rowb_kernel", "g1_kernel", "g2b_kernel"] + ["nop_kernel"] * ndummy
hdr = open("cdna_kernels/" + NAME + ".s.ref").read().split("; Override launch")[0]
txt = hdr
for k in order: txt += f"; @launch kernel={k} grid=({kd[k]},1,1) block=(256,1,1) lds=0\n"
txt += '.amdgcn_target "amdgcn-amd-amdhsa--gfx950"\n.text\n' + "\n".join(out) + "\n"
for k, _ in kernels:
    txt += f""".section .rodata,"a"
.p2align 6
.amdhsa_kernel {k}
  .amdhsa_next_free_vgpr 64
  .amdhsa_next_free_sgpr 48
  .amdhsa_accum_offset 64
  .amdhsa_group_segment_fixed_size 0
  .amdhsa_kernarg_size 104
  .amdhsa_user_sgpr_count 2
  .amdhsa_user_sgpr_kernarg_segment_ptr 1
  .amdhsa_system_sgpr_workgroup_id_x 1
.end_amdhsa_kernel
"""
sys.stdout.write(txt)
```

```python
import re

TRANS = ("v_exp_f32", "v_log_f32", "v_rcp_f32", "v_rsq_f32", "v_sqrt_f32", "v_sin_f32", "v_cos_f32", "v_rcp_iflag_f32")
RMW = ("v_fmac_", "v_dot2c_", "v_pk_fmac", "v_writelane", "v_mac_")
NOCOUNT = ()

def split_ops(s):
    out, depth, cur = [], 0, ""
    for ch in s:
        if ch in "[(": depth += 1
        if ch in "])": depth -= 1
        if ch == "," and depth == 0:
            out.append(cur.strip()); cur = ""
        else:
            cur += ch
    if cur.strip(): out.append(cur.strip())
    return out

REG = re.compile(r"^-?\|?(?:abs\()?([vas])(?:(\d+)|\[(\d+):(\d+)\])\)?\|?$")
def regs(tok):
    tok = tok.strip().split(" ")[0]
    if tok in ("vcc",): return {("s", 106), ("s", 107)}
    if tok == "vcc_lo": return {("s", 106)}
    if tok == "vcc_hi": return {("s", 107)}
    if tok == "exec": return {("s", 126), ("s", 127)}
    if tok == "m0": return {("s", 124)}
    m = REG.match(tok)
    if not m: return set()
    k = m.group(1)
    if m.group(2) is not None: return {(k, int(m.group(2)))}
    return {(k, i) for i in range(int(m.group(3)), int(m.group(4)) + 1)}

class Ins:
    __slots__ = ("text", "mn", "cls", "defs", "uses", "passes", "srcc", "dpp", "wide_store", "ops", "lds_dma", "ab")
    def __init__(self, text):
        self.text = text
        t = text.split(";")[0].strip()
        parts = t.split(None, 1)
        self.mn = mn = parts[0]
        rest = parts[1] if len(parts) > 1 else ""
        ops = split_ops(rest)
        self.ops = ops
        self.defs, self.uses = set(), set()
        self.passes = 0; self.srcc = set(); self.ab = set(); self.dpp = False; self.wide_store = set(); self.lds_dma = False
        R = [regs(o) for o in ops]
        if mn.startswith("v_mfma"):
            self.cls = "mfma"
            self.passes = 8 if "32x32" in mn else 4
            self.defs = R[0]; self.ab = R[1] | R[2]; self.srcc = R[3]; self.uses = self.ab | self.srcc
        elif mn.startswith("v_"):
            self.cls = "trans" if mn.replace("_e32", "").replace("_e64", "") in TRANS else "valu"
            self.dpp = "_dpp" in mn or "row_" in t or "quad_perm" in t or "wave_sh" in t
            nd = 1
            if re.match(r"v_(add|sub|subrev|addc|subb)_co", mn) or mn.startswith("v_mad_u64") or mn.startswith("v_div_scale"): nd = 2
            if mn.startswith("v_permlane") and "swap" in mn:
                self.defs = R[0] | R[1]; self.uses = R[0] | R[1]
            else:
                for r in R[:nd]: self.defs |= r
                for r in R[nd:]: self.uses |= r
                if mn.startswith(RMW) or self.dpp or "_sdwa" in mn: self.uses |= R[0]
                if mn.startswith("v_cndmask") and len(ops) == 3: self.uses |= regs("vcc")
                if mn.startswith("v_cmpx"): self.defs |= regs("exec")
            if mn.startswith("v_cndmask") and len(ops) >= 4: pass
        elif mn.startswith(("buffer_", "global_", "flat_", "scratch_")):
            self.cls = "vmem"
            is_lds = bool(re.search(r"\blds\b", t)) or "_lds_" in mn
            self.lds_dma = is_lds
            if "load" in mn and not is_lds:
                self.defs = R[0]
                for r in R[1:]: self.uses |= r
            elif "atomic" in mn and re.search(r"\bsc0\b", t):
                self.defs = R[0]
                for r in R[1:]: self.uses |= r
            else:
                for r in R: self.uses |= r
                if "store" in mn and ("x4" in mn or "x3" in mn):
                    self.wide_store = R[0] if mn.startswith("buffer_") else R[1]
            if is_lds: self.uses |= regs("m0")
        elif mn.startswith("ds_"):
            self.cls = "ds"
            if mn.startswith(("ds_read", "ds_bpermute", "ds_permute", "ds_swizzle")):
                self.defs = R[0]
                for r in R[1:]: self.uses |= r
            else:
                for r in R: self.uses |= r
        elif mn.startswith(("s_load", "s_buffer_load", "s_memtime", "s_memrealtime")):
            self.cls = "smem"; self.defs = R[0]
            for r in R[1:]: self.uses |= r
        elif mn in ("s_waitcnt", "s_nop", "s_barrier", "s_endpgm", "s_setprio", "s_sleep"):
            self.cls = "misc"
        elif mn.startswith(("s_cbranch", "s_branch", "s_setpc", "s_swappc", "s_call")):
            self.cls = "branch"
        elif mn.startswith("s_"):
            self.cls = "salu"
            if mn.startswith("s_cmp") or mn.startswith("s_bitcmp"):
                for r in R: self.uses |= r
            else:
                self.defs = R[0] if R else set()
                for r in R[1:]: self.uses |= r
                if "saveexec" in mn: self.defs |= regs("exec"); self.uses |= regs("exec")
        else:
            raise ValueError("unknown instr: " + text)
    def states(self):
        if self.mn == "s_nop": return int(self.ops[0], 0) + 1
        return 1

def need(p, c):
    n = 0
    pv = {r for r in p.defs if r[0] in "va"}
    ps = {r for r in p.defs if r[0] == "s"}
    if p.cls in ("valu", "trans"):
        if pv:
            if c.cls == "mfma" and pv & c.uses: n = max(n, 2)
            if c.cls in ("valu", "trans"):
                if c.mn.startswith(("v_readlane", "v_readfirstlane")) and pv & c.uses: n = max(n, 1)
                if c.mn.startswith("v_permlane") and pv & c.uses: n = max(n, 2)
                if c.dpp and pv & c.uses: n = max(n, 2)
            if p.cls == "trans" and c.cls in ("valu", "vmem", "ds") and pv & c.uses: n = max(n, 1)
            if p.cls == "trans" and c.cls == "trans" and pv & c.uses: n = max(n, 1)
        if ps:
            if c.cls in ("valu", "trans") and ps & c.uses: n = max(n, 4 if c.mn.startswith(("v_readlane", "v_writelane")) else 2)
            if c.cls in ("vmem", "smem") and ps & c.uses: n = max(n, 5)
            if c.cls in ("salu", "branch") and (ps & c.uses or c.cls == "branch" and "vcc" in c.mn): n = max(n, 2)
            if c.cls == "salu" and c.mn.startswith("s_cmp") and ps & c.uses: n = max(n, 2)
    if p.cls == "mfma":
        big = {4: 8, 8: 12}[p.passes]
        if c.cls == "mfma":
            if p.defs & c.ab: n = max(n, big)
            if p.defs & c.srcc:
                if not (c.srcc == p.defs and c.passes == p.passes): n = max(n, {4: 6, 8: 10}[p.passes])
            elif p.defs & c.defs: n = max(n, {4: 6, 8: 10}[p.passes])
        elif c.cls in ("valu", "trans"):
            if p.defs & (c.uses | c.defs): n = max(n, big)
            if p.srcc & c.defs: n = max(n, {4: 3, 8: 7}[p.passes])
        elif c.cls in ("vmem", "ds"):
            if p.defs & (c.uses | c.defs): n = max(n, big)
    if p.cls == "salu" and ("s", 124) in p.defs and (c.lds_dma or "addtid" in c.mn): n = max(n, 1)
    if p.cls == "vmem" and p.wide_store:
        if c.cls in ("valu", "trans") and p.wide_store & c.defs: n = max(n, 2)
        elif c.cls in ("ds", "vmem", "mfma") and p.wide_store & c.defs: n = max(n, 1)
    return n

def worst(p):
    if p.cls == "mfma": return {4: 8, 8: 12}[p.passes]
    if p.cls in ("valu", "trans"):
        if any(r[0] == "s" for r in p.defs): return 5
        return 2
    if p.cls == "salu" and ("s", 124) in p.defs: return 1
    if p.cls == "vmem" and p.wide_store: return 2
    return 0

class Asm:
    def __init__(self):
        self.items = []
        self.uid = 0
    def __call__(self, text):
        for ln in text.split("\n"):
            ln = ln.strip()
            if not ln or ln.startswith(";"): continue
            if ln.endswith(":"): self.items.append(("l", ln[:-1]))
            elif ln.startswith("."): self.items.append(("r", ln))
            else: self.items.append(("i", Ins(ln)))
    def label(self, name): self.items.append(("l", name))
    def raw(self, text): self.items.append(("r", text))
    def newlabel(self, base="L"):
        self.uid += 1
        return f"{base}_{self.uid}"
    def text(self):
        out = []; win = []
        nnop = 0
        def pad(n):
            nonlocal nnop
            while n > 0:
                k = min(n, 16)
                out.append(f"    s_nop {k-1}")
                for w in win: w[1] += k
                n -= k; nnop += 1
        for kind, it in self.items:
            if kind == "r":
                out.append(it); continue
            if kind == "l":
                pad(max([worst(p) - d for p, d in win] + [0])); win.clear()
                out.append(it + ":"); continue
            req = max([need(p, it) - d for p, d in win] + [0])
            if it.cls == "branch":
                req = max(req, max([worst(p) - d - 1 for p, d in win] + [0]))
            pad(req)
            out.append("    " + it.text)
            st = it.states()
            for w in win: w[1] += st
            win[:] = [w for w in win if w[1] < 16]
            win.append([it, 0])
        self.nnop = nnop
        return "\n".join(out) + "\n"

def kernel_desc(name, vgpr, sgpr, accum):
    return f""".section .rodata,"a"
.p2align 6
.amdhsa_kernel {name}
  .amdhsa_next_free_vgpr {vgpr}
  .amdhsa_next_free_sgpr {sgpr}
  .amdhsa_accum_offset {accum}
  .amdhsa_group_segment_fixed_size 0
  .amdhsa_kernarg_size 104
  .amdhsa_user_sgpr_count 2
  .amdhsa_user_sgpr_kernarg_segment_ptr 1
  .amdhsa_system_sgpr_workgroup_id_x 1
  .amdhsa_float_denorm_mode_32 3
.end_amdhsa_kernel
"""
```

```python
NAME = "interleave_layers__ssm_conv_h3__glu_gated_swiglu__prompt"
S, D, F = 2048, 512, 1376
KB, MB = 1024, 1 << 20
WS = dict(
    XR=0 * MB,
    QT=2 * MB,
    RS0=4 * MB,
    C0=4 * MB + 8192,
    YT=5 * MB,
    X1T=7 * MB,
    SYNC=9 * MB,
    H1=10 * MB,
    H2=16 * MB,
    X3=22 * MB,
    WF13=24 * MB,
    WF2=27 * MB,
    END=29 * MB,
)
HT = 86 * 512
SYNC_FLAGS = 0
SYNC_ST2 = 16 * KB
SYNC_ST3 = SYNC_ST2 + 128 * KB
SYNC_SIZE = SYNC_ST3 + 128 * KB
ARG = dict(q=0, k=8, v=16, sk=24, h=32, sd=40, bx=48, w1=56, w3=64, w2=72, out=80, dbg=88, ws=96)
def header(launches):
    hdr = open("cdna_kernels/" + NAME + ".s.ref").read().split("; Override launch")[0]
    for (k, grid, block, lds) in launches:
        hdr += f"; @launch kernel={k} grid=({grid},1,1) block=({block},1,1) lds={lds}\n"
    hdr += '.amdgcn_target "amdgcn-amd-amdhsa--gfx950"\n.text\n'
    return hdr
def kbegin(a, name):
    a.raw(f".globl {name}\n.p2align 8\n.type {name},@function")
    a.label(name)
def srd(a, reg, ptr, size, off=0, offreg=None):
    if off:
        a(f"s_add_u32 s{reg}, s{ptr}, {off}\ns_addc_u32 s{reg+1}, s{ptr+1}, 0")
    else:
        a(f"s_mov_b32 s{reg}, s{ptr}\ns_mov_b32 s{reg+1}, s{ptr+1}")
    if offreg is not None:
        a(f"s_add_u32 s{reg}, s{reg}, s{offreg}\ns_addc_u32 s{reg+1}, s{reg+1}, 0")
    a(f"s_mov_b32 s{reg+2}, {size}\ns_mov_b32 s{reg+3}, 0x20000")
```

```python
from common import *
HCS = 4160
XRO = 4 * HCS
CB = XRO + 4608
EXO = 49152
CONV_LDS = EXO + 16384
def emit_conv(a, name="conv_kernel", st=""):
    kbegin(a, name)
    a(f"""s_cmp_ge_u32 s2, 256
    s_cbranch_scc1 {name}_end
    s_load_dwordx4 s[4:7], s[0:1], {ARG['h']}
    s_load_dwordx2 s[12:13], s[0:1], {ARG['ws']}
    v_lshrrev_b32 v3, 6, v0
    v_and_b32 v1, 63, v0
    v_readfirstlane_b32 s18, v3
    s_and_b32 s14, s2, 7
    s_lshr_b32 s15, s2, 3
    s_lshl_b32 s14, s14, 5
    s_add_u32 s14, s14, s15
    s_lshr_b32 s16, s18, 1
    s_and_b32 s17, s18, 1
    s_lshl_b32 s14, s14, 1
    s_add_u32 s14, s14, s16
    s_lshl_b32 s15, s14, 12
    s_mul_i32 s19, s16, {CB}
    s_waitcnt lgkmcnt(0)""")
    srd(a, 20, 4, 4096, offreg=15)
    srd(a, 24, 6, D * 2)
    srd(a, 28, 12, WS['SYNC'])
    a(f"""v_lshlrev_b32 v4, 4, v1
    s_lshl_b32 s40, s17, 11
    v_add_u32 v4, s40, v4
    buffer_load_dwordx4 v[64:67], v4, s[20:23], 0 offen
    buffer_load_dwordx4 v[68:71], v4, s[20:23], 0 offen offset:4
    buffer_load_dwordx4 v[72:75], v4, s[20:23], 0 offen offset:8
    buffer_load_dwordx4 v[76:79], v4, s[20:23], 0 offen offset:1024
    buffer_load_dwordx4 v[80:83], v4, s[20:23], 0 offen offset:1028
    buffer_load_dwordx4 v[84:87], v4, s[20:23], 0 offen offset:1032
    v_bfe_u32 v5, v1, 3, 2
    v_and_b32 v6, 7, v1
    v_lshlrev_b32 v7, 1, v6
    v_add_u32 v7, v7, v5
    v_subrev_u32 v7, 16, v7
    v_lshlrev_b32 v7, 1, v7
    v_add_u32 v8, 2, v7
    buffer_load_ushort v88, v7, s[20:23], 0 offen
    buffer_load_ushort v89, v8, s[20:23], 0 offen
    s_lshl_b32 s40, s14, 1
    v_mov_b32 v9, s40
    buffer_load_ushort v20, v9, s[24:27], 0 offen""")
    a(f"""v_lshlrev_b32 v10, 4, v1
    s_lshl_b32 s40, s17, 11
    s_add_u32 s41, s15, s40
    s_add_u32 s41, s41, {WS['XR']}
    s_add_u32 s42, s19, s40
    s_add_u32 s42, s42, {XRO}
    s_mov_b32 m0, s42
    buffer_load_dwordx4 v10, s[28:31], s41 offen lds
    s_add_u32 s42, s42, 1024
    s_add_u32 s41, s41, 1024
    s_mov_b32 m0, s42
    buffer_load_dwordx4 v10, s[28:31], s41 offen lds""")
    a(f"""v_and_b32 v11, 15, v1
    v_lshrrev_b32 v12, 4, v1
    v_lshlrev_b32 v13, 4, v11
    v_lshl_add_u32 v13, v12, 2, v13
    s_lshl_b32 s40, s17, 10
    v_add_u32 v13, s40, v13
    v_lshlrev_b32 v14, 1, v13
    v_lshlrev_b32 v15, 2, v13
    s_add_u32 s41, s15, {WS['QT']}
    s_mov_b32 s42, {WS['RS0']}
    s_mov_b32 s43, {WS['C0']}""")
    for i in range(4):
        a(f"buffer_load_dwordx2 v[{192+2*i}:{193+2*i}], v14, s[28:31], s41 offen offset:{512*i}")
    for i in range(4):
        a(f"buffer_load_dwordx4 v[{200+4*i}:{203+4*i}], v15, s[28:31], s42 offen offset:{1024*i}")
        a(f"buffer_load_dwordx4 v[{216+4*i}:{219+4*i}], v15, s[28:31], s43 offen offset:{1024*i}")
    a(f"""v_mov_b32 v92, 0
    v_mov_b32 v93, 0
    v_mov_b32 v94, 0
    v_mov_b32 v95, 0
    v_and_b32 v16, 31, v1
    v_lshlrev_b32 v16, 4, v16
    v_add_u32 v16, s19, v16
    ds_write_b128 v16, v[92:95] offset:{XRO+4096}""")
    a(f"""v_add_u32 v17, 1, v11
    v_and_b32 v18, 3, v17
    v_mul_u32_u24 v18, {HCS}, v18
    v_lshrrev_b32 v17, 2, v17
    v_lshlrev_b32 v17, 3, v17
    v_lshl_add_u32 v17, v12, 4, v17
    v_add_u32 v17, v17, v18
    s_lshl_b32 s40, s17, 8
    s_add_u32 s41, s40, s19
    v_add_u32 v17, s41, v17
    v_lshlrev_b32 v18, 5, v11
    v_lshlrev_b32 v19, 4, v12
    v_sub_u32 v18, v19, v18
    s_add_u32 s41, s41, {XRO + 480}
    v_add_u32 v18, s41, v18""")
    a(f"""s_waitcnt vmcnt(14)
    v_lshlrev_b32 v4, 4, v1
    s_lshl_b32 s40, s17, 11
    s_add_u32 s40, s40, s19
    s_add_u32 s40, s40, 32
    v_add_u32 v4, s40, v4""")
    for p in range(2):
        L0, L2, L4 = 64 + 12 * p, 68 + 12 * p, 72 + 12 * p
        for j in range(4):
            a(f"v_alignbit_b32 v{96+8*p+j}, v{L2+j}, v{L0+j}, 16")
            a(f"v_alignbit_b32 v{100+8*p+j}, v{L4+j}, v{L2+j}, 16")
        a(f"""ds_write_b128 v4, v[{L0}:{L0+3}] offset:{1024*p}
        ds_write_b128 v4, v[{96+8*p}:{99+8*p}] offset:{1024*p + HCS}
        ds_write_b128 v4, v[{L2}:{L2+3}] offset:{1024*p + 2*HCS}
        ds_write_b128 v4, v[{100+8*p}:{103+8*p}] offset:{1024*p + 3*HCS}""")
    a(f"""v_lshl_or_b32 v88, v89, 16, v88
    v_mul_u32_u24 v5, {HCS}, v5
    v_lshl_add_u32 v5, v6, 2, v5
    v_add_u32 v5, s19, v5
    ds_write_b32 v5, v88
    v_lshlrev_b32 v20, 16, v20""")
    for r in range(32, 64): a(f"v_mov_b32 v{r}, 0")
    a("s_waitcnt vmcnt(12) lgkmcnt(0)\ns_barrier")
    def load_frags(setbase, bi):
        ops = []
        for x in range(8):
            A = setbase + 4 * x
            ops.append(f"ds_read_b64 v[{A}:{A+1}], v17 offset:{512*x + 64*bi}")
            ops.append(f"ds_read_b64 v[{A+2}:{A+3}], v17 offset:{512*x + 64*bi + 8}")
            B = setbase + 32 + 4 * x
            ops.append(f"ds_read_b128 v[{B}:{B+3}], v18 offset:{512*(7-x) + 64*bi}")
        return ops
    sets = (64, 128)
    for op in load_frags(sets[0], 0): a(op)
    for bi in range(4):
        cur = sets[bi & 1]
        nxt = load_frags(sets[(bi + 1) & 1], bi + 1) if bi < 3 else []
        a("s_waitcnt lgkmcnt(0)")
        pairs = [(jt, aa) for m in range(8) for jt in range(8) for aa in range(jt + 1) if max(aa, jt - aa) == m]
        pairs = sorted([(jt, aa) for jt in range(8) for aa in range(jt + 1)], key=lambda p: (p[1], p[0]))
        k = 0
        for idx, (jt, aa) in enumerate(pairs):
            A = cur + 4 * aa; B = cur + 32 + 4 * (jt - aa); C = 32 + 4 * jt
            a(f"v_mfma_f32_16x16x32_bf16 v[{C}:{C+3}], v[{A}:{A+3}], v[{B}:{B+3}], v[{C}:{C+3}]")
            if idx < 24 and k < len(nxt):
                a(nxt[k]); k += 1
    a(f"""v_lshlrev_b32 v4, 4, v1
    s_lshl_b32 s40, s18, 12
    s_add_u32 s40, s40, {EXO}
    v_add_u32 v5, s40, v4
    s_xor_b32 s40, s40, 4096
    v_add_u32 v6, s40, v4
    s_cmp_eq_u32 s17, 0
    s_cbranch_scc0 {name}_x1""")
    for half in range(2):
        own, oth = (32, 48) if half == 0 else (48, 32)
        for i in range(4): a(f"ds_write_b128 v5, v[{oth+4*i}:{oth+4*i+3}] offset:{1024*i}")
        a("s_waitcnt lgkmcnt(0)\ns_barrier")
        for i in range(4): a(f"ds_read_b128 v[{80+4*i}:{83+4*i}], v6 offset:{1024*i}")
        a("s_waitcnt lgkmcnt(0)")
        for i in range(4):
            for h in range(2):
                a(f"v_pk_add_f32 v[{64+4*i+2*h}:{65+4*i+2*h}], v[{own+4*i+2*h}:{own+4*i+2*h+1}], v[{80+4*i+2*h}:{81+4*i+2*h}]")
        if half == 0:
            a(f"s_branch {name}_x2\n{name}_x1:")
    a.label(f"{name}_x2")
    a(f"""v_lshlrev_b32 v7, 5, v11
    v_lshl_add_u32 v7, v12, 3, v7
    s_lshl_b32 s40, s17, 11
    s_sub_u32 s41, s19, s40
    s_add_u32 s41, s41, {XRO + 4088 - 1536}
    v_sub_u32 v7, s41, v7""")
    for i in range(4): a(f"ds_read_b64 v[{96+2*i}:{97+2*i}], v7 offset:{512*(3-i)}")
    a(f"""s_add_u32 s42, s15, {WS['YT']}
    s_add_u32 s43, s15, {WS['X1T']}
    s_waitcnt vmcnt(0) lgkmcnt(0)""")
    for i in range(4):
        O = 64 + 4 * i; kv = 96 + 2 * i; T = 112
        a(f"""v_and_b32 v{T}, 0xffff0000, v{kv+1}
        v_lshlrev_b32 v{T+1}, 16, v{kv+1}
        v_and_b32 v{T+2}, 0xffff0000, v{kv}
        v_lshlrev_b32 v{T+3}, 16, v{kv}
        v_pk_fma_f32 v[{O}:{O+1}], v[{T}:{T+1}], v[20:21], v[{O}:{O+1}] op_sel_hi:[1,0,1]
        v_pk_fma_f32 v[{O+2}:{O+3}], v[{T+2}:{T+3}], v[20:21], v[{O+2}:{O+3}] op_sel_hi:[1,0,1]
        v_cvt_pk_bf16_f32 v{T+4}, v{O}, v{O+1}
        v_cvt_pk_bf16_f32 v{T+5}, v{O+2}, v{O+3}
        buffer_store_dwordx2 v[{T+4}:{T+5}], v14, s[28:31], s42 offen offset:{512*i} {st}
        v_lshlrev_b32 v{O}, 16, v{T+4}
        v_and_b32 v{O+1}, 0xffff0000, v{T+4}
        v_lshlrev_b32 v{O+2}, 16, v{T+5}
        v_and_b32 v{O+3}, 0xffff0000, v{T+5}
        v_lshlrev_b32 v{T}, 16, v{192+2*i}
        v_and_b32 v{T+1}, 0xffff0000, v{192+2*i}
        v_lshlrev_b32 v{T+2}, 16, v{193+2*i}
        v_and_b32 v{T+3}, 0xffff0000, v{193+2*i}
        v_pk_fma_f32 v[{T+6}:{T+7}], v[{T}:{T+1}], v[{200+4*i}:{201+4*i}], v[{216+4*i}:{217+4*i}]
        v_pk_fma_f32 v[{T+8}:{T+9}], v[{T+2}:{T+3}], v[{202+4*i}:{203+4*i}], v[{218+4*i}:{219+4*i}]
        v_pk_fma_f32 v[{T+6}:{T+7}], v[{T+6}:{T+7}], v[{O}:{O+1}], v[{T}:{T+1}]
        v_pk_fma_f32 v[{T+8}:{T+9}], v[{T+8}:{T+9}], v[{O+2}:{O+3}], v[{T+2}:{T+3}]
        v_cvt_pk_bf16_f32 v{T+10}, v{T+6}, v{T+7}
        v_cvt_pk_bf16_f32 v{T+11}, v{T+8}, v{T+9}
        buffer_store_dwordx2 v[{T+10}:{T+11}], v14, s[28:31], s43 offen offset:{512*i} {st}""")
    a.label(f"{name}_end")
    a("s_endpgm")
    return dict(vgpr=232, sgpr=48, lds=CONV_LDS)
```

```python
from common import *
from k_prep import rnd_bf16
L_TX = 131072
L_TY = L_TX + 8192
L_ST = L_TY + 8192
FFN_LDS = L_ST + 2048
V_CS = 32
V_X3 = 44
V_ACC = 52
V_XB = 100
V_T = 116
V_HB = 116
V_T2 = 132
V_W2 = 144
INV = "0x80000000"
def w13(kb, t): b = (kb * 3 + t) * 4; return f"a[{b}:{b+3}]"
def w2(i, dt):
    idx = i * 4 + dt
    if idx < 16: b = 192 + idx * 4; return f"a[{b}:{b+3}]"
    b = V_W2 + (idx - 16) * 4; return f"v[{b}:{b+3}]"
def vr(b, n=4): return f"v[{b}:{b+n-1}]"

def sum_q(a, v, t):
    a(f"""v_mov_b32 v{t}, v{v}
    v_permlane16_swap_b32 v{v}, v{t}
    v_add_f32 v{v}, v{v}, v{t}
    v_mov_b32 v{t}, v{v}
    v_permlane32_swap_b32 v{v}, v{t}
    v_add_f32 v{v}, v{v}, v{t}""")
def ln_core(a, vsum, vsq):
    a(f"""v_mul_f32 v{vsum}, 0x3b000000, v{vsum}
    v_mul_f32 v{vsq}, 0x3b000000, v{vsq}
    v_fma_f32 v{vsq}, -v{vsum}, v{vsum}, v{vsq}
    v_max_f32 v{vsq}, 0, v{vsq}""")
    rnd_bf16(a, vsq)
    a(f"v_add_f32 v{vsq}, 0x3727c5ac, v{vsq}")
    rnd_bf16(a, vsq)
    a(f"v_sqrt_f32 v{vsq}, v{vsq}")
    rnd_bf16(a, vsq)
    rnd_bf16(a, vsum)

def gbar(a, name, epoch):
    L = a.newlabel(name + "_gb")
    a(f"""s_waitcnt vmcnt(0) lgkmcnt(0)
    s_barrier
    s_cmp_lg_u32 s18, 0
    s_cbranch_scc1 {L}_j
    v_mov_b32 v2, {epoch}
    v_mov_b32 v3, s24
    s_mov_b64 exec, 1
    buffer_store_dword v2, v3, s[28:31], 0 offen sc1
    s_mov_b64 exec, -1
    s_mov_b32 s36, 0
    {L}_p:
    buffer_load_dword v2, v30, s[28:31], 0 offen sc1
    s_add_u32 s36, s36, 1
    s_waitcnt vmcnt(0)
    v_cmp_le_u32 vcc, {epoch}, v2
    s_cmp_gt_u32 s36, 100000
    s_cbranch_scc1 {L}_j
    s_cmp_eq_u64 vcc, -1
    s_cbranch_scc0 {L}_p
    {L}_j:
    s_barrier""")

def emit_ffn_setup(a, name):
    a(f"""s_cmp_ge_u32 s2, 256
    s_cbranch_scc1 {name}_end
    s_load_dwordx2 s[12:13], s[0:1], {ARG['ws']}
    s_load_dwordx2 s[14:15], s[0:1], {ARG['out']}
    v_lshrrev_b32 v3, 6, v0
    v_and_b32 v1, 63, v0
    v_readfirstlane_b32 s18, v3
    s_and_b32 s19, s2, 7
    s_lshr_b32 s21, s2, 3
    s_and_b32 s20, s21, 1
    s_lshl_b32 s19, s19, 1
    s_or_b32 s20, s20, s19
    s_lshr_b32 s21, s21, 1
    s_lshr_b32 s22, s21, 3
    s_and_b32 s23, s21, 7
    s_waitcnt lgkmcnt(0)""")
    srd(a, 28, 12, WS['END'])
    srd(a, 32, 14, S * D * 2)
    a(f"""s_lshl_b32 s24, s20, 4
    s_add_u32 s24, s24, s21
    s_lshl_b32 s24, s24, 6
    s_add_u32 s24, s24, {WS['SYNC'] + SYNC_FLAGS}
    v_and_b32 v30, 15, v1
    v_lshlrev_b32 v30, 6, v30
    s_lshl_b32 s36, s20, 10
    s_add_u32 s36, s36, {WS['SYNC'] + SYNC_FLAGS}
    v_add_u32 v30, s36, v30
    v_lshlrev_b32 v31, 4, v1""")
    for t in range(3):
        a(f"""s_mul_i32 s36, s18, 3
        s_add_u32 s36, s36, {t}
        s_mul_i32 s37, s21, 11
        s_add_u32 s37, s37, s36
        s_cmp_lt_u32 s36, 11
        s_cselect_b32 s38, s37, 0x7fff
        s_cmp_lt_u32 s38, 172
        s_cselect_b32 s39, 1, 0
        s_lshl_b32 s{40+t}, s37, 14
        s_add_u32 s{40+t}, s{40+t}, {WS['WF13']}
        s_lshr_b32 s{44+t}, s37, 1
        s_lshl_b32 s{44+t}, s{44+t}, 9
        s_and_b32 s37, s37, 1
        s_lshl_b32 s37, s37, 8
        s_add_u32 s{44+t}, s{44+t}, s37
        s_cmp_eq_u32 s39, 1
        s_cselect_b32 s{40+t}, s{40+t}, {INV}
        s_cselect_b32 s{44+t}, s{44+t}, {INV}""")

def emit_tiles_dma(a):
    a(f"""v_lshrrev_b32 v2, 3, v1
    v_and_b32 v3, 7, v1
    v_lshlrev_b32 v2, 12, v2
    v_lshl_add_u32 v2, v3, 4, v2
    s_lshl_b32 s36, s23, 18
    s_lshl_b32 s37, s18, 16
    s_add_u32 s36, s36, s37
    s_lshl_b32 s37, s20, 8
    s_add_u32 s36, s36, s37
    s_lshl_b32 s37, s22, 7
    s_add_u32 s36, s36, s37
    s_lshl_b32 s38, s18, 11""")
    for arr, lb in (('X1T', L_TX), ('YT', L_TY)):
        for i in range(2):
            a(f"""s_add_u32 s37, s36, {WS[arr] + i * 8 * 4096}
            s_add_u32 m0, s38, {lb + i * 1024}
            buffer_load_dwordx4 v2, s[28:31], s37 offen lds""")

def emit_x1_dma(a, hf):
    if hf == 0:
        a(f"""v_lshrrev_b32 v2, 3, v1
        v_bfe_u32 v3, v1, 1, 2
        v_bfe_u32 v6, v1, 4, 1
        v_xor_b32 v3, v3, v6
        v_and_b32 v6, 1, v1
        v_lshlrev_b32 v6, 4, v6
        v_lshl_add_u32 v6, v2, 12, v6
        v_lshl_add_u32 v4, v3, 5, v6
        v_xor_b32 v3, 2, v3
        v_lshl_add_u32 v5, v3, 5, v6""")
    a(f"""s_lshl_b32 s36, s18, 19
    s_lshl_b32 s37, s20, 8
    s_add_u32 s36, s36, s37
    s_add_u32 s36, s36, {WS['X1T'] + hf * 128}
    s_lshl_b32 s38, s18, 14
    s_add_u32 s38, s38, {hf * 65536}""")
    for n in range(16):
        a(f"""s_add_u32 m0, s38, {n * 1024}
        buffer_load_dwordx4 v{5 if (n >> 1) & 1 else 4}, s[28:31], s36 offen lds""")
        if n < 15: a(f"s_add_u32 s36, s36, {8 * 4096}")

def emit_x3_dma(a):
    for hf in range(2):
        a(f"""s_lshl_b32 s36, s20, 3
        s_add_u32 s36, s36, s18
        s_add_u32 s36, s36, {4*hf}
        s_lshl_b32 s36, s36, 14
        s_add_u32 s36, s36, {WS['X3']}
        s_lshl_b32 s38, s18, 14
        s_add_u32 s38, s38, {hf * 65536}""")
        for n in range(16):
            a(f"""s_add_u32 m0, s38, {n * 1024}
            buffer_load_dwordx4 v31, s[28:31], s36 offen sc1 lds""")
            if n < 15: a("s_add_u32 s36, s36, 1024")

def emit_w13_loads(a):
    for kb in range(16):
        for t in range(3):
            a(f"s_add_u32 s36, s{40+t}, {kb*1024}\nbuffer_load_dwordx4 {w13(kb,t)}, v31, s[28:31], s36 offen")
def emit_w2_loads(a):
    a(f"""s_mul_i32 s36, s23, 43
    s_mul_i32 s37, s18, 11
    s_add_u32 s36, s36, s37
    s_lshl_b32 s48, s36, 12
    s_add_u32 s48, s48, {WS['WF2']}
    s_cmp_eq_u32 s18, 3
    s_cselect_b32 s49, {INV}, s48""")
    for i in range(11):
        for dt in range(4):
            a(f"s_add_u32 s36, s{49 if i == 10 else 48}, {(i*4+dt)*1024}\nbuffer_load_dwordx4 {w2(i,dt)}, v31, s[28:31], s36 offen")
def emit_cs(a):
    a(f"v_mov_b32 v{V_XB}, 0x3f803f80\nv_mov_b32 v{V_XB+1}, 0x3f803f80\nv_mov_b32 v{V_XB+2}, 0x3f803f80\nv_mov_b32 v{V_XB+3}, 0x3f803f80")
    for kb in range(16):
        for t in range(3):
            c = V_CS + 4 * t
            a(f"v_mfma_f32_16x16x32_bf16 {vr(c)}, {w13(kb,t)}, {vr(V_XB)}, {'0' if kb == 0 else vr(c)}")

def emit_g1(a, name, layer, hbase):
    tr = layer == 1
    L = a.newlabel(name + "_g1")
    a(f"""v_and_b32 v2, 15, v1
    v_lshrrev_b32 v3, 4, v1""")
    for x in range(4):
        a(f"""s_add_u32 s36, s18, {x}
        s_and_b32 s36, s36, 3""")
        if tr:
            a(f"""v_bfe_u32 v4, v1, 2, 2
            v_lshl_add_u32 v5, v3, 4, v4
            v_lshlrev_b32 v5, 7, v5
            v_lshrrev_b32 v4, 1, v4
            v_and_b32 v6, 1, v3
            v_lshl_or_b32 v4, v6, 1, v4
            v_xor_b32 v4, s36, v4
            v_lshl_add_u32 v5, v4, 5, v5
            v_and_b32 v6, 3, v1
            v_lshl_add_u32 v{8+x}, v6, 3, v5""")
        else:
            a(f"""s_lshl_b32 s37, s36, 14
            v_add_u32 v{8+x}, s37, v31""")
        a(f"""s_lshl_b32 s37, s36, 8
        s_add_u32 s37, s37, {L_ST}
        v_lshl_add_u32 v{15+x}, v2, 4, s37""")
    for p in range(2):
        a(f"""v_lshrrev_b32 v4, 5, v1
        v_add_u32 v4, s18, v4
        v_add_u32 v4, {2*p}, v4
        v_and_b32 v4, 3, v4
        v_mul_u32_u24 v5, {HT}, v4
        v_bfe_u32 v6, v1, 4, 1
        v_lshl_add_u32 v5, v6, 7, v5
        v_lshl_add_u32 v{12+p}, v2, 3, v5
        v_lshlrev_b32 v4, 8, v4
        v_lshl_add_u32 v4, v2, 4, v4
        v_add_u32 v{19+p}, {L_ST}, v4""")
    a(f"""s_lshl_b32 s36, s18, 8
    s_add_u32 s36, s36, {L_ST}
    v_lshl_add_u32 v14, v2, 4, s36
    s_mul_i32 s36, s20, {8*HT}
    s_add_u32 s36, s36, {hbase}""")
    for t in range(3): a(f"s_add_u32 s{52+t}, s{44+t}, s36")
    a(f"s_mov_b32 s50, 0\nv_mov_b32 v21, 0x3f803f80")
    a(f"s_waitcnt vmcnt(0)\ns_barrier")
    a.label(L)
    def rd(n):
        kb, x = n >> 2, n & 3
        B = V_XB + 4 * x
        if tr:
            off = (kb >> 1) * 8192 + (kb & 1) * 1024
            return [f"ds_read_b64_tr_b16 v[{B}:{B+1}], v{8+x} offset:{off}", f"ds_read_b64_tr_b16 v[{B+2}:{B+3}], v{8+x} offset:{off+512}"]
        return [f"ds_read_b128 {vr(B)}, v{8+x} offset:{kb*1024}"]
    per = 2 if tr else 1
    a("v_mov_b32 v22, 0\nv_mov_b32 v23, 0")
    for n in range(3):
        for op in rd(n): a(op)
    for n in range(64):
        kb, x = n >> 2, n & 3
        infl = min(2, 63 - n)
        a(f"s_waitcnt lgkmcnt({infl*per})")
        B = V_XB + 4 * x
        for t in range(3):
            c = V_ACC + (x * 3 + t) * 4
            a(f"v_mfma_f32_16x16x32_bf16 {vr(c)}, {w13(kb,t)}, {vr(B)}, {'0' if kb == 0 else vr(c)}")
            if t == 0 and n + 3 < 64:
                for op in rd(n + 3): a(op)
            if x == 0 and t >= 1:
                for jj in (2 * (t - 1), 2 * (t - 1) + 1):
                    a(f"v_dot2_f32_bf16 v22, v{B+jj}, v21, v22\nv_dot2_f32_bf16 v23, v{B+jj}, v{B+jj}, v23")
    sum_q(a, 22, 24); sum_q(a, 23, 24)
    ln_core(a, 22, 23)
    a(f"""v_rcp_f32 v24, v23
    v_mul_f32 v{V_T+1}, v23, v23
    v_mul_f32 v{V_T}, 0xbfb8aa3b, v24
    v_sub_f32 v{V_T+2}, 0, v22
    v_mov_b32 v{V_T+3}, 0
    ds_write_b128 v14, {vr(V_T)}
    s_waitcnt lgkmcnt(0)
    s_barrier""")
    for x in range(4): a(f"ds_read_b32 v{V_T+2*x}, v{15+x} offset:8")
    for p in range(2): a(f"ds_read_b64 v[{V_T+8+2*p}:{V_T+9+2*p}], v{19+p}")
    a("s_waitcnt lgkmcnt(0)")
    T = V_T + 12
    for p in range(2):
        c1 = V_T + 8 + 2 * p; ir = c1 + 1
        for t in range(3):
            A0 = V_ACC + ((2 * p) * 3 + t) * 4; A1 = V_ACC + ((2 * p + 1) * 3 + t) * 4; cs = V_CS + 4 * t
            for (A, x) in ((A0, 2 * p), (A1, 2 * p + 1)):
                for h in range(2):
                    a(f"v_pk_fma_f32 v[{A+2*h}:{A+2*h+1}], v[{cs+2*h}:{cs+2*h+1}], v[{V_T+2*x}:{V_T+2*x+1}], v[{A+2*h}:{A+2*h+1}] op_sel_hi:[1,0,1]")
            for r in range(4): a(f"v_permlane32_swap_b32 v{A0+r}, v{A1+r}")
            for h in range(2):
                a(f"v_pk_mul_f32 v[{T+2*h}:{T+2*h+1}], v[{A0+2*h}:{A0+2*h+1}], v[{c1}:{c1+1}] op_sel_hi:[1,0]")
            for r in range(4): a(f"v_exp_f32 v{T+r}, v{T+r}")
            for h in range(2):
                a(f"v_pk_mul_f32 v[{A0+2*h}:{A0+2*h+1}], v[{A0+2*h}:{A0+2*h+1}], v[{A1+2*h}:{A1+2*h+1}]")
            for h in range(2):
                a(f"v_pk_fma_f32 v[{T+2*h}:{T+2*h+1}], v[{T+2*h}:{T+2*h+1}], v[{c1}:{c1+1}], v[{c1}:{c1+1}] op_sel:[0,1,1] op_sel_hi:[1,1,1]")
            for r in range(4): a(f"v_rcp_f32 v{T+r}, v{T+r}")
            for h in range(2):
                a(f"v_pk_mul_f32 v[{A0+2*h}:{A0+2*h+1}], v[{A0+2*h}:{A0+2*h+1}], v[{T+2*h}:{T+2*h+1}]")
            a(f"""v_cvt_pk_bf16_f32 v{T+4}, v{A0}, v{A0+1}
            v_cvt_pk_bf16_f32 v{T+5}, v{A0+2}, v{A0+3}
            buffer_store_dwordx2 v[{T+4}:{T+5}], v{12+p}, s[28:31], s{52+t} offen sc1""")
    for x in range(4):
        a(f"v_add_u32 v{8+x}, 0x10000, v{8+x}\nv_add_u32 v{15+x}, 1024, v{15+x}")
    for p in range(2):
        a(f"v_add_u32 v{12+p}, {4*HT}, v{12+p}\nv_add_u32 v{19+p}, 1024, v{19+p}")
    a(f"""v_add_u32 v14, 1024, v14
    s_add_u32 s50, s50, 1
    s_cmp_lt_u32 s50, 2
    s_cbranch_scc1 {L}""")

def emit_g2(a, name, layer, hbase):
    ACC = V_ACC
    acc = lambda dt, x: ACC + (x * 4 + dt) * 4
    for x in range(4):
        a(f"""s_add_u32 s36, s18, {x}
        s_and_b32 s36, s36, 3
        s_lshl_b32 s37, s20, 3
        s_add_u32 s36, s36, s37
        s_lshl_b32 s37, s22, 2
        s_add_u32 s36, s36, s37
        s_mul_i32 s36, s36, {HT}
        s_mul_i32 s37, s18, {11*1024}
        s_add_u32 s36, s36, s37
        s_add_u32 s{56+x}, s36, {hbase}
        s_cmp_eq_u32 s18, 3
        s_cselect_b32 s{60+x}, {INV}, s{56+x}""")
    a(f"""s_lshl_b32 s51, s18, 15
    v_lshrrev_b32 v2, 4, v1
    v_and_b32 v3, 15, v1
    v_lshlrev_b32 v8, 7, v2
    v_lshl_add_u32 v8, v3, 3, v8
    v_add_u32 v8, s51, v8""")
    def dma(i):
        for x in range(4):
            a(f"""s_add_u32 s36, s{(60 if i == 10 else 56)+x}, {i*1024}
            s_add_u32 m0, s51, {(i % 8)*4096 + x*1024}
            buffer_load_dwordx4 v31, s[28:31], s36 offen sc1 lds""")
    for i in range(8): dma(i)
    def rd(n):
        i, x = n >> 2, n & 3
        B = V_HB + 4 * x; off = (i % 8) * 4096 + x * 1024
        return [f"ds_read_b64 v[{B}:{B+1}], v8 offset:{off}", f"ds_read_b64 v[{B+2}:{B+3}], v8 offset:{off+512}"]
    def vmwait(b, issued):
        a(f"s_waitcnt vmcnt({(issued - 1 - b) * 4})")
    issued = 8
    vmwait(0, issued)
    for n in range(3):
        for op in rd(n): a(op)
    for n in range(44):
        i, x = n >> 2, n & 3
        if x == 0 and 1 <= i <= 3:
            dma(i + 7); issued += 1
        infl = min(2, 43 - n)
        a(f"s_waitcnt lgkmcnt({infl*2})")
        B = V_HB + 4 * x
        for dt in range(4):
            c = acc(dt, x)
            a(f"v_mfma_f32_16x16x32_bf16 {vr(c)}, {w2(i,dt)}, {vr(B)}, {'0' if i == 0 else vr(c)}")
            if dt == 0 and n + 3 < 44:
                if (n + 3) & 3 == 0: vmwait((n + 3) >> 2, issued)
                for op in rd(n + 3): a(op)
    a(f"v_add_u32 v9, s51, v31")
    for x in range(1, 4):
        for dt in range(4):
            a(f"ds_write_b128 v9, {vr(acc(dt,x))} offset:{((x-1)*4+dt)*1024}")
    for x in range(1, 4):
        a(f"""s_sub_u32 s36, s18, {x}
        s_and_b32 s36, s36, 3
        s_lshl_b32 s36, s36, 15
        v_add_u32 v{9+x}, s36, v31""")
    a("s_waitcnt lgkmcnt(0)\ns_barrier")
    for x in range(1, 4):
        for dt in range(4):
            a(f"ds_read_b128 {vr(acc(dt,x))}, v{9+x} offset:{((x-1)*4+dt)*1024}")
    for x in range(1, 4):
        a(f"s_waitcnt lgkmcnt({(3-x)*4})")
        for dt in range(4):
            for h in range(2):
                c, o = acc(dt, 0) + 2 * h, acc(dt, x) + 2 * h
                a(f"v_pk_add_f32 v[{c}:{c+1}], v[{c}:{c+1}], v[{o}:{o+1}]")
    O = ACC
    X = ACC + 16
    if layer == 1:
        a(f"""v_bfe_u32 v4, v1, 2, 2
        v_lshl_add_u32 v4, v2, 4, v4
        v_lshlrev_b32 v4, 7, v4
        v_and_b32 v5, 3, v1
        v_lshl_add_u32 v4, v5, 3, v4
        s_lshl_b32 s36, s18, 5
        s_add_u32 s36, s36, {L_TX}
        v_add_u32 v4, s36, v4""")
        P = ACC + 32; Yp = ACC + 40
        for dt in range(4):
            a(f"ds_read_b64_tr_b16 v[{P+2*dt}:{P+2*dt+1}], v4 offset:{dt*512}")
            a(f"ds_read_b64_tr_b16 v[{Yp+2*dt}:{Yp+2*dt+1}], v4 offset:{8192+dt*512}")
        a("s_waitcnt lgkmcnt(0)")
    else:
        P = V_X3
    for k in range(8):
        a(f"v_lshlrev_b32 v{X+2*k}, 16, v{P+k}\nv_and_b32 v{X+2*k+1}, 0xffff0000, v{P+k}")
    for k in range(8):
        a(f"v_pk_add_f32 v[{O+2*k}:{O+2*k+1}], v[{O+2*k}:{O+2*k+1}], v[{X+2*k}:{X+2*k+1}]")
    PK = ACC + 48
    for k in range(8): a(f"v_cvt_pk_bf16_f32 v{PK+k}, v{O+2*k}, v{O+2*k+1}")
    if layer == 2:
        a(f"""s_lshl_b32 s36, s20, 7
        s_lshl_b32 s37, s22, 6
        s_add_u32 s36, s36, s37
        s_lshl_b32 s37, s18, 4
        s_add_u32 s36, s36, s37
        s_lshl_b32 s36, s36, 10
        s_lshl_b32 s37, s23, 7
        s_add_u32 s36, s36, s37
        v_lshlrev_b32 v4, 10, v3
        v_lshl_add_u32 v4, v2, 5, v4
        buffer_store_dwordx4 {vr(PK)}, v4, s[32:35], s36 offen
        buffer_store_dwordx4 {vr(PK+4)}, v4, s[32:35], s36 offen offset:16""")
        return
    for k in range(8):
        a(f"v_lshlrev_b32 v{X+2*k}, 16, v{PK+k}\nv_and_b32 v{X+2*k+1}, 0xffff0000, v{PK+k}")
    a(f"v_mov_b32 v22, 0\nv_mov_b32 v23, 0\nv_mov_b32 v21, 0x3f803f80")
    for k in range(8):
        a(f"v_dot2_f32_bf16 v22, v{PK+k}, v21, v22\nv_dot2_f32_bf16 v23, v{PK+k}, v{PK+k}, v23")
    sum_q(a, 22, 24); sum_q(a, 23, 24)
    L = a.newlabel(name + "_hop")
    a(f"""v_or_b32 v23, 0x80000000, v23
    s_lshl_b32 s36, s20, 1
    s_add_u32 s36, s36, s22
    s_lshl_b32 s36, s36, 12
    s_lshl_b32 s37, s18, 7
    s_add_u32 s36, s36, s37
    s_add_u32 s36, s36, {WS['SYNC'] + SYNC_ST2}
    s_lshl_b32 s37, s23, 9
    s_add_u32 s37, s37, s36
    v_lshlrev_b32 v4, 3, v3
    s_mov_b64 exec, 0xffff
    buffer_store_dwordx2 v[22:23], v4, s[28:31], s37 offen sc1
    s_mov_b64 exec, -1
    v_lshl_add_u32 v5, v2, 10, v4
    s_mov_b32 s38, 0
    {L}_p:
    buffer_load_dwordx2 v[24:25], v5, s[28:31], s36 offen sc1
    buffer_load_dwordx2 v[26:27], v5, s[28:31], s36 offen offset:512 sc1
    s_add_u32 s38, s38, 1
    s_waitcnt vmcnt(0)
    v_and_b32 v6, v25, v27
    v_cmp_gt_i32 vcc, 0, v6
    s_cmp_gt_u32 s38, 100000
    s_cbranch_scc1 {L}_d
    s_cmp_eq_u64 vcc, -1
    s_cbranch_scc0 {L}_p
    {L}_d:
    v_and_b32 v25, 0x7fffffff, v25
    v_and_b32 v27, 0x7fffffff, v27
    v_add_f32 v22, v24, v26
    v_add_f32 v23, v25, v27""")
    sum_q(a, 22, 24); sum_q(a, 23, 24)
    ln_core(a, 22, 23)
    a(f"""v_rcp_f32 v24, v23
    v_sub_f32 v22, 0, v22
    v_mul_f32 v26, v22, v24""")
    for k in range(8):
        a(f"""v_lshlrev_b32 v{O}, 16, v{Yp+k}
        v_and_b32 v{O+1}, 0xffff0000, v{Yp+k}
        v_pk_fma_f32 v[{O+2}:{O+3}], v[{X+2*k}:{X+2*k+1}], v[24:25], v[26:27] op_sel_hi:[1,0,0]
        v_pk_fma_f32 v[{O+2}:{O+3}], v[{O+2}:{O+3}], v[{O}:{O+1}], v[{X+2*k}:{X+2*k+1}]
        v_cvt_pk_bf16_f32 v{V_X3+k}, v{O+2}, v{O+3}""")
    a(f"""s_lshl_b32 s36, s20, 3
    s_lshl_b32 s37, s22, 2
    s_add_u32 s36, s36, s37
    s_add_u32 s36, s36, s18
    s_lshl_b32 s36, s36, 14
    s_lshl_b32 s37, s23, 11
    s_add_u32 s36, s36, s37
    s_add_u32 s36, s36, {WS['X3']}
    buffer_store_dwordx4 {vr(V_X3)}, v31, s[28:31], s36 offen sc1
    buffer_store_dwordx4 {vr(V_X3+4)}, v31, s[28:31], s36 offen offset:1024 sc1""")

def emit_ffn(a, name="ffn_kernel"):
    kbegin(a, name)
    emit_ffn_setup(a, name)
    emit_x1_dma(a, 0)
    emit_x1_dma(a, 1)
    emit_tiles_dma(a)
    a("s_waitcnt vmcnt(12)")
    emit_w13_loads(a)
    a("s_waitcnt vmcnt(16)")
    emit_w2_loads(a)
    a("s_waitcnt vmcnt(44)")
    emit_cs(a)
    emit_g1(a, name, 1, WS['H1'])
    gbar(a, name, 1)
    emit_g2(a, name, 1, WS['H1'])
    gbar(a, name, 2)
    emit_x3_dma(a)
    emit_g1(a, name, 2, WS['H2'])
    gbar(a, name, 3)
    emit_g2(a, name, 2, WS['H2'])
    a.label(f"{name}_end")
    a("s_endpgm")
    return dict(vgpr=512, sgpr=72, lds=FFN_LDS, accum=256)
```

```python
from common import *
from k_wprep import *
def allsum64(a, v, t):
    for r in (8, 4, 2, 1):
        a(f"v_add_f32_dpp v{v}, v{v}, v{v} row_ror:{r} row_mask:0xf bank_mask:0xf")
    a(f"""v_mov_b32 v{t}, v{v}
    v_permlane16_swap_b32 v{v}, v{t}
    v_add_f32 v{v}, v{v}, v{t}
    v_mov_b32 v{t}, v{v}
    v_permlane32_swap_b32 v{v}, v{t}
    v_add_f32 v{v}, v{v}, v{t}""")
def rnd_bf16(a, v):
    a(f"v_cvt_pk_bf16_f32 v{v}, v{v}, v{v}\nv_and_b32 v{v}, 0xffff0000, v{v}")
def ln_finish(a, vsum, vsq, n):
    inv = {512: "0x3b000000"}[n]
    a(f"""v_mul_f32 v{vsum}, {inv}, v{vsum}
    v_mul_f32 v{vsq}, {inv}, v{vsq}
    v_fma_f32 v{vsq}, -v{vsum}, v{vsum}, v{vsq}
    v_max_f32 v{vsq}, 0, v{vsq}""")
    rnd_bf16(a, vsq)
    a(f"v_add_f32 v{vsq}, 0x3727c5ac, v{vsq}")
    rnd_bf16(a, vsq)
    a(f"v_sqrt_f32 v{vsq}, v{vsq}")
    rnd_bf16(a, vsq)
    a(f"v_rcp_f32 v{vsq}, v{vsq}")
    rnd_bf16(a, vsum)
    a(f"v_mul_f32 v{vsum}, -v{vsum}, v{vsq}")

def emit_prep(a, name="prep_kernel", standalone=True):
    kbegin(a, name)
    a(f"""s_cmp_ge_u32 s2, 256
    s_cbranch_scc1 {name}_end
    s_load_dwordx4 s[4:7], s[0:1], {ARG['q']}
    s_load_dwordx4 s[8:11], s[0:1], {ARG['v']}
    s_load_dwordx2 s[12:13], s[0:1], {ARG['ws']}
    s_and_b32 s14, s2, 7
    s_lshr_b32 s15, s2, 3
    v_and_b32 v1, 7, v0
    v_lshrrev_b32 v2, 3, v0
    v_lshrrev_b32 v3, 6, v0
    s_lshl_b32 s16, s14, 7
    s_lshl_b32 s17, s15, 16
    s_add_u32 s16, s16, s17
    v_lshlrev_b32 v4, 4, v1
    v_lshlrev_b32 v5, 11, v2
    v_add3_u32 v4, v4, v5, s16
    v_readfirstlane_b32 s18, v3
    s_waitcnt lgkmcnt(0)""")
    srd(a, 20, 4, S * D * 2)
    srd(a, 24, 6, S * D * 2)
    srd(a, 28, 8, S * D * 2)
    srd(a, 32, 10, D * 8)
    srd(a, 36, 12, WS['END'])
    a(f"""v_mov_b32 v76, 0
    v_mov_b32 v77, 0
    v_mov_b32 v78, 0
    v_mov_b32 v79, 0
    s_mul_i32 s19, s2, {SYNC_SIZE // 256}
    s_add_u32 s19, s19, {WS['SYNC']}
    v_lshlrev_b32 v10, 4, v0
    v_cmp_gt_u32 vcc, {SYNC_SIZE // 256}, v10
    v_add_u32 v10, s19, v10
    s_and_saveexec_b64 s[42:43], vcc
    s_cbranch_execz {name}_nz
    buffer_store_dwordx4 v[76:79], v10, s[36:39], 0 offen
    {name}_nz:
    s_mov_b64 exec, s[42:43]""")
    a(f"""v_subrev_u32 v5, 3072, v4
    v_subrev_u32 v6, 2048, v4
    v_subrev_u32 v7, 1024, v4
    buffer_load_dwordx4 v[16:19], v5, s[24:27], 0 offen
    buffer_load_dwordx4 v[20:23], v6, s[24:27], 0 offen
    buffer_load_dwordx4 v[24:27], v7, s[24:27], 0 offen
    buffer_load_dwordx4 v[28:31], v4, s[24:27], 0 offen
    buffer_load_dwordx4 v[32:35], v4, s[24:27], 0 offen offset:1024
    buffer_load_dwordx4 v[36:39], v4, s[28:31], 0 offen
    buffer_load_dwordx4 v[40:43], v4, s[28:31], 0 offen offset:1024
    s_lshl_b32 s19, s14, 9
    v_lshlrev_b32 v8, 6, v1
    v_add_u32 v8, s19, v8
    buffer_load_dwordx4 v[44:47], v8, s[32:35], 0 offen
    buffer_load_dwordx4 v[48:51], v8, s[32:35], 0 offen offset:16
    buffer_load_dwordx4 v[52:55], v8, s[32:35], 0 offen offset:32
    buffer_load_dwordx4 v[56:59], v8, s[32:35], 0 offen offset:48
    buffer_load_dwordx4 v[60:63], v4, s[20:23], 0 offen
    buffer_load_dwordx4 v[64:67], v4, s[20:23], 0 offen offset:1024""")
    a(f"""v_and_b32 v9, 63, v0
    v_lshlrev_b32 v9, 4, v9
    s_lshl_b32 s19, s2, 13
    s_lshl_b32 s40, s18, 11
    s_add_u32 s19, s19, s40
    v_add_u32 v9, s19, v9
    buffer_load_dwordx4 v[68:71], v9, s[20:23], 0 offen
    buffer_load_dwordx4 v[72:75], v9, s[20:23], 0 offen offset:1024""")
    emit_wprep_issue(a, name, 16384)
    a(f"""v_sub_u32 v11, 31, v2
    v_lshlrev_b32 v12, 2, v1
    v_xor_b32 v11, v11, v12
    v_lshlrev_b32 v11, 2, v11
    v_lshlrev_b32 v13, 10, v1
    v_add_u32 v11, v11, v13
    v_xor_b32 v12, v2, v12
    v_lshlrev_b32 v12, 2, v12
    v_add_u32 v12, v12, v13
    v_add_u32 v12, 8192, v12""")
    a("s_waitcnt vmcnt(9)")
    for j in range(8):
        a(f"""v_lshlrev_b32 v{80+j}, 16, v{44+2*j}
        v_and_b32 v{88+j}, 0xffff0000, v{44+2*j}
        v_lshlrev_b32 v{96+j}, 16, v{45+2*j}
        v_and_b32 v{104+j}, 0xffff0000, v{45+2*j}""")
    for i in range(5):
        for p in range(4):
            a(f"""v_lshlrev_b32 v{112+8*i+2*p}, 16, v{16+4*i+p}
            v_and_b32 v{113+8*i+2*p}, 0xffff0000, v{16+4*i+p}""")
    for row in range(2):
        for p in range(4):
            d = 152 + 8 * row + 2 * p
            a(f"v_pk_mul_f32 v[{d}:{d+1}], v[{112+8*row+2*p}:{113+8*row+2*p}], v[{104+2*p}:{105+2*p}]")
            for tt, tap in ((1, 2), (2, 1), (3, 0)):
                k = 112 + 8 * (row + tt) + 2 * p
                s_ = 80 + 8 * tap + 2 * p
                a(f"v_pk_fma_f32 v[{d}:{d+1}], v[{k}:{k+1}], v[{s_}:{s_+1}], v[{d}:{d+1}]")
    for row in range(2):
        for p in range(4):
            a(f"""v_lshlrev_b32 v{112+8*row+2*p}, 16, v{36+4*row+p}
            v_and_b32 v{113+8*row+2*p}, 0xffff0000, v{36+4*row+p}""")
        for p in range(4):
            d = 152 + 8 * row + 2 * p
            a(f"v_pk_mul_f32 v[{d}:{d+1}], v[{d}:{d+1}], v[{112+8*row+2*p}:{113+8*row+2*p}]")
    for j in range(8):
        a(f"v_cvt_pk_bf16_f32 v{80+j}, v{160+j}, v{152+j}")
    for j in range(8):
        a(f"ds_write_b32 v11, v{80+j} offset:{128*j}")
    a("s_waitcnt vmcnt(7)")
    a("s_mov_b32 s40, 0x05040100\ns_mov_b32 s41, 0x07060302")
    for p in range(4):
        a(f"""v_perm_b32 v{88+2*p}, v{64+p}, v{60+p}, s40
        v_perm_b32 v{89+2*p}, v{64+p}, v{60+p}, s41""")
    for j in range(8):
        a(f"ds_write_b32 v12, v{88+j} offset:{128*j}")
    a("s_waitcnt vmcnt(5)")
    a("v_mov_b32 v14, 0x3f803f80")
    for row in range(2):
        su, sq = 96 + 2 * row, 97 + 2 * row
        b = 68 + 4 * row
        a(f"v_mov_b32 v{su}, 0\nv_mov_b32 v{sq}, 0")
        for p in range(4):
            a(f"v_dot2_f32_bf16 v{su}, v{b+p}, v14, v{su}\nv_dot2_f32_bf16 v{sq}, v{b+p}, v{b+p}, v{sq}")
    for r in (96, 97, 98, 99): allsum64(a, r, 100)
    ln_finish(a, 96, 97, 512)
    ln_finish(a, 98, 99, 512)
    a(f"""v_mov_b32 v102, v97
    v_mov_b32 v103, v99
    v_mov_b32 v104, v96
    v_mov_b32 v105, v98
    s_lshl_b32 s19, s2, 5
    s_lshl_b32 s40, s18, 3
    s_add_u32 s19, s19, s40
    s_add_u32 s19, s19, {WS['RS0']}
    v_mov_b32 v101, s19
    s_mov_b32 s41, {WS['C0']-WS['RS0']}
    s_mov_b64 exec, 1
    buffer_store_dwordx2 v[102:103], v101, s[36:39], 0 offen
    buffer_store_dwordx2 v[104:105], v101, s[36:39], s41 offen
    s_mov_b64 exec, -1""")
    a(f"""s_waitcnt vmcnt(0) lgkmcnt(0)
    s_barrier""")
    emit_wprep_finish(a, name, 16384)
    a(f"""v_and_b32 v1, 7, v0
    v_lshrrev_b32 v2, 3, v0
    v_lshrrev_b32 v3, 6, v0
    v_xor_b32 v5, v1, v3
    v_lshlrev_b32 v5, 4, v5
    v_lshlrev_b32 v6, 7, v2
    v_add_u32 v5, v5, v6""")
    a(f"""v_xor_b32 v7, 64, v5
    ds_read_b128 v[16:19], v5
    ds_read_b128 v[20:23], v7 offset:4096
    ds_read_b128 v[24:27], v5 offset:8192
    ds_read_b128 v[28:31], v7 offset:{8192+4096}
    s_lshl_b32 s19, s14, 18
    s_lshl_b32 s40, s15, 7
    s_sub_u32 s41, s19, s40
    s_add_u32 s41, s41, {WS['XR'] + 1984*2}
    s_add_u32 s40, s19, s40
    s_add_u32 s40, s40, {WS['QT']}
    v_lshlrev_b32 v8, 12, v2
    v_lshlrev_b32 v9, 4, v1
    v_add_u32 v8, v8, v9
    v_add_u32 v9, 0x20000, v8
    s_waitcnt lgkmcnt(3)
    buffer_store_dwordx4 v[16:19], v8, s[36:39], s41 offen
    s_waitcnt lgkmcnt(2)
    buffer_store_dwordx4 v[20:23], v9, s[36:39], s41 offen
    s_waitcnt lgkmcnt(1)
    buffer_store_dwordx4 v[24:27], v8, s[36:39], s40 offen
    s_waitcnt lgkmcnt(0)
    buffer_store_dwordx4 v[28:31], v9, s[36:39], s40 offen""")
    a.label(f"{name}_end")
    a("s_endpgm")
    return dict(vgpr=192, sgpr=72, lds=16384 + 2*6144 + 64 + 8192)
```

```python
from common import *
W3OFF = 6144 + 32
def emit_wprep_issue(a, name, LB):
    a(f"""s_load_dwordx4 s[44:47], s[0:1], {ARG['w1']}
    s_load_dwordx2 s[48:49], s[0:1], {ARG['w2']}
    s_waitcnt lgkmcnt(0)""")
    a(f"""s_lshr_b32 s50, s18, 1
    s_cmp_eq_u32 s50, 0
    s_cselect_b32 s52, s44, s46
    s_cselect_b32 s53, s45, s47
    s_mov_b32 s54, {D*F*2}
    s_mov_b32 s55, 0x20000
    s_mov_b32 s56, s48
    s_mov_b32 s57, s49
    s_mov_b32 s58, {D*F*2}
    s_mov_b32 s59, 0x20000
    s_and_b32 s60, s2, 7
    s_lshr_b32 s61, s2, 3
    s_mul_i32 s62, s60, {64*2752}
    s_mul_i32 s63, s61, 96
    s_add_u32 s62, s62, s63
    s_and_b32 s63, s18, 1
    s_mul_i32 s63, s63, 192
    v_and_b32 v176, 63, v0
    v_add_u32 v176, s63, v176
    s_mul_i32 s50, s50, {W3OFF}
    s_lshl_b32 s63, s63, 4
    s_add_u32 s50, s50, s63
    s_add_u32 s50, s50, {LB}""")
    for i in range(3):
        a(f"""v_add_u32 v177, {64*i}, v176
        v_mul_u32_u24 v178, 43691, v177
        v_lshrrev_b32 v178, 18, v178
        v_mul_u32_u24 v179, 6, v178
        v_sub_u32 v179, v177, v179
        v_mul_u32_u24 v178, 2752, v178
        v_lshl_add_u32 v178, v179, 4, v178
        s_add_u32 m0, s50, {1024*i}
        buffer_load_dwordx4 v178, s[52:55], s62 offen lds""")
    a(f"""v_and_b32 v177, 63, v0
    v_lshrrev_b32 v178, 3, v177
    v_and_b32 v179, 7, v177
    v_lshlrev_b32 v178, 10, v178
    v_lshl_add_u32 v178, v179, 4, v178
    s_lshl_b32 s63, s18, 13
    s_lshl_b32 s50, s61, 15
    s_add_u32 s50, s50, s63
    s_lshl_b32 s63, s60, 7
    s_add_u32 s50, s50, s63
    s_lshl_b32 s63, s18, 10
    s_add_u32 s63, s63, {LB + 2*6144 + 64}
    s_mov_b32 m0, s63
    buffer_load_dwordx4 v178, s[56:59], s50 offen lds
    s_add_u32 s50, s50, {32*32*1024}
    s_add_u32 m0, s63, 4096
    buffer_load_dwordx4 v178, s[56:59], s50 offen lds""")
def emit_wprep_finish(a, name, LB):
    a(f"""v_and_b32 v177, 63, v0
    v_lshrrev_b32 v178, 4, v177
    v_bfe_u32 v179, v177, 2, 2
    v_and_b32 v180, 3, v177
    v_lshl_add_u32 v181, v178, 4, v179
    v_mul_u32_u24 v181, 96, v181
    v_and_b32 v182, 1, v180
    v_lshl_add_u32 v181, v182, 3, v181
    v_lshrrev_b32 v182, 1, v180
    v_mul_u32_u24 v182, {W3OFF}, v182
    v_add_u32 v181, v181, v182
    v_lshlrev_b32 v183, 4, v177""")
    for i in range(3):
        a(f"""s_mul_i32 s50, s18, 3
        s_add_u32 s50, s50, {i}
        s_lshr_b32 s51, s50, 1
        s_and_b32 s50, s50, 1
        s_lshl_b32 s62, s51, 4
        s_mul_i32 s63, s50, {8*96}
        s_add_u32 s62, s62, s63
        s_add_u32 s62, s62, {LB}
        v_add_u32 v182, s62, v181
        ds_read_b64_tr_b16 v[{184+4*(i&1)}:{185+4*(i&1)}], v182
        ds_read_b64_tr_b16 v[{186+4*(i&1)}:{187+4*(i&1)}], v182 offset:{4*96}
        s_mul_i32 s62, s61, 6
        s_add_u32 s62, s62, s51
        s_lshl_b32 s63, s62, 14
        s_lshl_b32 s51, s60, 11
        s_add_u32 s63, s63, s51
        s_lshl_b32 s50, s50, 10
        s_add_u32 s63, s63, s50
        s_add_u32 s63, s63, {WS['WF13']}
        s_cmp_lt_u32 s62, 172
        s_cselect_b32 s63, s63, 0x80000000
        s_waitcnt lgkmcnt(0)
        buffer_store_dwordx4 v[{184+4*(i&1)}:{187+4*(i&1)}], v183, s[36:39], s63 offen""")
    a(f"""v_lshl_add_u32 v181, v178, 2, v179
    v_lshlrev_b32 v181, 7, v181
    v_lshl_add_u32 v181, v180, 5, v181
    s_lshl_b32 s50, s18, 3
    s_add_u32 s50, s50, {LB + 2*6144 + 64}
    v_add_u32 v181, s50, v181""")
    for i in range(2):
        a(f"""ds_read_b64_tr_b16 v[{184+4*i}:{185+4*i}], v181 offset:{4096*i}
        ds_read_b64_tr_b16 v[{186+4*i}:{187+4*i}], v181 offset:{4096*i + 2048}
        s_add_u32 s50, s61, {32*i}
        s_mul_i32 s51, s60, 43
        s_add_u32 s51, s51, s50
        s_lshl_b32 s51, s51, 12
        s_lshl_b32 s62, s18, 10
        s_add_u32 s51, s51, s62
        s_add_u32 s51, s51, {WS['WF2']}
        s_cmp_lt_u32 s50, 43
        s_cselect_b32 s51, s51, 0x80000000
        s_waitcnt lgkmcnt(0)
        buffer_store_dwordx4 v[{184+4*i}:{187+4*i}], v183, s[36:39], s51 offen""")
```

```python
import sys
from asmgen import *
from common import *
from k_prep import emit_prep
from k_conv import emit_conv
from k_ffn import emit_ffn
a = Asm()
r0 = emit_prep(a)
r1 = emit_conv(a)
r2 = emit_ffn(a)
txt = header([("prep_kernel", 256, 256, r0['lds']), ("conv_kernel", 256, 256, r1['lds']), ("ffn_kernel", 256, 256, r2['lds'])]) + a.text()
txt += kernel_desc("prep_kernel", r0['vgpr'], r0['sgpr'], r0['vgpr'])
txt += kernel_desc("conv_kernel", r1['vgpr'], r1['sgpr'], r1['vgpr'])
txt += kernel_desc("ffn_kernel", r2['vgpr'], r2['sgpr'], r2['accum'])
open(sys.argv[1], "w").write(txt)
print("nops inserted:", a.nnop, "bytes", len(txt))
```

```python
import re

TRANS = ("v_exp_f32", "v_log_f32", "v_rcp_f32", "v_rsq_f32", "v_sqrt_f32", "v_sin_f32", "v_cos_f32", "v_rcp_iflag_f32")
RMW = ("v_fmac_", "v_dot2c_", "v_pk_fmac", "v_writelane", "v_mac_")
NOCOUNT = ()

def split_ops(s):
    out, depth, cur = [], 0, ""
    for ch in s:
        if ch in "[(": depth += 1
        if ch in "])": depth -= 1
        if ch == "," and depth == 0:
            out.append(cur.strip()); cur = ""
        else:
            cur += ch
    if cur.strip(): out.append(cur.strip())
    return out

REG = re.compile(r"^-?\|?(?:abs\()?([vas])(?:(\d+)|\[(\d+):(\d+)\])\)?\|?$")
def regs(tok):
    tok = tok.strip().split(" ")[0]
    if tok in ("vcc",): return {("s", 106), ("s", 107)}
    if tok == "vcc_lo": return {("s", 106)}
    if tok == "vcc_hi": return {("s", 107)}
    if tok == "exec": return {("s", 126), ("s", 127)}
    if tok == "m0": return {("s", 124)}
    m = REG.match(tok)
    if not m: return set()
    k = m.group(1)
    if m.group(2) is not None: return {(k, int(m.group(2)))}
    return {(k, i) for i in range(int(m.group(3)), int(m.group(4)) + 1)}

class Ins:
    __slots__ = ("text", "mn", "cls", "defs", "uses", "passes", "srcc", "dpp", "wide_store", "ops", "lds_dma", "ab")
    def __init__(self, text):
        self.text = text
        t = text.split(";")[0].strip()
        parts = t.split(None, 1)
        self.mn = mn = parts[0]
        rest = parts[1] if len(parts) > 1 else ""
        ops = split_ops(rest)
        self.ops = ops
        self.defs, self.uses = set(), set()
        self.passes = 0; self.srcc = set(); self.ab = set(); self.dpp = False; self.wide_store = set(); self.lds_dma = False
        R = [regs(o) for o in ops]
        if mn.startswith("v_mfma"):
            self.cls = "mfma"
            self.passes = 8 if "32x32" in mn else 4
            self.defs = R[0]; self.ab = R[1] | R[2]; self.srcc = R[3]; self.uses = self.ab | self.srcc
        elif mn.startswith("v_"):
            self.cls = "trans" if mn.replace("_e32", "").replace("_e64", "") in TRANS else "valu"
            self.dpp = "_dpp" in mn or "row_" in t or "quad_perm" in t or "wave_sh" in t
            nd = 1
            if re.match(r"v_(add|sub|subrev|addc|subb)_co", mn) or mn.startswith("v_mad_u64") or mn.startswith("v_div_scale"): nd = 2
            if mn.startswith("v_permlane") and "swap" in mn:
                self.defs = R[0] | R[1]; self.uses = R[0] | R[1]
            else:
                for r in R[:nd]: self.defs |= r
                for r in R[nd:]: self.uses |= r
                if mn.startswith(RMW) or self.dpp or "_sdwa" in mn: self.uses |= R[0]
                if mn.startswith("v_cndmask") and len(ops) == 3: self.uses |= regs("vcc")
                if mn.startswith("v_cmpx"): self.defs |= regs("exec")
            if mn.startswith("v_cndmask") and len(ops) >= 4: pass
        elif mn.startswith(("buffer_", "global_", "flat_", "scratch_")):
            self.cls = "vmem"
            is_lds = bool(re.search(r"\blds\b", t)) or "_lds_" in mn
            self.lds_dma = is_lds
            if "load" in mn and not is_lds:
                self.defs = R[0]
                for r in R[1:]: self.uses |= r
            elif "atomic" in mn and re.search(r"\bsc0\b", t):
                self.defs = R[0]
                for r in R[1:]: self.uses |= r
            else:
                for r in R: self.uses |= r
                if "store" in mn and ("x4" in mn or "x3" in mn):
                    self.wide_store = R[0] if mn.startswith("buffer_") else R[1]
            if is_lds: self.uses |= regs("m0")
        elif mn.startswith("ds_"):
            self.cls = "ds"
            if mn.startswith(("ds_read", "ds_bpermute", "ds_permute", "ds_swizzle")):
                self.defs = R[0]
                for r in R[1:]: self.uses |= r
            else:
                for r in R: self.uses |= r
        elif mn.startswith(("s_load", "s_buffer_load", "s_memtime", "s_memrealtime")):
            self.cls = "smem"; self.defs = R[0]
            for r in R[1:]: self.uses |= r
        elif mn in ("s_waitcnt", "s_nop", "s_barrier", "s_endpgm", "s_setprio", "s_sleep"):
            self.cls = "misc"
        elif mn.startswith(("s_cbranch", "s_branch", "s_setpc", "s_swappc", "s_call")):
            self.cls = "branch"
        elif mn.startswith("s_"):
            self.cls = "salu"
            if mn.startswith("s_cmp") or mn.startswith("s_bitcmp"):
                for r in R: self.uses |= r
            else:
                self.defs = R[0] if R else set()
                for r in R[1:]: self.uses |= r
                if "saveexec" in mn: self.defs |= regs("exec"); self.uses |= regs("exec")
        else:
            raise ValueError("unknown instr: " + text)
    def states(self):
        if self.mn == "s_nop": return int(self.ops[0], 0) + 1
        return 1

def need(p, c):
    n = 0
    pv = {r for r in p.defs if r[0] in "va"}
    ps = {r for r in p.defs if r[0] == "s"}
    if p.cls in ("valu", "trans"):
        if pv:
            if c.cls == "mfma" and pv & c.uses: n = max(n, 2)
            if c.cls in ("valu", "trans"):
                if c.mn.startswith(("v_readlane", "v_readfirstlane")) and pv & c.uses: n = max(n, 1)
                if c.mn.startswith("v_permlane") and pv & c.uses: n = max(n, 2)
                if c.dpp and pv & c.uses: n = max(n, 2)
            if p.cls == "trans" and c.cls in ("valu", "vmem", "ds") and pv & c.uses: n = max(n, 1)
            if p.cls == "trans" and c.cls == "trans" and pv & c.uses: n = max(n, 1)
        if ps:
            if c.cls in ("valu", "trans") and ps & c.uses: n = max(n, 4 if c.mn.startswith(("v_readlane", "v_writelane")) else 2)
            if c.cls in ("vmem", "smem") and ps & c.uses: n = max(n, 5)
            if c.cls in ("salu", "branch") and (ps & c.uses or c.cls == "branch" and "vcc" in c.mn): n = max(n, 2)
            if c.cls == "salu" and c.mn.startswith("s_cmp") and ps & c.uses: n = max(n, 2)
    if p.mn.startswith("v_dot"):
        if c.mn == p.mn:
            srcab = regs(c.ops[1]) | regs(c.ops[2])
            if p.defs & srcab: n = max(n, 3)
        elif p.defs & (c.uses | c.defs): n = max(n, 3)
    if p.cls == "mfma":
        big = {4: 8, 8: 12}[p.passes]
        if c.cls == "mfma":
            if p.defs & c.ab: n = max(n, big)
            if p.defs & c.srcc:
                if not (c.srcc == p.defs and c.passes == p.passes): n = max(n, {4: 6, 8: 10}[p.passes])
            elif p.defs & c.defs: n = max(n, {4: 6, 8: 10}[p.passes])
        elif c.cls in ("valu", "trans"):
            if p.defs & (c.uses | c.defs): n = max(n, big)
            if p.srcc & c.defs: n = max(n, {4: 3, 8: 7}[p.passes])
        elif c.cls in ("vmem", "ds"):
            if p.defs & (c.uses | c.defs): n = max(n, big)
    if p.cls == "salu" and ("s", 124) in p.defs and (c.lds_dma or "addtid" in c.mn): n = max(n, 1)
    if p.cls == "vmem" and p.wide_store:
        if c.cls in ("valu", "trans") and p.wide_store & c.defs: n = max(n, 2)
        elif c.cls in ("ds", "vmem", "mfma") and p.wide_store & c.defs: n = max(n, 1)
    return n

def worst(p):
    if p.cls == "mfma": return {4: 8, 8: 12}[p.passes]
    if p.cls in ("valu", "trans"):
        if any(r[0] == "s" for r in p.defs): return 5
        return 3 if p.mn.startswith("v_dot") else 2
    if p.cls == "salu" and ("s", 124) in p.defs: return 1
    if p.cls == "vmem" and p.wide_store: return 2
    return 0

class Asm:
    def __init__(self):
        self.items = []
        self.uid = 0
    def __call__(self, text):
        for ln in text.split("\n"):
            ln = ln.strip()
            if not ln or ln.startswith(";"): continue
            if ln.endswith(":"): self.items.append(("l", ln[:-1]))
            elif ln.startswith("."): self.items.append(("r", ln))
            else: self.items.append(("i", Ins(ln)))
    def label(self, name): self.items.append(("l", name))
    def raw(self, text): self.items.append(("r", text))
    def newlabel(self, base="L"):
        self.uid += 1
        return f"{base}_{self.uid}"
    def text(self):
        out = []; win = []
        nnop = 0
        def pad(n):
            nonlocal nnop
            while n > 0:
                k = min(n, 16)
                out.append(f"    s_nop {k-1}")
                for w in win: w[1] += k
                n -= k; nnop += 1
        for kind, it in self.items:
            if kind == "r":
                out.append(it); continue
            if kind == "l":
                pad(max([worst(p) - d for p, d in win] + [0])); win.clear()
                out.append(it + ":"); continue
            req = max([need(p, it) - d for p, d in win] + [0])
            if it.cls == "branch":
                req = max(req, max([worst(p) - d - 1 for p, d in win] + [0]))
            pad(req)
            out.append("    " + it.text)
            st = it.states()
            for w in win: w[1] += st
            win[:] = [w for w in win if w[1] < 16]
            win.append([it, 0])
        self.nnop = nnop
        return "\n".join(out) + "\n"

def kernel_desc(name, vgpr, sgpr, accum):
    return f""".section .rodata,"a"
.p2align 6
.amdhsa_kernel {name}
  .amdhsa_next_free_vgpr {vgpr}
  .amdhsa_next_free_sgpr {sgpr}
  .amdhsa_accum_offset {accum}
  .amdhsa_group_segment_fixed_size 0
  .amdhsa_kernarg_size 104
  .amdhsa_user_sgpr_count 2
  .amdhsa_user_sgpr_kernarg_segment_ptr 1
  .amdhsa_system_sgpr_workgroup_id_x 1
  .amdhsa_float_denorm_mode_32 3
.end_amdhsa_kernel
"""
```

```python
NAME = "interleave_layers__ssm_conv_h3__glu_gated_swiglu__prompt"
S, D, F = 2048, 512, 1376
KB, MB = 1024, 1 << 20
WS = dict(
    XR=0 * MB,
    QT=2 * MB,
    RS0=4 * MB,
    C0=4 * MB + 8192,
    YT=5 * MB,
    X1T=7 * MB + 256 * KB,
    SYNC=9 * MB + 512 * KB,
    H1=10 * MB,
    H2=16 * MB,
    X3=22 * MB,
    WF13=24 * MB,
    WF2=27 * MB,
    END=29 * MB,
)
XP = 4352
HT = 86 * 512
SYNC_FLAGS = 0
SYNC_GEN = 16 * KB
SYNC_CNT = 20 * KB
SYNC_ST2 = 32 * KB
SYNC_ST3 = SYNC_ST2 + 256 * KB
SYNC_SIZE = SYNC_ST3 + 128 * KB
ARG = dict(q=0, k=8, v=16, sk=24, h=32, sd=40, bx=48, w1=56, w3=64, w2=72, out=80, dbg=88, ws=96)
def header(launches):
    hdr = open("cdna_kernels/" + NAME + ".s.ref").read().split("; Override launch")[0]
    for (k, grid, block, lds) in launches:
        if k is None: hdr += f"; @launch grid=({grid},1,1) block=({block},1,1) lds={lds}\n"
        else: hdr += f"; @launch kernel={k} grid=({grid},1,1) block=({block},1,1) lds={lds}\n"
    hdr += '.amdgcn_target "amdgcn-amd-amdhsa--gfx950"\n.text\n'
    return hdr
def kbegin(a, name):
    a.raw(f".globl {name}\n.p2align 8\n.type {name},@function")
    a.label(name)
def srd(a, reg, ptr, size, off=0, offreg=None):
    if off:
        a(f"s_add_u32 s{reg}, s{ptr}, {off}\ns_addc_u32 s{reg+1}, s{ptr+1}, 0")
    else:
        a(f"s_mov_b32 s{reg}, s{ptr}\ns_mov_b32 s{reg+1}, s{ptr+1}")
    if offreg is not None:
        a(f"s_add_u32 s{reg}, s{reg}, s{offreg}\ns_addc_u32 s{reg+1}, s{reg+1}, 0")
    a(f"s_mov_b32 s{reg+2}, {size}\ns_mov_b32 s{reg+3}, 0x20000")
STAMPS = False
TS_OFF = 200 * MB
def stamp(a, idx):
    if not STAMPS: return
    a(f"s_waitcnt lgkmcnt(0)\ns_memrealtime s[70:71]\ns_waitcnt lgkmcnt(0)\ns_mov_b32 s{72+idx}, s70")
def stamp_flush(a, kern, n):
    if not STAMPS: return
    a(f"""s_load_dwordx2 s[68:69], s[0:1], {ARG['ws']}
    s_waitcnt lgkmcnt(0)
    s_add_u32 s68, s68, {TS_OFF + kern * 131072}
    s_addc_u32 s69, s69, 0
    v_lshrrev_b32 v2, 6, v0
    v_readfirstlane_b32 s70, v2
    s_lshl_b32 s71, s2, 9
    s_lshl_b32 s70, s70, 7
    s_add_u32 s70, s70, s71
    s_mov_b64 exec, 1""")
    for i in range(n):
        a(f"v_mov_b32 v2, s{72+i}\nv_mov_b32 v3, s70\nglobal_store_dword v3, v2, s[68:69] offset:{4*i}")
```

```python
import sys
from asmgen import *
from common import *
import common

KN = NAME + "_kernel"
WSR = "s[28:31]"
INV = "0x80000000"
S_GEN, S_W, S_FLAG = 3, 18, 64
LOCAL = False
HALF = False
def LS(kind="flag"): return "" if (LOCAL and kind in LOCSET) else "sc1"
LOCSET = set()
def vr(b, n=4): return f"v[{b}:{b+n-1}]"

def rnd_bf16(a, v):
    a(f"v_cvt_pk_bf16_f32 v{v}, v{v}, v{v}\nv_and_b32 v{v}, 0xffff0000, v{v}")
def sum_q(a, v, t):
    a(f"""v_mov_b32 v{t}, v{v}
    v_permlane16_swap_b32 v{v}, v{t}
    v_add_f32 v{v}, v{v}, v{t}
    v_mov_b32 v{t}, v{v}
    v_permlane32_swap_b32 v{v}, v{t}
    v_add_f32 v{v}, v{v}, v{t}""")
def allsum64(a, v, t):
    for r in (8, 4, 2, 1):
        a(f"v_add_f32_dpp v{v}, v{v}, v{v} row_ror:{r} row_mask:0xf bank_mask:0xf")
    sum_q(a, v, t)
def ln_core(a, vsum, vsq):
    a(f"""v_mul_f32 v{vsum}, 0x3b000000, v{vsum}
    v_mul_f32 v{vsq}, 0x3b000000, v{vsq}
    v_fma_f32 v{vsq}, -v{vsum}, v{vsum}, v{vsq}
    v_max_f32 v{vsq}, 0, v{vsq}""")
    rnd_bf16(a, vsq)
    a(f"v_add_f32 v{vsq}, 0x3727c5ac, v{vsq}")
    rnd_bf16(a, vsq)
    a(f"v_sqrt_f32 v{vsq}, v{vsq}")
    rnd_bf16(a, vsq)
    rnd_bf16(a, vsum)
def signal(a, e, tv=(2, 3), barrier=True, local=False):
    L = a.newlabel("sg")
    a("s_waitcnt vmcnt(0)")
    if barrier: a("s_barrier")
    a(f"""s_cmp_lg_u32 s{S_W}, 0
    s_cbranch_scc1 {L}
    s_add_u32 s36, s{S_GEN}, {e}
    v_mov_b32 v{tv[0]}, s36
    v_mov_b32 v{tv[1]}, s{S_FLAG}
    s_mov_b64 exec, 1
    buffer_store_dword v{tv[0]}, v{tv[1]}, {WSR}, 0 offen {LS() if local else 'sc1'}
    s_mov_b64 exec, -1
    {L}:""")
def wait_flags(a, voff, nld, e, T, etag=None):
    L = a.newlabel("wf")
    if etag is None:
        a(f"s_add_u32 s37, s{S_GEN}, {e}"); etag = 37
    a(f"s_mov_b32 s38, 0")
    a.label(L)
    for i in range(nld):
        if i == 0: a(f"buffer_load_dword v{T}, v{voff}, {WSR}, 0 offen sc1")
        else: a(f"s_movk_i32 s39, {4096*i}\nbuffer_load_dword v{T+i}, v{voff}, {WSR}, s39 offen sc1")
    a("s_add_u32 s38, s38, 1\ns_waitcnt vmcnt(0)")
    for k in range(nld):
        a(f"v_subrev_u32 v{T+k}, s{etag}, v{T+k}")
    for k in range(1, nld): a(f"v_max_u32 v{T}, v{T}, v{T+k}")
    a(f"""v_cmp_gt_u32 vcc, 16, v{T}
    s_cmp_gt_u32 s38, 200000
    s_cbranch_scc1 {L}_x
    s_cmp_eq_u64 vcc, -1
    s_cbranch_scc0 {L}
    {L}_x:""")
def wg_wait(a, setup, voff, nld, e, T, etag=None):
    L = a.newlabel("ww")
    a(f"s_cmp_lg_u32 s{S_W}, 0\ns_cbranch_scc1 {L}")
    setup()
    wait_flags(a, voff, nld, e, T, etag)
    a.label(L)
    a("s_barrier")

HCS = 4160; XRO = 4 * HCS; CB = XRO + 4608; EXO = 49152
PL = 65536
PW = PL + 16384
W3OFF = 6144 + 32
L_TX = 131072; L_TY = L_TX + 8192; L_ST = L_TY + 8192
LDS_TOTAL = L_ST + 2048

def emit_prologue(a):
    a(f"""s_cmp_ge_u32 s2, 256
    s_cbranch_scc1 L_end
    s_load_dwordx4 s[4:7], s[0:1], {ARG['q']}
    s_load_dwordx4 s[8:11], s[0:1], {ARG['v']}
    s_load_dwordx4 s[12:15], s[0:1], {ARG['h']}
    s_load_dwordx2 s[16:17], s[0:1], {ARG['ws']}
    s_load_dwordx4 s[52:55], s[0:1], {ARG['w1']}
    s_load_dwordx2 s[56:57], s[0:1], {ARG['w2']}
    v_lshrrev_b32 v3, 6, v0
    v_and_b32 v1, 7, v0
    v_readfirstlane_b32 s{S_W}, v3
    s_and_b32 s60, s2, 7
    s_lshr_b32 s61, s2, 3
    v_lshrrev_b32 v2, 3, v0
    s_lshl_b32 s36, s60, 7
    s_lshl_b32 s37, s61, 16
    s_add_u32 s36, s36, s37
    v_lshlrev_b32 v4, 4, v1
    v_lshlrev_b32 v5, 11, v2
    v_add3_u32 v4, v4, v5, s36
    s_lshl_b32 s{S_FLAG}, s60, 5
    s_add_u32 s{S_FLAG}, s{S_FLAG}, s61
    s_mov_b32 s19, s{S_FLAG}
    s_lshl_b32 s{S_FLAG}, s{S_FLAG}, 6
    s_add_u32 s{S_FLAG}, s{S_FLAG}, {WS['SYNC'] + SYNC_FLAGS}
    s_waitcnt lgkmcnt(0)""")
    srd(a, 20, 4, S * D * 2)
    srd(a, 24, 6, S * D * 2)
    srd(a, 32, 8, S * D * 2)
    srd(a, 40, 10, D * 8)
    srd(a, 28, 16, WS['END'])
    a(f"""s_add_u32 s36, s16, {WS['SYNC'] + SYNC_GEN}
    s_addc_u32 s37, s17, 0
    s_load_dword s{S_GEN}, s[36:37], 0""")
    stamp(a, 0)

def emit_prep_loads(a):
    a(f"""s_lshl_b32 s36, s60, 9
    v_lshlrev_b32 v8, 6, v1
    v_add_u32 v8, s36, v8
    buffer_load_dwordx4 v[44:47], v8, s[40:43], 0 offen
    buffer_load_dwordx4 v[48:51], v8, s[40:43], 0 offen offset:16
    buffer_load_dwordx4 v[52:55], v8, s[40:43], 0 offen offset:32
    buffer_load_dwordx4 v[56:59], v8, s[40:43], 0 offen offset:48
    v_subrev_u32 v5, 3072, v4
    v_subrev_u32 v6, 2048, v4
    v_subrev_u32 v7, 1024, v4
    buffer_load_dwordx4 v[16:19], v5, s[24:27], 0 offen
    buffer_load_dwordx4 v[20:23], v6, s[24:27], 0 offen
    buffer_load_dwordx4 v[24:27], v7, s[24:27], 0 offen
    buffer_load_dwordx4 v[28:31], v4, s[24:27], 0 offen
    buffer_load_dwordx4 v[32:35], v4, s[24:27], 0 offen offset:1024
    buffer_load_dwordx4 v[36:39], v4, s[32:35], 0 offen
    buffer_load_dwordx4 v[40:43], v4, s[32:35], 0 offen offset:1024
    v_and_b32 v9, 63, v0
    s_lshr_b32 s66, s{S_W}, 1
    s_and_b32 s67, s{S_W}, 1
    s_cmp_eq_u32 s66, 0
    s_cselect_b32 s52, s52, s54
    s_cselect_b32 s53, s53, s55
    s_mov_b32 s54, {D*F*2}
    s_mov_b32 s55, 0x20000
    s_mov_b32 s58, {D*F*2}
    s_mov_b32 s59, 0x20000
    s_mul_i32 s62, s60, {64*2752}
    s_mul_i32 s63, s61, 96
    s_add_u32 s62, s62, s63
    s_mul_i32 s63, s67, 192
    v_add_u32 v176, s63, v9
    s_mul_i32 s36, s66, {W3OFF}
    s_lshl_b32 s63, s63, 4
    s_add_u32 s36, s36, s63
    s_add_u32 s36, s36, {PW}""")
    for i in range(3):
        a(f"""v_add_u32 v177, {64*i}, v176
        v_mul_u32_u24 v178, 43691, v177
        v_lshrrev_b32 v178, 18, v178
        v_mul_u32_u24 v179, 6, v178
        v_sub_u32 v179, v177, v179
        v_mul_u32_u24 v178, 2752, v178
        v_lshl_add_u32 v{184+i}, v179, 4, v178
        s_add_u32 m0, s36, {1024*i}
        buffer_load_dwordx4 v{184+i}, s[52:55], s62 offen lds""")
    a(f"""v_lshrrev_b32 v178, 3, v9
    v_and_b32 v179, 7, v9
    v_lshlrev_b32 v178, 10, v178
    v_lshl_add_u32 v187, v179, 4, v178
    s_lshl_b32 s63, s{S_W}, 13
    s_lshl_b32 s36, s61, 15
    s_add_u32 s36, s36, s63
    s_lshl_b32 s63, s60, 7
    s_add_u32 s36, s36, s63
    s_lshl_b32 s63, s{S_W}, 10
    s_add_u32 s63, s63, {PW + 2*6144 + 64}
    s_mov_b32 m0, s63
    buffer_load_dwordx4 v187, s[56:59], s36 offen lds
    s_add_u32 s36, s36, {32*32*1024}
    s_add_u32 m0, s63, 4096
    buffer_load_dwordx4 v187, s[56:59], s36 offen lds""")

def emit_prep_loads2(a):
    a(f"""buffer_load_dwordx4 v[60:63], v4, s[20:23], 0 offen
    buffer_load_dwordx4 v[64:67], v4, s[20:23], 0 offen offset:1024
    v_lshlrev_b32 v10, 4, v9
    s_lshl_b32 s36, s2, 13
    s_lshl_b32 s37, s{S_W}, 11
    s_add_u32 s36, s36, s37
    v_add_u32 v10, s36, v10
    buffer_load_dwordx4 v[68:71], v10, s[20:23], 0 offen
    buffer_load_dwordx4 v[72:75], v10, s[20:23], 0 offen offset:1024
    s_lshl_b32 s65, s19, 1
    s_add_u32 s65, s65, s66
    s_lshl_b32 s37, s65, 1
    s_lshl_b32 s65, s65, 12""")
    srd(a, 44, 12, 4096, offreg=65)
    srd(a, 48, 14, D * 2)
    a(f"""v_lshlrev_b32 v10, 4, v9
    s_lshl_b32 s36, s67, 11
    v_add_u32 v10, s36, v10
    buffer_load_dwordx4 v[192:195], v10, s[44:47], 0 offen
    buffer_load_dwordx4 v[196:199], v10, s[44:47], 0 offen offset:4
    buffer_load_dwordx4 v[200:203], v10, s[44:47], 0 offen offset:8
    buffer_load_dwordx4 v[204:207], v10, s[44:47], 0 offen offset:1024
    buffer_load_dwordx4 v[208:211], v10, s[44:47], 0 offen offset:1028
    buffer_load_dwordx4 v[212:215], v10, s[44:47], 0 offen offset:1032
    v_bfe_u32 v219, v9, 3, 2
    v_and_b32 v220, 7, v9
    v_lshlrev_b32 v13, 1, v220
    v_add_u32 v13, v13, v219
    v_subrev_u32 v13, 16, v13
    v_lshlrev_b32 v13, 1, v13
    v_add_u32 v14, 2, v13
    buffer_load_ushort v216, v13, s[44:47], 0 offen
    buffer_load_ushort v217, v14, s[44:47], 0 offen
    v_mov_b32 v13, s37
    buffer_load_ushort v218, v13, s[48:51], 0 offen""")

def emit_prep_compute(a):
    a(f"""v_sub_u32 v11, 31, v2
    v_lshlrev_b32 v12, 2, v1
    v_xor_b32 v11, v11, v12
    v_lshlrev_b32 v11, 2, v11
    v_lshlrev_b32 v13, 10, v1
    v_add_u32 v11, v11, v13
    v_add_u32 v11, {PL}, v11
    v_xor_b32 v12, v2, v12
    v_lshlrev_b32 v12, 2, v12
    v_add_u32 v12, v12, v13
    v_add_u32 v12, {PL + 8192}, v12
    s_waitcnt vmcnt(12)""")
    for j in range(8):
        a(f"""v_lshlrev_b32 v{80+j}, 16, v{44+2*j}
        v_and_b32 v{88+j}, 0xffff0000, v{44+2*j}
        v_lshlrev_b32 v{96+j}, 16, v{45+2*j}
        v_and_b32 v{104+j}, 0xffff0000, v{45+2*j}""")
    a("s_waitcnt vmcnt(5)")
    stamp(a, 1)
    for i in range(5):
        for p in range(4):
            a(f"""v_lshlrev_b32 v{112+8*i+2*p}, 16, v{16+4*i+p}
            v_and_b32 v{113+8*i+2*p}, 0xffff0000, v{16+4*i+p}""")
    for row in range(2):
        for p in range(4):
            d = 152 + 8 * row + 2 * p
            a(f"v_pk_mul_f32 v[{d}:{d+1}], v[{112+8*row+2*p}:{113+8*row+2*p}], v[{104+2*p}:{105+2*p}]")
    for tt, tap in ((1, 2), (2, 1), (3, 0)):
        for row in range(2):
            for p in range(4):
                d = 152 + 8 * row + 2 * p
                k = 112 + 8 * (row + tt) + 2 * p
                s_ = 80 + 8 * tap + 2 * p
                a(f"v_pk_fma_f32 v[{d}:{d+1}], v[{k}:{k+1}], v[{s_}:{s_+1}], v[{d}:{d+1}]")
    for row in range(2):
        for p in range(4):
            a(f"""v_lshlrev_b32 v{112+8*row+2*p}, 16, v{36+4*row+p}
            v_and_b32 v{113+8*row+2*p}, 0xffff0000, v{36+4*row+p}""")
    for row in range(2):
        for p in range(4):
            d = 152 + 8 * row + 2 * p
            a(f"v_pk_mul_f32 v[{d}:{d+1}], v[{d}:{d+1}], v[{112+8*row+2*p}:{113+8*row+2*p}]")
    for j in range(8):
        a(f"v_cvt_pk_bf16_f32 v{80+j}, v{160+j}, v{152+j}")
    for j in range(8):
        a(f"ds_write_b32 v11, v{80+j} offset:{128*j}")
    a(f"""v_lshrrev_b32 v3, 6, v0
    v_xor_b32 v5, v1, v3
    v_lshlrev_b32 v5, 4, v5
    v_lshlrev_b32 v6, 7, v2
    v_add_u32 v5, v5, v6
    v_add_u32 v5, {PL}, v5
    v_xor_b32 v7, 64, v5
    s_lshl_b32 s36, s60, 18
    s_lshl_b32 s37, s61, 7
    s_sub_u32 s4, s36, s37
    s_add_u32 s4, s4, {WS['XR'] + 1984*2}
    s_add_u32 s5, s36, s37
    s_add_u32 s5, s5, {WS['QT']}
    v_lshlrev_b32 v8, 12, v2
    v_lshlrev_b32 v15, 4, v1
    v_add_u32 v8, v8, v15
    v_add_u32 v15, 0x20000, v8
    s_waitcnt lgkmcnt(0)
    s_barrier
    ds_read_b128 v[16:19], v5
    ds_read_b128 v[20:23], v7 offset:4096
    s_waitcnt lgkmcnt(1)
    buffer_store_dwordx4 v[16:19], v8, {WSR}, s4 offen {LS('xr')}
    s_waitcnt lgkmcnt(0)
    buffer_store_dwordx4 v[20:23], v15, {WSR}, s4 offen {LS('xr')}""")
    stamp(a, 2)
    emit_prep_loads2(a)
    L = a.newlabel("sg1")
    a(f"""s_waitcnt vmcnt(13)
    s_barrier
    s_cmp_lg_u32 s{S_W}, 0
    s_cbranch_scc1 {L}
    s_add_u32 s36, s{S_GEN}, 1
    v_mov_b32 v16, s36
    v_mov_b32 v17, s{S_FLAG}
    s_mov_b64 exec, 1
    buffer_store_dword v16, v17, {WSR}, 0 offen {LS()}
    s_mov_b64 exec, -1
    {L}:""")
    stamp(a, 3)
    a(f"""v_lshrrev_b32 v178, 4, v9
    v_bfe_u32 v179, v9, 2, 2
    v_and_b32 v180, 3, v9
    v_lshl_add_u32 v181, v178, 4, v179
    v_mul_u32_u24 v181, 96, v181
    v_and_b32 v182, 1, v180
    v_lshl_add_u32 v181, v182, 3, v181
    v_lshrrev_b32 v182, 1, v180
    v_mul_u32_u24 v182, {W3OFF}, v182
    v_add_u32 v181, v181, v182
    v_lshlrev_b32 v183, 4, v9""")
    for i in range(3):
        a(f"""s_mul_i32 s36, s{S_W}, 3
        s_add_u32 s36, s36, {i}
        s_lshr_b32 s37, s36, 1
        s_and_b32 s36, s36, 1
        s_lshl_b32 s38, s37, 4
        s_mul_i32 s39, s36, {8*96}
        s_add_u32 s38, s38, s39
        s_add_u32 s38, s38, {PW}
        v_add_u32 v182, s38, v181
        ds_read_b64_tr_b16 v[{144+4*i}:{145+4*i}], v182
        ds_read_b64_tr_b16 v[{146+4*i}:{147+4*i}], v182 offset:{4*96}
        s_mul_i32 s38, s61, 6
        s_add_u32 s38, s38, s37
        s_lshl_b32 s39, s38, 14
        s_lshl_b32 s37, s60, 11
        s_add_u32 s39, s39, s37
        s_lshl_b32 s36, s36, 10
        s_add_u32 s39, s39, s36
        s_add_u32 s39, s39, {WS['WF13']}
        s_cmp_lt_u32 s38, 172
        s_cselect_b32 s{6+i}, s39, {INV}""")
    a(f"""v_lshl_add_u32 v181, v178, 2, v179
    v_lshlrev_b32 v181, 7, v181
    v_lshl_add_u32 v181, v180, 5, v181
    s_lshl_b32 s36, s{S_W}, 3
    s_add_u32 s36, s36, {PW + 2*6144 + 64}
    v_add_u32 v181, s36, v181""")
    for i in range(2):
        a(f"""ds_read_b64_tr_b16 v[{156+4*i}:{157+4*i}], v181 offset:{4096*i}
        ds_read_b64_tr_b16 v[{158+4*i}:{159+4*i}], v181 offset:{4096*i + 2048}
        s_add_u32 s36, s61, {32*i}
        s_mul_i32 s37, s60, 43
        s_add_u32 s37, s37, s36
        s_lshl_b32 s37, s37, 12
        s_lshl_b32 s38, s{S_W}, 10
        s_add_u32 s37, s37, s38
        s_add_u32 s37, s37, {WS['WF2']}
        s_cmp_lt_u32 s36, 43
        s_cselect_b32 s{9+i}, s37, {INV}""")
    for i in range(5):
        a(f"s_waitcnt lgkmcnt({2*(4-i)})\nbuffer_store_dwordx4 {vr(144+4*i)}, v183, {WSR}, s{6+i} offen sc1")
    a("s_waitcnt vmcnt(16)")
    a("s_mov_b32 s36, 0x05040100\ns_mov_b32 s37, 0x07060302")
    for p in range(4):
        a(f"""v_perm_b32 v{88+2*p}, v{64+p}, v{60+p}, s36
        v_perm_b32 v{89+2*p}, v{64+p}, v{60+p}, s37""")
    for j in range(8):
        a(f"ds_write_b32 v12, v{88+j} offset:{128*j}")
    a("s_waitcnt vmcnt(14)")
    a("v_mov_b32 v14, 0x3f803f80")
    for row in range(2):
        su, sq = 96 + 2 * row, 97 + 2 * row
        a(f"v_mov_b32 v{su}, 0\nv_mov_b32 v{sq}, 0")
    for p in range(4):
        for row in range(2):
            su, sq = 96 + 2 * row, 97 + 2 * row; b = 68 + 4 * row
            a(f"v_dot2_f32_bf16 v{su}, v{b+p}, v14, v{su}\nv_dot2_f32_bf16 v{sq}, v{b+p}, v{b+p}, v{sq}")
    for r in (8, 4, 2, 1):
        for v in (96, 97, 98, 99):
            a(f"v_add_f32_dpp v{v}, v{v}, v{v} row_ror:{r} row_mask:0xf bank_mask:0xf")
    for k, v in enumerate((96, 97, 98, 99)): a(f"v_mov_b32 v{100+k}, v{v}")
    for k, v in enumerate((96, 97, 98, 99)): a(f"v_permlane16_swap_b32 v{v}, v{100+k}")
    for k, v in enumerate((96, 97, 98, 99)): a(f"v_add_f32 v{v}, v{v}, v{100+k}")
    for k, v in enumerate((96, 97, 98, 99)): a(f"v_mov_b32 v{100+k}, v{v}")
    for k, v in enumerate((96, 97, 98, 99)): a(f"v_permlane32_swap_b32 v{v}, v{100+k}")
    for k, v in enumerate((96, 97, 98, 99)): a(f"v_add_f32 v{v}, v{v}, v{100+k}")
    ln_core(a, 96, 97); ln_core(a, 98, 99)
    a(f"""v_rcp_f32 v102, v97
    v_rcp_f32 v103, v99
    v_mul_f32 v104, -v96, v102
    v_mul_f32 v105, -v98, v103
    s_lshl_b32 s36, s2, 5
    s_lshl_b32 s37, s{S_W}, 3
    s_add_u32 s11, s36, s37
    s_add_u32 s11, s11, {WS['RS0']}""")
    a(f"""v_mov_b32 v101, s11
    s_mov_b32 s37, {WS['C0']-WS['RS0']}
    s_mov_b64 exec, 1
    buffer_store_dwordx2 v[102:103], v101, {WSR}, 0 offen sc1
    buffer_store_dwordx2 v[104:105], v101, {WSR}, s37 offen sc1
    s_mov_b64 exec, -1
    s_waitcnt lgkmcnt(0)
    s_barrier
    ds_read_b128 v[72:75], v5 offset:8192
    ds_read_b128 v[76:79], v7 offset:{8192+4096}
    s_waitcnt lgkmcnt(1)
    buffer_store_dwordx4 v[72:75], v8, {WSR}, s5 offen sc1
    s_waitcnt lgkmcnt(0)
    buffer_store_dwordx4 v[76:79], v15, {WSR}, s5 offen sc1""")
    a(f"""s_waitcnt vmcnt(9)
    s_mul_i32 s62, s66, {CB}
    v_lshlrev_b32 v4, 4, v9
    s_lshl_b32 s36, s67, 11
    s_add_u32 s36, s36, s62
    s_add_u32 s36, s36, 32
    v_add_u32 v4, s36, v4""")
    for p in range(2):
        L0, L2, L4 = 192 + 12 * p, 196 + 12 * p, 200 + 12 * p
        for j in range(4):
            a(f"v_alignbit_b32 v{112+8*p+j}, v{L2+j}, v{L0+j}, 16")
            a(f"v_alignbit_b32 v{116+8*p+j}, v{L4+j}, v{L2+j}, 16")
        a(f"""ds_write_b128 v4, v[{L0}:{L0+3}] offset:{1024*p}
        ds_write_b128 v4, v[{112+8*p}:{115+8*p}] offset:{1024*p + HCS}
        ds_write_b128 v4, v[{L2}:{L2+3}] offset:{1024*p + 2*HCS}
        ds_write_b128 v4, v[{116+8*p}:{119+8*p}] offset:{1024*p + 3*HCS}""")
    a(f"""v_lshl_or_b32 v216, v217, 16, v216
    v_mul_u32_u24 v13, {HCS}, v219
    v_lshl_add_u32 v13, v220, 2, v13
    v_add_u32 v13, s62, v13
    ds_write_b32 v13, v216
    v_lshlrev_b32 v20, 16, v218
    v_mov_b32 v92, 0
    v_mov_b32 v93, 0
    v_mov_b32 v94, 0
    v_mov_b32 v95, 0
    v_and_b32 v16, 31, v9
    v_lshlrev_b32 v16, 4, v16
    v_add_u32 v16, s62, v16
    ds_write_b128 v16, v[92:95] offset:{XRO+4096}
    s_waitcnt lgkmcnt(0)""")
    stamp(a, 4)

def emit_conv(a, hooks):
    a("v_and_b32 v1, 63, v0")
    def su1():
        a(f"""v_and_b32 v2, 31, v1
        s_lshl_b32 s36, s60, 5
        v_add_u32 v2, s36, v2
        v_lshlrev_b32 v2, 6, v2
        v_add_u32 v2, {WS['SYNC'] + SYNC_FLAGS}, v2""")
    signal(a, 2)
    wg_wait(a, su1, 2, 1, 1, 64)
    stamp(a, 5)
    a(f"""v_lshlrev_b32 v10, 4, v1
    s_lshl_b32 s36, s67, 11
    s_add_u32 s37, s65, s36
    s_add_u32 s37, s37, {WS['XR']}
    s_add_u32 s38, s62, s36
    s_add_u32 s38, s38, {XRO}
    s_mov_b32 m0, s38
    buffer_load_dwordx4 v10, {WSR}, s37 offen sc1 lds
    s_add_u32 s38, s38, 1024
    s_add_u32 s37, s37, 1024
    s_mov_b32 m0, s38
    buffer_load_dwordx4 v10, {WSR}, s37 offen sc1 lds
    v_and_b32 v11, 15, v1
    v_lshrrev_b32 v12, 4, v1
    v_lshlrev_b32 v13, 4, v11
    v_lshl_add_u32 v13, v12, 2, v13
    s_lshl_b32 s36, s67, 10
    v_add_u32 v13, s36, v13
    v_lshlrev_b32 v14, 1, v13
    v_lshlrev_b32 v15, 2, v13
    v_lshlrev_b32 v22, 6, v1
    v_add_u32 v22, {WS['SYNC'] + SYNC_FLAGS}, v22""")
    a(f"""v_add_u32 v17, 1, v11
    v_and_b32 v18, 3, v17
    v_mul_u32_u24 v18, {HCS}, v18
    v_lshrrev_b32 v17, 2, v17
    v_lshlrev_b32 v17, 3, v17
    v_lshl_add_u32 v17, v12, 4, v17
    v_add_u32 v17, v17, v18
    s_lshl_b32 s36, s67, 8
    s_add_u32 s37, s36, s62
    v_add_u32 v17, s37, v17
    v_lshlrev_b32 v18, 5, v11
    v_lshlrev_b32 v19, 4, v12
    v_sub_u32 v18, v19, v18
    s_add_u32 s37, s37, {XRO + 480}
    v_add_u32 v18, s37, v18""")
    for r in range(32, 64): a(f"v_mov_b32 v{r}, 0")
    a(f"s_waitcnt vmcnt(0)\ns_barrier")
    stamp(a, 6)
    pre = []
    for i in range(4):
        pre.append(f"buffer_load_dwordx2 v[{192+2*i}:{193+2*i}], v14, {WSR}, s10 offen offset:{512*i} sc1")
    for i in range(4):
        pre.append(f"buffer_load_dwordx4 v[{200+4*i}:{203+4*i}], v15, {WSR}, s8 offen offset:{1024*i} sc1")
        pre.append(f"buffer_load_dwordx4 v[{216+4*i}:{219+4*i}], v15, {WSR}, s9 offen offset:{1024*i} sc1")
    def load_frags(setbase, bi):
        ops = []
        for x in range(8):
            A = setbase + 4 * x
            ops.append(f"ds_read_b64 v[{A}:{A+1}], v17 offset:{512*x + 64*bi}")
            ops.append(f"ds_read_b64 v[{A+2}:{A+3}], v17 offset:{512*x + 64*bi + 8}")
            B = setbase + 32 + 4 * x
            ops.append(f"ds_read_b128 v[{B}:{B+3}], v18 offset:{512*(7-x) + 64*bi}")
        return ops
    sets = (64, 128)
    for op in load_frags(sets[0], 0): a(op)
    extra = []
    for bi in range(4):
        cur = sets[bi & 1]
        nxt = load_frags(sets[(bi + 1) & 1], bi + 1) if bi < 3 else []
        if bi == 0:
            for i in range(4):
                if i == 0: a(f"buffer_load_dword v24, v22, {WSR}, 0 offen sc1")
                else: a(f"s_movk_i32 s39, {4096*i}\nbuffer_load_dword v{24+i}, v22, {WSR}, s39 offen sc1")
        if bi == CHK:
            a(f"""s_waitcnt vmcnt(0)
            s_add_u32 s37, s{S_GEN}, 2
            v_subrev_u32 v24, s37, v24
            v_subrev_u32 v25, s37, v25
            v_subrev_u32 v26, s37, v26
            v_subrev_u32 v27, s37, v27
            v_max_u32 v24, v24, v25
            v_max_u32 v26, v26, v27
            v_max_u32 v24, v24, v26
            v_cmp_gt_u32 vcc, 16, v24
            s_cmp_eq_u64 vcc, -1
            s_cbranch_scc1 L_c_ok""")
            wait_flags(a, 22, 4, 2, 24)
            a.label("L_c_ok")
            a(f"s_mov_b32 s8, {WS['RS0']}\ns_mov_b32 s9, {WS['C0']}\ns_add_u32 s10, s65, {WS['QT']}")
            extra = pre + list(hooks['conv_loop_extra'])
        a("s_waitcnt lgkmcnt(0)")
        pairs = sorted([(jt, aa) for jt in range(8) for aa in range(jt + 1)], key=lambda p: (p[1], p[0]))
        k = 0
        for idx, (jt, aa) in enumerate(pairs):
            A = cur + 4 * aa; B = cur + 32 + 4 * (jt - aa); C = 32 + 4 * jt
            a(f"v_mfma_f32_16x16x32_bf16 v[{C}:{C+3}], v[{A}:{A+3}], v[{B}:{B+3}], v[{C}:{C+3}]")
            if idx < 24 and k < len(nxt):
                a(nxt[k]); k += 1
            if extra and idx % PACE == PACE - 1 or (extra and bi == CHK and idx < 12):
                a(extra.pop(0))
    for op in extra: a(op)
    stamp(a, 7)
    a(f"""v_lshlrev_b32 v4, 4, v1
    s_lshl_b32 s36, s{S_W}, 12
    s_add_u32 s36, s36, {EXO}
    v_add_u32 v5, s36, v4
    s_xor_b32 s36, s36, 4096
    v_add_u32 v6, s36, v4
    s_cmp_eq_u32 s67, 0
    s_cbranch_scc0 L_c_x1""")
    for half in range(2):
        own, oth = (32, 48) if half == 0 else (48, 32)
        for i in range(4): a(f"ds_write_b128 v5, v[{oth+4*i}:{oth+4*i+3}] offset:{1024*i}")
        a("s_waitcnt lgkmcnt(0)\ns_barrier")
        for i in range(4): a(f"ds_read_b128 v[{80+4*i}:{83+4*i}], v6 offset:{1024*i}")
        a("s_waitcnt lgkmcnt(0)")
        for i in range(4):
            for h in range(2):
                a(f"v_pk_add_f32 v[{64+4*i+2*h}:{65+4*i+2*h}], v[{own+4*i+2*h}:{own+4*i+2*h+1}], v[{80+4*i+2*h}:{81+4*i+2*h}]")
        if half == 0:
            a("s_branch L_c_x2\nL_c_x1:")
    a.label("L_c_x2")
    a(f"""v_lshlrev_b32 v7, 5, v11
    v_lshl_add_u32 v7, v12, 3, v7
    s_lshl_b32 s36, s67, 11
    s_sub_u32 s37, s62, s36
    s_add_u32 s37, s37, {XRO + 4088 - 1536}
    v_sub_u32 v7, s37, v7""")
    for i in range(4): a(f"ds_read_b64 v[{96+2*i}:{97+2*i}], v7 offset:{512*(3-i)}")
    a(f"""s_add_u32 s38, s65, {WS['YT']}
    s_add_u32 s39, s65, {WS['X1T']}
    s_waitcnt vmcnt({hooks['n_conv_total_w']}) lgkmcnt(0)""")
    O = lambda i: 64 + 4 * i
    T = lambda i: 104 + 10 * i
    for i in range(4):
        kv = 96 + 2 * i
        a(f"""v_and_b32 v{T(i)}, 0xffff0000, v{kv+1}
        v_lshlrev_b32 v{T(i)+1}, 16, v{kv+1}
        v_and_b32 v{T(i)+2}, 0xffff0000, v{kv}
        v_lshlrev_b32 v{T(i)+3}, 16, v{kv}""")
    for i in range(4):
        a(f"""v_pk_fma_f32 v[{O(i)}:{O(i)+1}], v[{T(i)}:{T(i)+1}], v[20:21], v[{O(i)}:{O(i)+1}] op_sel_hi:[1,0,1]
        v_pk_fma_f32 v[{O(i)+2}:{O(i)+3}], v[{T(i)+2}:{T(i)+3}], v[20:21], v[{O(i)+2}:{O(i)+3}] op_sel_hi:[1,0,1]""")
    for i in range(4):
        a(f"""v_cvt_pk_bf16_f32 v{T(i)+4}, v{O(i)}, v{O(i)+1}
        v_cvt_pk_bf16_f32 v{T(i)+5}, v{O(i)+2}, v{O(i)+3}""")
    for i in range(4):
        a(f"""v_lshlrev_b32 v{T(i)}, 16, v{192+2*i}
        v_and_b32 v{T(i)+1}, 0xffff0000, v{192+2*i}
        v_lshlrev_b32 v{T(i)+2}, 16, v{193+2*i}
        v_and_b32 v{T(i)+3}, 0xffff0000, v{193+2*i}
        buffer_store_dwordx2 v[{T(i)+4}:{T(i)+5}], v14, {WSR}, s38 offen offset:{512*i} sc1""")
    for i in range(4):
        a(f"""v_lshlrev_b32 v{O(i)}, 16, v{T(i)+4}
        v_and_b32 v{O(i)+1}, 0xffff0000, v{T(i)+4}
        v_lshlrev_b32 v{O(i)+2}, 16, v{T(i)+5}
        v_and_b32 v{O(i)+3}, 0xffff0000, v{T(i)+5}
        v_pk_fma_f32 v[{T(i)+6}:{T(i)+7}], v[{T(i)}:{T(i)+1}], v[{200+4*i}:{201+4*i}], v[{216+4*i}:{217+4*i}]
        v_pk_fma_f32 v[{T(i)+8}:{T(i)+9}], v[{T(i)+2}:{T(i)+3}], v[{202+4*i}:{203+4*i}], v[{218+4*i}:{219+4*i}]""")
    for i in range(4):
        a(f"""v_pk_fma_f32 v[{T(i)+6}:{T(i)+7}], v[{T(i)+6}:{T(i)+7}], v[{O(i)}:{O(i)+1}], v[{T(i)}:{T(i)+1}]
        v_pk_fma_f32 v[{T(i)+8}:{T(i)+9}], v[{T(i)+8}:{T(i)+9}], v[{O(i)+2}:{O(i)+3}], v[{T(i)+2}:{T(i)+3}]""")
    for i in range(4):
        a(f"""v_cvt_pk_bf16_f32 v{O(i)}, v{T(i)+6}, v{T(i)+7}
        v_cvt_pk_bf16_f32 v{O(i)+1}, v{T(i)+8}, v{T(i)+9}
        buffer_store_dwordx2 v[{O(i)}:{O(i)+1}], v14, {WSR}, s39 offen offset:{512*i} sc1""")
    stamp(a, 8)

V_CS = 32; V_X3 = 44; V_ACC = 52; V_XB = 100; V_T = 116; V_HB = 116; V_W2 = 144
def w13(kb, t): b = (kb * 3 + t) * 4; return f"a[{b}:{b+3}]"
def w2(i, dt):
    idx = i * 4 + dt
    if idx < 16: b = 192 + idx * 4; return f"a[{b}:{b+3}]"
    b = V_W2 + (idx - 16) * 4; return f"v[{b}:{b+3}]"

def emit_ffn_roles_early(a):
    pass
def emit_ffn_roles(a):
    if HALF:
        a(f"""s_and_b32 s22, s60, 1
        s_lshr_b32 s20, s60, 1
        s_lshl_b32 s20, s20, 2
        s_and_b32 s36, s61, 3
        s_or_b32 s20, s20, s36
        s_lshr_b32 s23, s61, 2
        s_lshl_b32 s21, s22, 3
        s_or_b32 s21, s21, s23""")
    else:
        a(f"""s_and_b32 s20, s61, 1
        s_lshl_b32 s36, s60, 1
        s_or_b32 s20, s20, s36
        s_lshr_b32 s21, s61, 1
        s_lshr_b32 s22, s21, 3
        s_and_b32 s23, s21, 7""")
    for t in range(3):
        a(f"""s_mul_i32 s36, s{S_W}, 3
        s_add_u32 s36, s36, {t}
        s_mul_i32 s37, s21, 11
        s_add_u32 s37, s37, s36
        s_cmp_lt_u32 s36, 11
        s_cselect_b32 s38, s37, 0x7fff
        s_cmp_lt_u32 s38, 172
        s_cselect_b32 s39, 1, 0
        s_lshl_b32 s{40+t}, s37, 14
        s_add_u32 s{40+t}, s{40+t}, {WS['WF13']}
        s_lshr_b32 s{44+t}, s37, 1
        s_lshl_b32 s{44+t}, s{44+t}, 9
        s_and_b32 s37, s37, 1
        s_lshl_b32 s37, s37, 8
        s_add_u32 s{44+t}, s{44+t}, s37
        s_cmp_eq_u32 s39, 1
        s_cselect_b32 s{40+t}, s{40+t}, {INV}
        s_cselect_b32 s{44+t}, s{44+t}, {INV}""")
    a(f"""s_mul_i32 s36, s23, 43
    s_mul_i32 s37, s{S_W}, 11
    s_add_u32 s36, s36, s37
    s_lshl_b32 s48, s36, 12
    s_add_u32 s48, s48, {WS['WF2']}
    s_cmp_eq_u32 s{S_W}, 3
    s_cselect_b32 s49, {INV}, s48
    v_and_b32 v31, 63, v0
    v_lshlrev_b32 v31, 4, v31""")
def w13_loads(a):
    for kb in range(16):
        for t in range(3):
            a(f"s_add_u32 s36, s{40+t}, {kb*1024}\nbuffer_load_dwordx4 {w13(kb,t)}, v31, {WSR}, s36 offen sc1")
def w2_loads(a, lo, hi):
    for idx in range(lo, hi):
        i, dt = idx >> 2, idx & 3
        a(f"s_add_u32 s36, s{49 if i == 10 else 48}, {idx*1024}\nbuffer_load_dwordx4 {w2(i,dt)}, v31, {WSR}, s36 offen sc1")

def emit_cs(a, nkb):
    a(f"v_mov_b32 v{V_XB}, 0x3f803f80\nv_mov_b32 v{V_XB+1}, 0x3f803f80\nv_mov_b32 v{V_XB+2}, 0x3f803f80\nv_mov_b32 v{V_XB+3}, 0x3f803f80")
    for kb in range(nkb):
        for t in range(3):
            c = V_CS + 4 * t
            a(f"v_mfma_f32_16x16x32_bf16 {vr(c)}, {w13(kb,t)}, {vr(V_XB)}, {'0' if kb == 0 else vr(c)}")

def x1_dma_setup(a):
    a(f"""v_lshrrev_b32 v2, 3, v1
    v_bfe_u32 v3, v1, 1, 2
    v_bfe_u32 v6, v1, 4, 1
    v_xor_b32 v3, v3, v6
    s_and_b32 s36, s{S_W}, 2
    v_xor_b32 v3, s36, v3
    v_and_b32 v6, 1, v1
    v_lshlrev_b32 v6, 4, v6
    v_lshl_add_u32 v6, v2, 12, v6
    v_lshl_add_u32 v27, v3, 5, v6""")
def x1_dma_ops(hf):
    ops = [f"""s_lshl_b32 s56, s{S_W}, 15
    s_lshl_b32 s57, s20, 8
    s_add_u32 s56, s56, s57
    s_add_u32 s56, s56, {WS['X1T'] + hf * 128}
    s_lshl_b32 s57, s{S_W}, 10
    s_add_u32 s57, s57, {hf * 65536}"""]
    for n in range(16):
        ops.append(f"""s_add_u32 m0, s57, {n * 4096}
        buffer_load_dwordx4 v27, {WSR}, s56 offen sc1 lds
        s_add_u32 s56, s56, {32 * 4096}""")
    return ops
def tiles_dma(a):
    a(f"""v_lshrrev_b32 v2, 3, v1
    v_and_b32 v3, 7, v1
    v_lshlrev_b32 v2, 12, v2
    v_lshl_add_u32 v2, v3, 4, v2
    s_lshl_b32 s36, s23, 18
    s_lshl_b32 s37, s{S_W}, 16
    s_add_u32 s36, s36, s37
    s_lshl_b32 s37, s20, 8
    s_add_u32 s36, s36, s37
    s_lshl_b32 s37, s22, 7
    s_add_u32 s36, s36, s37
    s_lshl_b32 s38, s{S_W}, 11""")
    for arr, lb in (('X1T', L_TX), ('YT', L_TY)):
        for i in range(2):
            a(f"""s_add_u32 s37, s36, {WS[arr] + i * 8 * 4096}
            s_add_u32 m0, s38, {lb + i * 1024}
            buffer_load_dwordx4 v2, {WSR}, s37 offen sc1 lds""")
def x3_dma_ops(hf):
    ops = [f"""s_lshl_b32 s56, s20, 3
    s_add_u32 s56, s56, s{S_W}
    s_add_u32 s56, s56, {4*hf}
    s_lshl_b32 s56, s56, 14
    s_add_u32 s56, s56, {WS['X3']}
    s_lshl_b32 s57, s{S_W}, 14
    s_add_u32 s57, s57, {hf * 65536}"""]
    for n in range(16):
        ops.append(f"""s_add_u32 m0, s57, {n * 1024}
        buffer_load_dwordx4 v31, {WSR}, s56 offen sc1 lds
        s_add_u32 s56, s56, 1024""")
    return ops
def member_flag_off(a, vdst, base_member_sgpr_expr, nmemb):
    a(f"""v_and_b32 v{vdst}, {nmemb-1}, v1
    v_add_u32 v{vdst}, {base_member_sgpr_expr}, v{vdst}""")
    if HALF:
        a(f"""v_lshrrev_b32 v29, 3, v{vdst}
        v_and_b32 v{vdst}, 7, v{vdst}
        v_lshlrev_b32 v{vdst}, 2, v{vdst}
        v_lshl_add_u32 v{vdst}, v29, 5, v{vdst}
        s_lshr_b32 s36, s20, 2
        s_lshl_b32 s36, s36, 6
        s_and_b32 s37, s20, 3
        s_add_u32 s36, s36, s37""")
    else:
        a(f"""v_lshlrev_b32 v{vdst}, 1, v{vdst}
        s_lshr_b32 s36, s20, 1
        s_lshl_b32 s36, s36, 5
        s_and_b32 s37, s20, 1
        s_add_u32 s36, s36, s37""")
    a(f"""v_add_u32 v{vdst}, s36, v{vdst}
    v_lshlrev_b32 v{vdst}, 6, v{vdst}
    v_add_u32 v{vdst}, {WS['SYNC'] + SYNC_FLAGS}, v{vdst}""")

def stats_write(a, hf, vm, vsd):
    a(f"""v_rcp_f32 v24, v{vsd}
    v_mul_f32 v{V_T+1}, v{vsd}, v{vsd}
    v_sub_f32 v{V_T+2}, 0, v{vm}
    v_mul_f32 v{V_T}, 0xbfb8aa3b, v24
    v_mov_b32 v{V_T+3}, 0
    s_lshl_b32 s36, s{S_W}, 8
    s_add_u32 s36, s36, {L_ST + hf * 1024}
    v_lshl_add_u32 v25, v2, 4, s36
    ds_write_b128 v25, {vr(V_T)}""")
def st3_stats(a, hf):
    a(f"""v_and_b32 v2, 15, v1
    v_lshrrev_b32 v3, 4, v1
    s_lshl_b32 s36, s20, 3
    s_add_u32 s36, s36, s{S_W}
    s_add_u32 s36, s36, {4*hf}
    s_lshl_b32 s36, s36, 10
    s_add_u32 s36, s36, {WS['SYNC'] + SYNC_ST3}
    v_lshlrev_b32 v26, 8, v3
    v_lshl_add_u32 v26, v2, 3, v26
    buffer_load_dwordx2 v[22:23], v26, {WSR}, s36 offen sc1
    buffer_load_dwordx2 v[24:25], v26, {WSR}, s36 offen offset:128 sc1""")
def st3_finish(a, hf):
    a(f"""v_add_f32 v22, v22, v24
    v_add_f32 v23, v23, v25""")
    sum_q(a, 22, 24); sum_q(a, 23, 24)
    ln_core(a, 22, 23)
    stats_write(a, hf, 22, 23)

def g1_addr(a, layer, hbase):
    tr = layer == 1
    a(f"""v_and_b32 v2, 15, v1
    v_lshrrev_b32 v3, 4, v1""")
    for x in range(4):
        a(f"""s_add_u32 s36, s{S_W}, {x}
        s_and_b32 s36, s36, 3""")
        if tr:
            a(f"""v_bfe_u32 v4, v1, 2, 2
            v_lshl_add_u32 v5, v3, 4, v4
            v_lshlrev_b32 v5, 7, v5
            v_lshrrev_b32 v4, 1, v4
            v_and_b32 v6, 1, v3
            v_lshl_or_b32 v4, v6, 1, v4
            v_xor_b32 v4, s36, v4
            v_lshl_add_u32 v5, v4, 5, v5
            v_and_b32 v6, 3, v1
            v_lshl_add_u32 v{8+x}, v6, 3, v5""")
        else:
            a(f"""s_lshl_b32 s37, s36, 14
            v_add_u32 v{8+x}, s37, v31""")
        a(f"""s_lshl_b32 s37, s36, 8
        s_add_u32 s37, s37, {L_ST}
        v_lshl_add_u32 v{15+x}, v2, 4, s37""")
    for p in range(2):
        a(f"""v_lshrrev_b32 v4, 5, v1
        v_add_u32 v4, s{S_W}, v4
        v_add_u32 v4, {2*p}, v4
        v_and_b32 v4, 3, v4
        v_mul_u32_u24 v5, {HT}, v4
        v_bfe_u32 v6, v1, 4, 1
        v_lshl_add_u32 v5, v6, 7, v5
        v_lshl_add_u32 v{12+p}, v2, 3, v5
        v_lshlrev_b32 v4, 8, v4
        v_lshl_add_u32 v4, v2, 4, v4
        v_add_u32 v{19+p}, {L_ST}, v4""")
    a(f"""s_mul_i32 s36, s20, {8*HT}
    s_add_u32 s36, s36, {hbase}""")
    for t in range(3): a(f"s_add_u32 s{52+t}, s{44+t}, s36")

def g1_sub(a, layer, sb, hook=None, cs_from=16):
    tr = layer == 1
    def rd(n):
        kb, x = n >> 2, n & 3
        B = V_XB + 4 * x
        if tr:
            off = (kb >> 1) * 8192 + (kb & 1) * 1024
            return [f"ds_read_b64_tr_b16 v[{B}:{B+1}], v{8+x} offset:{off}", f"ds_read_b64_tr_b16 v[{B+2}:{B+3}], v{8+x} offset:{off+512}"]
        return [f"ds_read_b128 {vr(B)}, v{8+x} offset:{kb*1024}"]
    per = 2 if tr else 1
    ONE, SA, SG = V_T, V_T + 4, V_T + 8
    if tr:
        for k in range(4): a(f"v_mov_b32 v{ONE+k}, 0x3f803f80")
    for n in range(3):
        for op in rd(n): a(op)
    for n in range(64):
        kb, x = n >> 2, n & 3
        if x == 0 and hook: hook(kb)
        infl = min(2, 63 - n)
        a(f"s_waitcnt lgkmcnt({infl*per})")
        B = V_XB + 4 * x
        for t in range(3):
            c = V_ACC + (x * 3 + t) * 4
            a(f"v_mfma_f32_16x16x32_bf16 {vr(c)}, {w13(kb,t)}, {vr(B)}, {'0' if kb == 0 else vr(c)}")
            if t == 0 and n + 3 < 64:
                for op in rd(n + 3): a(op)
        if tr and x == 1 and kb >= cs_from:
            for t in range(3):
                c = V_CS + 4 * t
                a(f"v_mfma_f32_16x16x32_bf16 {vr(c)}, {w13(kb,t)}, {vr(ONE)}, {vr(c)}")
        if tr and x == 0:
            a(f"v_mfma_f32_16x16x32_bf16 {vr(SA)}, {vr(ONE)}, {vr(B)}, {'0' if kb == 0 else vr(SA)}")
            a(f"v_mfma_f32_16x16x32_bf16 {vr(SG)}, {vr(B)}, {vr(B)}, {'0' if kb == 0 else vr(SG)}")
    if tr:
        a(f"""v_and_b32 v4, 3, v2
        v_cmp_eq_u32 vcc, 1, v4
        v_cndmask_b32 v23, v{SG}, v{SG+1}, vcc
        v_cmp_eq_u32 vcc, 2, v4
        v_cndmask_b32 v23, v23, v{SG+2}, vcc
        v_cmp_eq_u32 vcc, 3, v4
        v_cndmask_b32 v23, v23, v{SG+3}, vcc
        v_mov_b32 v22, v{SA}""")
        ln_core(a, 22, 23)
        a(f"""v_lshrrev_b32 v4, 2, v2
        v_cmp_eq_u32 vcc, v4, v3
        s_and_saveexec_b64 s[38:39], vcc""")
        stats_write(a, sb, 22, 23)
        a("s_mov_b64 exec, s[38:39]\ns_waitcnt lgkmcnt(0)\ns_barrier")

def g1_epi(a, sb):
    so = sb * 1024
    for x in range(4): a(f"ds_read_b32 v{V_T+2*x}, v{15+x} offset:{8+so}")
    for p in range(2): a(f"ds_read_b64 v[{V_T+8+2*p}:{V_T+9+2*p}], v{19+p} offset:{so}")
    a("s_waitcnt lgkmcnt(0)")
    A = lambda x, t: V_ACC + (x * 3 + t) * 4
    for t in range(3):
        cs = V_CS + 4 * t
        for x in range(4):
            for h in range(2):
                r = A(x, t) + 2 * h
                a(f"v_pk_fma_f32 v[{r}:{r+1}], v[{cs+2*h}:{cs+2*h+1}], v[{V_T+2*x}:{V_T+2*x+1}], v[{r}:{r+1}] op_sel_hi:[1,0,1]")
    for t in range(3):
        for p in range(2):
            for r in range(4): a(f"v_permlane32_swap_b32 v{A(2*p,t)+r}, v{A(2*p+1,t)+r}")
    for p in range(2):
        c1 = V_T + 8 + 2 * p
        T = lambda t: V_XB + 4 * t
        for t in range(3):
            for h in range(2):
                a(f"v_pk_mul_f32 v[{T(t)+2*h}:{T(t)+2*h+1}], v[{A(2*p,t)+2*h}:{A(2*p,t)+2*h+1}], v[{c1}:{c1+1}] op_sel_hi:[1,0]")
        for t in range(3):
            for r in range(4): a(f"v_exp_f32 v{T(t)+r}, v{T(t)+r}")
        for t in range(3):
            for h in range(2):
                g, u = A(2*p, t) + 2 * h, A(2*p+1, t) + 2 * h
                a(f"v_pk_mul_f32 v[{g}:{g+1}], v[{g}:{g+1}], v[{u}:{u+1}]")
        for t in range(3):
            for h in range(2):
                a(f"v_pk_fma_f32 v[{T(t)+2*h}:{T(t)+2*h+1}], v[{T(t)+2*h}:{T(t)+2*h+1}], v[{c1}:{c1+1}], v[{c1}:{c1+1}] op_sel:[0,1,1] op_sel_hi:[1,1,1]")
        for t in range(3):
            for r in range(4): a(f"v_rcp_f32 v{T(t)+r}, v{T(t)+r}")
        for t in range(3):
            for h in range(2):
                g = A(2*p, t) + 2 * h
                a(f"v_pk_mul_f32 v[{g}:{g+1}], v[{g}:{g+1}], v[{T(t)+2*h}:{T(t)+2*h+1}]")
        for t in range(3):
            g = A(2*p, t); u = A(2*p+1, t)
            a(f"""v_cvt_pk_bf16_f32 v{u}, v{g}, v{g+1}
            v_cvt_pk_bf16_f32 v{u+1}, v{g+2}, v{g+3}""")
        for t in range(3):
            u = A(2*p+1, t)
            a(f"buffer_store_dwordx2 v[{u}:{u+1}], v{12+p}, {WSR}, s{52+t} offen {LS('h')}")
def g1_next(a):
    for x in range(4): a(f"v_add_u32 v{8+x}, 0x10000, v{8+x}")
    for p in range(2): a(f"v_add_u32 v{12+p}, {4*HT}, v{12+p}")

def emit_g2(a, layer, hbase, etagA, st):
    ACC = V_ACC
    acc = lambda dt, x: ACC + (x * 4 + dt) * 4
    for x in range(4):
        a(f"""s_add_u32 s36, s{S_W}, {x}
        s_and_b32 s36, s36, 3
        s_lshl_b32 s37, s20, 3
        s_add_u32 s36, s36, s37
        s_lshl_b32 s37, s22, 2
        s_add_u32 s36, s36, s37
        s_mul_i32 s36, s36, {HT}
        s_mul_i32 s37, s{S_W}, {11*1024}
        s_add_u32 s36, s36, s37
        s_add_u32 s{56+x}, s36, {hbase}
        s_cmp_eq_u32 s{S_W}, 3
        s_cselect_b32 s{60+x}, {INV}, s{56+x}""")
    a(f"""s_lshl_b32 s51, s{S_W}, 15
    v_lshrrev_b32 v2, 4, v1
    v_and_b32 v3, 15, v1
    v_lshlrev_b32 v8, 7, v2
    v_lshl_add_u32 v8, v3, 3, v8
    v_add_u32 v8, s51, v8
    s_add_u32 s50, s{S_GEN}, s22
    s_add_u32 s50, s50, {etagA}""")
    def su():
        member_flag_off(a, 9, "0", 16)
    wg_wait(a, su, 9, 1, None, V_HB, etag=50)
    stamp(a, st)
    AHEAD = 4
    def dma1(i, x):
        a(f"""s_add_u32 s36, s{(60 if i == 10 else 56)+x}, {i*1024}
        s_add_u32 m0, s51, {(i % 8)*4096 + x*1024}
        buffer_load_dwordx4 v31, {WSR}, s36 offen sc1 lds""")
    for i in range(AHEAD):
        for x in range(4): dma1(i, x)
    def rd(n):
        i, x = n >> 2, n & 3
        B = V_HB + 4 * x; off = (i % 8) * 4096 + x * 1024
        return [f"ds_read_b64 v[{B}:{B+1}], v8 offset:{off}", f"ds_read_b64 v[{B+2}:{B+3}], v8 offset:{off+512}"]
    issued = AHEAD * 4
    def vmwait(n): a(f"s_waitcnt vmcnt({issued - 1 - n})")
    vmwait(2)
    stamp(a, st + 1)
    for n in range(3):
        for op in rd(n): a(op)
    for n in range(44):
        i, x = n >> 2, n & 3
        infl = min(2, 43 - n)
        a(f"s_waitcnt lgkmcnt({infl*2})")
        B = V_HB + 4 * x
        for dt in range(4):
            c = acc(dt, x)
            a(f"v_mfma_f32_16x16x32_bf16 {vr(c)}, {w2(i,dt)}, {vr(B)}, {'0' if i == 0 else vr(c)}")
            if dt == 0 and n + 3 < 44:
                vmwait(n + 3)
                for op in rd(n + 3): a(op)
            if dt == 2 and issued < 44:
                dma1(issued >> 2, issued & 3); issued += 1
    stamp(a, st + 2)
    a(f"v_add_u32 v9, s51, v31")
    for x in range(1, 4):
        for dt in range(4):
            a(f"ds_write_b128 v9, {vr(acc(dt,x))} offset:{((x-1)*4+dt)*1024}")
    for x in range(1, 4):
        a(f"""s_sub_u32 s36, s{S_W}, {x}
        s_and_b32 s36, s36, 3
        s_lshl_b32 s36, s36, 15
        v_add_u32 v{9+x}, s36, v31""")
    a("s_waitcnt lgkmcnt(0)\ns_barrier")
    for x in range(1, 4):
        for dt in range(4):
            a(f"ds_read_b128 {vr(acc(dt,x))}, v{9+x} offset:{((x-1)*4+dt)*1024}")
    if layer == 1:
        a(f"""v_bfe_u32 v4, v1, 2, 2
        v_lshl_add_u32 v4, v2, 4, v4
        v_lshlrev_b32 v4, 7, v4
        v_and_b32 v5, 3, v1
        v_lshl_add_u32 v4, v5, 3, v4
        s_lshl_b32 s36, s{S_W}, 5
        s_add_u32 s36, s36, {L_TX}
        v_add_u32 v4, s36, v4""")
        P = V_HB; Yp = V_HB + 8
        for dt in range(4):
            a(f"ds_read_b64_tr_b16 v[{P+2*dt}:{P+2*dt+1}], v4 offset:{dt*512}")
        for dt in range(4):
            a(f"ds_read_b64_tr_b16 v[{Yp+2*dt}:{Yp+2*dt+1}], v4 offset:{8192+dt*512}")
        nl = 8
    else:
        P = V_X3; nl = 0
    for x in range(1, 4):
        a(f"s_waitcnt lgkmcnt({min(15, (3-x)*4 + nl)})")
        for dt in range(4):
            for h in range(2):
                c, o = acc(dt, 0) + 2 * h, acc(dt, x) + 2 * h
                a(f"v_pk_add_f32 v[{c}:{c+1}], v[{c}:{c+1}], v[{o}:{o+1}]")
    stamp(a, st + 3)
    O = ACC; X = ACC + 16; PK = ACC + 48
    a("s_waitcnt lgkmcnt(0)")
    for k in range(8):
        a(f"v_lshlrev_b32 v{X+2*k}, 16, v{P+k}\nv_and_b32 v{X+2*k+1}, 0xffff0000, v{P+k}")
    for k in range(8): a(f"v_cvt_pk_bf16_f32 v{PK+k}, v{O+2*k}, v{O+2*k+1}")
    for k in range(8):
        a(f"v_lshlrev_b32 v{O+2*k}, 16, v{PK+k}\nv_and_b32 v{O+2*k+1}, 0xffff0000, v{PK+k}")
    for k in range(8):
        a(f"v_pk_add_f32 v[{O+2*k}:{O+2*k+1}], v[{O+2*k}:{O+2*k+1}], v[{X+2*k}:{X+2*k+1}]")
    for k in range(8): a(f"v_cvt_pk_bf16_f32 v{PK+k}, v{O+2*k}, v{O+2*k+1}")
    if layer == 2:
        a(f"""s_load_dwordx2 s[32:33], s[0:1], {ARG['out']}
        s_lshl_b32 s36, s20, 7
        s_lshl_b32 s37, s22, 6
        s_add_u32 s36, s36, s37
        s_lshl_b32 s37, s{S_W}, 4
        s_add_u32 s36, s36, s37
        s_lshl_b32 s36, s36, 10
        s_lshl_b32 s37, s23, 7
        s_add_u32 s36, s36, s37
        v_lshlrev_b32 v4, 10, v3
        v_lshl_add_u32 v4, v2, 5, v4
        s_waitcnt lgkmcnt(0)
        s_mov_b32 s34, {S*D*2}
        s_mov_b32 s35, 0x20000
        buffer_store_dwordx4 {vr(PK)}, v4, s[32:35], s36 offen
        buffer_store_dwordx4 {vr(PK+4)}, v4, s[32:35], s36 offen offset:16""")
        return
    a(f"v_mov_b32 v22, 0\nv_mov_b32 v23, 0\nv_mov_b32 v21, 0x3f803f80\nv_mov_b32 v26, 0\nv_mov_b32 v27, 0")
    for k in range(0, 8, 2):
        a(f"""v_dot2_f32_bf16 v22, v{PK+k}, v21, v22
        v_dot2_f32_bf16 v23, v{PK+k}, v{PK+k}, v23
        v_dot2_f32_bf16 v26, v{PK+k+1}, v21, v26
        v_dot2_f32_bf16 v27, v{PK+k+1}, v{PK+k+1}, v27""")
    a("v_add_f32 v22, v22, v26\nv_add_f32 v23, v23, v27")
    a(f"""v_mov_b32 v24, v22
    v_mov_b32 v25, v23
    v_permlane16_swap_b32 v22, v24
    v_permlane16_swap_b32 v23, v25
    v_add_f32 v22, v22, v24
    v_add_f32 v23, v23, v25
    v_mov_b32 v24, v22
    v_mov_b32 v25, v23
    v_permlane32_swap_b32 v22, v24
    v_permlane32_swap_b32 v23, v25
    v_add_f32 v22, v22, v24
    v_add_f32 v23, v23, v25""")
    L = a.newlabel("hop")
    a(f"""s_add_u32 s50, s{S_GEN}, 12
    v_mov_b32 v24, s50
    v_mov_b32 v25, 0
    s_lshl_b32 s36, s20, 1
    s_add_u32 s36, s36, s22
    s_lshl_b32 s36, s36, 13
    s_lshl_b32 s37, s{S_W}, 8
    s_add_u32 s36, s36, s37
    s_add_u32 s36, s36, {WS['SYNC'] + SYNC_ST2}
    s_lshl_b32 s37, s23, 10
    s_add_u32 s37, s37, s36
    v_lshlrev_b32 v4, 4, v3
    s_mov_b64 exec, 0xffff
    buffer_store_dwordx4 v[22:25], v4, {WSR}, s37 offen {LS()}
    s_mov_b64 exec, -1
    v_lshl_add_u32 v5, v2, 11, v4""")
    for k in range(8):
        a(f"v_lshlrev_b32 v{X+2*k}, 16, v{PK+k}\nv_and_b32 v{X+2*k+1}, 0xffff0000, v{PK+k}")
    a(f"""s_mov_b32 s38, 0
    {L}_p:
    buffer_load_dwordx4 v[{O}:{O+3}], v5, {WSR}, s36 offen sc1
    buffer_load_dwordx4 v[{O+4}:{O+7}], v5, {WSR}, s36 offen offset:1024 sc1
    s_add_u32 s38, s38, 1
    s_waitcnt vmcnt(0)
    v_cmp_eq_u32 vcc, s50, v{O+2}
    v_cmp_eq_u32 s[40:41], s50, v{O+6}
    s_and_b64 vcc, vcc, s[40:41]
    s_cmp_gt_u32 s38, 200000
    s_cbranch_scc1 {L}_d
    s_cmp_eq_u64 vcc, -1
    s_cbranch_scc0 {L}_p
    {L}_d:
    v_add_f32 v22, v{O}, v{O+4}
    v_add_f32 v23, v{O+1}, v{O+5}
    v_mov_b32 v24, v22
    v_mov_b32 v25, v23
    v_permlane16_swap_b32 v22, v24
    v_permlane16_swap_b32 v23, v25
    v_add_f32 v22, v22, v24
    v_add_f32 v23, v23, v25
    v_mov_b32 v24, v22
    v_mov_b32 v25, v23
    v_permlane32_swap_b32 v22, v24
    v_permlane32_swap_b32 v23, v25
    v_add_f32 v22, v22, v24
    v_add_f32 v23, v23, v25""")
    ln_core(a, 22, 23)
    a(f"""v_rcp_f32 v24, v23
    v_sub_f32 v22, 0, v22
    v_mul_f32 v26, v22, v24""")
    Yf = ACC
    for k in range(8):
        a(f"v_lshlrev_b32 v{Yf+2*k}, 16, v{Yp+k}\nv_and_b32 v{Yf+2*k+1}, 0xffff0000, v{Yp+k}")
    N = ACC + 32
    for k in range(8):
        a(f"v_pk_fma_f32 v[{N+2*k}:{N+2*k+1}], v[{X+2*k}:{X+2*k+1}], v[24:25], v[26:27] op_sel_hi:[1,0,0]")
    for k in range(8):
        a(f"v_pk_fma_f32 v[{N+2*k}:{N+2*k+1}], v[{N+2*k}:{N+2*k+1}], v[{Yf+2*k}:{Yf+2*k+1}], v[{X+2*k}:{X+2*k+1}]")
    for k in range(8):
        a(f"v_cvt_pk_bf16_f32 v{V_X3+k}, v{N+2*k}, v{N+2*k+1}")
    a(f"""s_lshl_b32 s36, s20, 3
    s_lshl_b32 s37, s22, 2
    s_add_u32 s36, s36, s37
    s_add_u32 s36, s36, s{S_W}
    s_lshl_b32 s38, s36, 10
    s_lshl_b32 s36, s36, 14
    s_lshl_b32 s37, s23, 11
    s_add_u32 s36, s36, s37
    s_add_u32 s36, s36, {WS['X3']}
    buffer_store_dwordx4 {vr(V_X3)}, v31, {WSR}, s36 offen {LS('x3')}
    buffer_store_dwordx4 {vr(V_X3+4)}, v31, {WSR}, s36 offen offset:1024 {LS('x3')}""")
    a(f"v_mov_b32 v22, 0\nv_mov_b32 v23, 0\nv_mov_b32 v26, 0\nv_mov_b32 v27, 0")
    for k in range(0, 8, 2):
        a(f"""v_dot2_f32_bf16 v22, v{V_X3+k}, v21, v22
        v_dot2_f32_bf16 v23, v{V_X3+k}, v{V_X3+k}, v23
        v_dot2_f32_bf16 v26, v{V_X3+k+1}, v21, v26
        v_dot2_f32_bf16 v27, v{V_X3+k+1}, v{V_X3+k+1}, v27""")
    a(f"""v_add_f32 v22, v22, v26
    v_add_f32 v23, v23, v27
    v_mov_b32 v24, v22
    v_mov_b32 v25, v23
    v_permlane16_swap_b32 v22, v24
    v_permlane16_swap_b32 v23, v25
    v_add_f32 v22, v22, v24
    v_add_f32 v23, v23, v25
    v_mov_b32 v24, v22
    v_mov_b32 v25, v23
    v_permlane32_swap_b32 v22, v24
    v_permlane32_swap_b32 v23, v25
    v_add_f32 v22, v22, v24
    v_add_f32 v23, v23, v25
    s_lshl_b32 s37, s23, 7
    s_add_u32 s38, s38, s37
    s_add_u32 s38, s38, {WS['SYNC'] + SYNC_ST3}
    v_lshlrev_b32 v4, 3, v3
    s_mov_b64 exec, 0xffff
    buffer_store_dwordx2 v[22:23], v4, {WSR}, s38 offen {LS()}
    s_mov_b64 exec, -1""")

NW13A = 12
NW13B = 27
PACE = 5
CHK = 1
FINE = None
def build():
    a = Asm()
    global stamp
    if FINE:
        real = common.stamp
        def stamp_(a_, i):
            if i == 0: real(a_, 0)
        stamp = stamp_
        globals()['fstamp'] = real
    else:
        globals()['fstamp'] = lambda a_, i: None
    kbegin(a, KN)
    emit_prologue(a)
    emit_prep_loads(a)
    a("s_waitcnt lgkmcnt(0)")
    emit_ffn_roles_early(a)
    emit_prep_compute(a)
    emit_ffn_roles(a)
    w13ops = [f"s_add_u32 s36, s{40+t}, {kb*1024}\nbuffer_load_dwordx4 {w13(kb,t)}, v31, {WSR}, s36 offen sc1" for kb in range(16) for t in range(3)]
    hooks = dict(conv_loop_extra=w13ops[:NW13A], n_conv_total_w=NW13A)
    emit_conv(a, hooks)
    signal(a, 3)
    stamp(a, 9)
    a("v_and_b32 v1, 63, v0")
    for op in w13ops[NW13A:NW13B]: a(op)
    emit_cs(a, NW13A // 3)
    def su3():
        a(f"v_lshlrev_b32 v9, 6, v1\nv_add_u32 v9, {WS['SYNC'] + SYNC_FLAGS}, v9")
    wg_wait(a, su3, 9, 4, 3, V_T)
    stamp(a, 10)
    x1_dma_setup(a)
    x1h0 = x1_dma_ops(0)
    for op in x1h0[:9]: a(op)
    x1h0 = x1h0[9:]
    g1_addr(a, 1, WS['H1'])
    a(f"s_waitcnt vmcnt(0)\ns_barrier")
    stamp(a, 11)
    kb0 = NW13A // 3
    kbC = NW13B // 3
    x1h1 = x1_dma_ops(1)
    w13c = [(w13ops[kb * 3 + t], ('w', kb)) for kb in range(kbC, 16) for t in range(3)]
    queue = [(op, ('x0', 0)) for op in x1h0] + w13c + [(x1h1[0], None)] + [(op, ('x1', 0)) for op in x1h1[1:]]
    issue_log = []
    def need(tag):
        pos = max(i for i, e in enumerate(issue_log) if e == tag)
        a(f"s_waitcnt vmcnt({len(issue_log) - 1 - pos})")
    def hookA(kb):
        if FINE == 'A': fstamp(a, 1 + kb)
        if kb == 7:
            need(('x0', 0)); a("s_barrier")
        if kb >= kbC: need(('w', kb))
        n = 4 if kb < 2 else 3
        while n > 0 and queue:
            op, tag = queue.pop(0)
            a(op)
            if tag is not None:
                issue_log.append(tag); n -= 1
        if kb == 15:
            while queue:
                op, tag = queue.pop(0); a(op)
                if tag is not None: issue_log.append(tag)
    g1_sub(a, 1, 0, hookA, cs_from=kb0)
    a("s_waitcnt vmcnt(0)\ns_barrier")
    if FINE == 'A': fstamp(a, 17)
    nw2 = 0
    tiles_dma(a)
    a("v_and_b32 v2, 15, v1\nv_lshrrev_b32 v3, 4, v1")
    stamp(a, 12)
    g1_epi(a, 0)
    g1_next(a)
    stamp(a, 13)
    def hookB(kb):
        if FINE == 'B': fstamp(a, 1 + kb)
        if kb == 5: signal(a, 4, tv=(22, 23), local=True)
        lo = nw2 + 4 * (kb - 5)
        if kb >= 5 and lo < 44: w2_loads(a, lo, min(44, lo + 4))
    g1_sub(a, 1, 1, hookB)
    g1_epi(a, 1)
    signal(a, 5, local=True)
    stamp(a, 14)
    emit_g2(a, 1, WS['H1'], 4, 15)
    signal(a, 6, local=True)
    stamp(a, 19)
    def su6a(): member_flag_off(a, 9, "0", 8)
    wg_wait(a, su6a, 9, 1, 6, V_T)
    stamp(a, 20)
    st3_stats(a, 0)
    x3h0 = x3_dma_ops(0)
    for op in x3h0[:9]: a(op)
    x3h0 = x3h0[9:]
    g1_addr(a, 2, WS['H2'])
    a("s_waitcnt vmcnt(8)")
    st3_finish(a, 0)
    a("s_waitcnt vmcnt(0) lgkmcnt(0)\ns_barrier")
    stamp(a, 21)
    x3h1 = x3_dma_ops(1)
    def hookA2(kb):
        if kb == 0:
            member_flag_off(a, 26, "8", 8)
            a(f"buffer_load_dword v28, v26, {WSR}, 0 offen sc1")
        if kb < 4:
            a(x3h0.pop(0)); a(x3h0.pop(0))
        if kb == 6:
            L = a.newlabel("x3b")
            a(f"""s_waitcnt vmcnt(8)
            s_add_u32 s37, s{S_GEN}, 6
            v_subrev_u32 v28, s37, v28
            v_cmp_gt_u32 vcc, 16, v28
            s_cmp_eq_u64 vcc, -1
            s_cbranch_scc1 {L}""")
            wait_flags(a, 26, 1, 6, 28)
            a.label(L)
            st3_stats(a, 1)
            a(x3h1.pop(0))
        if kb == 7:
            a("s_waitcnt vmcnt(4)\ns_barrier")
        if 6 <= kb < 14:
            a(x3h1.pop(0)); a(x3h1.pop(0))
        if kb == 15:
            a("s_waitcnt vmcnt(0)")
            st3_finish(a, 1)
    g1_sub(a, 2, 0, hookA2)
    a("s_waitcnt lgkmcnt(0)\ns_barrier")
    a("v_and_b32 v2, 15, v1\nv_lshrrev_b32 v3, 4, v1")
    stamp(a, 22)
    g1_epi(a, 0)
    g1_next(a)
    def hookB2(kb):
        if kb == 10: signal(a, 7, tv=(22, 23), local=True)
    g1_sub(a, 2, 1, hookB2)
    g1_epi(a, 1)
    signal(a, 8, local=True)
    stamp(a, 23)
    emit_g2(a, 2, WS['H2'], 7, 24)
    a(f"""s_or_b32 s36, s2, s{S_W}
    s_cmp_lg_u32 s36, 0
    s_cbranch_scc1 L_nogen
    s_add_u32 s36, s{S_GEN}, 16
    v_mov_b32 v2, s36
    v_mov_b32 v3, {WS['SYNC'] + SYNC_GEN}
    s_mov_b64 exec, 1
    buffer_store_dword v2, v3, {WSR}, 0 offen
    s_mov_b64 exec, -1
    L_nogen:""")
    if common.STAMPS:
        a("s_waitcnt vmcnt(0)"); stamp(a, 28)
    stamp_flush(a, 0, 29)
    a.label("L_end")
    a("s_endpgm")
    txt = header([(None, 256, 256, LDS_TOTAL)]) + a.text() + kernel_desc(KN, 512, 102, 256)
    return txt, a
if __name__ == "__main__":
    common.STAMPS = 's' in sys.argv[2:]
    LOCAL = any(x.startswith('l') for x in sys.argv[2:])
    for x in sys.argv[2:]:
        if x.startswith('l'): LOCSET.update(['flag'] + x[1:].split('+'))
    HALF = 'h' in sys.argv[2:]
    FINE = 'A' if 'fa' in sys.argv[2:] else ('B' if 'fb' in sys.argv[2:] else None)
    txt, a = build()
    open(sys.argv[1], "w").write(txt)
    print("nops:", a.nnop, "bytes", len(txt))
```

```python
import sys
from asmgen import *
from common import *
import common

KN = NAME + "_kernel"
WSR = "s[28:31]"
INV = "0x80000000"
S_GEN, S_W, S_FLAG = 3, 18, 64
LOCAL = False
HALF = False
def LS(kind="flag"): return "" if (LOCAL and kind in LOCSET) else "sc1"
LOCSET = set()
def vr(b, n=4): return f"v[{b}:{b+n-1}]"

def rnd_bf16(a, v):
    a(f"v_cvt_pk_bf16_f32 v{v}, v{v}, v{v}\nv_and_b32 v{v}, 0xffff0000, v{v}")
def sum_q(a, v, t):
    a(f"""v_mov_b32 v{t}, v{v}
    v_permlane16_swap_b32 v{v}, v{t}
    v_add_f32 v{v}, v{v}, v{t}
    v_mov_b32 v{t}, v{v}
    v_permlane32_swap_b32 v{v}, v{t}
    v_add_f32 v{v}, v{v}, v{t}""")
def allsum64(a, v, t):
    for r in (8, 4, 2, 1):
        a(f"v_add_f32_dpp v{v}, v{v}, v{v} row_ror:{r} row_mask:0xf bank_mask:0xf")
    sum_q(a, v, t)
def ln_core(a, vsum, vsq):
    a(f"""v_mul_f32 v{vsum}, 0x3b000000, v{vsum}
    v_mul_f32 v{vsq}, 0x3b000000, v{vsq}
    v_fma_f32 v{vsq}, -v{vsum}, v{vsum}, v{vsq}
    v_max_f32 v{vsq}, 0, v{vsq}""")
    rnd_bf16(a, vsq)
    a(f"v_add_f32 v{vsq}, 0x3727c5ac, v{vsq}")
    rnd_bf16(a, vsq)
    a(f"v_sqrt_f32 v{vsq}, v{vsq}")
    rnd_bf16(a, vsq)
    rnd_bf16(a, vsum)
def signal(a, e, tv=(2, 3), barrier=True, local=False):
    L = a.newlabel("sg")
    a("s_waitcnt vmcnt(0)")
    if barrier: a("s_barrier")
    a(f"""s_cmp_lg_u32 s{S_W}, 0
    s_cbranch_scc1 {L}
    s_add_u32 s36, s{S_GEN}, {e}
    v_mov_b32 v{tv[0]}, s36
    v_mov_b32 v{tv[1]}, s{S_FLAG}
    s_mov_b64 exec, 1
    buffer_store_dword v{tv[0]}, v{tv[1]}, {WSR}, 0 offen {LS() if local else 'sc1'}
    s_mov_b64 exec, -1
    {L}:""")
def wait_flags(a, voff, nld, e, T, etag=None):
    L = a.newlabel("wf")
    if etag is None:
        a(f"s_add_u32 s37, s{S_GEN}, {e}"); etag = 37
    a(f"s_mov_b32 s38, 0")
    a.label(L)
    for i in range(nld):
        if i == 0: a(f"buffer_load_dword v{T}, v{voff}, {WSR}, 0 offen sc1")
        else: a(f"s_movk_i32 s39, {4096*i}\nbuffer_load_dword v{T+i}, v{voff}, {WSR}, s39 offen sc1")
    a("s_add_u32 s38, s38, 1\ns_waitcnt vmcnt(0)")
    for k in range(nld):
        a(f"v_subrev_u32 v{T+k}, s{etag}, v{T+k}")
    for k in range(1, nld): a(f"v_max_u32 v{T}, v{T}, v{T+k}")
    a(f"""v_cmp_gt_u32 vcc, 16, v{T}
    s_cmp_gt_u32 s38, 200000
    s_cbranch_scc1 {L}_x
    s_cmp_eq_u64 vcc, -1
    s_cbranch_scc0 {L}
    {L}_x:""")
def wg_wait(a, setup, voff, nld, e, T, etag=None):
    L = a.newlabel("ww")
    a(f"s_cmp_lg_u32 s{S_W}, 0\ns_cbranch_scc1 {L}")
    setup()
    wait_flags(a, voff, nld, e, T, etag)
    a.label(L)
    a("s_barrier")

HCS = 4160; XRO = 4 * HCS; CB = XRO + 4608; EXO = 49152
PL = 65536
PW = PL + 16384
W3OFF = 6144 + 32
L_TX = 131072; L_TY = L_TX + 8192; L_ST = L_TY + 8192
LDS_TOTAL = L_ST + 2048

def emit_prologue(a):
    a(f"""s_cmp_ge_u32 s2, 256
    s_cbranch_scc1 L_end
    s_load_dwordx4 s[4:7], s[0:1], {ARG['q']}
    s_load_dwordx4 s[8:11], s[0:1], {ARG['v']}
    s_load_dwordx4 s[12:15], s[0:1], {ARG['h']}
    s_load_dwordx2 s[16:17], s[0:1], {ARG['ws']}
    s_load_dwordx4 s[52:55], s[0:1], {ARG['w1']}
    s_load_dwordx2 s[56:57], s[0:1], {ARG['w2']}
    v_lshrrev_b32 v3, 6, v0
    v_and_b32 v1, 7, v0
    v_readfirstlane_b32 s{S_W}, v3
    s_and_b32 s60, s2, 7
    s_lshr_b32 s61, s2, 3
    v_lshrrev_b32 v2, 3, v0
    s_lshl_b32 s36, s60, 7
    s_lshl_b32 s37, s61, 16
    s_add_u32 s36, s36, s37
    v_lshlrev_b32 v4, 4, v1
    v_lshlrev_b32 v5, 11, v2
    v_add3_u32 v4, v4, v5, s36
    s_lshl_b32 s{S_FLAG}, s60, 5
    s_add_u32 s{S_FLAG}, s{S_FLAG}, s61
    s_mov_b32 s19, s{S_FLAG}
    s_lshl_b32 s{S_FLAG}, s{S_FLAG}, 6
    s_add_u32 s{S_FLAG}, s{S_FLAG}, {WS['SYNC'] + SYNC_FLAGS}
    s_waitcnt lgkmcnt(0)""")
    srd(a, 20, 4, S * D * 2)
    srd(a, 24, 6, S * D * 2)
    srd(a, 32, 8, S * D * 2)
    srd(a, 40, 10, D * 8)
    srd(a, 28, 16, WS['END'])
    a(f"""s_add_u32 s36, s16, {WS['SYNC'] + SYNC_GEN}
    s_addc_u32 s37, s17, 0
    s_load_dword s{S_GEN}, s[36:37], 0""")
    stamp(a, 0)

def emit_prep_loads(a):
    a(f"""s_lshl_b32 s36, s60, 9
    v_lshlrev_b32 v8, 6, v1
    v_add_u32 v8, s36, v8
    buffer_load_dwordx4 v[44:47], v8, s[40:43], 0 offen
    buffer_load_dwordx4 v[48:51], v8, s[40:43], 0 offen offset:16
    buffer_load_dwordx4 v[52:55], v8, s[40:43], 0 offen offset:32
    buffer_load_dwordx4 v[56:59], v8, s[40:43], 0 offen offset:48
    v_subrev_u32 v5, 3072, v4
    v_subrev_u32 v6, 2048, v4
    v_subrev_u32 v7, 1024, v4
    buffer_load_dwordx4 v[16:19], v5, s[24:27], 0 offen
    buffer_load_dwordx4 v[20:23], v6, s[24:27], 0 offen
    buffer_load_dwordx4 v[24:27], v7, s[24:27], 0 offen
    buffer_load_dwordx4 v[28:31], v4, s[24:27], 0 offen
    buffer_load_dwordx4 v[32:35], v4, s[24:27], 0 offen offset:1024
    buffer_load_dwordx4 v[36:39], v4, s[32:35], 0 offen
    buffer_load_dwordx4 v[40:43], v4, s[32:35], 0 offen offset:1024
    v_and_b32 v9, 63, v0
    s_lshr_b32 s66, s{S_W}, 1
    s_and_b32 s67, s{S_W}, 1
    s_cmp_eq_u32 s66, 0
    s_cselect_b32 s52, s52, s54
    s_cselect_b32 s53, s53, s55
    s_mov_b32 s54, {D*F*2}
    s_mov_b32 s55, 0x20000
    s_mov_b32 s58, {D*F*2}
    s_mov_b32 s59, 0x20000
    s_mul_i32 s62, s60, {64*2752}
    s_mul_i32 s63, s61, 96
    s_add_u32 s62, s62, s63
    s_mul_i32 s63, s67, 192
    v_add_u32 v176, s63, v9
    s_mul_i32 s36, s66, {W3OFF}
    s_lshl_b32 s63, s63, 4
    s_add_u32 s36, s36, s63
    s_add_u32 s36, s36, {PW}""")
    for i in range(3):
        a(f"""v_add_u32 v177, {64*i}, v176
        v_mul_u32_u24 v178, 43691, v177
        v_lshrrev_b32 v178, 18, v178
        v_mul_u32_u24 v179, 6, v178
        v_sub_u32 v179, v177, v179
        v_mul_u32_u24 v178, 2752, v178
        v_lshl_add_u32 v{184+i}, v179, 4, v178
        s_add_u32 m0, s36, {1024*i}
        buffer_load_dwordx4 v{184+i}, s[52:55], s62 offen lds""")
    a(f"""v_lshrrev_b32 v178, 3, v9
    v_and_b32 v179, 7, v9
    v_lshlrev_b32 v178, 10, v178
    v_lshl_add_u32 v187, v179, 4, v178
    s_lshl_b32 s63, s{S_W}, 13
    s_lshl_b32 s36, s61, 15
    s_add_u32 s36, s36, s63
    s_lshl_b32 s63, s60, 7
    s_add_u32 s36, s36, s63
    s_lshl_b32 s63, s{S_W}, 10
    s_add_u32 s63, s63, {PW + 2*6144 + 64}
    s_mov_b32 m0, s63
    buffer_load_dwordx4 v187, s[56:59], s36 offen lds
    s_add_u32 s36, s36, {32*32*1024}
    s_add_u32 m0, s63, 4096
    buffer_load_dwordx4 v187, s[56:59], s36 offen lds""")

def emit_prep_loads2(a):
    a(f"""buffer_load_dwordx4 v[60:63], v4, s[20:23], 0 offen
    buffer_load_dwordx4 v[64:67], v4, s[20:23], 0 offen offset:1024
    v_lshlrev_b32 v10, 4, v9
    s_lshl_b32 s36, s2, 13
    s_lshl_b32 s37, s{S_W}, 11
    s_add_u32 s36, s36, s37
    v_add_u32 v10, s36, v10
    buffer_load_dwordx4 v[68:71], v10, s[20:23], 0 offen
    buffer_load_dwordx4 v[72:75], v10, s[20:23], 0 offen offset:1024
    s_lshl_b32 s65, s19, 1
    s_add_u32 s65, s65, s66
    s_lshl_b32 s37, s65, 1
    s_lshl_b32 s65, s65, 12""")
    srd(a, 44, 12, 4096, offreg=65)
    srd(a, 48, 14, D * 2)
    a(f"""v_lshlrev_b32 v10, 4, v9
    s_lshl_b32 s36, s67, 11
    v_add_u32 v10, s36, v10
    buffer_load_dwordx4 v[192:195], v10, s[44:47], 0 offen
    buffer_load_dwordx4 v[196:199], v10, s[44:47], 0 offen offset:4
    buffer_load_dwordx4 v[200:203], v10, s[44:47], 0 offen offset:8
    buffer_load_dwordx4 v[204:207], v10, s[44:47], 0 offen offset:1024
    buffer_load_dwordx4 v[208:211], v10, s[44:47], 0 offen offset:1028
    buffer_load_dwordx4 v[212:215], v10, s[44:47], 0 offen offset:1032
    v_bfe_u32 v219, v9, 3, 2
    v_and_b32 v220, 7, v9
    v_lshlrev_b32 v13, 1, v220
    v_add_u32 v13, v13, v219
    v_subrev_u32 v13, 16, v13
    v_lshlrev_b32 v13, 1, v13
    v_add_u32 v14, 2, v13
    buffer_load_ushort v216, v13, s[44:47], 0 offen
    buffer_load_ushort v217, v14, s[44:47], 0 offen
    v_mov_b32 v13, s37
    buffer_load_ushort v218, v13, s[48:51], 0 offen""")

def emit_prep_compute(a):
    a(f"""v_sub_u32 v11, 31, v2
    v_lshlrev_b32 v12, 2, v1
    v_xor_b32 v11, v11, v12
    v_lshlrev_b32 v11, 2, v11
    v_lshlrev_b32 v13, 10, v1
    v_add_u32 v11, v11, v13
    v_add_u32 v11, {PL}, v11
    v_xor_b32 v12, v2, v12
    v_lshlrev_b32 v12, 2, v12
    v_add_u32 v12, v12, v13
    v_add_u32 v12, {PL + 8192}, v12
    s_waitcnt vmcnt(12)""")
    for j in range(8):
        a(f"""v_lshlrev_b32 v{80+j}, 16, v{44+2*j}
        v_and_b32 v{88+j}, 0xffff0000, v{44+2*j}
        v_lshlrev_b32 v{96+j}, 16, v{45+2*j}
        v_and_b32 v{104+j}, 0xffff0000, v{45+2*j}""")
    a("s_waitcnt vmcnt(5)")
    stamp(a, 1)
    for i in range(5):
        for p in range(4):
            a(f"""v_lshlrev_b32 v{112+8*i+2*p}, 16, v{16+4*i+p}
            v_and_b32 v{113+8*i+2*p}, 0xffff0000, v{16+4*i+p}""")
    for row in range(2):
        for p in range(4):
            d = 152 + 8 * row + 2 * p
            a(f"v_pk_mul_f32 v[{d}:{d+1}], v[{112+8*row+2*p}:{113+8*row+2*p}], v[{104+2*p}:{105+2*p}]")
    for tt, tap in ((1, 2), (2, 1), (3, 0)):
        for row in range(2):
            for p in range(4):
                d = 152 + 8 * row + 2 * p
                k = 112 + 8 * (row + tt) + 2 * p
                s_ = 80 + 8 * tap + 2 * p
                a(f"v_pk_fma_f32 v[{d}:{d+1}], v[{k}:{k+1}], v[{s_}:{s_+1}], v[{d}:{d+1}]")
    for row in range(2):
        for p in range(4):
            a(f"""v_lshlrev_b32 v{112+8*row+2*p}, 16, v{36+4*row+p}
            v_and_b32 v{113+8*row+2*p}, 0xffff0000, v{36+4*row+p}""")
    for row in range(2):
        for p in range(4):
            d = 152 + 8 * row + 2 * p
            a(f"v_pk_mul_f32 v[{d}:{d+1}], v[{d}:{d+1}], v[{112+8*row+2*p}:{113+8*row+2*p}]")
    for j in range(8):
        a(f"v_cvt_pk_bf16_f32 v{80+j}, v{160+j}, v{152+j}")
    for j in range(8):
        a(f"ds_write_b32 v11, v{80+j} offset:{128*j}")
    a(f"""v_lshrrev_b32 v3, 6, v0
    v_xor_b32 v5, v1, v3
    v_lshlrev_b32 v5, 4, v5
    v_lshlrev_b32 v6, 7, v2
    v_add_u32 v5, v5, v6
    v_add_u32 v5, {PL}, v5
    v_xor_b32 v7, 64, v5
    s_lshl_b32 s36, s60, 18
    s_lshl_b32 s37, s61, 7
    s_sub_u32 s4, s36, s37
    s_add_u32 s4, s4, {WS['XR'] + 1984*2}
    s_add_u32 s5, s36, s37
    s_add_u32 s5, s5, {WS['QT']}
    v_lshlrev_b32 v8, 12, v2
    v_lshlrev_b32 v15, 4, v1
    v_add_u32 v8, v8, v15
    v_add_u32 v15, 0x20000, v8
    s_waitcnt lgkmcnt(0)
    s_barrier
    ds_read_b128 v[16:19], v5
    ds_read_b128 v[20:23], v7 offset:4096
    s_waitcnt lgkmcnt(1)
    buffer_store_dwordx4 v[16:19], v8, {WSR}, s4 offen {LS('xr')}
    s_waitcnt lgkmcnt(0)
    buffer_store_dwordx4 v[20:23], v15, {WSR}, s4 offen {LS('xr')}""")
    stamp(a, 2)
    emit_prep_loads2(a)
    L = a.newlabel("sg1")
    a(f"""s_waitcnt vmcnt(13)
    s_barrier
    s_cmp_lg_u32 s{S_W}, 0
    s_cbranch_scc1 {L}
    s_add_u32 s36, s{S_GEN}, 1
    v_mov_b32 v16, s36
    v_mov_b32 v17, s{S_FLAG}
    s_mov_b64 exec, 1
    buffer_store_dword v16, v17, {WSR}, 0 offen {LS()}
    s_mov_b64 exec, -1
    {L}:""")
    stamp(a, 3)
    a(f"""v_lshrrev_b32 v178, 4, v9
    v_bfe_u32 v179, v9, 2, 2
    v_and_b32 v180, 3, v9
    v_lshl_add_u32 v181, v178, 4, v179
    v_mul_u32_u24 v181, 96, v181
    v_and_b32 v182, 1, v180
    v_lshl_add_u32 v181, v182, 3, v181
    v_lshrrev_b32 v182, 1, v180
    v_mul_u32_u24 v182, {W3OFF}, v182
    v_add_u32 v181, v181, v182
    v_lshlrev_b32 v183, 4, v9""")
    for i in range(3):
        a(f"""s_mul_i32 s36, s{S_W}, 3
        s_add_u32 s36, s36, {i}
        s_lshr_b32 s37, s36, 1
        s_and_b32 s36, s36, 1
        s_lshl_b32 s38, s37, 4
        s_mul_i32 s39, s36, {8*96}
        s_add_u32 s38, s38, s39
        s_add_u32 s38, s38, {PW}
        v_add_u32 v182, s38, v181
        ds_read_b64_tr_b16 v[{144+4*i}:{145+4*i}], v182
        ds_read_b64_tr_b16 v[{146+4*i}:{147+4*i}], v182 offset:{4*96}
        s_mul_i32 s38, s61, 6
        s_add_u32 s38, s38, s37
        s_lshl_b32 s39, s38, 14
        s_lshl_b32 s37, s60, 11
        s_add_u32 s39, s39, s37
        s_lshl_b32 s36, s36, 10
        s_add_u32 s39, s39, s36
        s_add_u32 s39, s39, {WS['WF13']}
        s_cmp_lt_u32 s38, 172
        s_cselect_b32 s{6+i}, s39, {INV}""")
    a(f"""v_lshl_add_u32 v181, v178, 2, v179
    v_lshlrev_b32 v181, 7, v181
    v_lshl_add_u32 v181, v180, 5, v181
    s_lshl_b32 s36, s{S_W}, 3
    s_add_u32 s36, s36, {PW + 2*6144 + 64}
    v_add_u32 v181, s36, v181""")
    for i in range(2):
        a(f"""ds_read_b64_tr_b16 v[{156+4*i}:{157+4*i}], v181 offset:{4096*i}
        ds_read_b64_tr_b16 v[{158+4*i}:{159+4*i}], v181 offset:{4096*i + 2048}
        s_add_u32 s36, s61, {32*i}
        s_mul_i32 s37, s60, 43
        s_add_u32 s37, s37, s36
        s_lshl_b32 s37, s37, 12
        s_lshl_b32 s38, s{S_W}, 10
        s_add_u32 s37, s37, s38
        s_add_u32 s37, s37, {WS['WF2']}
        s_cmp_lt_u32 s36, 43
        s_cselect_b32 s{9+i}, s37, {INV}""")
    for i in range(5):
        a(f"s_waitcnt lgkmcnt({2*(4-i)})\nbuffer_store_dwordx4 {vr(144+4*i)}, v183, {WSR}, s{6+i} offen sc1")
    a("s_waitcnt vmcnt(16)")
    a("s_mov_b32 s36, 0x05040100\ns_mov_b32 s37, 0x07060302")
    for p in range(4):
        a(f"""v_perm_b32 v{88+2*p}, v{64+p}, v{60+p}, s36
        v_perm_b32 v{89+2*p}, v{64+p}, v{60+p}, s37""")
    for j in range(8):
        a(f"ds_write_b32 v12, v{88+j} offset:{128*j}")
    a("s_waitcnt vmcnt(14)")
    a("v_mov_b32 v14, 0x3f803f80")
    for row in range(2):
        su, sq = 96 + 2 * row, 97 + 2 * row
        a(f"v_mov_b32 v{su}, 0\nv_mov_b32 v{sq}, 0")
    for p in range(4):
        for row in range(2):
            su, sq = 96 + 2 * row, 97 + 2 * row; b = 68 + 4 * row
            a(f"v_dot2_f32_bf16 v{su}, v{b+p}, v14, v{su}\nv_dot2_f32_bf16 v{sq}, v{b+p}, v{b+p}, v{sq}")
    for r in (8, 4, 2, 1):
        for v in (96, 97, 98, 99):
            a(f"v_add_f32_dpp v{v}, v{v}, v{v} row_ror:{r} row_mask:0xf bank_mask:0xf")
    for k, v in enumerate((96, 97, 98, 99)): a(f"v_mov_b32 v{100+k}, v{v}")
    for k, v in enumerate((96, 97, 98, 99)): a(f"v_permlane16_swap_b32 v{v}, v{100+k}")
    for k, v in enumerate((96, 97, 98, 99)): a(f"v_add_f32 v{v}, v{v}, v{100+k}")
    for k, v in enumerate((96, 97, 98, 99)): a(f"v_mov_b32 v{100+k}, v{v}")
    for k, v in enumerate((96, 97, 98, 99)): a(f"v_permlane32_swap_b32 v{v}, v{100+k}")
    for k, v in enumerate((96, 97, 98, 99)): a(f"v_add_f32 v{v}, v{v}, v{100+k}")
    ln_core(a, 96, 97); ln_core(a, 98, 99)
    a(f"""v_rcp_f32 v102, v97
    v_rcp_f32 v103, v99
    v_mul_f32 v104, -v96, v102
    v_mul_f32 v105, -v98, v103
    s_lshl_b32 s36, s2, 5
    s_lshl_b32 s37, s{S_W}, 3
    s_add_u32 s11, s36, s37
    s_add_u32 s11, s11, {WS['RS0']}""")
    a(f"""v_mov_b32 v101, s11
    s_mov_b32 s37, {WS['C0']-WS['RS0']}
    s_mov_b64 exec, 1
    buffer_store_dwordx2 v[102:103], v101, {WSR}, 0 offen sc1
    buffer_store_dwordx2 v[104:105], v101, {WSR}, s37 offen sc1
    s_mov_b64 exec, -1
    s_waitcnt lgkmcnt(0)
    s_barrier
    ds_read_b128 v[72:75], v5 offset:8192
    ds_read_b128 v[76:79], v7 offset:{8192+4096}
    s_waitcnt lgkmcnt(1)
    buffer_store_dwordx4 v[72:75], v8, {WSR}, s5 offen sc1
    s_waitcnt lgkmcnt(0)
    buffer_store_dwordx4 v[76:79], v15, {WSR}, s5 offen sc1""")
    a(f"""s_waitcnt vmcnt(9)
    s_mul_i32 s62, s66, {CB}
    v_lshlrev_b32 v4, 4, v9
    s_lshl_b32 s36, s67, 11
    s_add_u32 s36, s36, s62
    s_add_u32 s36, s36, 32
    v_add_u32 v4, s36, v4""")
    for p in range(2):
        L0, L2, L4 = 192 + 12 * p, 196 + 12 * p, 200 + 12 * p
        for j in range(4):
            a(f"v_alignbit_b32 v{112+8*p+j}, v{L2+j}, v{L0+j}, 16")
            a(f"v_alignbit_b32 v{116+8*p+j}, v{L4+j}, v{L2+j}, 16")
        a(f"""ds_write_b128 v4, v[{L0}:{L0+3}] offset:{1024*p}
        ds_write_b128 v4, v[{112+8*p}:{115+8*p}] offset:{1024*p + HCS}
        ds_write_b128 v4, v[{L2}:{L2+3}] offset:{1024*p + 2*HCS}
        ds_write_b128 v4, v[{116+8*p}:{119+8*p}] offset:{1024*p + 3*HCS}""")
    a(f"""v_lshl_or_b32 v216, v217, 16, v216
    v_mul_u32_u24 v13, {HCS}, v219
    v_lshl_add_u32 v13, v220, 2, v13
    v_add_u32 v13, s62, v13
    ds_write_b32 v13, v216
    v_lshlrev_b32 v20, 16, v218
    v_mov_b32 v92, 0
    v_mov_b32 v93, 0
    v_mov_b32 v94, 0
    v_mov_b32 v95, 0
    v_and_b32 v16, 31, v9
    v_lshlrev_b32 v16, 4, v16
    v_add_u32 v16, s62, v16
    ds_write_b128 v16, v[92:95] offset:{XRO+4096}
    s_waitcnt lgkmcnt(0)""")
    stamp(a, 4)

def emit_conv(a, hooks):
    a("v_and_b32 v1, 63, v0")
    def su1():
        a(f"""v_and_b32 v2, 31, v1
        s_lshl_b32 s36, s60, 5
        v_add_u32 v2, s36, v2
        v_lshlrev_b32 v2, 6, v2
        v_add_u32 v2, {WS['SYNC'] + SYNC_FLAGS}, v2""")
    signal(a, 2)
    wg_wait(a, su1, 2, 1, 1, 64)
    stamp(a, 5)
    a(f"""v_lshlrev_b32 v10, 4, v1
    s_lshl_b32 s36, s67, 11
    s_add_u32 s37, s65, s36
    s_add_u32 s37, s37, {WS['XR']}
    s_add_u32 s38, s62, s36
    s_add_u32 s38, s38, {XRO}
    s_mov_b32 m0, s38
    buffer_load_dwordx4 v10, {WSR}, s37 offen sc1 lds
    s_add_u32 s38, s38, 1024
    s_add_u32 s37, s37, 1024
    s_mov_b32 m0, s38
    buffer_load_dwordx4 v10, {WSR}, s37 offen sc1 lds
    v_and_b32 v11, 15, v1
    v_lshrrev_b32 v12, 4, v1
    v_lshlrev_b32 v13, 4, v11
    v_lshl_add_u32 v13, v12, 2, v13
    s_lshl_b32 s36, s67, 10
    v_add_u32 v13, s36, v13
    v_lshlrev_b32 v14, 1, v13
    v_lshlrev_b32 v15, 2, v13
    v_lshlrev_b32 v22, 6, v1
    v_add_u32 v22, {WS['SYNC'] + SYNC_FLAGS}, v22""")
    a(f"""v_add_u32 v17, 1, v11
    v_and_b32 v18, 3, v17
    v_mul_u32_u24 v18, {HCS}, v18
    v_lshrrev_b32 v17, 2, v17
    v_lshlrev_b32 v17, 3, v17
    v_lshl_add_u32 v17, v12, 4, v17
    v_add_u32 v17, v17, v18
    s_lshl_b32 s36, s67, 8
    s_add_u32 s37, s36, s62
    v_add_u32 v17, s37, v17
    v_lshlrev_b32 v18, 5, v11
    v_lshlrev_b32 v19, 4, v12
    v_sub_u32 v18, v19, v18
    s_add_u32 s37, s37, {XRO + 480}
    v_add_u32 v18, s37, v18""")
    for r in range(32, 64): a(f"v_mov_b32 v{r}, 0")
    a(f"s_waitcnt vmcnt(0)\ns_barrier")
    stamp(a, 6)
    pre = []
    for i in range(4):
        pre.append(f"buffer_load_dwordx2 v[{192+2*i}:{193+2*i}], v14, {WSR}, s10 offen offset:{512*i} sc1")
    for i in range(4):
        pre.append(f"buffer_load_dwordx4 v[{200+4*i}:{203+4*i}], v15, {WSR}, s8 offen offset:{1024*i} sc1")
        pre.append(f"buffer_load_dwordx4 v[{216+4*i}:{219+4*i}], v15, {WSR}, s9 offen offset:{1024*i} sc1")
    def load_frags(setbase, bi):
        ops = []
        for x in range(8):
            A = setbase + 4 * x
            ops.append(f"ds_read_b64 v[{A}:{A+1}], v17 offset:{512*x + 64*bi}")
            ops.append(f"ds_read_b64 v[{A+2}:{A+3}], v17 offset:{512*x + 64*bi + 8}")
            B = setbase + 32 + 4 * x
            ops.append(f"ds_read_b128 v[{B}:{B+3}], v18 offset:{512*(7-x) + 64*bi}")
        return ops
    sets = (64, 128)
    for op in load_frags(sets[0], 0): a(op)
    extra = []
    for bi in range(4):
        cur = sets[bi & 1]
        nxt = load_frags(sets[(bi + 1) & 1], bi + 1) if bi < 3 else []
        if bi == 0:
            for i in range(4):
                if i == 0: a(f"buffer_load_dword v24, v22, {WSR}, 0 offen sc1")
                else: a(f"s_movk_i32 s39, {4096*i}\nbuffer_load_dword v{24+i}, v22, {WSR}, s39 offen sc1")
        if bi == CHK:
            a(f"""s_waitcnt vmcnt(0)
            s_add_u32 s37, s{S_GEN}, 2
            v_subrev_u32 v24, s37, v24
            v_subrev_u32 v25, s37, v25
            v_subrev_u32 v26, s37, v26
            v_subrev_u32 v27, s37, v27
            v_max_u32 v24, v24, v25
            v_max_u32 v26, v26, v27
            v_max_u32 v24, v24, v26
            v_cmp_gt_u32 vcc, 16, v24
            s_cmp_eq_u64 vcc, -1
            s_cbranch_scc1 L_c_ok""")
            wait_flags(a, 22, 4, 2, 24)
            a.label("L_c_ok")
            a(f"s_mov_b32 s8, {WS['RS0']}\ns_mov_b32 s9, {WS['C0']}\ns_add_u32 s10, s65, {WS['QT']}")
            extra = pre + list(hooks['conv_loop_extra'])
        a("s_waitcnt lgkmcnt(0)")
        pairs = sorted([(jt, aa) for jt in range(8) for aa in range(jt + 1)], key=lambda p: (p[1], p[0]))
        k = 0
        for idx, (jt, aa) in enumerate(pairs):
            A = cur + 4 * aa; B = cur + 32 + 4 * (jt - aa); C = 32 + 4 * jt
            a(f"v_mfma_f32_16x16x32_bf16 v[{C}:{C+3}], v[{A}:{A+3}], v[{B}:{B+3}], v[{C}:{C+3}]")
            if idx < 24 and k < len(nxt):
                a(nxt[k]); k += 1
            if extra and idx % PACE == PACE - 1 or (extra and bi == CHK and idx < 12):
                a(extra.pop(0))
    for op in extra: a(op)
    stamp(a, 7)
    a(f"""v_lshlrev_b32 v4, 4, v1
    s_lshl_b32 s36, s{S_W}, 12
    s_add_u32 s36, s36, {EXO}
    v_add_u32 v5, s36, v4
    s_xor_b32 s36, s36, 4096
    v_add_u32 v6, s36, v4
    s_cmp_eq_u32 s67, 0
    s_cbranch_scc0 L_c_x1""")
    for half in range(2):
        own, oth = (32, 48) if half == 0 else (48, 32)
        for i in range(4): a(f"ds_write_b128 v5, v[{oth+4*i}:{oth+4*i+3}] offset:{1024*i}")
        a("s_waitcnt lgkmcnt(0)\ns_barrier")
        for i in range(4): a(f"ds_read_b128 v[{80+4*i}:{83+4*i}], v6 offset:{1024*i}")
        a("s_waitcnt lgkmcnt(0)")
        for i in range(4):
            for h in range(2):
                a(f"v_pk_add_f32 v[{64+4*i+2*h}:{65+4*i+2*h}], v[{own+4*i+2*h}:{own+4*i+2*h+1}], v[{80+4*i+2*h}:{81+4*i+2*h}]")
        if half == 0:
            a("s_branch L_c_x2\nL_c_x1:")
    a.label("L_c_x2")
    a(f"""v_lshlrev_b32 v7, 5, v11
    v_lshl_add_u32 v7, v12, 3, v7
    s_lshl_b32 s36, s67, 11
    s_sub_u32 s37, s62, s36
    s_add_u32 s37, s37, {XRO + 4088 - 1536}
    v_sub_u32 v7, s37, v7""")
    for i in range(4): a(f"ds_read_b64 v[{96+2*i}:{97+2*i}], v7 offset:{512*(3-i)}")
    a(f"""s_add_u32 s38, s65, {WS['YT']}
    s_add_u32 s39, s65, {WS['X1T']}
    s_waitcnt vmcnt({hooks['n_conv_total_w']}) lgkmcnt(0)""")
    O = lambda i: 64 + 4 * i
    T = lambda i: 104 + 10 * i
    for i in range(4):
        kv = 96 + 2 * i
        a(f"""v_and_b32 v{T(i)}, 0xffff0000, v{kv+1}
        v_lshlrev_b32 v{T(i)+1}, 16, v{kv+1}
        v_and_b32 v{T(i)+2}, 0xffff0000, v{kv}
        v_lshlrev_b32 v{T(i)+3}, 16, v{kv}""")
    for i in range(4):
        a(f"""v_pk_fma_f32 v[{O(i)}:{O(i)+1}], v[{T(i)}:{T(i)+1}], v[20:21], v[{O(i)}:{O(i)+1}] op_sel_hi:[1,0,1]
        v_pk_fma_f32 v[{O(i)+2}:{O(i)+3}], v[{T(i)+2}:{T(i)+3}], v[20:21], v[{O(i)+2}:{O(i)+3}] op_sel_hi:[1,0,1]""")
    for i in range(4):
        a(f"""v_cvt_pk_bf16_f32 v{T(i)+4}, v{O(i)}, v{O(i)+1}
        v_cvt_pk_bf16_f32 v{T(i)+5}, v{O(i)+2}, v{O(i)+3}""")
    for i in range(4):
        a(f"""v_lshlrev_b32 v{T(i)}, 16, v{192+2*i}
        v_and_b32 v{T(i)+1}, 0xffff0000, v{192+2*i}
        v_lshlrev_b32 v{T(i)+2}, 16, v{193+2*i}
        v_and_b32 v{T(i)+3}, 0xffff0000, v{193+2*i}
        buffer_store_dwordx2 v[{T(i)+4}:{T(i)+5}], v14, {WSR}, s38 offen offset:{512*i} sc1""")
    for i in range(4):
        a(f"""v_lshlrev_b32 v{O(i)}, 16, v{T(i)+4}
        v_and_b32 v{O(i)+1}, 0xffff0000, v{T(i)+4}
        v_lshlrev_b32 v{O(i)+2}, 16, v{T(i)+5}
        v_and_b32 v{O(i)+3}, 0xffff0000, v{T(i)+5}
        v_pk_fma_f32 v[{T(i)+6}:{T(i)+7}], v[{T(i)}:{T(i)+1}], v[{200+4*i}:{201+4*i}], v[{216+4*i}:{217+4*i}]
        v_pk_fma_f32 v[{T(i)+8}:{T(i)+9}], v[{T(i)+2}:{T(i)+3}], v[{202+4*i}:{203+4*i}], v[{218+4*i}:{219+4*i}]""")
    for i in range(4):
        a(f"""v_pk_fma_f32 v[{T(i)+6}:{T(i)+7}], v[{T(i)+6}:{T(i)+7}], v[{O(i)}:{O(i)+1}], v[{T(i)}:{T(i)+1}]
        v_pk_fma_f32 v[{T(i)+8}:{T(i)+9}], v[{T(i)+8}:{T(i)+9}], v[{O(i)+2}:{O(i)+3}], v[{T(i)+2}:{T(i)+3}]""")
    for i in range(4):
        a(f"""v_cvt_pk_bf16_f32 v{O(i)}, v{T(i)+6}, v{T(i)+7}
        v_cvt_pk_bf16_f32 v{O(i)+1}, v{T(i)+8}, v{T(i)+9}
        buffer_store_dwordx2 v[{O(i)}:{O(i)+1}], v14, {WSR}, s39 offen offset:{512*i} sc1""")
    stamp(a, 8)

V_CS = 32; V_X3 = 44; V_ACC = 52; V_XB = 100; V_T = 116; V_HB = 116; V_W2 = 144
def w13(kb, t): b = (kb * 3 + t) * 4; return f"a[{b}:{b+3}]"
def w2(i, dt):
    idx = i * 4 + dt
    if idx < 16: b = 192 + idx * 4; return f"a[{b}:{b+3}]"
    b = V_W2 + (idx - 16) * 4; return f"v[{b}:{b+3}]"

def emit_ffn_roles_early(a):
    pass
def emit_ffn_roles(a):
    if HALF:
        a(f"""s_and_b32 s22, s60, 1
        s_lshr_b32 s20, s60, 1
        s_lshl_b32 s20, s20, 2
        s_and_b32 s36, s61, 3
        s_or_b32 s20, s20, s36
        s_lshr_b32 s23, s61, 2
        s_lshl_b32 s21, s22, 3
        s_or_b32 s21, s21, s23""")
    else:
        a(f"""s_and_b32 s20, s61, 1
        s_lshl_b32 s36, s60, 1
        s_or_b32 s20, s20, s36
        s_lshr_b32 s21, s61, 1
        s_lshr_b32 s22, s21, 3
        s_and_b32 s23, s21, 7""")
    for t in range(3):
        a(f"""s_mul_i32 s36, s{S_W}, 3
        s_add_u32 s36, s36, {t}
        s_mul_i32 s37, s21, 11
        s_add_u32 s37, s37, s36
        s_cmp_lt_u32 s36, 11
        s_cselect_b32 s38, s37, 0x7fff
        s_cmp_lt_u32 s38, 172
        s_cselect_b32 s39, 1, 0
        s_lshl_b32 s{40+t}, s37, 14
        s_add_u32 s{40+t}, s{40+t}, {WS['WF13']}
        s_lshr_b32 s{44+t}, s37, 1
        s_lshl_b32 s{44+t}, s{44+t}, 9
        s_and_b32 s37, s37, 1
        s_lshl_b32 s37, s37, 8
        s_add_u32 s{44+t}, s{44+t}, s37
        s_cmp_eq_u32 s39, 1
        s_cselect_b32 s{40+t}, s{40+t}, {INV}
        s_cselect_b32 s{44+t}, s{44+t}, {INV}""")
    a(f"""s_mul_i32 s36, s23, 43
    s_mul_i32 s37, s{S_W}, 11
    s_add_u32 s36, s36, s37
    s_lshl_b32 s48, s36, 12
    s_add_u32 s48, s48, {WS['WF2']}
    s_cmp_eq_u32 s{S_W}, 3
    s_cselect_b32 s49, {INV}, s48
    v_and_b32 v31, 63, v0
    v_lshlrev_b32 v31, 4, v31""")
def w13_loads(a):
    for kb in range(16):
        for t in range(3):
            a(f"s_add_u32 s36, s{40+t}, {kb*1024}\nbuffer_load_dwordx4 {w13(kb,t)}, v31, {WSR}, s36 offen sc1")
def w2_loads(a, lo, hi):
    for idx in range(lo, hi):
        i, dt = idx >> 2, idx & 3
        a(f"s_add_u32 s36, s{49 if i == 10 else 48}, {idx*1024}\nbuffer_load_dwordx4 {w2(i,dt)}, v31, {WSR}, s36 offen sc1")

def emit_cs(a, nkb):
    a(f"v_mov_b32 v{V_XB}, 0x3f803f80\nv_mov_b32 v{V_XB+1}, 0x3f803f80\nv_mov_b32 v{V_XB+2}, 0x3f803f80\nv_mov_b32 v{V_XB+3}, 0x3f803f80")
    for kb in range(nkb):
        for t in range(3):
            c = V_CS + 4 * t
            a(f"v_mfma_f32_16x16x32_bf16 {vr(c)}, {w13(kb,t)}, {vr(V_XB)}, {'0' if kb == 0 else vr(c)}")

def x1_dma_setup(a):
    a(f"""v_lshrrev_b32 v2, 3, v1
    v_bfe_u32 v3, v1, 1, 2
    v_bfe_u32 v6, v1, 4, 1
    v_xor_b32 v3, v3, v6
    s_and_b32 s36, s{S_W}, 2
    v_xor_b32 v3, s36, v3
    v_and_b32 v6, 1, v1
    v_lshlrev_b32 v6, 4, v6
    v_lshl_add_u32 v6, v2, 12, v6
    v_lshl_add_u32 v27, v3, 5, v6""")
def x1_dma_ops(hf):
    ops = [f"""s_lshl_b32 s56, s{S_W}, 15
    s_lshl_b32 s57, s20, 8
    s_add_u32 s56, s56, s57
    s_add_u32 s56, s56, {WS['X1T'] + hf * 128}
    s_lshl_b32 s57, s{S_W}, 10
    s_add_u32 s57, s57, {hf * 65536}"""]
    for n in range(16):
        ops.append(f"""s_add_u32 m0, s57, {n * 4096}
        buffer_load_dwordx4 v27, {WSR}, s56 offen sc1 lds
        s_add_u32 s56, s56, {32 * 4096}""")
    return ops
def tiles_dma(a):
    a(f"""v_lshrrev_b32 v2, 3, v1
    v_and_b32 v3, 7, v1
    v_lshlrev_b32 v2, 12, v2
    v_lshl_add_u32 v2, v3, 4, v2
    s_lshl_b32 s36, s23, 18
    s_lshl_b32 s37, s{S_W}, 16
    s_add_u32 s36, s36, s37
    s_lshl_b32 s37, s20, 8
    s_add_u32 s36, s36, s37
    s_lshl_b32 s37, s22, 7
    s_add_u32 s36, s36, s37
    s_lshl_b32 s38, s{S_W}, 11""")
    for arr, lb in (('X1T', L_TX), ('YT', L_TY)):
        for i in range(2):
            a(f"""s_add_u32 s37, s36, {WS[arr] + i * 8 * 4096}
            s_add_u32 m0, s38, {lb + i * 1024}
            buffer_load_dwordx4 v2, {WSR}, s37 offen sc1 lds""")
def x3_dma_ops(hf):
    ops = [f"""s_lshl_b32 s56, s20, 3
    s_add_u32 s56, s56, s{S_W}
    s_add_u32 s56, s56, {4*hf}
    s_lshl_b32 s56, s56, 14
    s_add_u32 s56, s56, {WS['X3']}
    s_lshl_b32 s57, s{S_W}, 14
    s_add_u32 s57, s57, {hf * 65536}"""]
    for n in range(16):
        ops.append(f"""s_add_u32 m0, s57, {n * 1024}
        buffer_load_dwordx4 v31, {WSR}, s56 offen sc1 lds
        s_add_u32 s56, s56, 1024""")
    return ops
def member_flag_off(a, vdst, base_member_sgpr_expr, nmemb):
    a(f"""v_and_b32 v{vdst}, {nmemb-1}, v1
    v_add_u32 v{vdst}, {base_member_sgpr_expr}, v{vdst}""")
    if HALF:
        a(f"""v_lshrrev_b32 v29, 3, v{vdst}
        v_and_b32 v{vdst}, 7, v{vdst}
        v_lshlrev_b32 v{vdst}, 2, v{vdst}
        v_lshl_add_u32 v{vdst}, v29, 5, v{vdst}
        s_lshr_b32 s36, s20, 2
        s_lshl_b32 s36, s36, 6
        s_and_b32 s37, s20, 3
        s_add_u32 s36, s36, s37""")
    else:
        a(f"""v_lshlrev_b32 v{vdst}, 1, v{vdst}
        s_lshr_b32 s36, s20, 1
        s_lshl_b32 s36, s36, 5
        s_and_b32 s37, s20, 1
        s_add_u32 s36, s36, s37""")
    a(f"""v_add_u32 v{vdst}, s36, v{vdst}
    v_lshlrev_b32 v{vdst}, 6, v{vdst}
    v_add_u32 v{vdst}, {WS['SYNC'] + SYNC_FLAGS}, v{vdst}""")

def stats_write(a, hf, vm, vsd):
    a(f"""v_rcp_f32 v24, v{vsd}
    v_mul_f32 v{V_T+1}, v{vsd}, v{vsd}
    v_sub_f32 v{V_T+2}, 0, v{vm}
    v_mul_f32 v{V_T}, 0xbfb8aa3b, v24
    v_mov_b32 v{V_T+3}, 0
    s_lshl_b32 s36, s{S_W}, 8
    s_add_u32 s36, s36, {L_ST + hf * 1024}
    v_lshl_add_u32 v25, v2, 4, s36
    ds_write_b128 v25, {vr(V_T)}""")
def st3_stats(a, hf):
    a(f"""v_and_b32 v2, 15, v1
    v_lshrrev_b32 v3, 4, v1
    s_lshl_b32 s36, s20, 3
    s_add_u32 s36, s36, s{S_W}
    s_add_u32 s36, s36, {4*hf}
    s_lshl_b32 s36, s36, 10
    s_add_u32 s36, s36, {WS['SYNC'] + SYNC_ST3}
    v_lshlrev_b32 v26, 8, v3
    v_lshl_add_u32 v26, v2, 3, v26
    buffer_load_dwordx2 v[22:23], v26, {WSR}, s36 offen sc1
    buffer_load_dwordx2 v[24:25], v26, {WSR}, s36 offen offset:128 sc1""")
def st3_finish(a, hf):
    a(f"""v_add_f32 v22, v22, v24
    v_add_f32 v23, v23, v25""")
    sum_q(a, 22, 24); sum_q(a, 23, 24)
    ln_core(a, 22, 23)
    stats_write(a, hf, 22, 23)

def g1_addr(a, layer, hbase):
    tr = layer == 1
    a(f"""v_and_b32 v2, 15, v1
    v_lshrrev_b32 v3, 4, v1""")
    for x in range(4):
        a(f"""s_add_u32 s36, s{S_W}, {x}
        s_and_b32 s36, s36, 3""")
        if tr:
            a(f"""v_bfe_u32 v4, v1, 2, 2
            v_lshl_add_u32 v5, v3, 4, v4
            v_lshlrev_b32 v5, 7, v5
            v_lshrrev_b32 v4, 1, v4
            v_and_b32 v6, 1, v3
            v_lshl_or_b32 v4, v6, 1, v4
            v_xor_b32 v4, s36, v4
            v_lshl_add_u32 v5, v4, 5, v5
            v_and_b32 v6, 3, v1
            v_lshl_add_u32 v{8+x}, v6, 3, v5""")
        else:
            a(f"""s_lshl_b32 s37, s36, 14
            v_add_u32 v{8+x}, s37, v31""")
        a(f"""s_lshl_b32 s37, s36, 8
        s_add_u32 s37, s37, {L_ST}
        v_lshl_add_u32 v{15+x}, v2, 4, s37""")
    for p in range(2):
        a(f"""v_lshrrev_b32 v4, 5, v1
        v_add_u32 v4, s{S_W}, v4
        v_add_u32 v4, {2*p}, v4
        v_and_b32 v4, 3, v4
        v_mul_u32_u24 v5, {HT}, v4
        v_bfe_u32 v6, v1, 4, 1
        v_lshl_add_u32 v5, v6, 7, v5
        v_lshl_add_u32 v{12+p}, v2, 3, v5
        v_lshlrev_b32 v4, 8, v4
        v_lshl_add_u32 v4, v2, 4, v4
        v_add_u32 v{19+p}, {L_ST}, v4""")
    a(f"""s_mul_i32 s36, s20, {8*HT}
    s_add_u32 s36, s36, {hbase}""")
    for t in range(3): a(f"s_add_u32 s{52+t}, s{44+t}, s36")

def g1_sub(a, layer, sb, hook=None, cs_from=16):
    tr = layer == 1
    def rd(n):
        kb, x = n >> 2, n & 3
        B = V_XB + 4 * x
        if tr:
            off = (kb >> 1) * 8192 + (kb & 1) * 1024
            return [f"ds_read_b64_tr_b16 v[{B}:{B+1}], v{8+x} offset:{off}", f"ds_read_b64_tr_b16 v[{B+2}:{B+3}], v{8+x} offset:{off+512}"]
        return [f"ds_read_b128 {vr(B)}, v{8+x} offset:{kb*1024}"]
    per = 2 if tr else 1
    ONE, SA, SG = V_T, V_T + 4, V_T + 8
    if tr:
        for k in range(4): a(f"v_mov_b32 v{ONE+k}, 0x3f803f80")
    for n in range(3):
        for op in rd(n): a(op)
    for n in range(64):
        kb, x = n >> 2, n & 3
        if x == 0 and hook: hook(kb)
        infl = min(2, 63 - n)
        a(f"s_waitcnt lgkmcnt({infl*per})")
        B = V_XB + 4 * x
        for t in range(3):
            c = V_ACC + (x * 3 + t) * 4
            a(f"v_mfma_f32_16x16x32_bf16 {vr(c)}, {w13(kb,t)}, {vr(B)}, {'0' if kb == 0 else vr(c)}")
            if t == 0 and n + 3 < 64:
                for op in rd(n + 3): a(op)
        if tr and x == 1 and kb >= cs_from:
            for t in range(3):
                c = V_CS + 4 * t
                a(f"v_mfma_f32_16x16x32_bf16 {vr(c)}, {w13(kb,t)}, {vr(ONE)}, {vr(c)}")
        if tr and x == 0:
            a(f"v_mfma_f32_16x16x32_bf16 {vr(SA)}, {vr(ONE)}, {vr(B)}, {'0' if kb == 0 else vr(SA)}")
            a(f"v_mfma_f32_16x16x32_bf16 {vr(SG)}, {vr(B)}, {vr(B)}, {'0' if kb == 0 else vr(SG)}")
    if tr:
        a(f"""v_and_b32 v4, 3, v2
        v_cmp_eq_u32 vcc, 1, v4
        v_cndmask_b32 v23, v{SG}, v{SG+1}, vcc
        v_cmp_eq_u32 vcc, 2, v4
        v_cndmask_b32 v23, v23, v{SG+2}, vcc
        v_cmp_eq_u32 vcc, 3, v4
        v_cndmask_b32 v23, v23, v{SG+3}, vcc
        v_mov_b32 v22, v{SA}""")
        ln_core(a, 22, 23)
        a(f"""v_lshrrev_b32 v4, 2, v2
        v_cmp_eq_u32 vcc, v4, v3
        s_and_saveexec_b64 s[38:39], vcc""")
        stats_write(a, sb, 22, 23)
        a("s_mov_b64 exec, s[38:39]\ns_waitcnt lgkmcnt(0)\ns_barrier")

def g1_epi(a, sb):
    so = sb * 1024
    for x in range(4): a(f"ds_read_b32 v{V_T+2*x}, v{15+x} offset:{8+so}")
    for p in range(2): a(f"ds_read_b64 v[{V_T+8+2*p}:{V_T+9+2*p}], v{19+p} offset:{so}")
    a("s_waitcnt lgkmcnt(0)")
    A = lambda x, t: V_ACC + (x * 3 + t) * 4
    for t in range(3):
        cs = V_CS + 4 * t
        for x in range(4):
            for h in range(2):
                r = A(x, t) + 2 * h
                a(f"v_pk_fma_f32 v[{r}:{r+1}], v[{cs+2*h}:{cs+2*h+1}], v[{V_T+2*x}:{V_T+2*x+1}], v[{r}:{r+1}] op_sel_hi:[1,0,1]")
    for t in range(3):
        for p in range(2):
            for r in range(4): a(f"v_permlane32_swap_b32 v{A(2*p,t)+r}, v{A(2*p+1,t)+r}")
    for p in range(2):
        c1 = V_T + 8 + 2 * p
        T = lambda t: V_XB + 4 * t
        for t in range(3):
            for h in range(2):
                a(f"v_pk_mul_f32 v[{T(t)+2*h}:{T(t)+2*h+1}], v[{A(2*p,t)+2*h}:{A(2*p,t)+2*h+1}], v[{c1}:{c1+1}] op_sel_hi:[1,0]")
        for t in range(3):
            for r in range(4): a(f"v_exp_f32 v{T(t)+r}, v{T(t)+r}")
        for t in range(3):
            for h in range(2):
                g, u = A(2*p, t) + 2 * h, A(2*p+1, t) + 2 * h
                a(f"v_pk_mul_f32 v[{g}:{g+1}], v[{g}:{g+1}], v[{u}:{u+1}]")
        for t in range(3):
            for h in range(2):
                a(f"v_pk_fma_f32 v[{T(t)+2*h}:{T(t)+2*h+1}], v[{T(t)+2*h}:{T(t)+2*h+1}], v[{c1}:{c1+1}], v[{c1}:{c1+1}] op_sel:[0,1,1] op_sel_hi:[1,1,1]")
        for t in range(3):
            for r in range(4): a(f"v_rcp_f32 v{T(t)+r}, v{T(t)+r}")
        for t in range(3):
            for h in range(2):
                g = A(2*p, t) + 2 * h
                a(f"v_pk_mul_f32 v[{g}:{g+1}], v[{g}:{g+1}], v[{T(t)+2*h}:{T(t)+2*h+1}]")
        for t in range(3):
            g = A(2*p, t); u = A(2*p+1, t)
            a(f"""v_cvt_pk_bf16_f32 v{u}, v{g}, v{g+1}
            v_cvt_pk_bf16_f32 v{u+1}, v{g+2}, v{g+3}""")
        for t in range(3):
            u = A(2*p+1, t)
            a(f"buffer_store_dwordx2 v[{u}:{u+1}], v{12+p}, {WSR}, s{52+t} offen {LS('h')}")
def g1_next(a):
    for x in range(4): a(f"v_add_u32 v{8+x}, 0x10000, v{8+x}")
    for p in range(2): a(f"v_add_u32 v{12+p}, {4*HT}, v{12+p}")

def emit_g2(a, layer, hbase, etagA, st):
    ACC = V_ACC
    acc = lambda dt, x: ACC + (x * 4 + dt) * 4
    for x in range(4):
        a(f"""s_add_u32 s36, s{S_W}, {x}
        s_and_b32 s36, s36, 3
        s_lshl_b32 s37, s20, 3
        s_add_u32 s36, s36, s37
        s_lshl_b32 s37, s22, 2
        s_add_u32 s36, s36, s37
        s_mul_i32 s36, s36, {HT}
        s_mul_i32 s37, s{S_W}, {11*1024}
        s_add_u32 s36, s36, s37
        s_add_u32 s{56+x}, s36, {hbase}
        s_cmp_eq_u32 s{S_W}, 3
        s_cselect_b32 s{60+x}, {INV}, s{56+x}""")
    a(f"""s_lshl_b32 s51, s{S_W}, 15
    v_lshrrev_b32 v2, 4, v1
    v_and_b32 v3, 15, v1
    v_lshlrev_b32 v8, 7, v2
    v_lshl_add_u32 v8, v3, 3, v8
    v_add_u32 v8, s51, v8
    s_add_u32 s50, s{S_GEN}, s22
    s_add_u32 s50, s50, {etagA}""")
    def su():
        member_flag_off(a, 9, "0", 16)
    wg_wait(a, su, 9, 1, None, V_HB, etag=50)
    stamp(a, st)
    AHEAD = 4
    def dma1(i, x):
        a(f"""s_add_u32 s36, s{(60 if i == 10 else 56)+x}, {i*1024}
        s_add_u32 m0, s51, {(i % 8)*4096 + x*1024}
        buffer_load_dwordx4 v31, {WSR}, s36 offen sc1 lds""")
    for i in range(AHEAD):
        for x in range(4): dma1(i, x)
    def rd(n):
        i, x = n >> 2, n & 3
        B = V_HB + 4 * x; off = (i % 8) * 4096 + x * 1024
        return [f"ds_read_b64 v[{B}:{B+1}], v8 offset:{off}", f"ds_read_b64 v[{B+2}:{B+3}], v8 offset:{off+512}"]
    issued = AHEAD * 4
    def vmwait(n): a(f"s_waitcnt vmcnt({issued - 1 - n})")
    vmwait(2)
    stamp(a, st + 1)
    for n in range(3):
        for op in rd(n): a(op)
    for n in range(44):
        i, x = n >> 2, n & 3
        infl = min(2, 43 - n)
        a(f"s_waitcnt lgkmcnt({infl*2})")
        B = V_HB + 4 * x
        for dt in range(4):
            c = acc(dt, x)
            a(f"v_mfma_f32_16x16x32_bf16 {vr(c)}, {w2(i,dt)}, {vr(B)}, {'0' if i == 0 else vr(c)}")
            if dt == 0 and n + 3 < 44:
                vmwait(n + 3)
                for op in rd(n + 3): a(op)
            if dt == 2 and issued < 44:
                dma1(issued >> 2, issued & 3); issued += 1
    stamp(a, st + 2)
    a(f"v_add_u32 v9, s51, v31")
    for x in range(1, 4):
        for dt in range(4):
            a(f"ds_write_b128 v9, {vr(acc(dt,x))} offset:{((x-1)*4+dt)*1024}")
    for x in range(1, 4):
        a(f"""s_sub_u32 s36, s{S_W}, {x}
        s_and_b32 s36, s36, 3
        s_lshl_b32 s36, s36, 15
        v_add_u32 v{9+x}, s36, v31""")
    a("s_waitcnt lgkmcnt(0)\ns_barrier")
    for x in range(1, 4):
        for dt in range(4):
            a(f"ds_read_b128 {vr(acc(dt,x))}, v{9+x} offset:{((x-1)*4+dt)*1024}")
    if layer == 1:
        a(f"""v_bfe_u32 v4, v1, 2, 2
        v_lshl_add_u32 v4, v2, 4, v4
        v_lshlrev_b32 v4, 7, v4
        v_and_b32 v5, 3, v1
        v_lshl_add_u32 v4, v5, 3, v4
        s_lshl_b32 s36, s{S_W}, 5
        s_add_u32 s36, s36, {L_TX}
        v_add_u32 v4, s36, v4""")
        P = V_HB; Yp = V_HB + 8
        for dt in range(4):
            a(f"ds_read_b64_tr_b16 v[{P+2*dt}:{P+2*dt+1}], v4 offset:{dt*512}")
        for dt in range(4):
            a(f"ds_read_b64_tr_b16 v[{Yp+2*dt}:{Yp+2*dt+1}], v4 offset:{8192+dt*512}")
        nl = 8
    else:
        P = V_X3; nl = 0
    for x in range(1, 4):
        a(f"s_waitcnt lgkmcnt({min(15, (3-x)*4 + nl)})")
        for dt in range(4):
            for h in range(2):
                c, o = acc(dt, 0) + 2 * h, acc(dt, x) + 2 * h
                a(f"v_pk_add_f32 v[{c}:{c+1}], v[{c}:{c+1}], v[{o}:{o+1}]")
    stamp(a, st + 3)
    O = ACC; X = ACC + 16; PK = ACC + 48
    a("s_waitcnt lgkmcnt(0)")
    for k in range(8):
        a(f"v_lshlrev_b32 v{X+2*k}, 16, v{P+k}\nv_and_b32 v{X+2*k+1}, 0xffff0000, v{P+k}")
    for k in range(8): a(f"v_cvt_pk_bf16_f32 v{PK+k}, v{O+2*k}, v{O+2*k+1}")
    for k in range(8):
        a(f"v_lshlrev_b32 v{O+2*k}, 16, v{PK+k}\nv_and_b32 v{O+2*k+1}, 0xffff0000, v{PK+k}")
    for k in range(8):
        a(f"v_pk_add_f32 v[{O+2*k}:{O+2*k+1}], v[{O+2*k}:{O+2*k+1}], v[{X+2*k}:{X+2*k+1}]")
    for k in range(8): a(f"v_cvt_pk_bf16_f32 v{PK+k}, v{O+2*k}, v{O+2*k+1}")
    if layer == 2:
        a(f"""s_load_dwordx2 s[32:33], s[0:1], {ARG['out']}
        s_lshl_b32 s36, s20, 7
        s_lshl_b32 s37, s22, 6
        s_add_u32 s36, s36, s37
        s_lshl_b32 s37, s{S_W}, 4
        s_add_u32 s36, s36, s37
        s_lshl_b32 s36, s36, 10
        s_lshl_b32 s37, s23, 7
        s_add_u32 s36, s36, s37
        v_lshlrev_b32 v4, 10, v3
        v_lshl_add_u32 v4, v2, 5, v4
        s_waitcnt lgkmcnt(0)
        s_mov_b32 s34, {S*D*2}
        s_mov_b32 s35, 0x20000
        buffer_store_dwordx4 {vr(PK)}, v4, s[32:35], s36 offen
        buffer_store_dwordx4 {vr(PK+4)}, v4, s[32:35], s36 offen offset:16""")
        return
    a(f"v_mov_b32 v22, 0\nv_mov_b32 v23, 0\nv_mov_b32 v21, 0x3f803f80\nv_mov_b32 v26, 0\nv_mov_b32 v27, 0")
    for k in range(0, 8, 2):
        a(f"""v_dot2_f32_bf16 v22, v{PK+k}, v21, v22
        v_dot2_f32_bf16 v23, v{PK+k}, v{PK+k}, v23
        v_dot2_f32_bf16 v26, v{PK+k+1}, v21, v26
        v_dot2_f32_bf16 v27, v{PK+k+1}, v{PK+k+1}, v27""")
    a("v_add_f32 v22, v22, v26\nv_add_f32 v23, v23, v27")
    a(f"""v_mov_b32 v24, v22
    v_mov_b32 v25, v23
    v_permlane16_swap_b32 v22, v24
    v_permlane16_swap_b32 v23, v25
    v_add_f32 v22, v22, v24
    v_add_f32 v23, v23, v25
    v_mov_b32 v24, v22
    v_mov_b32 v25, v23
    v_permlane32_swap_b32 v22, v24
    v_permlane32_swap_b32 v23, v25
    v_add_f32 v22, v22, v24
    v_add_f32 v23, v23, v25""")
    L = a.newlabel("hop")
    a(f"""s_add_u32 s50, s{S_GEN}, 12
    v_mov_b32 v24, s50
    v_mov_b32 v25, 0
    s_lshl_b32 s36, s20, 1
    s_add_u32 s36, s36, s22
    s_lshl_b32 s36, s36, 13
    s_lshl_b32 s37, s{S_W}, 8
    s_add_u32 s36, s36, s37
    s_add_u32 s36, s36, {WS['SYNC'] + SYNC_ST2}
    s_lshl_b32 s37, s23, 10
    s_add_u32 s37, s37, s36
    v_lshlrev_b32 v4, 4, v3
    s_mov_b64 exec, 0xffff
    buffer_store_dwordx4 v[22:25], v4, {WSR}, s37 offen {LS()}
    s_mov_b64 exec, -1
    v_lshl_add_u32 v5, v2, 11, v4""")
    for k in range(8):
        a(f"v_lshlrev_b32 v{X+2*k}, 16, v{PK+k}\nv_and_b32 v{X+2*k+1}, 0xffff0000, v{PK+k}")
    a(f"""s_mov_b32 s38, 0
    {L}_p:
    buffer_load_dwordx4 v[{O}:{O+3}], v5, {WSR}, s36 offen sc1
    buffer_load_dwordx4 v[{O+4}:{O+7}], v5, {WSR}, s36 offen offset:1024 sc1
    s_add_u32 s38, s38, 1
    s_waitcnt vmcnt(0)
    v_cmp_eq_u32 vcc, s50, v{O+2}
    v_cmp_eq_u32 s[40:41], s50, v{O+6}
    s_and_b64 vcc, vcc, s[40:41]
    s_cmp_gt_u32 s38, 200000
    s_cbranch_scc1 {L}_d
    s_cmp_eq_u64 vcc, -1
    s_cbranch_scc0 {L}_p
    {L}_d:
    v_add_f32 v22, v{O}, v{O+4}
    v_add_f32 v23, v{O+1}, v{O+5}
    v_mov_b32 v24, v22
    v_mov_b32 v25, v23
    v_permlane16_swap_b32 v22, v24
    v_permlane16_swap_b32 v23, v25
    v_add_f32 v22, v22, v24
    v_add_f32 v23, v23, v25
    v_mov_b32 v24, v22
    v_mov_b32 v25, v23
    v_permlane32_swap_b32 v22, v24
    v_permlane32_swap_b32 v23, v25
    v_add_f32 v22, v22, v24
    v_add_f32 v23, v23, v25""")
    ln_core(a, 22, 23)
    a(f"""v_rcp_f32 v24, v23
    v_sub_f32 v22, 0, v22
    v_mul_f32 v26, v22, v24""")
    Yf = ACC
    for k in range(8):
        a(f"v_lshlrev_b32 v{Yf+2*k}, 16, v{Yp+k}\nv_and_b32 v{Yf+2*k+1}, 0xffff0000, v{Yp+k}")
    N = ACC + 32
    for k in range(8):
        a(f"v_pk_fma_f32 v[{N+2*k}:{N+2*k+1}], v[{X+2*k}:{X+2*k+1}], v[24:25], v[26:27] op_sel_hi:[1,0,0]")
    for k in range(8):
        a(f"v_pk_fma_f32 v[{N+2*k}:{N+2*k+1}], v[{N+2*k}:{N+2*k+1}], v[{Yf+2*k}:{Yf+2*k+1}], v[{X+2*k}:{X+2*k+1}]")
    for k in range(8):
        a(f"v_cvt_pk_bf16_f32 v{V_X3+k}, v{N+2*k}, v{N+2*k+1}")
    a(f"""s_lshl_b32 s36, s20, 3
    s_lshl_b32 s37, s22, 2
    s_add_u32 s36, s36, s37
    s_add_u32 s36, s36, s{S_W}
    s_lshl_b32 s38, s36, 10
    s_lshl_b32 s36, s36, 14
    s_lshl_b32 s37, s23, 11
    s_add_u32 s36, s36, s37
    s_add_u32 s36, s36, {WS['X3']}
    buffer_store_dwordx4 {vr(V_X3)}, v31, {WSR}, s36 offen {LS('x3')}
    buffer_store_dwordx4 {vr(V_X3+4)}, v31, {WSR}, s36 offen offset:1024 {LS('x3')}""")
    a(f"v_mov_b32 v22, 0\nv_mov_b32 v23, 0\nv_mov_b32 v26, 0\nv_mov_b32 v27, 0")
    for k in range(0, 8, 2):
        a(f"""v_dot2_f32_bf16 v22, v{V_X3+k}, v21, v22
        v_dot2_f32_bf16 v23, v{V_X3+k}, v{V_X3+k}, v23
        v_dot2_f32_bf16 v26, v{V_X3+k+1}, v21, v26
        v_dot2_f32_bf16 v27, v{V_X3+k+1}, v{V_X3+k+1}, v27""")
    a(f"""v_add_f32 v22, v22, v26
    v_add_f32 v23, v23, v27
    v_mov_b32 v24, v22
    v_mov_b32 v25, v23
    v_permlane16_swap_b32 v22, v24
    v_permlane16_swap_b32 v23, v25
    v_add_f32 v22, v22, v24
    v_add_f32 v23, v23, v25
    v_mov_b32 v24, v22
    v_mov_b32 v25, v23
    v_permlane32_swap_b32 v22, v24
    v_permlane32_swap_b32 v23, v25
    v_add_f32 v22, v22, v24
    v_add_f32 v23, v23, v25
    s_lshl_b32 s37, s23, 7
    s_add_u32 s38, s38, s37
    s_add_u32 s38, s38, {WS['SYNC'] + SYNC_ST3}
    v_lshlrev_b32 v4, 3, v3
    s_mov_b64 exec, 0xffff
    buffer_store_dwordx2 v[22:23], v4, {WSR}, s38 offen {LS()}
    s_mov_b64 exec, -1""")

NW13A = 12
NW13B = 27
PACE = 5
CHK = 1
FINE = None
DBG = 0
def build():
    a = Asm()
    global stamp
    if FINE:
        real = common.stamp
        def stamp_(a_, i):
            if i == 0: real(a_, 0)
        stamp = stamp_
        globals()['fstamp'] = real
    else:
        globals()['fstamp'] = lambda a_, i: None
    kbegin(a, KN)
    emit_prologue(a)
    emit_prep_loads(a)
    a("s_waitcnt lgkmcnt(0)")
    emit_ffn_roles_early(a)
    emit_prep_compute(a)
    emit_ffn_roles(a)
    w13ops = [f"s_add_u32 s36, s{40+t}, {kb*1024}\nbuffer_load_dwordx4 {w13(kb,t)}, v31, {WSR}, s36 offen sc1" for kb in range(16) for t in range(3)]
    hooks = dict(conv_loop_extra=w13ops[:NW13A], n_conv_total_w=NW13A)
    emit_conv(a, hooks)
    signal(a, 3)
    stamp(a, 9)
    a("v_and_b32 v1, 63, v0")
    for op in w13ops[NW13A:NW13B]: a(op)
    emit_cs(a, NW13A // 3)
    def su3():
        a(f"v_lshlrev_b32 v9, 6, v1\nv_add_u32 v9, {WS['SYNC'] + SYNC_FLAGS}, v9")
    wg_wait(a, su3, 9, 4, 3, V_T)
    stamp(a, 10)
    x1_dma_setup(a)
    x1h0 = x1_dma_ops(0)
    for op in x1h0[:9]: a(op)
    x1h0 = x1h0[9:]
    g1_addr(a, 1, WS['H1'])
    a(f"s_waitcnt vmcnt(0)\ns_barrier")
    stamp(a, 11)
    kb0 = NW13A // 3
    kbC = NW13B // 3
    x1h1 = x1_dma_ops(1)
    w13c = [(w13ops[kb * 3 + t], ('w', kb)) for kb in range(kbC, 16) for t in range(3)]
    queue = [(op, ('x0', 0)) for op in x1h0] + w13c + [(x1h1[0], None)] + [(op, ('x1', 0)) for op in x1h1[1:]]
    issue_log = []
    def need(tag):
        pos = max(i for i, e in enumerate(issue_log) if e == tag)
        a(f"s_waitcnt vmcnt({len(issue_log) - 1 - pos})")
    def hookA(kb):
        if FINE == 'A': fstamp(a, 1 + kb)
        if kb == 7:
            need(('x0', 0)); a("s_barrier")
        if kb >= kbC: need(('w', kb))
        n = 4 if kb < 2 else 3
        while n > 0 and queue:
            op, tag = queue.pop(0)
            a(op)
            if tag is not None:
                issue_log.append(tag); n -= 1
        if kb == 15:
            while queue:
                op, tag = queue.pop(0); a(op)
                if tag is not None: issue_log.append(tag)
    g1_sub(a, 1, 0, hookA, cs_from=kb0)
    a("s_waitcnt vmcnt(0)\ns_barrier")
    if FINE == 'A': fstamp(a, 17)
    nw2 = 0
    tiles_dma(a)
    a("v_and_b32 v2, 15, v1\nv_lshrrev_b32 v3, 4, v1")
    stamp(a, 12)
    g1_epi(a, 0)
    g1_next(a)
    stamp(a, 13)
    def hookB(kb):
        if FINE == 'B': fstamp(a, 1 + kb)
        if kb == 5: signal(a, 4, tv=(22, 23), local=True)
        lo = nw2 + 4 * (kb - 5)
        if kb >= 5 and lo < 44: w2_loads(a, lo, min(44, lo + 4))
    g1_sub(a, 1, 1, hookB)
    g1_epi(a, 1)
    signal(a, 5, local=True)
    stamp(a, 14)
    emit_g2(a, 1, WS['H1'], 4, 15)
    signal(a, 6, local=True)
    stamp(a, 19)
    def su6a(): member_flag_off(a, 9, "0", 8)
    wg_wait(a, su6a, 9, 1, 6, V_T)
    stamp(a, 20)
    st3_stats(a, 0)
    x3h0 = x3_dma_ops(0)
    for op in x3h0[:9]: a(op)
    x3h0 = x3h0[9:]
    g1_addr(a, 2, WS['H2'])
    a("s_waitcnt vmcnt(8)")
    st3_finish(a, 0)
    a("s_waitcnt vmcnt(0) lgkmcnt(0)\ns_barrier")
    stamp(a, 21)
    x3h1 = x3_dma_ops(1)
    def hookA2(kb):
        if kb == 0:
            member_flag_off(a, 26, "8", 8)
            a(f"buffer_load_dword v28, v26, {WSR}, 0 offen sc1")
        if kb < 4:
            a(x3h0.pop(0)); a(x3h0.pop(0))
        if kb == 6:
            L = a.newlabel("x3b")
            a(f"""s_waitcnt vmcnt(8)
            s_add_u32 s37, s{S_GEN}, 6
            v_subrev_u32 v28, s37, v28
            v_cmp_gt_u32 vcc, 16, v28
            s_cmp_eq_u64 vcc, -1
            s_cbranch_scc1 {L}""")
            wait_flags(a, 26, 1, 6, 28)
            a.label(L)
            st3_stats(a, 1)
            a(x3h1.pop(0))
        if kb == 7:
            a("s_waitcnt vmcnt(4)\ns_barrier")
        if 6 <= kb < 14:
            a(x3h1.pop(0)); a(x3h1.pop(0))
        if kb == 15:
            a("s_waitcnt vmcnt(0)")
            st3_finish(a, 1)
    g1_sub(a, 2, 0, hookA2)
    a("s_waitcnt lgkmcnt(0)\ns_barrier")
    a("v_and_b32 v2, 15, v1\nv_lshrrev_b32 v3, 4, v1")
    stamp(a, 22)
    g1_epi(a, 0)
    g1_next(a)
    def hookB2(kb):
        if kb == 10: signal(a, 7, tv=(22, 23), local=True)
    g1_sub(a, 2, 1, hookB2)
    g1_epi(a, 1)
    signal(a, 8, local=True)
    stamp(a, 23)
    emit_g2(a, 2, WS['H2'], 7, 24)
    a(f"""s_or_b32 s36, s2, s{S_W}
    s_cmp_lg_u32 s36, 0
    s_cbranch_scc1 L_nogen
    s_add_u32 s36, s{S_GEN}, 16
    v_mov_b32 v2, s36
    v_mov_b32 v3, {WS['SYNC'] + SYNC_GEN}
    s_mov_b64 exec, 1
    buffer_store_dword v2, v3, {WSR}, 0 offen
    s_mov_b64 exec, -1
    L_nogen:""")
    if common.STAMPS:
        a("s_waitcnt vmcnt(0)"); stamp(a, 28)
    if DBG:
        sel = [1, 2, 3, 4, 5, 6, 7, 9, 10, 11, 14, 15, 19, 21, 23, 28]
        a(f"""s_cmp_lg_u32 s2, {DBG - 1}
        s_cbranch_scc1 L_end
        s_cmp_lg_u32 s{S_W}, 0
        s_cbranch_scc1 L_end
        s_load_dwordx2 s[68:69], s[0:1], {ARG['dbg']}
        s_waitcnt lgkmcnt(0)
        s_mov_b64 exec, 1""")
        for i, k in enumerate(sel):
            a(f"s_sub_u32 s70, s{72+k}, s72\nv_mov_b32 v2, s70\nv_mov_b32 v3, {4*i}\nglobal_store_dword v3, v2, s[68:69]")
    else:
        stamp_flush(a, 0, 29)
    a.label("L_end")
    a("s_endpgm")
    txt = header([(None, 256, 256, LDS_TOTAL)]) + a.text() + kernel_desc(KN, 512, 102, 256)
    return txt, a
if __name__ == "__main__":
    common.STAMPS = 's' in sys.argv[2:]
    LOCAL = any(x.startswith('l') for x in sys.argv[2:])
    for x in sys.argv[2:]:
        if x.startswith('l'): LOCSET.update(['flag'] + x[1:].split('+'))
    HALF = 'h' in sys.argv[2:]
    DBG = max([int(x[1:]) + 1 for x in sys.argv[2:] if x[0] == 'd' and x[1:].isdigit()] + [0])
    FINE = 'A' if 'fa' in sys.argv[2:] else ('B' if 'fb' in sys.argv[2:] else None)
    txt, a = build()
    open(sys.argv[1], "w").write(txt)
    print("nops:", a.nnop, "bytes", len(txt))
```

```python
import sys
from asmgen import *
from common import *
import common

KN = NAME + "_kernel"
WSR = "s[28:31]"
INV = "0x80000000"
S_GEN, S_W, S_FLAG = 3, 18, 64
LOCAL = False
HALF = False
S_LOC, S_IDW = 17, 16
DYN = True
DYNSET = {"flag", "x3"}
def LS(kind="flag"): return "" if (LOCAL and kind in LOCSET) else "sc1"
LOCSET = set()
def dstore(a, text, kind="flag"):
    if not DYN or kind not in DYNSET or LOCAL:
        a(text.replace("{F}", LS(kind))); return
    L = a.newlabel("ds")
    a(f"s_cmp_eq_u32 s{S_LOC}, 1\ns_cbranch_scc1 {L}_l")
    a(text.replace("{F}", "sc1"))
    a(f"s_branch {L}_e\n{L}_l:")
    a(text.replace("{F}", ""))
    a.label(f"{L}_e")
def vr(b, n=4): return f"v[{b}:{b+n-1}]"

def rnd_bf16(a, v):
    a(f"v_cvt_pk_bf16_f32 v{v}, v{v}, v{v}\nv_and_b32 v{v}, 0xffff0000, v{v}")
def sum_q(a, v, t):
    a(f"""v_mov_b32 v{t}, v{v}
    v_permlane16_swap_b32 v{v}, v{t}
    v_add_f32 v{v}, v{v}, v{t}
    v_mov_b32 v{t}, v{v}
    v_permlane32_swap_b32 v{v}, v{t}
    v_add_f32 v{v}, v{v}, v{t}""")
def allsum64(a, v, t):
    for r in (8, 4, 2, 1):
        a(f"v_add_f32_dpp v{v}, v{v}, v{v} row_ror:{r} row_mask:0xf bank_mask:0xf")
    sum_q(a, v, t)
def ln_core(a, vsum, vsq):
    a(f"""v_mul_f32 v{vsum}, 0x3b000000, v{vsum}
    v_mul_f32 v{vsq}, 0x3b000000, v{vsq}
    v_fma_f32 v{vsq}, -v{vsum}, v{vsum}, v{vsq}
    v_max_f32 v{vsq}, 0, v{vsq}""")
    rnd_bf16(a, vsq)
    a(f"v_add_f32 v{vsq}, 0x3727c5ac, v{vsq}")
    rnd_bf16(a, vsq)
    a(f"v_sqrt_f32 v{vsq}, v{vsq}")
    rnd_bf16(a, vsq)
    rnd_bf16(a, vsum)
def signal(a, e, tv=(2, 3), barrier=True, local=False):
    L = a.newlabel("sg")
    a("s_waitcnt vmcnt(0)")
    if barrier: a("s_barrier")
    a(f"""s_cmp_lg_u32 s{S_W}, 0
    s_cbranch_scc1 {L}
    s_add_u32 s36, s{S_GEN}, {e}
    v_mov_b32 v{tv[0]}, s36
    v_mov_b32 v{tv[1]}, s{S_FLAG}
    s_mov_b64 exec, 1""")
    if local: dstore(a, f"buffer_store_dword v{tv[0]}, v{tv[1]}, {WSR}, 0 offen {{F}}")
    else: a(f"buffer_store_dword v{tv[0]}, v{tv[1]}, {WSR}, 0 offen sc1")
    a(f"""s_mov_b64 exec, -1
    {L}:""")
def wait_flags(a, voff, nld, e, T, etag=None):
    L = a.newlabel("wf")
    if etag is None:
        a(f"s_add_u32 s37, s{S_GEN}, {e}"); etag = 37
    a(f"s_mov_b32 s38, 0")
    a.label(L)
    for i in range(nld):
        if i == 0: a(f"buffer_load_dword v{T}, v{voff}, {WSR}, 0 offen sc1")
        else: a(f"s_movk_i32 s39, {4096*i}\nbuffer_load_dword v{T+i}, v{voff}, {WSR}, s39 offen sc1")
    a("s_add_u32 s38, s38, 1\ns_waitcnt vmcnt(0)")
    for k in range(nld):
        a(f"v_subrev_u32 v{T+k}, s{etag}, v{T+k}")
    for k in range(1, nld): a(f"v_max_u32 v{T}, v{T}, v{T+k}")
    a(f"""v_cmp_gt_u32 vcc, 16, v{T}
    s_cmp_gt_u32 s38, 200000
    s_cbranch_scc1 {L}_x
    s_cmp_eq_u64 vcc, -1
    s_cbranch_scc0 {L}
    {L}_x:""")
def wg_wait(a, setup, voff, nld, e, T, etag=None):
    L = a.newlabel("ww")
    a(f"s_cmp_lg_u32 s{S_W}, 0\ns_cbranch_scc1 {L}")
    setup()
    wait_flags(a, voff, nld, e, T, etag)
    a.label(L)
    a("s_barrier")

HCS = 4160; XRO = 4 * HCS; CB = XRO + 4608; EXO = 49152
PL = 65536
PW = PL + 16384
W3OFF = 6144 + 32
L_TX = 131072; L_TY = L_TX + 8192; L_ST = L_TY + 8192
LDS_TOTAL = L_ST + 2048

def emit_prologue(a):
    a(f"""s_cmp_ge_u32 s2, 256
    s_cbranch_scc1 L_end
    s_load_dwordx4 s[4:7], s[0:1], {ARG['q']}
    s_load_dwordx4 s[8:11], s[0:1], {ARG['v']}
    s_load_dwordx4 s[12:15], s[0:1], {ARG['h']}
    s_load_dwordx2 s[16:17], s[0:1], {ARG['ws']}
    s_load_dwordx4 s[52:55], s[0:1], {ARG['w1']}
    s_load_dwordx2 s[56:57], s[0:1], {ARG['w2']}
    v_lshrrev_b32 v3, 6, v0
    v_and_b32 v1, 7, v0
    v_readfirstlane_b32 s{S_W}, v3
    s_and_b32 s60, s2, 7
    s_lshr_b32 s61, s2, 3
    v_lshrrev_b32 v2, 3, v0
    s_lshl_b32 s36, s60, 7
    s_lshl_b32 s37, s61, 16
    s_add_u32 s36, s36, s37
    v_lshlrev_b32 v4, 4, v1
    v_lshlrev_b32 v5, 11, v2
    v_add3_u32 v4, v4, v5, s36
    s_lshl_b32 s{S_FLAG}, s60, 5
    s_add_u32 s{S_FLAG}, s{S_FLAG}, s61
    s_mov_b32 s19, s{S_FLAG}
    s_lshl_b32 s{S_FLAG}, s{S_FLAG}, 6
    s_add_u32 s{S_FLAG}, s{S_FLAG}, {WS['SYNC'] + SYNC_FLAGS}
    s_waitcnt lgkmcnt(0)""")
    srd(a, 20, 4, S * D * 2)
    srd(a, 24, 6, S * D * 2)
    srd(a, 32, 8, S * D * 2)
    srd(a, 40, 10, D * 8)
    srd(a, 28, 16, WS['END'])
    a(f"""s_add_u32 s36, s16, {WS['SYNC'] + SYNC_GEN}
    s_addc_u32 s37, s17, 0
    s_load_dword s{S_GEN}, s[36:37], 0""")
    stamp(a, 0)

def emit_prep_loads(a):
    a(f"""s_lshl_b32 s36, s60, 9
    v_lshlrev_b32 v8, 6, v1
    v_add_u32 v8, s36, v8
    buffer_load_dwordx4 v[44:47], v8, s[40:43], 0 offen
    buffer_load_dwordx4 v[48:51], v8, s[40:43], 0 offen offset:16
    buffer_load_dwordx4 v[52:55], v8, s[40:43], 0 offen offset:32
    buffer_load_dwordx4 v[56:59], v8, s[40:43], 0 offen offset:48
    v_subrev_u32 v5, 3072, v4
    v_subrev_u32 v6, 2048, v4
    v_subrev_u32 v7, 1024, v4
    buffer_load_dwordx4 v[16:19], v5, s[24:27], 0 offen
    buffer_load_dwordx4 v[20:23], v6, s[24:27], 0 offen
    buffer_load_dwordx4 v[24:27], v7, s[24:27], 0 offen
    buffer_load_dwordx4 v[28:31], v4, s[24:27], 0 offen
    buffer_load_dwordx4 v[32:35], v4, s[24:27], 0 offen offset:1024
    buffer_load_dwordx4 v[36:39], v4, s[32:35], 0 offen
    buffer_load_dwordx4 v[40:43], v4, s[32:35], 0 offen offset:1024
    v_and_b32 v9, 63, v0
    s_lshr_b32 s66, s{S_W}, 1
    s_and_b32 s67, s{S_W}, 1
    s_cmp_eq_u32 s66, 0
    s_cselect_b32 s52, s52, s54
    s_cselect_b32 s53, s53, s55
    s_mov_b32 s54, {D*F*2}
    s_mov_b32 s55, 0x20000
    s_mov_b32 s58, {D*F*2}
    s_mov_b32 s59, 0x20000
    s_mul_i32 s62, s60, {64*2752}
    s_mul_i32 s63, s61, 96
    s_add_u32 s62, s62, s63
    s_mul_i32 s63, s67, 192
    v_add_u32 v176, s63, v9
    s_mul_i32 s36, s66, {W3OFF}
    s_lshl_b32 s63, s63, 4
    s_add_u32 s36, s36, s63
    s_add_u32 s36, s36, {PW}""")
    for i in range(3):
        a(f"""v_add_u32 v177, {64*i}, v176
        v_mul_u32_u24 v178, 43691, v177
        v_lshrrev_b32 v178, 18, v178
        v_mul_u32_u24 v179, 6, v178
        v_sub_u32 v179, v177, v179
        v_mul_u32_u24 v178, 2752, v178
        v_lshl_add_u32 v{184+i}, v179, 4, v178
        s_add_u32 m0, s36, {1024*i}
        buffer_load_dwordx4 v{184+i}, s[52:55], s62 offen lds""")
    a(f"""v_lshrrev_b32 v178, 3, v9
    v_and_b32 v179, 7, v9
    v_lshlrev_b32 v178, 10, v178
    v_lshl_add_u32 v187, v179, 4, v178
    s_lshl_b32 s63, s{S_W}, 13
    s_lshl_b32 s36, s61, 15
    s_add_u32 s36, s36, s63
    s_lshl_b32 s63, s60, 7
    s_add_u32 s36, s36, s63
    s_lshl_b32 s63, s{S_W}, 10
    s_add_u32 s63, s63, {PW + 2*6144 + 64}
    s_mov_b32 m0, s63
    buffer_load_dwordx4 v187, s[56:59], s36 offen lds
    s_add_u32 s36, s36, {32*32*1024}
    s_add_u32 m0, s63, 4096
    buffer_load_dwordx4 v187, s[56:59], s36 offen lds""")

def emit_prep_loads2(a):
    a(f"""buffer_load_dwordx4 v[60:63], v4, s[20:23], 0 offen
    buffer_load_dwordx4 v[64:67], v4, s[20:23], 0 offen offset:1024
    v_lshlrev_b32 v10, 4, v9
    s_lshl_b32 s36, s2, 13
    s_lshl_b32 s37, s{S_W}, 11
    s_add_u32 s36, s36, s37
    v_add_u32 v10, s36, v10
    buffer_load_dwordx4 v[68:71], v10, s[20:23], 0 offen
    buffer_load_dwordx4 v[72:75], v10, s[20:23], 0 offen offset:1024
    s_lshl_b32 s65, s19, 1
    s_add_u32 s65, s65, s66
    s_lshl_b32 s37, s65, 1
    s_lshl_b32 s65, s65, 12""")
    srd(a, 44, 12, 4096, offreg=65)
    srd(a, 48, 14, D * 2)
    a(f"""v_lshlrev_b32 v10, 4, v9
    s_lshl_b32 s36, s67, 11
    v_add_u32 v10, s36, v10
    buffer_load_dwordx4 v[192:195], v10, s[44:47], 0 offen
    buffer_load_dwordx4 v[196:199], v10, s[44:47], 0 offen offset:4
    buffer_load_dwordx4 v[200:203], v10, s[44:47], 0 offen offset:8
    buffer_load_dwordx4 v[204:207], v10, s[44:47], 0 offen offset:1024
    buffer_load_dwordx4 v[208:211], v10, s[44:47], 0 offen offset:1028
    buffer_load_dwordx4 v[212:215], v10, s[44:47], 0 offen offset:1032
    v_bfe_u32 v219, v9, 3, 2
    v_and_b32 v220, 7, v9
    v_lshlrev_b32 v13, 1, v220
    v_add_u32 v13, v13, v219
    v_subrev_u32 v13, 16, v13
    v_lshlrev_b32 v13, 1, v13
    v_add_u32 v14, 2, v13
    buffer_load_ushort v216, v13, s[44:47], 0 offen
    buffer_load_ushort v217, v14, s[44:47], 0 offen
    v_mov_b32 v13, s37
    buffer_load_ushort v218, v13, s[48:51], 0 offen""")

def emit_prep_compute(a):
    a(f"""v_sub_u32 v11, 31, v2
    v_lshlrev_b32 v12, 2, v1
    v_xor_b32 v11, v11, v12
    v_lshlrev_b32 v11, 2, v11
    v_lshlrev_b32 v13, 10, v1
    v_add_u32 v11, v11, v13
    v_add_u32 v11, {PL}, v11
    v_xor_b32 v12, v2, v12
    v_lshlrev_b32 v12, 2, v12
    v_add_u32 v12, v12, v13
    v_add_u32 v12, {PL + 8192}, v12
    s_waitcnt vmcnt(12)""")
    for j in range(8):
        a(f"""v_lshlrev_b32 v{80+j}, 16, v{44+2*j}
        v_and_b32 v{88+j}, 0xffff0000, v{44+2*j}
        v_lshlrev_b32 v{96+j}, 16, v{45+2*j}
        v_and_b32 v{104+j}, 0xffff0000, v{45+2*j}""")
    a("s_waitcnt vmcnt(5)")
    stamp(a, 1)
    for i in range(5):
        for p in range(4):
            a(f"""v_lshlrev_b32 v{112+8*i+2*p}, 16, v{16+4*i+p}
            v_and_b32 v{113+8*i+2*p}, 0xffff0000, v{16+4*i+p}""")
    for row in range(2):
        for p in range(4):
            d = 152 + 8 * row + 2 * p
            a(f"v_pk_mul_f32 v[{d}:{d+1}], v[{112+8*row+2*p}:{113+8*row+2*p}], v[{104+2*p}:{105+2*p}]")
    for tt, tap in ((1, 2), (2, 1), (3, 0)):
        for row in range(2):
            for p in range(4):
                d = 152 + 8 * row + 2 * p
                k = 112 + 8 * (row + tt) + 2 * p
                s_ = 80 + 8 * tap + 2 * p
                a(f"v_pk_fma_f32 v[{d}:{d+1}], v[{k}:{k+1}], v[{s_}:{s_+1}], v[{d}:{d+1}]")
    for row in range(2):
        for p in range(4):
            a(f"""v_lshlrev_b32 v{112+8*row+2*p}, 16, v{36+4*row+p}
            v_and_b32 v{113+8*row+2*p}, 0xffff0000, v{36+4*row+p}""")
    for row in range(2):
        for p in range(4):
            d = 152 + 8 * row + 2 * p
            a(f"v_pk_mul_f32 v[{d}:{d+1}], v[{d}:{d+1}], v[{112+8*row+2*p}:{113+8*row+2*p}]")
    for j in range(8):
        a(f"v_cvt_pk_bf16_f32 v{80+j}, v{160+j}, v{152+j}")
    for j in range(8):
        a(f"ds_write_b32 v11, v{80+j} offset:{128*j}")
    a(f"""v_lshrrev_b32 v3, 6, v0
    v_xor_b32 v5, v1, v3
    v_lshlrev_b32 v5, 4, v5
    v_lshlrev_b32 v6, 7, v2
    v_add_u32 v5, v5, v6
    v_add_u32 v5, {PL}, v5
    v_xor_b32 v7, 64, v5
    s_lshl_b32 s36, s60, 18
    s_lshl_b32 s37, s61, 7
    s_sub_u32 s4, s36, s37
    s_add_u32 s4, s4, {WS['XR'] + 1984*2}
    s_add_u32 s5, s36, s37
    s_add_u32 s5, s5, {WS['QT']}
    v_lshlrev_b32 v8, 12, v2
    v_lshlrev_b32 v15, 4, v1
    v_add_u32 v8, v8, v15
    v_add_u32 v15, 0x20000, v8
    s_waitcnt lgkmcnt(0)
    s_barrier
    ds_read_b128 v[16:19], v5
    ds_read_b128 v[20:23], v7 offset:4096
    s_waitcnt lgkmcnt(1)
    buffer_store_dwordx4 v[16:19], v8, {WSR}, s4 offen {LS('xr')}
    s_waitcnt lgkmcnt(0)
    buffer_store_dwordx4 v[20:23], v15, {WSR}, s4 offen {LS('xr')}""")
    stamp(a, 2)
    emit_prep_loads2(a)
    L = a.newlabel("sg1")
    a(f"""s_waitcnt vmcnt(13)
    s_barrier
    s_cmp_lg_u32 s{S_W}, 0
    s_cbranch_scc1 {L}
    s_add_u32 s36, s{S_GEN}, 1
    v_mov_b32 v16, s36
    v_mov_b32 v17, s{S_FLAG}
    s_mov_b64 exec, 1
    buffer_store_dword v16, v17, {WSR}, 0 offen sc1
    s_mov_b64 exec, -1
    {L}:""")
    stamp(a, 3)
    a(f"""v_lshrrev_b32 v178, 4, v9
    v_bfe_u32 v179, v9, 2, 2
    v_and_b32 v180, 3, v9
    v_lshl_add_u32 v181, v178, 4, v179
    v_mul_u32_u24 v181, 96, v181
    v_and_b32 v182, 1, v180
    v_lshl_add_u32 v181, v182, 3, v181
    v_lshrrev_b32 v182, 1, v180
    v_mul_u32_u24 v182, {W3OFF}, v182
    v_add_u32 v181, v181, v182
    v_lshlrev_b32 v183, 4, v9""")
    for i in range(3):
        a(f"""s_mul_i32 s36, s{S_W}, 3
        s_add_u32 s36, s36, {i}
        s_lshr_b32 s37, s36, 1
        s_and_b32 s36, s36, 1
        s_lshl_b32 s38, s37, 4
        s_mul_i32 s39, s36, {8*96}
        s_add_u32 s38, s38, s39
        s_add_u32 s38, s38, {PW}
        v_add_u32 v182, s38, v181
        ds_read_b64_tr_b16 v[{144+4*i}:{145+4*i}], v182
        ds_read_b64_tr_b16 v[{146+4*i}:{147+4*i}], v182 offset:{4*96}
        s_mul_i32 s38, s61, 6
        s_add_u32 s38, s38, s37
        s_lshl_b32 s39, s38, 14
        s_lshl_b32 s37, s60, 11
        s_add_u32 s39, s39, s37
        s_lshl_b32 s36, s36, 10
        s_add_u32 s39, s39, s36
        s_add_u32 s39, s39, {WS['WF13']}
        s_cmp_lt_u32 s38, 172
        s_cselect_b32 s{6+i}, s39, {INV}""")
    a(f"""v_lshl_add_u32 v181, v178, 2, v179
    v_lshlrev_b32 v181, 7, v181
    v_lshl_add_u32 v181, v180, 5, v181
    s_lshl_b32 s36, s{S_W}, 3
    s_add_u32 s36, s36, {PW + 2*6144 + 64}
    v_add_u32 v181, s36, v181""")
    for i in range(2):
        a(f"""ds_read_b64_tr_b16 v[{156+4*i}:{157+4*i}], v181 offset:{4096*i}
        ds_read_b64_tr_b16 v[{158+4*i}:{159+4*i}], v181 offset:{4096*i + 2048}
        s_add_u32 s36, s61, {32*i}
        s_mul_i32 s37, s60, 43
        s_add_u32 s37, s37, s36
        s_lshl_b32 s37, s37, 12
        s_lshl_b32 s38, s{S_W}, 10
        s_add_u32 s37, s37, s38
        s_add_u32 s37, s37, {WS['WF2']}
        s_cmp_lt_u32 s36, 43
        s_cselect_b32 s{9+i}, s37, {INV}""")
    for i in range(5):
        a(f"s_waitcnt lgkmcnt({2*(4-i)})\nbuffer_store_dwordx4 {vr(144+4*i)}, v183, {WSR}, s{6+i} offen sc1")
    a("s_waitcnt vmcnt(16)")
    a("s_mov_b32 s36, 0x05040100\ns_mov_b32 s37, 0x07060302")
    for p in range(4):
        a(f"""v_perm_b32 v{88+2*p}, v{64+p}, v{60+p}, s36
        v_perm_b32 v{89+2*p}, v{64+p}, v{60+p}, s37""")
    for j in range(8):
        a(f"ds_write_b32 v12, v{88+j} offset:{128*j}")
    a("s_waitcnt vmcnt(14)")
    a("v_mov_b32 v14, 0x3f803f80")
    for row in range(2):
        su, sq = 96 + 2 * row, 97 + 2 * row
        a(f"v_mov_b32 v{su}, 0\nv_mov_b32 v{sq}, 0")
    for p in range(4):
        for row in range(2):
            su, sq = 96 + 2 * row, 97 + 2 * row; b = 68 + 4 * row
            a(f"v_dot2_f32_bf16 v{su}, v{b+p}, v14, v{su}\nv_dot2_f32_bf16 v{sq}, v{b+p}, v{b+p}, v{sq}")
    for r in (8, 4, 2, 1):
        for v in (96, 97, 98, 99):
            a(f"v_add_f32_dpp v{v}, v{v}, v{v} row_ror:{r} row_mask:0xf bank_mask:0xf")
    for k, v in enumerate((96, 97, 98, 99)): a(f"v_mov_b32 v{100+k}, v{v}")
    for k, v in enumerate((96, 97, 98, 99)): a(f"v_permlane16_swap_b32 v{v}, v{100+k}")
    for k, v in enumerate((96, 97, 98, 99)): a(f"v_add_f32 v{v}, v{v}, v{100+k}")
    for k, v in enumerate((96, 97, 98, 99)): a(f"v_mov_b32 v{100+k}, v{v}")
    for k, v in enumerate((96, 97, 98, 99)): a(f"v_permlane32_swap_b32 v{v}, v{100+k}")
    for k, v in enumerate((96, 97, 98, 99)): a(f"v_add_f32 v{v}, v{v}, v{100+k}")
    ln_core(a, 96, 97); ln_core(a, 98, 99)
    a(f"""v_rcp_f32 v102, v97
    v_rcp_f32 v103, v99
    v_mul_f32 v104, -v96, v102
    v_mul_f32 v105, -v98, v103
    s_lshl_b32 s36, s2, 5
    s_lshl_b32 s37, s{S_W}, 3
    s_add_u32 s11, s36, s37
    s_add_u32 s11, s11, {WS['RS0']}""")
    a(f"""v_mov_b32 v101, s11
    s_mov_b32 s37, {WS['C0']-WS['RS0']}
    s_mov_b64 exec, 1
    buffer_store_dwordx2 v[102:103], v101, {WSR}, 0 offen sc1
    buffer_store_dwordx2 v[104:105], v101, {WSR}, s37 offen sc1
    s_mov_b64 exec, -1
    s_waitcnt lgkmcnt(0)
    s_barrier
    ds_read_b128 v[72:75], v5 offset:8192
    ds_read_b128 v[76:79], v7 offset:{8192+4096}
    s_waitcnt lgkmcnt(1)
    buffer_store_dwordx4 v[72:75], v8, {WSR}, s5 offen sc1
    s_waitcnt lgkmcnt(0)
    buffer_store_dwordx4 v[76:79], v15, {WSR}, s5 offen sc1""")
    a(f"""s_waitcnt vmcnt(9)
    s_mul_i32 s62, s66, {CB}
    v_lshlrev_b32 v4, 4, v9
    s_lshl_b32 s36, s67, 11
    s_add_u32 s36, s36, s62
    s_add_u32 s36, s36, 32
    v_add_u32 v4, s36, v4""")
    for p in range(2):
        L0, L2, L4 = 192 + 12 * p, 196 + 12 * p, 200 + 12 * p
        for j in range(4):
            a(f"v_alignbit_b32 v{112+8*p+j}, v{L2+j}, v{L0+j}, 16")
            a(f"v_alignbit_b32 v{116+8*p+j}, v{L4+j}, v{L2+j}, 16")
        a(f"""ds_write_b128 v4, v[{L0}:{L0+3}] offset:{1024*p}
        ds_write_b128 v4, v[{112+8*p}:{115+8*p}] offset:{1024*p + HCS}
        ds_write_b128 v4, v[{L2}:{L2+3}] offset:{1024*p + 2*HCS}
        ds_write_b128 v4, v[{116+8*p}:{119+8*p}] offset:{1024*p + 3*HCS}""")
    a(f"""v_lshl_or_b32 v216, v217, 16, v216
    v_mul_u32_u24 v13, {HCS}, v219
    v_lshl_add_u32 v13, v220, 2, v13
    v_add_u32 v13, s62, v13
    ds_write_b32 v13, v216
    v_lshlrev_b32 v20, 16, v218
    v_mov_b32 v92, 0
    v_mov_b32 v93, 0
    v_mov_b32 v94, 0
    v_mov_b32 v95, 0
    v_and_b32 v16, 31, v9
    v_lshlrev_b32 v16, 4, v16
    v_add_u32 v16, s62, v16
    ds_write_b128 v16, v[92:95] offset:{XRO+4096}
    s_waitcnt lgkmcnt(0)""")
    stamp(a, 4)

def emit_conv(a, hooks):
    a("v_and_b32 v1, 63, v0")
    def su1():
        a(f"""v_and_b32 v2, 31, v1
        s_lshl_b32 s36, s60, 5
        v_add_u32 v2, s36, v2
        v_lshlrev_b32 v2, 6, v2
        v_add_u32 v2, {WS['SYNC'] + SYNC_FLAGS}, v2""")
    signal(a, 2)
    wg_wait(a, su1, 2, 1, 1, 64)
    stamp(a, 5)
    a(f"""v_lshlrev_b32 v10, 4, v1
    s_lshl_b32 s36, s67, 11
    s_add_u32 s37, s65, s36
    s_add_u32 s37, s37, {WS['XR']}
    s_add_u32 s38, s62, s36
    s_add_u32 s38, s38, {XRO}
    s_mov_b32 m0, s38
    buffer_load_dwordx4 v10, {WSR}, s37 offen sc1 lds
    s_add_u32 s38, s38, 1024
    s_add_u32 s37, s37, 1024
    s_mov_b32 m0, s38
    buffer_load_dwordx4 v10, {WSR}, s37 offen sc1 lds
    v_and_b32 v11, 15, v1
    v_lshrrev_b32 v12, 4, v1
    v_lshlrev_b32 v13, 4, v11
    v_lshl_add_u32 v13, v12, 2, v13
    s_lshl_b32 s36, s67, 10
    v_add_u32 v13, s36, v13
    v_lshlrev_b32 v14, 1, v13
    v_lshlrev_b32 v15, 2, v13
    v_lshlrev_b32 v22, 6, v1
    v_add_u32 v22, {WS['SYNC'] + SYNC_FLAGS}, v22""")
    a(f"""v_add_u32 v17, 1, v11
    v_and_b32 v18, 3, v17
    v_mul_u32_u24 v18, {HCS}, v18
    v_lshrrev_b32 v17, 2, v17
    v_lshlrev_b32 v17, 3, v17
    v_lshl_add_u32 v17, v12, 4, v17
    v_add_u32 v17, v17, v18
    s_lshl_b32 s36, s67, 8
    s_add_u32 s37, s36, s62
    v_add_u32 v17, s37, v17
    v_lshlrev_b32 v18, 5, v11
    v_lshlrev_b32 v19, 4, v12
    v_sub_u32 v18, v19, v18
    s_add_u32 s37, s37, {XRO + 480}
    v_add_u32 v18, s37, v18""")
    for r in range(32, 64): a(f"v_mov_b32 v{r}, 0")
    a(f"s_waitcnt vmcnt(0)\ns_barrier")
    stamp(a, 6)
    pre = []
    for i in range(4):
        pre.append(f"buffer_load_dwordx2 v[{192+2*i}:{193+2*i}], v14, {WSR}, s10 offen offset:{512*i} sc1")
    for i in range(4):
        pre.append(f"buffer_load_dwordx4 v[{200+4*i}:{203+4*i}], v15, {WSR}, s8 offen offset:{1024*i} sc1")
        pre.append(f"buffer_load_dwordx4 v[{216+4*i}:{219+4*i}], v15, {WSR}, s9 offen offset:{1024*i} sc1")
    def load_frags(setbase, bi):
        ops = []
        for x in range(8):
            A = setbase + 4 * x
            ops.append(f"ds_read_b64 v[{A}:{A+1}], v17 offset:{512*x + 64*bi}")
            ops.append(f"ds_read_b64 v[{A+2}:{A+3}], v17 offset:{512*x + 64*bi + 8}")
            B = setbase + 32 + 4 * x
            ops.append(f"ds_read_b128 v[{B}:{B+3}], v18 offset:{512*(7-x) + 64*bi}")
        return ops
    sets = (64, 128)
    for op in load_frags(sets[0], 0): a(op)
    extra = []
    for bi in range(4):
        cur = sets[bi & 1]
        nxt = load_frags(sets[(bi + 1) & 1], bi + 1) if bi < 3 else []
        if bi == 0:
            for i in range(4):
                if i == 0: a(f"buffer_load_dword v24, v22, {WSR}, 0 offen sc1")
                else: a(f"s_movk_i32 s39, {4096*i}\nbuffer_load_dword v{24+i}, v22, {WSR}, s39 offen sc1")
            member_flag_off(a, 23, "0", 16)
            a(f"buffer_load_dword v28, v23, {WSR}, 0 offen offset:4 sc1")
        if bi == CHK:
            a(f"""s_waitcnt vmcnt(0)
            v_cmp_eq_u32 vcc, s{S_IDW}, v28
            s_cmp_eq_u64 vcc, -1
            s_cselect_b32 s{S_LOC}, 1, 0
            s_add_u32 s37, s{S_GEN}, 2
            v_subrev_u32 v24, s37, v24
            v_subrev_u32 v25, s37, v25
            v_subrev_u32 v26, s37, v26
            v_subrev_u32 v27, s37, v27
            v_max_u32 v24, v24, v25
            v_max_u32 v26, v26, v27
            v_max_u32 v24, v24, v26
            v_cmp_gt_u32 vcc, 16, v24
            s_cmp_eq_u64 vcc, -1
            s_cbranch_scc1 L_c_ok""")
            wait_flags(a, 22, 4, 2, 24)
            a.label("L_c_ok")
            a(f"s_mov_b32 s8, {WS['RS0']}\ns_mov_b32 s9, {WS['C0']}\ns_add_u32 s10, s65, {WS['QT']}")
            extra = pre + list(hooks['conv_loop_extra'])
        a("s_waitcnt lgkmcnt(0)")
        pairs = sorted([(jt, aa) for jt in range(8) for aa in range(jt + 1)], key=lambda p: (p[1], p[0]))
        k = 0
        for idx, (jt, aa) in enumerate(pairs):
            A = cur + 4 * aa; B = cur + 32 + 4 * (jt - aa); C = 32 + 4 * jt
            a(f"v_mfma_f32_16x16x32_bf16 v[{C}:{C+3}], v[{A}:{A+3}], v[{B}:{B+3}], v[{C}:{C+3}]")
            if idx < 24 and k < len(nxt):
                a(nxt[k]); k += 1
            if extra and idx % PACE == PACE - 1 or (extra and bi == CHK and idx < 12):
                a(extra.pop(0))
    for op in extra: a(op)
    stamp(a, 7)
    a(f"""v_lshlrev_b32 v4, 4, v1
    s_lshl_b32 s36, s{S_W}, 12
    s_add_u32 s36, s36, {EXO}
    v_add_u32 v5, s36, v4
    s_xor_b32 s36, s36, 4096
    v_add_u32 v6, s36, v4
    s_cmp_eq_u32 s67, 0
    s_cbranch_scc0 L_c_x1""")
    for half in range(2):
        own, oth = (32, 48) if half == 0 else (48, 32)
        for i in range(4): a(f"ds_write_b128 v5, v[{oth+4*i}:{oth+4*i+3}] offset:{1024*i}")
        a("s_waitcnt lgkmcnt(0)\ns_barrier")
        for i in range(4): a(f"ds_read_b128 v[{80+4*i}:{83+4*i}], v6 offset:{1024*i}")
        a("s_waitcnt lgkmcnt(0)")
        for i in range(4):
            for h in range(2):
                a(f"v_pk_add_f32 v[{64+4*i+2*h}:{65+4*i+2*h}], v[{own+4*i+2*h}:{own+4*i+2*h+1}], v[{80+4*i+2*h}:{81+4*i+2*h}]")
        if half == 0:
            a("s_branch L_c_x2\nL_c_x1:")
    a.label("L_c_x2")
    a(f"""v_lshlrev_b32 v7, 5, v11
    v_lshl_add_u32 v7, v12, 3, v7
    s_lshl_b32 s36, s67, 11
    s_sub_u32 s37, s62, s36
    s_add_u32 s37, s37, {XRO + 4088 - 1536}
    v_sub_u32 v7, s37, v7""")
    for i in range(4): a(f"ds_read_b64 v[{96+2*i}:{97+2*i}], v7 offset:{512*(3-i)}")
    a(f"""s_add_u32 s38, s65, {WS['YT']}
    s_add_u32 s39, s65, {WS['X1T']}
    s_waitcnt vmcnt({hooks['n_conv_total_w']}) lgkmcnt(0)""")
    O = lambda i: 64 + 4 * i
    T = lambda i: 104 + 10 * i
    for i in range(4):
        kv = 96 + 2 * i
        a(f"""v_and_b32 v{T(i)}, 0xffff0000, v{kv+1}
        v_lshlrev_b32 v{T(i)+1}, 16, v{kv+1}
        v_and_b32 v{T(i)+2}, 0xffff0000, v{kv}
        v_lshlrev_b32 v{T(i)+3}, 16, v{kv}""")
    for i in range(4):
        a(f"""v_pk_fma_f32 v[{O(i)}:{O(i)+1}], v[{T(i)}:{T(i)+1}], v[20:21], v[{O(i)}:{O(i)+1}] op_sel_hi:[1,0,1]
        v_pk_fma_f32 v[{O(i)+2}:{O(i)+3}], v[{T(i)+2}:{T(i)+3}], v[20:21], v[{O(i)+2}:{O(i)+3}] op_sel_hi:[1,0,1]""")
    for i in range(4):
        a(f"""v_cvt_pk_bf16_f32 v{T(i)+4}, v{O(i)}, v{O(i)+1}
        v_cvt_pk_bf16_f32 v{T(i)+5}, v{O(i)+2}, v{O(i)+3}""")
    for i in range(4):
        a(f"""v_lshlrev_b32 v{T(i)}, 16, v{192+2*i}
        v_and_b32 v{T(i)+1}, 0xffff0000, v{192+2*i}
        v_lshlrev_b32 v{T(i)+2}, 16, v{193+2*i}
        v_and_b32 v{T(i)+3}, 0xffff0000, v{193+2*i}
        buffer_store_dwordx2 v[{T(i)+4}:{T(i)+5}], v14, {WSR}, s38 offen offset:{512*i} sc1""")
    for i in range(4):
        a(f"""v_lshlrev_b32 v{O(i)}, 16, v{T(i)+4}
        v_and_b32 v{O(i)+1}, 0xffff0000, v{T(i)+4}
        v_lshlrev_b32 v{O(i)+2}, 16, v{T(i)+5}
        v_and_b32 v{O(i)+3}, 0xffff0000, v{T(i)+5}
        v_pk_fma_f32 v[{T(i)+6}:{T(i)+7}], v[{T(i)}:{T(i)+1}], v[{200+4*i}:{201+4*i}], v[{216+4*i}:{217+4*i}]
        v_pk_fma_f32 v[{T(i)+8}:{T(i)+9}], v[{T(i)+2}:{T(i)+3}], v[{202+4*i}:{203+4*i}], v[{218+4*i}:{219+4*i}]""")
    for i in range(4):
        a(f"""v_pk_fma_f32 v[{T(i)+6}:{T(i)+7}], v[{T(i)+6}:{T(i)+7}], v[{O(i)}:{O(i)+1}], v[{T(i)}:{T(i)+1}]
        v_pk_fma_f32 v[{T(i)+8}:{T(i)+9}], v[{T(i)+8}:{T(i)+9}], v[{O(i)+2}:{O(i)+3}], v[{T(i)+2}:{T(i)+3}]""")
    for i in range(4):
        a(f"""v_cvt_pk_bf16_f32 v{O(i)}, v{T(i)+6}, v{T(i)+7}
        v_cvt_pk_bf16_f32 v{O(i)+1}, v{T(i)+8}, v{T(i)+9}
        buffer_store_dwordx2 v[{O(i)}:{O(i)+1}], v14, {WSR}, s39 offen offset:{512*i} sc1""")
    stamp(a, 8)

V_CS = 32; V_X3 = 44; V_ACC = 52; V_XB = 100; V_T = 116; V_HB = 116; V_W2 = 144
def w13(kb, t): b = (kb * 3 + t) * 4; return f"a[{b}:{b+3}]"
def w2(i, dt):
    idx = i * 4 + dt
    if idx < 16: b = 192 + idx * 4; return f"a[{b}:{b+3}]"
    b = V_W2 + (idx - 16) * 4; return f"v[{b}:{b+3}]"

def emit_ffn_roles_early(a):
    pass
def emit_ffn_roles(a):
    if HALF:
        a(f"""s_and_b32 s22, s60, 1
        s_lshr_b32 s20, s60, 1
        s_lshl_b32 s20, s20, 2
        s_and_b32 s36, s61, 3
        s_or_b32 s20, s20, s36
        s_lshr_b32 s23, s61, 2
        s_lshl_b32 s21, s22, 3
        s_or_b32 s21, s21, s23""")
    else:
        a(f"""s_and_b32 s20, s61, 1
        s_lshl_b32 s36, s60, 1
        s_or_b32 s20, s20, s36
        s_lshr_b32 s21, s61, 1
        s_lshr_b32 s22, s21, 3
        s_and_b32 s23, s21, 7""")
    for t in range(3):
        a(f"""s_mul_i32 s36, s{S_W}, 3
        s_add_u32 s36, s36, {t}
        s_mul_i32 s37, s21, 11
        s_add_u32 s37, s37, s36
        s_cmp_lt_u32 s36, 11
        s_cselect_b32 s38, s37, 0x7fff
        s_cmp_lt_u32 s38, 172
        s_cselect_b32 s39, 1, 0
        s_lshl_b32 s{40+t}, s37, 14
        s_add_u32 s{40+t}, s{40+t}, {WS['WF13']}
        s_lshr_b32 s{44+t}, s37, 1
        s_lshl_b32 s{44+t}, s{44+t}, 9
        s_and_b32 s37, s37, 1
        s_lshl_b32 s37, s37, 8
        s_add_u32 s{44+t}, s{44+t}, s37
        s_cmp_eq_u32 s39, 1
        s_cselect_b32 s{40+t}, s{40+t}, {INV}
        s_cselect_b32 s{44+t}, s{44+t}, {INV}""")
    a(f"""s_mul_i32 s36, s23, 43
    s_mul_i32 s37, s{S_W}, 11
    s_add_u32 s36, s36, s37
    s_lshl_b32 s48, s36, 12
    s_add_u32 s48, s48, {WS['WF2']}
    s_cmp_eq_u32 s{S_W}, 3
    s_cselect_b32 s49, {INV}, s48
    v_and_b32 v31, 63, v0
    v_lshlrev_b32 v31, 4, v31""")
def w13_loads(a):
    for kb in range(16):
        for t in range(3):
            a(f"s_add_u32 s36, s{40+t}, {kb*1024}\nbuffer_load_dwordx4 {w13(kb,t)}, v31, {WSR}, s36 offen sc1")
def w2_loads(a, lo, hi):
    for idx in range(lo, hi):
        i, dt = idx >> 2, idx & 3
        a(f"s_add_u32 s36, s{49 if i == 10 else 48}, {idx*1024}\nbuffer_load_dwordx4 {w2(i,dt)}, v31, {WSR}, s36 offen sc1")

def emit_cs(a, nkb):
    a(f"v_mov_b32 v{V_XB}, 0x3f803f80\nv_mov_b32 v{V_XB+1}, 0x3f803f80\nv_mov_b32 v{V_XB+2}, 0x3f803f80\nv_mov_b32 v{V_XB+3}, 0x3f803f80")
    for kb in range(nkb):
        for t in range(3):
            c = V_CS + 4 * t
            a(f"v_mfma_f32_16x16x32_bf16 {vr(c)}, {w13(kb,t)}, {vr(V_XB)}, {'0' if kb == 0 else vr(c)}")

def x1_dma_setup(a):
    a(f"""v_lshrrev_b32 v2, 3, v1
    v_bfe_u32 v3, v1, 1, 2
    v_bfe_u32 v6, v1, 4, 1
    v_xor_b32 v3, v3, v6
    s_and_b32 s36, s{S_W}, 2
    v_xor_b32 v3, s36, v3
    v_and_b32 v6, 1, v1
    v_lshlrev_b32 v6, 4, v6
    v_lshl_add_u32 v6, v2, 12, v6
    v_lshl_add_u32 v27, v3, 5, v6""")
def x1_dma_ops(hf):
    ops = [f"""s_lshl_b32 s56, s{S_W}, 15
    s_lshl_b32 s57, s20, 8
    s_add_u32 s56, s56, s57
    s_add_u32 s56, s56, {WS['X1T'] + hf * 128}
    s_lshl_b32 s57, s{S_W}, 10
    s_add_u32 s57, s57, {hf * 65536}"""]
    for n in range(16):
        ops.append(f"""s_add_u32 m0, s57, {n * 4096}
        buffer_load_dwordx4 v27, {WSR}, s56 offen sc1 lds
        s_add_u32 s56, s56, {32 * 4096}""")
    return ops
def tiles_dma(a):
    a(f"""v_lshrrev_b32 v2, 3, v1
    v_and_b32 v3, 7, v1
    v_lshlrev_b32 v2, 12, v2
    v_lshl_add_u32 v2, v3, 4, v2
    s_lshl_b32 s36, s23, 18
    s_lshl_b32 s37, s{S_W}, 16
    s_add_u32 s36, s36, s37
    s_lshl_b32 s37, s20, 8
    s_add_u32 s36, s36, s37
    s_lshl_b32 s37, s22, 7
    s_add_u32 s36, s36, s37
    s_lshl_b32 s38, s{S_W}, 11""")
    for arr, lb in (('X1T', L_TX), ('YT', L_TY)):
        for i in range(2):
            a(f"""s_add_u32 s37, s36, {WS[arr] + i * 8 * 4096}
            s_add_u32 m0, s38, {lb + i * 1024}
            buffer_load_dwordx4 v2, {WSR}, s37 offen sc1 lds""")
def x3_dma_ops(hf):
    ops = [f"""s_lshl_b32 s56, s20, 3
    s_add_u32 s56, s56, s{S_W}
    s_add_u32 s56, s56, {4*hf}
    s_lshl_b32 s56, s56, 14
    s_add_u32 s56, s56, {WS['X3']}
    s_lshl_b32 s57, s{S_W}, 14
    s_add_u32 s57, s57, {hf * 65536}"""]
    for n in range(16):
        ops.append(f"""s_add_u32 m0, s57, {n * 1024}
        buffer_load_dwordx4 v31, {WSR}, s56 offen sc1 lds
        s_add_u32 s56, s56, 1024""")
    return ops
def member_flag_off(a, vdst, base_member_sgpr_expr, nmemb):
    a(f"""v_and_b32 v{vdst}, {nmemb-1}, v1
    v_add_u32 v{vdst}, {base_member_sgpr_expr}, v{vdst}""")
    if HALF:
        a(f"""v_lshrrev_b32 v29, 3, v{vdst}
        v_and_b32 v{vdst}, 7, v{vdst}
        v_lshlrev_b32 v{vdst}, 2, v{vdst}
        v_lshl_add_u32 v{vdst}, v29, 5, v{vdst}
        s_lshr_b32 s36, s20, 2
        s_lshl_b32 s36, s36, 6
        s_and_b32 s37, s20, 3
        s_add_u32 s36, s36, s37""")
    else:
        a(f"""v_lshlrev_b32 v{vdst}, 1, v{vdst}
        s_lshr_b32 s36, s20, 1
        s_lshl_b32 s36, s36, 5
        s_and_b32 s37, s20, 1
        s_add_u32 s36, s36, s37""")
    a(f"""v_add_u32 v{vdst}, s36, v{vdst}
    v_lshlrev_b32 v{vdst}, 6, v{vdst}
    v_add_u32 v{vdst}, {WS['SYNC'] + SYNC_FLAGS}, v{vdst}""")

def stats_write(a, hf, vm, vsd):
    a(f"""v_rcp_f32 v24, v{vsd}
    v_mul_f32 v{V_T+1}, v{vsd}, v{vsd}
    v_sub_f32 v{V_T+2}, 0, v{vm}
    v_mul_f32 v{V_T}, 0xbfb8aa3b, v24
    v_mov_b32 v{V_T+3}, 0
    s_lshl_b32 s36, s{S_W}, 8
    s_add_u32 s36, s36, {L_ST + hf * 1024}
    v_lshl_add_u32 v25, v2, 4, s36
    ds_write_b128 v25, {vr(V_T)}""")
def st3_stats(a, hf):
    a(f"""v_and_b32 v2, 15, v1
    v_lshrrev_b32 v3, 4, v1
    s_lshl_b32 s36, s20, 3
    s_add_u32 s36, s36, s{S_W}
    s_add_u32 s36, s36, {4*hf}
    s_lshl_b32 s36, s36, 10
    s_add_u32 s36, s36, {WS['SYNC'] + SYNC_ST3}
    v_lshlrev_b32 v26, 8, v3
    v_lshl_add_u32 v26, v2, 3, v26
    buffer_load_dwordx2 v[22:23], v26, {WSR}, s36 offen sc1
    buffer_load_dwordx2 v[24:25], v26, {WSR}, s36 offen offset:128 sc1""")
def st3_finish(a, hf):
    a(f"""v_add_f32 v22, v22, v24
    v_add_f32 v23, v23, v25""")
    sum_q(a, 22, 24); sum_q(a, 23, 24)
    ln_core(a, 22, 23)
    stats_write(a, hf, 22, 23)

def g1_addr(a, layer, hbase):
    tr = layer == 1
    a(f"""v_and_b32 v2, 15, v1
    v_lshrrev_b32 v3, 4, v1""")
    for x in range(4):
        a(f"""s_add_u32 s36, s{S_W}, {x}
        s_and_b32 s36, s36, 3""")
        if tr:
            a(f"""v_bfe_u32 v4, v1, 2, 2
            v_lshl_add_u32 v5, v3, 4, v4
            v_lshlrev_b32 v5, 7, v5
            v_lshrrev_b32 v4, 1, v4
            v_and_b32 v6, 1, v3
            v_lshl_or_b32 v4, v6, 1, v4
            v_xor_b32 v4, s36, v4
            v_lshl_add_u32 v5, v4, 5, v5
            v_and_b32 v6, 3, v1
            v_lshl_add_u32 v{8+x}, v6, 3, v5""")
        else:
            a(f"""s_lshl_b32 s37, s36, 14
            v_add_u32 v{8+x}, s37, v31""")
        a(f"""s_lshl_b32 s37, s36, 8
        s_add_u32 s37, s37, {L_ST}
        v_lshl_add_u32 v{15+x}, v2, 4, s37""")
    for p in range(2):
        a(f"""v_lshrrev_b32 v4, 5, v1
        v_add_u32 v4, s{S_W}, v4
        v_add_u32 v4, {2*p}, v4
        v_and_b32 v4, 3, v4
        v_mul_u32_u24 v5, {HT}, v4
        v_bfe_u32 v6, v1, 4, 1
        v_lshl_add_u32 v5, v6, 7, v5
        v_lshl_add_u32 v{12+p}, v2, 3, v5
        v_lshlrev_b32 v4, 8, v4
        v_lshl_add_u32 v4, v2, 4, v4
        v_add_u32 v{19+p}, {L_ST}, v4""")
    a(f"""s_mul_i32 s36, s20, {8*HT}
    s_add_u32 s36, s36, {hbase}""")
    for t in range(3): a(f"s_add_u32 s{52+t}, s{44+t}, s36")

def g1_sub(a, layer, sb, hook=None, cs_from=16):
    tr = layer == 1
    def rd(n):
        kb, x = n >> 2, n & 3
        B = V_XB + 4 * x
        if tr:
            off = (kb >> 1) * 8192 + (kb & 1) * 1024
            return [f"ds_read_b64_tr_b16 v[{B}:{B+1}], v{8+x} offset:{off}", f"ds_read_b64_tr_b16 v[{B+2}:{B+3}], v{8+x} offset:{off+512}"]
        return [f"ds_read_b128 {vr(B)}, v{8+x} offset:{kb*1024}"]
    per = 2 if tr else 1
    ONE, SA, SG = V_T, V_T + 4, V_T + 8
    if tr:
        for k in range(4): a(f"v_mov_b32 v{ONE+k}, 0x3f803f80")
    for n in range(3):
        for op in rd(n): a(op)
    for n in range(64):
        kb, x = n >> 2, n & 3
        if x == 0 and hook: hook(kb)
        infl = min(2, 63 - n)
        a(f"s_waitcnt lgkmcnt({infl*per})")
        B = V_XB + 4 * x
        for t in range(3):
            c = V_ACC + (x * 3 + t) * 4
            a(f"v_mfma_f32_16x16x32_bf16 {vr(c)}, {w13(kb,t)}, {vr(B)}, {'0' if kb == 0 else vr(c)}")
            if t == 0 and n + 3 < 64:
                for op in rd(n + 3): a(op)
        if tr and x == 1 and kb >= cs_from:
            for t in range(3):
                c = V_CS + 4 * t
                a(f"v_mfma_f32_16x16x32_bf16 {vr(c)}, {w13(kb,t)}, {vr(ONE)}, {vr(c)}")
        if tr and x == 0:
            a(f"v_mfma_f32_16x16x32_bf16 {vr(SA)}, {vr(ONE)}, {vr(B)}, {'0' if kb == 0 else vr(SA)}")
            a(f"v_mfma_f32_16x16x32_bf16 {vr(SG)}, {vr(B)}, {vr(B)}, {'0' if kb == 0 else vr(SG)}")
    if tr:
        a(f"""v_and_b32 v4, 3, v2
        v_cmp_eq_u32 vcc, 1, v4
        v_cndmask_b32 v23, v{SG}, v{SG+1}, vcc
        v_cmp_eq_u32 vcc, 2, v4
        v_cndmask_b32 v23, v23, v{SG+2}, vcc
        v_cmp_eq_u32 vcc, 3, v4
        v_cndmask_b32 v23, v23, v{SG+3}, vcc
        v_mov_b32 v22, v{SA}""")
        ln_core(a, 22, 23)
        a(f"""v_lshrrev_b32 v4, 2, v2
        v_cmp_eq_u32 vcc, v4, v3
        s_and_saveexec_b64 s[38:39], vcc""")
        stats_write(a, sb, 22, 23)
        a("s_mov_b64 exec, s[38:39]\ns_waitcnt lgkmcnt(0)\ns_barrier")

def g1_epi(a, sb):
    so = sb * 1024
    for x in range(4): a(f"ds_read_b32 v{V_T+2*x}, v{15+x} offset:{8+so}")
    for p in range(2): a(f"ds_read_b64 v[{V_T+8+2*p}:{V_T+9+2*p}], v{19+p} offset:{so}")
    a("s_waitcnt lgkmcnt(0)")
    A = lambda x, t: V_ACC + (x * 3 + t) * 4
    for t in range(3):
        cs = V_CS + 4 * t
        for x in range(4):
            for h in range(2):
                r = A(x, t) + 2 * h
                a(f"v_pk_fma_f32 v[{r}:{r+1}], v[{cs+2*h}:{cs+2*h+1}], v[{V_T+2*x}:{V_T+2*x+1}], v[{r}:{r+1}] op_sel_hi:[1,0,1]")
    for t in range(3):
        for p in range(2):
            for r in range(4): a(f"v_permlane32_swap_b32 v{A(2*p,t)+r}, v{A(2*p+1,t)+r}")
    for p in range(2):
        c1 = V_T + 8 + 2 * p
        T = lambda t: V_XB + 4 * t
        for t in range(3):
            for h in range(2):
                a(f"v_pk_mul_f32 v[{T(t)+2*h}:{T(t)+2*h+1}], v[{A(2*p,t)+2*h}:{A(2*p,t)+2*h+1}], v[{c1}:{c1+1}] op_sel_hi:[1,0]")
        for t in range(3):
            for r in range(4): a(f"v_exp_f32 v{T(t)+r}, v{T(t)+r}")
        for t in range(3):
            for h in range(2):
                g, u = A(2*p, t) + 2 * h, A(2*p+1, t) + 2 * h
                a(f"v_pk_mul_f32 v[{g}:{g+1}], v[{g}:{g+1}], v[{u}:{u+1}]")
        for t in range(3):
            for h in range(2):
                a(f"v_pk_fma_f32 v[{T(t)+2*h}:{T(t)+2*h+1}], v[{T(t)+2*h}:{T(t)+2*h+1}], v[{c1}:{c1+1}], v[{c1}:{c1+1}] op_sel:[0,1,1] op_sel_hi:[1,1,1]")
        for t in range(3):
            for r in range(4): a(f"v_rcp_f32 v{T(t)+r}, v{T(t)+r}")
        for t in range(3):
            for h in range(2):
                g = A(2*p, t) + 2 * h
                a(f"v_pk_mul_f32 v[{g}:{g+1}], v[{g}:{g+1}], v[{T(t)+2*h}:{T(t)+2*h+1}]")
        for t in range(3):
            g = A(2*p, t); u = A(2*p+1, t)
            a(f"""v_cvt_pk_bf16_f32 v{u}, v{g}, v{g+1}
            v_cvt_pk_bf16_f32 v{u+1}, v{g+2}, v{g+3}""")
        for t in range(3):
            u = A(2*p+1, t)
            a(f"buffer_store_dwordx2 v[{u}:{u+1}], v{12+p}, {WSR}, s{52+t} offen {LS('h')}")
def g1_next(a):
    for x in range(4): a(f"v_add_u32 v{8+x}, 0x10000, v{8+x}")
    for p in range(2): a(f"v_add_u32 v{12+p}, {4*HT}, v{12+p}")

def emit_g2(a, layer, hbase, etagA, st):
    ACC = V_ACC
    acc = lambda dt, x: ACC + (x * 4 + dt) * 4
    for x in range(4):
        a(f"""s_add_u32 s36, s{S_W}, {x}
        s_and_b32 s36, s36, 3
        s_lshl_b32 s37, s20, 3
        s_add_u32 s36, s36, s37
        s_lshl_b32 s37, s22, 2
        s_add_u32 s36, s36, s37
        s_mul_i32 s36, s36, {HT}
        s_mul_i32 s37, s{S_W}, {11*1024}
        s_add_u32 s36, s36, s37
        s_add_u32 s{56+x}, s36, {hbase}
        s_cmp_eq_u32 s{S_W}, 3
        s_cselect_b32 s{60+x}, {INV}, s{56+x}""")
    a(f"""s_lshl_b32 s51, s{S_W}, 15
    v_lshrrev_b32 v2, 4, v1
    v_and_b32 v3, 15, v1
    v_lshlrev_b32 v8, 7, v2
    v_lshl_add_u32 v8, v3, 3, v8
    v_add_u32 v8, s51, v8
    s_add_u32 s50, s{S_GEN}, s22
    s_add_u32 s50, s50, {etagA}""")
    def su():
        member_flag_off(a, 9, "0", 16)
    wg_wait(a, su, 9, 1, None, V_HB, etag=50)
    stamp(a, st)
    AHEAD = 4
    def dma1(i, x):
        a(f"""s_add_u32 s36, s{(60 if i == 10 else 56)+x}, {i*1024}
        s_add_u32 m0, s51, {(i % 8)*4096 + x*1024}
        buffer_load_dwordx4 v31, {WSR}, s36 offen sc1 lds""")
    for i in range(AHEAD):
        for x in range(4): dma1(i, x)
    def rd(n):
        i, x = n >> 2, n & 3
        B = V_HB + 4 * x; off = (i % 8) * 4096 + x * 1024
        return [f"ds_read_b64 v[{B}:{B+1}], v8 offset:{off}", f"ds_read_b64 v[{B+2}:{B+3}], v8 offset:{off+512}"]
    issued = AHEAD * 4
    def vmwait(n): a(f"s_waitcnt vmcnt({issued - 1 - n})")
    vmwait(2)
    stamp(a, st + 1)
    for n in range(3):
        for op in rd(n): a(op)
    for n in range(44):
        i, x = n >> 2, n & 3
        infl = min(2, 43 - n)
        a(f"s_waitcnt lgkmcnt({infl*2})")
        B = V_HB + 4 * x
        for dt in range(4):
            c = acc(dt, x)
            a(f"v_mfma_f32_16x16x32_bf16 {vr(c)}, {w2(i,dt)}, {vr(B)}, {'0' if i == 0 else vr(c)}")
            if dt == 0 and n + 3 < 44:
                vmwait(n + 3)
                for op in rd(n + 3): a(op)
            if dt == 2 and issued < 44:
                dma1(issued >> 2, issued & 3); issued += 1
    stamp(a, st + 2)
    a(f"v_add_u32 v9, s51, v31")
    for x in range(1, 4):
        for dt in range(4):
            a(f"ds_write_b128 v9, {vr(acc(dt,x))} offset:{((x-1)*4+dt)*1024}")
    for x in range(1, 4):
        a(f"""s_sub_u32 s36, s{S_W}, {x}
        s_and_b32 s36, s36, 3
        s_lshl_b32 s36, s36, 15
        v_add_u32 v{9+x}, s36, v31""")
    a("s_waitcnt lgkmcnt(0)\ns_barrier")
    for x in range(1, 4):
        for dt in range(4):
            a(f"ds_read_b128 {vr(acc(dt,x))}, v{9+x} offset:{((x-1)*4+dt)*1024}")
    if layer == 1:
        a(f"""v_bfe_u32 v4, v1, 2, 2
        v_lshl_add_u32 v4, v2, 4, v4
        v_lshlrev_b32 v4, 7, v4
        v_and_b32 v5, 3, v1
        v_lshl_add_u32 v4, v5, 3, v4
        s_lshl_b32 s36, s{S_W}, 5
        s_add_u32 s36, s36, {L_TX}
        v_add_u32 v4, s36, v4""")
        P = V_HB; Yp = V_HB + 8
        for dt in range(4):
            a(f"ds_read_b64_tr_b16 v[{P+2*dt}:{P+2*dt+1}], v4 offset:{dt*512}")
        for dt in range(4):
            a(f"ds_read_b64_tr_b16 v[{Yp+2*dt}:{Yp+2*dt+1}], v4 offset:{8192+dt*512}")
        nl = 8
    else:
        P = V_X3; nl = 0
    for x in range(1, 4):
        a(f"s_waitcnt lgkmcnt({min(15, (3-x)*4 + nl)})")
        for dt in range(4):
            for h in range(2):
                c, o = acc(dt, 0) + 2 * h, acc(dt, x) + 2 * h
                a(f"v_pk_add_f32 v[{c}:{c+1}], v[{c}:{c+1}], v[{o}:{o+1}]")
    stamp(a, st + 3)
    O = ACC; X = ACC + 16; PK = ACC + 48
    a("s_waitcnt lgkmcnt(0)")
    for k in range(8):
        a(f"v_lshlrev_b32 v{X+2*k}, 16, v{P+k}\nv_and_b32 v{X+2*k+1}, 0xffff0000, v{P+k}")
    for k in range(8): a(f"v_cvt_pk_bf16_f32 v{PK+k}, v{O+2*k}, v{O+2*k+1}")
    for k in range(8):
        a(f"v_lshlrev_b32 v{O+2*k}, 16, v{PK+k}\nv_and_b32 v{O+2*k+1}, 0xffff0000, v{PK+k}")
    for k in range(8):
        a(f"v_pk_add_f32 v[{O+2*k}:{O+2*k+1}], v[{O+2*k}:{O+2*k+1}], v[{X+2*k}:{X+2*k+1}]")
    for k in range(8): a(f"v_cvt_pk_bf16_f32 v{PK+k}, v{O+2*k}, v{O+2*k+1}")
    if layer == 2:
        a(f"""s_load_dwordx2 s[32:33], s[0:1], {ARG['out']}
        s_lshl_b32 s36, s20, 7
        s_lshl_b32 s37, s22, 6
        s_add_u32 s36, s36, s37
        s_lshl_b32 s37, s{S_W}, 4
        s_add_u32 s36, s36, s37
        s_lshl_b32 s36, s36, 10
        s_lshl_b32 s37, s23, 7
        s_add_u32 s36, s36, s37
        v_lshlrev_b32 v4, 10, v3
        v_lshl_add_u32 v4, v2, 5, v4
        s_waitcnt lgkmcnt(0)
        s_mov_b32 s34, {S*D*2}
        s_mov_b32 s35, 0x20000
        buffer_store_dwordx4 {vr(PK)}, v4, s[32:35], s36 offen
        buffer_store_dwordx4 {vr(PK+4)}, v4, s[32:35], s36 offen offset:16""")
        return
    a(f"v_mov_b32 v22, 0\nv_mov_b32 v23, 0\nv_mov_b32 v21, 0x3f803f80\nv_mov_b32 v26, 0\nv_mov_b32 v27, 0")
    for k in range(0, 8, 2):
        a(f"""v_dot2_f32_bf16 v22, v{PK+k}, v21, v22
        v_dot2_f32_bf16 v23, v{PK+k}, v{PK+k}, v23
        v_dot2_f32_bf16 v26, v{PK+k+1}, v21, v26
        v_dot2_f32_bf16 v27, v{PK+k+1}, v{PK+k+1}, v27""")
    a("v_add_f32 v22, v22, v26\nv_add_f32 v23, v23, v27")
    a(f"""v_mov_b32 v24, v22
    v_mov_b32 v25, v23
    v_permlane16_swap_b32 v22, v24
    v_permlane16_swap_b32 v23, v25
    v_add_f32 v22, v22, v24
    v_add_f32 v23, v23, v25
    v_mov_b32 v24, v22
    v_mov_b32 v25, v23
    v_permlane32_swap_b32 v22, v24
    v_permlane32_swap_b32 v23, v25
    v_add_f32 v22, v22, v24
    v_add_f32 v23, v23, v25""")
    L = a.newlabel("hop")
    a(f"""s_add_u32 s50, s{S_GEN}, 12
    v_mov_b32 v24, s50
    v_mov_b32 v25, 0
    s_lshl_b32 s36, s20, 1
    s_add_u32 s36, s36, s22
    s_lshl_b32 s36, s36, 13
    s_lshl_b32 s37, s{S_W}, 8
    s_add_u32 s36, s36, s37
    s_add_u32 s36, s36, {WS['SYNC'] + SYNC_ST2}
    s_lshl_b32 s37, s23, 10
    s_add_u32 s37, s37, s36
    v_lshlrev_b32 v4, 4, v3
    s_mov_b64 exec, 0xffff""")
    dstore(a, f"buffer_store_dwordx4 v[22:25], v4, {WSR}, s37 offen {{F}}")
    a(f"""s_mov_b64 exec, -1
    v_lshl_add_u32 v5, v2, 11, v4""")
    for k in range(8):
        a(f"v_lshlrev_b32 v{X+2*k}, 16, v{PK+k}\nv_and_b32 v{X+2*k+1}, 0xffff0000, v{PK+k}")
    a(f"""s_mov_b32 s38, 0
    {L}_p:
    buffer_load_dwordx4 v[{O}:{O+3}], v5, {WSR}, s36 offen sc1
    buffer_load_dwordx4 v[{O+4}:{O+7}], v5, {WSR}, s36 offen offset:1024 sc1
    s_add_u32 s38, s38, 1
    s_waitcnt vmcnt(0)
    v_cmp_eq_u32 vcc, s50, v{O+2}
    v_cmp_eq_u32 s[40:41], s50, v{O+6}
    s_and_b64 vcc, vcc, s[40:41]
    s_cmp_gt_u32 s38, 200000
    s_cbranch_scc1 {L}_d
    s_cmp_eq_u64 vcc, -1
    s_cbranch_scc0 {L}_p
    {L}_d:
    v_add_f32 v22, v{O}, v{O+4}
    v_add_f32 v23, v{O+1}, v{O+5}
    v_mov_b32 v24, v22
    v_mov_b32 v25, v23
    v_permlane16_swap_b32 v22, v24
    v_permlane16_swap_b32 v23, v25
    v_add_f32 v22, v22, v24
    v_add_f32 v23, v23, v25
    v_mov_b32 v24, v22
    v_mov_b32 v25, v23
    v_permlane32_swap_b32 v22, v24
    v_permlane32_swap_b32 v23, v25
    v_add_f32 v22, v22, v24
    v_add_f32 v23, v23, v25""")
    ln_core(a, 22, 23)
    a(f"""v_rcp_f32 v24, v23
    v_sub_f32 v22, 0, v22
    v_mul_f32 v26, v22, v24""")
    Yf = ACC
    for k in range(8):
        a(f"v_lshlrev_b32 v{Yf+2*k}, 16, v{Yp+k}\nv_and_b32 v{Yf+2*k+1}, 0xffff0000, v{Yp+k}")
    N = ACC + 32
    for k in range(8):
        a(f"v_pk_fma_f32 v[{N+2*k}:{N+2*k+1}], v[{X+2*k}:{X+2*k+1}], v[24:25], v[26:27] op_sel_hi:[1,0,0]")
    for k in range(8):
        a(f"v_pk_fma_f32 v[{N+2*k}:{N+2*k+1}], v[{N+2*k}:{N+2*k+1}], v[{Yf+2*k}:{Yf+2*k+1}], v[{X+2*k}:{X+2*k+1}]")
    for k in range(8):
        a(f"v_cvt_pk_bf16_f32 v{V_X3+k}, v{N+2*k}, v{N+2*k+1}")
    a(f"""s_lshl_b32 s36, s20, 3
    s_lshl_b32 s37, s22, 2
    s_add_u32 s36, s36, s37
    s_add_u32 s36, s36, s{S_W}
    s_lshl_b32 s38, s36, 10
    s_lshl_b32 s36, s36, 14
    s_lshl_b32 s37, s23, 11
    s_add_u32 s36, s36, s37
    s_add_u32 s36, s36, {WS['X3']}""")
    dstore(a, f"""buffer_store_dwordx4 {vr(V_X3)}, v31, {WSR}, s36 offen {{F}}
    buffer_store_dwordx4 {vr(V_X3+4)}, v31, {WSR}, s36 offen offset:1024 {{F}}""", "x3")
    a(f"v_mov_b32 v22, 0\nv_mov_b32 v23, 0\nv_mov_b32 v26, 0\nv_mov_b32 v27, 0")
    for k in range(0, 8, 2):
        a(f"""v_dot2_f32_bf16 v22, v{V_X3+k}, v21, v22
        v_dot2_f32_bf16 v23, v{V_X3+k}, v{V_X3+k}, v23
        v_dot2_f32_bf16 v26, v{V_X3+k+1}, v21, v26
        v_dot2_f32_bf16 v27, v{V_X3+k+1}, v{V_X3+k+1}, v27""")
    a(f"""v_add_f32 v22, v22, v26
    v_add_f32 v23, v23, v27
    v_mov_b32 v24, v22
    v_mov_b32 v25, v23
    v_permlane16_swap_b32 v22, v24
    v_permlane16_swap_b32 v23, v25
    v_add_f32 v22, v22, v24
    v_add_f32 v23, v23, v25
    v_mov_b32 v24, v22
    v_mov_b32 v25, v23
    v_permlane32_swap_b32 v22, v24
    v_permlane32_swap_b32 v23, v25
    v_add_f32 v22, v22, v24
    v_add_f32 v23, v23, v25
    s_lshl_b32 s37, s23, 7
    s_add_u32 s38, s38, s37
    s_add_u32 s38, s38, {WS['SYNC'] + SYNC_ST3}
    v_lshlrev_b32 v4, 3, v3
    s_mov_b64 exec, 0xffff""")
    dstore(a, f"buffer_store_dwordx2 v[22:23], v4, {WSR}, s38 offen {{F}}")
    a("s_mov_b64 exec, -1")

NW13A = 12
NW13B = 27
PACE = 5
CHK = 1
FINE = None
DBG = 0
def build():
    a = Asm()
    global stamp
    if FINE:
        real = common.stamp
        def stamp_(a_, i):
            if i == 0: real(a_, 0)
        stamp = stamp_
        globals()['fstamp'] = real
    else:
        globals()['fstamp'] = lambda a_, i: None
    kbegin(a, KN)
    emit_prologue(a)
    emit_prep_loads(a)
    a("s_waitcnt lgkmcnt(0)")
    a(f"""s_getreg_b32 s36, hwreg(HW_REG_XCC_ID, 0, 4)
    s_add_u32 s{S_IDW}, s{S_GEN}, 13
    s_lshl_b32 s{S_IDW}, s{S_IDW}, 4
    s_or_b32 s{S_IDW}, s{S_IDW}, s36
    s_mov_b32 s{S_LOC}, 0
    s_cmp_lg_u32 s{S_W}, 0
    s_cbranch_scc1 L_noid
    v_mov_b32 v188, s{S_IDW}
    v_mov_b32 v189, s{S_FLAG}
    s_mov_b64 exec, 1
    buffer_store_dword v188, v189, {WSR}, 0 offen offset:4 sc1
    s_mov_b64 exec, -1
    L_noid:""")
    emit_prep_compute(a)
    emit_ffn_roles(a)
    w13ops = [f"s_add_u32 s36, s{40+t}, {kb*1024}\nbuffer_load_dwordx4 {w13(kb,t)}, v31, {WSR}, s36 offen sc1" for kb in range(16) for t in range(3)]
    hooks = dict(conv_loop_extra=w13ops[:NW13A], n_conv_total_w=NW13A)
    emit_conv(a, hooks)
    signal(a, 3)
    stamp(a, 9)
    a("v_and_b32 v1, 63, v0")
    for op in w13ops[NW13A:NW13B]: a(op)
    emit_cs(a, NW13A // 3)
    def su3():
        a(f"v_lshlrev_b32 v9, 6, v1\nv_add_u32 v9, {WS['SYNC'] + SYNC_FLAGS}, v9")
    wg_wait(a, su3, 9, 4, 3, V_T)
    stamp(a, 10)
    x1_dma_setup(a)
    x1h0 = x1_dma_ops(0)
    for op in x1h0[:9]: a(op)
    x1h0 = x1h0[9:]
    g1_addr(a, 1, WS['H1'])
    a(f"s_waitcnt vmcnt(0)\ns_barrier")
    stamp(a, 11)
    kb0 = NW13A // 3
    kbC = NW13B // 3
    x1h1 = x1_dma_ops(1)
    w13c = [(w13ops[kb * 3 + t], ('w', kb)) for kb in range(kbC, 16) for t in range(3)]
    queue = [(op, ('x0', 0)) for op in x1h0] + w13c + [(x1h1[0], None)] + [(op, ('x1', 0)) for op in x1h1[1:]]
    issue_log = []
    def need(tag):
        pos = max(i for i, e in enumerate(issue_log) if e == tag)
        a(f"s_waitcnt vmcnt({len(issue_log) - 1 - pos})")
    def hookA(kb):
        if FINE == 'A': fstamp(a, 1 + kb)
        if kb == 7:
            need(('x0', 0)); a("s_barrier")
        if kb >= kbC: need(('w', kb))
        n = 4 if kb < 2 else 3
        while n > 0 and queue:
            op, tag = queue.pop(0)
            a(op)
            if tag is not None:
                issue_log.append(tag); n -= 1
        if kb == 15:
            while queue:
                op, tag = queue.pop(0); a(op)
                if tag is not None: issue_log.append(tag)
    g1_sub(a, 1, 0, hookA, cs_from=kb0)
    a("s_waitcnt vmcnt(0)\ns_barrier")
    if FINE == 'A': fstamp(a, 17)
    nw2 = 0
    tiles_dma(a)
    a("v_and_b32 v2, 15, v1\nv_lshrrev_b32 v3, 4, v1")
    stamp(a, 12)
    g1_epi(a, 0)
    g1_next(a)
    stamp(a, 13)
    def hookB(kb):
        if FINE == 'B': fstamp(a, 1 + kb)
        if kb == 5: signal(a, 4, tv=(22, 23), local=True)
        lo = nw2 + 4 * (kb - 5)
        if kb >= 5 and lo < 44: w2_loads(a, lo, min(44, lo + 4))
    g1_sub(a, 1, 1, hookB)
    g1_epi(a, 1)
    signal(a, 5, local=True)
    stamp(a, 14)
    emit_g2(a, 1, WS['H1'], 4, 15)
    signal(a, 6, local=True)
    stamp(a, 19)
    def su6a(): member_flag_off(a, 9, "0", 8)
    wg_wait(a, su6a, 9, 1, 6, V_T)
    stamp(a, 20)
    st3_stats(a, 0)
    x3h0 = x3_dma_ops(0)
    for op in x3h0[:9]: a(op)
    x3h0 = x3h0[9:]
    g1_addr(a, 2, WS['H2'])
    a("s_waitcnt vmcnt(8)")
    st3_finish(a, 0)
    a("s_waitcnt vmcnt(0) lgkmcnt(0)\ns_barrier")
    stamp(a, 21)
    x3h1 = x3_dma_ops(1)
    def hookA2(kb):
        if kb == 0:
            member_flag_off(a, 26, "8", 8)
            a(f"buffer_load_dword v28, v26, {WSR}, 0 offen sc1")
        if kb < 4:
            a(x3h0.pop(0)); a(x3h0.pop(0))
        if kb == 6:
            L = a.newlabel("x3b")
            a(f"""s_waitcnt vmcnt(8)
            s_add_u32 s37, s{S_GEN}, 6
            v_subrev_u32 v28, s37, v28
            v_cmp_gt_u32 vcc, 16, v28
            s_cmp_eq_u64 vcc, -1
            s_cbranch_scc1 {L}""")
            wait_flags(a, 26, 1, 6, 28)
            a.label(L)
            st3_stats(a, 1)
            a(x3h1.pop(0))
        if kb == 7:
            a("s_waitcnt vmcnt(4)\ns_barrier")
        if 6 <= kb < 14:
            a(x3h1.pop(0)); a(x3h1.pop(0))
        if kb == 15:
            a("s_waitcnt vmcnt(0)")
            st3_finish(a, 1)
    g1_sub(a, 2, 0, hookA2)
    a("s_waitcnt lgkmcnt(0)\ns_barrier")
    a("v_and_b32 v2, 15, v1\nv_lshrrev_b32 v3, 4, v1")
    stamp(a, 22)
    g1_epi(a, 0)
    g1_next(a)
    def hookB2(kb):
        if kb == 10: signal(a, 7, tv=(22, 23), local=True)
    g1_sub(a, 2, 1, hookB2)
    g1_epi(a, 1)
    signal(a, 8, local=True)
    stamp(a, 23)
    emit_g2(a, 2, WS['H2'], 7, 24)
    a(f"""s_or_b32 s36, s2, s{S_W}
    s_cmp_lg_u32 s36, 0
    s_cbranch_scc1 L_nogen
    s_add_u32 s36, s{S_GEN}, 16
    v_mov_b32 v2, s36
    v_mov_b32 v3, {WS['SYNC'] + SYNC_GEN}
    s_mov_b64 exec, 1
    buffer_store_dword v2, v3, {WSR}, 0 offen
    s_mov_b64 exec, -1
    L_nogen:""")
    if common.STAMPS:
        a("s_waitcnt vmcnt(0)"); stamp(a, 28)
    if DBG:
        sel = [1, 2, 3, 4, 5, 6, 7, 9, 10, 11, 14, 15, 19, 21, 23, 28]
        a(f"""s_cmp_lg_u32 s2, {DBG - 1}
        s_cbranch_scc1 L_end
        s_cmp_lg_u32 s{S_W}, 0
        s_cbranch_scc1 L_end
        s_load_dwordx2 s[68:69], s[0:1], {ARG['dbg']}
        s_waitcnt lgkmcnt(0)
        s_mov_b64 exec, 1""")
        for i, k in enumerate(sel):
            a(f"s_sub_u32 s70, s{72+k}, s72\nv_mov_b32 v2, s70\nv_mov_b32 v3, {4*i}\nglobal_store_dword v3, v2, s[68:69]")
    else:
        stamp_flush(a, 0, 29)
    a.label("L_end")
    a("s_endpgm")
    txt = header([(None, 256, 256, LDS_TOTAL)]) + a.text() + kernel_desc(KN, 512, 102, 256)
    return txt, a
if __name__ == "__main__":
    common.STAMPS = 's' in sys.argv[2:]
    LOCAL = any(x.startswith('l') for x in sys.argv[2:])
    for x in sys.argv[2:]:
        if x.startswith('l'): LOCSET.update(['flag'] + x[1:].split('+'))
    HALF = 'h' in sys.argv[2:]
    DBG = max([int(x[1:]) + 1 for x in sys.argv[2:] if x[0] == 'd' and x[1:].isdigit()] + [0])
    FINE = 'A' if 'fa' in sys.argv[2:] else ('B' if 'fb' in sys.argv[2:] else None)
    txt, a = build()
    open(sys.argv[1], "w").write(txt)
    print("nops:", a.nnop, "bytes", len(txt))
```

```python
import sys
from asmgen import *
from common import *
import common

KN = NAME + "_kernel"
WSR = "s[28:31]"
INV = "0x80000000"
S_GEN, S_W, S_FLAG = 3, 18, 64
LOCAL = False
HALF = False
S_LOC, S_IDW = 17, 16
DYN = True
DYNSET = {"flag", "x3"}
def LS(kind="flag"): return "" if (LOCAL and kind in LOCSET) else "sc1"
LOCSET = set()
def dstore(a, text, kind="flag"):
    if not DYN or kind not in DYNSET or LOCAL:
        a(text.replace("{F}", LS(kind))); return
    L = a.newlabel("ds")
    a(f"s_cmp_eq_u32 s{S_LOC}, 1\ns_cbranch_scc1 {L}_l")
    a(text.replace("{F}", "sc1"))
    a(f"s_branch {L}_e\n{L}_l:")
    a(text.replace("{F}", ""))
    a.label(f"{L}_e")
def vr(b, n=4): return f"v[{b}:{b+n-1}]"

def rnd_bf16(a, v):
    a(f"v_cvt_pk_bf16_f32 v{v}, v{v}, v{v}\nv_and_b32 v{v}, 0xffff0000, v{v}")
def sum_q(a, v, t):
    a(f"""v_mov_b32 v{t}, v{v}
    v_permlane16_swap_b32 v{v}, v{t}
    v_add_f32 v{v}, v{v}, v{t}
    v_mov_b32 v{t}, v{v}
    v_permlane32_swap_b32 v{v}, v{t}
    v_add_f32 v{v}, v{v}, v{t}""")
def allsum64(a, v, t):
    for r in (8, 4, 2, 1):
        a(f"v_add_f32_dpp v{v}, v{v}, v{v} row_ror:{r} row_mask:0xf bank_mask:0xf")
    sum_q(a, v, t)
def ln_core(a, vsum, vsq):
    a(f"""v_mul_f32 v{vsum}, 0x3b000000, v{vsum}
    v_mul_f32 v{vsq}, 0x3b000000, v{vsq}
    v_fma_f32 v{vsq}, -v{vsum}, v{vsum}, v{vsq}
    v_max_f32 v{vsq}, 0, v{vsq}""")
    rnd_bf16(a, vsq)
    a(f"v_add_f32 v{vsq}, 0x3727c5ac, v{vsq}")
    rnd_bf16(a, vsq)
    a(f"v_sqrt_f32 v{vsq}, v{vsq}")
    rnd_bf16(a, vsq)
    rnd_bf16(a, vsum)
def signal(a, e, tv=(2, 3), barrier=True, local=False):
    L = a.newlabel("sg")
    a("s_waitcnt vmcnt(0)")
    if barrier: a("s_barrier")
    a(f"""s_cmp_lg_u32 s{S_W}, 0
    s_cbranch_scc1 {L}
    s_add_u32 s36, s{S_GEN}, {e}
    v_mov_b32 v{tv[0]}, s36
    v_mov_b32 v{tv[1]}, s{S_FLAG}
    s_mov_b64 exec, 1""")
    if local: dstore(a, f"buffer_store_dword v{tv[0]}, v{tv[1]}, {WSR}, 0 offen {{F}}")
    else: a(f"buffer_store_dword v{tv[0]}, v{tv[1]}, {WSR}, 0 offen sc1")
    a(f"""s_mov_b64 exec, -1
    {L}:""")
def wait_flags(a, voff, nld, e, T, etag=None):
    L = a.newlabel("wf")
    if etag is None:
        a(f"s_add_u32 s37, s{S_GEN}, {e}"); etag = 37
    a(f"s_mov_b32 s38, 0")
    a.label(L)
    for i in range(nld):
        if i == 0: a(f"buffer_load_dword v{T}, v{voff}, {WSR}, 0 offen sc1")
        else: a(f"s_movk_i32 s39, {4096*i}\nbuffer_load_dword v{T+i}, v{voff}, {WSR}, s39 offen sc1")
    a("s_add_u32 s38, s38, 1\ns_waitcnt vmcnt(0)")
    for k in range(nld):
        a(f"v_subrev_u32 v{T+k}, s{etag}, v{T+k}")
    for k in range(1, nld): a(f"v_max_u32 v{T}, v{T}, v{T+k}")
    a(f"""v_cmp_gt_u32 vcc, 16, v{T}
    s_cmp_gt_u32 s38, 200000
    s_cbranch_scc1 {L}_x
    s_cmp_eq_u64 vcc, -1
    s_cbranch_scc0 {L}
    {L}_x:""")
def wg_wait(a, setup, voff, nld, e, T, etag=None):
    L = a.newlabel("ww")
    a(f"s_cmp_lg_u32 s{S_W}, 0\ns_cbranch_scc1 {L}")
    setup()
    wait_flags(a, voff, nld, e, T, etag)
    a.label(L)
    a("s_barrier")

HCS = 4160; XRO = 4 * HCS; CB = XRO + 4608; EXO = 49152
PL = 65536
PW = PL + 16384
W3OFF = 6144 + 32
L_TX = 131072; L_TY = L_TX + 8192; L_ST = L_TY + 8192
LDS_TOTAL = L_ST + 2048

def emit_prologue(a):
    a(f"""s_cmp_ge_u32 s2, 256
    s_cbranch_scc1 L_end
    s_load_dwordx4 s[4:7], s[0:1], {ARG['q']}
    s_load_dwordx4 s[8:11], s[0:1], {ARG['v']}
    s_load_dwordx4 s[12:15], s[0:1], {ARG['h']}
    s_load_dwordx2 s[16:17], s[0:1], {ARG['ws']}
    s_load_dwordx4 s[52:55], s[0:1], {ARG['w1']}
    s_load_dwordx2 s[56:57], s[0:1], {ARG['w2']}
    v_lshrrev_b32 v3, 6, v0
    v_and_b32 v1, 7, v0
    v_readfirstlane_b32 s{S_W}, v3
    s_and_b32 s60, s2, 7
    s_lshr_b32 s61, s2, 3
    v_lshrrev_b32 v2, 3, v0
    s_lshl_b32 s36, s60, 7
    s_lshl_b32 s37, s61, 16
    s_add_u32 s36, s36, s37
    v_lshlrev_b32 v4, 4, v1
    v_lshlrev_b32 v5, 11, v2
    v_add3_u32 v4, v4, v5, s36
    s_lshl_b32 s{S_FLAG}, s60, 5
    s_add_u32 s{S_FLAG}, s{S_FLAG}, s61
    s_mov_b32 s19, s{S_FLAG}
    s_lshl_b32 s{S_FLAG}, s{S_FLAG}, 6
    s_add_u32 s{S_FLAG}, s{S_FLAG}, {WS['SYNC'] + SYNC_FLAGS}
    s_waitcnt lgkmcnt(0)""")
    srd(a, 20, 4, S * D * 2)
    srd(a, 24, 6, S * D * 2)
    srd(a, 32, 8, S * D * 2)
    srd(a, 40, 10, D * 8)
    srd(a, 28, 16, WS['END'])
    a(f"""s_add_u32 s36, s16, {WS['SYNC'] + SYNC_GEN}
    s_addc_u32 s37, s17, 0
    s_load_dword s{S_GEN}, s[36:37], 0""")
    stamp(a, 0)

def emit_prep_loads(a):
    a(f"""s_lshl_b32 s36, s60, 9
    v_lshlrev_b32 v8, 6, v1
    v_add_u32 v8, s36, v8
    buffer_load_dwordx4 v[44:47], v8, s[40:43], 0 offen
    buffer_load_dwordx4 v[48:51], v8, s[40:43], 0 offen offset:16
    buffer_load_dwordx4 v[52:55], v8, s[40:43], 0 offen offset:32
    buffer_load_dwordx4 v[56:59], v8, s[40:43], 0 offen offset:48
    v_subrev_u32 v5, 3072, v4
    v_subrev_u32 v6, 2048, v4
    v_subrev_u32 v7, 1024, v4
    buffer_load_dwordx4 v[16:19], v5, s[24:27], 0 offen
    buffer_load_dwordx4 v[20:23], v6, s[24:27], 0 offen
    buffer_load_dwordx4 v[24:27], v7, s[24:27], 0 offen
    buffer_load_dwordx4 v[28:31], v4, s[24:27], 0 offen
    buffer_load_dwordx4 v[32:35], v4, s[24:27], 0 offen offset:1024
    buffer_load_dwordx4 v[36:39], v4, s[32:35], 0 offen
    buffer_load_dwordx4 v[40:43], v4, s[32:35], 0 offen offset:1024
    v_and_b32 v9, 63, v0
    s_lshr_b32 s66, s{S_W}, 1
    s_and_b32 s67, s{S_W}, 1
    s_cmp_eq_u32 s66, 0
    s_cselect_b32 s52, s52, s54
    s_cselect_b32 s53, s53, s55
    s_mov_b32 s54, {D*F*2}
    s_mov_b32 s55, 0x20000
    s_mov_b32 s58, {D*F*2}
    s_mov_b32 s59, 0x20000
    s_mul_i32 s62, s60, {64*2752}
    s_mul_i32 s63, s61, 96
    s_add_u32 s62, s62, s63
    s_mul_i32 s63, s67, 192
    v_add_u32 v176, s63, v9
    s_mul_i32 s36, s66, {W3OFF}
    s_lshl_b32 s63, s63, 4
    s_add_u32 s36, s36, s63
    s_add_u32 s36, s36, {PW}""")
    for i in range(3):
        a(f"""v_add_u32 v177, {64*i}, v176
        v_mul_u32_u24 v178, 43691, v177
        v_lshrrev_b32 v178, 18, v178
        v_mul_u32_u24 v179, 6, v178
        v_sub_u32 v179, v177, v179
        v_mul_u32_u24 v178, 2752, v178
        v_lshl_add_u32 v{184+i}, v179, 4, v178
        s_add_u32 m0, s36, {1024*i}
        buffer_load_dwordx4 v{184+i}, s[52:55], s62 offen lds""")
    a(f"""v_lshrrev_b32 v178, 3, v9
    v_and_b32 v179, 7, v9
    v_lshlrev_b32 v178, 10, v178
    v_lshl_add_u32 v187, v179, 4, v178
    s_lshl_b32 s63, s{S_W}, 13
    s_lshl_b32 s36, s61, 15
    s_add_u32 s36, s36, s63
    s_lshl_b32 s63, s60, 7
    s_add_u32 s36, s36, s63
    s_lshl_b32 s63, s{S_W}, 10
    s_add_u32 s63, s63, {PW + 2*6144 + 64}
    s_mov_b32 m0, s63
    buffer_load_dwordx4 v187, s[56:59], s36 offen lds
    s_add_u32 s36, s36, {32*32*1024}
    s_add_u32 m0, s63, 4096
    buffer_load_dwordx4 v187, s[56:59], s36 offen lds""")

def emit_prep_loads2(a):
    a(f"""buffer_load_dwordx4 v[60:63], v4, s[20:23], 0 offen
    buffer_load_dwordx4 v[64:67], v4, s[20:23], 0 offen offset:1024
    v_lshlrev_b32 v10, 4, v9
    s_lshl_b32 s36, s2, 13
    s_lshl_b32 s37, s{S_W}, 11
    s_add_u32 s36, s36, s37
    v_add_u32 v10, s36, v10
    buffer_load_dwordx4 v[68:71], v10, s[20:23], 0 offen
    buffer_load_dwordx4 v[72:75], v10, s[20:23], 0 offen offset:1024
    s_lshl_b32 s65, s19, 1
    s_add_u32 s65, s65, s66
    s_lshl_b32 s37, s65, 1
    s_lshl_b32 s65, s65, 12""")
    srd(a, 44, 12, 4096, offreg=65)
    srd(a, 48, 14, D * 2)
    a(f"""v_lshlrev_b32 v10, 4, v9
    s_lshl_b32 s36, s67, 11
    v_add_u32 v10, s36, v10
    buffer_load_dwordx4 v[192:195], v10, s[44:47], 0 offen
    buffer_load_dwordx4 v[196:199], v10, s[44:47], 0 offen offset:4
    buffer_load_dwordx4 v[200:203], v10, s[44:47], 0 offen offset:8
    buffer_load_dwordx4 v[204:207], v10, s[44:47], 0 offen offset:1024
    buffer_load_dwordx4 v[208:211], v10, s[44:47], 0 offen offset:1028
    buffer_load_dwordx4 v[212:215], v10, s[44:47], 0 offen offset:1032
    v_bfe_u32 v219, v9, 3, 2
    v_and_b32 v220, 7, v9
    v_lshlrev_b32 v13, 1, v220
    v_add_u32 v13, v13, v219
    v_subrev_u32 v13, 16, v13
    v_lshlrev_b32 v13, 1, v13
    v_add_u32 v14, 2, v13
    buffer_load_ushort v216, v13, s[44:47], 0 offen
    buffer_load_ushort v217, v14, s[44:47], 0 offen
    v_mov_b32 v13, s37
    buffer_load_ushort v218, v13, s[48:51], 0 offen""")

def emit_prep_compute(a):
    a(f"""v_sub_u32 v11, 31, v2
    v_lshlrev_b32 v12, 2, v1
    v_xor_b32 v11, v11, v12
    v_lshlrev_b32 v11, 2, v11
    v_lshlrev_b32 v13, 10, v1
    v_add_u32 v11, v11, v13
    v_add_u32 v11, {PL}, v11
    v_xor_b32 v12, v2, v12
    v_lshlrev_b32 v12, 2, v12
    v_add_u32 v12, v12, v13
    v_add_u32 v12, {PL + 8192}, v12
    s_waitcnt vmcnt({14 if CODEPF else 12})""")
    for j in range(8):
        a(f"""v_lshlrev_b32 v{80+j}, 16, v{44+2*j}
        v_and_b32 v{88+j}, 0xffff0000, v{44+2*j}
        v_lshlrev_b32 v{96+j}, 16, v{45+2*j}
        v_and_b32 v{104+j}, 0xffff0000, v{45+2*j}""")
    a(f"s_waitcnt vmcnt({7 if CODEPF else 5})")
    stamp(a, 1)
    for i in range(5):
        for p in range(4):
            a(f"""v_lshlrev_b32 v{112+8*i+2*p}, 16, v{16+4*i+p}
            v_and_b32 v{113+8*i+2*p}, 0xffff0000, v{16+4*i+p}""")
    for row in range(2):
        for p in range(4):
            d = 152 + 8 * row + 2 * p
            a(f"v_pk_mul_f32 v[{d}:{d+1}], v[{112+8*row+2*p}:{113+8*row+2*p}], v[{104+2*p}:{105+2*p}]")
    for tt, tap in ((1, 2), (2, 1), (3, 0)):
        for row in range(2):
            for p in range(4):
                d = 152 + 8 * row + 2 * p
                k = 112 + 8 * (row + tt) + 2 * p
                s_ = 80 + 8 * tap + 2 * p
                a(f"v_pk_fma_f32 v[{d}:{d+1}], v[{k}:{k+1}], v[{s_}:{s_+1}], v[{d}:{d+1}]")
    for row in range(2):
        for p in range(4):
            a(f"""v_lshlrev_b32 v{112+8*row+2*p}, 16, v{36+4*row+p}
            v_and_b32 v{113+8*row+2*p}, 0xffff0000, v{36+4*row+p}""")
    for row in range(2):
        for p in range(4):
            d = 152 + 8 * row + 2 * p
            a(f"v_pk_mul_f32 v[{d}:{d+1}], v[{d}:{d+1}], v[{112+8*row+2*p}:{113+8*row+2*p}]")
    for j in range(8):
        a(f"v_cvt_pk_bf16_f32 v{80+j}, v{160+j}, v{152+j}")
    for j in range(8):
        a(f"ds_write_b32 v11, v{80+j} offset:{128*j}")
    a(f"""v_lshrrev_b32 v3, 6, v0
    v_xor_b32 v5, v1, v3
    v_lshlrev_b32 v5, 4, v5
    v_lshlrev_b32 v6, 7, v2
    v_add_u32 v5, v5, v6
    v_add_u32 v5, {PL}, v5
    v_xor_b32 v7, 64, v5
    s_lshl_b32 s36, s60, 18
    s_lshl_b32 s37, s61, 7
    s_sub_u32 s4, s36, s37
    s_add_u32 s4, s4, {WS['XR'] + 1984*2}
    s_add_u32 s5, s36, s37
    s_add_u32 s5, s5, {WS['QT']}
    v_lshlrev_b32 v8, 12, v2
    v_lshlrev_b32 v15, 4, v1
    v_add_u32 v8, v8, v15
    v_add_u32 v15, 0x20000, v8
    s_waitcnt lgkmcnt(0)
    s_barrier
    ds_read_b128 v[16:19], v5
    ds_read_b128 v[20:23], v7 offset:4096
    s_waitcnt lgkmcnt(1)
    buffer_store_dwordx4 v[16:19], v8, {WSR}, s4 offen {LS('xr')}
    s_waitcnt lgkmcnt(0)
    buffer_store_dwordx4 v[20:23], v15, {WSR}, s4 offen {LS('xr')}""")
    stamp(a, 2)
    emit_prep_loads2(a)
    L = a.newlabel("sg1")
    a(f"""s_waitcnt vmcnt(13)
    s_barrier
    s_cmp_lg_u32 s{S_W}, 0
    s_cbranch_scc1 {L}
    s_add_u32 s36, s{S_GEN}, 1
    v_mov_b32 v16, s36
    v_mov_b32 v17, s{S_FLAG}
    s_mov_b64 exec, 1
    buffer_store_dword v16, v17, {WSR}, 0 offen sc1
    s_mov_b64 exec, -1
    {L}:""")
    stamp(a, 3)
    a(f"""v_lshrrev_b32 v178, 4, v9
    v_bfe_u32 v179, v9, 2, 2
    v_and_b32 v180, 3, v9
    v_lshl_add_u32 v181, v178, 4, v179
    v_mul_u32_u24 v181, 96, v181
    v_and_b32 v182, 1, v180
    v_lshl_add_u32 v181, v182, 3, v181
    v_lshrrev_b32 v182, 1, v180
    v_mul_u32_u24 v182, {W3OFF}, v182
    v_add_u32 v181, v181, v182
    v_lshlrev_b32 v183, 4, v9""")
    for i in range(3):
        a(f"""s_mul_i32 s36, s{S_W}, 3
        s_add_u32 s36, s36, {i}
        s_lshr_b32 s37, s36, 1
        s_and_b32 s36, s36, 1
        s_lshl_b32 s38, s37, 4
        s_mul_i32 s39, s36, {8*96}
        s_add_u32 s38, s38, s39
        s_add_u32 s38, s38, {PW}
        v_add_u32 v182, s38, v181
        ds_read_b64_tr_b16 v[{144+4*i}:{145+4*i}], v182
        ds_read_b64_tr_b16 v[{146+4*i}:{147+4*i}], v182 offset:{4*96}
        s_mul_i32 s38, s61, 6
        s_add_u32 s38, s38, s37
        s_lshl_b32 s39, s38, 14
        s_lshl_b32 s37, s60, 11
        s_add_u32 s39, s39, s37
        s_lshl_b32 s36, s36, 10
        s_add_u32 s39, s39, s36
        s_add_u32 s39, s39, {WS['WF13']}
        s_cmp_lt_u32 s38, 172
        s_cselect_b32 s{6+i}, s39, {INV}""")
    a(f"""v_lshl_add_u32 v181, v178, 2, v179
    v_lshlrev_b32 v181, 7, v181
    v_lshl_add_u32 v181, v180, 5, v181
    s_lshl_b32 s36, s{S_W}, 3
    s_add_u32 s36, s36, {PW + 2*6144 + 64}
    v_add_u32 v181, s36, v181""")
    for i in range(2):
        a(f"""ds_read_b64_tr_b16 v[{156+4*i}:{157+4*i}], v181 offset:{4096*i}
        ds_read_b64_tr_b16 v[{158+4*i}:{159+4*i}], v181 offset:{4096*i + 2048}
        s_add_u32 s36, s61, {32*i}
        s_mul_i32 s37, s60, 43
        s_add_u32 s37, s37, s36
        s_lshl_b32 s37, s37, 12
        s_lshl_b32 s38, s{S_W}, 10
        s_add_u32 s37, s37, s38
        s_add_u32 s37, s37, {WS['WF2']}
        s_cmp_lt_u32 s36, 43
        s_cselect_b32 s{9+i}, s37, {INV}""")
    for i in range(5):
        a(f"s_waitcnt lgkmcnt({2*(4-i)})\nbuffer_store_dwordx4 {vr(144+4*i)}, v183, {WSR}, s{6+i} offen sc1")
    a("s_waitcnt vmcnt(16)")
    a("s_mov_b32 s36, 0x05040100\ns_mov_b32 s37, 0x07060302")
    for p in range(4):
        a(f"""v_perm_b32 v{88+2*p}, v{64+p}, v{60+p}, s36
        v_perm_b32 v{89+2*p}, v{64+p}, v{60+p}, s37""")
    for j in range(8):
        a(f"ds_write_b32 v12, v{88+j} offset:{128*j}")
    a("s_waitcnt vmcnt(14)")
    a("v_mov_b32 v14, 0x3f803f80")
    for row in range(2):
        su, sq = 96 + 2 * row, 97 + 2 * row
        a(f"v_mov_b32 v{su}, 0\nv_mov_b32 v{sq}, 0")
    for p in range(4):
        for row in range(2):
            su, sq = 96 + 2 * row, 97 + 2 * row; b = 68 + 4 * row
            a(f"v_dot2_f32_bf16 v{su}, v{b+p}, v14, v{su}\nv_dot2_f32_bf16 v{sq}, v{b+p}, v{b+p}, v{sq}")
    for r in (8, 4, 2, 1):
        for v in (96, 97, 98, 99):
            a(f"v_add_f32_dpp v{v}, v{v}, v{v} row_ror:{r} row_mask:0xf bank_mask:0xf")
    for k, v in enumerate((96, 97, 98, 99)): a(f"v_mov_b32 v{100+k}, v{v}")
    for k, v in enumerate((96, 97, 98, 99)): a(f"v_permlane16_swap_b32 v{v}, v{100+k}")
    for k, v in enumerate((96, 97, 98, 99)): a(f"v_add_f32 v{v}, v{v}, v{100+k}")
    for k, v in enumerate((96, 97, 98, 99)): a(f"v_mov_b32 v{100+k}, v{v}")
    for k, v in enumerate((96, 97, 98, 99)): a(f"v_permlane32_swap_b32 v{v}, v{100+k}")
    for k, v in enumerate((96, 97, 98, 99)): a(f"v_add_f32 v{v}, v{v}, v{100+k}")
    ln_core(a, 96, 97); ln_core(a, 98, 99)
    a(f"""v_rcp_f32 v102, v97
    v_rcp_f32 v103, v99
    v_mul_f32 v104, -v96, v102
    v_mul_f32 v105, -v98, v103
    s_lshl_b32 s36, s2, 5
    s_lshl_b32 s37, s{S_W}, 3
    s_add_u32 s11, s36, s37
    s_add_u32 s11, s11, {WS['RS0']}""")
    a(f"""v_mov_b32 v101, s11
    s_mov_b32 s37, {WS['C0']-WS['RS0']}
    s_mov_b64 exec, 1
    buffer_store_dwordx2 v[102:103], v101, {WSR}, 0 offen sc1
    buffer_store_dwordx2 v[104:105], v101, {WSR}, s37 offen sc1
    s_mov_b64 exec, -1
    s_waitcnt lgkmcnt(0)
    s_barrier
    ds_read_b128 v[72:75], v5 offset:8192
    ds_read_b128 v[76:79], v7 offset:{8192+4096}
    s_waitcnt lgkmcnt(1)
    buffer_store_dwordx4 v[72:75], v8, {WSR}, s5 offen sc1
    s_waitcnt lgkmcnt(0)
    buffer_store_dwordx4 v[76:79], v15, {WSR}, s5 offen sc1""")
    a(f"""s_waitcnt vmcnt(9)
    s_mul_i32 s62, s66, {CB}
    v_lshlrev_b32 v4, 4, v9
    s_lshl_b32 s36, s67, 11
    s_add_u32 s36, s36, s62
    s_add_u32 s36, s36, 32
    v_add_u32 v4, s36, v4""")
    for p in range(2):
        L0, L2, L4 = 192 + 12 * p, 196 + 12 * p, 200 + 12 * p
        for j in range(4):
            a(f"v_alignbit_b32 v{112+8*p+j}, v{L2+j}, v{L0+j}, 16")
            a(f"v_alignbit_b32 v{116+8*p+j}, v{L4+j}, v{L2+j}, 16")
        a(f"""ds_write_b128 v4, v[{L0}:{L0+3}] offset:{1024*p}
        ds_write_b128 v4, v[{112+8*p}:{115+8*p}] offset:{1024*p + HCS}
        ds_write_b128 v4, v[{L2}:{L2+3}] offset:{1024*p + 2*HCS}
        ds_write_b128 v4, v[{116+8*p}:{119+8*p}] offset:{1024*p + 3*HCS}""")
    a(f"""v_lshl_or_b32 v216, v217, 16, v216
    v_mul_u32_u24 v13, {HCS}, v219
    v_lshl_add_u32 v13, v220, 2, v13
    v_add_u32 v13, s62, v13
    ds_write_b32 v13, v216
    v_lshlrev_b32 v20, 16, v218
    v_mov_b32 v92, 0
    v_mov_b32 v93, 0
    v_mov_b32 v94, 0
    v_mov_b32 v95, 0
    v_and_b32 v16, 31, v9
    v_lshlrev_b32 v16, 4, v16
    v_add_u32 v16, s62, v16
    ds_write_b128 v16, v[92:95] offset:{XRO+4096}
    s_waitcnt lgkmcnt(0)""")
    stamp(a, 4)

def emit_conv(a, hooks):
    a("v_and_b32 v1, 63, v0")
    def su1():
        a(f"""v_and_b32 v2, 31, v1
        s_lshl_b32 s36, s60, 5
        v_add_u32 v2, s36, v2
        v_lshlrev_b32 v2, 6, v2
        v_add_u32 v2, {WS['SYNC'] + SYNC_FLAGS}, v2""")
    signal(a, 2)
    wg_wait(a, su1, 2, 1, 1, 64)
    stamp(a, 5)
    a(f"""v_lshlrev_b32 v10, 4, v1
    s_lshl_b32 s36, s67, 11
    s_add_u32 s37, s65, s36
    s_add_u32 s37, s37, {WS['XR']}
    s_add_u32 s38, s62, s36
    s_add_u32 s38, s38, {XRO}
    s_mov_b32 m0, s38
    buffer_load_dwordx4 v10, {WSR}, s37 offen sc1 lds
    s_add_u32 s38, s38, 1024
    s_add_u32 s37, s37, 1024
    s_mov_b32 m0, s38
    buffer_load_dwordx4 v10, {WSR}, s37 offen sc1 lds
    v_and_b32 v11, 15, v1
    v_lshrrev_b32 v12, 4, v1
    v_lshlrev_b32 v13, 4, v11
    v_lshl_add_u32 v13, v12, 2, v13
    s_lshl_b32 s36, s67, 10
    v_add_u32 v13, s36, v13
    v_lshlrev_b32 v14, 1, v13
    v_lshlrev_b32 v15, 2, v13
    v_lshlrev_b32 v22, 6, v1
    v_add_u32 v22, {WS['SYNC'] + SYNC_FLAGS}, v22""")
    a(f"""v_add_u32 v17, 1, v11
    v_and_b32 v18, 3, v17
    v_mul_u32_u24 v18, {HCS}, v18
    v_lshrrev_b32 v17, 2, v17
    v_lshlrev_b32 v17, 3, v17
    v_lshl_add_u32 v17, v12, 4, v17
    v_add_u32 v17, v17, v18
    s_lshl_b32 s36, s67, 8
    s_add_u32 s37, s36, s62
    v_add_u32 v17, s37, v17
    v_lshlrev_b32 v18, 5, v11
    v_lshlrev_b32 v19, 4, v12
    v_sub_u32 v18, v19, v18
    s_add_u32 s37, s37, {XRO + 480}
    v_add_u32 v18, s37, v18""")
    for r in range(32, 64): a(f"v_mov_b32 v{r}, 0")
    a(f"s_waitcnt vmcnt(0)\ns_barrier")
    stamp(a, 6)
    pre = []
    for i in range(4):
        pre.append(f"buffer_load_dwordx2 v[{192+2*i}:{193+2*i}], v14, {WSR}, s10 offen offset:{512*i} sc1")
    for i in range(4):
        pre.append(f"buffer_load_dwordx4 v[{200+4*i}:{203+4*i}], v15, {WSR}, s8 offen offset:{1024*i} sc1")
        pre.append(f"buffer_load_dwordx4 v[{216+4*i}:{219+4*i}], v15, {WSR}, s9 offen offset:{1024*i} sc1")
    def load_frags(setbase, bi):
        ops = []
        for x in range(8):
            A = setbase + 4 * x
            ops.append(f"ds_read_b64 v[{A}:{A+1}], v17 offset:{512*x + 64*bi}")
            ops.append(f"ds_read_b64 v[{A+2}:{A+3}], v17 offset:{512*x + 64*bi + 8}")
            B = setbase + 32 + 4 * x
            ops.append(f"ds_read_b128 v[{B}:{B+3}], v18 offset:{512*(7-x) + 64*bi}")
        return ops
    sets = (64, 128)
    for op in load_frags(sets[0], 0): a(op)
    extra = []
    for bi in range(4):
        cur = sets[bi & 1]
        nxt = load_frags(sets[(bi + 1) & 1], bi + 1) if bi < 3 else []
        if bi == 0:
            for i in range(4):
                if i == 0: a(f"buffer_load_dword v24, v22, {WSR}, 0 offen sc1")
                else: a(f"s_movk_i32 s39, {4096*i}\nbuffer_load_dword v{24+i}, v22, {WSR}, s39 offen sc1")
            member_flag_off(a, 23, "0", 16)
            a(f"buffer_load_dword v28, v23, {WSR}, 0 offen offset:4 sc1")
        if bi == CHK:
            a(f"""s_waitcnt vmcnt(0)
            v_cmp_eq_u32 vcc, s{S_IDW}, v28
            s_cmp_eq_u64 vcc, -1
            s_cselect_b32 s{S_LOC}, 1, 0
            s_add_u32 s37, s{S_GEN}, 2
            v_subrev_u32 v24, s37, v24
            v_subrev_u32 v25, s37, v25
            v_subrev_u32 v26, s37, v26
            v_subrev_u32 v27, s37, v27
            v_max_u32 v24, v24, v25
            v_max_u32 v26, v26, v27
            v_max_u32 v24, v24, v26
            v_cmp_gt_u32 vcc, 16, v24
            s_cmp_eq_u64 vcc, -1
            s_cbranch_scc1 L_c_ok""")
            wait_flags(a, 22, 4, 2, 24)
            a.label("L_c_ok")
            a(f"s_mov_b32 s8, {WS['RS0']}\ns_mov_b32 s9, {WS['C0']}\ns_add_u32 s10, s65, {WS['QT']}")
            extra = pre + list(hooks['conv_loop_extra'])
        a("s_waitcnt lgkmcnt(0)")
        pairs = sorted([(jt, aa) for jt in range(8) for aa in range(jt + 1)], key=lambda p: (p[1], p[0]))
        k = 0
        for idx, (jt, aa) in enumerate(pairs):
            A = cur + 4 * aa; B = cur + 32 + 4 * (jt - aa); C = 32 + 4 * jt
            a(f"v_mfma_f32_16x16x32_bf16 v[{C}:{C+3}], v[{A}:{A+3}], v[{B}:{B+3}], v[{C}:{C+3}]")
            if idx < 24 and k < len(nxt):
                a(nxt[k]); k += 1
            if extra and idx % PACE == PACE - 1 or (extra and bi == CHK and idx < 12):
                a(extra.pop(0))
    for op in extra: a(op)
    stamp(a, 7)
    a(f"""v_lshlrev_b32 v4, 4, v1
    s_lshl_b32 s36, s{S_W}, 12
    s_add_u32 s36, s36, {EXO}
    v_add_u32 v5, s36, v4
    s_xor_b32 s36, s36, 4096
    v_add_u32 v6, s36, v4
    s_cmp_eq_u32 s67, 0
    s_cbranch_scc0 L_c_x1""")
    for half in range(2):
        own, oth = (32, 48) if half == 0 else (48, 32)
        for i in range(4): a(f"ds_write_b128 v5, v[{oth+4*i}:{oth+4*i+3}] offset:{1024*i}")
        a("s_waitcnt lgkmcnt(0)\ns_barrier")
        for i in range(4): a(f"ds_read_b128 v[{80+4*i}:{83+4*i}], v6 offset:{1024*i}")
        a("s_waitcnt lgkmcnt(0)")
        for i in range(4):
            for h in range(2):
                a(f"v_pk_add_f32 v[{64+4*i+2*h}:{65+4*i+2*h}], v[{own+4*i+2*h}:{own+4*i+2*h+1}], v[{80+4*i+2*h}:{81+4*i+2*h}]")
        if half == 0:
            a("s_branch L_c_x2\nL_c_x1:")
    a.label("L_c_x2")
    a(f"""v_lshlrev_b32 v7, 5, v11
    v_lshl_add_u32 v7, v12, 3, v7
    s_lshl_b32 s36, s67, 11
    s_sub_u32 s37, s62, s36
    s_add_u32 s37, s37, {XRO + 4088 - 1536}
    v_sub_u32 v7, s37, v7""")
    for i in range(4): a(f"ds_read_b64 v[{96+2*i}:{97+2*i}], v7 offset:{512*(3-i)}")
    a(f"""s_add_u32 s38, s65, {WS['YT']}
    s_add_u32 s39, s65, {WS['X1T']}
    s_waitcnt vmcnt({hooks['n_conv_total_w']}) lgkmcnt(0)""")
    O = lambda i: 64 + 4 * i
    T = lambda i: 104 + 10 * i
    for i in range(4):
        kv = 96 + 2 * i
        a(f"""v_and_b32 v{T(i)}, 0xffff0000, v{kv+1}
        v_lshlrev_b32 v{T(i)+1}, 16, v{kv+1}
        v_and_b32 v{T(i)+2}, 0xffff0000, v{kv}
        v_lshlrev_b32 v{T(i)+3}, 16, v{kv}""")
    for i in range(4):
        a(f"""v_pk_fma_f32 v[{O(i)}:{O(i)+1}], v[{T(i)}:{T(i)+1}], v[20:21], v[{O(i)}:{O(i)+1}] op_sel_hi:[1,0,1]
        v_pk_fma_f32 v[{O(i)+2}:{O(i)+3}], v[{T(i)+2}:{T(i)+3}], v[20:21], v[{O(i)+2}:{O(i)+3}] op_sel_hi:[1,0,1]""")
    for i in range(4):
        a(f"""v_cvt_pk_bf16_f32 v{T(i)+4}, v{O(i)}, v{O(i)+1}
        v_cvt_pk_bf16_f32 v{T(i)+5}, v{O(i)+2}, v{O(i)+3}""")
    for i in range(4):
        a(f"""v_lshlrev_b32 v{T(i)}, 16, v{192+2*i}
        v_and_b32 v{T(i)+1}, 0xffff0000, v{192+2*i}
        v_lshlrev_b32 v{T(i)+2}, 16, v{193+2*i}
        v_and_b32 v{T(i)+3}, 0xffff0000, v{193+2*i}
        buffer_store_dwordx2 v[{T(i)+4}:{T(i)+5}], v14, {WSR}, s38 offen offset:{512*i} sc1""")
    for i in range(4):
        a(f"""v_lshlrev_b32 v{O(i)}, 16, v{T(i)+4}
        v_and_b32 v{O(i)+1}, 0xffff0000, v{T(i)+4}
        v_lshlrev_b32 v{O(i)+2}, 16, v{T(i)+5}
        v_and_b32 v{O(i)+3}, 0xffff0000, v{T(i)+5}
        v_pk_fma_f32 v[{T(i)+6}:{T(i)+7}], v[{T(i)}:{T(i)+1}], v[{200+4*i}:{201+4*i}], v[{216+4*i}:{217+4*i}]
        v_pk_fma_f32 v[{T(i)+8}:{T(i)+9}], v[{T(i)+2}:{T(i)+3}], v[{202+4*i}:{203+4*i}], v[{218+4*i}:{219+4*i}]""")
    for i in range(4):
        a(f"""v_pk_fma_f32 v[{T(i)+6}:{T(i)+7}], v[{T(i)+6}:{T(i)+7}], v[{O(i)}:{O(i)+1}], v[{T(i)}:{T(i)+1}]
        v_pk_fma_f32 v[{T(i)+8}:{T(i)+9}], v[{T(i)+8}:{T(i)+9}], v[{O(i)+2}:{O(i)+3}], v[{T(i)+2}:{T(i)+3}]""")
    for i in range(4):
        a(f"""v_cvt_pk_bf16_f32 v{O(i)}, v{T(i)+6}, v{T(i)+7}
        v_cvt_pk_bf16_f32 v{O(i)+1}, v{T(i)+8}, v{T(i)+9}
        buffer_store_dwordx2 v[{O(i)}:{O(i)+1}], v14, {WSR}, s39 offen offset:{512*i} sc1""")
    stamp(a, 8)

V_CS = 32; V_X3 = 44; V_ACC = 52; V_XB = 100; V_T = 116; V_HB = 116; V_W2 = 144
def w13(kb, t): b = (kb * 3 + t) * 4; return f"a[{b}:{b+3}]"
def w2(i, dt):
    idx = i * 4 + dt
    if idx < 16: b = 192 + idx * 4; return f"a[{b}:{b+3}]"
    b = V_W2 + (idx - 16) * 4; return f"v[{b}:{b+3}]"

def emit_ffn_roles_early(a):
    pass
def emit_ffn_roles(a):
    if HALF:
        a(f"""s_and_b32 s22, s60, 1
        s_lshr_b32 s20, s60, 1
        s_lshl_b32 s20, s20, 2
        s_and_b32 s36, s61, 3
        s_or_b32 s20, s20, s36
        s_lshr_b32 s23, s61, 2
        s_lshl_b32 s21, s22, 3
        s_or_b32 s21, s21, s23""")
    else:
        a(f"""s_and_b32 s20, s61, 1
        s_lshl_b32 s36, s60, 1
        s_or_b32 s20, s20, s36
        s_lshr_b32 s21, s61, 1
        s_lshr_b32 s22, s21, 3
        s_and_b32 s23, s21, 7""")
    for t in range(3):
        a(f"""s_mul_i32 s36, s{S_W}, 3
        s_add_u32 s36, s36, {t}
        s_mul_i32 s37, s21, 11
        s_add_u32 s37, s37, s36
        s_cmp_lt_u32 s36, 11
        s_cselect_b32 s38, s37, 0x7fff
        s_cmp_lt_u32 s38, 172
        s_cselect_b32 s39, 1, 0
        s_lshl_b32 s{40+t}, s37, 14
        s_add_u32 s{40+t}, s{40+t}, {WS['WF13']}
        s_lshr_b32 s{44+t}, s37, 1
        s_lshl_b32 s{44+t}, s{44+t}, 9
        s_and_b32 s37, s37, 1
        s_lshl_b32 s37, s37, 8
        s_add_u32 s{44+t}, s{44+t}, s37
        s_cmp_eq_u32 s39, 1
        s_cselect_b32 s{40+t}, s{40+t}, {INV}
        s_cselect_b32 s{44+t}, s{44+t}, {INV}""")
    a(f"""s_mul_i32 s36, s23, 43
    s_mul_i32 s37, s{S_W}, 11
    s_add_u32 s36, s36, s37
    s_lshl_b32 s48, s36, 12
    s_add_u32 s48, s48, {WS['WF2']}
    s_cmp_eq_u32 s{S_W}, 3
    s_cselect_b32 s49, {INV}, s48
    v_and_b32 v31, 63, v0
    v_lshlrev_b32 v31, 4, v31""")
def w13_loads(a):
    for kb in range(16):
        for t in range(3):
            a(f"s_add_u32 s36, s{40+t}, {kb*1024}\nbuffer_load_dwordx4 {w13(kb,t)}, v31, {WSR}, s36 offen sc1")
def w2_loads(a, lo, hi):
    for idx in range(lo, hi):
        i, dt = idx >> 2, idx & 3
        a(f"s_add_u32 s36, s{49 if i == 10 else 48}, {idx*1024}\nbuffer_load_dwordx4 {w2(i,dt)}, v31, {WSR}, s36 offen sc1")

def emit_cs(a, nkb):
    a(f"v_mov_b32 v{V_XB}, 0x3f803f80\nv_mov_b32 v{V_XB+1}, 0x3f803f80\nv_mov_b32 v{V_XB+2}, 0x3f803f80\nv_mov_b32 v{V_XB+3}, 0x3f803f80")
    for kb in range(nkb):
        for t in range(3):
            c = V_CS + 4 * t
            a(f"v_mfma_f32_16x16x32_bf16 {vr(c)}, {w13(kb,t)}, {vr(V_XB)}, {'0' if kb == 0 else vr(c)}")

def x1_dma_setup(a):
    a(f"""v_lshrrev_b32 v2, 3, v1
    v_bfe_u32 v3, v1, 1, 2
    v_bfe_u32 v6, v1, 4, 1
    v_xor_b32 v3, v3, v6
    s_and_b32 s36, s{S_W}, 2
    v_xor_b32 v3, s36, v3
    v_and_b32 v6, 1, v1
    v_lshlrev_b32 v6, 4, v6
    v_lshl_add_u32 v6, v2, 12, v6
    v_lshl_add_u32 v27, v3, 5, v6""")
def x1_dma_ops(hf):
    ops = [f"""s_lshl_b32 s56, s{S_W}, 15
    s_lshl_b32 s57, s20, 8
    s_add_u32 s56, s56, s57
    s_add_u32 s56, s56, {WS['X1T'] + hf * 128}
    s_lshl_b32 s57, s{S_W}, 10
    s_add_u32 s57, s57, {hf * 65536}"""]
    for n in range(16):
        ops.append(f"""s_add_u32 m0, s57, {n * 4096}
        buffer_load_dwordx4 v27, {WSR}, s56 offen sc1 lds
        s_add_u32 s56, s56, {32 * 4096}""")
    return ops
def tiles_dma(a):
    a(f"""v_lshrrev_b32 v2, 3, v1
    v_and_b32 v3, 7, v1
    v_lshlrev_b32 v2, 12, v2
    v_lshl_add_u32 v2, v3, 4, v2
    s_lshl_b32 s36, s23, 18
    s_lshl_b32 s37, s{S_W}, 16
    s_add_u32 s36, s36, s37
    s_lshl_b32 s37, s20, 8
    s_add_u32 s36, s36, s37
    s_lshl_b32 s37, s22, 7
    s_add_u32 s36, s36, s37
    s_lshl_b32 s38, s{S_W}, 11""")
    for arr, lb in (('X1T', L_TX), ('YT', L_TY)):
        for i in range(2):
            a(f"""s_add_u32 s37, s36, {WS[arr] + i * 8 * 4096}
            s_add_u32 m0, s38, {lb + i * 1024}
            buffer_load_dwordx4 v2, {WSR}, s37 offen sc1 lds""")
def x3_dma_ops(hf):
    ops = [f"""s_lshl_b32 s56, s20, 3
    s_add_u32 s56, s56, s{S_W}
    s_add_u32 s56, s56, {4*hf}
    s_lshl_b32 s56, s56, 14
    s_add_u32 s56, s56, {WS['X3']}
    s_lshl_b32 s57, s{S_W}, 14
    s_add_u32 s57, s57, {hf * 65536}"""]
    for n in range(16):
        ops.append(f"""s_add_u32 m0, s57, {n * 1024}
        buffer_load_dwordx4 v31, {WSR}, s56 offen sc1 lds
        s_add_u32 s56, s56, 1024""")
    return ops
def member_flag_off(a, vdst, base_member_sgpr_expr, nmemb):
    a(f"""v_and_b32 v{vdst}, {nmemb-1}, v1
    v_add_u32 v{vdst}, {base_member_sgpr_expr}, v{vdst}""")
    if HALF:
        a(f"""v_lshrrev_b32 v29, 3, v{vdst}
        v_and_b32 v{vdst}, 7, v{vdst}
        v_lshlrev_b32 v{vdst}, 2, v{vdst}
        v_lshl_add_u32 v{vdst}, v29, 5, v{vdst}
        s_lshr_b32 s36, s20, 2
        s_lshl_b32 s36, s36, 6
        s_and_b32 s37, s20, 3
        s_add_u32 s36, s36, s37""")
    else:
        a(f"""v_lshlrev_b32 v{vdst}, 1, v{vdst}
        s_lshr_b32 s36, s20, 1
        s_lshl_b32 s36, s36, 5
        s_and_b32 s37, s20, 1
        s_add_u32 s36, s36, s37""")
    a(f"""v_add_u32 v{vdst}, s36, v{vdst}
    v_lshlrev_b32 v{vdst}, 6, v{vdst}
    v_add_u32 v{vdst}, {WS['SYNC'] + SYNC_FLAGS}, v{vdst}""")

def stats_write(a, hf, vm, vsd):
    a(f"""v_rcp_f32 v24, v{vsd}
    v_mul_f32 v{V_T+1}, v{vsd}, v{vsd}
    v_sub_f32 v{V_T+2}, 0, v{vm}
    v_mul_f32 v{V_T}, 0xbfb8aa3b, v24
    v_mov_b32 v{V_T+3}, 0
    s_lshl_b32 s36, s{S_W}, 8
    s_add_u32 s36, s36, {L_ST + hf * 1024}
    v_lshl_add_u32 v25, v2, 4, s36
    ds_write_b128 v25, {vr(V_T)}""")
def st3_stats(a, hf):
    a(f"""v_and_b32 v2, 15, v1
    v_lshrrev_b32 v3, 4, v1
    s_lshl_b32 s36, s20, 3
    s_add_u32 s36, s36, s{S_W}
    s_add_u32 s36, s36, {4*hf}
    s_lshl_b32 s36, s36, 10
    s_add_u32 s36, s36, {WS['SYNC'] + SYNC_ST3}
    v_lshlrev_b32 v26, 8, v3
    v_lshl_add_u32 v26, v2, 3, v26
    buffer_load_dwordx2 v[22:23], v26, {WSR}, s36 offen sc1
    buffer_load_dwordx2 v[24:25], v26, {WSR}, s36 offen offset:128 sc1""")
def st3_finish(a, hf):
    a(f"""v_add_f32 v22, v22, v24
    v_add_f32 v23, v23, v25""")
    sum_q(a, 22, 24); sum_q(a, 23, 24)
    ln_core(a, 22, 23)
    stats_write(a, hf, 22, 23)

def g1_addr(a, layer, hbase):
    tr = layer == 1
    a(f"""v_and_b32 v2, 15, v1
    v_lshrrev_b32 v3, 4, v1""")
    for x in range(4):
        a(f"""s_add_u32 s36, s{S_W}, {x}
        s_and_b32 s36, s36, 3""")
        if tr:
            a(f"""v_bfe_u32 v4, v1, 2, 2
            v_lshl_add_u32 v5, v3, 4, v4
            v_lshlrev_b32 v5, 7, v5
            v_lshrrev_b32 v4, 1, v4
            v_and_b32 v6, 1, v3
            v_lshl_or_b32 v4, v6, 1, v4
            v_xor_b32 v4, s36, v4
            v_lshl_add_u32 v5, v4, 5, v5
            v_and_b32 v6, 3, v1
            v_lshl_add_u32 v{8+x}, v6, 3, v5""")
        else:
            a(f"""s_lshl_b32 s37, s36, 14
            v_add_u32 v{8+x}, s37, v31""")
        a(f"""s_lshl_b32 s37, s36, 8
        s_add_u32 s37, s37, {L_ST}
        v_lshl_add_u32 v{15+x}, v2, 4, s37""")
    for p in range(2):
        a(f"""v_lshrrev_b32 v4, 5, v1
        v_add_u32 v4, s{S_W}, v4
        v_add_u32 v4, {2*p}, v4
        v_and_b32 v4, 3, v4
        v_mul_u32_u24 v5, {HT}, v4
        v_bfe_u32 v6, v1, 4, 1
        v_lshl_add_u32 v5, v6, 7, v5
        v_lshl_add_u32 v{12+p}, v2, 3, v5
        v_lshlrev_b32 v4, 8, v4
        v_lshl_add_u32 v4, v2, 4, v4
        v_add_u32 v{19+p}, {L_ST}, v4""")
    a(f"""s_mul_i32 s36, s20, {8*HT}
    s_add_u32 s36, s36, {hbase}""")
    for t in range(3): a(f"s_add_u32 s{52+t}, s{44+t}, s36")

def g1_sub(a, layer, sb, hook=None, cs_from=16):
    tr = layer == 1
    def rd(n):
        kb, x = n >> 2, n & 3
        B = V_XB + 4 * x
        if tr:
            off = (kb >> 1) * 8192 + (kb & 1) * 1024
            return [f"ds_read_b64_tr_b16 v[{B}:{B+1}], v{8+x} offset:{off}", f"ds_read_b64_tr_b16 v[{B+2}:{B+3}], v{8+x} offset:{off+512}"]
        return [f"ds_read_b128 {vr(B)}, v{8+x} offset:{kb*1024}"]
    per = 2 if tr else 1
    ONE, SA, SG = V_T, V_T + 4, V_T + 8
    if tr:
        for k in range(4): a(f"v_mov_b32 v{ONE+k}, 0x3f803f80")
    for n in range(3):
        for op in rd(n): a(op)
    for n in range(64):
        kb, x = n >> 2, n & 3
        if x == 0 and hook: hook(kb)
        infl = min(2, 63 - n)
        a(f"s_waitcnt lgkmcnt({infl*per})")
        B = V_XB + 4 * x
        for t in range(3):
            c = V_ACC + (x * 3 + t) * 4
            a(f"v_mfma_f32_16x16x32_bf16 {vr(c)}, {w13(kb,t)}, {vr(B)}, {'0' if kb == 0 else vr(c)}")
            if t == 0 and n + 3 < 64:
                for op in rd(n + 3): a(op)
        if tr and x == 1 and kb >= cs_from:
            for t in range(3):
                c = V_CS + 4 * t
                a(f"v_mfma_f32_16x16x32_bf16 {vr(c)}, {w13(kb,t)}, {vr(ONE)}, {vr(c)}")
        if tr and x == 0:
            a(f"v_mfma_f32_16x16x32_bf16 {vr(SA)}, {vr(ONE)}, {vr(B)}, {'0' if kb == 0 else vr(SA)}")
            a(f"v_mfma_f32_16x16x32_bf16 {vr(SG)}, {vr(B)}, {vr(B)}, {'0' if kb == 0 else vr(SG)}")
    if tr:
        a(f"""v_and_b32 v4, 3, v2
        v_cmp_eq_u32 vcc, 1, v4
        v_cndmask_b32 v23, v{SG}, v{SG+1}, vcc
        v_cmp_eq_u32 vcc, 2, v4
        v_cndmask_b32 v23, v23, v{SG+2}, vcc
        v_cmp_eq_u32 vcc, 3, v4
        v_cndmask_b32 v23, v23, v{SG+3}, vcc
        v_mov_b32 v22, v{SA}""")
        ln_core(a, 22, 23)
        a(f"""v_lshrrev_b32 v4, 2, v2
        v_cmp_eq_u32 vcc, v4, v3
        s_and_saveexec_b64 s[38:39], vcc""")
        stats_write(a, sb, 22, 23)
        a("s_mov_b64 exec, s[38:39]\ns_waitcnt lgkmcnt(0)\ns_barrier")

def g1_epi(a, sb):
    so = sb * 1024
    for x in range(4): a(f"ds_read_b32 v{V_T+2*x}, v{15+x} offset:{8+so}")
    for p in range(2): a(f"ds_read_b64 v[{V_T+8+2*p}:{V_T+9+2*p}], v{19+p} offset:{so}")
    a("s_waitcnt lgkmcnt(0)")
    A = lambda x, t: V_ACC + (x * 3 + t) * 4
    for t in range(3):
        cs = V_CS + 4 * t
        for x in range(4):
            for h in range(2):
                r = A(x, t) + 2 * h
                a(f"v_pk_fma_f32 v[{r}:{r+1}], v[{cs+2*h}:{cs+2*h+1}], v[{V_T+2*x}:{V_T+2*x+1}], v[{r}:{r+1}] op_sel_hi:[1,0,1]")
    for t in range(3):
        for p in range(2):
            for r in range(4): a(f"v_permlane32_swap_b32 v{A(2*p,t)+r}, v{A(2*p+1,t)+r}")
    for p in range(2):
        c1 = V_T + 8 + 2 * p
        T = lambda t: V_XB + 4 * t
        for t in range(3):
            for h in range(2):
                a(f"v_pk_mul_f32 v[{T(t)+2*h}:{T(t)+2*h+1}], v[{A(2*p,t)+2*h}:{A(2*p,t)+2*h+1}], v[{c1}:{c1+1}] op_sel_hi:[1,0]")
        for t in range(3):
            for r in range(4): a(f"v_exp_f32 v{T(t)+r}, v{T(t)+r}")
        for t in range(3):
            for h in range(2):
                g, u = A(2*p, t) + 2 * h, A(2*p+1, t) + 2 * h
                a(f"v_pk_mul_f32 v[{g}:{g+1}], v[{g}:{g+1}], v[{u}:{u+1}]")
        for t in range(3):
            for h in range(2):
                a(f"v_pk_fma_f32 v[{T(t)+2*h}:{T(t)+2*h+1}], v[{T(t)+2*h}:{T(t)+2*h+1}], v[{c1}:{c1+1}], v[{c1}:{c1+1}] op_sel:[0,1,1] op_sel_hi:[1,1,1]")
        for t in range(3):
            for r in range(4): a(f"v_rcp_f32 v{T(t)+r}, v{T(t)+r}")
        for t in range(3):
            for h in range(2):
                g = A(2*p, t) + 2 * h
                a(f"v_pk_mul_f32 v[{g}:{g+1}], v[{g}:{g+1}], v[{T(t)+2*h}:{T(t)+2*h+1}]")
        for t in range(3):
            g = A(2*p, t); u = A(2*p+1, t)
            a(f"""v_cvt_pk_bf16_f32 v{u}, v{g}, v{g+1}
            v_cvt_pk_bf16_f32 v{u+1}, v{g+2}, v{g+3}""")
        for t in range(3):
            u = A(2*p+1, t)
            a(f"buffer_store_dwordx2 v[{u}:{u+1}], v{12+p}, {WSR}, s{52+t} offen {LS('h')}")
def g1_next(a):
    for x in range(4): a(f"v_add_u32 v{8+x}, 0x10000, v{8+x}")
    for p in range(2): a(f"v_add_u32 v{12+p}, {4*HT}, v{12+p}")

def emit_g2(a, layer, hbase, etagA, st):
    ACC = V_ACC
    acc = lambda dt, x: ACC + (x * 4 + dt) * 4
    for x in range(4):
        a(f"""s_add_u32 s36, s{S_W}, {x}
        s_and_b32 s36, s36, 3
        s_lshl_b32 s37, s20, 3
        s_add_u32 s36, s36, s37
        s_lshl_b32 s37, s22, 2
        s_add_u32 s36, s36, s37
        s_mul_i32 s36, s36, {HT}
        s_mul_i32 s37, s{S_W}, {11*1024}
        s_add_u32 s36, s36, s37
        s_add_u32 s{56+x}, s36, {hbase}
        s_cmp_eq_u32 s{S_W}, 3
        s_cselect_b32 s{60+x}, {INV}, s{56+x}""")
    a(f"""s_lshl_b32 s51, s{S_W}, 15
    v_lshrrev_b32 v2, 4, v1
    v_and_b32 v3, 15, v1
    v_lshlrev_b32 v8, 7, v2
    v_lshl_add_u32 v8, v3, 3, v8
    v_add_u32 v8, s51, v8
    s_add_u32 s50, s{S_GEN}, s22
    s_add_u32 s50, s50, {etagA}""")
    def su():
        member_flag_off(a, 9, "0", 16)
    wg_wait(a, su, 9, 1, None, V_HB, etag=50)
    stamp(a, st)
    AHEAD = 4
    def dma1(i, x):
        a(f"""s_add_u32 s36, s{(60 if i == 10 else 56)+x}, {i*1024}
        s_add_u32 m0, s51, {(i % 8)*4096 + x*1024}
        buffer_load_dwordx4 v31, {WSR}, s36 offen sc1 lds""")
    for i in range(AHEAD):
        for x in range(4): dma1(i, x)
    def rd(n):
        i, x = n >> 2, n & 3
        B = V_HB + 4 * x; off = (i % 8) * 4096 + x * 1024
        return [f"ds_read_b64 v[{B}:{B+1}], v8 offset:{off}", f"ds_read_b64 v[{B+2}:{B+3}], v8 offset:{off+512}"]
    issued = AHEAD * 4
    def vmwait(n): a(f"s_waitcnt vmcnt({issued - 1 - n})")
    vmwait(2)
    stamp(a, st + 1)
    for n in range(3):
        for op in rd(n): a(op)
    for n in range(44):
        i, x = n >> 2, n & 3
        infl = min(2, 43 - n)
        a(f"s_waitcnt lgkmcnt({infl*2})")
        B = V_HB + 4 * x
        for dt in range(4):
            c = acc(dt, x)
            a(f"v_mfma_f32_16x16x32_bf16 {vr(c)}, {w2(i,dt)}, {vr(B)}, {'0' if i == 0 else vr(c)}")
            if dt == 0 and n + 3 < 44:
                vmwait(n + 3)
                for op in rd(n + 3): a(op)
            if dt == 2 and issued < 44:
                dma1(issued >> 2, issued & 3); issued += 1
    stamp(a, st + 2)
    a(f"v_add_u32 v9, s51, v31")
    for x in range(1, 4):
        for dt in range(4):
            a(f"ds_write_b128 v9, {vr(acc(dt,x))} offset:{((x-1)*4+dt)*1024}")
    for x in range(1, 4):
        a(f"""s_sub_u32 s36, s{S_W}, {x}
        s_and_b32 s36, s36, 3
        s_lshl_b32 s36, s36, 15
        v_add_u32 v{9+x}, s36, v31""")
    a("s_waitcnt lgkmcnt(0)\ns_barrier")
    for x in range(1, 4):
        for dt in range(4):
            a(f"ds_read_b128 {vr(acc(dt,x))}, v{9+x} offset:{((x-1)*4+dt)*1024}")
    if layer == 1:
        a(f"""v_bfe_u32 v4, v1, 2, 2
        v_lshl_add_u32 v4, v2, 4, v4
        v_lshlrev_b32 v4, 7, v4
        v_and_b32 v5, 3, v1
        v_lshl_add_u32 v4, v5, 3, v4
        s_lshl_b32 s36, s{S_W}, 5
        s_add_u32 s36, s36, {L_TX}
        v_add_u32 v4, s36, v4""")
        P = V_HB; Yp = V_HB + 8
        for dt in range(4):
            a(f"ds_read_b64_tr_b16 v[{P+2*dt}:{P+2*dt+1}], v4 offset:{dt*512}")
        for dt in range(4):
            a(f"ds_read_b64_tr_b16 v[{Yp+2*dt}:{Yp+2*dt+1}], v4 offset:{8192+dt*512}")
        nl = 8
    else:
        P = V_X3; nl = 0
    for x in range(1, 4):
        a(f"s_waitcnt lgkmcnt({min(15, (3-x)*4 + nl)})")
        for dt in range(4):
            for h in range(2):
                c, o = acc(dt, 0) + 2 * h, acc(dt, x) + 2 * h
                a(f"v_pk_add_f32 v[{c}:{c+1}], v[{c}:{c+1}], v[{o}:{o+1}]")
    stamp(a, st + 3)
    O = ACC; X = ACC + 16; PK = ACC + 48
    a("s_waitcnt lgkmcnt(0)")
    for k in range(8):
        a(f"v_lshlrev_b32 v{X+2*k}, 16, v{P+k}\nv_and_b32 v{X+2*k+1}, 0xffff0000, v{P+k}")
    for k in range(8): a(f"v_cvt_pk_bf16_f32 v{PK+k}, v{O+2*k}, v{O+2*k+1}")
    for k in range(8):
        a(f"v_lshlrev_b32 v{O+2*k}, 16, v{PK+k}\nv_and_b32 v{O+2*k+1}, 0xffff0000, v{PK+k}")
    for k in range(8):
        a(f"v_pk_add_f32 v[{O+2*k}:{O+2*k+1}], v[{O+2*k}:{O+2*k+1}], v[{X+2*k}:{X+2*k+1}]")
    for k in range(8): a(f"v_cvt_pk_bf16_f32 v{PK+k}, v{O+2*k}, v{O+2*k+1}")
    if layer == 2:
        a(f"""s_load_dwordx2 s[32:33], s[0:1], {ARG['out']}
        s_lshl_b32 s36, s20, 7
        s_lshl_b32 s37, s22, 6
        s_add_u32 s36, s36, s37
        s_lshl_b32 s37, s{S_W}, 4
        s_add_u32 s36, s36, s37
        s_lshl_b32 s36, s36, 10
        s_lshl_b32 s37, s23, 7
        s_add_u32 s36, s36, s37
        v_lshlrev_b32 v4, 10, v3
        v_lshl_add_u32 v4, v2, 5, v4
        s_waitcnt lgkmcnt(0)
        s_mov_b32 s34, {S*D*2}
        s_mov_b32 s35, 0x20000
        buffer_store_dwordx4 {vr(PK)}, v4, s[32:35], s36 offen
        buffer_store_dwordx4 {vr(PK+4)}, v4, s[32:35], s36 offen offset:16""")
        return
    a(f"v_mov_b32 v22, 0\nv_mov_b32 v23, 0\nv_mov_b32 v21, 0x3f803f80\nv_mov_b32 v26, 0\nv_mov_b32 v27, 0")
    for k in range(0, 8, 2):
        a(f"""v_dot2_f32_bf16 v22, v{PK+k}, v21, v22
        v_dot2_f32_bf16 v23, v{PK+k}, v{PK+k}, v23
        v_dot2_f32_bf16 v26, v{PK+k+1}, v21, v26
        v_dot2_f32_bf16 v27, v{PK+k+1}, v{PK+k+1}, v27""")
    a("v_add_f32 v22, v22, v26\nv_add_f32 v23, v23, v27")
    a(f"""v_mov_b32 v24, v22
    v_mov_b32 v25, v23
    v_permlane16_swap_b32 v22, v24
    v_permlane16_swap_b32 v23, v25
    v_add_f32 v22, v22, v24
    v_add_f32 v23, v23, v25
    v_mov_b32 v24, v22
    v_mov_b32 v25, v23
    v_permlane32_swap_b32 v22, v24
    v_permlane32_swap_b32 v23, v25
    v_add_f32 v22, v22, v24
    v_add_f32 v23, v23, v25""")
    L = a.newlabel("hop")
    a(f"""s_add_u32 s50, s{S_GEN}, 12
    v_mov_b32 v24, s50
    v_mov_b32 v25, 0
    s_lshl_b32 s36, s20, 1
    s_add_u32 s36, s36, s22
    s_lshl_b32 s36, s36, 13
    s_lshl_b32 s37, s{S_W}, 8
    s_add_u32 s36, s36, s37
    s_add_u32 s36, s36, {WS['SYNC'] + SYNC_ST2}
    s_lshl_b32 s37, s23, 10
    s_add_u32 s37, s37, s36
    v_lshlrev_b32 v4, 4, v3
    s_mov_b64 exec, 0xffff""")
    dstore(a, f"buffer_store_dwordx4 v[22:25], v4, {WSR}, s37 offen {{F}}")
    a(f"""s_mov_b64 exec, -1
    v_lshl_add_u32 v5, v2, 11, v4""")
    for k in range(8):
        a(f"v_lshlrev_b32 v{X+2*k}, 16, v{PK+k}\nv_and_b32 v{X+2*k+1}, 0xffff0000, v{PK+k}")
    a(f"""s_mov_b32 s38, 0
    {L}_p:
    buffer_load_dwordx4 v[{O}:{O+3}], v5, {WSR}, s36 offen sc1
    buffer_load_dwordx4 v[{O+4}:{O+7}], v5, {WSR}, s36 offen offset:1024 sc1
    s_add_u32 s38, s38, 1
    s_waitcnt vmcnt(0)
    v_cmp_eq_u32 vcc, s50, v{O+2}
    v_cmp_eq_u32 s[40:41], s50, v{O+6}
    s_and_b64 vcc, vcc, s[40:41]
    s_cmp_gt_u32 s38, 200000
    s_cbranch_scc1 {L}_d
    s_cmp_eq_u64 vcc, -1
    s_cbranch_scc0 {L}_p
    {L}_d:
    v_add_f32 v22, v{O}, v{O+4}
    v_add_f32 v23, v{O+1}, v{O+5}
    v_mov_b32 v24, v22
    v_mov_b32 v25, v23
    v_permlane16_swap_b32 v22, v24
    v_permlane16_swap_b32 v23, v25
    v_add_f32 v22, v22, v24
    v_add_f32 v23, v23, v25
    v_mov_b32 v24, v22
    v_mov_b32 v25, v23
    v_permlane32_swap_b32 v22, v24
    v_permlane32_swap_b32 v23, v25
    v_add_f32 v22, v22, v24
    v_add_f32 v23, v23, v25""")
    ln_core(a, 22, 23)
    a(f"""v_rcp_f32 v24, v23
    v_sub_f32 v22, 0, v22
    v_mul_f32 v26, v22, v24""")
    Yf = ACC
    for k in range(8):
        a(f"v_lshlrev_b32 v{Yf+2*k}, 16, v{Yp+k}\nv_and_b32 v{Yf+2*k+1}, 0xffff0000, v{Yp+k}")
    N = ACC + 32
    for k in range(8):
        a(f"v_pk_fma_f32 v[{N+2*k}:{N+2*k+1}], v[{X+2*k}:{X+2*k+1}], v[24:25], v[26:27] op_sel_hi:[1,0,0]")
    for k in range(8):
        a(f"v_pk_fma_f32 v[{N+2*k}:{N+2*k+1}], v[{N+2*k}:{N+2*k+1}], v[{Yf+2*k}:{Yf+2*k+1}], v[{X+2*k}:{X+2*k+1}]")
    for k in range(8):
        a(f"v_cvt_pk_bf16_f32 v{V_X3+k}, v{N+2*k}, v{N+2*k+1}")
    a(f"""s_lshl_b32 s36, s20, 3
    s_lshl_b32 s37, s22, 2
    s_add_u32 s36, s36, s37
    s_add_u32 s36, s36, s{S_W}
    s_lshl_b32 s38, s36, 10
    s_lshl_b32 s36, s36, 14
    s_lshl_b32 s37, s23, 11
    s_add_u32 s36, s36, s37
    s_add_u32 s36, s36, {WS['X3']}""")
    dstore(a, f"""buffer_store_dwordx4 {vr(V_X3)}, v31, {WSR}, s36 offen {{F}}
    buffer_store_dwordx4 {vr(V_X3+4)}, v31, {WSR}, s36 offen offset:1024 {{F}}""", "x3")
    a(f"v_mov_b32 v22, 0\nv_mov_b32 v23, 0\nv_mov_b32 v26, 0\nv_mov_b32 v27, 0")
    for k in range(0, 8, 2):
        a(f"""v_dot2_f32_bf16 v22, v{V_X3+k}, v21, v22
        v_dot2_f32_bf16 v23, v{V_X3+k}, v{V_X3+k}, v23
        v_dot2_f32_bf16 v26, v{V_X3+k+1}, v21, v26
        v_dot2_f32_bf16 v27, v{V_X3+k+1}, v{V_X3+k+1}, v27""")
    a(f"""v_add_f32 v22, v22, v26
    v_add_f32 v23, v23, v27
    v_mov_b32 v24, v22
    v_mov_b32 v25, v23
    v_permlane16_swap_b32 v22, v24
    v_permlane16_swap_b32 v23, v25
    v_add_f32 v22, v22, v24
    v_add_f32 v23, v23, v25
    v_mov_b32 v24, v22
    v_mov_b32 v25, v23
    v_permlane32_swap_b32 v22, v24
    v_permlane32_swap_b32 v23, v25
    v_add_f32 v22, v22, v24
    v_add_f32 v23, v23, v25
    s_lshl_b32 s37, s23, 7
    s_add_u32 s38, s38, s37
    s_add_u32 s38, s38, {WS['SYNC'] + SYNC_ST3}
    v_lshlrev_b32 v4, 3, v3
    s_mov_b64 exec, 0xffff""")
    dstore(a, f"buffer_store_dwordx2 v[22:23], v4, {WSR}, s38 offen {{F}}")
    a("s_mov_b64 exec, -1")

NW13A = 12
NW13B = 27
PACE = 5
CHK = 1
FINE = None
CODEPF = True
DBG = 0
def build():
    a = Asm()
    global stamp
    if FINE:
        real = common.stamp
        def stamp_(a_, i):
            if i == 0: real(a_, 0)
        stamp = stamp_
        globals()['fstamp'] = real
    else:
        globals()['fstamp'] = lambda a_, i: None
    kbegin(a, KN)
    emit_prologue(a)
    emit_prep_loads(a)
    if CODEPF:
        a(f"""s_getpc_b64 s[68:69]
        L_pc:
        s_sub_u32 s68, s68, L_pc-{KN}
        s_subb_u32 s69, s69, 0
        v_lshlrev_b32 v190, 7, v0
        v_add_u32 v191, 0x8000, v190
        v_min_u32 v191, L_codeend-{KN}-4, v191
        global_load_dword v188, v190, s[68:69]
        global_load_dword v189, v191, s[68:69]""")
    a("s_waitcnt lgkmcnt(0)")
    a(f"""s_getreg_b32 s36, hwreg(HW_REG_XCC_ID, 0, 4)
    s_add_u32 s{S_IDW}, s{S_GEN}, 13
    s_lshl_b32 s{S_IDW}, s{S_IDW}, 4
    s_or_b32 s{S_IDW}, s{S_IDW}, s36
    s_mov_b32 s{S_LOC}, 0
    s_cmp_lg_u32 s{S_W}, 0
    s_cbranch_scc1 L_noid
    v_mov_b32 v174, s{S_IDW}
    v_mov_b32 v175, s{S_FLAG}
    s_mov_b64 exec, 1
    buffer_store_dword v174, v175, {WSR}, 0 offen offset:4 sc1
    s_mov_b64 exec, -1
    L_noid:""")
    emit_prep_compute(a)
    emit_ffn_roles(a)
    w13ops = [f"s_add_u32 s36, s{40+t}, {kb*1024}\nbuffer_load_dwordx4 {w13(kb,t)}, v31, {WSR}, s36 offen sc1" for kb in range(16) for t in range(3)]
    hooks = dict(conv_loop_extra=w13ops[:NW13A], n_conv_total_w=NW13A)
    emit_conv(a, hooks)
    signal(a, 3)
    stamp(a, 9)
    a("v_and_b32 v1, 63, v0")
    for op in w13ops[NW13A:NW13B]: a(op)
    emit_cs(a, NW13A // 3)
    def su3():
        a(f"v_lshlrev_b32 v9, 6, v1\nv_add_u32 v9, {WS['SYNC'] + SYNC_FLAGS}, v9")
    wg_wait(a, su3, 9, 4, 3, V_T)
    stamp(a, 10)
    x1_dma_setup(a)
    x1h0 = x1_dma_ops(0)
    for op in x1h0[:9]: a(op)
    x1h0 = x1h0[9:]
    g1_addr(a, 1, WS['H1'])
    a(f"s_waitcnt vmcnt(0)\ns_barrier")
    stamp(a, 11)
    kb0 = NW13A // 3
    kbC = NW13B // 3
    x1h1 = x1_dma_ops(1)
    w13c = [(w13ops[kb * 3 + t], ('w', kb)) for kb in range(kbC, 16) for t in range(3)]
    queue = [(op, ('x0', 0)) for op in x1h0] + w13c + [(x1h1[0], None)] + [(op, ('x1', 0)) for op in x1h1[1:]]
    issue_log = []
    def need(tag):
        pos = max(i for i, e in enumerate(issue_log) if e == tag)
        a(f"s_waitcnt vmcnt({len(issue_log) - 1 - pos})")
    def hookA(kb):
        if FINE == 'A': fstamp(a, 1 + kb)
        if kb == 7:
            need(('x0', 0)); a("s_barrier")
        if kb >= kbC: need(('w', kb))
        n = 4 if kb < 2 else 3
        while n > 0 and queue:
            op, tag = queue.pop(0)
            a(op)
            if tag is not None:
                issue_log.append(tag); n -= 1
        if kb == 15:
            while queue:
                op, tag = queue.pop(0); a(op)
                if tag is not None: issue_log.append(tag)
    g1_sub(a, 1, 0, hookA, cs_from=kb0)
    a("s_waitcnt vmcnt(0)\ns_barrier")
    if FINE == 'A': fstamp(a, 17)
    nw2 = 0
    tiles_dma(a)
    a("v_and_b32 v2, 15, v1\nv_lshrrev_b32 v3, 4, v1")
    stamp(a, 12)
    g1_epi(a, 0)
    g1_next(a)
    stamp(a, 13)
    def hookB(kb):
        if FINE == 'B': fstamp(a, 1 + kb)
        if kb == 5: signal(a, 4, tv=(22, 23), local=True)
        lo = nw2 + 4 * (kb - 5)
        if kb >= 5 and lo < 44: w2_loads(a, lo, min(44, lo + 4))
    g1_sub(a, 1, 1, hookB)
    g1_epi(a, 1)
    signal(a, 5, local=True)
    stamp(a, 14)
    emit_g2(a, 1, WS['H1'], 4, 15)
    signal(a, 6, local=True)
    stamp(a, 19)
    def su6a(): member_flag_off(a, 9, "0", 8)
    wg_wait(a, su6a, 9, 1, 6, V_T)
    stamp(a, 20)
    st3_stats(a, 0)
    x3h0 = x3_dma_ops(0)
    for op in x3h0[:9]: a(op)
    x3h0 = x3h0[9:]
    g1_addr(a, 2, WS['H2'])
    a("s_waitcnt vmcnt(8)")
    st3_finish(a, 0)
    a("s_waitcnt vmcnt(0) lgkmcnt(0)\ns_barrier")
    stamp(a, 21)
    x3h1 = x3_dma_ops(1)
    def hookA2(kb):
        if kb == 0:
            member_flag_off(a, 26, "8", 8)
            a(f"buffer_load_dword v28, v26, {WSR}, 0 offen sc1")
        if kb < 4:
            a(x3h0.pop(0)); a(x3h0.pop(0))
        if kb == 6:
            L = a.newlabel("x3b")
            a(f"""s_waitcnt vmcnt(8)
            s_add_u32 s37, s{S_GEN}, 6
            v_subrev_u32 v28, s37, v28
            v_cmp_gt_u32 vcc, 16, v28
            s_cmp_eq_u64 vcc, -1
            s_cbranch_scc1 {L}""")
            wait_flags(a, 26, 1, 6, 28)
            a.label(L)
            st3_stats(a, 1)
            a(x3h1.pop(0))
        if kb == 7:
            a("s_waitcnt vmcnt(4)\ns_barrier")
        if 6 <= kb < 14:
            a(x3h1.pop(0)); a(x3h1.pop(0))
        if kb == 15:
            a("s_waitcnt vmcnt(0)")
            st3_finish(a, 1)
    g1_sub(a, 2, 0, hookA2)
    a("s_waitcnt lgkmcnt(0)\ns_barrier")
    a("v_and_b32 v2, 15, v1\nv_lshrrev_b32 v3, 4, v1")
    stamp(a, 22)
    g1_epi(a, 0)
    g1_next(a)
    def hookB2(kb):
        if kb == 10: signal(a, 7, tv=(22, 23), local=True)
    g1_sub(a, 2, 1, hookB2)
    g1_epi(a, 1)
    signal(a, 8, local=True)
    stamp(a, 23)
    emit_g2(a, 2, WS['H2'], 7, 24)
    a(f"""s_or_b32 s36, s2, s{S_W}
    s_cmp_lg_u32 s36, 0
    s_cbranch_scc1 L_nogen
    s_add_u32 s36, s{S_GEN}, 16
    v_mov_b32 v2, s36
    v_mov_b32 v3, {WS['SYNC'] + SYNC_GEN}
    s_mov_b64 exec, 1
    buffer_store_dword v2, v3, {WSR}, 0 offen
    s_mov_b64 exec, -1
    L_nogen:""")
    if common.STAMPS:
        a("s_waitcnt vmcnt(0)"); stamp(a, 28)
    if DBG:
        sel = [1, 2, 3, 4, 5, 6, 7, 9, 10, 11, 14, 15, 19, 21, 23, 28]
        a(f"""s_cmp_lg_u32 s2, {DBG - 1}
        s_cbranch_scc1 L_end
        s_cmp_lg_u32 s{S_W}, 0
        s_cbranch_scc1 L_end
        s_load_dwordx2 s[68:69], s[0:1], {ARG['dbg']}
        s_waitcnt lgkmcnt(0)
        s_mov_b64 exec, 1""")
        for i, k in enumerate(sel):
            a(f"s_sub_u32 s70, s{72+k}, s72\nv_mov_b32 v2, s70\nv_mov_b32 v3, {4*i}\nglobal_store_dword v3, v2, s[68:69]")
    else:
        stamp_flush(a, 0, 29)
    a.label("L_end")
    a("s_endpgm")
    a.label("L_codeend")
    a("s_endpgm")
    txt = header([(None, 256, 256, LDS_TOTAL)]) + a.text() + kernel_desc(KN, 512, 102, 256)
    return txt, a
if __name__ == "__main__":
    common.STAMPS = 's' in sys.argv[2:]
    LOCAL = any(x.startswith('l') for x in sys.argv[2:])
    for x in sys.argv[2:]:
        if x.startswith('l'): LOCSET.update(['flag'] + x[1:].split('+'))
    HALF = 'h' in sys.argv[2:]
    CODEPF = 'nopf' not in sys.argv[2:]
    DBG = max([int(x[1:]) + 1 for x in sys.argv[2:] if x[0] == 'd' and x[1:].isdigit()] + [0])
    FINE = 'A' if 'fa' in sys.argv[2:] else ('B' if 'fb' in sys.argv[2:] else None)
    txt, a = build()
    open(sys.argv[1], "w").write(txt)
    print("nops:", a.nnop, "bytes", len(txt))
```

```python
import sys
from asmgen import *
from common import *
import common

KN = NAME + "_kernel"
WSR = "s[28:31]"
INV = "0x80000000"
S_GEN, S_W, S_FLAG = 3, 18, 64
LOCAL = False
HALF = False
S_LOC, S_IDW = 17, 16
DYN = True
DYNSET = {"flag", "x3"}
def LS(kind="flag"): return "" if (LOCAL and kind in LOCSET) else "sc1"
LOCSET = set()
def dstore(a, text, kind="flag"):
    if not DYN or kind not in DYNSET or LOCAL:
        a(text.replace("{F}", LS(kind))); return
    L = a.newlabel("ds")
    a(f"s_cmp_eq_u32 s{S_LOC}, 1\ns_cbranch_scc1 {L}_l")
    a(text.replace("{F}", "sc1"))
    a(f"s_branch {L}_e\n{L}_l:")
    a(text.replace("{F}", ""))
    a.label(f"{L}_e")
def vr(b, n=4): return f"v[{b}:{b+n-1}]"

def rnd_bf16(a, v):
    a(f"v_cvt_pk_bf16_f32 v{v}, v{v}, v{v}\nv_and_b32 v{v}, 0xffff0000, v{v}")
def sum_q(a, v, t):
    a(f"""v_mov_b32 v{t}, v{v}
    v_permlane16_swap_b32 v{v}, v{t}
    v_add_f32 v{v}, v{v}, v{t}
    v_mov_b32 v{t}, v{v}
    v_permlane32_swap_b32 v{v}, v{t}
    v_add_f32 v{v}, v{v}, v{t}""")
def allsum64(a, v, t):
    for r in (8, 4, 2, 1):
        a(f"v_add_f32_dpp v{v}, v{v}, v{v} row_ror:{r} row_mask:0xf bank_mask:0xf")
    sum_q(a, v, t)
def ln_core(a, vsum, vsq):
    a(f"""v_mul_f32 v{vsum}, 0x3b000000, v{vsum}
    v_mul_f32 v{vsq}, 0x3b000000, v{vsq}
    v_fma_f32 v{vsq}, -v{vsum}, v{vsum}, v{vsq}
    v_max_f32 v{vsq}, 0, v{vsq}""")
    rnd_bf16(a, vsq)
    a(f"v_add_f32 v{vsq}, 0x3727c5ac, v{vsq}")
    rnd_bf16(a, vsq)
    a(f"v_sqrt_f32 v{vsq}, v{vsq}")
    rnd_bf16(a, vsq)
    rnd_bf16(a, vsum)
def signal(a, e, tv=(2, 3), barrier=True, local=False):
    L = a.newlabel("sg")
    a("s_waitcnt vmcnt(0)")
    if barrier: a("s_barrier")
    a(f"""s_cmp_lg_u32 s{S_W}, 0
    s_cbranch_scc1 {L}
    s_add_u32 s36, s{S_GEN}, {e}
    v_mov_b32 v{tv[0]}, s36
    v_mov_b32 v{tv[1]}, s{S_FLAG}
    s_mov_b64 exec, 1""")
    if local: dstore(a, f"buffer_store_dword v{tv[0]}, v{tv[1]}, {WSR}, 0 offen {{F}}")
    else: a(f"buffer_store_dword v{tv[0]}, v{tv[1]}, {WSR}, 0 offen sc1")
    a(f"""s_mov_b64 exec, -1
    {L}:""")
def wait_flags(a, voff, nld, e, T, etag=None):
    L = a.newlabel("wf")
    if etag is None:
        a(f"s_add_u32 s37, s{S_GEN}, {e}"); etag = 37
    a(f"s_mov_b32 s38, 0")
    a.label(L)
    for i in range(nld):
        if i == 0: a(f"buffer_load_dword v{T}, v{voff}, {WSR}, 0 offen sc1")
        else: a(f"s_movk_i32 s39, {4096*i}\nbuffer_load_dword v{T+i}, v{voff}, {WSR}, s39 offen sc1")
    a("s_add_u32 s38, s38, 1\ns_waitcnt vmcnt(0)")
    for k in range(nld):
        a(f"v_subrev_u32 v{T+k}, s{etag}, v{T+k}")
    for k in range(1, nld): a(f"v_max_u32 v{T}, v{T}, v{T+k}")
    a(f"""v_cmp_gt_u32 vcc, 16, v{T}
    s_cmp_gt_u32 s38, 200000
    s_cbranch_scc1 {L}_x
    s_cmp_eq_u64 vcc, -1
    s_cbranch_scc0 {L}
    {L}_x:""")
def wg_wait(a, setup, voff, nld, e, T, etag=None):
    L = a.newlabel("ww")
    a(f"s_cmp_lg_u32 s{S_W}, 0\ns_cbranch_scc1 {L}")
    setup()
    wait_flags(a, voff, nld, e, T, etag)
    a.label(L)
    a("s_barrier")

HCS = 4160; XRO = 4 * HCS; CB = XRO + 4608; EXO = 49152
PL = 65536
PW = PL + 16384
W3OFF = 6144 + 32
L_TX = 131072; L_TY = L_TX + 8192; L_ST = L_TY + 8192
LDS_TOTAL = L_ST + 2048

def emit_prologue(a):
    a(f"""s_cmp_ge_u32 s2, 256
    s_cbranch_scc1 L_end
    s_load_dwordx4 s[4:7], s[0:1], {ARG['q']}
    s_load_dwordx4 s[8:11], s[0:1], {ARG['v']}
    s_load_dwordx4 s[12:15], s[0:1], {ARG['h']}
    s_load_dwordx2 s[16:17], s[0:1], {ARG['ws']}
    s_load_dwordx4 s[52:55], s[0:1], {ARG['w1']}
    s_load_dwordx2 s[56:57], s[0:1], {ARG['w2']}
    v_lshrrev_b32 v3, 6, v0
    v_and_b32 v1, 7, v0
    v_readfirstlane_b32 s{S_W}, v3
    s_and_b32 s60, s2, 7
    s_lshr_b32 s61, s2, 3
    v_lshrrev_b32 v2, 3, v0
    s_lshl_b32 s36, s60, 7
    s_lshl_b32 s37, s61, 16
    s_add_u32 s36, s36, s37
    v_lshlrev_b32 v4, 4, v1
    v_lshlrev_b32 v5, 11, v2
    v_add3_u32 v4, v4, v5, s36
    s_lshl_b32 s{S_FLAG}, s60, 5
    s_add_u32 s{S_FLAG}, s{S_FLAG}, s61
    s_mov_b32 s19, s{S_FLAG}
    s_lshl_b32 s{S_FLAG}, s{S_FLAG}, 6
    s_add_u32 s{S_FLAG}, s{S_FLAG}, {WS['SYNC'] + SYNC_FLAGS}
    s_waitcnt lgkmcnt(0)""")
    srd(a, 20, 4, S * D * 2)
    srd(a, 24, 6, S * D * 2)
    srd(a, 32, 8, S * D * 2)
    srd(a, 40, 10, D * 8)
    srd(a, 28, 16, WS['END'])
    a(f"""s_add_u32 s36, s16, {WS['SYNC'] + SYNC_GEN}
    s_addc_u32 s37, s17, 0
    s_load_dword s{S_GEN}, s[36:37], 0""")
    stamp(a, 0)

def emit_prep_loads(a):
    a(f"""s_lshl_b32 s36, s60, 9
    v_lshlrev_b32 v8, 6, v1
    v_add_u32 v8, s36, v8
    buffer_load_dwordx4 v[44:47], v8, s[40:43], 0 offen
    buffer_load_dwordx4 v[48:51], v8, s[40:43], 0 offen offset:16
    buffer_load_dwordx4 v[52:55], v8, s[40:43], 0 offen offset:32
    buffer_load_dwordx4 v[56:59], v8, s[40:43], 0 offen offset:48
    v_subrev_u32 v5, 3072, v4
    v_subrev_u32 v6, 2048, v4
    v_subrev_u32 v7, 1024, v4
    buffer_load_dwordx4 v[16:19], v5, s[24:27], 0 offen
    buffer_load_dwordx4 v[20:23], v6, s[24:27], 0 offen
    buffer_load_dwordx4 v[24:27], v7, s[24:27], 0 offen
    buffer_load_dwordx4 v[28:31], v4, s[24:27], 0 offen
    buffer_load_dwordx4 v[32:35], v4, s[24:27], 0 offen offset:1024
    buffer_load_dwordx4 v[36:39], v4, s[32:35], 0 offen
    buffer_load_dwordx4 v[40:43], v4, s[32:35], 0 offen offset:1024
    v_and_b32 v9, 63, v0
    s_lshr_b32 s66, s{S_W}, 1
    s_and_b32 s67, s{S_W}, 1
    s_cmp_eq_u32 s66, 0
    s_cselect_b32 s52, s52, s54
    s_cselect_b32 s53, s53, s55
    s_mov_b32 s54, {D*F*2}
    s_mov_b32 s55, 0x20000
    s_mov_b32 s58, {D*F*2}
    s_mov_b32 s59, 0x20000
    s_mul_i32 s62, s60, {64*2752}
    s_mul_i32 s63, s61, 96
    s_add_u32 s62, s62, s63
    s_mul_i32 s63, s67, 192
    v_add_u32 v176, s63, v9
    s_mul_i32 s36, s66, {W3OFF}
    s_lshl_b32 s63, s63, 4
    s_add_u32 s36, s36, s63
    s_add_u32 s36, s36, {PW}""")
    for i in range(3):
        a(f"""v_add_u32 v177, {64*i}, v176
        v_mul_u32_u24 v178, 43691, v177
        v_lshrrev_b32 v178, 18, v178
        v_mul_u32_u24 v179, 6, v178
        v_sub_u32 v179, v177, v179
        v_mul_u32_u24 v178, 2752, v178
        v_lshl_add_u32 v{184+i}, v179, 4, v178
        s_add_u32 m0, s36, {1024*i}
        buffer_load_dwordx4 v{184+i}, s[52:55], s62 offen lds""")
    a(f"""v_lshrrev_b32 v178, 3, v9
    v_and_b32 v179, 7, v9
    v_lshlrev_b32 v178, 10, v178
    v_lshl_add_u32 v187, v179, 4, v178
    s_lshl_b32 s63, s{S_W}, 13
    s_lshl_b32 s36, s61, 15
    s_add_u32 s36, s36, s63
    s_lshl_b32 s63, s60, 7
    s_add_u32 s36, s36, s63
    s_lshl_b32 s63, s{S_W}, 10
    s_add_u32 s63, s63, {PW + 2*6144 + 64}
    s_mov_b32 m0, s63
    buffer_load_dwordx4 v187, s[56:59], s36 offen lds
    s_add_u32 s36, s36, {32*32*1024}
    s_add_u32 m0, s63, 4096
    buffer_load_dwordx4 v187, s[56:59], s36 offen lds""")

def emit_prep_loads2(a):
    a(f"""buffer_load_dwordx4 v[60:63], v4, s[20:23], 0 offen
    buffer_load_dwordx4 v[64:67], v4, s[20:23], 0 offen offset:1024
    v_lshlrev_b32 v10, 4, v9
    s_lshl_b32 s36, s2, 13
    s_lshl_b32 s37, s{S_W}, 11
    s_add_u32 s36, s36, s37
    v_add_u32 v10, s36, v10
    buffer_load_dwordx4 v[68:71], v10, s[20:23], 0 offen
    buffer_load_dwordx4 v[72:75], v10, s[20:23], 0 offen offset:1024
    s_lshl_b32 s65, s19, 1
    s_add_u32 s65, s65, s66
    s_lshl_b32 s37, s65, 1
    s_lshl_b32 s65, s65, 12""")
    srd(a, 44, 12, 4096, offreg=65)
    srd(a, 48, 14, D * 2)
    a(f"""v_lshlrev_b32 v10, 4, v9
    s_lshl_b32 s36, s67, 11
    v_add_u32 v10, s36, v10
    buffer_load_dwordx4 v[192:195], v10, s[44:47], 0 offen
    buffer_load_dwordx4 v[196:199], v10, s[44:47], 0 offen offset:4
    buffer_load_dwordx4 v[200:203], v10, s[44:47], 0 offen offset:8
    buffer_load_dwordx4 v[204:207], v10, s[44:47], 0 offen offset:1024
    buffer_load_dwordx4 v[208:211], v10, s[44:47], 0 offen offset:1028
    buffer_load_dwordx4 v[212:215], v10, s[44:47], 0 offen offset:1032
    v_bfe_u32 v219, v9, 3, 2
    v_and_b32 v220, 7, v9
    v_lshlrev_b32 v13, 1, v220
    v_add_u32 v13, v13, v219
    v_subrev_u32 v13, 16, v13
    v_lshlrev_b32 v13, 1, v13
    v_add_u32 v14, 2, v13
    buffer_load_ushort v216, v13, s[44:47], 0 offen
    buffer_load_ushort v217, v14, s[44:47], 0 offen
    v_mov_b32 v13, s37
    buffer_load_ushort v218, v13, s[48:51], 0 offen""")

def emit_prep_compute(a):
    a(f"""v_sub_u32 v11, 31, v2
    v_lshlrev_b32 v12, 2, v1
    v_xor_b32 v11, v11, v12
    v_lshlrev_b32 v11, 2, v11
    v_lshlrev_b32 v13, 10, v1
    v_add_u32 v11, v11, v13
    v_add_u32 v11, {PL}, v11
    v_xor_b32 v12, v2, v12
    v_lshlrev_b32 v12, 2, v12
    v_add_u32 v12, v12, v13
    v_add_u32 v12, {PL + 8192}, v12
    s_waitcnt vmcnt({14 if CODEPF else 12})""")
    for j in range(8):
        a(f"""v_lshlrev_b32 v{80+j}, 16, v{44+2*j}
        v_and_b32 v{88+j}, 0xffff0000, v{44+2*j}
        v_lshlrev_b32 v{96+j}, 16, v{45+2*j}
        v_and_b32 v{104+j}, 0xffff0000, v{45+2*j}""")
    a(f"s_waitcnt vmcnt({7 if CODEPF else 5})")
    stamp(a, 1)
    for i in range(5):
        for p in range(4):
            a(f"""v_lshlrev_b32 v{112+8*i+2*p}, 16, v{16+4*i+p}
            v_and_b32 v{113+8*i+2*p}, 0xffff0000, v{16+4*i+p}""")
    for row in range(2):
        for p in range(4):
            d = 152 + 8 * row + 2 * p
            a(f"v_pk_mul_f32 v[{d}:{d+1}], v[{112+8*row+2*p}:{113+8*row+2*p}], v[{104+2*p}:{105+2*p}]")
    for tt, tap in ((1, 2), (2, 1), (3, 0)):
        for row in range(2):
            for p in range(4):
                d = 152 + 8 * row + 2 * p
                k = 112 + 8 * (row + tt) + 2 * p
                s_ = 80 + 8 * tap + 2 * p
                a(f"v_pk_fma_f32 v[{d}:{d+1}], v[{k}:{k+1}], v[{s_}:{s_+1}], v[{d}:{d+1}]")
    for row in range(2):
        for p in range(4):
            a(f"""v_lshlrev_b32 v{112+8*row+2*p}, 16, v{36+4*row+p}
            v_and_b32 v{113+8*row+2*p}, 0xffff0000, v{36+4*row+p}""")
    for row in range(2):
        for p in range(4):
            d = 152 + 8 * row + 2 * p
            a(f"v_pk_mul_f32 v[{d}:{d+1}], v[{d}:{d+1}], v[{112+8*row+2*p}:{113+8*row+2*p}]")
    for j in range(8):
        a(f"v_cvt_pk_bf16_f32 v{80+j}, v{160+j}, v{152+j}")
    for j in range(8):
        a(f"ds_write_b32 v11, v{80+j} offset:{128*j}")
    a(f"""v_lshrrev_b32 v3, 6, v0
    v_xor_b32 v5, v1, v3
    v_lshlrev_b32 v5, 4, v5
    v_lshlrev_b32 v6, 7, v2
    v_add_u32 v5, v5, v6
    v_add_u32 v5, {PL}, v5
    v_xor_b32 v7, 64, v5
    s_lshl_b32 s36, s60, 18
    s_lshl_b32 s37, s61, 7
    s_sub_u32 s4, s36, s37
    s_add_u32 s4, s4, {WS['XR'] + 1984*2}
    s_add_u32 s5, s36, s37
    s_add_u32 s5, s5, {WS['QT']}
    v_lshlrev_b32 v8, 12, v2
    v_lshlrev_b32 v15, 4, v1
    v_add_u32 v8, v8, v15
    v_add_u32 v15, 0x20000, v8
    s_waitcnt lgkmcnt(0)
    s_barrier
    ds_read_b128 v[16:19], v5
    ds_read_b128 v[20:23], v7 offset:4096
    s_waitcnt lgkmcnt(1)
    buffer_store_dwordx4 v[16:19], v8, {WSR}, s4 offen {LS('xr')}
    s_waitcnt lgkmcnt(0)
    buffer_store_dwordx4 v[20:23], v15, {WSR}, s4 offen {LS('xr')}""")
    stamp(a, 2)
    emit_prep_loads2(a)
    L = a.newlabel("sg1")
    a(f"""s_waitcnt vmcnt(13)
    s_barrier
    s_cmp_lg_u32 s{S_W}, 0
    s_cbranch_scc1 {L}
    s_add_u32 s36, s{S_GEN}, 1
    v_mov_b32 v16, s36
    v_mov_b32 v17, s{S_FLAG}
    s_mov_b64 exec, 1
    buffer_store_dword v16, v17, {WSR}, 0 offen sc1
    s_mov_b64 exec, -1
    {L}:""")
    stamp(a, 3)
    a(f"""v_lshrrev_b32 v178, 4, v9
    v_bfe_u32 v179, v9, 2, 2
    v_and_b32 v180, 3, v9
    v_lshl_add_u32 v181, v178, 4, v179
    v_mul_u32_u24 v181, 96, v181
    v_and_b32 v182, 1, v180
    v_lshl_add_u32 v181, v182, 3, v181
    v_lshrrev_b32 v182, 1, v180
    v_mul_u32_u24 v182, {W3OFF}, v182
    v_add_u32 v181, v181, v182
    v_lshlrev_b32 v183, 4, v9""")
    for i in range(3):
        a(f"""s_mul_i32 s36, s{S_W}, 3
        s_add_u32 s36, s36, {i}
        s_lshr_b32 s37, s36, 1
        s_and_b32 s36, s36, 1
        s_lshl_b32 s38, s37, 4
        s_mul_i32 s39, s36, {8*96}
        s_add_u32 s38, s38, s39
        s_add_u32 s38, s38, {PW}
        v_add_u32 v182, s38, v181
        ds_read_b64_tr_b16 v[{144+4*i}:{145+4*i}], v182
        ds_read_b64_tr_b16 v[{146+4*i}:{147+4*i}], v182 offset:{4*96}
        s_mul_i32 s38, s61, 6
        s_add_u32 s38, s38, s37
        s_lshl_b32 s39, s38, 14
        s_lshl_b32 s37, s60, 11
        s_add_u32 s39, s39, s37
        s_lshl_b32 s36, s36, 10
        s_add_u32 s39, s39, s36
        s_add_u32 s39, s39, {WS['WF13']}
        s_cmp_lt_u32 s38, 172
        s_cselect_b32 s{6+i}, s39, {INV}""")
    a(f"""v_lshl_add_u32 v181, v178, 2, v179
    v_lshlrev_b32 v181, 7, v181
    v_lshl_add_u32 v181, v180, 5, v181
    s_lshl_b32 s36, s{S_W}, 3
    s_add_u32 s36, s36, {PW + 2*6144 + 64}
    v_add_u32 v181, s36, v181""")
    for i in range(2):
        a(f"""ds_read_b64_tr_b16 v[{156+4*i}:{157+4*i}], v181 offset:{4096*i}
        ds_read_b64_tr_b16 v[{158+4*i}:{159+4*i}], v181 offset:{4096*i + 2048}
        s_add_u32 s36, s61, {32*i}
        s_mul_i32 s37, s60, 43
        s_add_u32 s37, s37, s36
        s_lshl_b32 s37, s37, 12
        s_lshl_b32 s38, s{S_W}, 10
        s_add_u32 s37, s37, s38
        s_add_u32 s37, s37, {WS['WF2']}
        s_cmp_lt_u32 s36, 43
        s_cselect_b32 s{9+i}, s37, {INV}""")
    for i in range(5):
        a(f"s_waitcnt lgkmcnt({2*(4-i)})\nbuffer_store_dwordx4 {vr(144+4*i)}, v183, {WSR}, s{6+i} offen sc1")
    a("s_waitcnt vmcnt(16)")
    a("s_mov_b32 s36, 0x05040100\ns_mov_b32 s37, 0x07060302")
    for p in range(4):
        a(f"""v_perm_b32 v{88+2*p}, v{64+p}, v{60+p}, s36
        v_perm_b32 v{89+2*p}, v{64+p}, v{60+p}, s37""")
    for j in range(8):
        a(f"ds_write_b32 v12, v{88+j} offset:{128*j}")
    a("s_waitcnt vmcnt(14)")
    a("v_mov_b32 v14, 0x3f803f80")
    for row in range(2):
        su, sq = 96 + 2 * row, 97 + 2 * row
        a(f"v_mov_b32 v{su}, 0\nv_mov_b32 v{sq}, 0")
    for p in range(4):
        for row in range(2):
            su, sq = 96 + 2 * row, 97 + 2 * row; b = 68 + 4 * row
            a(f"v_dot2_f32_bf16 v{su}, v{b+p}, v14, v{su}\nv_dot2_f32_bf16 v{sq}, v{b+p}, v{b+p}, v{sq}")
    for r in (8, 4, 2, 1):
        for v in (96, 97, 98, 99):
            a(f"v_add_f32_dpp v{v}, v{v}, v{v} row_ror:{r} row_mask:0xf bank_mask:0xf")
    for k, v in enumerate((96, 97, 98, 99)): a(f"v_mov_b32 v{100+k}, v{v}")
    for k, v in enumerate((96, 97, 98, 99)): a(f"v_permlane16_swap_b32 v{v}, v{100+k}")
    for k, v in enumerate((96, 97, 98, 99)): a(f"v_add_f32 v{v}, v{v}, v{100+k}")
    for k, v in enumerate((96, 97, 98, 99)): a(f"v_mov_b32 v{100+k}, v{v}")
    for k, v in enumerate((96, 97, 98, 99)): a(f"v_permlane32_swap_b32 v{v}, v{100+k}")
    for k, v in enumerate((96, 97, 98, 99)): a(f"v_add_f32 v{v}, v{v}, v{100+k}")
    ln_core(a, 96, 97); ln_core(a, 98, 99)
    a(f"""v_rcp_f32 v102, v97
    v_rcp_f32 v103, v99
    v_mul_f32 v104, -v96, v102
    v_mul_f32 v105, -v98, v103
    s_lshl_b32 s36, s2, 5
    s_lshl_b32 s37, s{S_W}, 3
    s_add_u32 s11, s36, s37
    s_add_u32 s11, s11, {WS['RS0']}""")
    a(f"""v_mov_b32 v101, s11
    s_mov_b32 s37, {WS['C0']-WS['RS0']}
    s_mov_b64 exec, 1
    buffer_store_dwordx2 v[102:103], v101, {WSR}, 0 offen sc1
    buffer_store_dwordx2 v[104:105], v101, {WSR}, s37 offen sc1
    s_mov_b64 exec, -1
    s_waitcnt lgkmcnt(0)
    s_barrier
    ds_read_b128 v[72:75], v5 offset:8192
    ds_read_b128 v[76:79], v7 offset:{8192+4096}
    s_waitcnt lgkmcnt(1)
    buffer_store_dwordx4 v[72:75], v8, {WSR}, s5 offen sc1
    s_waitcnt lgkmcnt(0)
    buffer_store_dwordx4 v[76:79], v15, {WSR}, s5 offen sc1""")
    a(f"""s_waitcnt vmcnt(9)
    s_mul_i32 s62, s66, {CB}
    v_lshlrev_b32 v4, 4, v9
    s_lshl_b32 s36, s67, 11
    s_add_u32 s36, s36, s62
    s_add_u32 s36, s36, 32
    v_add_u32 v4, s36, v4""")
    for p in range(2):
        L0, L2, L4 = 192 + 12 * p, 196 + 12 * p, 200 + 12 * p
        for j in range(4):
            a(f"v_alignbit_b32 v{112+8*p+j}, v{L2+j}, v{L0+j}, 16")
            a(f"v_alignbit_b32 v{116+8*p+j}, v{L4+j}, v{L2+j}, 16")
        a(f"""ds_write_b128 v4, v[{L0}:{L0+3}] offset:{1024*p}
        ds_write_b128 v4, v[{112+8*p}:{115+8*p}] offset:{1024*p + HCS}
        ds_write_b128 v4, v[{L2}:{L2+3}] offset:{1024*p + 2*HCS}
        ds_write_b128 v4, v[{116+8*p}:{119+8*p}] offset:{1024*p + 3*HCS}""")
    a(f"""v_lshl_or_b32 v216, v217, 16, v216
    v_mul_u32_u24 v13, {HCS}, v219
    v_lshl_add_u32 v13, v220, 2, v13
    v_add_u32 v13, s62, v13
    ds_write_b32 v13, v216
    v_lshlrev_b32 v20, 16, v218
    v_mov_b32 v92, 0
    v_mov_b32 v93, 0
    v_mov_b32 v94, 0
    v_mov_b32 v95, 0
    v_and_b32 v16, 31, v9
    v_lshlrev_b32 v16, 4, v16
    v_add_u32 v16, s62, v16
    ds_write_b128 v16, v[92:95] offset:{XRO+4096}
    s_waitcnt lgkmcnt(0)""")
    stamp(a, 4)

def emit_conv(a, hooks):
    a("v_and_b32 v1, 63, v0")
    def su1():
        a(f"""v_and_b32 v2, 31, v1
        s_lshl_b32 s36, s60, 5
        v_add_u32 v2, s36, v2
        v_lshlrev_b32 v2, 6, v2
        v_add_u32 v2, {WS['SYNC'] + SYNC_FLAGS}, v2""")
    signal(a, 2)
    wg_wait(a, su1, 2, 1, 1, 64)
    stamp(a, 5)
    a(f"""v_lshlrev_b32 v10, 4, v1
    s_lshl_b32 s36, s67, 11
    s_add_u32 s37, s65, s36
    s_add_u32 s37, s37, {WS['XR']}
    s_add_u32 s38, s62, s36
    s_add_u32 s38, s38, {XRO}
    s_mov_b32 m0, s38
    buffer_load_dwordx4 v10, {WSR}, s37 offen sc1 lds
    s_add_u32 s38, s38, 1024
    s_add_u32 s37, s37, 1024
    s_mov_b32 m0, s38
    buffer_load_dwordx4 v10, {WSR}, s37 offen sc1 lds
    v_and_b32 v11, 15, v1
    v_lshrrev_b32 v12, 4, v1
    v_lshlrev_b32 v13, 4, v11
    v_lshl_add_u32 v13, v12, 2, v13
    s_lshl_b32 s36, s67, 10
    v_add_u32 v13, s36, v13
    v_lshlrev_b32 v14, 1, v13
    v_lshlrev_b32 v15, 2, v13
    v_lshlrev_b32 v22, 6, v1
    v_add_u32 v22, {WS['SYNC'] + SYNC_FLAGS}, v22""")
    a(f"""v_add_u32 v17, 1, v11
    v_and_b32 v18, 3, v17
    v_mul_u32_u24 v18, {HCS}, v18
    v_lshrrev_b32 v17, 2, v17
    v_lshlrev_b32 v17, 3, v17
    v_lshl_add_u32 v17, v12, 4, v17
    v_add_u32 v17, v17, v18
    s_lshl_b32 s36, s67, 8
    s_add_u32 s37, s36, s62
    v_add_u32 v17, s37, v17
    v_lshlrev_b32 v18, 5, v11
    v_lshlrev_b32 v19, 4, v12
    v_sub_u32 v18, v19, v18
    s_add_u32 s37, s37, {XRO + 480}
    v_add_u32 v18, s37, v18""")
    for r in range(32, 64): a(f"v_mov_b32 v{r}, 0")
    a(f"s_waitcnt vmcnt(0)\ns_barrier")
    stamp(a, 6)
    pre = []
    for i in range(4):
        pre.append(f"buffer_load_dwordx2 v[{192+2*i}:{193+2*i}], v14, {WSR}, s10 offen offset:{512*i} sc1")
    for i in range(4):
        pre.append(f"buffer_load_dwordx4 v[{200+4*i}:{203+4*i}], v15, {WSR}, s8 offen offset:{1024*i} sc1")
        pre.append(f"buffer_load_dwordx4 v[{216+4*i}:{219+4*i}], v15, {WSR}, s9 offen offset:{1024*i} sc1")
    def load_frags(setbase, bi):
        ops = []
        for x in range(8):
            A = setbase + 4 * x
            ops.append(f"ds_read_b64 v[{A}:{A+1}], v17 offset:{512*x + 64*bi}")
            ops.append(f"ds_read_b64 v[{A+2}:{A+3}], v17 offset:{512*x + 64*bi + 8}")
            B = setbase + 32 + 4 * x
            ops.append(f"ds_read_b128 v[{B}:{B+3}], v18 offset:{512*(7-x) + 64*bi}")
        return ops
    sets = (64, 128)
    for op in load_frags(sets[0], 0): a(op)
    extra = []
    for bi in range(4):
        cur = sets[bi & 1]
        nxt = load_frags(sets[(bi + 1) & 1], bi + 1) if bi < 3 else []
        if bi == 0:
            for i in range(4):
                if i == 0: a(f"buffer_load_dword v24, v22, {WSR}, 0 offen sc1")
                else: a(f"s_movk_i32 s39, {4096*i}\nbuffer_load_dword v{24+i}, v22, {WSR}, s39 offen sc1")
            member_flag_off(a, 23, "0", 16)
            a(f"buffer_load_dword v28, v23, {WSR}, 0 offen offset:4 sc1")
        if bi == CHK:
            a(f"""s_waitcnt vmcnt(0)
            v_cmp_eq_u32 vcc, s{S_IDW}, v28
            s_cmp_eq_u64 vcc, -1
            s_cselect_b32 s{S_LOC}, 1, 0
            s_add_u32 s37, s{S_GEN}, 2
            v_subrev_u32 v24, s37, v24
            v_subrev_u32 v25, s37, v25
            v_subrev_u32 v26, s37, v26
            v_subrev_u32 v27, s37, v27
            v_max_u32 v24, v24, v25
            v_max_u32 v26, v26, v27
            v_max_u32 v24, v24, v26
            v_cmp_gt_u32 vcc, 16, v24
            s_cmp_eq_u64 vcc, -1
            s_cbranch_scc1 L_c_ok""")
            wait_flags(a, 22, 4, 2, 24)
            a.label("L_c_ok")
            a(f"s_mov_b32 s8, {WS['RS0']}\ns_mov_b32 s9, {WS['C0']}\ns_add_u32 s10, s65, {WS['QT']}")
            extra = pre + list(hooks['conv_loop_extra'])
        a("s_waitcnt lgkmcnt(0)")
        pairs = sorted([(jt, aa) for jt in range(8) for aa in range(jt + 1)], key=lambda p: (p[1], p[0]))
        k = 0
        for idx, (jt, aa) in enumerate(pairs):
            A = cur + 4 * aa; B = cur + 32 + 4 * (jt - aa); C = 32 + 4 * jt
            a(f"v_mfma_f32_16x16x32_bf16 v[{C}:{C+3}], v[{A}:{A+3}], v[{B}:{B+3}], v[{C}:{C+3}]")
            if idx < 24 and k < len(nxt):
                a(nxt[k]); k += 1
            if extra and idx % PACE == PACE - 1 or (extra and bi == CHK and idx < 12):
                a(extra.pop(0))
    for op in extra: a(op)
    stamp(a, 7)
    a(f"""v_lshlrev_b32 v4, 4, v1
    s_lshl_b32 s36, s{S_W}, 12
    s_add_u32 s36, s36, {EXO}
    v_add_u32 v5, s36, v4
    s_xor_b32 s36, s36, 4096
    v_add_u32 v6, s36, v4
    s_cmp_eq_u32 s67, 0
    s_cbranch_scc0 L_c_x1""")
    for half in range(2):
        own, oth = (32, 48) if half == 0 else (48, 32)
        for i in range(4): a(f"ds_write_b128 v5, v[{oth+4*i}:{oth+4*i+3}] offset:{1024*i}")
        a("s_waitcnt lgkmcnt(0)\ns_barrier")
        for i in range(4): a(f"ds_read_b128 v[{80+4*i}:{83+4*i}], v6 offset:{1024*i}")
        a("s_waitcnt lgkmcnt(0)")
        for i in range(4):
            for h in range(2):
                a(f"v_pk_add_f32 v[{64+4*i+2*h}:{65+4*i+2*h}], v[{own+4*i+2*h}:{own+4*i+2*h+1}], v[{80+4*i+2*h}:{81+4*i+2*h}]")
        if half == 0:
            a("s_branch L_c_x2\nL_c_x1:")
    a.label("L_c_x2")
    a(f"""v_lshlrev_b32 v7, 5, v11
    v_lshl_add_u32 v7, v12, 3, v7
    s_lshl_b32 s36, s67, 11
    s_sub_u32 s37, s62, s36
    s_add_u32 s37, s37, {XRO + 4088 - 1536}
    v_sub_u32 v7, s37, v7""")
    for i in range(4): a(f"ds_read_b64 v[{96+2*i}:{97+2*i}], v7 offset:{512*(3-i)}")
    a(f"""s_add_u32 s38, s65, {WS['YT']}
    s_add_u32 s39, s65, {WS['X1T']}
    s_waitcnt vmcnt({hooks['n_conv_total_w']}) lgkmcnt(0)""")
    O = lambda i: 64 + 4 * i
    T = lambda i: 104 + 10 * i
    for i in range(4):
        kv = 96 + 2 * i
        a(f"""v_and_b32 v{T(i)}, 0xffff0000, v{kv+1}
        v_lshlrev_b32 v{T(i)+1}, 16, v{kv+1}
        v_and_b32 v{T(i)+2}, 0xffff0000, v{kv}
        v_lshlrev_b32 v{T(i)+3}, 16, v{kv}""")
    for i in range(4):
        a(f"""v_pk_fma_f32 v[{O(i)}:{O(i)+1}], v[{T(i)}:{T(i)+1}], v[20:21], v[{O(i)}:{O(i)+1}] op_sel_hi:[1,0,1]
        v_pk_fma_f32 v[{O(i)+2}:{O(i)+3}], v[{T(i)+2}:{T(i)+3}], v[20:21], v[{O(i)+2}:{O(i)+3}] op_sel_hi:[1,0,1]""")
    for i in range(4):
        a(f"""v_cvt_pk_bf16_f32 v{T(i)+4}, v{O(i)}, v{O(i)+1}
        v_cvt_pk_bf16_f32 v{T(i)+5}, v{O(i)+2}, v{O(i)+3}""")
    for i in range(4):
        a(f"""v_lshlrev_b32 v{T(i)}, 16, v{192+2*i}
        v_and_b32 v{T(i)+1}, 0xffff0000, v{192+2*i}
        v_lshlrev_b32 v{T(i)+2}, 16, v{193+2*i}
        v_and_b32 v{T(i)+3}, 0xffff0000, v{193+2*i}
        buffer_store_dwordx2 v[{T(i)+4}:{T(i)+5}], v14, {WSR}, s38 offen offset:{512*i} sc1""")
    for i in range(4):
        a(f"""v_lshlrev_b32 v{O(i)}, 16, v{T(i)+4}
        v_and_b32 v{O(i)+1}, 0xffff0000, v{T(i)+4}
        v_lshlrev_b32 v{O(i)+2}, 16, v{T(i)+5}
        v_and_b32 v{O(i)+3}, 0xffff0000, v{T(i)+5}
        v_pk_fma_f32 v[{T(i)+6}:{T(i)+7}], v[{T(i)}:{T(i)+1}], v[{200+4*i}:{201+4*i}], v[{216+4*i}:{217+4*i}]
        v_pk_fma_f32 v[{T(i)+8}:{T(i)+9}], v[{T(i)+2}:{T(i)+3}], v[{202+4*i}:{203+4*i}], v[{218+4*i}:{219+4*i}]""")
    for i in range(4):
        a(f"""v_pk_fma_f32 v[{T(i)+6}:{T(i)+7}], v[{T(i)+6}:{T(i)+7}], v[{O(i)}:{O(i)+1}], v[{T(i)}:{T(i)+1}]
        v_pk_fma_f32 v[{T(i)+8}:{T(i)+9}], v[{T(i)+8}:{T(i)+9}], v[{O(i)+2}:{O(i)+3}], v[{T(i)+2}:{T(i)+3}]""")
    for i in range(4):
        a(f"""v_cvt_pk_bf16_f32 v{O(i)}, v{T(i)+6}, v{T(i)+7}
        v_cvt_pk_bf16_f32 v{O(i)+1}, v{T(i)+8}, v{T(i)+9}
        buffer_store_dwordx2 v[{O(i)}:{O(i)+1}], v14, {WSR}, s39 offen offset:{512*i} sc1""")
    stamp(a, 8)

V_CS = 32; V_X3 = 44; V_ACC = 52; V_XB = 100; V_T = 116; V_HB = 116; V_W2 = 144
def w13(kb, t): b = (kb * 3 + t) * 4; return f"a[{b}:{b+3}]"
def w2(i, dt):
    idx = i * 4 + dt
    if idx < 16: b = 192 + idx * 4; return f"a[{b}:{b+3}]"
    b = V_W2 + (idx - 16) * 4; return f"v[{b}:{b+3}]"

def emit_ffn_roles_early(a):
    pass
def emit_ffn_roles(a):
    if HALF:
        a(f"""s_and_b32 s22, s60, 1
        s_lshr_b32 s20, s60, 1
        s_lshl_b32 s20, s20, 2
        s_and_b32 s36, s61, 3
        s_or_b32 s20, s20, s36
        s_lshr_b32 s23, s61, 2
        s_lshl_b32 s21, s22, 3
        s_or_b32 s21, s21, s23""")
    else:
        a(f"""s_and_b32 s20, s61, 1
        s_lshl_b32 s36, s60, 1
        s_or_b32 s20, s20, s36
        s_lshr_b32 s21, s61, 1
        s_lshr_b32 s22, s21, 3
        s_and_b32 s23, s21, 7""")
    for t in range(3):
        a(f"""s_mul_i32 s36, s{S_W}, 3
        s_add_u32 s36, s36, {t}
        s_mul_i32 s37, s21, 11
        s_add_u32 s37, s37, s36
        s_cmp_lt_u32 s36, 11
        s_cselect_b32 s38, s37, 0x7fff
        s_cmp_lt_u32 s38, 172
        s_cselect_b32 s39, 1, 0
        s_lshl_b32 s{40+t}, s37, 14
        s_add_u32 s{40+t}, s{40+t}, {WS['WF13']}
        s_lshr_b32 s{44+t}, s37, 1
        s_lshl_b32 s{44+t}, s{44+t}, 9
        s_and_b32 s37, s37, 1
        s_lshl_b32 s37, s37, 8
        s_add_u32 s{44+t}, s{44+t}, s37
        s_cmp_eq_u32 s39, 1
        s_cselect_b32 s{40+t}, s{40+t}, {INV}
        s_cselect_b32 s{44+t}, s{44+t}, {INV}""")
    a(f"""s_mul_i32 s36, s23, 43
    s_mul_i32 s37, s{S_W}, 11
    s_add_u32 s36, s36, s37
    s_lshl_b32 s48, s36, 12
    s_add_u32 s48, s48, {WS['WF2']}
    s_cmp_eq_u32 s{S_W}, 3
    s_cselect_b32 s49, {INV}, s48
    v_and_b32 v31, 63, v0
    v_lshlrev_b32 v31, 4, v31""")
def w13_loads(a):
    for kb in range(16):
        for t in range(3):
            a(f"s_add_u32 s36, s{40+t}, {kb*1024}\nbuffer_load_dwordx4 {w13(kb,t)}, v31, {WSR}, s36 offen sc1")
def w2_loads(a, lo, hi):
    for idx in range(lo, hi):
        i, dt = idx >> 2, idx & 3
        a(f"s_add_u32 s36, s{49 if i == 10 else 48}, {idx*1024}\nbuffer_load_dwordx4 {w2(i,dt)}, v31, {WSR}, s36 offen sc1")

def emit_cs(a, nkb):
    a(f"v_mov_b32 v{V_XB}, 0x3f803f80\nv_mov_b32 v{V_XB+1}, 0x3f803f80\nv_mov_b32 v{V_XB+2}, 0x3f803f80\nv_mov_b32 v{V_XB+3}, 0x3f803f80")
    for kb in range(nkb):
        for t in range(3):
            c = V_CS + 4 * t
            a(f"v_mfma_f32_16x16x32_bf16 {vr(c)}, {w13(kb,t)}, {vr(V_XB)}, {'0' if kb == 0 else vr(c)}")

def x1_dma_setup(a):
    a(f"""v_lshrrev_b32 v2, 3, v1
    v_bfe_u32 v3, v1, 1, 2
    v_bfe_u32 v6, v1, 4, 1
    v_xor_b32 v3, v3, v6
    s_and_b32 s36, s{S_W}, 2
    v_xor_b32 v3, s36, v3
    v_and_b32 v6, 1, v1
    v_lshlrev_b32 v6, 4, v6
    v_lshl_add_u32 v6, v2, 12, v6
    v_lshl_add_u32 v27, v3, 5, v6""")
def x1_dma_ops(hf):
    ops = [f"""s_lshl_b32 s56, s{S_W}, 15
    s_lshl_b32 s57, s20, 8
    s_add_u32 s56, s56, s57
    s_add_u32 s56, s56, {WS['X1T'] + hf * 128}
    s_lshl_b32 s57, s{S_W}, 10
    s_add_u32 s57, s57, {hf * 65536}"""]
    for n in range(16):
        ops.append(f"""s_add_u32 m0, s57, {n * 4096}
        buffer_load_dwordx4 v27, {WSR}, s56 offen sc1 lds
        s_add_u32 s56, s56, {32 * 4096}""")
    return ops
def tiles_dma(a):
    a(f"""v_lshrrev_b32 v2, 3, v1
    v_and_b32 v3, 7, v1
    v_lshlrev_b32 v2, 12, v2
    v_lshl_add_u32 v2, v3, 4, v2
    s_lshl_b32 s36, s23, 18
    s_lshl_b32 s37, s{S_W}, 16
    s_add_u32 s36, s36, s37
    s_lshl_b32 s37, s20, 8
    s_add_u32 s36, s36, s37
    s_lshl_b32 s37, s22, 7
    s_add_u32 s36, s36, s37
    s_lshl_b32 s38, s{S_W}, 11""")
    for arr, lb in (('X1T', L_TX), ('YT', L_TY)):
        for i in range(2):
            a(f"""s_add_u32 s37, s36, {WS[arr] + i * 8 * 4096}
            s_add_u32 m0, s38, {lb + i * 1024}
            buffer_load_dwordx4 v2, {WSR}, s37 offen sc1 lds""")
def x3_dma_ops(hf):
    ops = [f"""s_lshl_b32 s56, s20, 3
    s_add_u32 s56, s56, s{S_W}
    s_add_u32 s56, s56, {4*hf}
    s_lshl_b32 s56, s56, 14
    s_add_u32 s56, s56, {WS['X3']}
    s_lshl_b32 s57, s{S_W}, 14
    s_add_u32 s57, s57, {hf * 65536}"""]
    for n in range(16):
        ops.append(f"""s_add_u32 m0, s57, {n * 1024}
        buffer_load_dwordx4 v31, {WSR}, s56 offen sc1 lds
        s_add_u32 s56, s56, 1024""")
    return ops
def member_flag_off(a, vdst, base_member_sgpr_expr, nmemb):
    a(f"""v_and_b32 v{vdst}, {nmemb-1}, v1
    v_add_u32 v{vdst}, {base_member_sgpr_expr}, v{vdst}""")
    if HALF:
        a(f"""v_lshrrev_b32 v29, 3, v{vdst}
        v_and_b32 v{vdst}, 7, v{vdst}
        v_lshlrev_b32 v{vdst}, 2, v{vdst}
        v_lshl_add_u32 v{vdst}, v29, 5, v{vdst}
        s_lshr_b32 s36, s20, 2
        s_lshl_b32 s36, s36, 6
        s_and_b32 s37, s20, 3
        s_add_u32 s36, s36, s37""")
    else:
        a(f"""v_lshlrev_b32 v{vdst}, 1, v{vdst}
        s_lshr_b32 s36, s20, 1
        s_lshl_b32 s36, s36, 5
        s_and_b32 s37, s20, 1
        s_add_u32 s36, s36, s37""")
    a(f"""v_add_u32 v{vdst}, s36, v{vdst}
    v_lshlrev_b32 v{vdst}, 6, v{vdst}
    v_add_u32 v{vdst}, {WS['SYNC'] + SYNC_FLAGS}, v{vdst}""")

def stats_write(a, hf, vm, vsd):
    a(f"""v_rcp_f32 v24, v{vsd}
    v_mul_f32 v{V_T+1}, v{vsd}, v{vsd}
    v_sub_f32 v{V_T+2}, 0, v{vm}
    v_mul_f32 v{V_T}, 0xbfb8aa3b, v24
    v_mov_b32 v{V_T+3}, 0
    s_lshl_b32 s36, s{S_W}, 8
    s_add_u32 s36, s36, {L_ST + hf * 1024}
    v_lshl_add_u32 v25, v2, 4, s36
    ds_write_b128 v25, {vr(V_T)}""")
def st3_stats(a, hf):
    a(f"""v_and_b32 v2, 15, v1
    v_lshrrev_b32 v3, 4, v1
    s_lshl_b32 s36, s20, 3
    s_add_u32 s36, s36, s{S_W}
    s_add_u32 s36, s36, {4*hf}
    s_lshl_b32 s36, s36, 10
    s_add_u32 s36, s36, {WS['SYNC'] + SYNC_ST3}
    v_lshlrev_b32 v26, 8, v3
    v_lshl_add_u32 v26, v2, 3, v26
    buffer_load_dwordx2 v[22:23], v26, {WSR}, s36 offen sc1
    buffer_load_dwordx2 v[24:25], v26, {WSR}, s36 offen offset:128 sc1""")
def st3_finish(a, hf):
    a(f"""v_add_f32 v22, v22, v24
    v_add_f32 v23, v23, v25""")
    sum_q(a, 22, 24); sum_q(a, 23, 24)
    ln_core(a, 22, 23)
    stats_write(a, hf, 22, 23)

def g1_addr(a, layer, hbase):
    tr = layer == 1
    a(f"""v_and_b32 v2, 15, v1
    v_lshrrev_b32 v3, 4, v1""")
    for x in range(4):
        a(f"""s_add_u32 s36, s{S_W}, {x}
        s_and_b32 s36, s36, 3""")
        if tr:
            a(f"""v_bfe_u32 v4, v1, 2, 2
            v_lshl_add_u32 v5, v3, 4, v4
            v_lshlrev_b32 v5, 7, v5
            v_lshrrev_b32 v4, 1, v4
            v_and_b32 v6, 1, v3
            v_lshl_or_b32 v4, v6, 1, v4
            v_xor_b32 v4, s36, v4
            v_lshl_add_u32 v5, v4, 5, v5
            v_and_b32 v6, 3, v1
            v_lshl_add_u32 v{8+x}, v6, 3, v5""")
        else:
            a(f"""s_lshl_b32 s37, s36, 14
            v_add_u32 v{8+x}, s37, v31""")
        a(f"""s_lshl_b32 s37, s36, 8
        s_add_u32 s37, s37, {L_ST}
        v_lshl_add_u32 v{15+x}, v2, 4, s37""")
    for p in range(2):
        a(f"""v_lshrrev_b32 v4, 5, v1
        v_add_u32 v4, s{S_W}, v4
        v_add_u32 v4, {2*p}, v4
        v_and_b32 v4, 3, v4
        v_mul_u32_u24 v5, {HT}, v4
        v_bfe_u32 v6, v1, 4, 1
        v_lshl_add_u32 v5, v6, 7, v5
        v_lshl_add_u32 v{12+p}, v2, 3, v5
        v_lshlrev_b32 v4, 8, v4
        v_lshl_add_u32 v4, v2, 4, v4
        v_add_u32 v{19+p}, {L_ST}, v4""")
    a(f"""s_mul_i32 s36, s20, {8*HT}
    s_add_u32 s36, s36, {hbase}""")
    for t in range(3): a(f"s_add_u32 s{52+t}, s{44+t}, s36")

def g1_sub(a, layer, sb, hook=None, cs_from=16):
    tr = layer == 1
    def rd(n):
        kb, x = n >> 2, n & 3
        B = V_XB + 4 * x
        if tr:
            off = (kb >> 1) * 8192 + (kb & 1) * 1024
            return [f"ds_read_b64_tr_b16 v[{B}:{B+1}], v{8+x} offset:{off}", f"ds_read_b64_tr_b16 v[{B+2}:{B+3}], v{8+x} offset:{off+512}"]
        return [f"ds_read_b128 {vr(B)}, v{8+x} offset:{kb*1024}"]
    per = 2 if tr else 1
    ONE, SA, SG = V_T, V_T + 4, V_T + 8
    if tr:
        for k in range(4): a(f"v_mov_b32 v{ONE+k}, 0x3f803f80")
    for n in range(3):
        for op in rd(n): a(op)
    for n in range(64):
        kb, x = n >> 2, n & 3
        if x == 0 and hook: hook(kb)
        infl = min(2, 63 - n)
        a(f"s_waitcnt lgkmcnt({infl*per})")
        B = V_XB + 4 * x
        for t in range(3):
            c = V_ACC + (x * 3 + t) * 4
            a(f"v_mfma_f32_16x16x32_bf16 {vr(c)}, {w13(kb,t)}, {vr(B)}, {'0' if kb == 0 else vr(c)}")
            if t == 0 and n + 3 < 64:
                for op in rd(n + 3): a(op)
        if tr and x == 1 and kb >= cs_from:
            for t in range(3):
                c = V_CS + 4 * t
                a(f"v_mfma_f32_16x16x32_bf16 {vr(c)}, {w13(kb,t)}, {vr(ONE)}, {vr(c)}")
        if tr and x == 0:
            a(f"v_mfma_f32_16x16x32_bf16 {vr(SA)}, {vr(ONE)}, {vr(B)}, {'0' if kb == 0 else vr(SA)}")
            a(f"v_mfma_f32_16x16x32_bf16 {vr(SG)}, {vr(B)}, {vr(B)}, {'0' if kb == 0 else vr(SG)}")
    if tr:
        a(f"""v_and_b32 v4, 3, v2
        v_cmp_eq_u32 vcc, 1, v4
        v_cndmask_b32 v23, v{SG}, v{SG+1}, vcc
        v_cmp_eq_u32 vcc, 2, v4
        v_cndmask_b32 v23, v23, v{SG+2}, vcc
        v_cmp_eq_u32 vcc, 3, v4
        v_cndmask_b32 v23, v23, v{SG+3}, vcc
        v_mov_b32 v22, v{SA}""")
        ln_core(a, 22, 23)
        a(f"""v_lshrrev_b32 v4, 2, v2
        v_cmp_eq_u32 vcc, v4, v3
        s_and_saveexec_b64 s[38:39], vcc""")
        stats_write(a, sb, 22, 23)
        a("s_mov_b64 exec, s[38:39]\ns_waitcnt lgkmcnt(0)\ns_barrier")

def g1_epi(a, sb):
    so = sb * 1024
    for x in range(4): a(f"ds_read_b32 v{V_T+2*x}, v{15+x} offset:{8+so}")
    for p in range(2): a(f"ds_read_b64 v[{V_T+8+2*p}:{V_T+9+2*p}], v{19+p} offset:{so}")
    a("s_waitcnt lgkmcnt(0)")
    A = lambda x, t: V_ACC + (x * 3 + t) * 4
    for t in range(3):
        cs = V_CS + 4 * t
        for x in range(4):
            for h in range(2):
                r = A(x, t) + 2 * h
                a(f"v_pk_fma_f32 v[{r}:{r+1}], v[{cs+2*h}:{cs+2*h+1}], v[{V_T+2*x}:{V_T+2*x+1}], v[{r}:{r+1}] op_sel_hi:[1,0,1]")
    for t in range(3):
        for p in range(2):
            for r in range(4): a(f"v_permlane32_swap_b32 v{A(2*p,t)+r}, v{A(2*p+1,t)+r}")
    for p in range(2):
        c1 = V_T + 8 + 2 * p
        T = lambda t: V_XB + 4 * t
        for t in range(3):
            for h in range(2):
                a(f"v_pk_mul_f32 v[{T(t)+2*h}:{T(t)+2*h+1}], v[{A(2*p,t)+2*h}:{A(2*p,t)+2*h+1}], v[{c1}:{c1+1}] op_sel_hi:[1,0]")
        for t in range(3):
            for r in range(4): a(f"v_exp_f32 v{T(t)+r}, v{T(t)+r}")
        for t in range(3):
            for h in range(2):
                g, u = A(2*p, t) + 2 * h, A(2*p+1, t) + 2 * h
                a(f"v_pk_mul_f32 v[{g}:{g+1}], v[{g}:{g+1}], v[{u}:{u+1}]")
        for t in range(3):
            for h in range(2):
                a(f"v_pk_fma_f32 v[{T(t)+2*h}:{T(t)+2*h+1}], v[{T(t)+2*h}:{T(t)+2*h+1}], v[{c1}:{c1+1}], v[{c1}:{c1+1}] op_sel:[0,1,1] op_sel_hi:[1,1,1]")
        for t in range(3):
            for r in range(4): a(f"v_rcp_f32 v{T(t)+r}, v{T(t)+r}")
        for t in range(3):
            for h in range(2):
                g = A(2*p, t) + 2 * h
                a(f"v_pk_mul_f32 v[{g}:{g+1}], v[{g}:{g+1}], v[{T(t)+2*h}:{T(t)+2*h+1}]")
        for t in range(3):
            g = A(2*p, t); u = A(2*p+1, t)
            a(f"""v_cvt_pk_bf16_f32 v{u}, v{g}, v{g+1}
            v_cvt_pk_bf16_f32 v{u+1}, v{g+2}, v{g+3}""")
        for t in range(3):
            u = A(2*p+1, t)
            a(f"buffer_store_dwordx2 v[{u}:{u+1}], v{12+p}, {WSR}, s{52+t} offen {LS('h')}")
def g1_next(a):
    for x in range(4): a(f"v_add_u32 v{8+x}, 0x10000, v{8+x}")
    for p in range(2): a(f"v_add_u32 v{12+p}, {4*HT}, v{12+p}")

def emit_g2(a, layer, hbase, etagA, st):
    ACC = V_ACC
    acc = lambda dt, x: ACC + (x * 4 + dt) * 4
    for x in range(4):
        a(f"""s_add_u32 s36, s{S_W}, {x}
        s_and_b32 s36, s36, 3
        s_lshl_b32 s37, s20, 3
        s_add_u32 s36, s36, s37
        s_lshl_b32 s37, s22, 2
        s_add_u32 s36, s36, s37
        s_mul_i32 s36, s36, {HT}
        s_mul_i32 s37, s{S_W}, {11*1024}
        s_add_u32 s36, s36, s37
        s_add_u32 s{56+x}, s36, {hbase}
        s_cmp_eq_u32 s{S_W}, 3
        s_cselect_b32 s{60+x}, {INV}, s{56+x}""")
    a(f"""s_lshl_b32 s51, s{S_W}, 15
    v_lshrrev_b32 v2, 4, v1
    v_and_b32 v3, 15, v1
    v_lshlrev_b32 v8, 7, v2
    v_lshl_add_u32 v8, v3, 3, v8
    v_add_u32 v8, s51, v8
    s_add_u32 s50, s{S_GEN}, s22
    s_add_u32 s50, s50, {etagA}""")
    def su():
        member_flag_off(a, 9, "0", 16)
    wg_wait(a, su, 9, 1, None, V_HB, etag=50)
    stamp(a, st)
    AHEAD = 4
    def dma1(i, x):
        a(f"""s_add_u32 s36, s{(60 if i == 10 else 56)+x}, {i*1024}
        s_add_u32 m0, s51, {(i % 8)*4096 + x*1024}
        buffer_load_dwordx4 v31, {WSR}, s36 offen sc1 lds""")
    for i in range(AHEAD):
        for x in range(4): dma1(i, x)
    def rd(n):
        i, x = n >> 2, n & 3
        B = V_HB + 4 * x; off = (i % 8) * 4096 + x * 1024
        return [f"ds_read_b64 v[{B}:{B+1}], v8 offset:{off}", f"ds_read_b64 v[{B+2}:{B+3}], v8 offset:{off+512}"]
    issued = AHEAD * 4
    def vmwait(n): a(f"s_waitcnt vmcnt({issued - 1 - n})")
    vmwait(2)
    stamp(a, st + 1)
    for n in range(3):
        for op in rd(n): a(op)
    for n in range(44):
        i, x = n >> 2, n & 3
        infl = min(2, 43 - n)
        a(f"s_waitcnt lgkmcnt({infl*2})")
        B = V_HB + 4 * x
        for dt in range(4):
            c = acc(dt, x)
            a(f"v_mfma_f32_16x16x32_bf16 {vr(c)}, {w2(i,dt)}, {vr(B)}, {'0' if i == 0 else vr(c)}")
            if dt == 0 and n + 3 < 44:
                vmwait(n + 3)
                for op in rd(n + 3): a(op)
            if dt == 2 and issued < 44:
                dma1(issued >> 2, issued & 3); issued += 1
    stamp(a, st + 2)
    a(f"v_add_u32 v9, s51, v31")
    for x in range(1, 4):
        for dt in range(4):
            a(f"ds_write_b128 v9, {vr(acc(dt,x))} offset:{((x-1)*4+dt)*1024}")
    for x in range(1, 4):
        a(f"""s_sub_u32 s36, s{S_W}, {x}
        s_and_b32 s36, s36, 3
        s_lshl_b32 s36, s36, 15
        v_add_u32 v{9+x}, s36, v31""")
    a("s_waitcnt lgkmcnt(0)\ns_barrier")
    for x in range(1, 4):
        for dt in range(4):
            a(f"ds_read_b128 {vr(acc(dt,x))}, v{9+x} offset:{((x-1)*4+dt)*1024}")
    if layer == 1:
        a(f"""v_bfe_u32 v4, v1, 2, 2
        v_lshl_add_u32 v4, v2, 4, v4
        v_lshlrev_b32 v4, 7, v4
        v_and_b32 v5, 3, v1
        v_lshl_add_u32 v4, v5, 3, v4
        s_lshl_b32 s36, s{S_W}, 5
        s_add_u32 s36, s36, {L_TX}
        v_add_u32 v4, s36, v4""")
        P = V_HB; Yp = V_HB + 8
        for dt in range(4):
            a(f"ds_read_b64_tr_b16 v[{P+2*dt}:{P+2*dt+1}], v4 offset:{dt*512}")
        for dt in range(4):
            a(f"ds_read_b64_tr_b16 v[{Yp+2*dt}:{Yp+2*dt+1}], v4 offset:{8192+dt*512}")
        nl = 8
    else:
        P = V_X3; nl = 0
    for x in range(1, 4):
        a(f"s_waitcnt lgkmcnt({min(15, (3-x)*4 + nl)})")
        for dt in range(4):
            for h in range(2):
                c, o = acc(dt, 0) + 2 * h, acc(dt, x) + 2 * h
                a(f"v_pk_add_f32 v[{c}:{c+1}], v[{c}:{c+1}], v[{o}:{o+1}]")
    stamp(a, st + 3)
    O = ACC; X = ACC + 16; PK = ACC + 48
    a("s_waitcnt lgkmcnt(0)")
    for k in range(8):
        a(f"v_lshlrev_b32 v{X+2*k}, 16, v{P+k}\nv_and_b32 v{X+2*k+1}, 0xffff0000, v{P+k}")
    for k in range(8): a(f"v_cvt_pk_bf16_f32 v{PK+k}, v{O+2*k}, v{O+2*k+1}")
    for k in range(8):
        a(f"v_lshlrev_b32 v{O+2*k}, 16, v{PK+k}\nv_and_b32 v{O+2*k+1}, 0xffff0000, v{PK+k}")
    for k in range(8):
        a(f"v_pk_add_f32 v[{O+2*k}:{O+2*k+1}], v[{O+2*k}:{O+2*k+1}], v[{X+2*k}:{X+2*k+1}]")
    for k in range(8): a(f"v_cvt_pk_bf16_f32 v{PK+k}, v{O+2*k}, v{O+2*k+1}")
    if layer == 2:
        a(f"""s_load_dwordx2 s[32:33], s[0:1], {ARG['out']}
        s_lshl_b32 s36, s20, 7
        s_lshl_b32 s37, s22, 6
        s_add_u32 s36, s36, s37
        s_lshl_b32 s37, s{S_W}, 4
        s_add_u32 s36, s36, s37
        s_lshl_b32 s36, s36, 10
        s_lshl_b32 s37, s23, 7
        s_add_u32 s36, s36, s37
        v_lshlrev_b32 v4, 10, v3
        v_lshl_add_u32 v4, v2, 5, v4
        s_waitcnt lgkmcnt(0)
        s_mov_b32 s34, {S*D*2}
        s_mov_b32 s35, 0x20000
        buffer_store_dwordx4 {vr(PK)}, v4, s[32:35], s36 offen
        buffer_store_dwordx4 {vr(PK+4)}, v4, s[32:35], s36 offen offset:16""")
        return
    a(f"v_mov_b32 v22, 0\nv_mov_b32 v23, 0\nv_mov_b32 v21, 0x3f803f80\nv_mov_b32 v26, 0\nv_mov_b32 v27, 0")
    for k in range(0, 8, 2):
        a(f"""v_dot2_f32_bf16 v22, v{PK+k}, v21, v22
        v_dot2_f32_bf16 v23, v{PK+k}, v{PK+k}, v23
        v_dot2_f32_bf16 v26, v{PK+k+1}, v21, v26
        v_dot2_f32_bf16 v27, v{PK+k+1}, v{PK+k+1}, v27""")
    a("v_add_f32 v22, v22, v26\nv_add_f32 v23, v23, v27")
    a(f"""v_mov_b32 v24, v22
    v_mov_b32 v25, v23
    v_permlane16_swap_b32 v22, v24
    v_permlane16_swap_b32 v23, v25
    v_add_f32 v22, v22, v24
    v_add_f32 v23, v23, v25
    v_mov_b32 v24, v22
    v_mov_b32 v25, v23
    v_permlane32_swap_b32 v22, v24
    v_permlane32_swap_b32 v23, v25
    v_add_f32 v22, v22, v24
    v_add_f32 v23, v23, v25""")
    L = a.newlabel("hop")
    a(f"""s_add_u32 s50, s{S_GEN}, 12
    v_mov_b32 v24, s50
    v_mov_b32 v25, 0
    s_lshl_b32 s36, s20, 1
    s_add_u32 s36, s36, s22
    s_lshl_b32 s36, s36, 13
    s_lshl_b32 s37, s{S_W}, 8
    s_add_u32 s36, s36, s37
    s_add_u32 s36, s36, {WS['SYNC'] + SYNC_ST2}
    s_lshl_b32 s37, s23, 10
    s_add_u32 s37, s37, s36
    v_lshlrev_b32 v4, 4, v3
    s_mov_b64 exec, 0xffff""")
    dstore(a, f"buffer_store_dwordx4 v[22:25], v4, {WSR}, s37 offen {{F}}")
    a(f"""s_mov_b64 exec, -1
    v_lshl_add_u32 v5, v2, 11, v4""")
    for k in range(8):
        a(f"v_lshlrev_b32 v{X+2*k}, 16, v{PK+k}\nv_and_b32 v{X+2*k+1}, 0xffff0000, v{PK+k}")
    a(f"""s_mov_b32 s38, 0
    {L}_p:
    buffer_load_dwordx4 v[{O}:{O+3}], v5, {WSR}, s36 offen sc1
    buffer_load_dwordx4 v[{O+4}:{O+7}], v5, {WSR}, s36 offen offset:1024 sc1
    s_add_u32 s38, s38, 1
    s_waitcnt vmcnt(0)
    v_cmp_eq_u32 vcc, s50, v{O+2}
    v_cmp_eq_u32 s[40:41], s50, v{O+6}
    s_and_b64 vcc, vcc, s[40:41]
    s_cmp_gt_u32 s38, 200000
    s_cbranch_scc1 {L}_d
    s_cmp_eq_u64 vcc, -1
    s_cbranch_scc0 {L}_p
    {L}_d:
    v_add_f32 v22, v{O}, v{O+4}
    v_add_f32 v23, v{O+1}, v{O+5}
    v_mov_b32 v24, v22
    v_mov_b32 v25, v23
    v_permlane16_swap_b32 v22, v24
    v_permlane16_swap_b32 v23, v25
    v_add_f32 v22, v22, v24
    v_add_f32 v23, v23, v25
    v_mov_b32 v24, v22
    v_mov_b32 v25, v23
    v_permlane32_swap_b32 v22, v24
    v_permlane32_swap_b32 v23, v25
    v_add_f32 v22, v22, v24
    v_add_f32 v23, v23, v25""")
    ln_core(a, 22, 23)
    a(f"""v_rcp_f32 v24, v23
    v_sub_f32 v22, 0, v22
    v_mul_f32 v26, v22, v24""")
    Yf = ACC
    for k in range(8):
        a(f"v_lshlrev_b32 v{Yf+2*k}, 16, v{Yp+k}\nv_and_b32 v{Yf+2*k+1}, 0xffff0000, v{Yp+k}")
    N = ACC + 32
    for k in range(8):
        a(f"v_pk_fma_f32 v[{N+2*k}:{N+2*k+1}], v[{X+2*k}:{X+2*k+1}], v[24:25], v[26:27] op_sel_hi:[1,0,0]")
    for k in range(8):
        a(f"v_pk_fma_f32 v[{N+2*k}:{N+2*k+1}], v[{N+2*k}:{N+2*k+1}], v[{Yf+2*k}:{Yf+2*k+1}], v[{X+2*k}:{X+2*k+1}]")
    for k in range(8):
        a(f"v_cvt_pk_bf16_f32 v{V_X3+k}, v{N+2*k}, v{N+2*k+1}")
    a(f"""s_lshl_b32 s36, s20, 3
    s_lshl_b32 s37, s22, 2
    s_add_u32 s36, s36, s37
    s_add_u32 s36, s36, s{S_W}
    s_lshl_b32 s38, s36, 10
    s_lshl_b32 s36, s36, 14
    s_lshl_b32 s37, s23, 11
    s_add_u32 s36, s36, s37
    s_add_u32 s36, s36, {WS['X3']}""")
    dstore(a, f"""buffer_store_dwordx4 {vr(V_X3)}, v31, {WSR}, s36 offen {{F}}
    buffer_store_dwordx4 {vr(V_X3+4)}, v31, {WSR}, s36 offen offset:1024 {{F}}""", "x3")
    a(f"v_mov_b32 v22, 0\nv_mov_b32 v23, 0\nv_mov_b32 v26, 0\nv_mov_b32 v27, 0")
    for k in range(0, 8, 2):
        a(f"""v_dot2_f32_bf16 v22, v{V_X3+k}, v21, v22
        v_dot2_f32_bf16 v23, v{V_X3+k}, v{V_X3+k}, v23
        v_dot2_f32_bf16 v26, v{V_X3+k+1}, v21, v26
        v_dot2_f32_bf16 v27, v{V_X3+k+1}, v{V_X3+k+1}, v27""")
    a(f"""v_add_f32 v22, v22, v26
    v_add_f32 v23, v23, v27
    v_mov_b32 v24, v22
    v_mov_b32 v25, v23
    v_permlane16_swap_b32 v22, v24
    v_permlane16_swap_b32 v23, v25
    v_add_f32 v22, v22, v24
    v_add_f32 v23, v23, v25
    v_mov_b32 v24, v22
    v_mov_b32 v25, v23
    v_permlane32_swap_b32 v22, v24
    v_permlane32_swap_b32 v23, v25
    v_add_f32 v22, v22, v24
    v_add_f32 v23, v23, v25
    s_lshl_b32 s37, s23, 7
    s_add_u32 s38, s38, s37
    s_add_u32 s38, s38, {WS['SYNC'] + SYNC_ST3}
    v_lshlrev_b32 v4, 3, v3
    s_mov_b64 exec, 0xffff""")
    dstore(a, f"buffer_store_dwordx2 v[22:23], v4, {WSR}, s38 offen {{F}}")
    a("s_mov_b64 exec, -1")

NW13A = 12
NW13B = 27
PACE = 5
CHK = 1
FINE = None
PROBE = None
CODEPF = True
DBG = 0
def build():
    a = Asm()
    global stamp
    if FINE:
        real = common.stamp
        def stamp_(a_, i):
            if i == 0: real(a_, 0)
        stamp = stamp_
        globals()['fstamp'] = real
    else:
        globals()['fstamp'] = lambda a_, i: None
    kbegin(a, KN)
    emit_prologue(a)
    emit_prep_loads(a)
    if CODEPF:
        a(f"""s_getpc_b64 s[68:69]
        L_pc:
        s_sub_u32 s68, s68, L_pc-{KN}
        s_subb_u32 s69, s69, 0
        v_lshlrev_b32 v190, 7, v0
        v_add_u32 v191, 0x8000, v190
        v_min_u32 v191, L_codeend-{KN}-4, v191
        global_load_dword v188, v190, s[68:69]
        global_load_dword v189, v191, s[68:69]""")
    a("s_waitcnt lgkmcnt(0)")
    a(f"""s_getreg_b32 s36, hwreg(HW_REG_XCC_ID, 0, 4)
    s_add_u32 s{S_IDW}, s{S_GEN}, 13
    s_lshl_b32 s{S_IDW}, s{S_IDW}, 4
    s_or_b32 s{S_IDW}, s{S_IDW}, s36
    s_mov_b32 s{S_LOC}, 0
    s_cmp_lg_u32 s{S_W}, 0
    s_cbranch_scc1 L_noid
    v_mov_b32 v174, s{S_IDW}
    v_mov_b32 v175, s{S_FLAG}
    s_mov_b64 exec, 1
    buffer_store_dword v174, v175, {WSR}, 0 offen offset:4 sc1
    s_mov_b64 exec, -1
    L_noid:""")
    emit_prep_compute(a)
    emit_ffn_roles(a)
    w13ops = [f"s_add_u32 s36, s{40+t}, {kb*1024}\nbuffer_load_dwordx4 {w13(kb,t)}, v31, {WSR}, s36 offen sc1" for kb in range(16) for t in range(3)]
    hooks = dict(conv_loop_extra=w13ops[:NW13A], n_conv_total_w=NW13A)
    emit_conv(a, hooks)
    signal(a, 3)
    stamp(a, 9)
    a("v_and_b32 v1, 63, v0")
    for op in w13ops[NW13A:NW13B]: a(op)
    emit_cs(a, NW13A // 3)
    def su3():
        a(f"v_lshlrev_b32 v9, 6, v1\nv_add_u32 v9, {WS['SYNC'] + SYNC_FLAGS}, v9")
    wg_wait(a, su3, 9, 4, 3, V_T)
    stamp(a, 10)
    x1_dma_setup(a)
    x1h0 = x1_dma_ops(0)
    for op in x1h0[:9]: a(op)
    x1h0 = x1h0[9:]
    g1_addr(a, 1, WS['H1'])
    a(f"s_waitcnt vmcnt(0)\ns_barrier")
    stamp(a, 11)
    kb0 = NW13A // 3
    kbC = NW13B // 3
    x1h1 = x1_dma_ops(1)
    w13c = [(w13ops[kb * 3 + t], ('w', kb)) for kb in range(kbC, 16) for t in range(3)]
    queue = [(op, ('x0', 0)) for op in x1h0] + w13c + [(x1h1[0], None)] + [(op, ('x1', 0)) for op in x1h1[1:]]
    issue_log = []
    def need(tag):
        pos = max(i for i, e in enumerate(issue_log) if e == tag)
        a(f"s_waitcnt vmcnt({len(issue_log) - 1 - pos})")
    def hookA(kb):
        if FINE == 'A': fstamp(a, 1 + kb)
        if kb == 7:
            need(('x0', 0)); a("s_barrier")
        if kb >= kbC: need(('w', kb))
        n = 4 if kb < 2 else 3
        while n > 0 and queue:
            op, tag = queue.pop(0)
            a(op)
            if tag is not None:
                issue_log.append(tag); n -= 1
        if kb == 15:
            while queue:
                op, tag = queue.pop(0); a(op)
                if tag is not None: issue_log.append(tag)
    g1_sub(a, 1, 0, hookA, cs_from=kb0)
    a("s_waitcnt vmcnt(0)\ns_barrier")
    if FINE == 'A': fstamp(a, 17)
    nw2 = 0
    tiles_dma(a)
    a("v_and_b32 v2, 15, v1\nv_lshrrev_b32 v3, 4, v1")
    stamp(a, 12)
    g1_epi(a, 0)
    g1_next(a)
    stamp(a, 13)
    def hookB(kb):
        if FINE == 'B': fstamp(a, 1 + kb)
        if kb == 5: signal(a, 4, tv=(22, 23), local=True)
        lo = nw2 + 4 * (kb - 5)
        if kb >= 5 and lo < 44: w2_loads(a, lo, min(44, lo + 4))
    g1_sub(a, 1, 1, hookB)
    g1_epi(a, 1)
    signal(a, 5, local=True)
    stamp(a, 14)
    emit_g2(a, 1, WS['H1'], 4, 15)
    signal(a, 6, local=True)
    stamp(a, 19)
    def su6a(): member_flag_off(a, 9, "0", 8)
    wg_wait(a, su6a, 9, 1, 6, V_T)
    stamp(a, 20)
    st3_stats(a, 0)
    x3h0 = x3_dma_ops(0)
    for op in x3h0[:9]: a(op)
    x3h0 = x3h0[9:]
    g1_addr(a, 2, WS['H2'])
    a("s_waitcnt vmcnt(8)")
    st3_finish(a, 0)
    a("s_waitcnt vmcnt(0) lgkmcnt(0)\ns_barrier")
    stamp(a, 21)
    x3h1 = x3_dma_ops(1)
    def hookA2(kb):
        if kb == 0:
            member_flag_off(a, 26, "8", 8)
            a(f"buffer_load_dword v28, v26, {WSR}, 0 offen sc1")
        if kb < 4:
            a(x3h0.pop(0)); a(x3h0.pop(0))
        if kb == 6:
            L = a.newlabel("x3b")
            a(f"""s_waitcnt vmcnt(8)
            s_add_u32 s37, s{S_GEN}, 6
            v_subrev_u32 v28, s37, v28
            v_cmp_gt_u32 vcc, 16, v28
            s_cmp_eq_u64 vcc, -1
            s_cbranch_scc1 {L}""")
            wait_flags(a, 26, 1, 6, 28)
            a.label(L)
            st3_stats(a, 1)
            a(x3h1.pop(0))
        if kb == 7:
            a("s_waitcnt vmcnt(4)\ns_barrier")
        if 6 <= kb < 14:
            a(x3h1.pop(0)); a(x3h1.pop(0))
        if kb == 15:
            a("s_waitcnt vmcnt(0)")
            st3_finish(a, 1)
    g1_sub(a, 2, 0, hookA2)
    a("s_waitcnt lgkmcnt(0)\ns_barrier")
    a("v_and_b32 v2, 15, v1\nv_lshrrev_b32 v3, 4, v1")
    stamp(a, 22)
    g1_epi(a, 0)
    g1_next(a)
    def hookB2(kb):
        if kb == 10: signal(a, 7, tv=(22, 23), local=True)
    g1_sub(a, 2, 1, hookB2)
    g1_epi(a, 1)
    signal(a, 8, local=True)
    stamp(a, 23)
    emit_g2(a, 2, WS['H2'], 7, 24)
    a(f"""s_or_b32 s36, s2, s{S_W}
    s_cmp_lg_u32 s36, 0
    s_cbranch_scc1 L_nogen
    s_add_u32 s36, s{S_GEN}, 16
    v_mov_b32 v2, s36
    v_mov_b32 v3, {WS['SYNC'] + SYNC_GEN}
    s_mov_b64 exec, 1
    buffer_store_dword v2, v3, {WSR}, 0 offen
    s_mov_b64 exec, -1
    L_nogen:""")
    if PROBE is not None:
        pa, pb, K = PROBE
        a(f"""s_waitcnt vmcnt(0) lgkmcnt(0)
        s_memrealtime s[70:71]
        s_waitcnt lgkmcnt(0)
        s_mov_b32 s100, s70
        s_or_b32 s36, s2, s{S_W}
        s_cmp_lg_u32 s36, 0
        s_cbranch_scc1 L_end
        s_sub_u32 s36, s{72+pb if pb < 28 else 100}, s{72+pa}
        s_mul_i32 s36, s36, {K}
        s_add_u32 s36, s36, s100
        L_spin:
        s_memrealtime s[70:71]
        s_waitcnt lgkmcnt(0)
        s_sub_u32 s37, s70, s36
        s_cmp_lt_i32 s37, 0
        s_cbranch_scc1 L_spin
        s_branch L_end""")
    if common.STAMPS:
        a("s_waitcnt vmcnt(0)"); stamp(a, 28)
    if DBG:
        sel = [1, 2, 3, 4, 5, 6, 7, 9, 10, 11, 14, 15, 19, 21, 23, 28]
        a(f"""s_cmp_lg_u32 s2, {DBG - 1}
        s_cbranch_scc1 L_end
        s_cmp_lg_u32 s{S_W}, 0
        s_cbranch_scc1 L_end
        s_load_dwordx2 s[68:69], s[0:1], {ARG['dbg']}
        s_waitcnt lgkmcnt(0)
        s_mov_b64 exec, 1""")
        for i, k in enumerate(sel):
            a(f"s_sub_u32 s70, s{72+k}, s72\nv_mov_b32 v2, s70\nv_mov_b32 v3, {4*i}\nglobal_store_dword v3, v2, s[68:69]")
    else:
        stamp_flush(a, 0, 29)
    a.label("L_end")
    a("s_endpgm")
    a.label("L_codeend")
    a("s_endpgm")
    txt = header([(None, 256, 256, LDS_TOTAL)]) + a.text() + kernel_desc(KN, 512, 102, 256)
    return txt, a
if __name__ == "__main__":
    common.STAMPS = 's' in sys.argv[2:]
    LOCAL = any(x.startswith('l') for x in sys.argv[2:])
    for x in sys.argv[2:]:
        if x.startswith('l'): LOCSET.update(['flag'] + x[1:].split('+'))
    HALF = 'h' in sys.argv[2:]
    for x in sys.argv[2:]:
        if x.startswith('p:'): PROBE = tuple(int(y) for y in x[2:].split(','))
    CODEPF = 'nopf' not in sys.argv[2:]
    DBG = max([int(x[1:]) + 1 for x in sys.argv[2:] if x[0] == 'd' and x[1:].isdigit()] + [0])
    FINE = 'A' if 'fa' in sys.argv[2:] else ('B' if 'fb' in sys.argv[2:] else None)
    txt, a = build()
    open(sys.argv[1], "w").write(txt)
    print("nops:", a.nnop, "bytes", len(txt))
```

```python
import re

TRANS = ("v_exp_f32", "v_log_f32", "v_rcp_f32", "v_rsq_f32", "v_sqrt_f32", "v_sin_f32", "v_cos_f32", "v_rcp_iflag_f32")
RMW = ("v_fmac_", "v_dot2c_", "v_pk_fmac", "v_writelane", "v_mac_")
NOCOUNT = ()

def split_ops(s):
    out, depth, cur = [], 0, ""
    for ch in s:
        if ch in "[(": depth += 1
        if ch in "])": depth -= 1
        if ch == "," and depth == 0:
            out.append(cur.strip()); cur = ""
        else:
            cur += ch
    if cur.strip(): out.append(cur.strip())
    return out

REG = re.compile(r"^-?\|?(?:abs\()?([vas])(?:(\d+)|\[(\d+):(\d+)\])\)?\|?$")
def regs(tok):
    tok = tok.strip().split(" ")[0]
    if tok in ("vcc",): return {("s", 106), ("s", 107)}
    if tok == "vcc_lo": return {("s", 106)}
    if tok == "vcc_hi": return {("s", 107)}
    if tok == "exec": return {("s", 126), ("s", 127)}
    if tok == "m0": return {("s", 124)}
    m = REG.match(tok)
    if not m: return set()
    k = m.group(1)
    if m.group(2) is not None: return {(k, int(m.group(2)))}
    return {(k, i) for i in range(int(m.group(3)), int(m.group(4)) + 1)}

class Ins:
    __slots__ = ("text", "mn", "cls", "defs", "uses", "passes", "srcc", "dpp", "wide_store", "ops", "lds_dma", "ab")
    def __init__(self, text):
        self.text = text
        t = text.split(";")[0].strip()
        parts = t.split(None, 1)
        self.mn = mn = parts[0]
        rest = parts[1] if len(parts) > 1 else ""
        ops = split_ops(rest)
        self.ops = ops
        self.defs, self.uses = set(), set()
        self.passes = 0; self.srcc = set(); self.ab = set(); self.dpp = False; self.wide_store = set(); self.lds_dma = False
        R = [regs(o) for o in ops]
        if mn.startswith("v_mfma"):
            self.cls = "mfma"
            self.passes = 8 if "32x32" in mn else 4
            self.defs = R[0]; self.ab = R[1] | R[2]; self.srcc = R[3]; self.uses = self.ab | self.srcc
        elif mn.startswith("v_"):
            self.cls = "trans" if mn.replace("_e32", "").replace("_e64", "") in TRANS else "valu"
            self.dpp = "_dpp" in mn or "row_" in t or "quad_perm" in t or "wave_sh" in t
            nd = 1
            if re.match(r"v_(add|sub|subrev|addc|subb)_co", mn) or mn.startswith("v_mad_u64") or mn.startswith("v_div_scale"): nd = 2
            if mn.startswith("v_permlane") and "swap" in mn:
                self.defs = R[0] | R[1]; self.uses = R[0] | R[1]
            else:
                for r in R[:nd]: self.defs |= r
                for r in R[nd:]: self.uses |= r
                if mn.startswith(RMW) or self.dpp or "_sdwa" in mn: self.uses |= R[0]
                if mn.startswith("v_cndmask") and len(ops) == 3: self.uses |= regs("vcc")
                if mn.startswith("v_cmpx"): self.defs |= regs("exec")
            if mn.startswith("v_cndmask") and len(ops) >= 4: pass
        elif mn.startswith(("buffer_", "global_", "flat_", "scratch_")):
            self.cls = "vmem"
            is_lds = bool(re.search(r"\blds\b", t)) or "_lds_" in mn
            self.lds_dma = is_lds
            if "load" in mn and not is_lds:
                self.defs = R[0]
                for r in R[1:]: self.uses |= r
            elif "atomic" in mn and re.search(r"\bsc0\b", t):
                self.defs = R[0]
                for r in R[1:]: self.uses |= r
            else:
                for r in R: self.uses |= r
                if "store" in mn and ("x4" in mn or "x3" in mn):
                    self.wide_store = R[0] if mn.startswith("buffer_") else R[1]
            if is_lds: self.uses |= regs("m0")
        elif mn.startswith("ds_"):
            self.cls = "ds"
            if mn.startswith(("ds_read", "ds_bpermute", "ds_permute", "ds_swizzle")):
                self.defs = R[0]
                for r in R[1:]: self.uses |= r
            else:
                for r in R: self.uses |= r
        elif mn.startswith(("s_load", "s_buffer_load", "s_memtime", "s_memrealtime")):
            self.cls = "smem"; self.defs = R[0]
            for r in R[1:]: self.uses |= r
        elif mn in ("s_waitcnt", "s_nop", "s_barrier", "s_endpgm", "s_setprio", "s_sleep"):
            self.cls = "misc"
        elif mn.startswith(("s_cbranch", "s_branch", "s_setpc", "s_swappc", "s_call")):
            self.cls = "branch"
        elif mn.startswith("s_"):
            self.cls = "salu"
            if mn.startswith("s_cmp") or mn.startswith("s_bitcmp"):
                for r in R: self.uses |= r
            else:
                self.defs = R[0] if R else set()
                for r in R[1:]: self.uses |= r
                if "saveexec" in mn: self.defs |= regs("exec"); self.uses |= regs("exec")
        else:
            raise ValueError("unknown instr: " + text)
    def states(self):
        if self.mn == "s_nop": return int(self.ops[0], 0) + 1
        return 1

def need(p, c):
    n = 0
    pv = {r for r in p.defs if r[0] in "va"}
    ps = {r for r in p.defs if r[0] == "s"}
    if p.cls in ("valu", "trans"):
        if pv:
            if c.cls == "mfma" and pv & c.uses: n = max(n, 2)
            if c.cls in ("valu", "trans"):
                if c.mn.startswith(("v_readlane", "v_readfirstlane")) and pv & c.uses: n = max(n, 1)
                if c.mn.startswith("v_permlane") and pv & c.uses: n = max(n, 2)
                if c.dpp and pv & c.uses: n = max(n, 2)
            if p.cls == "trans" and c.cls in ("valu", "vmem", "ds") and pv & c.uses: n = max(n, 1)
            if p.cls == "trans" and c.cls == "trans" and pv & c.uses: n = max(n, 1)
        if ps:
            if c.cls in ("valu", "trans") and ps & c.uses: n = max(n, 4 if c.mn.startswith(("v_readlane", "v_writelane")) else 2)
            if c.cls in ("vmem", "smem") and ps & c.uses: n = max(n, 5)
            if c.cls in ("salu", "branch") and (ps & c.uses or c.cls == "branch" and "vcc" in c.mn): n = max(n, 2)
            if c.cls == "salu" and c.mn.startswith("s_cmp") and ps & c.uses: n = max(n, 2)
    if p.mn.startswith("v_dot"):
        if c.mn == p.mn:
            srcab = regs(c.ops[1]) | regs(c.ops[2])
            if p.defs & srcab: n = max(n, 3)
        elif p.defs & (c.uses | c.defs): n = max(n, 3)
    if p.cls == "mfma":
        big = {4: 8, 8: 12}[p.passes]
        if c.cls == "mfma":
            if p.defs & c.ab: n = max(n, big)
            if p.defs & c.srcc:
                if not (c.srcc == p.defs and c.passes == p.passes): n = max(n, {4: 6, 8: 10}[p.passes])
            elif p.defs & c.defs: n = max(n, {4: 6, 8: 10}[p.passes])
        elif c.cls in ("valu", "trans"):
            if p.defs & (c.uses | c.defs): n = max(n, big)
            if p.srcc & c.defs: n = max(n, {4: 3, 8: 7}[p.passes])
        elif c.cls in ("vmem", "ds"):
            if p.defs & (c.uses | c.defs): n = max(n, big)
    if p.cls == "salu" and ("s", 124) in p.defs and (c.lds_dma or "addtid" in c.mn): n = max(n, 1)
    if p.cls == "vmem" and p.wide_store:
        if c.cls in ("valu", "trans") and p.wide_store & c.defs: n = max(n, 2)
        elif c.cls in ("ds", "vmem", "mfma") and p.wide_store & c.defs: n = max(n, 1)
    return n

def worst(p):
    if p.cls == "mfma": return {4: 8, 8: 12}[p.passes]
    if p.cls in ("valu", "trans"):
        if any(r[0] == "s" for r in p.defs): return 5
        return 3 if p.mn.startswith("v_dot") else 2
    if p.cls == "salu" and ("s", 124) in p.defs: return 1
    if p.cls == "vmem" and p.wide_store: return 2
    return 0

class Asm:
    def __init__(self):
        self.items = []
        self.uid = 0
        self.vmlog = []
        self.tag = None
        self.nolog = 0
    def vmneed(self, tag, extra_text=""):
        pos = max(i for i, t in enumerate(self.vmlog) if t == tag)
        n = len(self.vmlog) - 1 - pos
        assert n <= 63, n
        self(f"s_waitcnt vmcnt({n})" + extra_text)
        return n
    def __call__(self, text):
        for ln in text.split("\n"):
            ln = ln.strip()
            if not ln or ln.startswith(";"): continue
            if ln.endswith(":"): self.items.append(("l", ln[:-1]))
            elif ln.startswith("."): self.items.append(("r", ln))
            else:
                ins = Ins(ln)
                self.items.append(("i", ins))
                if ins.cls == "vmem" and not self.nolog and not ins.mn.startswith(("buffer_wbl2", "buffer_inv")): self.vmlog.append(self.tag)
    def label(self, name): self.items.append(("l", name))
    def raw(self, text): self.items.append(("r", text))
    def newlabel(self, base="L"):
        self.uid += 1
        return f"{base}_{self.uid}"
    def text(self):
        out = []; win = []
        nnop = 0
        def pad(n):
            nonlocal nnop
            while n > 0:
                k = min(n, 16)
                out.append(f"    s_nop {k-1}")
                for w in win: w[1] += k
                n -= k; nnop += 1
        for kind, it in self.items:
            if kind == "r":
                out.append(it); continue
            if kind == "l":
                pad(max([worst(p) - d for p, d in win] + [0])); win.clear()
                out.append(it + ":"); continue
            req = max([need(p, it) - d for p, d in win] + [0])
            if it.cls == "branch":
                req = max(req, max([worst(p) - d - 1 for p, d in win] + [0]))
            pad(req)
            out.append("    " + it.text)
            st = it.states()
            for w in win: w[1] += st
            win[:] = [w for w in win if w[1] < 16]
            win.append([it, 0])
        self.nnop = nnop
        return "\n".join(out) + "\n"

def kernel_desc(name, vgpr, sgpr, accum):
    return f""".section .rodata,"a"
.p2align 6
.amdhsa_kernel {name}
  .amdhsa_next_free_vgpr {vgpr}
  .amdhsa_next_free_sgpr {sgpr}
  .amdhsa_accum_offset {accum}
  .amdhsa_group_segment_fixed_size 0
  .amdhsa_kernarg_size 104
  .amdhsa_user_sgpr_count 2
  .amdhsa_user_sgpr_kernarg_segment_ptr 1
  .amdhsa_system_sgpr_workgroup_id_x 1
  .amdhsa_float_denorm_mode_32 3
.end_amdhsa_kernel
"""
```

```python
import sys
from asmgen import *
from common import *
import common

KN = NAME + "_kernel"
WSR = "s[28:31]"
INV = "0x80000000"
S_GEN, S_W, S_FLAG = 3, 18, 64
LOCAL = False
HALF = False
S_LOC, S_IDW = 17, 16
DYN = True
DYNSET = {"flag", "x3"}
def LS(kind="flag"): return "" if (LOCAL and kind in LOCSET) else "sc1"
LOCSET = set()
def dstore(a, text, kind="flag"):
    if not DYN or kind not in DYNSET or LOCAL:
        a(text.replace("{F}", LS(kind))); return
    L = a.newlabel("ds")
    a(f"s_cmp_eq_u32 s{S_LOC}, 1\ns_cbranch_scc1 {L}_l")
    a(text.replace("{F}", "sc1"))
    a(f"s_branch {L}_e\n{L}_l:")
    a.nolog += 1
    a(text.replace("{F}", ""))
    a.nolog -= 1
    a.label(f"{L}_e")
def vr(b, n=4): return f"v[{b}:{b+n-1}]"

SPREAD = True
def PGs(d):
    return f"s_lshr_b32 {d}, s2, 3\n    s_and_b32 {d}, {d}, 7" if SPREAD else f"s_mov_b32 {d}, s60"
def PTs(d, t):
    return f"s_lshr_b32 {d}, s2, 6\n    s_lshl_b32 {d}, {d}, 3\n    s_and_b32 {t}, s2, 7\n    s_add_u32 {d}, {d}, {t}" if SPREAD else f"s_mov_b32 {d}, s61"
def rnd_bf16(a, v):
    a(f"v_cvt_pk_bf16_f32 v{v}, v{v}, v{v}\nv_and_b32 v{v}, 0xffff0000, v{v}")
def sum_q(a, v, t):
    a(f"""v_mov_b32 v{t}, v{v}
    v_permlane16_swap_b32 v{v}, v{t}
    v_add_f32 v{v}, v{v}, v{t}
    v_mov_b32 v{t}, v{v}
    v_permlane32_swap_b32 v{v}, v{t}
    v_add_f32 v{v}, v{v}, v{t}""")
def allsum64(a, v, t):
    for r in (8, 4, 2, 1):
        a(f"v_add_f32_dpp v{v}, v{v}, v{v} row_ror:{r} row_mask:0xf bank_mask:0xf")
    sum_q(a, v, t)
def ln_core(a, vsum, vsq):
    a(f"""v_mul_f32 v{vsum}, 0x3b000000, v{vsum}
    v_mul_f32 v{vsq}, 0x3b000000, v{vsq}
    v_fma_f32 v{vsq}, -v{vsum}, v{vsum}, v{vsq}
    v_max_f32 v{vsq}, 0, v{vsq}""")
    rnd_bf16(a, vsq)
    a(f"v_add_f32 v{vsq}, 0x3727c5ac, v{vsq}")
    rnd_bf16(a, vsq)
    a(f"v_sqrt_f32 v{vsq}, v{vsq}")
    rnd_bf16(a, vsq)
    rnd_bf16(a, vsum)
def signal(a, e, tv=(2, 3), barrier=True, local=False, vm=0):
    L = a.newlabel("sg")
    if isinstance(vm, str): a.vmneed(vm)
    else: a(f"s_waitcnt vmcnt({vm})")
    if barrier: a("s_barrier")
    a.nolog += 1
    a(f"""s_cmp_lg_u32 s{S_W}, 0
    s_cbranch_scc1 {L}
    s_add_u32 s36, s{S_GEN}, {e}
    v_mov_b32 v{tv[0]}, s36
    v_mov_b32 v{tv[1]}, s{S_FLAG}
    s_mov_b64 exec, 1""")
    if local: dstore(a, f"buffer_store_dword v{tv[0]}, v{tv[1]}, {WSR}, 0 offen {{F}}")
    else: a(f"buffer_store_dword v{tv[0]}, v{tv[1]}, {WSR}, 0 offen sc1")
    a(f"""s_mov_b64 exec, -1
    {L}:""")
    a.nolog -= 1
def wait_flags(a, voff, nld, e, T, etag=None):
    L = a.newlabel("wf")
    if etag is None:
        a(f"s_add_u32 s37, s{S_GEN}, {e}"); etag = 37
    a(f"s_mov_b32 s38, 0")
    a.nolog += 1
    a.label(L)
    for i in range(nld):
        if i == 0: a(f"buffer_load_dword v{T}, v{voff}, {WSR}, 0 offen sc1")
        else: a(f"s_movk_i32 s39, {4096*i}\nbuffer_load_dword v{T+i}, v{voff}, {WSR}, s39 offen sc1")
    a("s_add_u32 s38, s38, 1\ns_waitcnt vmcnt(0)")
    for k in range(nld):
        a(f"v_subrev_u32 v{T+k}, s{etag}, v{T+k}")
    for k in range(1, nld): a(f"v_max_u32 v{T}, v{T}, v{T+k}")
    a(f"""v_cmp_gt_u32 vcc, 16, v{T}
    s_cmp_gt_u32 s38, 200000
    s_cbranch_scc1 {L}_x
    s_cmp_eq_u64 vcc, -1
    s_cbranch_scc0 {L}
    {L}_x:""")
    a.nolog -= 1
def flagcheck(a, e, regs, voff, label, tmp):
    a(f"""s_add_u32 s37, s{S_GEN}, {e}
    v_subrev_u32 v{tmp[0]}, s37, v{regs[0]}
    v_subrev_u32 v{tmp[1]}, s37, v{regs[1]}
    v_max_u32 v{tmp[0]}, v{tmp[0]}, v{tmp[1]}
    v_subrev_u32 v{tmp[1]}, s37, v{regs[2]}
    v_max_u32 v{tmp[0]}, v{tmp[0]}, v{tmp[1]}
    v_subrev_u32 v{tmp[1]}, s37, v{regs[3]}
    v_max_u32 v{tmp[0]}, v{tmp[0]}, v{tmp[1]}
    v_cmp_gt_u32 vcc, 16, v{tmp[0]}
    s_cmp_eq_u64 vcc, -1
    s_cbranch_scc1 {label}
    s_mov_b32 s38, 0
    {label}_p:""")
    a.nolog += 1
    for i in range(4):
        if i == 0: a(f"buffer_load_dword v{regs[0]}, v{voff}, {WSR}, 0 offen sc1")
        else: a(f"s_movk_i32 s39, {4096*i}\nbuffer_load_dword v{regs[i]}, v{voff}, {WSR}, s39 offen sc1")
    a(f"""s_add_u32 s38, s38, 1
    s_waitcnt vmcnt(0)
    v_subrev_u32 v{tmp[0]}, s37, v{regs[0]}
    v_subrev_u32 v{tmp[1]}, s37, v{regs[1]}
    v_max_u32 v{tmp[0]}, v{tmp[0]}, v{tmp[1]}
    v_subrev_u32 v{tmp[1]}, s37, v{regs[2]}
    v_max_u32 v{tmp[0]}, v{tmp[0]}, v{tmp[1]}
    v_subrev_u32 v{tmp[1]}, s37, v{regs[3]}
    v_max_u32 v{tmp[0]}, v{tmp[0]}, v{tmp[1]}
    v_cmp_gt_u32 vcc, 16, v{tmp[0]}
    s_cmp_gt_u32 s38, 200000
    s_cbranch_scc1 {label}
    s_cmp_eq_u64 vcc, -1
    s_cbranch_scc0 {label}_p
    {label}:""")
    a.nolog -= 1
def wg_wait(a, setup, voff, nld, e, T, etag=None, wave=0):
    L = a.newlabel("ww")
    a(f"s_cmp_lg_u32 s{S_W}, {wave}\ns_cbranch_scc1 {L}")
    setup()
    wait_flags(a, voff, nld, e, T, etag)
    a.label(L)
    a("s_barrier")

HCS = 4160; XRO = 4 * HCS; CB = XRO + 4608; EXO = 49152
PL = 65536
PW = PL + 16384
W3OFF = 6144 + 32
L_TX = 131072; L_TY = L_TX + 8192; L_ST = L_TY + 8192
LDS_TOTAL = L_ST + 2048

def emit_prologue(a):
    a(f"""s_cmp_ge_u32 s2, 256
    s_cbranch_scc1 L_end
    s_load_dwordx4 s[4:7], s[0:1], {ARG['q']}
    s_load_dwordx4 s[8:11], s[0:1], {ARG['v']}
    s_load_dwordx4 s[12:15], s[0:1], {ARG['h']}
    s_load_dwordx2 s[16:17], s[0:1], {ARG['ws']}
    s_load_dwordx4 s[52:55], s[0:1], {ARG['w1']}
    s_load_dwordx2 s[56:57], s[0:1], {ARG['w2']}
    v_lshrrev_b32 v3, 6, v0
    v_and_b32 v1, 7, v0
    v_readfirstlane_b32 s{S_W}, v3
    s_and_b32 s60, s2, 7
    s_lshr_b32 s61, s2, 3
    v_lshrrev_b32 v2, 3, v0
    {PGs('s36')}
    s_lshl_b32 s36, s36, 7
    {PTs('s37', 's38')}
    s_lshl_b32 s37, s37, 16
    s_add_u32 s36, s36, s37
    v_lshlrev_b32 v4, 4, v1
    v_lshlrev_b32 v5, 11, v2
    v_add3_u32 v4, v4, v5, s36
    s_lshl_b32 s{S_FLAG}, s60, 5
    s_add_u32 s{S_FLAG}, s{S_FLAG}, s61
    s_mov_b32 s19, s{S_FLAG}
    s_lshl_b32 s{S_FLAG}, s{S_FLAG}, 6
    s_add_u32 s{S_FLAG}, s{S_FLAG}, {WS['SYNC'] + SYNC_FLAGS}
    s_waitcnt lgkmcnt(0)""")
    srd(a, 20, 4, S * D * 2)
    srd(a, 24, 6, S * D * 2)
    srd(a, 32, 8, S * D * 2)
    srd(a, 40, 10, D * 8)
    srd(a, 28, 16, WS['END'])
    a(f"""s_add_u32 s36, s16, {WS['SYNC'] + SYNC_GEN}
    s_addc_u32 s37, s17, 0
    s_load_dword s{S_GEN}, s[36:37], 0""")
    stamp(a, 0)

def emit_prep_loads(a):
    a(f"""v_and_b32 v9, 63, v0
    s_lshr_b32 s66, s{S_W}, 1
    s_and_b32 s67, s{S_W}, 1""")
    if WFIRST: emit_prep_loadsW(a)
    a(f"""{PGs('s36')}
    s_lshl_b32 s36, s36, 9
    v_lshlrev_b32 v8, 6, v1
    v_add_u32 v8, s36, v8
    buffer_load_dwordx4 v[44:47], v8, s[40:43], 0 offen
    buffer_load_dwordx4 v[48:51], v8, s[40:43], 0 offen offset:16
    buffer_load_dwordx4 v[52:55], v8, s[40:43], 0 offen offset:32
    buffer_load_dwordx4 v[56:59], v8, s[40:43], 0 offen offset:48
    v_subrev_u32 v5, 3072, v4
    v_subrev_u32 v6, 2048, v4
    v_subrev_u32 v7, 1024, v4
    buffer_load_dwordx4 v[16:19], v5, s[24:27], 0 offen
    buffer_load_dwordx4 v[20:23], v6, s[24:27], 0 offen
    buffer_load_dwordx4 v[24:27], v7, s[24:27], 0 offen
    buffer_load_dwordx4 v[28:31], v4, s[24:27], 0 offen
    buffer_load_dwordx4 v[32:35], v4, s[24:27], 0 offen offset:1024
    buffer_load_dwordx4 v[36:39], v4, s[32:35], 0 offen
    buffer_load_dwordx4 v[40:43], v4, s[32:35], 0 offen offset:1024""")

def emit_prep_loadsW(a):
    a(f"""s_cmp_eq_u32 s66, 0
    s_cselect_b32 s52, s52, s54
    s_cselect_b32 s53, s53, s55
    s_mov_b32 s54, {D*F*2}
    s_mov_b32 s55, 0x20000
    s_mov_b32 s58, {D*F*2}
    s_mov_b32 s59, 0x20000
    s_mul_i32 s62, s60, {64*2752}
    s_mul_i32 s63, s61, 96
    s_add_u32 s62, s62, s63
    s_mul_i32 s63, s67, 192
    v_add_u32 v176, s63, v9
    s_mul_i32 s36, s66, {W3OFF}
    s_lshl_b32 s63, s63, 4
    s_add_u32 s36, s36, s63
    s_add_u32 s36, s36, {PW}""")
    for i in range(3):
        a(f"""v_add_u32 v177, {64*i}, v176
        v_mul_u32_u24 v178, 43691, v177
        v_lshrrev_b32 v178, 18, v178
        v_mul_u32_u24 v179, 6, v178
        v_sub_u32 v179, v177, v179
        v_mul_u32_u24 v178, 2752, v178
        v_lshl_add_u32 v{184+i}, v179, 4, v178
        s_add_u32 m0, s36, {1024*i}
        buffer_load_dwordx4 v{184+i}, s[52:55], s62 offen lds""")
    a(f"""v_lshrrev_b32 v178, 3, v9
    v_and_b32 v179, 7, v9
    v_lshlrev_b32 v178, 10, v178
    v_lshl_add_u32 v187, v179, 4, v178
    s_lshl_b32 s63, s{S_W}, 13
    {PTs('s36', 's37')}
    s_lshl_b32 s36, s36, 15
    s_add_u32 s36, s36, s63
    {PGs('s63')}
    s_lshl_b32 s63, s63, 7
    s_add_u32 s36, s36, s63
    s_lshl_b32 s63, s{S_W}, 10
    s_add_u32 s63, s63, {PW + 2*6144 + 64}
    s_mov_b32 m0, s63
    buffer_load_dwordx4 v187, s[56:59], s36 offen lds
    s_add_u32 s36, s36, {32*32*1024}
    s_add_u32 m0, s63, 4096
    buffer_load_dwordx4 v187, s[56:59], s36 offen lds""")

def emit_prep_loadsQ(a):
    a(f"""buffer_load_dwordx4 v[60:63], v4, s[20:23], 0 offen
    buffer_load_dwordx4 v[64:67], v4, s[20:23], 0 offen offset:1024""")
def emit_prep_loads2(a):
    a(f"""s_lshl_b32 s65, s19, 1
    s_add_u32 s65, s65, s66
    s_lshl_b32 s37, s65, 1
    s_lshl_b32 s65, s65, 12""")
    srd(a, 44, 12, 4096, offreg=65)
    srd(a, 48, 14, D * 2)
    a(f"""v_lshlrev_b32 v172, 4, v9
    s_lshl_b32 s36, s67, 11
    v_add_u32 v172, s36, v172
    buffer_load_dwordx4 v[192:195], v172, s[44:47], 0 offen
    buffer_load_dwordx4 v[196:199], v172, s[44:47], 0 offen offset:4
    buffer_load_dwordx4 v[200:203], v172, s[44:47], 0 offen offset:8
    buffer_load_dwordx4 v[204:207], v172, s[44:47], 0 offen offset:1024
    buffer_load_dwordx4 v[208:211], v172, s[44:47], 0 offen offset:1028
    buffer_load_dwordx4 v[212:215], v172, s[44:47], 0 offen offset:1032
    v_bfe_u32 v219, v9, 3, 2
    v_and_b32 v220, 7, v9
    v_lshlrev_b32 v13, 1, v220
    v_add_u32 v13, v13, v219
    v_subrev_u32 v13, 16, v13
    v_lshlrev_b32 v13, 1, v13
    v_add_u32 v14, 2, v13
    buffer_load_ushort v216, v13, s[44:47], 0 offen
    buffer_load_ushort v217, v14, s[44:47], 0 offen
    v_mov_b32 v173, s37
    buffer_load_ushort v218, v173, s[48:51], 0 offen""")

def emit_codepf(a):
    if CODEPF:
        a(f"""s_getpc_b64 s[68:69]
        L_pc:
        s_sub_u32 s68, s68, L_pc-{KN}
        s_subb_u32 s69, s69, 0
        v_and_b32 v190, 15, v9
        s_lshl_b32 s36, s61, 4
        v_add_u32 v190, s36, v190
        v_lshlrev_b32 v190, 7, v190
        v_min_u32 v190, L_codeend-{KN}-4, v190
        global_load_dword v188, v190, s[68:69]""")

def emit_prep_compute(a):
    a(f"""v_sub_u32 v11, 31, v2
    v_lshlrev_b32 v12, 2, v1
    v_xor_b32 v11, v11, v12
    v_lshlrev_b32 v11, 2, v11
    v_lshlrev_b32 v13, 10, v1
    v_add_u32 v11, v11, v13
    v_add_u32 v11, {PL}, v11
    v_xor_b32 v12, v2, v12
    v_lshlrev_b32 v12, 2, v12
    v_add_u32 v12, v12, v13
    v_add_u32 v12, {PL + 8192}, v12
    """)
    a("s_waitcnt vmcnt(7)")
    for j in range(8):
        a(f"""v_lshlrev_b32 v{80+j}, 16, v{44+2*j}
        v_and_b32 v{88+j}, 0xffff0000, v{44+2*j}
        v_lshlrev_b32 v{96+j}, 16, v{45+2*j}
        v_and_b32 v{104+j}, 0xffff0000, v{45+2*j}""")
    a("s_waitcnt vmcnt(0)")
    stamp(a, 1)
    for i in range(5):
        for p in range(4):
            a(f"""v_lshlrev_b32 v{112+8*i+2*p}, 16, v{16+4*i+p}
            v_and_b32 v{113+8*i+2*p}, 0xffff0000, v{16+4*i+p}""")
    for row in range(2):
        for p in range(4):
            d = 152 + 8 * row + 2 * p
            a(f"v_pk_mul_f32 v[{d}:{d+1}], v[{112+8*row+2*p}:{113+8*row+2*p}], v[{104+2*p}:{105+2*p}]")
    for tt, tap in ((1, 2), (2, 1), (3, 0)):
        for row in range(2):
            for p in range(4):
                d = 152 + 8 * row + 2 * p
                k = 112 + 8 * (row + tt) + 2 * p
                s_ = 80 + 8 * tap + 2 * p
                a(f"v_pk_fma_f32 v[{d}:{d+1}], v[{k}:{k+1}], v[{s_}:{s_+1}], v[{d}:{d+1}]")
    for row in range(2):
        for p in range(4):
            a(f"""v_lshlrev_b32 v{112+8*row+2*p}, 16, v{36+4*row+p}
            v_and_b32 v{113+8*row+2*p}, 0xffff0000, v{36+4*row+p}""")
    for row in range(2):
        for p in range(4):
            d = 152 + 8 * row + 2 * p
            a(f"v_pk_mul_f32 v[{d}:{d+1}], v[{d}:{d+1}], v[{112+8*row+2*p}:{113+8*row+2*p}]")
    for j in range(8):
        a(f"v_cvt_pk_bf16_f32 v{80+j}, v{160+j}, v{152+j}")
    for j in range(8):
        a(f"ds_write_b32 v11, v{80+j} offset:{128*j}")
    a(f"""v_lshrrev_b32 v3, 6, v0
    v_xor_b32 v5, v1, v3
    v_lshlrev_b32 v5, 4, v5
    v_lshlrev_b32 v6, 7, v2
    v_add_u32 v5, v5, v6
    v_add_u32 v5, {PL}, v5
    v_xor_b32 v7, 64, v5
    {PGs('s36')}
    s_lshl_b32 s36, s36, 18
    {PTs('s37', 's38')}
    s_lshl_b32 s37, s37, 7
    s_sub_u32 s4, s36, s37
    s_add_u32 s4, s4, {WS['XR'] + 1984*2}
    s_add_u32 s5, s36, s37
    s_add_u32 s5, s5, {WS['QT']}
    v_lshlrev_b32 v8, 12, v2
    v_lshlrev_b32 v15, 4, v1
    v_add_u32 v8, v8, v15
    v_add_u32 v15, 0x20000, v8
    s_waitcnt lgkmcnt(0)
    s_barrier
    ds_read_b128 v[16:19], v5
    ds_read_b128 v[20:23], v7 offset:4096
    s_waitcnt lgkmcnt(1)
    buffer_store_dwordx4 v[16:19], v8, {WSR}, s4 offen {LS('xr')}
    s_waitcnt lgkmcnt(0)
    buffer_store_dwordx4 v[20:23], v15, {WSR}, s4 offen {LS('xr')}""")
    stamp(a, 2)
    emit_prep_loadsW(a)
    emit_prep_loadsQ(a)
    L = a.newlabel("sg1")
    a(f"""s_waitcnt vmcnt(7)
    s_barrier
    s_cmp_lg_u32 s{S_W}, 0
    s_cbranch_scc1 {L}
    s_add_u32 s36, s{S_GEN}, 1
    v_mov_b32 v16, s36
    v_mov_b32 v17, s{S_FLAG}
    s_mov_b64 exec, 1
    buffer_store_dword v16, v17, {WSR}, 0 offen sc1
    s_mov_b64 exec, -1
    {L}:""")
    stamp(a, 3)
    if FINE == 'F': fstamp(a, 9)
    a(f"""v_lshlrev_b32 v10, 4, v9
    s_lshl_b32 s36, s2, 13
    s_lshl_b32 s37, s{S_W}, 11
    s_add_u32 s36, s36, s37
    v_add_u32 v10, s36, v10
    buffer_load_dwordx4 v[68:71], v10, s[20:23], 0 offen
    buffer_load_dwordx4 v[72:75], v10, s[20:23], 0 offen offset:1024""")
    emit_prep_loads2(a)
    emit_codepf(a)
    NPF = 1 if CODEPF else 0
    a(f"s_waitcnt vmcnt({2 + 2 + 9 + NPF})\ns_barrier")
    if FINE == 'F': fstamp(a, 1)
    a(f"""v_lshrrev_b32 v178, 4, v9
    v_bfe_u32 v179, v9, 2, 2
    v_and_b32 v180, 3, v9
    v_lshl_add_u32 v181, v178, 4, v179
    v_mul_u32_u24 v181, 96, v181
    v_and_b32 v182, 1, v180
    v_lshl_add_u32 v181, v182, 3, v181
    v_lshrrev_b32 v182, 1, v180
    v_mul_u32_u24 v182, {W3OFF}, v182
    v_add_u32 v181, v181, v182
    v_lshlrev_b32 v183, 4, v9""")
    for i in range(3):
        a(f"""s_mul_i32 s36, s{S_W}, 3
        s_add_u32 s36, s36, {i}
        s_lshr_b32 s37, s36, 1
        s_and_b32 s36, s36, 1
        s_lshl_b32 s38, s37, 4
        s_mul_i32 s39, s36, {8*96}
        s_add_u32 s38, s38, s39
        s_add_u32 s38, s38, {PW}
        v_add_u32 v182, s38, v181
        ds_read_b64_tr_b16 v[{144+4*i}:{145+4*i}], v182
        ds_read_b64_tr_b16 v[{146+4*i}:{147+4*i}], v182 offset:{4*96}
        s_mul_i32 s38, s61, 6
        s_add_u32 s38, s38, s37
        s_lshl_b32 s39, s38, 14
        s_lshl_b32 s37, s60, 11
        s_add_u32 s39, s39, s37
        s_lshl_b32 s36, s36, 10
        s_add_u32 s39, s39, s36
        s_add_u32 s39, s39, {WS['WF13']}
        s_cmp_lt_u32 s38, 172
        s_cselect_b32 s{6+i}, s39, {INV}""")
    a(f"""v_lshl_add_u32 v181, v178, 2, v179
    v_lshlrev_b32 v181, 7, v181
    v_lshl_add_u32 v181, v180, 5, v181
    s_lshl_b32 s36, s{S_W}, 3
    s_add_u32 s36, s36, {PW + 2*6144 + 64}
    v_add_u32 v181, s36, v181""")
    for i in range(2):
        a(f"""ds_read_b64_tr_b16 v[{156+4*i}:{157+4*i}], v181 offset:{4096*i}
        ds_read_b64_tr_b16 v[{158+4*i}:{159+4*i}], v181 offset:{4096*i + 2048}
        {PTs('s36', 's37')}
        s_add_u32 s36, s36, {32*i}
        {PGs('s37')}
        s_mul_i32 s37, s37, 43
        s_add_u32 s37, s37, s36
        s_lshl_b32 s37, s37, 12
        s_lshl_b32 s38, s{S_W}, 10
        s_add_u32 s37, s37, s38
        s_add_u32 s37, s37, {WS['WF2']}
        s_cmp_lt_u32 s36, 43
        s_cselect_b32 s{9+i}, s37, {INV}""")
    for i in range(5):
        a(f"s_waitcnt lgkmcnt({2*(4-i)})\nbuffer_store_dwordx4 {vr(144+4*i)}, v183, {WSR}, s{6+i} offen sc1")
    if FINE == 'F': fstamp(a, 2)
    a(f"s_waitcnt vmcnt({2 + 9 + NPF + 5})")
    if FINE == 'F': fstamp(a, 3)
    a("s_mov_b32 s36, 0x05040100\ns_mov_b32 s37, 0x07060302")
    for p in range(4):
        a(f"""v_perm_b32 v{88+2*p}, v{64+p}, v{60+p}, s36
        v_perm_b32 v{89+2*p}, v{64+p}, v{60+p}, s37""")
    for j in range(8):
        a(f"ds_write_b32 v12, v{88+j} offset:{128*j}")
    if FINE == 'F': fstamp(a, 4)
    a(f"s_waitcnt vmcnt({9 + NPF + 5})")
    if FINE == 'F': fstamp(a, 5)
    a("v_mov_b32 v14, 0x3f803f80")
    for row in range(2):
        su, sq = 96 + 2 * row, 97 + 2 * row
        a(f"v_mov_b32 v{su}, 0\nv_mov_b32 v{sq}, 0")
    for p in range(4):
        for row in range(2):
            su, sq = 96 + 2 * row, 97 + 2 * row; b = 68 + 4 * row
            a(f"v_dot2_f32_bf16 v{su}, v{b+p}, v14, v{su}\nv_dot2_f32_bf16 v{sq}, v{b+p}, v{b+p}, v{sq}")
    for r in (8, 4, 2, 1):
        for v in (96, 97, 98, 99):
            a(f"v_add_f32_dpp v{v}, v{v}, v{v} row_ror:{r} row_mask:0xf bank_mask:0xf")
    for k, v in enumerate((96, 97, 98, 99)): a(f"v_mov_b32 v{100+k}, v{v}")
    for k, v in enumerate((96, 97, 98, 99)): a(f"v_permlane16_swap_b32 v{v}, v{100+k}")
    for k, v in enumerate((96, 97, 98, 99)): a(f"v_add_f32 v{v}, v{v}, v{100+k}")
    for k, v in enumerate((96, 97, 98, 99)): a(f"v_mov_b32 v{100+k}, v{v}")
    for k, v in enumerate((96, 97, 98, 99)): a(f"v_permlane32_swap_b32 v{v}, v{100+k}")
    for k, v in enumerate((96, 97, 98, 99)): a(f"v_add_f32 v{v}, v{v}, v{100+k}")
    ln_core(a, 96, 97); ln_core(a, 98, 99)
    a(f"""v_rcp_f32 v102, v97
    v_rcp_f32 v103, v99
    v_mul_f32 v104, -v96, v102
    v_mul_f32 v105, -v98, v103
    s_lshl_b32 s36, s2, 5
    s_lshl_b32 s37, s{S_W}, 3
    s_add_u32 s11, s36, s37
    s_add_u32 s11, s11, {WS['RS0']}""")
    a(f"""v_mov_b32 v101, s11
    s_mov_b32 s37, {WS['C0']-WS['RS0']}
    s_mov_b64 exec, 1
    buffer_store_dwordx2 v[102:103], v101, {WSR}, 0 offen sc1
    buffer_store_dwordx2 v[104:105], v101, {WSR}, s37 offen sc1
    s_mov_b64 exec, -1
    s_waitcnt lgkmcnt(0)
    s_barrier
    ds_read_b128 v[72:75], v5 offset:8192
    ds_read_b128 v[76:79], v7 offset:{8192+4096}
    s_waitcnt lgkmcnt(1)
    buffer_store_dwordx4 v[72:75], v8, {WSR}, s5 offen sc1
    s_waitcnt lgkmcnt(0)
    buffer_store_dwordx4 v[76:79], v15, {WSR}, s5 offen sc1""")
    if FINE == 'F': fstamp(a, 6)
    a("s_waitcnt vmcnt(9)")
    if FINE == 'F': fstamp(a, 7)
    a(f"""s_mul_i32 s62, s66, {CB}
    v_lshlrev_b32 v4, 4, v9
    s_lshl_b32 s36, s67, 11
    s_add_u32 s36, s36, s62
    s_add_u32 s36, s36, 32
    v_add_u32 v4, s36, v4""")
    for p in range(2):
        L0, L2, L4 = 192 + 12 * p, 196 + 12 * p, 200 + 12 * p
        for j in range(4):
            a(f"v_alignbit_b32 v{112+8*p+j}, v{L2+j}, v{L0+j}, 16")
            a(f"v_alignbit_b32 v{116+8*p+j}, v{L4+j}, v{L2+j}, 16")
        a(f"""ds_write_b128 v4, v[{L0}:{L0+3}] offset:{1024*p}
        ds_write_b128 v4, v[{112+8*p}:{115+8*p}] offset:{1024*p + HCS}
        ds_write_b128 v4, v[{L2}:{L2+3}] offset:{1024*p + 2*HCS}
        ds_write_b128 v4, v[{116+8*p}:{119+8*p}] offset:{1024*p + 3*HCS}""")
    a(f"""v_lshl_or_b32 v216, v217, 16, v216
    v_mul_u32_u24 v13, {HCS}, v219
    v_lshl_add_u32 v13, v220, 2, v13
    v_add_u32 v13, s62, v13
    ds_write_b32 v13, v216
    v_lshlrev_b32 v20, 16, v218
    v_mov_b32 v92, 0
    v_mov_b32 v93, 0
    v_mov_b32 v94, 0
    v_mov_b32 v95, 0
    v_and_b32 v16, 31, v9
    v_lshlrev_b32 v16, 4, v16
    v_add_u32 v16, s62, v16
    ds_write_b128 v16, v[92:95] offset:{XRO+4096}
    s_waitcnt lgkmcnt(0)""")
    stamp(a, 4)
    if FINE == 'F': fstamp(a, 8)

def emit_conv(a, hooks):
    a("v_and_b32 v1, 63, v0")
    def su1():
        if SPREAD:
            a(f"""v_and_b32 v2, 7, v1
            v_lshlrev_b32 v2, 5, v2
            v_bfe_u32 v3, v1, 3, 2
            v_lshl_add_u32 v2, v3, 3, v2
            v_add_u32 v2, s60, v2
            v_lshlrev_b32 v2, 6, v2
            v_add_u32 v2, {WS['SYNC'] + SYNC_FLAGS}, v2""")
        else:
            a(f"""v_and_b32 v2, 31, v1
            s_lshl_b32 s36, s60, 5
            v_add_u32 v2, s36, v2
            v_lshlrev_b32 v2, 6, v2
            v_add_u32 v2, {WS['SYNC'] + SYNC_FLAGS}, v2""")
    signal(a, 2)
    wg_wait(a, su1, 2, 1, 1, 64)
    stamp(a, 5)
    a(f"""v_lshlrev_b32 v10, 4, v1
    s_lshl_b32 s36, s67, 11
    s_add_u32 s37, s65, s36
    s_add_u32 s37, s37, {WS['XR']}
    s_add_u32 s38, s62, s36
    s_add_u32 s38, s38, {XRO}
    s_mov_b32 m0, s38
    buffer_load_dwordx4 v10, {WSR}, s37 offen sc1 lds
    s_add_u32 s38, s38, 1024
    s_add_u32 s37, s37, 1024
    s_mov_b32 m0, s38
    buffer_load_dwordx4 v10, {WSR}, s37 offen sc1 lds
    v_and_b32 v11, 15, v1
    v_lshrrev_b32 v12, 4, v1
    v_lshlrev_b32 v13, 4, v11
    v_lshl_add_u32 v13, v12, 2, v13
    s_lshl_b32 s36, s67, 10
    v_add_u32 v13, s36, v13
    v_lshlrev_b32 v14, 1, v13
    v_lshlrev_b32 v15, 2, v13
    v_lshlrev_b32 v22, 6, v1
    v_add_u32 v22, {WS['SYNC'] + SYNC_FLAGS}, v22""")
    a(f"""v_add_u32 v17, 1, v11
    v_and_b32 v18, 3, v17
    v_mul_u32_u24 v18, {HCS}, v18
    v_lshrrev_b32 v17, 2, v17
    v_lshlrev_b32 v17, 3, v17
    v_lshl_add_u32 v17, v12, 4, v17
    v_add_u32 v17, v17, v18
    s_lshl_b32 s36, s67, 8
    s_add_u32 s37, s36, s62
    v_add_u32 v17, s37, v17
    v_lshlrev_b32 v18, 5, v11
    v_lshlrev_b32 v19, 4, v12
    v_sub_u32 v18, v19, v18
    s_add_u32 s37, s37, {XRO + 480}
    v_add_u32 v18, s37, v18""")
    for r in range(32, 64): a(f"v_mov_b32 v{r}, 0")
    a(f"s_waitcnt vmcnt(0)\ns_barrier")
    stamp(a, 6)
    pre = []
    for i in range(4):
        pre.append(f"buffer_load_dwordx2 v[{192+2*i}:{193+2*i}], v14, {WSR}, s10 offen offset:{512*i} sc1")
    for i in range(4):
        pre.append(f"buffer_load_dwordx4 v[{200+4*i}:{203+4*i}], v15, {WSR}, s8 offen offset:{1024*i} sc1")
        pre.append(f"buffer_load_dwordx4 v[{216+4*i}:{219+4*i}], v15, {WSR}, s9 offen offset:{1024*i} sc1")
    def load_frags(setbase, bi):
        ops = []
        for x in range(8):
            A = setbase + 4 * x
            ops.append(f"ds_read_b64 v[{A}:{A+1}], v17 offset:{512*x + 64*bi}")
            ops.append(f"ds_read_b64 v[{A+2}:{A+3}], v17 offset:{512*x + 64*bi + 8}")
            B = setbase + 32 + 4 * x
            ops.append(f"ds_read_b128 v[{B}:{B+3}], v18 offset:{512*(7-x) + 64*bi}")
        return ops
    sets = (64, 128)
    for op in load_frags(sets[0], 0): a(op)
    extra = []
    for bi in range(4):
        cur = sets[bi & 1]
        nxt = load_frags(sets[(bi + 1) & 1], bi + 1) if bi < 3 else []
        if bi == 0:
            for i in range(4):
                if i == 0: a(f"buffer_load_dword v24, v22, {WSR}, 0 offen sc1")
                else: a(f"s_movk_i32 s39, {4096*i}\nbuffer_load_dword v{24+i}, v22, {WSR}, s39 offen sc1")
            member_flag_off(a, 23, "0", 16)
            a(f"buffer_load_dword v28, v23, {WSR}, 0 offen offset:4 sc1")
        if bi == CHK1:
            a(f"""s_waitcnt vmcnt(0)
            v_cmp_eq_u32 vcc, s{S_IDW}, v28
            s_cmp_eq_u64 vcc, -1
            s_cselect_b32 s{S_LOC}, 1, 0""")
            flagcheck(a, 2, (24, 25, 26, 27), 22, "L_c_ok1", tmp=(29, 30))
            a(f"s_mov_b32 s8, {WS['RS0']}\ns_mov_b32 s9, {WS['C0']}\ns_add_u32 s10, s65, {WS['QT']}")
            extra0 = pre
            extra = pre + list(hooks['conv_loop_extra'])
        a("s_waitcnt lgkmcnt(0)")
        pairs = sorted([(jt, aa) for jt in range(8) for aa in range(jt + 1)], key=lambda p: (p[1], p[0]))
        k = 0
        for idx, (jt, aa) in enumerate(pairs):
            A = cur + 4 * aa; B = cur + 32 + 4 * (jt - aa); C = 32 + 4 * jt
            a(f"v_mfma_f32_16x16x32_bf16 v[{C}:{C+3}], v[{A}:{A+3}], v[{B}:{B+3}], v[{C}:{C+3}]")
            if idx < 24 and k < len(nxt):
                a(nxt[k]); k += 1
            if extra and idx % PACE == PACE - 1 or (extra and bi == CHK1 and idx < 12):
                a(extra.pop(0))
    for op in extra: a(op)
    stamp(a, 7)
    a(f"""v_lshlrev_b32 v4, 4, v1
    s_lshl_b32 s36, s{S_W}, 12
    s_add_u32 s36, s36, {EXO}
    v_add_u32 v5, s36, v4
    s_xor_b32 s36, s36, 4096
    v_add_u32 v6, s36, v4
    s_cmp_eq_u32 s67, 0
    s_cbranch_scc0 L_c_x1""")
    for half in range(2):
        own, oth = (32, 48) if half == 0 else (48, 32)
        for i in range(4): a(f"ds_write_b128 v5, v[{oth+4*i}:{oth+4*i+3}] offset:{1024*i}")
        a("s_waitcnt lgkmcnt(0)\ns_barrier")
        for i in range(4): a(f"ds_read_b128 v[{80+4*i}:{83+4*i}], v6 offset:{1024*i}")
        a("s_waitcnt lgkmcnt(0)")
        for i in range(4):
            for h in range(2):
                a(f"v_pk_add_f32 v[{64+4*i+2*h}:{65+4*i+2*h}], v[{own+4*i+2*h}:{own+4*i+2*h+1}], v[{80+4*i+2*h}:{81+4*i+2*h}]")
        if half == 0:
            a("s_branch L_c_x2\nL_c_x1:")
    a.label("L_c_x2")
    a(f"""v_lshlrev_b32 v7, 5, v11
    v_lshl_add_u32 v7, v12, 3, v7
    s_lshl_b32 s36, s67, 11
    s_sub_u32 s37, s62, s36
    s_add_u32 s37, s37, {XRO + 4088 - 1536}
    v_sub_u32 v7, s37, v7""")
    for i in range(4): a(f"ds_read_b64 v[{96+2*i}:{97+2*i}], v7 offset:{512*(3-i)}")
    a(f"""s_lshr_b32 s39, s65, 12
    s_mul_i32 s39, s39, {XP}
    s_add_u32 s38, s39, {WS['YT']}
    s_add_u32 s39, s39, {WS['X1T']}
    s_waitcnt vmcnt({hooks['n_conv_total_w']}) lgkmcnt(0)""")
    for op in hooks['conv_epi_extra']: a(op)
    O = lambda i: 64 + 4 * i
    T = lambda i: 104 + 10 * i
    for i in range(4):
        kv = 96 + 2 * i
        a(f"""v_and_b32 v{T(i)}, 0xffff0000, v{kv+1}
        v_lshlrev_b32 v{T(i)+1}, 16, v{kv+1}
        v_and_b32 v{T(i)+2}, 0xffff0000, v{kv}
        v_lshlrev_b32 v{T(i)+3}, 16, v{kv}""")
    for i in range(4):
        a(f"""v_pk_fma_f32 v[{O(i)}:{O(i)+1}], v[{T(i)}:{T(i)+1}], v[20:21], v[{O(i)}:{O(i)+1}] op_sel_hi:[1,0,1]
        v_pk_fma_f32 v[{O(i)+2}:{O(i)+3}], v[{T(i)+2}:{T(i)+3}], v[20:21], v[{O(i)+2}:{O(i)+3}] op_sel_hi:[1,0,1]""")
    for i in range(4):
        a(f"""v_cvt_pk_bf16_f32 v{T(i)+4}, v{O(i)}, v{O(i)+1}
        v_cvt_pk_bf16_f32 v{T(i)+5}, v{O(i)+2}, v{O(i)+3}""")
    for i in range(4):
        a(f"""v_lshlrev_b32 v{T(i)}, 16, v{192+2*i}
        v_and_b32 v{T(i)+1}, 0xffff0000, v{192+2*i}
        v_lshlrev_b32 v{T(i)+2}, 16, v{193+2*i}
        v_and_b32 v{T(i)+3}, 0xffff0000, v{193+2*i}
        buffer_store_dwordx2 v[{T(i)+4}:{T(i)+5}], v14, {WSR}, s38 offen offset:{512*i} sc1""")
    for i in range(4):
        a(f"""v_lshlrev_b32 v{O(i)}, 16, v{T(i)+4}
        v_and_b32 v{O(i)+1}, 0xffff0000, v{T(i)+4}
        v_lshlrev_b32 v{O(i)+2}, 16, v{T(i)+5}
        v_and_b32 v{O(i)+3}, 0xffff0000, v{T(i)+5}
        v_pk_fma_f32 v[{T(i)+6}:{T(i)+7}], v[{T(i)}:{T(i)+1}], v[{200+4*i}:{201+4*i}], v[{216+4*i}:{217+4*i}]
        v_pk_fma_f32 v[{T(i)+8}:{T(i)+9}], v[{T(i)+2}:{T(i)+3}], v[{202+4*i}:{203+4*i}], v[{218+4*i}:{219+4*i}]""")
    for i in range(4):
        a(f"""v_pk_fma_f32 v[{T(i)+6}:{T(i)+7}], v[{T(i)+6}:{T(i)+7}], v[{O(i)}:{O(i)+1}], v[{T(i)}:{T(i)+1}]
        v_pk_fma_f32 v[{T(i)+8}:{T(i)+9}], v[{T(i)+8}:{T(i)+9}], v[{O(i)+2}:{O(i)+3}], v[{T(i)+2}:{T(i)+3}]""")
    for i in range(4):
        a(f"""v_cvt_pk_bf16_f32 v{O(i)}, v{T(i)+6}, v{T(i)+7}
        v_cvt_pk_bf16_f32 v{O(i)+1}, v{T(i)+8}, v{T(i)+9}
        buffer_store_dwordx2 v[{O(i)}:{O(i)+1}], v14, {WSR}, s39 offen offset:{512*i} sc1""")
    stamp(a, 8)

V_CS = 32; V_X3 = 44; V_ACC = 52; V_XB = 100; V_T = 116; V_HB = 116; V_W2 = 144
def w13(kb, t): b = (kb * 3 + t) * 4; return f"a[{b}:{b+3}]"
def w2(i, dt):
    idx = i * 4 + dt
    if idx < 16: b = 192 + idx * 4; return f"a[{b}:{b+3}]"
    b = V_W2 + (idx - 16) * 4; return f"v[{b}:{b+3}]"

def emit_ffn_roles_early(a):
    pass
def emit_ffn_roles(a):
    if HALF:
        a(f"""s_and_b32 s22, s60, 1
        s_lshr_b32 s20, s60, 1
        s_lshl_b32 s20, s20, 2
        s_and_b32 s36, s61, 3
        s_or_b32 s20, s20, s36
        s_lshr_b32 s23, s61, 2
        s_lshl_b32 s21, s22, 3
        s_or_b32 s21, s21, s23""")
    else:
        a(f"""s_and_b32 s20, s61, 1
        s_lshl_b32 s36, s60, 1
        s_or_b32 s20, s20, s36
        s_lshr_b32 s21, s61, 1
        s_lshr_b32 s22, s21, 3
        s_and_b32 s23, s21, 7""")
    for t in range(3):
        a(f"""s_mul_i32 s36, s{S_W}, 3
        s_add_u32 s36, s36, {t}
        s_mul_i32 s37, s21, 11
        s_add_u32 s37, s37, s36
        s_cmp_lt_u32 s36, 11
        s_cselect_b32 s38, s37, 0x7fff
        s_cmp_lt_u32 s38, 172
        s_cselect_b32 s39, 1, 0
        s_lshl_b32 s{40+t}, s37, 14
        s_add_u32 s{40+t}, s{40+t}, {WS['WF13']}
        s_lshr_b32 s{44+t}, s37, 1
        s_lshl_b32 s{44+t}, s{44+t}, 9
        s_and_b32 s37, s37, 1
        s_lshl_b32 s37, s37, 8
        s_add_u32 s{44+t}, s{44+t}, s37
        s_cmp_eq_u32 s39, 1
        s_cselect_b32 s{40+t}, s{40+t}, {INV}
        s_cselect_b32 s{44+t}, s{44+t}, {INV}""")
    a(f"""s_mul_i32 s36, s23, 43
    s_mul_i32 s37, s{S_W}, 11
    s_add_u32 s36, s36, s37
    s_lshl_b32 s48, s36, 12
    s_add_u32 s48, s48, {WS['WF2']}
    s_cmp_eq_u32 s{S_W}, 3
    s_cselect_b32 s49, {INV}, s48
    v_and_b32 v31, 63, v0
    v_lshlrev_b32 v31, 4, v31""")
def w13_loads(a):
    for kb in range(16):
        for t in range(3):
            a(f"s_add_u32 s36, s{40+t}, {kb*1024}\nbuffer_load_dwordx4 {w13(kb,t)}, v31, {WSR}, s36 offen sc1")
def w2_loads(a, lo, hi):
    for idx in range(lo, hi):
        i, dt = idx >> 2, idx & 3
        a(f"s_add_u32 s36, s{49 if i == 10 else 48}, {idx*1024}\nbuffer_load_dwordx4 {w2(i,dt)}, v31, {WSR}, s36 offen sc1")

def emit_cs(a, lo, hi):
    a(f"v_mov_b32 v{V_XB}, 0x3f803f80\nv_mov_b32 v{V_XB+1}, 0x3f803f80\nv_mov_b32 v{V_XB+2}, 0x3f803f80\nv_mov_b32 v{V_XB+3}, 0x3f803f80")
    for kb in range(lo, hi):
        for t in range(3):
            c = V_CS + 4 * t
            a(f"v_mfma_f32_16x16x32_bf16 {vr(c)}, {w13(kb,t)}, {vr(V_XB)}, {'0' if kb == 0 else vr(c)}")

def x1_dma_setup(a):
    a(f"""v_lshrrev_b32 v2, 3, v1
    v_bfe_u32 v3, v1, 1, 2
    v_bfe_u32 v6, v1, 4, 1
    v_xor_b32 v3, v3, v6
    s_and_b32 s36, s{S_W}, 2
    v_xor_b32 v3, s36, v3
    v_and_b32 v6, 1, v1
    v_lshlrev_b32 v6, 4, v6
    v_mul_u32_u24 v2, {XP}, v2
    v_add_u32 v6, v2, v6
    v_lshl_add_u32 v27, v3, 5, v6""")
def x1_dma_ops(hf):
    ops = [f"""s_mul_i32 s56, s{S_W}, {8 * XP}
    s_lshl_b32 s57, s20, 8
    s_add_u32 s56, s56, s57
    s_add_u32 s56, s56, {WS['X1T'] + hf * 128}
    s_lshl_b32 s57, s{S_W}, 10
    s_add_u32 s57, s57, {hf * 65536}"""]
    for n in range(16):
        ops.append(f"""s_add_u32 m0, s57, {n * 4096}
        buffer_load_dwordx4 v27, {WSR}, s56 offen sc1 lds
        s_add_u32 s56, s56, {32 * XP}""")
    return ops
def tiles_dma(a):
    a(f"""v_lshrrev_b32 v2, 3, v1
    v_and_b32 v3, 7, v1
    v_mul_u32_u24 v2, {XP}, v2
    v_lshl_add_u32 v2, v3, 4, v2
    s_mul_i32 s36, s23, {64 * XP}
    s_mul_i32 s37, s{S_W}, {16 * XP}
    s_add_u32 s36, s36, s37
    s_lshl_b32 s37, s20, 8
    s_add_u32 s36, s36, s37
    s_lshl_b32 s37, s22, 7
    s_add_u32 s36, s36, s37
    s_lshl_b32 s38, s{S_W}, 11""")
    for arr, lb in (('X1T', L_TX), ('YT', L_TY)):
        for i in range(2):
            a(f"""s_add_u32 s37, s36, {WS[arr] + i * 8 * XP}
            s_add_u32 m0, s38, {lb + i * 1024}
            buffer_load_dwordx4 v2, {WSR}, s37 offen sc1 lds""")
def x3_dma_ops(hf):
    ops = [f"""s_lshl_b32 s56, s20, 3
    s_add_u32 s56, s56, s{S_W}
    s_add_u32 s56, s56, {4*hf}
    s_lshl_b32 s56, s56, 14
    s_add_u32 s56, s56, {WS['X3']}
    s_lshl_b32 s57, s{S_W}, 14
    s_add_u32 s57, s57, {hf * 65536}"""]
    for n in range(16):
        ops.append(f"""s_add_u32 m0, s57, {n * 1024}
        buffer_load_dwordx4 v31, {WSR}, s56 offen sc1 lds
        s_add_u32 s56, s56, 1024""")
    return ops
def member_flag_off(a, vdst, base_member_sgpr_expr, nmemb):
    a(f"""v_and_b32 v{vdst}, {nmemb-1}, v1
    v_add_u32 v{vdst}, {base_member_sgpr_expr}, v{vdst}""")
    if HALF:
        a(f"""v_lshrrev_b32 v29, 3, v{vdst}
        v_and_b32 v{vdst}, 7, v{vdst}
        v_lshlrev_b32 v{vdst}, 2, v{vdst}
        v_lshl_add_u32 v{vdst}, v29, 5, v{vdst}
        s_lshr_b32 s36, s20, 2
        s_lshl_b32 s36, s36, 6
        s_and_b32 s37, s20, 3
        s_add_u32 s36, s36, s37""")
    else:
        a(f"""v_lshlrev_b32 v{vdst}, 1, v{vdst}
        s_lshr_b32 s36, s20, 1
        s_lshl_b32 s36, s36, 5
        s_and_b32 s37, s20, 1
        s_add_u32 s36, s36, s37""")
    a(f"""v_add_u32 v{vdst}, s36, v{vdst}
    v_lshlrev_b32 v{vdst}, 6, v{vdst}
    v_add_u32 v{vdst}, {WS['SYNC'] + SYNC_FLAGS}, v{vdst}""")

def stats_write(a, hf, vm, vsd):
    a(f"""v_rcp_f32 v24, v{vsd}
    v_mul_f32 v{V_T+1}, v{vsd}, v{vsd}
    v_sub_f32 v{V_T+2}, 0, v{vm}
    v_mul_f32 v{V_T}, 0xbfb8aa3b, v24
    v_mov_b32 v{V_T+3}, 0
    s_lshl_b32 s36, s{S_W}, 8
    s_add_u32 s36, s36, {L_ST + hf * 1024}
    v_lshl_add_u32 v25, v2, 4, s36
    ds_write_b128 v25, {vr(V_T)}""")
def st3_stats(a, hf):
    a(f"""s_lshl_b32 s36, s20, 3
    s_add_u32 s36, s36, s{S_W}
    s_add_u32 s36, s36, {4*hf}
    s_lshl_b32 s36, s36, 10
    s_add_u32 s36, s36, {WS['SYNC'] + SYNC_ST3}
    v_lshrrev_b32 v124, 4, v1
    v_lshlrev_b32 v124, 8, v124
    v_and_b32 v125, 15, v1
    v_lshl_add_u32 v124, v125, 3, v124
    buffer_load_dwordx2 v[120:121], v124, {WSR}, s36 offen sc1
    buffer_load_dwordx2 v[122:123], v124, {WSR}, s36 offen offset:128 sc1""")
def st3_finish(a, hf):
    a(f"""v_add_f32 v126, v120, v122
    v_add_f32 v127, v121, v123""")
    sum_q(a, 126, 120); sum_q(a, 127, 121)
    ln_core(a, 126, 127)
    a(f"""v_rcp_f32 v120, v127
    v_mul_f32 v117, v127, v127
    v_sub_f32 v118, 0, v126
    v_mul_f32 v116, 0xbfb8aa3b, v120
    v_mov_b32 v119, 0
    s_lshl_b32 s36, s{S_W}, 8
    s_add_u32 s36, s36, {L_ST + hf * 1024}
    v_lshl_add_u32 v124, v125, 4, s36
    ds_write_b128 v124, v[116:119]""")

def g1_addr(a, layer, hbase):
    tr = layer == 1
    a(f"""v_and_b32 v2, 15, v1
    v_lshrrev_b32 v3, 4, v1""")
    for x in range(4):
        a(f"""s_add_u32 s36, s{S_W}, {x}
        s_and_b32 s36, s36, 3""")
        if tr:
            a(f"""v_bfe_u32 v4, v1, 2, 2
            v_lshl_add_u32 v5, v3, 4, v4
            v_lshlrev_b32 v5, 7, v5
            v_lshrrev_b32 v4, 1, v4
            v_and_b32 v6, 1, v3
            v_lshl_or_b32 v4, v6, 1, v4
            v_xor_b32 v4, s36, v4
            v_lshl_add_u32 v5, v4, 5, v5
            v_and_b32 v6, 3, v1
            v_lshl_add_u32 v{8+x}, v6, 3, v5""")
        else:
            a(f"""s_lshl_b32 s37, s36, 14
            v_add_u32 v{8+x}, s37, v31""")
        a(f"""s_lshl_b32 s37, s36, 8
        s_add_u32 s37, s37, {L_ST}
        v_lshl_add_u32 v{15+x}, v2, 4, s37""")
    for p in range(2):
        a(f"""v_lshrrev_b32 v4, 5, v1
        v_add_u32 v4, s{S_W}, v4
        v_add_u32 v4, {2*p}, v4
        v_and_b32 v4, 3, v4
        v_mul_u32_u24 v5, {HT}, v4
        v_bfe_u32 v6, v1, 4, 1
        v_lshl_add_u32 v5, v6, 7, v5
        v_lshl_add_u32 v{12+p}, v2, 3, v5
        v_lshlrev_b32 v4, 8, v4
        v_lshl_add_u32 v4, v2, 4, v4
        v_add_u32 v{19+p}, {L_ST}, v4""")
    a(f"""s_mul_i32 s36, s20, {8*HT}
    s_add_u32 s36, s36, {hbase}""")
    for t in range(3): a(f"s_add_u32 s{52+t}, s{44+t}, s36")

def g1_sub(a, layer, sb, hook=None, cs_from=16):
    tr = layer == 1
    def rd(n):
        kb, x = n >> 2, n & 3
        B = V_XB + 4 * x
        if tr:
            off = (kb >> 1) * 8192 + (kb & 1) * 1024
            return [f"ds_read_b64_tr_b16 v[{B}:{B+1}], v{8+x} offset:{off}", f"ds_read_b64_tr_b16 v[{B+2}:{B+3}], v{8+x} offset:{off+512}"]
        return [f"ds_read_b128 {vr(B)}, v{8+x} offset:{kb*1024}"]
    per = 2 if tr else 1
    ONE, SA, SG = V_T, V_T + 4, V_T + 8
    if tr:
        for k in range(4): a(f"v_mov_b32 v{ONE+k}, 0x3f803f80")
    for n in range(3):
        for op in rd(n): a(op)
    for n in range(64):
        kb, x = n >> 2, n & 3
        if x == 0 and hook: hook(kb)
        infl = min(2, 63 - n)
        a(f"s_waitcnt lgkmcnt({infl*per})")
        B = V_XB + 4 * x
        for t in range(3):
            c = V_ACC + (x * 3 + t) * 4
            a(f"v_mfma_f32_16x16x32_bf16 {vr(c)}, {w13(kb,t)}, {vr(B)}, {'0' if kb == 0 else vr(c)}")
            if t == 0 and n + 3 < 64:
                for op in rd(n + 3): a(op)
        if tr and x == 1 and kb >= cs_from:
            for t in range(3):
                c = V_CS + 4 * t
                a(f"v_mfma_f32_16x16x32_bf16 {vr(c)}, {w13(kb,t)}, {vr(ONE)}, {vr(c)}")
        if tr and x == 0:
            a(f"v_mfma_f32_16x16x32_bf16 {vr(SA)}, {vr(ONE)}, {vr(B)}, {'0' if kb == 0 else vr(SA)}")
            a(f"v_mfma_f32_16x16x32_bf16 {vr(SG)}, {vr(B)}, {vr(B)}, {'0' if kb == 0 else vr(SG)}")
    if tr:
        a(f"""v_and_b32 v4, 3, v2
        v_cmp_eq_u32 vcc, 1, v4
        v_cndmask_b32 v23, v{SG}, v{SG+1}, vcc
        v_cmp_eq_u32 vcc, 2, v4
        v_cndmask_b32 v23, v23, v{SG+2}, vcc
        v_cmp_eq_u32 vcc, 3, v4
        v_cndmask_b32 v23, v23, v{SG+3}, vcc
        v_mov_b32 v22, v{SA}""")
        ln_core(a, 22, 23)
        a(f"""v_lshrrev_b32 v4, 2, v2
        v_cmp_eq_u32 vcc, v4, v3
        s_and_saveexec_b64 s[38:39], vcc""")
        stats_write(a, sb, 22, 23)
        a("s_mov_b64 exec, s[38:39]\ns_waitcnt lgkmcnt(0)\ns_barrier")

def g1_epi(a, sb):
    so = sb * 1024
    for x in range(4): a(f"ds_read_b32 v{V_T+2*x}, v{15+x} offset:{8+so}")
    for p in range(2): a(f"ds_read_b64 v[{V_T+8+2*p}:{V_T+9+2*p}], v{19+p} offset:{so}")
    a("s_waitcnt lgkmcnt(0)")
    A = lambda x, t: V_ACC + (x * 3 + t) * 4
    for t in range(3):
        cs = V_CS + 4 * t
        for x in range(4):
            for h in range(2):
                r = A(x, t) + 2 * h
                a(f"v_pk_fma_f32 v[{r}:{r+1}], v[{cs+2*h}:{cs+2*h+1}], v[{V_T+2*x}:{V_T+2*x+1}], v[{r}:{r+1}] op_sel_hi:[1,0,1]")
    for t in range(3):
        for p in range(2):
            for r in range(4): a(f"v_permlane32_swap_b32 v{A(2*p,t)+r}, v{A(2*p+1,t)+r}")
    for p in range(2):
        c1 = V_T + 8 + 2 * p
        T = lambda t: V_XB + 4 * t
        for t in range(3):
            for h in range(2):
                a(f"v_pk_mul_f32 v[{T(t)+2*h}:{T(t)+2*h+1}], v[{A(2*p,t)+2*h}:{A(2*p,t)+2*h+1}], v[{c1}:{c1+1}] op_sel_hi:[1,0]")
        for t in range(3):
            for r in range(4): a(f"v_exp_f32 v{T(t)+r}, v{T(t)+r}")
        for t in range(3):
            for h in range(2):
                g, u = A(2*p, t) + 2 * h, A(2*p+1, t) + 2 * h
                a(f"v_pk_mul_f32 v[{g}:{g+1}], v[{g}:{g+1}], v[{u}:{u+1}]")
        for t in range(3):
            for h in range(2):
                a(f"v_pk_fma_f32 v[{T(t)+2*h}:{T(t)+2*h+1}], v[{T(t)+2*h}:{T(t)+2*h+1}], v[{c1}:{c1+1}], v[{c1}:{c1+1}] op_sel:[0,1,1] op_sel_hi:[1,1,1]")
        for t in range(3):
            for r in range(4): a(f"v_rcp_f32 v{T(t)+r}, v{T(t)+r}")
        for t in range(3):
            for h in range(2):
                g = A(2*p, t) + 2 * h
                a(f"v_pk_mul_f32 v[{g}:{g+1}], v[{g}:{g+1}], v[{T(t)+2*h}:{T(t)+2*h+1}]")
        for t in range(3):
            g = A(2*p, t); u = A(2*p+1, t)
            a(f"""v_cvt_pk_bf16_f32 v{u}, v{g}, v{g+1}
            v_cvt_pk_bf16_f32 v{u+1}, v{g+2}, v{g+3}""")
        for t in range(3):
            u = A(2*p+1, t)
            a(f"buffer_store_dwordx2 v[{u}:{u+1}], v{12+p}, {WSR}, s{52+t} offen {LS('h')}")
def g1_next(a):
    for x in range(4): a(f"v_add_u32 v{8+x}, 0x10000, v{8+x}")
    for p in range(2): a(f"v_add_u32 v{12+p}, {4*HT}, v{12+p}")


NEG = (22, 24)
def epi_ops(P):
    p = P & 1; so = (P >> 1) * 1024
    A = lambda x, t: V_ACC + (x * 3 + t) * 4
    T = lambda t: V_T + 12 + 4 * t
    c1, ir = 26, 27
    ops = [f"ds_read_b32 v{NEG[0]}, v{15+2*p} offset:{8+so}", f"ds_read_b32 v{NEG[1]}, v{15+2*p+1} offset:{8+so}", f"ds_read_b64 v[26:27], v{19+p} offset:{so}"]
    ops += ["@gap"] * 10
    for t in range(3):
        for xl in range(2):
            for r in range(4): ops.append(f"v_fma_f32 v{A(2*p+xl,t)+r}, v{V_CS+4*t+r}, v{NEG[xl]}, v{A(2*p+xl,t)+r}")
    for t in range(3):
        for r in range(4): ops.append(f"v_permlane32_swap_b32 v{A(2*p,t)+r}, v{A(2*p+1,t)+r}")
    for t in range(3):
        for r in range(4): ops.append(f"v_mul_f32 v{T(t)+r}, v{A(2*p,t)+r}, v{c1}")
    for t in range(3):
        for r in range(4): ops.append(f"v_exp_f32 v{T(t)+r}, v{T(t)+r}")
        for r in range(4): ops.append(f"v_mul_f32 v{A(2*p,t)+r}, v{A(2*p,t)+r}, v{A(2*p+1,t)+r}")
    for t in range(3):
        for r in range(4): ops.append(f"v_fma_f32 v{T(t)+r}, v{T(t)+r}, v{ir}, v{ir}")
    for t in range(3):
        for r in range(4): ops.append(f"v_rcp_f32 v{T(t)+r}, v{T(t)+r}")
    for t in range(3):
        for r in range(4): ops.append(f"v_mul_f32 v{A(2*p,t)+r}, v{A(2*p,t)+r}, v{T(t)+r}")
    for t in range(3):
        g, u = A(2*p, t), A(2*p+1, t)
        ops += [f"v_cvt_pk_bf16_f32 v{u}, v{g}, v{g+1}", f"v_cvt_pk_bf16_f32 v{u+1}, v{g+2}, v{g+3}"]
    for t in range(3):
        u = A(2*p+1, t)
        ops.append(f"buffer_store_dwordx2 v[{u}:{u+1}], v{12+p}, {WSR}, s{52+t} offen {LS('h')}")
    ops.append(f"v_add_u32 v{12+p}, {4*HT}, v{12+p}")
    return ops

def epi_pk(a, P):
    p = P & 1; so = (P >> 1) * 1024
    A = lambda x, t: V_ACC + (x * 3 + t) * 4
    T = (lambda t: V_XB + 4 * t) if P == 3 else (lambda t: V_T + 12 + 4 * t)
    c1 = 26
    a(f"ds_read_b32 v{NEG[0]}, v{15+2*p} offset:{8+so}\nds_read_b32 v{NEG[1]}, v{15+2*p+1} offset:{8+so}\nds_read_b64 v[26:27], v{19+p} offset:{so}\ns_waitcnt lgkmcnt(0)")
    for t in range(3):
        cs = V_CS + 4 * t
        for xl in range(2):
            for h in range(2):
                r = A(2*p+xl, t) + 2 * h
                a(f"v_pk_fma_f32 v[{r}:{r+1}], v[{cs+2*h}:{cs+2*h+1}], v[{NEG[xl]}:{NEG[xl]+1}], v[{r}:{r+1}] op_sel_hi:[1,0,1]")
    for t in range(3):
        for r in range(4): a(f"v_permlane32_swap_b32 v{A(2*p,t)+r}, v{A(2*p+1,t)+r}")
    for t in range(3):
        for h in range(2):
            a(f"v_pk_mul_f32 v[{T(t)+2*h}:{T(t)+2*h+1}], v[{A(2*p,t)+2*h}:{A(2*p,t)+2*h+1}], v[{c1}:{c1+1}] op_sel_hi:[1,0]")
    for t in range(3):
        for r in range(4): a(f"v_exp_f32 v{T(t)+r}, v{T(t)+r}")
    for t in range(3):
        for h in range(2):
            g, u = A(2*p, t) + 2 * h, A(2*p+1, t) + 2 * h
            a(f"v_pk_mul_f32 v[{g}:{g+1}], v[{g}:{g+1}], v[{u}:{u+1}]")
    for t in range(3):
        for h in range(2):
            a(f"v_pk_fma_f32 v[{T(t)+2*h}:{T(t)+2*h+1}], v[{T(t)+2*h}:{T(t)+2*h+1}], v[{c1}:{c1+1}], v[{c1}:{c1+1}] op_sel:[0,1,1] op_sel_hi:[1,1,1]")
    for t in range(3):
        for r in range(4): a(f"v_rcp_f32 v{T(t)+r}, v{T(t)+r}")
    for t in range(3):
        for h in range(2):
            g = A(2*p, t) + 2 * h
            a(f"v_pk_mul_f32 v[{g}:{g+1}], v[{g}:{g+1}], v[{T(t)+2*h}:{T(t)+2*h+1}]")
    for t in range(3):
        g = A(2*p, t); u = A(2*p+1, t)
        a(f"v_cvt_pk_bf16_f32 v{u}, v{g}, v{g+1}\nv_cvt_pk_bf16_f32 v{u+1}, v{g+2}, v{g+3}")
    a.tag = f"E{P}"
    for t in range(3):
        u = A(2*p+1, t)
        a(f"buffer_store_dwordx2 v[{u}:{u+1}], v{12+p}, {WSR}, s{52+t} offen {LS('h')}")
    a.tag = None
    if P < 2: a(f"v_add_u32 v{12+p}, {4*HT}, v{12+p}")

def l1_stats(a, hf):
    SA, SG = V_T + 4, V_T + 8
    a(f"""v_and_b32 v4, 3, v2
    v_cmp_eq_u32 vcc, 1, v4
    v_cndmask_b32 v29, v{SG}, v{SG+1}, vcc
    v_cmp_eq_u32 vcc, 2, v4
    v_cndmask_b32 v29, v29, v{SG+2}, vcc
    v_cmp_eq_u32 vcc, 3, v4
    v_cndmask_b32 v29, v29, v{SG+3}, vcc
    v_mov_b32 v28, v{SA}""")
    ln_core(a, 28, 29)
    a(f"""v_rcp_f32 v5, v29
    v_mul_f32 v{SA+1}, v29, v29
    v_sub_f32 v{SA+2}, 0, v28
    v_mul_f32 v{SA}, 0xbfb8aa3b, v5
    v_mov_b32 v{SA+3}, 0
    s_lshl_b32 s36, s{S_W}, 8
    s_add_u32 s36, s36, {L_ST + hf * 1024}
    v_lshl_add_u32 v6, v2, 4, s36
    v_lshrrev_b32 v4, 2, v2
    v_cmp_eq_u32 vcc, v4, v3
    s_and_saveexec_b64 s[38:39], vcc
    ds_write_b128 v6, {vr(SA)}
    s_mov_b64 exec, s[38:39]
    s_waitcnt lgkmcnt(0)
    s_barrier""")

def g1_stream(a, layer, hook=None, cs_from=16, st=None):
    tr = layer == 1
    per = 2 if tr else 1
    def rd(N):
        P, n = N >> 5, N & 31
        kb, xl = n >> 1, n & 1
        x = 2 * (P & 1) + xl
        B = V_XB + 4 * (N & 3)
        if tr:
            off = (kb >> 1) * 8192 + (kb & 1) * 1024
            return [f"ds_read_b64_tr_b16 v[{B}:{B+1}], v{8+x} offset:{off}", f"ds_read_b64_tr_b16 v[{B+2}:{B+3}], v{8+x} offset:{off+512}"]
        return [f"ds_read_b128 {vr(B)}, v{8+x} offset:{kb*1024}"]
    ONE, SA, SG = V_T, V_T + 4, V_T + 8
    if tr:
        for k in range(4): a(f"v_mov_b32 v{ONE+k}, 0x3f803f80")
    for N in range(3):
        for op in rd(N): a(op)
    restart = set()
    for P in range(4):
        fill = epi_ops(P - 1) if (P > 0 and not (tr and L1PK)) else []
        if P == 1: fill = [f"v_add_u32 v{8+x}, 0x10000, v{8+x}" for x in (0, 1)] + fill
        if P == 2: fill = [f"v_add_u32 v{8+x}, 0x10000, v{8+x}" for x in (2, 3)][:0] + fill
        cost = lambda op: 2.0 if op.startswith(("v_exp", "v_rcp", "v_permlane")) else 1.0
        rate = sum(cost(o) for o in fill) / 92.0
        budget = 0.0
        for n in range(32):
            N = P * 32 + n
            kb, xl = n >> 1, n & 1
            if xl == 0 and hook: hook(P, kb)
            if P == 2 and n == 4:
                for x in (2, 3): a(f"v_add_u32 v{8+x}, 0x10000, v{8+x}")
            infl = min(2, 127 - N)
            a(f"s_waitcnt lgkmcnt({infl*per})")
            B = V_XB + 4 * (N & 3)
            x = 2 * (P & 1) + xl
            mf = [f"v_mfma_f32_16x16x32_bf16 {vr(V_ACC + (x*3+t)*4)}, {w13(kb,t)}, {vr(B)}, {'0' if kb == 0 else vr(V_ACC + (x*3+t)*4)}" for t in range(3)]
            if tr and P == 0 and xl == 1 and kb >= cs_from:
                mf += [f"v_mfma_f32_16x16x32_bf16 {vr(V_CS+4*t)}, {w13(kb,t)}, {vr(ONE)}, {vr(V_CS+4*t)}" for t in range(3)]
            if tr and P in (0, 2) and xl == 0:
                mf.append(f"v_mfma_f32_16x16x32_bf16 {vr(SA)}, {vr(ONE)}, {vr(B)}, {'0' if kb == 0 else vr(SA)}")
                mf.append(f"v_mfma_f32_16x16x32_bf16 {vr(SG)}, {vr(B)}, {vr(B)}, {'0' if kb == 0 else vr(SG)}")
            for i, m in enumerate(mf):
                a(m)
                if i == 0 and N + 3 < 128:
                    for op in rd(N + 3): a(op)
                if i < 3:
                    budget += rate
                    while fill and budget >= cost(fill[0]) - 0.5:
                        op = fill.pop(0); budget -= cost(op)
                        if op.startswith("buffer_store"): a.tag = f"E{P-1}"
                        if op != "@gap": a(op)
                        a.tag = None
        for op in fill:
            if op.startswith("buffer_store"): a.tag = f"E{P-1}"
            if op != "@gap": a(op)
            a.tag = None
        if st is not None and FINE == 'P': fstamp(a, st + P)
        if tr and P in (0, 2):
            l1_stats(a, P >> 1)
        if tr and L1PK and P < 3:
            epi_pk(a, P)
    epi_pk(a, 3)

def emit_g2(a, layer, hbase, etagA, st):
    ACC = V_ACC
    acc = lambda dt, x: ACC + (x * 4 + dt) * 4
    for x in range(4):
        a(f"""s_add_u32 s36, s{S_W}, {x}
        s_and_b32 s36, s36, 3
        s_lshl_b32 s37, s20, 3
        s_add_u32 s36, s36, s37
        s_lshl_b32 s37, s22, 2
        s_add_u32 s36, s36, s37
        s_mul_i32 s36, s36, {HT}
        s_mul_i32 s37, s{S_W}, {11*1024}
        s_add_u32 s36, s36, s37
        s_add_u32 s{56+x}, s36, {hbase}
        s_cmp_eq_u32 s{S_W}, 3
        s_cselect_b32 s{60+x}, {INV}, s{56+x}""")
    a(f"""s_lshl_b32 s51, s{S_W}, 15
    v_lshrrev_b32 v2, 4, v1
    v_and_b32 v3, 15, v1
    v_lshlrev_b32 v8, 7, v2
    v_lshl_add_u32 v8, v3, 3, v8
    v_add_u32 v8, s51, v8
    s_add_u32 s50, s{S_GEN}, s22
    s_add_u32 s50, s50, {etagA}""")
    def su():
        member_flag_off(a, 9, "0", 16)
    wg_wait(a, su, 9, 1, None, V_HB, etag=50)
    stamp(a, st)
    AHEAD = 4
    def dma1(i, x):
        a(f"""s_add_u32 s36, s{(60 if i == 10 else 56)+x}, {i*1024}
        s_add_u32 m0, s51, {(i % 8)*4096 + x*1024}
        buffer_load_dwordx4 v31, {WSR}, s36 offen sc1 lds""")
    for i in range(AHEAD):
        for x in range(4): dma1(i, x)
    def rd(n):
        i, x = n >> 2, n & 3
        B = V_HB + 4 * x; off = (i % 8) * 4096 + x * 1024
        return [f"ds_read_b64 v[{B}:{B+1}], v8 offset:{off}", f"ds_read_b64 v[{B+2}:{B+3}], v8 offset:{off+512}"]
    issued = AHEAD * 4
    def vmwait(n): a(f"s_waitcnt vmcnt({issued - 1 - n})")
    vmwait(2)
    stamp(a, st + 1)
    for n in range(3):
        for op in rd(n): a(op)
    for n in range(44):
        i, x = n >> 2, n & 3
        infl = min(2, 43 - n)
        a(f"s_waitcnt lgkmcnt({infl*2})")
        B = V_HB + 4 * x
        for dt in range(4):
            c = acc(dt, x)
            a(f"v_mfma_f32_16x16x32_bf16 {vr(c)}, {w2(i,dt)}, {vr(B)}, {'0' if i == 0 else vr(c)}")
            if dt == 0 and n + 3 < 44:
                vmwait(n + 3)
                for op in rd(n + 3): a(op)
            if dt == 2 and issued < 44:
                dma1(issued >> 2, issued & 3); issued += 1
    stamp(a, st + 2)
    a(f"v_add_u32 v9, s51, v31")
    for x in range(1, 4):
        for dt in range(4):
            a(f"ds_write_b128 v9, {vr(acc(dt,x))} offset:{((x-1)*4+dt)*1024}")
    for x in range(1, 4):
        a(f"""s_sub_u32 s36, s{S_W}, {x}
        s_and_b32 s36, s36, 3
        s_lshl_b32 s36, s36, 15
        v_add_u32 v{9+x}, s36, v31""")
    a("s_waitcnt lgkmcnt(0)\ns_barrier")
    for x in range(1, 4):
        for dt in range(4):
            a(f"ds_read_b128 {vr(acc(dt,x))}, v{9+x} offset:{((x-1)*4+dt)*1024}")
    if layer == 1:
        a(f"""v_bfe_u32 v4, v1, 2, 2
        v_lshl_add_u32 v4, v2, 4, v4
        v_lshlrev_b32 v4, 7, v4
        v_and_b32 v5, 3, v1
        v_lshl_add_u32 v4, v5, 3, v4
        s_lshl_b32 s36, s{S_W}, 5
        s_add_u32 s36, s36, {L_TX}
        v_add_u32 v4, s36, v4""")
        P = V_HB; Yp = V_HB + 8
        for dt in range(4):
            a(f"ds_read_b64_tr_b16 v[{P+2*dt}:{P+2*dt+1}], v4 offset:{dt*512}")
        for dt in range(4):
            a(f"ds_read_b64_tr_b16 v[{Yp+2*dt}:{Yp+2*dt+1}], v4 offset:{8192+dt*512}")
        nl = 8
    else:
        P = V_X3; nl = 0
    for x in range(1, 4):
        a(f"s_waitcnt lgkmcnt({min(15, (3-x)*4 + nl)})")
        for dt in range(4):
            for h in range(2):
                c, o = acc(dt, 0) + 2 * h, acc(dt, x) + 2 * h
                a(f"v_pk_add_f32 v[{c}:{c+1}], v[{c}:{c+1}], v[{o}:{o+1}]")
    stamp(a, st + 3)
    O = ACC; X = ACC + 16; PK = ACC + 48
    a("s_waitcnt lgkmcnt(0)")
    for k in range(8):
        a(f"v_lshlrev_b32 v{X+2*k}, 16, v{P+k}\nv_and_b32 v{X+2*k+1}, 0xffff0000, v{P+k}")
    for k in range(8): a(f"v_cvt_pk_bf16_f32 v{PK+k}, v{O+2*k}, v{O+2*k+1}")
    for k in range(8):
        a(f"v_lshlrev_b32 v{O+2*k}, 16, v{PK+k}\nv_and_b32 v{O+2*k+1}, 0xffff0000, v{PK+k}")
    for k in range(8):
        a(f"v_pk_add_f32 v[{O+2*k}:{O+2*k+1}], v[{O+2*k}:{O+2*k+1}], v[{X+2*k}:{X+2*k+1}]")
    for k in range(8): a(f"v_cvt_pk_bf16_f32 v{PK+k}, v{O+2*k}, v{O+2*k+1}")
    if layer == 2:
        a(f"""s_load_dwordx2 s[32:33], s[0:1], {ARG['out']}
        s_lshl_b32 s36, s20, 7
        s_lshl_b32 s37, s22, 6
        s_add_u32 s36, s36, s37
        s_lshl_b32 s37, s{S_W}, 4
        s_add_u32 s36, s36, s37
        s_lshl_b32 s36, s36, 10
        s_lshl_b32 s37, s23, 7
        s_add_u32 s36, s36, s37
        v_lshlrev_b32 v4, 10, v3
        v_lshl_add_u32 v4, v2, 5, v4
        s_waitcnt lgkmcnt(0)
        s_mov_b32 s34, {S*D*2}
        s_mov_b32 s35, 0x20000
        buffer_store_dwordx4 {vr(PK)}, v4, s[32:35], s36 offen
        buffer_store_dwordx4 {vr(PK+4)}, v4, s[32:35], s36 offen offset:16""")
        return
    a(f"v_mov_b32 v22, 0\nv_mov_b32 v23, 0\nv_mov_b32 v21, 0x3f803f80\nv_mov_b32 v26, 0\nv_mov_b32 v27, 0")
    for k in range(0, 8, 2):
        a(f"""v_dot2_f32_bf16 v22, v{PK+k}, v21, v22
        v_dot2_f32_bf16 v23, v{PK+k}, v{PK+k}, v23
        v_dot2_f32_bf16 v26, v{PK+k+1}, v21, v26
        v_dot2_f32_bf16 v27, v{PK+k+1}, v{PK+k+1}, v27""")
    a("v_add_f32 v22, v22, v26\nv_add_f32 v23, v23, v27")
    a(f"""v_mov_b32 v24, v22
    v_mov_b32 v25, v23
    v_permlane16_swap_b32 v22, v24
    v_permlane16_swap_b32 v23, v25
    v_add_f32 v22, v22, v24
    v_add_f32 v23, v23, v25
    v_mov_b32 v24, v22
    v_mov_b32 v25, v23
    v_permlane32_swap_b32 v22, v24
    v_permlane32_swap_b32 v23, v25
    v_add_f32 v22, v22, v24
    v_add_f32 v23, v23, v25""")
    L = a.newlabel("hop")
    a(f"""s_add_u32 s50, s{S_GEN}, 12
    v_mov_b32 v24, s50
    v_mov_b32 v25, 0
    s_lshl_b32 s36, s20, 1
    s_add_u32 s36, s36, s22
    s_lshl_b32 s36, s36, 13
    s_lshl_b32 s37, s{S_W}, 8
    s_add_u32 s36, s36, s37
    s_add_u32 s36, s36, {WS['SYNC'] + SYNC_ST2}
    s_lshl_b32 s37, s23, 10
    s_add_u32 s37, s37, s36
    v_lshlrev_b32 v4, 4, v3
    s_mov_b64 exec, 0xffff""")
    dstore(a, f"buffer_store_dwordx4 v[22:25], v4, {WSR}, s37 offen {{F}}")
    a(f"""s_mov_b64 exec, -1
    v_lshl_add_u32 v5, v2, 11, v4""")
    for k in range(8):
        a(f"v_lshlrev_b32 v{X+2*k}, 16, v{PK+k}\nv_and_b32 v{X+2*k+1}, 0xffff0000, v{PK+k}")
    a(f"""s_mov_b32 s38, 0
    {L}_p:
    buffer_load_dwordx4 v[{O}:{O+3}], v5, {WSR}, s36 offen sc1
    buffer_load_dwordx4 v[{O+4}:{O+7}], v5, {WSR}, s36 offen offset:1024 sc1
    s_add_u32 s38, s38, 1
    s_waitcnt vmcnt(0)
    v_cmp_eq_u32 vcc, s50, v{O+2}
    v_cmp_eq_u32 s[40:41], s50, v{O+6}
    s_and_b64 vcc, vcc, s[40:41]
    s_cmp_gt_u32 s38, 200000
    s_cbranch_scc1 {L}_d
    s_cmp_eq_u64 vcc, -1
    s_cbranch_scc0 {L}_p
    {L}_d:
    v_add_f32 v22, v{O}, v{O+4}
    v_add_f32 v23, v{O+1}, v{O+5}
    v_mov_b32 v24, v22
    v_mov_b32 v25, v23
    v_permlane16_swap_b32 v22, v24
    v_permlane16_swap_b32 v23, v25
    v_add_f32 v22, v22, v24
    v_add_f32 v23, v23, v25
    v_mov_b32 v24, v22
    v_mov_b32 v25, v23
    v_permlane32_swap_b32 v22, v24
    v_permlane32_swap_b32 v23, v25
    v_add_f32 v22, v22, v24
    v_add_f32 v23, v23, v25""")
    ln_core(a, 22, 23)
    a(f"""v_rcp_f32 v24, v23
    v_sub_f32 v22, 0, v22
    v_mul_f32 v26, v22, v24""")
    Yf = ACC
    for k in range(8):
        a(f"v_lshlrev_b32 v{Yf+2*k}, 16, v{Yp+k}\nv_and_b32 v{Yf+2*k+1}, 0xffff0000, v{Yp+k}")
    N = ACC + 32
    for k in range(8):
        a(f"v_pk_fma_f32 v[{N+2*k}:{N+2*k+1}], v[{X+2*k}:{X+2*k+1}], v[24:25], v[26:27] op_sel_hi:[1,0,0]")
    for k in range(8):
        a(f"v_pk_fma_f32 v[{N+2*k}:{N+2*k+1}], v[{N+2*k}:{N+2*k+1}], v[{Yf+2*k}:{Yf+2*k+1}], v[{X+2*k}:{X+2*k+1}]")
    for k in range(8):
        a(f"v_cvt_pk_bf16_f32 v{V_X3+k}, v{N+2*k}, v{N+2*k+1}")
    a(f"""s_lshl_b32 s36, s20, 3
    s_lshl_b32 s37, s22, 2
    s_add_u32 s36, s36, s37
    s_add_u32 s36, s36, s{S_W}
    s_lshl_b32 s38, s36, 10
    s_lshl_b32 s36, s36, 14
    s_lshl_b32 s37, s23, 11
    s_add_u32 s36, s36, s37
    s_add_u32 s36, s36, {WS['X3']}""")
    dstore(a, f"""buffer_store_dwordx4 {vr(V_X3)}, v31, {WSR}, s36 offen {{F}}
    buffer_store_dwordx4 {vr(V_X3+4)}, v31, {WSR}, s36 offen offset:1024 {{F}}""", "x3")
    a(f"v_mov_b32 v22, 0\nv_mov_b32 v23, 0\nv_mov_b32 v26, 0\nv_mov_b32 v27, 0")
    for k in range(0, 8, 2):
        a(f"""v_dot2_f32_bf16 v22, v{V_X3+k}, v21, v22
        v_dot2_f32_bf16 v23, v{V_X3+k}, v{V_X3+k}, v23
        v_dot2_f32_bf16 v26, v{V_X3+k+1}, v21, v26
        v_dot2_f32_bf16 v27, v{V_X3+k+1}, v{V_X3+k+1}, v27""")
    a(f"""v_add_f32 v22, v22, v26
    v_add_f32 v23, v23, v27
    v_mov_b32 v24, v22
    v_mov_b32 v25, v23
    v_permlane16_swap_b32 v22, v24
    v_permlane16_swap_b32 v23, v25
    v_add_f32 v22, v22, v24
    v_add_f32 v23, v23, v25
    v_mov_b32 v24, v22
    v_mov_b32 v25, v23
    v_permlane32_swap_b32 v22, v24
    v_permlane32_swap_b32 v23, v25
    v_add_f32 v22, v22, v24
    v_add_f32 v23, v23, v25
    s_lshl_b32 s37, s23, 7
    s_add_u32 s38, s38, s37
    s_add_u32 s38, s38, {WS['SYNC'] + SYNC_ST3}
    v_lshlrev_b32 v4, 3, v3
    s_mov_b64 exec, 0xffff""")
    dstore(a, f"buffer_store_dwordx2 v[22:23], v4, {WSR}, s38 offen {{F}}")
    a("s_mov_b64 exec, -1")

NW13L = 12
NW13A = 12
NW13B = 30
PACE = 5
CHK1 = 2
FINE = None
L1PK = False
WFIRST = False
PROBE = None
CODEPF = True
DBG = 0
def build():
    a = Asm()
    global stamp
    if FINE:
        real = common.stamp
        def stamp_(a_, i):
            if i == 0: real(a_, 0)
        stamp = stamp_
        def fst(a_, i):
            real(a_, i)
            if FINE == 'P':
                a_(f"s_memtime s[70:71]\ns_waitcnt lgkmcnt(0)\ns_mov_b32 s{72+14+i}, s70")
        globals()['fstamp'] = fst
    else:
        globals()['fstamp'] = lambda a_, i: None
    kbegin(a, KN)
    emit_prologue(a)
    emit_prep_loads(a)
    if False:
        pass
    a("s_waitcnt lgkmcnt(0)")
    a(f"""s_getreg_b32 s36, hwreg(HW_REG_XCC_ID, 0, 4)
    s_add_u32 s{S_IDW}, s{S_GEN}, 13
    s_lshl_b32 s{S_IDW}, s{S_IDW}, 4
    s_or_b32 s{S_IDW}, s{S_IDW}, s36
    s_mov_b32 s{S_LOC}, 0
    s_cmp_lg_u32 s{S_W}, 0
    s_cbranch_scc1 L_noid
    v_mov_b32 v174, s{S_IDW}
    v_mov_b32 v175, s{S_FLAG}
    s_mov_b64 exec, 1
    buffer_store_dword v174, v175, {WSR}, 0 offen offset:4 sc1
    s_mov_b64 exec, -1
    L_noid:""")
    emit_prep_compute(a)
    emit_ffn_roles(a)
    w13ops = [f"s_add_u32 s36, s{40+t}, {kb*1024}\nbuffer_load_dwordx4 {w13(kb,t)}, v31, {WSR}, s36 offen sc1" for kb in range(16) for t in range(3)]
    hooks = dict(conv_loop_extra=w13ops[:NW13L], n_conv_total_w=NW13L, conv_epi_extra=w13ops[NW13L:NW13A])
    emit_conv(a, hooks)
    signal(a, 3)
    stamp(a, 9)
    a("v_and_b32 v1, 63, v0")
    for op in w13ops[NW13A:NW13B]: a(op)
    emit_cs(a, 0, NW13A // 3)
    def su3():
        a(f"v_lshlrev_b32 v9, 6, v1\nv_add_u32 v9, {WS['SYNC'] + SYNC_FLAGS}, v9")
    wg_wait(a, su3, 9, 4, 3, V_T, wave=3)
    stamp(a, 10)
    x1_dma_setup(a)
    x1ops = x1_dma_ops(0)
    for op in x1ops: a(op)
    nC = 48 - NW13B
    a("s_waitcnt vmcnt(16)")
    emit_cs(a, NW13A // 3, NW13B // 3)
    g1_addr(a, 1, WS['H1'])
    a(f"s_waitcnt vmcnt(8)\ns_barrier")
    stamp(a, 11)
    w13c = list(w13ops[NW13B:])
    kbC = NW13B // 3
    x1h1 = x1_dma_ops(1)
    w2q = list(range(44))
    cnt = dict(after=0, h1=0)
    def hook1(P, kb):
        if P == 0:
            if nC:
                if kb == 6: a(f"s_waitcnt vmcnt({nC - len(w13c)})\ns_barrier")
                if kb >= kbC:
                    a(f"s_waitcnt vmcnt({3 * (15 - kb) + cnt['h1']})")
                for _ in range(3):
                    if w13c: a(w13c.pop(0))
                if kb == 8: a(x1h1.pop(0))
                if kb >= 8:
                    a(x1h1.pop(0)); a(x1h1.pop(0)); cnt['h1'] += 2
            else:
                if kb == 6: a(f"s_waitcnt vmcnt({cnt['h1']})\ns_barrier")
                if kb == 0: a(x1h1.pop(0))
                if kb < 8:
                    a(x1h1.pop(0)); a(x1h1.pop(0)); cnt['h1'] += 2
        if P == 1 and kb == 0:
            tiles_dma(a)
            a("v_and_b32 v2, 15, v1\nv_lshrrev_b32 v3, 4, v1")
        if P == 1 and kb == 13:
            a(f"s_waitcnt vmcnt({cnt['after']})\ns_barrier")
        if (P, kb) == ((2, 8) if L1PK else (3, 6)):
            signal(a, 4, tv=(30, 29), local=True, vm='E1')
        if P >= 1 and w2q and not (P == 1 and kb < 2):
            n = 1 if P < 3 else 2
            for _ in range(n):
                if w2q:
                    i = w2q.pop(0); w2_loads(a, i, i + 1)
                    cnt['after'] += 1
                    if P == 3: cnt['sinceE1'] = cnt.get('sinceE1', 0) + 1
        if P == 1 and kb == 0: cnt['after'] = 0
    cnt['sinceE1'] = 0
    if FINE == 'P': fstamp(a, 1)
    g1_stream(a, 1, hook1, cs_from=kbC, st=2)
    if FINE == 'P': fstamp(a, 6)
    assert not w2q, w2q
    signal(a, 5, local=True)
    stamp(a, 14)
    emit_g2(a, 1, WS['H1'], 4, 15)
    signal(a, 6, local=True)
    stamp(a, 19)
    def su6a(): member_flag_off(a, 9, "0", 8)
    wg_wait(a, su6a, 9, 1, 6, V_T)
    stamp(a, 20)
    st3_stats(a, 0)
    for op in x3_dma_ops(0): a(op)
    g1_addr(a, 2, WS['H2'])
    a("s_waitcnt vmcnt(16)")
    st3_finish(a, 0)
    a("s_waitcnt vmcnt(8) lgkmcnt(0)\ns_barrier")
    stamp(a, 21)
    x3h1 = x3_dma_ops(1)
    def hook2(P, kb):
        if P == 0:
            if kb == 0:
                member_flag_off(a, 14, "8", 8)
                a(f"buffer_load_dword v30, v14, {WSR}, 0 offen sc1")
            if kb == 6: a("s_waitcnt vmcnt(1)\ns_barrier")
            if kb == 10:
                L = a.newlabel("x3b")
                a(f"""s_waitcnt vmcnt(0)
                s_add_u32 s37, s{S_GEN}, 6
                v_subrev_u32 v30, s37, v30
                v_cmp_gt_u32 vcc, 16, v30
                s_cmp_eq_u64 vcc, -1
                s_cbranch_scc1 {L}""")
                wait_flags(a, 14, 1, 6, 30)
                a.label(L)
                st3_stats(a, 1)
                a(x3h1.pop(0))
            if kb >= 10:
                for _ in range(2): a(x3h1.pop(0))
        if P == 1:
            if kb < 2:
                for _ in range(2): a(x3h1.pop(0))
            if kb == 6:
                a("s_waitcnt vmcnt(16)")
                st3_finish(a, 1)
            if kb == 13: a("s_waitcnt vmcnt(3) lgkmcnt(3)\ns_barrier" if False else "s_waitcnt vmcnt(0)\ns_barrier")
        if P == 3 and kb == 6:
            signal(a, 7, tv=(30, 29), local=True)
    if FINE == 'P': fstamp(a, 7)
    g1_stream(a, 2, hook2, st=8)
    if FINE == 'P': fstamp(a, 12)
    signal(a, 8, local=True)
    stamp(a, 23)
    emit_g2(a, 2, WS['H2'], 7, 24)
    a(f"""s_or_b32 s36, s2, s{S_W}
    s_cmp_lg_u32 s36, 0
    s_cbranch_scc1 L_nogen
    s_add_u32 s36, s{S_GEN}, 16
    v_mov_b32 v2, s36
    v_mov_b32 v3, {WS['SYNC'] + SYNC_GEN}
    s_mov_b64 exec, 1
    buffer_store_dword v2, v3, {WSR}, 0 offen
    s_mov_b64 exec, -1
    L_nogen:""")
    if PROBE is not None:
        pa, pb, K = PROBE
        a(f"""s_waitcnt vmcnt(0) lgkmcnt(0)
        s_memrealtime s[70:71]
        s_waitcnt lgkmcnt(0)
        s_mov_b32 s100, s70
        s_or_b32 s36, s2, s{S_W}
        s_cmp_lg_u32 s36, 0
        s_cbranch_scc1 L_end
        s_sub_u32 s36, s{72+pb if pb < 28 else 100}, s{72+pa}
        s_mul_i32 s36, s36, {K}
        s_add_u32 s36, s36, s100
        L_spin:
        s_memrealtime s[70:71]
        s_waitcnt lgkmcnt(0)
        s_sub_u32 s37, s70, s36
        s_cmp_lt_i32 s37, 0
        s_cbranch_scc1 L_spin
        s_branch L_end""")
    if common.STAMPS:
        a("s_waitcnt vmcnt(0)"); stamp(a, 28)
    if DBG:
        sel = [1, 2, 3, 4, 5, 6, 7, 9, 10, 11, 14, 15, 19, 21, 23, 28]
        a(f"""s_cmp_lg_u32 s2, {DBG - 1}
        s_cbranch_scc1 L_end
        s_cmp_lg_u32 s{S_W}, 0
        s_cbranch_scc1 L_end
        s_load_dwordx2 s[68:69], s[0:1], {ARG['dbg']}
        s_waitcnt lgkmcnt(0)
        s_mov_b64 exec, 1""")
        for i, k in enumerate(sel):
            a(f"s_sub_u32 s70, s{72+k}, s72\nv_mov_b32 v2, s70\nv_mov_b32 v3, {4*i}\nglobal_store_dword v3, v2, s[68:69]")
    else:
        stamp_flush(a, 0, 29)
    a.label("L_end")
    a("s_endpgm")
    a.label("L_codeend")
    a("s_endpgm")
    txt = header([(None, 256, 256, LDS_TOTAL)]) + a.text() + kernel_desc(KN, 512, 102, 256)
    return txt, a
if __name__ == "__main__":
    common.STAMPS = 's' in sys.argv[2:]
    LOCAL = any(x.startswith('l') for x in sys.argv[2:])
    for x in sys.argv[2:]:
        if x.startswith('l'): LOCSET.update(['flag'] + x[1:].split('+'))
    HALF = 'h' in sys.argv[2:]
    SPREAD = 'nosp' not in sys.argv[2:]
    L1PK = 'pk' in sys.argv[2:]
    for x in sys.argv[2:]:
        if x.startswith('w:'): NW13L, NW13A, NW13B = (int(y) for y in x[2:].split(','))
    for x in sys.argv[2:]:
        if x.startswith('p:'): PROBE = tuple(int(y) for y in x[2:].split(','))
    CODEPF = 'nopf' not in sys.argv[2:]
    DBG = max([int(x[1:]) + 1 for x in sys.argv[2:] if x[0] == 'd' and x[1:].isdigit()] + [0])
    FINE = 'A' if 'fa' in sys.argv[2:] else ('B' if 'fb' in sys.argv[2:] else ('P' if 'fp' in sys.argv[2:] else ('F' if 'ff' in sys.argv[2:] else None)))
    txt, a = build()
    open(sys.argv[1], "w").write(txt)
    print("nops:", a.nnop, "bytes", len(txt))
```

```python
import sys
from asmgen import *
from common import *
import common

KN = NAME + "_kernel"
WSR = "s[28:31]"
INV = "0x80000000"
S_GEN, S_W, S_FLAG = 3, 18, 64
LOCAL = False
HALF = False
S_LOC, S_IDW = 17, 16
DYN = True
DYNSET = {"flag", "x3"}
def LS(kind="flag"): return "" if (LOCAL and kind in LOCSET) else "sc1"
LOCSET = set()
def dstore(a, text, kind="flag"):
    if not DYN or kind not in DYNSET or LOCAL:
        a(text.replace("{F}", LS(kind))); return
    L = a.newlabel("ds")
    a(f"s_cmp_eq_u32 s{S_LOC}, 1\ns_cbranch_scc1 {L}_l")
    a(text.replace("{F}", "sc1"))
    a(f"s_branch {L}_e\n{L}_l:")
    a.nolog += 1
    a(text.replace("{F}", ""))
    a.nolog -= 1
    a.label(f"{L}_e")
def vr(b, n=4): return f"v[{b}:{b+n-1}]"

SPREAD = True
def PGs(d):
    return f"s_lshr_b32 {d}, s2, 3\n    s_and_b32 {d}, {d}, 7" if SPREAD else f"s_mov_b32 {d}, s60"
def PTs(d, t):
    return f"s_lshr_b32 {d}, s2, 6\n    s_lshl_b32 {d}, {d}, 3\n    s_and_b32 {t}, s2, 7\n    s_add_u32 {d}, {d}, {t}" if SPREAD else f"s_mov_b32 {d}, s61"
def rnd_bf16(a, v):
    a(f"v_cvt_pk_bf16_f32 v{v}, v{v}, v{v}\nv_and_b32 v{v}, 0xffff0000, v{v}")
def sum_q(a, v, t):
    a(f"""v_mov_b32 v{t}, v{v}
    v_permlane16_swap_b32 v{v}, v{t}
    v_add_f32 v{v}, v{v}, v{t}
    v_mov_b32 v{t}, v{v}
    v_permlane32_swap_b32 v{v}, v{t}
    v_add_f32 v{v}, v{v}, v{t}""")
def allsum64(a, v, t):
    for r in (8, 4, 2, 1):
        a(f"v_add_f32_dpp v{v}, v{v}, v{v} row_ror:{r} row_mask:0xf bank_mask:0xf")
    sum_q(a, v, t)
def ln_core(a, vsum, vsq):
    a(f"""v_mul_f32 v{vsum}, 0x3b000000, v{vsum}
    v_mul_f32 v{vsq}, 0x3b000000, v{vsq}
    v_fma_f32 v{vsq}, -v{vsum}, v{vsum}, v{vsq}
    v_max_f32 v{vsq}, 0, v{vsq}""")
    rnd_bf16(a, vsq)
    a(f"v_add_f32 v{vsq}, 0x3727c5ac, v{vsq}")
    rnd_bf16(a, vsq)
    a(f"v_sqrt_f32 v{vsq}, v{vsq}")
    rnd_bf16(a, vsq)
    rnd_bf16(a, vsum)
def signal(a, e, tv=(2, 3), barrier=True, local=False, vm=0):
    L = a.newlabel("sg")
    if isinstance(vm, str): a.vmneed(vm)
    else: a(f"s_waitcnt vmcnt({vm})")
    if barrier: a("s_barrier")
    a.nolog += 1
    a(f"""s_cmp_lg_u32 s{S_W}, 0
    s_cbranch_scc1 {L}
    s_add_u32 s36, s{S_GEN}, {e}
    v_mov_b32 v{tv[0]}, s36
    v_mov_b32 v{tv[1]}, s{S_FLAG}
    s_mov_b64 exec, 1""")
    if local: dstore(a, f"buffer_store_dword v{tv[0]}, v{tv[1]}, {WSR}, 0 offen {{F}}")
    else: a(f"buffer_store_dword v{tv[0]}, v{tv[1]}, {WSR}, 0 offen sc1")
    a(f"""s_mov_b64 exec, -1
    {L}:""")
    a.nolog -= 1
def wait_flags(a, voff, nld, e, T, etag=None):
    L = a.newlabel("wf")
    if etag is None:
        a(f"s_add_u32 s37, s{S_GEN}, {e}"); etag = 37
    a(f"s_mov_b32 s38, 0")
    a.nolog += 1
    a.label(L)
    for i in range(nld):
        if i == 0: a(f"buffer_load_dword v{T}, v{voff}, {WSR}, 0 offen sc1")
        else: a(f"s_movk_i32 s39, {4096*i}\nbuffer_load_dword v{T+i}, v{voff}, {WSR}, s39 offen sc1")
    a("s_add_u32 s38, s38, 1\ns_waitcnt vmcnt(0)")
    for k in range(nld):
        a(f"v_subrev_u32 v{T+k}, s{etag}, v{T+k}")
    for k in range(1, nld): a(f"v_max_u32 v{T}, v{T}, v{T+k}")
    a(f"""v_cmp_gt_u32 vcc, 16, v{T}
    s_cmp_gt_u32 s38, 200000
    s_cbranch_scc1 {L}_x
    s_cmp_eq_u64 vcc, -1
    s_cbranch_scc0 {L}
    {L}_x:""")
    a.nolog -= 1
def flagcheck(a, e, regs, voff, label, tmp, off=0):
    a(f"""s_add_u32 s37, s{S_GEN}, {e}
    v_subrev_u32 v{tmp[0]}, s37, v{regs[0]}
    v_subrev_u32 v{tmp[1]}, s37, v{regs[1]}
    v_max_u32 v{tmp[0]}, v{tmp[0]}, v{tmp[1]}
    v_subrev_u32 v{tmp[1]}, s37, v{regs[2]}
    v_max_u32 v{tmp[0]}, v{tmp[0]}, v{tmp[1]}
    v_subrev_u32 v{tmp[1]}, s37, v{regs[3]}
    v_max_u32 v{tmp[0]}, v{tmp[0]}, v{tmp[1]}
    v_cmp_gt_u32 vcc, 16, v{tmp[0]}
    s_cmp_eq_u64 vcc, -1
    s_cbranch_scc1 {label}
    s_mov_b32 s38, 0
    {label}_p:""")
    a.nolog += 1
    for i in range(4):
        if i == 0: a(f"buffer_load_dword v{regs[0]}, v{voff}, {WSR}, 0 offen offset:{off} sc1")
        else: a(f"s_movk_i32 s39, {4096*i}\nbuffer_load_dword v{regs[i]}, v{voff}, {WSR}, s39 offen offset:{off} sc1")
    a(f"""s_add_u32 s38, s38, 1
    s_waitcnt vmcnt(0)
    v_subrev_u32 v{tmp[0]}, s37, v{regs[0]}
    v_subrev_u32 v{tmp[1]}, s37, v{regs[1]}
    v_max_u32 v{tmp[0]}, v{tmp[0]}, v{tmp[1]}
    v_subrev_u32 v{tmp[1]}, s37, v{regs[2]}
    v_max_u32 v{tmp[0]}, v{tmp[0]}, v{tmp[1]}
    v_subrev_u32 v{tmp[1]}, s37, v{regs[3]}
    v_max_u32 v{tmp[0]}, v{tmp[0]}, v{tmp[1]}
    v_cmp_gt_u32 vcc, 16, v{tmp[0]}
    s_cmp_gt_u32 s38, 200000
    s_cbranch_scc1 {label}
    s_cmp_eq_u64 vcc, -1
    s_cbranch_scc0 {label}_p
    {label}:""")
    a.nolog -= 1
def wg_wait(a, setup, voff, nld, e, T, etag=None, wave=0):
    L = a.newlabel("ww")
    a(f"s_cmp_lg_u32 s{S_W}, {wave}\ns_cbranch_scc1 {L}")
    setup()
    wait_flags(a, voff, nld, e, T, etag)
    a.label(L)
    a("s_barrier")

HCS = 4160; XRO = 4 * HCS; CB = XRO + 4608; EXO = 49152
PL = 65536
PW = PL + 16384
W3OFF = 6144 + 32
L_TX = 131072; L_TY = L_TX + 8192; L_ST = L_TY + 8192
LDS_TOTAL = L_ST + 2048

def emit_prologue(a):
    a(f"""s_cmp_ge_u32 s2, 256
    s_cbranch_scc1 L_end""")
    emit_codepf(a)
    a(f"""s_load_dwordx4 s[4:7], s[0:1], {ARG['q']}
    s_load_dwordx4 s[8:11], s[0:1], {ARG['v']}
    s_load_dwordx4 s[12:15], s[0:1], {ARG['h']}
    s_load_dwordx2 s[16:17], s[0:1], {ARG['ws']}
    s_load_dwordx4 s[52:55], s[0:1], {ARG['w1']}
    s_load_dwordx2 s[56:57], s[0:1], {ARG['w2']}
    v_lshrrev_b32 v3, 6, v0
    v_and_b32 v1, 7, v0
    v_readfirstlane_b32 s{S_W}, v3
    s_and_b32 s60, s2, 7
    s_lshr_b32 s61, s2, 3
    v_lshrrev_b32 v2, 3, v0
    {PGs('s36')}
    s_lshl_b32 s36, s36, 7
    {PTs('s37', 's38')}
    s_lshl_b32 s37, s37, 16
    s_add_u32 s36, s36, s37
    v_lshlrev_b32 v4, 4, v1
    v_lshlrev_b32 v5, 11, v2
    v_add3_u32 v4, v4, v5, s36
    s_lshl_b32 s{S_FLAG}, s60, 5
    s_add_u32 s{S_FLAG}, s{S_FLAG}, s61
    s_mov_b32 s19, s{S_FLAG}
    s_lshl_b32 s{S_FLAG}, s{S_FLAG}, 6
    s_add_u32 s{S_FLAG}, s{S_FLAG}, {WS['SYNC'] + SYNC_FLAGS}
    s_waitcnt lgkmcnt(0)""")
    srd(a, 20, 4, S * D * 2)
    srd(a, 24, 6, S * D * 2)
    srd(a, 32, 8, S * D * 2)
    srd(a, 40, 10, D * 8)
    srd(a, 28, 16, WS['END'])
    a(f"""s_add_u32 s36, s16, {WS['SYNC'] + SYNC_GEN}
    s_addc_u32 s37, s17, 0
    s_load_dword s{S_GEN}, s[36:37], 0""")
    stamp(a, 0)

def emit_prep_loads(a):
    a(f"""v_and_b32 v9, 63, v0
    s_lshr_b32 s66, s{S_W}, 1
    s_and_b32 s67, s{S_W}, 1""")
    if WFIRST: emit_prep_loadsW(a)
    a(f"""{PGs('s36')}
    s_lshl_b32 s36, s36, 9
    v_lshlrev_b32 v8, 6, v1
    v_add_u32 v8, s36, v8
    buffer_load_dwordx4 v[44:47], v8, s[40:43], 0 offen
    buffer_load_dwordx4 v[48:51], v8, s[40:43], 0 offen offset:16
    buffer_load_dwordx4 v[52:55], v8, s[40:43], 0 offen offset:32
    buffer_load_dwordx4 v[56:59], v8, s[40:43], 0 offen offset:48
    v_subrev_u32 v5, 3072, v4
    v_subrev_u32 v6, 2048, v4
    v_subrev_u32 v7, 1024, v4
    buffer_load_dwordx4 v[16:19], v5, s[24:27], 0 offen
    buffer_load_dwordx4 v[20:23], v6, s[24:27], 0 offen
    buffer_load_dwordx4 v[24:27], v7, s[24:27], 0 offen
    buffer_load_dwordx4 v[28:31], v4, s[24:27], 0 offen
    buffer_load_dwordx4 v[32:35], v4, s[24:27], 0 offen offset:1024
    buffer_load_dwordx4 v[36:39], v4, s[32:35], 0 offen
    buffer_load_dwordx4 v[40:43], v4, s[32:35], 0 offen offset:1024""")
    if UPFRONT:
        emit_prep_loads2(a)
        emit_prep_loadsQ(a)
        emit_statrows(a)
        if UPFRONT == 1: emit_prep_loadsW(a)

def emit_statrows(a):
    a(f"""v_lshlrev_b32 v10, 4, v9
    s_lshl_b32 s36, s2, 13
    s_lshl_b32 s37, s{S_W}, 11
    s_add_u32 s36, s36, s37
    v_add_u32 v10, s36, v10
    buffer_load_dwordx4 v[68:71], v10, s[20:23], 0 offen
    buffer_load_dwordx4 v[72:75], v10, s[20:23], 0 offen offset:1024""")

def emit_prep_loadsW(a):
    a(f"""s_cmp_eq_u32 s66, 0
    s_cselect_b32 s52, s52, s54
    s_cselect_b32 s53, s53, s55
    s_mov_b32 s54, {D*F*2}
    s_mov_b32 s55, 0x20000
    s_mov_b32 s58, {D*F*2}
    s_mov_b32 s59, 0x20000
    s_mul_i32 s62, s60, {64*2752}
    s_mul_i32 s63, s61, 96
    s_add_u32 s62, s62, s63
    s_mul_i32 s63, s67, 192
    v_add_u32 v176, s63, v9
    s_mul_i32 s36, s66, {W3OFF}
    s_lshl_b32 s63, s63, 4
    s_add_u32 s36, s36, s63
    s_add_u32 s36, s36, {PW}""")
    for i in range(3):
        a(f"""v_add_u32 v177, {64*i}, v176
        v_mul_u32_u24 v178, 43691, v177
        v_lshrrev_b32 v178, 18, v178
        v_mul_u32_u24 v179, 6, v178
        v_sub_u32 v179, v177, v179
        v_mul_u32_u24 v178, 2752, v178
        v_lshl_add_u32 v{184+i}, v179, 4, v178
        s_add_u32 m0, s36, {1024*i}
        buffer_load_dwordx4 v{184+i}, s[52:55], s62 offen lds""")
    a(f"""v_lshrrev_b32 v178, 3, v9
    v_and_b32 v179, 7, v9
    v_lshlrev_b32 v178, 10, v178
    v_lshl_add_u32 v187, v179, 4, v178
    s_lshl_b32 s63, s{S_W}, 13
    {PTs('s36', 's37')}
    s_lshl_b32 s36, s36, 15
    s_add_u32 s36, s36, s63
    {PGs('s63')}
    s_lshl_b32 s63, s63, 7
    s_add_u32 s36, s36, s63
    s_lshl_b32 s63, s{S_W}, 10
    s_add_u32 s63, s63, {PW + 2*6144 + 64}
    s_mov_b32 m0, s63
    buffer_load_dwordx4 v187, s[56:59], s36 offen lds
    s_add_u32 s36, s36, {32*32*1024}
    s_add_u32 m0, s63, 4096
    buffer_load_dwordx4 v187, s[56:59], s36 offen lds""")

def emit_prep_loadsQ(a):
    a(f"""buffer_load_dwordx4 v[60:63], v4, s[20:23], 0 offen
    buffer_load_dwordx4 v[64:67], v4, s[20:23], 0 offen offset:1024""")
def emit_prep_loads2(a):
    a(f"""s_lshl_b32 s65, s19, 1
    s_add_u32 s65, s65, s66
    s_lshl_b32 s37, s65, 1
    s_lshl_b32 s65, s65, 12""")
    srd(a, 44, 12, 4096, offreg=65)
    srd(a, 48, 14, D * 2)
    a(f"""v_lshlrev_b32 v172, 4, v9
    s_lshl_b32 s36, s67, 11
    v_add_u32 v172, s36, v172
    buffer_load_dwordx4 v[192:195], v172, s[44:47], 0 offen
    buffer_load_dwordx4 v[196:199], v172, s[44:47], 0 offen offset:4
    buffer_load_dwordx4 v[200:203], v172, s[44:47], 0 offen offset:8
    buffer_load_dwordx4 v[204:207], v172, s[44:47], 0 offen offset:1024
    buffer_load_dwordx4 v[208:211], v172, s[44:47], 0 offen offset:1028
    buffer_load_dwordx4 v[212:215], v172, s[44:47], 0 offen offset:1032
    v_bfe_u32 v219, v9, 3, 2
    v_and_b32 v220, 7, v9
    v_lshlrev_b32 v13, 1, v220
    v_add_u32 v13, v13, v219
    v_subrev_u32 v13, 16, v13
    v_lshlrev_b32 v13, 1, v13
    v_add_u32 v14, 2, v13
    buffer_load_ushort v216, v13, s[44:47], 0 offen
    buffer_load_ushort v217, v14, s[44:47], 0 offen
    v_mov_b32 v173, s37
    buffer_load_ushort v218, v173, s[48:51], 0 offen""")

def emit_codepf(a):
    if CODEPF:
        a(f"""s_getpc_b64 s[68:69]
        L_pc:
        s_sub_u32 s68, s68, L_pc-{KN}
        s_subb_u32 s69, s69, 0
        v_and_b32 v190, 15, v0
        s_lshr_b32 s36, s2, 3
        s_lshl_b32 s36, s36, 4
        v_add_u32 v190, s36, v190
        v_lshlrev_b32 v190, 7, v190
        v_min_u32 v190, L_codeend-{KN}-4, v190
        global_load_dword v188, v190, s[68:69]""")

def emit_prep_compute(a):
    a(f"""v_sub_u32 v11, 31, v2
    v_lshlrev_b32 v12, 2, v1
    v_xor_b32 v11, v11, v12
    v_lshlrev_b32 v11, 2, v11
    v_lshlrev_b32 v13, 10, v1
    v_add_u32 v11, v11, v13
    v_add_u32 v11, {PL}, v11
    v_xor_b32 v12, v2, v12
    v_lshlrev_b32 v12, 2, v12
    v_add_u32 v12, v12, v13
    v_add_u32 v12, {PL + 8192}, v12
    """)
    a(f"s_waitcnt vmcnt({(25 if UPFRONT == 1 else 20) if UPFRONT else 7})")
    for j in range(8):
        a(f"""v_lshlrev_b32 v{80+j}, 16, v{44+2*j}
        v_and_b32 v{88+j}, 0xffff0000, v{44+2*j}
        v_lshlrev_b32 v{96+j}, 16, v{45+2*j}
        v_and_b32 v{104+j}, 0xffff0000, v{45+2*j}""")
    a(f"s_waitcnt vmcnt({(18 if UPFRONT == 1 else 13) if UPFRONT else 0})")
    stamp(a, 1)
    for i in range(5):
        for p in range(4):
            a(f"""v_lshlrev_b32 v{112+8*i+2*p}, 16, v{16+4*i+p}
            v_and_b32 v{113+8*i+2*p}, 0xffff0000, v{16+4*i+p}""")
    for row in range(2):
        for p in range(4):
            d = 152 + 8 * row + 2 * p
            a(f"v_pk_mul_f32 v[{d}:{d+1}], v[{112+8*row+2*p}:{113+8*row+2*p}], v[{104+2*p}:{105+2*p}]")
    for tt, tap in ((1, 2), (2, 1), (3, 0)):
        for row in range(2):
            for p in range(4):
                d = 152 + 8 * row + 2 * p
                k = 112 + 8 * (row + tt) + 2 * p
                s_ = 80 + 8 * tap + 2 * p
                a(f"v_pk_fma_f32 v[{d}:{d+1}], v[{k}:{k+1}], v[{s_}:{s_+1}], v[{d}:{d+1}]")
    for row in range(2):
        for p in range(4):
            a(f"""v_lshlrev_b32 v{112+8*row+2*p}, 16, v{36+4*row+p}
            v_and_b32 v{113+8*row+2*p}, 0xffff0000, v{36+4*row+p}""")
    for row in range(2):
        for p in range(4):
            d = 152 + 8 * row + 2 * p
            a(f"v_pk_mul_f32 v[{d}:{d+1}], v[{d}:{d+1}], v[{112+8*row+2*p}:{113+8*row+2*p}]")
    for j in range(8):
        a(f"v_cvt_pk_bf16_f32 v{80+j}, v{160+j}, v{152+j}")
    for j in range(8):
        a(f"ds_write_b32 v11, v{80+j} offset:{128*j}")
    a(f"""v_lshrrev_b32 v3, 6, v0
    v_xor_b32 v5, v1, v3
    v_lshlrev_b32 v5, 4, v5
    v_lshlrev_b32 v6, 7, v2
    v_add_u32 v5, v5, v6
    v_add_u32 v5, {PL}, v5
    v_xor_b32 v7, 64, v5
    {PGs('s36')}
    s_lshl_b32 s36, s36, 18
    {PTs('s37', 's38')}
    s_lshl_b32 s37, s37, 7
    s_sub_u32 s4, s36, s37
    s_add_u32 s4, s4, {WS['XR'] + 1984*2}
    s_add_u32 s5, s36, s37
    s_add_u32 s5, s5, {WS['QT']}
    v_lshlrev_b32 v8, 12, v2
    v_lshlrev_b32 v15, 4, v1
    v_add_u32 v8, v8, v15
    v_add_u32 v15, 0x20000, v8
    s_waitcnt lgkmcnt(0)
    s_barrier
    ds_read_b128 v[16:19], v5
    ds_read_b128 v[20:23], v7 offset:4096
    s_waitcnt lgkmcnt(1)
    buffer_store_dwordx4 v[16:19], v8, {WSR}, s4 offen {LS('xr')}
    s_waitcnt lgkmcnt(0)
    buffer_store_dwordx4 v[20:23], v15, {WSR}, s4 offen {LS('xr')}""")
    stamp(a, 2)
    if UPFRONT != 1: emit_prep_loadsW(a)
    if not UPFRONT: emit_prep_loadsQ(a)
    L = a.newlabel("sg1")
    a(f"""s_waitcnt vmcnt({(0 if UPFRONT == 1 else 5) if UPFRONT else 7})
    s_barrier
    s_cmp_lg_u32 s{S_W}, 0
    s_cbranch_scc1 {L}
    s_add_u32 s36, s{S_GEN}, 1
    v_mov_b32 v16, s36
    v_mov_b32 v17, s{S_FLAG}
    s_mov_b64 exec, 1
    buffer_store_dword v16, v17, {WSR}, 0 offen sc1
    s_mov_b64 exec, -1
    {L}:""")
    stamp(a, 3)
    if FINE == 'F': fstamp(a, 9)
    if not UPFRONT:
        emit_statrows(a)
        emit_prep_loads2(a)
    NPF = 0
    if UPFRONT == 2:
        if FINE == 'F': fstamp(a, 6)
        pass
        if FINE == 'F': fstamp(a, 7)
        a(f"""s_mul_i32 s62, s66, {CB}
        v_lshlrev_b32 v4, 4, v9
        s_lshl_b32 s36, s67, 11
        s_add_u32 s36, s36, s62
        s_add_u32 s36, s36, 32
        v_add_u32 v4, s36, v4""")
        for p in range(2):
            L0, L2, L4 = 192 + 12 * p, 196 + 12 * p, 200 + 12 * p
            for j in range(4):
                a(f"v_alignbit_b32 v{112+8*p+j}, v{L2+j}, v{L0+j}, 16")
                a(f"v_alignbit_b32 v{116+8*p+j}, v{L4+j}, v{L2+j}, 16")
            a(f"""ds_write_b128 v4, v[{L0}:{L0+3}] offset:{1024*p}
            ds_write_b128 v4, v[{112+8*p}:{115+8*p}] offset:{1024*p + HCS}
            ds_write_b128 v4, v[{L2}:{L2+3}] offset:{1024*p + 2*HCS}
            ds_write_b128 v4, v[{116+8*p}:{119+8*p}] offset:{1024*p + 3*HCS}""")
        a(f"""v_lshl_or_b32 v216, v217, 16, v216
        v_mul_u32_u24 v13, {HCS}, v219
        v_lshl_add_u32 v13, v220, 2, v13
        v_add_u32 v13, s62, v13
        ds_write_b32 v13, v216
        v_lshlrev_b32 v20, 16, v218
        v_mov_b32 v92, 0
        v_mov_b32 v93, 0
        v_mov_b32 v94, 0
        v_mov_b32 v95, 0
        v_and_b32 v16, 31, v9
        v_lshlrev_b32 v16, 4, v16
        v_add_u32 v16, s62, v16
        ds_write_b128 v16, v[92:95] offset:{XRO+4096}
        s_waitcnt lgkmcnt(0)""")
        if FINE == 'F': fstamp(a, 2)
        pass
        if FINE == 'F': fstamp(a, 3)
        a("s_mov_b32 s36, 0x05040100\ns_mov_b32 s37, 0x07060302")
        for p in range(4):
            a(f"""v_perm_b32 v{88+2*p}, v{64+p}, v{60+p}, s36
            v_perm_b32 v{89+2*p}, v{64+p}, v{60+p}, s37""")
        for j in range(8):
            a(f"ds_write_b32 v12, v{88+j} offset:{128*j}")
        if FINE == 'F': fstamp(a, 4)
        pass
        if FINE == 'F': fstamp(a, 5)
        a("v_mov_b32 v14, 0x3f803f80")
        for row in range(2):
            su, sq = 96 + 2 * row, 97 + 2 * row
            a(f"v_mov_b32 v{su}, 0\nv_mov_b32 v{sq}, 0")
        for p in range(4):
            for row in range(2):
                su, sq = 96 + 2 * row, 97 + 2 * row; b = 68 + 4 * row
                a(f"v_dot2_f32_bf16 v{su}, v{b+p}, v14, v{su}\nv_dot2_f32_bf16 v{sq}, v{b+p}, v{b+p}, v{sq}")
        for r in (8, 4, 2, 1):
            for v in (96, 97, 98, 99):
                a(f"v_add_f32_dpp v{v}, v{v}, v{v} row_ror:{r} row_mask:0xf bank_mask:0xf")
        for k, v in enumerate((96, 97, 98, 99)): a(f"v_mov_b32 v{100+k}, v{v}")
        for k, v in enumerate((96, 97, 98, 99)): a(f"v_permlane16_swap_b32 v{v}, v{100+k}")
        for k, v in enumerate((96, 97, 98, 99)): a(f"v_add_f32 v{v}, v{v}, v{100+k}")
        for k, v in enumerate((96, 97, 98, 99)): a(f"v_mov_b32 v{100+k}, v{v}")
        for k, v in enumerate((96, 97, 98, 99)): a(f"v_permlane32_swap_b32 v{v}, v{100+k}")
        for k, v in enumerate((96, 97, 98, 99)): a(f"v_add_f32 v{v}, v{v}, v{100+k}")
        ln_core(a, 96, 97); ln_core(a, 98, 99)
        a(f"""v_rcp_f32 v102, v97
        v_rcp_f32 v103, v99
        v_mul_f32 v104, -v96, v102
        v_mul_f32 v105, -v98, v103
        s_lshl_b32 s36, s2, 5
        s_lshl_b32 s37, s{S_W}, 3
        s_add_u32 s11, s36, s37
        s_add_u32 s11, s11, {WS['RS0']}""")
        a(f"""v_mov_b32 v101, s11
        s_mov_b32 s37, {WS['C0']-WS['RS0']}
        s_mov_b64 exec, 1
        buffer_store_dwordx2 v[102:103], v101, {WSR}, 0 offen sc1
        buffer_store_dwordx2 v[104:105], v101, {WSR}, s37 offen sc1
        s_mov_b64 exec, -1
        s_waitcnt lgkmcnt(0)
        s_barrier
        ds_read_b128 v[72:75], v5 offset:8192
        ds_read_b128 v[76:79], v7 offset:{8192+4096}
        s_waitcnt lgkmcnt(1)
        buffer_store_dwordx4 v[72:75], v8, {WSR}, s5 offen sc1
        s_waitcnt lgkmcnt(0)
        buffer_store_dwordx4 v[76:79], v15, {WSR}, s5 offen sc1""")
        a("s_waitcnt vmcnt(4)\ns_barrier")
        if FINE == 'F': fstamp(a, 1)
        a(f"""v_lshrrev_b32 v178, 4, v9
        v_bfe_u32 v179, v9, 2, 2
        v_and_b32 v180, 3, v9
        v_lshl_add_u32 v181, v178, 4, v179
        v_mul_u32_u24 v181, 96, v181
        v_and_b32 v182, 1, v180
        v_lshl_add_u32 v181, v182, 3, v181
        v_lshrrev_b32 v182, 1, v180
        v_mul_u32_u24 v182, {W3OFF}, v182
        v_add_u32 v181, v181, v182
        v_lshlrev_b32 v183, 4, v9""")
        for i in range(3):
            a(f"""s_mul_i32 s36, s{S_W}, 3
            s_add_u32 s36, s36, {i}
            s_lshr_b32 s37, s36, 1
            s_and_b32 s36, s36, 1
            s_lshl_b32 s38, s37, 4
            s_mul_i32 s39, s36, {8*96}
            s_add_u32 s38, s38, s39
            s_add_u32 s38, s38, {PW}
            v_add_u32 v182, s38, v181
            ds_read_b64_tr_b16 v[{144+4*i}:{145+4*i}], v182
            ds_read_b64_tr_b16 v[{146+4*i}:{147+4*i}], v182 offset:{4*96}
            s_mul_i32 s38, s61, 6
            s_add_u32 s38, s38, s37
            s_lshl_b32 s39, s38, 14
            s_lshl_b32 s37, s60, 11
            s_add_u32 s39, s39, s37
            s_lshl_b32 s36, s36, 10
            s_add_u32 s39, s39, s36
            s_add_u32 s39, s39, {WS['WF13']}
            s_cmp_lt_u32 s38, 172
            s_cselect_b32 s{6+i}, s39, {INV}""")
        a(f"""v_lshl_add_u32 v181, v178, 2, v179
        v_lshlrev_b32 v181, 7, v181
        v_lshl_add_u32 v181, v180, 5, v181
        s_lshl_b32 s36, s{S_W}, 3
        s_add_u32 s36, s36, {PW + 2*6144 + 64}
        v_add_u32 v181, s36, v181""")
        for i in range(2):
            a(f"""ds_read_b64_tr_b16 v[{156+4*i}:{157+4*i}], v181 offset:{4096*i}
            ds_read_b64_tr_b16 v[{158+4*i}:{159+4*i}], v181 offset:{4096*i + 2048}
            {PTs('s36', 's37')}
            s_add_u32 s36, s36, {32*i}
            {PGs('s37')}
            s_mul_i32 s37, s37, 43
            s_add_u32 s37, s37, s36
            s_lshl_b32 s37, s37, 12
            s_lshl_b32 s38, s{S_W}, 10
            s_add_u32 s37, s37, s38
            s_add_u32 s37, s37, {WS['WF2']}
            s_cmp_lt_u32 s36, 43
            s_cselect_b32 s{9+i}, s37, {INV}""")
        for i in range(5):
            a(f"s_waitcnt lgkmcnt({2*(4-i)})\nbuffer_store_dwordx4 {vr(144+4*i)}, v183, {WSR}, s{6+i} offen sc1")
        a("s_waitcnt lgkmcnt(0)")
        stamp(a, 4)
        return
    a(f"s_waitcnt vmcnt({2 + 2 + 9 + NPF})\ns_barrier")
    if FINE == 'F': fstamp(a, 1)
    a(f"""v_lshrrev_b32 v178, 4, v9
    v_bfe_u32 v179, v9, 2, 2
    v_and_b32 v180, 3, v9
    v_lshl_add_u32 v181, v178, 4, v179
    v_mul_u32_u24 v181, 96, v181
    v_and_b32 v182, 1, v180
    v_lshl_add_u32 v181, v182, 3, v181
    v_lshrrev_b32 v182, 1, v180
    v_mul_u32_u24 v182, {W3OFF}, v182
    v_add_u32 v181, v181, v182
    v_lshlrev_b32 v183, 4, v9""")
    for i in range(3):
        a(f"""s_mul_i32 s36, s{S_W}, 3
        s_add_u32 s36, s36, {i}
        s_lshr_b32 s37, s36, 1
        s_and_b32 s36, s36, 1
        s_lshl_b32 s38, s37, 4
        s_mul_i32 s39, s36, {8*96}
        s_add_u32 s38, s38, s39
        s_add_u32 s38, s38, {PW}
        v_add_u32 v182, s38, v181
        ds_read_b64_tr_b16 v[{144+4*i}:{145+4*i}], v182
        ds_read_b64_tr_b16 v[{146+4*i}:{147+4*i}], v182 offset:{4*96}
        s_mul_i32 s38, s61, 6
        s_add_u32 s38, s38, s37
        s_lshl_b32 s39, s38, 14
        s_lshl_b32 s37, s60, 11
        s_add_u32 s39, s39, s37
        s_lshl_b32 s36, s36, 10
        s_add_u32 s39, s39, s36
        s_add_u32 s39, s39, {WS['WF13']}
        s_cmp_lt_u32 s38, 172
        s_cselect_b32 s{6+i}, s39, {INV}""")
    a(f"""v_lshl_add_u32 v181, v178, 2, v179
    v_lshlrev_b32 v181, 7, v181
    v_lshl_add_u32 v181, v180, 5, v181
    s_lshl_b32 s36, s{S_W}, 3
    s_add_u32 s36, s36, {PW + 2*6144 + 64}
    v_add_u32 v181, s36, v181""")
    for i in range(2):
        a(f"""ds_read_b64_tr_b16 v[{156+4*i}:{157+4*i}], v181 offset:{4096*i}
        ds_read_b64_tr_b16 v[{158+4*i}:{159+4*i}], v181 offset:{4096*i + 2048}
        {PTs('s36', 's37')}
        s_add_u32 s36, s36, {32*i}
        {PGs('s37')}
        s_mul_i32 s37, s37, 43
        s_add_u32 s37, s37, s36
        s_lshl_b32 s37, s37, 12
        s_lshl_b32 s38, s{S_W}, 10
        s_add_u32 s37, s37, s38
        s_add_u32 s37, s37, {WS['WF2']}
        s_cmp_lt_u32 s36, 43
        s_cselect_b32 s{9+i}, s37, {INV}""")
    for i in range(5):
        a(f"s_waitcnt lgkmcnt({2*(4-i)})\nbuffer_store_dwordx4 {vr(144+4*i)}, v183, {WSR}, s{6+i} offen sc1")
    if FINE == 'F': fstamp(a, 2)
    a(f"s_waitcnt vmcnt({2 + 9 + NPF + 5})")
    if FINE == 'F': fstamp(a, 3)
    a("s_mov_b32 s36, 0x05040100\ns_mov_b32 s37, 0x07060302")
    for p in range(4):
        a(f"""v_perm_b32 v{88+2*p}, v{64+p}, v{60+p}, s36
        v_perm_b32 v{89+2*p}, v{64+p}, v{60+p}, s37""")
    for j in range(8):
        a(f"ds_write_b32 v12, v{88+j} offset:{128*j}")
    if FINE == 'F': fstamp(a, 4)
    a(f"s_waitcnt vmcnt({9 + NPF + 5})")
    if FINE == 'F': fstamp(a, 5)
    a("v_mov_b32 v14, 0x3f803f80")
    for row in range(2):
        su, sq = 96 + 2 * row, 97 + 2 * row
        a(f"v_mov_b32 v{su}, 0\nv_mov_b32 v{sq}, 0")
    for p in range(4):
        for row in range(2):
            su, sq = 96 + 2 * row, 97 + 2 * row; b = 68 + 4 * row
            a(f"v_dot2_f32_bf16 v{su}, v{b+p}, v14, v{su}\nv_dot2_f32_bf16 v{sq}, v{b+p}, v{b+p}, v{sq}")
    for r in (8, 4, 2, 1):
        for v in (96, 97, 98, 99):
            a(f"v_add_f32_dpp v{v}, v{v}, v{v} row_ror:{r} row_mask:0xf bank_mask:0xf")
    for k, v in enumerate((96, 97, 98, 99)): a(f"v_mov_b32 v{100+k}, v{v}")
    for k, v in enumerate((96, 97, 98, 99)): a(f"v_permlane16_swap_b32 v{v}, v{100+k}")
    for k, v in enumerate((96, 97, 98, 99)): a(f"v_add_f32 v{v}, v{v}, v{100+k}")
    for k, v in enumerate((96, 97, 98, 99)): a(f"v_mov_b32 v{100+k}, v{v}")
    for k, v in enumerate((96, 97, 98, 99)): a(f"v_permlane32_swap_b32 v{v}, v{100+k}")
    for k, v in enumerate((96, 97, 98, 99)): a(f"v_add_f32 v{v}, v{v}, v{100+k}")
    ln_core(a, 96, 97); ln_core(a, 98, 99)
    a(f"""v_rcp_f32 v102, v97
    v_rcp_f32 v103, v99
    v_mul_f32 v104, -v96, v102
    v_mul_f32 v105, -v98, v103
    s_lshl_b32 s36, s2, 5
    s_lshl_b32 s37, s{S_W}, 3
    s_add_u32 s11, s36, s37
    s_add_u32 s11, s11, {WS['RS0']}""")
    a(f"""v_mov_b32 v101, s11
    s_mov_b32 s37, {WS['C0']-WS['RS0']}
    s_mov_b64 exec, 1
    buffer_store_dwordx2 v[102:103], v101, {WSR}, 0 offen sc1
    buffer_store_dwordx2 v[104:105], v101, {WSR}, s37 offen sc1
    s_mov_b64 exec, -1
    s_waitcnt lgkmcnt(0)
    s_barrier
    ds_read_b128 v[72:75], v5 offset:8192
    ds_read_b128 v[76:79], v7 offset:{8192+4096}
    s_waitcnt lgkmcnt(1)
    buffer_store_dwordx4 v[72:75], v8, {WSR}, s5 offen sc1
    s_waitcnt lgkmcnt(0)
    buffer_store_dwordx4 v[76:79], v15, {WSR}, s5 offen sc1""")
    if FINE == 'F': fstamp(a, 6)
    a("s_waitcnt vmcnt(9)")
    if FINE == 'F': fstamp(a, 7)
    a(f"""s_mul_i32 s62, s66, {CB}
    v_lshlrev_b32 v4, 4, v9
    s_lshl_b32 s36, s67, 11
    s_add_u32 s36, s36, s62
    s_add_u32 s36, s36, 32
    v_add_u32 v4, s36, v4""")
    for p in range(2):
        L0, L2, L4 = 192 + 12 * p, 196 + 12 * p, 200 + 12 * p
        for j in range(4):
            a(f"v_alignbit_b32 v{112+8*p+j}, v{L2+j}, v{L0+j}, 16")
            a(f"v_alignbit_b32 v{116+8*p+j}, v{L4+j}, v{L2+j}, 16")
        a(f"""ds_write_b128 v4, v[{L0}:{L0+3}] offset:{1024*p}
        ds_write_b128 v4, v[{112+8*p}:{115+8*p}] offset:{1024*p + HCS}
        ds_write_b128 v4, v[{L2}:{L2+3}] offset:{1024*p + 2*HCS}
        ds_write_b128 v4, v[{116+8*p}:{119+8*p}] offset:{1024*p + 3*HCS}""")
    a(f"""v_lshl_or_b32 v216, v217, 16, v216
    v_mul_u32_u24 v13, {HCS}, v219
    v_lshl_add_u32 v13, v220, 2, v13
    v_add_u32 v13, s62, v13
    ds_write_b32 v13, v216
    v_lshlrev_b32 v20, 16, v218
    v_mov_b32 v92, 0
    v_mov_b32 v93, 0
    v_mov_b32 v94, 0
    v_mov_b32 v95, 0
    v_and_b32 v16, 31, v9
    v_lshlrev_b32 v16, 4, v16
    v_add_u32 v16, s62, v16
    ds_write_b128 v16, v[92:95] offset:{XRO+4096}
    s_waitcnt lgkmcnt(0)""")
    stamp(a, 4)
    if FINE == 'F': fstamp(a, 8)

def emit_conv(a, hooks):
    a("v_and_b32 v1, 63, v0")
    def su1():
        if SPREAD:
            a(f"""v_and_b32 v2, 7, v1
            v_lshlrev_b32 v2, 5, v2
            v_bfe_u32 v3, v1, 3, 2
            v_lshl_add_u32 v2, v3, 3, v2
            v_add_u32 v2, s60, v2
            v_lshlrev_b32 v2, 6, v2
            v_add_u32 v2, {WS['SYNC'] + SYNC_FLAGS}, v2""")
        else:
            a(f"""v_and_b32 v2, 31, v1
            s_lshl_b32 s36, s60, 5
            v_add_u32 v2, s36, v2
            v_lshlrev_b32 v2, 6, v2
            v_add_u32 v2, {WS['SYNC'] + SYNC_FLAGS}, v2""")
    signal(a, 2)
    wg_wait(a, su1, 2, 1, 1, 64)
    stamp(a, 5)
    a(f"""v_lshlrev_b32 v10, 4, v1
    s_lshl_b32 s36, s67, 11
    s_add_u32 s37, s65, s36
    s_add_u32 s37, s37, {WS['XR']}
    s_add_u32 s38, s62, s36
    s_add_u32 s38, s38, {XRO}
    s_mov_b32 m0, s38
    buffer_load_dwordx4 v10, {WSR}, s37 offen sc1 lds
    s_add_u32 s38, s38, 1024
    s_add_u32 s37, s37, 1024
    s_mov_b32 m0, s38
    buffer_load_dwordx4 v10, {WSR}, s37 offen sc1 lds
    v_and_b32 v11, 15, v1
    v_lshrrev_b32 v12, 4, v1
    v_lshlrev_b32 v13, 4, v11
    v_lshl_add_u32 v13, v12, 2, v13
    s_lshl_b32 s36, s67, 10
    v_add_u32 v13, s36, v13
    v_lshlrev_b32 v14, 1, v13
    v_lshlrev_b32 v15, 2, v13
    v_lshlrev_b32 v22, 6, v1
    v_add_u32 v22, {WS['SYNC'] + SYNC_FLAGS}, v22""")
    a(f"""v_add_u32 v17, 1, v11
    v_and_b32 v18, 3, v17
    v_mul_u32_u24 v18, {HCS}, v18
    v_lshrrev_b32 v17, 2, v17
    v_lshlrev_b32 v17, 3, v17
    v_lshl_add_u32 v17, v12, 4, v17
    v_add_u32 v17, v17, v18
    s_lshl_b32 s36, s67, 8
    s_add_u32 s37, s36, s62
    v_add_u32 v17, s37, v17
    v_lshlrev_b32 v18, 5, v11
    v_lshlrev_b32 v19, 4, v12
    v_sub_u32 v18, v19, v18
    s_add_u32 s37, s37, {XRO + 480}
    v_add_u32 v18, s37, v18""")
    for r in range(32, 64): a(f"v_mov_b32 v{r}, 0")
    a(f"s_waitcnt vmcnt(0)\ns_barrier")
    stamp(a, 6)
    pre = []
    for i in range(4):
        pre.append(f"buffer_load_dwordx2 v[{192+2*i}:{193+2*i}], v14, {WSR}, s10 offen offset:{512*i} sc1")
    for i in range(4):
        pre.append(f"buffer_load_dwordx4 v[{200+4*i}:{203+4*i}], v15, {WSR}, s8 offen offset:{1024*i} sc1")
        pre.append(f"buffer_load_dwordx4 v[{216+4*i}:{219+4*i}], v15, {WSR}, s9 offen offset:{1024*i} sc1")
    def load_frags(setbase, bi):
        ops = []
        for x in range(8):
            A = setbase + 4 * x
            ops.append(f"ds_read_b64 v[{A}:{A+1}], v17 offset:{512*x + 64*bi}")
            ops.append(f"ds_read_b64 v[{A+2}:{A+3}], v17 offset:{512*x + 64*bi + 8}")
            B = setbase + 32 + 4 * x
            ops.append(f"ds_read_b128 v[{B}:{B+3}], v18 offset:{512*(7-x) + 64*bi}")
        return ops
    sets = (64, 128)
    for op in load_frags(sets[0], 0): a(op)
    extra = []
    for bi in range(4):
        cur = sets[bi & 1]
        nxt = load_frags(sets[(bi + 1) & 1], bi + 1) if bi < 3 else []
        if bi == 0:
            for i in range(4):
                if i == 0: a(f"buffer_load_dword v24, v22, {WSR}, 0 offen sc1")
                else: a(f"s_movk_i32 s39, {4096*i}\nbuffer_load_dword v{24+i}, v22, {WSR}, s39 offen sc1")
            member_flag_off(a, 23, "0", 16)
            a(f"buffer_load_dword v28, v23, {WSR}, 0 offen offset:4 sc1")
        if bi == CHK1:
            a(f"""s_waitcnt vmcnt(0)
            v_cmp_eq_u32 vcc, s{S_IDW}, v28
            s_cmp_eq_u64 vcc, -1
            s_cselect_b32 s{S_LOC}, 1, 0""")
            flagcheck(a, 2, (24, 25, 26, 27), 22, "L_c_ok1", tmp=(29, 30))
            a(f"s_mov_b32 s8, {WS['RS0']}\ns_mov_b32 s9, {WS['C0']}\ns_add_u32 s10, s65, {WS['QT']}")
            extra0 = pre
            extra = pre + list(hooks['conv_loop_extra'])
        a("s_waitcnt lgkmcnt(0)")
        pairs = sorted([(jt, aa) for jt in range(8) for aa in range(jt + 1)], key=lambda p: (p[1], p[0]))
        k = 0
        for idx, (jt, aa) in enumerate(pairs):
            A = cur + 4 * aa; B = cur + 32 + 4 * (jt - aa); C = 32 + 4 * jt
            a(f"v_mfma_f32_16x16x32_bf16 v[{C}:{C+3}], v[{A}:{A+3}], v[{B}:{B+3}], v[{C}:{C+3}]")
            if idx < 24 and k < len(nxt):
                a(nxt[k]); k += 1
            if extra and idx % PACE == PACE - 1 or (extra and bi == CHK1 and idx < 12):
                a(extra.pop(0))
    for op in extra: a(op)
    stamp(a, 7)
    a(f"""v_lshlrev_b32 v4, 4, v1
    s_lshl_b32 s36, s{S_W}, 12
    s_add_u32 s36, s36, {EXO}
    v_add_u32 v5, s36, v4
    s_xor_b32 s36, s36, 4096
    v_add_u32 v6, s36, v4
    s_cmp_eq_u32 s67, 0
    s_cbranch_scc0 L_c_x1""")
    for half in range(2):
        own, oth = (32, 48) if half == 0 else (48, 32)
        for i in range(4): a(f"ds_write_b128 v5, v[{oth+4*i}:{oth+4*i+3}] offset:{1024*i}")
        a("s_waitcnt lgkmcnt(0)\ns_barrier")
        for i in range(4): a(f"ds_read_b128 v[{80+4*i}:{83+4*i}], v6 offset:{1024*i}")
        a("s_waitcnt lgkmcnt(0)")
        for i in range(4):
            for h in range(2):
                a(f"v_pk_add_f32 v[{64+4*i+2*h}:{65+4*i+2*h}], v[{own+4*i+2*h}:{own+4*i+2*h+1}], v[{80+4*i+2*h}:{81+4*i+2*h}]")
        if half == 0:
            a("s_branch L_c_x2\nL_c_x1:")
    a.label("L_c_x2")
    a(f"""v_lshlrev_b32 v7, 5, v11
    v_lshl_add_u32 v7, v12, 3, v7
    s_lshl_b32 s36, s67, 11
    s_sub_u32 s37, s62, s36
    s_add_u32 s37, s37, {XRO + 4088 - 1536}
    v_sub_u32 v7, s37, v7""")
    for i in range(4): a(f"ds_read_b64 v[{96+2*i}:{97+2*i}], v7 offset:{512*(3-i)}")
    a(f"""s_lshr_b32 s39, s65, 12
    s_mul_i32 s39, s39, {XP}
    s_add_u32 s38, s39, {WS['YT']}
    s_add_u32 s39, s39, {WS['X1T']}
    s_waitcnt vmcnt({hooks['n_conv_total_w']}) lgkmcnt(0)""")
    for op in hooks['conv_epi_extra']: a(op)
    O = lambda i: 64 + 4 * i
    T = lambda i: 104 + 10 * i
    for i in range(4):
        kv = 96 + 2 * i
        a(f"""v_and_b32 v{T(i)}, 0xffff0000, v{kv+1}
        v_lshlrev_b32 v{T(i)+1}, 16, v{kv+1}
        v_and_b32 v{T(i)+2}, 0xffff0000, v{kv}
        v_lshlrev_b32 v{T(i)+3}, 16, v{kv}""")
    for i in range(4):
        a(f"""v_pk_fma_f32 v[{O(i)}:{O(i)+1}], v[{T(i)}:{T(i)+1}], v[20:21], v[{O(i)}:{O(i)+1}] op_sel_hi:[1,0,1]
        v_pk_fma_f32 v[{O(i)+2}:{O(i)+3}], v[{T(i)+2}:{T(i)+3}], v[20:21], v[{O(i)+2}:{O(i)+3}] op_sel_hi:[1,0,1]""")
    for i in range(4):
        a(f"""v_cvt_pk_bf16_f32 v{T(i)+4}, v{O(i)}, v{O(i)+1}
        v_cvt_pk_bf16_f32 v{T(i)+5}, v{O(i)+2}, v{O(i)+3}""")
    for i in range(4):
        a(f"""v_lshlrev_b32 v{T(i)}, 16, v{192+2*i}
        v_and_b32 v{T(i)+1}, 0xffff0000, v{192+2*i}
        v_lshlrev_b32 v{T(i)+2}, 16, v{193+2*i}
        v_and_b32 v{T(i)+3}, 0xffff0000, v{193+2*i}
        buffer_store_dwordx2 v[{T(i)+4}:{T(i)+5}], v14, {WSR}, s38 offen offset:{512*i} sc1""")
    for i in range(4):
        a(f"""v_lshlrev_b32 v{O(i)}, 16, v{T(i)+4}
        v_and_b32 v{O(i)+1}, 0xffff0000, v{T(i)+4}
        v_lshlrev_b32 v{O(i)+2}, 16, v{T(i)+5}
        v_and_b32 v{O(i)+3}, 0xffff0000, v{T(i)+5}
        v_pk_fma_f32 v[{T(i)+6}:{T(i)+7}], v[{T(i)}:{T(i)+1}], v[{200+4*i}:{201+4*i}], v[{216+4*i}:{217+4*i}]
        v_pk_fma_f32 v[{T(i)+8}:{T(i)+9}], v[{T(i)+2}:{T(i)+3}], v[{202+4*i}:{203+4*i}], v[{218+4*i}:{219+4*i}]""")
    for i in range(4):
        a(f"""v_pk_fma_f32 v[{T(i)+6}:{T(i)+7}], v[{T(i)+6}:{T(i)+7}], v[{O(i)}:{O(i)+1}], v[{T(i)}:{T(i)+1}]
        v_pk_fma_f32 v[{T(i)+8}:{T(i)+9}], v[{T(i)+8}:{T(i)+9}], v[{O(i)+2}:{O(i)+3}], v[{T(i)+2}:{T(i)+3}]""")
    for i in range(4):
        a(f"""v_cvt_pk_bf16_f32 v{O(i)}, v{T(i)+6}, v{T(i)+7}
        v_cvt_pk_bf16_f32 v{O(i)+1}, v{T(i)+8}, v{T(i)+9}
        buffer_store_dwordx2 v[{O(i)}:{O(i)+1}], v14, {WSR}, s39 offen offset:{512*i} sc1""")
    stamp(a, 8)


def blk_addr(a):
    a(f"""v_sub_u32 v11, 31, v2
    v_lshlrev_b32 v12, 2, v1
    v_xor_b32 v11, v11, v12
    v_lshlrev_b32 v11, 2, v11
    v_lshlrev_b32 v13, 10, v1
    v_add_u32 v11, v11, v13
    v_add_u32 v11, {PL}, v11
    v_xor_b32 v12, v2, v12
    v_lshlrev_b32 v12, 2, v12
    v_add_u32 v12, v12, v13
    v_add_u32 v12, {PL + 8192}, v12
    """)

def blk_skun(a):
    for j in range(8):
        a(f"""v_lshlrev_b32 v{80+j}, 16, v{44+2*j}
        v_and_b32 v{88+j}, 0xffff0000, v{44+2*j}
        v_lshlrev_b32 v{96+j}, 16, v{45+2*j}
        v_and_b32 v{104+j}, 0xffff0000, v{45+2*j}""")

def blk_kv(a):
    for i in range(5):
        for p in range(4):
            a(f"""v_lshlrev_b32 v{112+8*i+2*p}, 16, v{16+4*i+p}
            v_and_b32 v{113+8*i+2*p}, 0xffff0000, v{16+4*i+p}""")
    for row in range(2):
        for p in range(4):
            d = 152 + 8 * row + 2 * p
            a(f"v_pk_mul_f32 v[{d}:{d+1}], v[{112+8*row+2*p}:{113+8*row+2*p}], v[{104+2*p}:{105+2*p}]")
    for tt, tap in ((1, 2), (2, 1), (3, 0)):
        for row in range(2):
            for p in range(4):
                d = 152 + 8 * row + 2 * p
                k = 112 + 8 * (row + tt) + 2 * p
                s_ = 80 + 8 * tap + 2 * p
                a(f"v_pk_fma_f32 v[{d}:{d+1}], v[{k}:{k+1}], v[{s_}:{s_+1}], v[{d}:{d+1}]")
    for row in range(2):
        for p in range(4):
            a(f"""v_lshlrev_b32 v{112+8*row+2*p}, 16, v{36+4*row+p}
            v_and_b32 v{113+8*row+2*p}, 0xffff0000, v{36+4*row+p}""")
    for row in range(2):
        for p in range(4):
            d = 152 + 8 * row + 2 * p
            a(f"v_pk_mul_f32 v[{d}:{d+1}], v[{d}:{d+1}], v[{112+8*row+2*p}:{113+8*row+2*p}]")
    for j in range(8):
        a(f"v_cvt_pk_bf16_f32 v{80+j}, v{160+j}, v{152+j}")
    for j in range(8):
        a(f"ds_write_b32 v11, v{80+j} offset:{128*j}")
    a(f"""v_lshrrev_b32 v3, 6, v0
    v_xor_b32 v5, v1, v3
    v_lshlrev_b32 v5, 4, v5
    v_lshlrev_b32 v6, 7, v2
    v_add_u32 v5, v5, v6
    v_add_u32 v5, {PL}, v5
    v_xor_b32 v7, 64, v5
    {PGs('s36')}
    s_lshl_b32 s36, s36, 18
    {PTs('s37', 's38')}
    s_lshl_b32 s37, s37, 7
    s_sub_u32 s4, s36, s37
    s_add_u32 s4, s4, {WS['XR'] + 1984*2}
    s_add_u32 s5, s36, s37
    s_add_u32 s5, s5, {WS['QT']}
    v_lshlrev_b32 v8, 12, v2
    v_lshlrev_b32 v15, 4, v1
    v_add_u32 v8, v8, v15
    v_add_u32 v15, 0x20000, v8
    s_waitcnt lgkmcnt(0)
    s_barrier
    ds_read_b128 v[16:19], v5
    ds_read_b128 v[20:23], v7 offset:4096
    s_waitcnt lgkmcnt(1)
    buffer_store_dwordx4 v[16:19], v8, {WSR}, s4 offen {LS('xr')}
    s_waitcnt lgkmcnt(0)
    buffer_store_dwordx4 v[20:23], v15, {WSR}, s4 offen {LS('xr')}""")

def blk_wtr(a):
    a(f"""v_lshrrev_b32 v178, 4, v9
    v_bfe_u32 v179, v9, 2, 2
    v_and_b32 v180, 3, v9
    v_lshl_add_u32 v181, v178, 4, v179
    v_mul_u32_u24 v181, 96, v181
    v_and_b32 v182, 1, v180
    v_lshl_add_u32 v181, v182, 3, v181
    v_lshrrev_b32 v182, 1, v180
    v_mul_u32_u24 v182, {W3OFF}, v182
    v_add_u32 v181, v181, v182
    v_lshlrev_b32 v183, 4, v9""")
    for i in range(3):
        a(f"""s_mul_i32 s36, s{S_W}, 3
        s_add_u32 s36, s36, {i}
        s_lshr_b32 s37, s36, 1
        s_and_b32 s36, s36, 1
        s_lshl_b32 s38, s37, 4
        s_mul_i32 s39, s36, {8*96}
        s_add_u32 s38, s38, s39
        s_add_u32 s38, s38, {PW}
        v_add_u32 v182, s38, v181
        ds_read_b64_tr_b16 v[{144+4*i}:{145+4*i}], v182
        ds_read_b64_tr_b16 v[{146+4*i}:{147+4*i}], v182 offset:{4*96}
        s_mul_i32 s38, s61, 6
        s_add_u32 s38, s38, s37
        s_lshl_b32 s39, s38, 14
        s_lshl_b32 s37, s60, 11
        s_add_u32 s39, s39, s37
        s_lshl_b32 s36, s36, 10
        s_add_u32 s39, s39, s36
        s_add_u32 s39, s39, {WS['WF13']}
        s_cmp_lt_u32 s38, 172
        s_cselect_b32 s{6+i}, s39, {INV}""")
    a(f"""v_lshl_add_u32 v181, v178, 2, v179
    v_lshlrev_b32 v181, 7, v181
    v_lshl_add_u32 v181, v180, 5, v181
    s_lshl_b32 s36, s{S_W}, 3
    s_add_u32 s36, s36, {PW + 2*6144 + 64}
    v_add_u32 v181, s36, v181""")
    for i in range(2):
        a(f"""ds_read_b64_tr_b16 v[{156+4*i}:{157+4*i}], v181 offset:{4096*i}
        ds_read_b64_tr_b16 v[{158+4*i}:{159+4*i}], v181 offset:{4096*i + 2048}
        {PTs('s36', 's37')}
        s_add_u32 s36, s36, {32*i}
        {PGs('s37')}
        s_mul_i32 s37, s37, 43
        s_add_u32 s37, s37, s36
        s_lshl_b32 s37, s37, 12
        s_lshl_b32 s38, s{S_W}, 10
        s_add_u32 s37, s37, s38
        s_add_u32 s37, s37, {WS['WF2']}
        s_cmp_lt_u32 s36, 43
        s_cselect_b32 s{9+i}, s37, {INV}""")

def blk_qperm(a):
    a("s_mov_b32 s36, 0x05040100\ns_mov_b32 s37, 0x07060302")
    for p in range(4):
        a(f"""v_perm_b32 v{88+2*p}, v{64+p}, v{60+p}, s36
        v_perm_b32 v{89+2*p}, v{64+p}, v{60+p}, s37""")
    for j in range(8):
        a(f"ds_write_b32 v12, v{88+j} offset:{128*j}")

def blk_stats(a):
    a("v_mov_b32 v14, 0x3f803f80")
    for row in range(2):
        su, sq = 96 + 2 * row, 97 + 2 * row
        a(f"v_mov_b32 v{su}, 0\nv_mov_b32 v{sq}, 0")
    for p in range(4):
        for row in range(2):
            su, sq = 96 + 2 * row, 97 + 2 * row; b = 68 + 4 * row
            a(f"v_dot2_f32_bf16 v{su}, v{b+p}, v14, v{su}\nv_dot2_f32_bf16 v{sq}, v{b+p}, v{b+p}, v{sq}")
    for r in (8, 4, 2, 1):
        for v in (96, 97, 98, 99):
            a(f"v_add_f32_dpp v{v}, v{v}, v{v} row_ror:{r} row_mask:0xf bank_mask:0xf")
    for k, v in enumerate((96, 97, 98, 99)): a(f"v_mov_b32 v{100+k}, v{v}")
    for k, v in enumerate((96, 97, 98, 99)): a(f"v_permlane16_swap_b32 v{v}, v{100+k}")
    for k, v in enumerate((96, 97, 98, 99)): a(f"v_add_f32 v{v}, v{v}, v{100+k}")
    for k, v in enumerate((96, 97, 98, 99)): a(f"v_mov_b32 v{100+k}, v{v}")
    for k, v in enumerate((96, 97, 98, 99)): a(f"v_permlane32_swap_b32 v{v}, v{100+k}")
    for k, v in enumerate((96, 97, 98, 99)): a(f"v_add_f32 v{v}, v{v}, v{100+k}")
    ln_core(a, 96, 97); ln_core(a, 98, 99)
    a(f"""v_rcp_f32 v102, v97
    v_rcp_f32 v103, v99
    v_mul_f32 v104, -v96, v102
    v_mul_f32 v105, -v98, v103
    s_lshl_b32 s36, s2, 5
    s_lshl_b32 s37, s{S_W}, 3
    s_add_u32 s11, s36, s37
    s_add_u32 s11, s11, {WS['RS0']}""")

def blk_hcop(a):
    a(f"""s_mul_i32 s62, s66, {CB}
    v_lshlrev_b32 v4, 4, v9
    s_lshl_b32 s36, s67, 11
    s_add_u32 s36, s36, s62
    s_add_u32 s36, s36, 32
    v_add_u32 v4, s36, v4""")
    for p in range(2):
        L0, L2, L4 = 192 + 12 * p, 196 + 12 * p, 200 + 12 * p
        for j in range(4):
            a(f"v_alignbit_b32 v{112+8*p+j}, v{L2+j}, v{L0+j}, 16")
            a(f"v_alignbit_b32 v{116+8*p+j}, v{L4+j}, v{L2+j}, 16")
        a(f"""ds_write_b128 v4, v[{L0}:{L0+3}] offset:{1024*p}
        ds_write_b128 v4, v[{112+8*p}:{115+8*p}] offset:{1024*p + HCS}
        ds_write_b128 v4, v[{L2}:{L2+3}] offset:{1024*p + 2*HCS}
        ds_write_b128 v4, v[{116+8*p}:{119+8*p}] offset:{1024*p + 3*HCS}""")
    a(f"""v_lshl_or_b32 v216, v217, 16, v216
    v_mul_u32_u24 v13, {HCS}, v219
    v_lshl_add_u32 v13, v220, 2, v13
    v_add_u32 v13, s62, v13
    ds_write_b32 v13, v216
    v_lshlrev_b32 v20, 16, v218
    v_mov_b32 v92, 0
    v_mov_b32 v93, 0
    v_mov_b32 v94, 0
    v_mov_b32 v95, 0
    v_and_b32 v16, 31, v9
    v_lshlrev_b32 v16, 4, v16
    v_add_u32 v16, s62, v16
    ds_write_b128 v16, v[92:95] offset:{XRO+4096}
    s_waitcnt lgkmcnt(0)""")


def w_stage_bulk(a):
    for k in range(7):
        a(f"""s_sub_u32 s36, s{S_W}, 1
        s_add_u32 s36, s36, {3*k}
        s_cmp_lt_u32 s36, 12
        s_cbranch_scc0 L_w2_{k}
        s_cmp_lt_u32 s36, 6
        s_cselect_b32 s4, s52, s54
        s_cselect_b32 s5, s53, s55
        s_cselect_b32 s37, 0, 6
        s_cselect_b32 s38, 0, {W3OFF}
        s_mov_b32 s6, {D*F*2}
        s_mov_b32 s7, 0x20000
        s_sub_u32 s36, s36, s37
        s_lshl_b32 s37, s36, 6
        v_add_u32 v177, s37, v9
        v_mul_u32_u24 v178, 43691, v177
        v_lshrrev_b32 v178, 18, v178
        v_mul_u32_u24 v179, 6, v178
        v_sub_u32 v179, v177, v179
        v_mul_u32_u24 v178, 2752, v178
        v_lshl_add_u32 v{184+(k%4)}, v179, 4, v178
        s_lshl_b32 s36, s36, 10
        s_add_u32 s36, s36, s38
        s_add_u32 s36, s36, {PW}
        s_mul_i32 s37, s60, {64*2752}
        s_mul_i32 s38, s61, 96
        s_add_u32 s37, s37, s38
        s_branch L_wgo_{k}
        L_w2_{k}:
        s_mov_b32 s4, s56
        s_mov_b32 s5, s57
        s_mov_b32 s6, {D*F*2}
        s_mov_b32 s7, 0x20000
        s_sub_u32 s36, s36, 12
        v_lshrrev_b32 v178, 3, v9
        v_and_b32 v179, 7, v9
        v_lshlrev_b32 v178, 10, v178
        v_lshl_add_u32 v{184+(k%4)}, v179, 4, v178
        {PTs('s37', 's38')}
        s_lshl_b32 s37, s37, 15
        {PGs('s38')}
        s_lshl_b32 s38, s38, 7
        s_add_u32 s37, s37, s38
        s_and_b32 s38, s36, 3
        s_lshl_b32 s38, s38, 13
        s_add_u32 s37, s37, s38
        s_lshr_b32 s38, s36, 2
        s_lshl_b32 s38, s38, 20
        s_add_u32 s37, s37, s38
        s_cmp_lt_u32 s36, 8
        s_cselect_b32 s37, s37, {INV}
        s_min_u32 s36, s36, 8
        s_lshl_b32 s36, s36, 10
        s_add_u32 s36, s36, {PW + 2*6144 + 64}
        L_wgo_{k}:
        s_mov_b32 m0, s36
        buffer_load_dwordx4 v{184+(k%4)}, s[4:7], s37 offen lds""")

def blk_wtr_hi(a):
    a(f"""v_lshrrev_b32 v250, 4, v9
    v_bfe_u32 v251, v9, 2, 2
    v_and_b32 v252, 3, v9
    v_lshl_add_u32 v253, v250, 4, v251
    v_mul_u32_u24 v253, 96, v253
    v_and_b32 v255, 1, v252
    v_lshl_add_u32 v253, v255, 3, v253
    v_lshrrev_b32 v255, 1, v252
    v_mul_u32_u24 v255, {W3OFF}, v255
    v_add_u32 v253, v253, v255
    v_lshlrev_b32 v254, 4, v9""")
    for i in range(3):
        a(f"""s_mul_i32 s36, s{S_W}, 3
        s_add_u32 s36, s36, {i}
        s_lshr_b32 s37, s36, 1
        s_and_b32 s36, s36, 1
        s_lshl_b32 s38, s37, 4
        s_mul_i32 s39, s36, {8*96}
        s_add_u32 s38, s38, s39
        s_add_u32 s38, s38, {PW}
        v_add_u32 v255, s38, v253
        ds_read_b64_tr_b16 v[{232+4*i}:{233+4*i}], v255
        ds_read_b64_tr_b16 v[{234+4*i}:{235+4*i}], v255 offset:{4*96}
        s_mul_i32 s38, s61, 6
        s_add_u32 s38, s38, s37
        s_lshl_b32 s39, s38, 14
        s_lshl_b32 s37, s60, 11
        s_add_u32 s39, s39, s37
        s_lshl_b32 s36, s36, 10
        s_add_u32 s39, s39, s36
        s_add_u32 s39, s39, {WS['WF13']}
        s_cmp_lt_u32 s38, 172
        s_cselect_b32 s{(6, 7, 12)[i]}, s39, {INV}""")
    a(f"""v_lshl_add_u32 v253, v250, 2, v251
    v_lshlrev_b32 v253, 7, v253
    v_lshl_add_u32 v253, v252, 5, v253
    s_lshl_b32 s36, s{S_W}, 3
    s_add_u32 s36, s36, {PW + 2*6144 + 64}
    v_add_u32 v253, s36, v253""")
    for i in range(2):
        a(f"""ds_read_b64_tr_b16 v[{244+4*i}:{245+4*i}], v253 offset:{4096*i}
        ds_read_b64_tr_b16 v[{246+4*i}:{247+4*i}], v253 offset:{4096*i + 2048}
        {PTs('s36', 's37')}
        s_add_u32 s36, s36, {32*i}
        {PGs('s37')}
        s_mul_i32 s37, s37, 43
        s_add_u32 s37, s37, s36
        s_lshl_b32 s37, s37, 12
        s_lshl_b32 s38, s{S_W}, 10
        s_add_u32 s37, s37, s38
        s_add_u32 s37, s37, {WS['WF2']}
        s_cmp_lt_u32 s36, 43
        s_cselect_b32 s{(13, 14)[i]}, s37, {INV}""")

def conv_epilogue(a):
    O = lambda i: 64 + 4 * i
    T = lambda i: 104 + 10 * i
    for i in range(4):
        kv = 96 + 2 * i
        a(f"""v_and_b32 v{T(i)}, 0xffff0000, v{kv+1}
        v_lshlrev_b32 v{T(i)+1}, 16, v{kv+1}
        v_and_b32 v{T(i)+2}, 0xffff0000, v{kv}
        v_lshlrev_b32 v{T(i)+3}, 16, v{kv}""")
    for i in range(4):
        a(f"""v_pk_fma_f32 v[{O(i)}:{O(i)+1}], v[{T(i)}:{T(i)+1}], v[20:21], v[{O(i)}:{O(i)+1}] op_sel_hi:[1,0,1]
        v_pk_fma_f32 v[{O(i)+2}:{O(i)+3}], v[{T(i)+2}:{T(i)+3}], v[20:21], v[{O(i)+2}:{O(i)+3}] op_sel_hi:[1,0,1]""")
    for i in range(4):
        a(f"""v_cvt_pk_bf16_f32 v{T(i)+4}, v{O(i)}, v{O(i)+1}
        v_cvt_pk_bf16_f32 v{T(i)+5}, v{O(i)+2}, v{O(i)+3}""")
    for i in range(4):
        a(f"""v_lshlrev_b32 v{T(i)}, 16, v{192+2*i}
        v_and_b32 v{T(i)+1}, 0xffff0000, v{192+2*i}
        v_lshlrev_b32 v{T(i)+2}, 16, v{193+2*i}
        v_and_b32 v{T(i)+3}, 0xffff0000, v{193+2*i}
        buffer_store_dwordx2 v[{T(i)+4}:{T(i)+5}], v14, {WSR}, s38 offen offset:{512*i} sc1""")
    for i in range(4):
        a(f"""v_lshlrev_b32 v{O(i)}, 16, v{T(i)+4}
        v_and_b32 v{O(i)+1}, 0xffff0000, v{T(i)+4}
        v_lshlrev_b32 v{O(i)+2}, 16, v{T(i)+5}
        v_and_b32 v{O(i)+3}, 0xffff0000, v{T(i)+5}
        v_pk_fma_f32 v[{T(i)+6}:{T(i)+7}], v[{T(i)}:{T(i)+1}], v[{200+4*i}:{201+4*i}], v[{216+4*i}:{217+4*i}]
        v_pk_fma_f32 v[{T(i)+8}:{T(i)+9}], v[{T(i)+2}:{T(i)+3}], v[{202+4*i}:{203+4*i}], v[{218+4*i}:{219+4*i}]""")
    for i in range(4):
        a(f"""v_pk_fma_f32 v[{T(i)+6}:{T(i)+7}], v[{T(i)+6}:{T(i)+7}], v[{O(i)}:{O(i)+1}], v[{T(i)}:{T(i)+1}]
        v_pk_fma_f32 v[{T(i)+8}:{T(i)+9}], v[{T(i)+8}:{T(i)+9}], v[{O(i)+2}:{O(i)+3}], v[{T(i)+2}:{T(i)+3}]""")
    for i in range(4):
        a(f"""v_cvt_pk_bf16_f32 v{O(i)}, v{T(i)+6}, v{T(i)+7}
        v_cvt_pk_bf16_f32 v{O(i)+1}, v{T(i)+8}, v{T(i)+9}
        buffer_store_dwordx2 v[{O(i)}:{O(i)+1}], v14, {WSR}, s39 offen offset:{512*i} sc1""")
    stamp(a, 8)

def emit_front4(a, hooks):
    blk_addr(a)
    a("s_waitcnt vmcnt(20)")
    blk_skun(a)
    a("s_waitcnt vmcnt(13)")
    stamp(a, 1)
    blk_kv(a)
    stamp(a, 2)
    a("s_mov_b32 s8, s5")
    a.nolog += 1
    a(f"""s_cmp_eq_u32 s{S_W}, 0
    s_cbranch_scc1 L_f_w0a""")
    w_stage_bulk(a)
    a(f"""s_waitcnt vmcnt(7)
    s_branch L_f_j1
    L_f_w0a:
    s_waitcnt vmcnt(0)
    L_f_j1:
    s_barrier
    s_cmp_lg_u32 s{S_W}, 0
    s_cbranch_scc1 L_f_s1
    s_add_u32 s36, s{S_GEN}, 1
    v_mov_b32 v16, s36
    v_mov_b32 v17, s{S_FLAG}
    s_mov_b64 exec, 1
    buffer_store_dword v16, v17, {WSR}, 0 offen sc1
    s_mov_b64 exec, -1
    L_f_s1:""")
    a.nolog -= 1
    stamp(a, 3)
    blk_hcop(a)
    a("v_and_b32 v1, 63, v0")
    a.nolog += 1
    a(f"""s_cmp_lg_u32 s{S_W}, 0
    s_cbranch_scc1 L_f_nx""")
    if SPREAD:
        a(f"""v_and_b32 v2, 7, v1
        v_lshlrev_b32 v2, 5, v2
        v_bfe_u32 v3, v1, 3, 2
        v_lshl_add_u32 v2, v3, 3, v2
        v_add_u32 v2, s60, v2
        v_lshlrev_b32 v2, 6, v2
        v_add_u32 v2, {WS['SYNC'] + SYNC_FLAGS}, v2""")
    else:
        a(f"""v_and_b32 v2, 31, v1
        s_lshl_b32 s36, s60, 5
        v_add_u32 v2, s36, v2
        v_lshlrev_b32 v2, 6, v2
        v_add_u32 v2, {WS['SYNC'] + SYNC_FLAGS}, v2""")
    wait_flags(a, 2, 1, 1, 18)
    a(f"""v_lshlrev_b32 v19, 4, v1
    s_lshl_b32 s36, s19, 13
    s_add_u32 s36, s36, {WS['XR']}""")
    for ch in range(2):
        for i in range(4):
            a(f"""s_mov_b32 m0, {ch * CB + XRO + i * 1024}
            buffer_load_dwordx4 v19, {WSR}, s36 offen sc1 lds
            s_add_u32 s36, s36, 1024""")
    a.label("L_f_nx")
    a.nolog -= 1
    stamp(a, 4)
    blk_qperm(a)
    blk_stats(a)
    a(f"""v_mov_b32 v101, s11
    s_mov_b32 s37, {WS['C0']-WS['RS0']}
    s_mov_b64 exec, 1
    buffer_store_dwordx2 v[102:103], v101, {WSR}, 0 offen sc1
    buffer_store_dwordx2 v[104:105], v101, {WSR}, s37 offen sc1
    s_mov_b64 exec, -1
    s_waitcnt lgkmcnt(0)
    s_barrier
    ds_read_b128 v[72:75], v5 offset:8192
    ds_read_b128 v[76:79], v7 offset:{8192+4096}
    s_waitcnt lgkmcnt(1)
    buffer_store_dwordx4 v[72:75], v8, {WSR}, s8 offen sc1
    s_waitcnt lgkmcnt(0)
    buffer_store_dwordx4 v[76:79], v15, {WSR}, s8 offen sc1""")
    emit_ffn_roles(a)
    a(f"""v_and_b32 v11, 15, v1
    v_lshrrev_b32 v12, 4, v1
    v_lshlrev_b32 v13, 4, v11
    v_lshl_add_u32 v13, v12, 2, v13
    s_lshl_b32 s36, s67, 10
    v_add_u32 v13, s36, v13
    v_lshlrev_b32 v14, 1, v13
    v_lshlrev_b32 v15, 2, v13
    v_lshlrev_b32 v22, 6, v1
    v_add_u32 v22, {WS['SYNC'] + SYNC_FLAGS}, v22
    v_add_u32 v17, 1, v11
    v_and_b32 v18, 3, v17
    v_mul_u32_u24 v18, {HCS}, v18
    v_lshrrev_b32 v17, 2, v17
    v_lshlrev_b32 v17, 3, v17
    v_lshl_add_u32 v17, v12, 4, v17
    v_add_u32 v17, v17, v18
    s_lshl_b32 s36, s67, 8
    s_add_u32 s37, s36, s62
    v_add_u32 v17, s37, v17
    v_lshlrev_b32 v18, 5, v11
    v_lshlrev_b32 v19, 4, v12
    v_sub_u32 v18, v19, v18
    s_add_u32 s37, s37, {XRO + 480}
    v_add_u32 v18, s37, v18""")
    for r in range(32, 64): a(f"v_mov_b32 v{r}, 0")
    a(f"""s_cmp_lg_u32 s{S_W}, 0
    s_cbranch_scc1 L_f_nw
    s_waitcnt vmcnt(4)
    L_f_nw:
    s_barrier""")
    stamp(a, 6)
    pre = []
    for i in range(4):
        pre.append(f"buffer_load_dwordx2 v[{192+2*i}:{193+2*i}], v14, {WSR}, s10 offen offset:{512*i} sc1")
    for i in range(4):
        pre.append(f"buffer_load_dwordx4 v[{200+4*i}:{203+4*i}], v15, {WSR}, s8 offen offset:{1024*i} sc1")
        pre.append(f"buffer_load_dwordx4 v[{216+4*i}:{219+4*i}], v15, {WSR}, s9 offen offset:{1024*i} sc1")
    def load_frags(setbase, bi):
        ops = []
        for x in range(8):
            A = setbase + 4 * x
            ops.append(f"ds_read_b64 v[{A}:{A+1}], v17 offset:{512*x + 64*bi}")
            ops.append(f"ds_read_b64 v[{A+2}:{A+3}], v17 offset:{512*x + 64*bi + 8}")
            B = setbase + 32 + 4 * x
            ops.append(f"ds_read_b128 v[{B}:{B+3}], v18 offset:{512*(7-x) + 64*bi}")
        return ops
    sets = (64, 128)
    for op in load_frags(sets[0], 0): a(op)
    def flagloads(off):
        for i in range(4):
            if i == 0: a(f"buffer_load_dword v24, v22, {WSR}, 0 offen offset:{off} sc1")
            else: a(f"s_movk_i32 s39, {4096*i}\nbuffer_load_dword v{24+i}, v22, {WSR}, s39 offen offset:{off} sc1")
    for bi in range(4):
        cur = sets[bi & 1]
        nxt = load_frags(sets[(bi + 1) & 1], bi + 1) if bi < 3 else []
        if bi == 2:
            signal(a, 2, tv=(24, 25))
            a("v_and_b32 v9, 63, v0")
            blk_wtr_hi(a)
        if bi == 3:
            flagloads(0)
            member_flag_off(a, 23, "0", 16)
            a(f"buffer_load_dword v28, v23, {WSR}, 0 offen offset:4 sc1")
            a("s_waitcnt lgkmcnt(0)")
            for i in range(5):
                a(f"buffer_store_dwordx4 {vr(232+4*i)}, v254, {WSR}, s{(6, 7, 12, 13, 14)[i]} offen sc1")
        a("s_waitcnt lgkmcnt(0)")
        pairs = sorted([(jt, aa) for jt in range(8) for aa in range(jt + 1)], key=lambda p: (p[1], p[0]))
        k = 0
        for idx, (jt, aa) in enumerate(pairs):
            A = cur + 4 * aa; B = cur + 32 + 4 * (jt - aa); C = 32 + 4 * jt
            a(f"v_mfma_f32_16x16x32_bf16 v[{C}:{C+3}], v[{A}:{A+3}], v[{B}:{B+3}], v[{C}:{C+3}]")
            if idx < 24 and k < len(nxt):
                a(nxt[k]); k += 1
    stamp(a, 7)
    a("s_waitcnt vmcnt(5)")
    a(f"""v_cmp_eq_u32 vcc, s{S_IDW}, v28
    s_cmp_eq_u64 vcc, -1
    s_cselect_b32 s{S_LOC}, 1, 0""")
    flagcheck(a, 2, (24, 25, 26, 27), 22, "L_c_ok1", tmp=(29, 30))
    a(f"s_mov_b32 s8, {WS['RS0']}\ns_mov_b32 s9, {WS['C0']}\ns_add_u32 s10, s65, {WS['QT']}")
    for op in pre: a(op)
    a(f"""v_lshlrev_b32 v4, 4, v1
    s_lshl_b32 s36, s{S_W}, 12
    s_add_u32 s36, s36, {EXO}
    v_add_u32 v5, s36, v4
    s_xor_b32 s36, s36, 4096
    v_add_u32 v6, s36, v4
    s_cmp_eq_u32 s67, 0
    s_cbranch_scc0 L_c_x1""")
    for half in range(2):
        own, oth = (32, 48) if half == 0 else (48, 32)
        for i in range(4): a(f"ds_write_b128 v5, v[{oth+4*i}:{oth+4*i+3}] offset:{1024*i}")
        a("s_waitcnt vmcnt(12) lgkmcnt(0)\ns_barrier")
        for i in range(4): a(f"ds_read_b128 v[{80+4*i}:{83+4*i}], v6 offset:{1024*i}")
        a("s_waitcnt lgkmcnt(0)")
        for i in range(4):
            for h in range(2):
                a(f"v_pk_add_f32 v[{64+4*i+2*h}:{65+4*i+2*h}], v[{own+4*i+2*h}:{own+4*i+2*h+1}], v[{80+4*i+2*h}:{81+4*i+2*h}]")
        if half == 0:
            a("s_branch L_c_x2\nL_c_x1:")
    a.label("L_c_x2")
    a.nolog += 1
    a(f"""s_cmp_lg_u32 s{S_W}, 0
    s_cbranch_scc1 L_f_wf
    s_add_u32 s36, s{S_GEN}, 1
    v_mov_b32 v24, s36
    v_mov_b32 v25, s{S_FLAG}
    s_mov_b64 exec, 1
    buffer_store_dword v24, v25, {WSR}, 0 offen offset:8 sc1
    s_mov_b64 exec, -1
    L_f_wf:""")
    a.nolog -= 1
    a(f"""v_lshlrev_b32 v7, 5, v11
    v_lshl_add_u32 v7, v12, 3, v7
    s_lshl_b32 s36, s67, 11
    s_sub_u32 s37, s62, s36
    s_add_u32 s37, s37, {XRO + 4088 - 1536}
    v_sub_u32 v7, s37, v7""")
    for i in range(4): a(f"ds_read_b64 v[{96+2*i}:{97+2*i}], v7 offset:{512*(3-i)}")
    a(f"""s_lshr_b32 s39, s65, 12
    s_mul_i32 s39, s39, {XP}
    s_add_u32 s38, s39, {WS['YT']}
    s_add_u32 s39, s39, {WS['X1T']}
    s_waitcnt vmcnt(0) lgkmcnt(0)""")
    conv_epilogue(a)

V_CS = 32; V_X3 = 44; V_ACC = 52; V_XB = 100; V_T = 116; V_HB = 116; V_W2 = 144
def w13(kb, t): b = (kb * 3 + t) * 4; return f"a[{b}:{b+3}]"
def w2(i, dt):
    idx = i * 4 + dt
    if idx < 16: b = 192 + idx * 4; return f"a[{b}:{b+3}]"
    b = V_W2 + (idx - 16) * 4; return f"v[{b}:{b+3}]"

def emit_ffn_roles_early(a):
    pass
def emit_ffn_roles(a):
    if HALF:
        a(f"""s_and_b32 s22, s60, 1
        s_lshr_b32 s20, s60, 1
        s_lshl_b32 s20, s20, 2
        s_and_b32 s36, s61, 3
        s_or_b32 s20, s20, s36
        s_lshr_b32 s23, s61, 2
        s_lshl_b32 s21, s22, 3
        s_or_b32 s21, s21, s23""")
    else:
        a(f"""s_and_b32 s20, s61, 1
        s_lshl_b32 s36, s60, 1
        s_or_b32 s20, s20, s36
        s_lshr_b32 s21, s61, 1
        s_lshr_b32 s22, s21, 3
        s_and_b32 s23, s21, 7""")
    for t in range(3):
        a(f"""s_mul_i32 s36, s{S_W}, 3
        s_add_u32 s36, s36, {t}
        s_mul_i32 s37, s21, 11
        s_add_u32 s37, s37, s36
        s_cmp_lt_u32 s36, 11
        s_cselect_b32 s38, s37, 0x7fff
        s_cmp_lt_u32 s38, 172
        s_cselect_b32 s39, 1, 0
        s_lshl_b32 s{40+t}, s37, 14
        s_add_u32 s{40+t}, s{40+t}, {WS['WF13']}
        s_lshr_b32 s{44+t}, s37, 1
        s_lshl_b32 s{44+t}, s{44+t}, 9
        s_and_b32 s37, s37, 1
        s_lshl_b32 s37, s37, 8
        s_add_u32 s{44+t}, s{44+t}, s37
        s_cmp_eq_u32 s39, 1
        s_cselect_b32 s{40+t}, s{40+t}, {INV}
        s_cselect_b32 s{44+t}, s{44+t}, {INV}""")
    a(f"""s_mul_i32 s36, s23, 43
    s_mul_i32 s37, s{S_W}, 11
    s_add_u32 s36, s36, s37
    s_lshl_b32 s48, s36, 12
    s_add_u32 s48, s48, {WS['WF2']}
    s_cmp_eq_u32 s{S_W}, 3
    s_cselect_b32 s49, {INV}, s48
    v_and_b32 v31, 63, v0
    v_lshlrev_b32 v31, 4, v31""")
def w13_loads(a):
    for kb in range(16):
        for t in range(3):
            a(f"s_add_u32 s36, s{40+t}, {kb*1024}\nbuffer_load_dwordx4 {w13(kb,t)}, v31, {WSR}, s36 offen sc1")
def w2_loads(a, lo, hi):
    for idx in range(lo, hi):
        i, dt = idx >> 2, idx & 3
        a(f"s_add_u32 s36, s{49 if i == 10 else 48}, {idx*1024}\nbuffer_load_dwordx4 {w2(i,dt)}, v31, {WSR}, s36 offen sc1")

def emit_cs(a, lo, hi):
    a(f"v_mov_b32 v{V_XB}, 0x3f803f80\nv_mov_b32 v{V_XB+1}, 0x3f803f80\nv_mov_b32 v{V_XB+2}, 0x3f803f80\nv_mov_b32 v{V_XB+3}, 0x3f803f80")
    for kb in range(lo, hi):
        for t in range(3):
            c = V_CS + 4 * t
            a(f"v_mfma_f32_16x16x32_bf16 {vr(c)}, {w13(kb,t)}, {vr(V_XB)}, {'0' if kb == 0 else vr(c)}")

def x1_dma_setup(a):
    a(f"""v_lshrrev_b32 v2, 3, v1
    v_bfe_u32 v3, v1, 1, 2
    v_bfe_u32 v6, v1, 4, 1
    v_xor_b32 v3, v3, v6
    s_and_b32 s36, s{S_W}, 2
    v_xor_b32 v3, s36, v3
    v_and_b32 v6, 1, v1
    v_lshlrev_b32 v6, 4, v6
    v_mul_u32_u24 v2, {XP}, v2
    v_add_u32 v6, v2, v6
    v_lshl_add_u32 v27, v3, 5, v6""")
def x1_dma_ops(hf):
    ops = [f"""s_mul_i32 s56, s{S_W}, {8 * XP}
    s_lshl_b32 s57, s20, 8
    s_add_u32 s56, s56, s57
    s_add_u32 s56, s56, {WS['X1T'] + hf * 128}
    s_lshl_b32 s57, s{S_W}, 10
    s_add_u32 s57, s57, {hf * 65536}"""]
    for n in range(16):
        ops.append(f"""s_add_u32 m0, s57, {n * 4096}
        buffer_load_dwordx4 v27, {WSR}, s56 offen sc1 lds
        s_add_u32 s56, s56, {32 * XP}""")
    return ops
def tiles_dma(a):
    a(f"""v_lshrrev_b32 v2, 3, v1
    v_and_b32 v3, 7, v1
    v_mul_u32_u24 v2, {XP}, v2
    v_lshl_add_u32 v2, v3, 4, v2
    s_mul_i32 s36, s23, {64 * XP}
    s_mul_i32 s37, s{S_W}, {16 * XP}
    s_add_u32 s36, s36, s37
    s_lshl_b32 s37, s20, 8
    s_add_u32 s36, s36, s37
    s_lshl_b32 s37, s22, 7
    s_add_u32 s36, s36, s37
    s_lshl_b32 s38, s{S_W}, 11""")
    for arr, lb in (('X1T', L_TX), ('YT', L_TY)):
        for i in range(2):
            a(f"""s_add_u32 s37, s36, {WS[arr] + i * 8 * XP}
            s_add_u32 m0, s38, {lb + i * 1024}
            buffer_load_dwordx4 v2, {WSR}, s37 offen sc1 lds""")
def x3_dma_ops(hf):
    ops = [f"""s_lshl_b32 s56, s20, 3
    s_add_u32 s56, s56, s{S_W}
    s_add_u32 s56, s56, {4*hf}
    s_lshl_b32 s56, s56, 14
    s_add_u32 s56, s56, {WS['X3']}
    s_lshl_b32 s57, s{S_W}, 14
    s_add_u32 s57, s57, {hf * 65536}"""]
    for n in range(16):
        ops.append(f"""s_add_u32 m0, s57, {n * 1024}
        buffer_load_dwordx4 v31, {WSR}, s56 offen sc1 lds
        s_add_u32 s56, s56, 1024""")
    return ops
def member_flag_off(a, vdst, base_member_sgpr_expr, nmemb):
    a(f"""v_and_b32 v{vdst}, {nmemb-1}, v1
    v_add_u32 v{vdst}, {base_member_sgpr_expr}, v{vdst}""")
    if HALF:
        a(f"""v_lshrrev_b32 v29, 3, v{vdst}
        v_and_b32 v{vdst}, 7, v{vdst}
        v_lshlrev_b32 v{vdst}, 2, v{vdst}
        v_lshl_add_u32 v{vdst}, v29, 5, v{vdst}
        s_lshr_b32 s36, s20, 2
        s_lshl_b32 s36, s36, 6
        s_and_b32 s37, s20, 3
        s_add_u32 s36, s36, s37""")
    else:
        a(f"""v_lshlrev_b32 v{vdst}, 1, v{vdst}
        s_lshr_b32 s36, s20, 1
        s_lshl_b32 s36, s36, 5
        s_and_b32 s37, s20, 1
        s_add_u32 s36, s36, s37""")
    a(f"""v_add_u32 v{vdst}, s36, v{vdst}
    v_lshlrev_b32 v{vdst}, 6, v{vdst}
    v_add_u32 v{vdst}, {WS['SYNC'] + SYNC_FLAGS}, v{vdst}""")

def stats_write(a, hf, vm, vsd):
    a(f"""v_rcp_f32 v24, v{vsd}
    v_mul_f32 v{V_T+1}, v{vsd}, v{vsd}
    v_sub_f32 v{V_T+2}, 0, v{vm}
    v_mul_f32 v{V_T}, 0xbfb8aa3b, v24
    v_mov_b32 v{V_T+3}, 0
    s_lshl_b32 s36, s{S_W}, 8
    s_add_u32 s36, s36, {L_ST + hf * 1024}
    v_lshl_add_u32 v25, v2, 4, s36
    ds_write_b128 v25, {vr(V_T)}""")
def st3_stats(a, hf):
    a(f"""s_lshl_b32 s36, s20, 3
    s_add_u32 s36, s36, s{S_W}
    s_add_u32 s36, s36, {4*hf}
    s_lshl_b32 s36, s36, 10
    s_add_u32 s36, s36, {WS['SYNC'] + SYNC_ST3}
    v_lshrrev_b32 v124, 4, v1
    v_lshlrev_b32 v124, 8, v124
    v_and_b32 v125, 15, v1
    v_lshl_add_u32 v124, v125, 3, v124
    buffer_load_dwordx2 v[120:121], v124, {WSR}, s36 offen sc1
    buffer_load_dwordx2 v[122:123], v124, {WSR}, s36 offen offset:128 sc1""")
def st3_finish(a, hf):
    a(f"""v_add_f32 v126, v120, v122
    v_add_f32 v127, v121, v123""")
    sum_q(a, 126, 120); sum_q(a, 127, 121)
    ln_core(a, 126, 127)
    a(f"""v_rcp_f32 v120, v127
    v_mul_f32 v117, v127, v127
    v_sub_f32 v118, 0, v126
    v_mul_f32 v116, 0xbfb8aa3b, v120
    v_mov_b32 v119, 0
    s_lshl_b32 s36, s{S_W}, 8
    s_add_u32 s36, s36, {L_ST + hf * 1024}
    v_lshl_add_u32 v124, v125, 4, s36
    ds_write_b128 v124, v[116:119]""")

def g1_addr(a, layer, hbase):
    tr = layer == 1
    a(f"""v_and_b32 v2, 15, v1
    v_lshrrev_b32 v3, 4, v1""")
    for x in range(4):
        a(f"""s_add_u32 s36, s{S_W}, {x}
        s_and_b32 s36, s36, 3""")
        if tr:
            a(f"""v_bfe_u32 v4, v1, 2, 2
            v_lshl_add_u32 v5, v3, 4, v4
            v_lshlrev_b32 v5, 7, v5
            v_lshrrev_b32 v4, 1, v4
            v_and_b32 v6, 1, v3
            v_lshl_or_b32 v4, v6, 1, v4
            v_xor_b32 v4, s36, v4
            v_lshl_add_u32 v5, v4, 5, v5
            v_and_b32 v6, 3, v1
            v_lshl_add_u32 v{8+x}, v6, 3, v5""")
        else:
            a(f"""s_lshl_b32 s37, s36, 14
            v_add_u32 v{8+x}, s37, v31""")
        a(f"""s_lshl_b32 s37, s36, 8
        s_add_u32 s37, s37, {L_ST}
        v_lshl_add_u32 v{15+x}, v2, 4, s37""")
    for p in range(2):
        a(f"""v_lshrrev_b32 v4, 5, v1
        v_add_u32 v4, s{S_W}, v4
        v_add_u32 v4, {2*p}, v4
        v_and_b32 v4, 3, v4
        v_mul_u32_u24 v5, {HT}, v4
        v_bfe_u32 v6, v1, 4, 1
        v_lshl_add_u32 v5, v6, 7, v5
        v_lshl_add_u32 v{12+p}, v2, 3, v5
        v_lshlrev_b32 v4, 8, v4
        v_lshl_add_u32 v4, v2, 4, v4
        v_add_u32 v{19+p}, {L_ST}, v4""")
    a(f"""s_mul_i32 s36, s20, {8*HT}
    s_add_u32 s36, s36, {hbase}""")
    for t in range(3): a(f"s_add_u32 s{52+t}, s{44+t}, s36")

def g1_sub(a, layer, sb, hook=None, cs_from=16):
    tr = layer == 1
    def rd(n):
        kb, x = n >> 2, n & 3
        B = V_XB + 4 * x
        if tr:
            off = (kb >> 1) * 8192 + (kb & 1) * 1024
            return [f"ds_read_b64_tr_b16 v[{B}:{B+1}], v{8+x} offset:{off}", f"ds_read_b64_tr_b16 v[{B+2}:{B+3}], v{8+x} offset:{off+512}"]
        return [f"ds_read_b128 {vr(B)}, v{8+x} offset:{kb*1024}"]
    per = 2 if tr else 1
    ONE, SA, SG = V_T, V_T + 4, V_T + 8
    if tr:
        for k in range(4): a(f"v_mov_b32 v{ONE+k}, 0x3f803f80")
    for n in range(3):
        for op in rd(n): a(op)
    for n in range(64):
        kb, x = n >> 2, n & 3
        if x == 0 and hook: hook(kb)
        infl = min(2, 63 - n)
        a(f"s_waitcnt lgkmcnt({infl*per})")
        B = V_XB + 4 * x
        for t in range(3):
            c = V_ACC + (x * 3 + t) * 4
            a(f"v_mfma_f32_16x16x32_bf16 {vr(c)}, {w13(kb,t)}, {vr(B)}, {'0' if kb == 0 else vr(c)}")
            if t == 0 and n + 3 < 64:
                for op in rd(n + 3): a(op)
        if tr and x == 1 and kb >= cs_from:
            for t in range(3):
                c = V_CS + 4 * t
                a(f"v_mfma_f32_16x16x32_bf16 {vr(c)}, {w13(kb,t)}, {vr(ONE)}, {vr(c)}")
        if tr and x == 0:
            a(f"v_mfma_f32_16x16x32_bf16 {vr(SA)}, {vr(ONE)}, {vr(B)}, {'0' if kb == 0 else vr(SA)}")
            a(f"v_mfma_f32_16x16x32_bf16 {vr(SG)}, {vr(B)}, {vr(B)}, {'0' if kb == 0 else vr(SG)}")
    if tr:
        a(f"""v_and_b32 v4, 3, v2
        v_cmp_eq_u32 vcc, 1, v4
        v_cndmask_b32 v23, v{SG}, v{SG+1}, vcc
        v_cmp_eq_u32 vcc, 2, v4
        v_cndmask_b32 v23, v23, v{SG+2}, vcc
        v_cmp_eq_u32 vcc, 3, v4
        v_cndmask_b32 v23, v23, v{SG+3}, vcc
        v_mov_b32 v22, v{SA}""")
        ln_core(a, 22, 23)
        a(f"""v_lshrrev_b32 v4, 2, v2
        v_cmp_eq_u32 vcc, v4, v3
        s_and_saveexec_b64 s[38:39], vcc""")
        stats_write(a, sb, 22, 23)
        a("s_mov_b64 exec, s[38:39]\ns_waitcnt lgkmcnt(0)\ns_barrier")

def g1_epi(a, sb):
    so = sb * 1024
    for x in range(4): a(f"ds_read_b32 v{V_T+2*x}, v{15+x} offset:{8+so}")
    for p in range(2): a(f"ds_read_b64 v[{V_T+8+2*p}:{V_T+9+2*p}], v{19+p} offset:{so}")
    a("s_waitcnt lgkmcnt(0)")
    A = lambda x, t: V_ACC + (x * 3 + t) * 4
    for t in range(3):
        cs = V_CS + 4 * t
        for x in range(4):
            for h in range(2):
                r = A(x, t) + 2 * h
                a(f"v_pk_fma_f32 v[{r}:{r+1}], v[{cs+2*h}:{cs+2*h+1}], v[{V_T+2*x}:{V_T+2*x+1}], v[{r}:{r+1}] op_sel_hi:[1,0,1]")
    for t in range(3):
        for p in range(2):
            for r in range(4): a(f"v_permlane32_swap_b32 v{A(2*p,t)+r}, v{A(2*p+1,t)+r}")
    for p in range(2):
        c1 = V_T + 8 + 2 * p
        T = lambda t: V_XB + 4 * t
        for t in range(3):
            for h in range(2):
                a(f"v_pk_mul_f32 v[{T(t)+2*h}:{T(t)+2*h+1}], v[{A(2*p,t)+2*h}:{A(2*p,t)+2*h+1}], v[{c1}:{c1+1}] op_sel_hi:[1,0]")
        for t in range(3):
            for r in range(4): a(f"v_exp_f32 v{T(t)+r}, v{T(t)+r}")
        for t in range(3):
            for h in range(2):
                g, u = A(2*p, t) + 2 * h, A(2*p+1, t) + 2 * h
                a(f"v_pk_mul_f32 v[{g}:{g+1}], v[{g}:{g+1}], v[{u}:{u+1}]")
        for t in range(3):
            for h in range(2):
                a(f"v_pk_fma_f32 v[{T(t)+2*h}:{T(t)+2*h+1}], v[{T(t)+2*h}:{T(t)+2*h+1}], v[{c1}:{c1+1}], v[{c1}:{c1+1}] op_sel:[0,1,1] op_sel_hi:[1,1,1]")
        for t in range(3):
            for r in range(4): a(f"v_rcp_f32 v{T(t)+r}, v{T(t)+r}")
        for t in range(3):
            for h in range(2):
                g = A(2*p, t) + 2 * h
                a(f"v_pk_mul_f32 v[{g}:{g+1}], v[{g}:{g+1}], v[{T(t)+2*h}:{T(t)+2*h+1}]")
        for t in range(3):
            g = A(2*p, t); u = A(2*p+1, t)
            a(f"""v_cvt_pk_bf16_f32 v{u}, v{g}, v{g+1}
            v_cvt_pk_bf16_f32 v{u+1}, v{g+2}, v{g+3}""")
        for t in range(3):
            u = A(2*p+1, t)
            a(f"buffer_store_dwordx2 v[{u}:{u+1}], v{12+p}, {WSR}, s{52+t} offen {LS('h')}")
def g1_next(a):
    for x in range(4): a(f"v_add_u32 v{8+x}, 0x10000, v{8+x}")
    for p in range(2): a(f"v_add_u32 v{12+p}, {4*HT}, v{12+p}")


NEG = (22, 24)
def epi_ops(P):
    p = P & 1; so = (P >> 1) * 1024
    A = lambda x, t: V_ACC + (x * 3 + t) * 4
    T = lambda t: V_T + 12 + 4 * t
    c1, ir = 26, 27
    ops = [f"ds_read_b32 v{NEG[0]}, v{15+2*p} offset:{8+so}", f"ds_read_b32 v{NEG[1]}, v{15+2*p+1} offset:{8+so}", f"ds_read_b64 v[26:27], v{19+p} offset:{so}"]
    ops += ["@gap"] * 10
    for t in range(3):
        for xl in range(2):
            for r in range(4): ops.append(f"v_fma_f32 v{A(2*p+xl,t)+r}, v{V_CS+4*t+r}, v{NEG[xl]}, v{A(2*p+xl,t)+r}")
    for t in range(3):
        for r in range(4): ops.append(f"v_permlane32_swap_b32 v{A(2*p,t)+r}, v{A(2*p+1,t)+r}")
    for t in range(3):
        for r in range(4): ops.append(f"v_mul_f32 v{T(t)+r}, v{A(2*p,t)+r}, v{c1}")
    for t in range(3):
        for r in range(4): ops.append(f"v_exp_f32 v{T(t)+r}, v{T(t)+r}")
        for r in range(4): ops.append(f"v_mul_f32 v{A(2*p,t)+r}, v{A(2*p,t)+r}, v{A(2*p+1,t)+r}")
    for t in range(3):
        for r in range(4): ops.append(f"v_fma_f32 v{T(t)+r}, v{T(t)+r}, v{ir}, v{ir}")
    for t in range(3):
        for r in range(4): ops.append(f"v_rcp_f32 v{T(t)+r}, v{T(t)+r}")
    for t in range(3):
        for r in range(4): ops.append(f"v_mul_f32 v{A(2*p,t)+r}, v{A(2*p,t)+r}, v{T(t)+r}")
    for t in range(3):
        g, u = A(2*p, t), A(2*p+1, t)
        ops += [f"v_cvt_pk_bf16_f32 v{u}, v{g}, v{g+1}", f"v_cvt_pk_bf16_f32 v{u+1}, v{g+2}, v{g+3}"]
    for t in range(3):
        u = A(2*p+1, t)
        ops.append(f"buffer_store_dwordx2 v[{u}:{u+1}], v{12+p}, {WSR}, s{52+t} offen {LS('h')}")
    ops.append(f"v_add_u32 v{12+p}, {4*HT}, v{12+p}")
    return ops

def epi_pk(a, P):
    p = P & 1; so = (P >> 1) * 1024
    A = lambda x, t: V_ACC + (x * 3 + t) * 4
    T = (lambda t: V_XB + 4 * t) if P == 3 else (lambda t: V_T + 12 + 4 * t)
    c1 = 26
    a(f"ds_read_b32 v{NEG[0]}, v{15+2*p} offset:{8+so}\nds_read_b32 v{NEG[1]}, v{15+2*p+1} offset:{8+so}\nds_read_b64 v[26:27], v{19+p} offset:{so}\ns_waitcnt lgkmcnt(0)")
    for t in range(3):
        cs = V_CS + 4 * t
        for xl in range(2):
            for h in range(2):
                r = A(2*p+xl, t) + 2 * h
                a(f"v_pk_fma_f32 v[{r}:{r+1}], v[{cs+2*h}:{cs+2*h+1}], v[{NEG[xl]}:{NEG[xl]+1}], v[{r}:{r+1}] op_sel_hi:[1,0,1]")
    for t in range(3):
        for r in range(4): a(f"v_permlane32_swap_b32 v{A(2*p,t)+r}, v{A(2*p+1,t)+r}")
    for t in range(3):
        for h in range(2):
            a(f"v_pk_mul_f32 v[{T(t)+2*h}:{T(t)+2*h+1}], v[{A(2*p,t)+2*h}:{A(2*p,t)+2*h+1}], v[{c1}:{c1+1}] op_sel_hi:[1,0]")
    for t in range(3):
        for r in range(4): a(f"v_exp_f32 v{T(t)+r}, v{T(t)+r}")
    for t in range(3):
        for h in range(2):
            g, u = A(2*p, t) + 2 * h, A(2*p+1, t) + 2 * h
            a(f"v_pk_mul_f32 v[{g}:{g+1}], v[{g}:{g+1}], v[{u}:{u+1}]")
    for t in range(3):
        for h in range(2):
            a(f"v_pk_fma_f32 v[{T(t)+2*h}:{T(t)+2*h+1}], v[{T(t)+2*h}:{T(t)+2*h+1}], v[{c1}:{c1+1}], v[{c1}:{c1+1}] op_sel:[0,1,1] op_sel_hi:[1,1,1]")
    for t in range(3):
        for r in range(4): a(f"v_rcp_f32 v{T(t)+r}, v{T(t)+r}")
    for t in range(3):
        for h in range(2):
            g = A(2*p, t) + 2 * h
            a(f"v_pk_mul_f32 v[{g}:{g+1}], v[{g}:{g+1}], v[{T(t)+2*h}:{T(t)+2*h+1}]")
    for t in range(3):
        g = A(2*p, t); u = A(2*p+1, t)
        a(f"v_cvt_pk_bf16_f32 v{u}, v{g}, v{g+1}\nv_cvt_pk_bf16_f32 v{u+1}, v{g+2}, v{g+3}")
    a.tag = f"E{P}"
    for t in range(3):
        u = A(2*p+1, t)
        a(f"buffer_store_dwordx2 v[{u}:{u+1}], v{12+p}, {WSR}, s{52+t} offen {LS('h')}")
    a.tag = None
    if P < 2: a(f"v_add_u32 v{12+p}, {4*HT}, v{12+p}")

def l1_stats(a, hf):
    SA, SG = V_T + 4, V_T + 8
    a(f"""v_and_b32 v4, 3, v2
    v_cmp_eq_u32 vcc, 1, v4
    v_cndmask_b32 v29, v{SG}, v{SG+1}, vcc
    v_cmp_eq_u32 vcc, 2, v4
    v_cndmask_b32 v29, v29, v{SG+2}, vcc
    v_cmp_eq_u32 vcc, 3, v4
    v_cndmask_b32 v29, v29, v{SG+3}, vcc
    v_mov_b32 v28, v{SA}""")
    ln_core(a, 28, 29)
    a(f"""v_rcp_f32 v5, v29
    v_mul_f32 v{SA+1}, v29, v29
    v_sub_f32 v{SA+2}, 0, v28
    v_mul_f32 v{SA}, 0xbfb8aa3b, v5
    v_mov_b32 v{SA+3}, 0
    s_lshl_b32 s36, s{S_W}, 8
    s_add_u32 s36, s36, {L_ST + hf * 1024}
    v_lshl_add_u32 v6, v2, 4, s36
    v_lshrrev_b32 v4, 2, v2
    v_cmp_eq_u32 vcc, v4, v3
    s_and_saveexec_b64 s[38:39], vcc
    ds_write_b128 v6, {vr(SA)}
    s_mov_b64 exec, s[38:39]
    s_waitcnt lgkmcnt(0)
    s_barrier""")

def g1_stream(a, layer, hook=None, cs_from=16, st=None):
    tr = layer == 1
    per = 2 if tr else 1
    def rd(N):
        P, n = N >> 5, N & 31
        kb, xl = n >> 1, n & 1
        x = 2 * (P & 1) + xl
        B = V_XB + 4 * (N & 3)
        if tr:
            off = (kb >> 1) * 8192 + (kb & 1) * 1024
            return [f"ds_read_b64_tr_b16 v[{B}:{B+1}], v{8+x} offset:{off}", f"ds_read_b64_tr_b16 v[{B+2}:{B+3}], v{8+x} offset:{off+512}"]
        return [f"ds_read_b128 {vr(B)}, v{8+x} offset:{kb*1024}"]
    ONE, SA, SG = V_T, V_T + 4, V_T + 8
    if tr:
        for k in range(4): a(f"v_mov_b32 v{ONE+k}, 0x3f803f80")
    for N in range(3):
        for op in rd(N): a(op)
    restart = set()
    for P in range(4):
        fill = epi_ops(P - 1) if (P > 0 and not (tr and L1PK)) else []
        if P == 1: fill = [f"v_add_u32 v{8+x}, 0x10000, v{8+x}" for x in (0, 1)] + fill
        if P == 2: fill = [f"v_add_u32 v{8+x}, 0x10000, v{8+x}" for x in (2, 3)][:0] + fill
        cost = lambda op: 2.0 if op.startswith(("v_exp", "v_rcp", "v_permlane")) else 1.0
        rate = sum(cost(o) for o in fill) / 92.0
        budget = 0.0
        for n in range(32):
            N = P * 32 + n
            kb, xl = n >> 1, n & 1
            if xl == 0 and hook: hook(P, kb)
            if P == 2 and n == 4:
                for x in (2, 3): a(f"v_add_u32 v{8+x}, 0x10000, v{8+x}")
            infl = min(2, 127 - N)
            a(f"s_waitcnt lgkmcnt({infl*per})")
            B = V_XB + 4 * (N & 3)
            x = 2 * (P & 1) + xl
            mf = [f"v_mfma_f32_16x16x32_bf16 {vr(V_ACC + (x*3+t)*4)}, {w13(kb,t)}, {vr(B)}, {'0' if kb == 0 else vr(V_ACC + (x*3+t)*4)}" for t in range(3)]
            if tr and P == 0 and xl == 1 and kb >= cs_from:
                mf += [f"v_mfma_f32_16x16x32_bf16 {vr(V_CS+4*t)}, {w13(kb,t)}, {vr(ONE)}, {vr(V_CS+4*t)}" for t in range(3)]
            if tr and P in (0, 2) and xl == 0:
                mf.append(f"v_mfma_f32_16x16x32_bf16 {vr(SA)}, {vr(ONE)}, {vr(B)}, {'0' if kb == 0 else vr(SA)}")
                mf.append(f"v_mfma_f32_16x16x32_bf16 {vr(SG)}, {vr(B)}, {vr(B)}, {'0' if kb == 0 else vr(SG)}")
            for i, m in enumerate(mf):
                a(m)
                if i == 0 and N + 3 < 128:
                    for op in rd(N + 3): a(op)
                if i < 3:
                    budget += rate
                    while fill and budget >= cost(fill[0]) - 0.5:
                        op = fill.pop(0); budget -= cost(op)
                        if op.startswith("buffer_store"): a.tag = f"E{P-1}"
                        if op != "@gap": a(op)
                        a.tag = None
        for op in fill:
            if op.startswith("buffer_store"): a.tag = f"E{P-1}"
            if op != "@gap": a(op)
            a.tag = None
        if st is not None and FINE == 'P': fstamp(a, st + P)
        if tr and P in (0, 2):
            l1_stats(a, P >> 1)
        if tr and L1PK and P < 3:
            epi_pk(a, P)
    epi_pk(a, 3)

def emit_g2(a, layer, hbase, etagA, st):
    ACC = V_ACC
    acc = lambda dt, x: ACC + (x * 4 + dt) * 4
    for x in range(4):
        a(f"""s_add_u32 s36, s{S_W}, {x}
        s_and_b32 s36, s36, 3
        s_lshl_b32 s37, s20, 3
        s_add_u32 s36, s36, s37
        s_lshl_b32 s37, s22, 2
        s_add_u32 s36, s36, s37
        s_mul_i32 s36, s36, {HT}
        s_mul_i32 s37, s{S_W}, {11*1024}
        s_add_u32 s36, s36, s37
        s_add_u32 s{56+x}, s36, {hbase}
        s_cmp_eq_u32 s{S_W}, 3
        s_cselect_b32 s{60+x}, {INV}, s{56+x}""")
    a(f"""s_lshl_b32 s51, s{S_W}, 15
    v_lshrrev_b32 v2, 4, v1
    v_and_b32 v3, 15, v1
    v_lshlrev_b32 v8, 7, v2
    v_lshl_add_u32 v8, v3, 3, v8
    v_add_u32 v8, s51, v8
    s_add_u32 s50, s{S_GEN}, s22
    s_add_u32 s50, s50, {etagA}""")
    def su():
        member_flag_off(a, 9, "0", 16)
    wg_wait(a, su, 9, 1, None, V_HB, etag=50)
    stamp(a, st)
    AHEAD = 4
    def dma1(i, x):
        a(f"""s_add_u32 s36, s{(60 if i == 10 else 56)+x}, {i*1024}
        s_add_u32 m0, s51, {(i % 8)*4096 + x*1024}
        buffer_load_dwordx4 v31, {WSR}, s36 offen sc1 lds""")
    for i in range(AHEAD):
        for x in range(4): dma1(i, x)
    def rd(n):
        i, x = n >> 2, n & 3
        B = V_HB + 4 * x; off = (i % 8) * 4096 + x * 1024
        return [f"ds_read_b64 v[{B}:{B+1}], v8 offset:{off}", f"ds_read_b64 v[{B+2}:{B+3}], v8 offset:{off+512}"]
    issued = AHEAD * 4
    def vmwait(n): a(f"s_waitcnt vmcnt({issued - 1 - n})")
    vmwait(2)
    stamp(a, st + 1)
    for n in range(3):
        for op in rd(n): a(op)
    for n in range(44):
        i, x = n >> 2, n & 3
        infl = min(2, 43 - n)
        a(f"s_waitcnt lgkmcnt({infl*2})")
        B = V_HB + 4 * x
        for dt in range(4):
            c = acc(dt, x)
            a(f"v_mfma_f32_16x16x32_bf16 {vr(c)}, {w2(i,dt)}, {vr(B)}, {'0' if i == 0 else vr(c)}")
            if dt == 0 and n + 3 < 44:
                vmwait(n + 3)
                for op in rd(n + 3): a(op)
            if dt == 2 and issued < 44:
                dma1(issued >> 2, issued & 3); issued += 1
    stamp(a, st + 2)
    a(f"v_add_u32 v9, s51, v31")
    for x in range(1, 4):
        for dt in range(4):
            a(f"ds_write_b128 v9, {vr(acc(dt,x))} offset:{((x-1)*4+dt)*1024}")
    for x in range(1, 4):
        a(f"""s_sub_u32 s36, s{S_W}, {x}
        s_and_b32 s36, s36, 3
        s_lshl_b32 s36, s36, 15
        v_add_u32 v{9+x}, s36, v31""")
    a("s_waitcnt lgkmcnt(0)\ns_barrier")
    for x in range(1, 4):
        for dt in range(4):
            a(f"ds_read_b128 {vr(acc(dt,x))}, v{9+x} offset:{((x-1)*4+dt)*1024}")
    if layer == 1:
        a(f"""v_bfe_u32 v4, v1, 2, 2
        v_lshl_add_u32 v4, v2, 4, v4
        v_lshlrev_b32 v4, 7, v4
        v_and_b32 v5, 3, v1
        v_lshl_add_u32 v4, v5, 3, v4
        s_lshl_b32 s36, s{S_W}, 5
        s_add_u32 s36, s36, {L_TX}
        v_add_u32 v4, s36, v4""")
        P = V_HB; Yp = V_HB + 8
        for dt in range(4):
            a(f"ds_read_b64_tr_b16 v[{P+2*dt}:{P+2*dt+1}], v4 offset:{dt*512}")
        for dt in range(4):
            a(f"ds_read_b64_tr_b16 v[{Yp+2*dt}:{Yp+2*dt+1}], v4 offset:{8192+dt*512}")
        nl = 8
    else:
        P = V_X3; nl = 0
    for x in range(1, 4):
        a(f"s_waitcnt lgkmcnt({min(15, (3-x)*4 + nl)})")
        for dt in range(4):
            for h in range(2):
                c, o = acc(dt, 0) + 2 * h, acc(dt, x) + 2 * h
                a(f"v_pk_add_f32 v[{c}:{c+1}], v[{c}:{c+1}], v[{o}:{o+1}]")
    stamp(a, st + 3)
    O = ACC; X = ACC + 16; PK = ACC + 48
    a("s_waitcnt lgkmcnt(0)")
    for k in range(8):
        a(f"v_lshlrev_b32 v{X+2*k}, 16, v{P+k}\nv_and_b32 v{X+2*k+1}, 0xffff0000, v{P+k}")
    for k in range(8): a(f"v_cvt_pk_bf16_f32 v{PK+k}, v{O+2*k}, v{O+2*k+1}")
    for k in range(8):
        a(f"v_lshlrev_b32 v{O+2*k}, 16, v{PK+k}\nv_and_b32 v{O+2*k+1}, 0xffff0000, v{PK+k}")
    for k in range(8):
        a(f"v_pk_add_f32 v[{O+2*k}:{O+2*k+1}], v[{O+2*k}:{O+2*k+1}], v[{X+2*k}:{X+2*k+1}]")
    for k in range(8): a(f"v_cvt_pk_bf16_f32 v{PK+k}, v{O+2*k}, v{O+2*k+1}")
    if layer == 2:
        a(f"""s_load_dwordx2 s[32:33], s[0:1], {ARG['out']}
        s_lshl_b32 s36, s20, 7
        s_lshl_b32 s37, s22, 6
        s_add_u32 s36, s36, s37
        s_lshl_b32 s37, s{S_W}, 4
        s_add_u32 s36, s36, s37
        s_lshl_b32 s36, s36, 10
        s_lshl_b32 s37, s23, 7
        s_add_u32 s36, s36, s37
        v_lshlrev_b32 v4, 10, v3
        v_lshl_add_u32 v4, v2, 5, v4
        s_waitcnt lgkmcnt(0)
        s_mov_b32 s34, {S*D*2}
        s_mov_b32 s35, 0x20000
        buffer_store_dwordx4 {vr(PK)}, v4, s[32:35], s36 offen
        buffer_store_dwordx4 {vr(PK+4)}, v4, s[32:35], s36 offen offset:16""")
        return
    a(f"v_mov_b32 v22, 0\nv_mov_b32 v23, 0\nv_mov_b32 v21, 0x3f803f80\nv_mov_b32 v26, 0\nv_mov_b32 v27, 0")
    for k in range(0, 8, 2):
        a(f"""v_dot2_f32_bf16 v22, v{PK+k}, v21, v22
        v_dot2_f32_bf16 v23, v{PK+k}, v{PK+k}, v23
        v_dot2_f32_bf16 v26, v{PK+k+1}, v21, v26
        v_dot2_f32_bf16 v27, v{PK+k+1}, v{PK+k+1}, v27""")
    a("v_add_f32 v22, v22, v26\nv_add_f32 v23, v23, v27")
    a(f"""v_mov_b32 v24, v22
    v_mov_b32 v25, v23
    v_permlane16_swap_b32 v22, v24
    v_permlane16_swap_b32 v23, v25
    v_add_f32 v22, v22, v24
    v_add_f32 v23, v23, v25
    v_mov_b32 v24, v22
    v_mov_b32 v25, v23
    v_permlane32_swap_b32 v22, v24
    v_permlane32_swap_b32 v23, v25
    v_add_f32 v22, v22, v24
    v_add_f32 v23, v23, v25""")
    L = a.newlabel("hop")
    a(f"""s_add_u32 s50, s{S_GEN}, 12
    v_mov_b32 v24, s50
    v_mov_b32 v25, 0
    s_lshl_b32 s36, s20, 1
    s_add_u32 s36, s36, s22
    s_lshl_b32 s36, s36, 13
    s_lshl_b32 s37, s{S_W}, 8
    s_add_u32 s36, s36, s37
    s_add_u32 s36, s36, {WS['SYNC'] + SYNC_ST2}
    s_lshl_b32 s37, s23, 10
    s_add_u32 s37, s37, s36
    v_lshlrev_b32 v4, 4, v3
    s_mov_b64 exec, 0xffff""")
    dstore(a, f"buffer_store_dwordx4 v[22:25], v4, {WSR}, s37 offen {{F}}")
    a(f"""s_mov_b64 exec, -1
    v_lshl_add_u32 v5, v2, 11, v4""")
    for k in range(8):
        a(f"v_lshlrev_b32 v{X+2*k}, 16, v{PK+k}\nv_and_b32 v{X+2*k+1}, 0xffff0000, v{PK+k}")
    a(f"""s_mov_b32 s38, 0
    {L}_p:
    buffer_load_dwordx4 v[{O}:{O+3}], v5, {WSR}, s36 offen sc1
    buffer_load_dwordx4 v[{O+4}:{O+7}], v5, {WSR}, s36 offen offset:1024 sc1
    s_add_u32 s38, s38, 1
    s_waitcnt vmcnt(0)
    v_cmp_eq_u32 vcc, s50, v{O+2}
    v_cmp_eq_u32 s[40:41], s50, v{O+6}
    s_and_b64 vcc, vcc, s[40:41]
    s_cmp_gt_u32 s38, 200000
    s_cbranch_scc1 {L}_d
    s_cmp_eq_u64 vcc, -1
    s_cbranch_scc0 {L}_p
    {L}_d:
    v_add_f32 v22, v{O}, v{O+4}
    v_add_f32 v23, v{O+1}, v{O+5}
    v_mov_b32 v24, v22
    v_mov_b32 v25, v23
    v_permlane16_swap_b32 v22, v24
    v_permlane16_swap_b32 v23, v25
    v_add_f32 v22, v22, v24
    v_add_f32 v23, v23, v25
    v_mov_b32 v24, v22
    v_mov_b32 v25, v23
    v_permlane32_swap_b32 v22, v24
    v_permlane32_swap_b32 v23, v25
    v_add_f32 v22, v22, v24
    v_add_f32 v23, v23, v25""")
    ln_core(a, 22, 23)
    a(f"""v_rcp_f32 v24, v23
    v_sub_f32 v22, 0, v22
    v_mul_f32 v26, v22, v24""")
    Yf = ACC
    for k in range(8):
        a(f"v_lshlrev_b32 v{Yf+2*k}, 16, v{Yp+k}\nv_and_b32 v{Yf+2*k+1}, 0xffff0000, v{Yp+k}")
    N = ACC + 32
    for k in range(8):
        a(f"v_pk_fma_f32 v[{N+2*k}:{N+2*k+1}], v[{X+2*k}:{X+2*k+1}], v[24:25], v[26:27] op_sel_hi:[1,0,0]")
    for k in range(8):
        a(f"v_pk_fma_f32 v[{N+2*k}:{N+2*k+1}], v[{N+2*k}:{N+2*k+1}], v[{Yf+2*k}:{Yf+2*k+1}], v[{X+2*k}:{X+2*k+1}]")
    for k in range(8):
        a(f"v_cvt_pk_bf16_f32 v{V_X3+k}, v{N+2*k}, v{N+2*k+1}")
    a(f"""s_lshl_b32 s36, s20, 3
    s_lshl_b32 s37, s22, 2
    s_add_u32 s36, s36, s37
    s_add_u32 s36, s36, s{S_W}
    s_lshl_b32 s38, s36, 10
    s_lshl_b32 s36, s36, 14
    s_lshl_b32 s37, s23, 11
    s_add_u32 s36, s36, s37
    s_add_u32 s36, s36, {WS['X3']}""")
    dstore(a, f"""buffer_store_dwordx4 {vr(V_X3)}, v31, {WSR}, s36 offen {{F}}
    buffer_store_dwordx4 {vr(V_X3+4)}, v31, {WSR}, s36 offen offset:1024 {{F}}""", "x3")
    a(f"v_mov_b32 v22, 0\nv_mov_b32 v23, 0\nv_mov_b32 v26, 0\nv_mov_b32 v27, 0")
    for k in range(0, 8, 2):
        a(f"""v_dot2_f32_bf16 v22, v{V_X3+k}, v21, v22
        v_dot2_f32_bf16 v23, v{V_X3+k}, v{V_X3+k}, v23
        v_dot2_f32_bf16 v26, v{V_X3+k+1}, v21, v26
        v_dot2_f32_bf16 v27, v{V_X3+k+1}, v{V_X3+k+1}, v27""")
    a(f"""v_add_f32 v22, v22, v26
    v_add_f32 v23, v23, v27
    v_mov_b32 v24, v22
    v_mov_b32 v25, v23
    v_permlane16_swap_b32 v22, v24
    v_permlane16_swap_b32 v23, v25
    v_add_f32 v22, v22, v24
    v_add_f32 v23, v23, v25
    v_mov_b32 v24, v22
    v_mov_b32 v25, v23
    v_permlane32_swap_b32 v22, v24
    v_permlane32_swap_b32 v23, v25
    v_add_f32 v22, v22, v24
    v_add_f32 v23, v23, v25
    s_lshl_b32 s37, s23, 7
    s_add_u32 s38, s38, s37
    s_add_u32 s38, s38, {WS['SYNC'] + SYNC_ST3}
    v_lshlrev_b32 v4, 3, v3
    s_mov_b64 exec, 0xffff""")
    dstore(a, f"buffer_store_dwordx2 v[22:23], v4, {WSR}, s38 offen {{F}}")
    a("s_mov_b64 exec, -1")

NW13L = 12
NW13A = 12
NW13B = 30
PACE = 5
CHK1 = 2
FINE = None
FRONT4 = False
UPFRONT = False
L1PK = False
WFIRST = False
PROBE = None
CODEPF = True
DBG = 0
def build():
    a = Asm()
    global stamp
    if FINE:
        real = common.stamp
        def stamp_(a_, i):
            if i == 0: real(a_, 0)
        stamp = stamp_
        def fst(a_, i):
            real(a_, i)
            if FINE == 'P':
                a_(f"s_memtime s[70:71]\ns_waitcnt lgkmcnt(0)\ns_mov_b32 s{72+14+i}, s70")
        globals()['fstamp'] = fst
    else:
        globals()['fstamp'] = lambda a_, i: None
    kbegin(a, KN)
    emit_prologue(a)
    emit_prep_loads(a)
    if False:
        pass
    a("s_waitcnt lgkmcnt(0)")
    a(f"""s_getreg_b32 s36, hwreg(HW_REG_XCC_ID, 0, 4)
    s_add_u32 s{S_IDW}, s{S_GEN}, 13
    s_lshl_b32 s{S_IDW}, s{S_IDW}, 4
    s_or_b32 s{S_IDW}, s{S_IDW}, s36
    s_mov_b32 s{S_LOC}, 0
    s_cmp_lg_u32 s{S_W}, 0
    s_cbranch_scc1 L_noid
    v_mov_b32 v174, s{S_IDW}
    v_mov_b32 v175, s{S_FLAG}
    s_mov_b64 exec, 1
    buffer_store_dword v174, v175, {WSR}, 0 offen offset:4 sc1
    s_mov_b64 exec, -1
    L_noid:""")
    w13ops = [f"s_add_u32 s36, s{40+t}, {kb*1024}\nbuffer_load_dwordx4 {w13(kb,t)}, v31, {WSR}, s36 offen sc1" for kb in range(16) for t in range(3)]
    if FRONT4:
        emit_front4(a, None)
        signal(a, 3)
        stamp(a, 9)
        a("v_and_b32 v1, 63, v0")
        a(f"v_lshlrev_b32 v22, 6, v1\nv_add_u32 v22, {WS['SYNC'] + SYNC_FLAGS}, v22")
        for i in range(4):
            if i == 0: a(f"buffer_load_dword v24, v22, {WSR}, 0 offen offset:8 sc1")
            else: a(f"s_movk_i32 s39, {4096*i}\nbuffer_load_dword v{24+i}, v22, {WSR}, s39 offen offset:8 sc1")
        a("s_waitcnt vmcnt(0)")
        flagcheck(a, 1, (24, 25, 26, 27), 22, "L_w_ok", tmp=(29, 30), off=8)
        for op in w13ops[:NW13B]: a(op)
    else:
        emit_prep_compute(a)
        emit_ffn_roles(a)
        hooks = dict(conv_loop_extra=w13ops[:NW13L], n_conv_total_w=NW13L, conv_epi_extra=w13ops[NW13L:NW13A])
        emit_conv(a, hooks)
        signal(a, 3)
        stamp(a, 9)
        a("v_and_b32 v1, 63, v0")
        for op in w13ops[NW13A:NW13B]: a(op)
    if not FRONT4: emit_cs(a, 0, NW13A // 3)
    def su3():
        a(f"v_lshlrev_b32 v9, 6, v1\nv_add_u32 v9, {WS['SYNC'] + SYNC_FLAGS}, v9")
    wg_wait(a, su3, 9, 4, 3, V_T, wave=3)
    stamp(a, 10)
    x1_dma_setup(a)
    x1ops = x1_dma_ops(0)
    for op in x1ops: a(op)
    nC = 48 - NW13B
    a("s_waitcnt vmcnt(16)")
    emit_cs(a, 0 if FRONT4 else NW13A // 3, NW13B // 3)
    g1_addr(a, 1, WS['H1'])
    a(f"s_waitcnt vmcnt(8)\ns_barrier")
    stamp(a, 11)
    w13c = list(w13ops[NW13B:])
    kbC = NW13B // 3
    x1h1 = x1_dma_ops(1)
    w2q = list(range(44))
    cnt = dict(after=0, h1=0)
    def hook1(P, kb):
        if P == 0:
            if nC:
                if kb == 6: a(f"s_waitcnt vmcnt({nC - len(w13c)})\ns_barrier")
                if kb >= kbC:
                    a(f"s_waitcnt vmcnt({3 * (15 - kb) + cnt['h1']})")
                for _ in range(3):
                    if w13c: a(w13c.pop(0))
                if kb == 8: a(x1h1.pop(0))
                if kb >= 8:
                    a(x1h1.pop(0)); a(x1h1.pop(0)); cnt['h1'] += 2
            else:
                if kb == 6: a(f"s_waitcnt vmcnt({cnt['h1']})\ns_barrier")
                if kb == 0: a(x1h1.pop(0))
                if kb < 8:
                    a(x1h1.pop(0)); a(x1h1.pop(0)); cnt['h1'] += 2
        if P == 1 and kb == 0:
            tiles_dma(a)
            a("v_and_b32 v2, 15, v1\nv_lshrrev_b32 v3, 4, v1")
        if P == 1 and kb == 13:
            a(f"s_waitcnt vmcnt({cnt['after']})\ns_barrier")
        if (P, kb) == ((2, 8) if L1PK else (3, 6)):
            signal(a, 4, tv=(30, 29), local=True, vm='E1')
        if P >= 1 and w2q and not (P == 1 and kb < 2):
            n = 1 if P < 3 else 2
            for _ in range(n):
                if w2q:
                    i = w2q.pop(0); w2_loads(a, i, i + 1)
                    cnt['after'] += 1
                    if P == 3: cnt['sinceE1'] = cnt.get('sinceE1', 0) + 1
        if P == 1 and kb == 0: cnt['after'] = 0
    cnt['sinceE1'] = 0
    if FINE == 'P': fstamp(a, 1)
    g1_stream(a, 1, hook1, cs_from=kbC, st=2)
    if FINE == 'P': fstamp(a, 6)
    assert not w2q, w2q
    signal(a, 5, local=True)
    stamp(a, 14)
    emit_g2(a, 1, WS['H1'], 4, 15)
    signal(a, 6, local=True)
    stamp(a, 19)
    def su6a(): member_flag_off(a, 9, "0", 8)
    wg_wait(a, su6a, 9, 1, 6, V_T)
    stamp(a, 20)
    st3_stats(a, 0)
    for op in x3_dma_ops(0): a(op)
    g1_addr(a, 2, WS['H2'])
    a("s_waitcnt vmcnt(16)")
    st3_finish(a, 0)
    a("s_waitcnt vmcnt(8) lgkmcnt(0)\ns_barrier")
    stamp(a, 21)
    x3h1 = x3_dma_ops(1)
    def hook2(P, kb):
        if P == 0:
            if kb == 0:
                member_flag_off(a, 14, "8", 8)
                a(f"buffer_load_dword v30, v14, {WSR}, 0 offen sc1")
            if kb == 6: a("s_waitcnt vmcnt(1)\ns_barrier")
            if kb == 10:
                L = a.newlabel("x3b")
                a(f"""s_waitcnt vmcnt(0)
                s_add_u32 s37, s{S_GEN}, 6
                v_subrev_u32 v30, s37, v30
                v_cmp_gt_u32 vcc, 16, v30
                s_cmp_eq_u64 vcc, -1
                s_cbranch_scc1 {L}""")
                wait_flags(a, 14, 1, 6, 30)
                a.label(L)
                st3_stats(a, 1)
                a(x3h1.pop(0))
            if kb >= 10:
                for _ in range(2): a(x3h1.pop(0))
        if P == 1:
            if kb < 2:
                for _ in range(2): a(x3h1.pop(0))
            if kb == 6:
                a("s_waitcnt vmcnt(16)")
                st3_finish(a, 1)
            if kb == 13: a("s_waitcnt vmcnt(3) lgkmcnt(3)\ns_barrier" if False else "s_waitcnt vmcnt(0)\ns_barrier")
        if P == 3 and kb == 6:
            signal(a, 7, tv=(30, 29), local=True)
    if FINE == 'P': fstamp(a, 7)
    g1_stream(a, 2, hook2, st=8)
    if FINE == 'P': fstamp(a, 12)
    signal(a, 8, local=True)
    stamp(a, 23)
    emit_g2(a, 2, WS['H2'], 7, 24)
    a(f"""s_or_b32 s36, s2, s{S_W}
    s_cmp_lg_u32 s36, 0
    s_cbranch_scc1 L_nogen
    s_add_u32 s36, s{S_GEN}, 16
    v_mov_b32 v2, s36
    v_mov_b32 v3, {WS['SYNC'] + SYNC_GEN}
    s_mov_b64 exec, 1
    buffer_store_dword v2, v3, {WSR}, 0 offen
    s_mov_b64 exec, -1
    L_nogen:""")
    if PROBE is not None:
        pa, pb, K = PROBE
        a(f"""s_waitcnt vmcnt(0) lgkmcnt(0)
        s_memrealtime s[70:71]
        s_waitcnt lgkmcnt(0)
        s_mov_b32 s100, s70
        s_or_b32 s36, s2, s{S_W}
        s_cmp_lg_u32 s36, 0
        s_cbranch_scc1 L_end
        s_sub_u32 s36, s{72+pb if pb < 28 else 100}, s{72+pa}
        s_mul_i32 s36, s36, {K}
        s_add_u32 s36, s36, s100
        L_spin:
        s_memrealtime s[70:71]
        s_waitcnt lgkmcnt(0)
        s_sub_u32 s37, s70, s36
        s_cmp_lt_i32 s37, 0
        s_cbranch_scc1 L_spin
        s_branch L_end""")
    if common.STAMPS:
        a("s_waitcnt vmcnt(0)"); stamp(a, 28)
    if DBG:
        sel = [1, 2, 3, 4, 5, 6, 7, 9, 10, 11, 14, 15, 19, 21, 23, 28]
        a(f"""s_cmp_lg_u32 s2, {DBG - 1}
        s_cbranch_scc1 L_end
        s_cmp_lg_u32 s{S_W}, 0
        s_cbranch_scc1 L_end
        s_load_dwordx2 s[68:69], s[0:1], {ARG['dbg']}
        s_waitcnt lgkmcnt(0)
        s_mov_b64 exec, 1""")
        for i, k in enumerate(sel):
            a(f"s_sub_u32 s70, s{72+k}, s72\nv_mov_b32 v2, s70\nv_mov_b32 v3, {4*i}\nglobal_store_dword v3, v2, s[68:69]")
    else:
        stamp_flush(a, 0, 29)
    a.label("L_end")
    a("s_endpgm")
    a.label("L_codeend")
    a("s_endpgm")
    txt = header([(None, 256, 256, LDS_TOTAL)]) + a.text() + kernel_desc(KN, 512, 102, 256)
    return txt, a
if __name__ == "__main__":
    common.STAMPS = 's' in sys.argv[2:]
    LOCAL = any(x.startswith('l') for x in sys.argv[2:])
    for x in sys.argv[2:]:
        if x.startswith('l'): LOCSET.update(['flag'] + x[1:].split('+'))
    HALF = 'h' in sys.argv[2:]
    UPFRONT = 1 if 'up' in sys.argv[2:] else (2 if 'up2' in sys.argv[2:] else 0)
    FRONT4 = 'f4' in sys.argv[2:]
    if FRONT4: UPFRONT = 2
    SPREAD = 'nosp' not in sys.argv[2:]
    L1PK = 'pk' in sys.argv[2:]
    for x in sys.argv[2:]:
        if x.startswith('w:'): NW13L, NW13A, NW13B = (int(y) for y in x[2:].split(','))
    for x in sys.argv[2:]:
        if x.startswith('p:'): PROBE = tuple(int(y) for y in x[2:].split(','))
    CODEPF = 'nopf' not in sys.argv[2:]
    DYN = 'nodyn' not in sys.argv[2:]
    DBG = max([int(x[1:]) + 1 for x in sys.argv[2:] if x[0] == 'd' and x[1:].isdigit()] + [0])
    FINE = 'A' if 'fa' in sys.argv[2:] else ('B' if 'fb' in sys.argv[2:] else ('P' if 'fp' in sys.argv[2:] else ('F' if 'ff' in sys.argv[2:] else None)))
    txt, a = build()
    open(sys.argv[1], "w").write(txt)
    print("nops:", a.nnop, "bytes", len(txt))
```

```python
import sys
from asmgen import *
from common import *
import common

KN = NAME + "_kernel"
WSR = "s[28:31]"
INV = "0x80000000"
S_GEN, S_W, S_FLAG = 3, 18, 64
LOCAL = False
HALF = False
S_LOC, S_IDW = 17, 16
DYN = True
DYNSET = {"flag", "x3"}
def LS(kind="flag"): return "" if (LOCAL and kind in LOCSET) else "sc1"
LOCSET = set()
def dstore(a, text, kind="flag"):
    if not DYN or kind not in DYNSET or LOCAL:
        a(text.replace("{F}", LS(kind))); return
    L = a.newlabel("ds")
    a(f"s_cmp_eq_u32 s{S_LOC}, 1\ns_cbranch_scc1 {L}_l")
    a(text.replace("{F}", "sc1"))
    a(f"s_branch {L}_e\n{L}_l:")
    a.nolog += 1
    a(text.replace("{F}", ""))
    a.nolog -= 1
    a.label(f"{L}_e")
def vr(b, n=4): return f"v[{b}:{b+n-1}]"

SPREAD = True
def PGs(d):
    return f"s_lshr_b32 {d}, s2, 3\n    s_and_b32 {d}, {d}, 7" if SPREAD else f"s_mov_b32 {d}, s60"
def PTs(d, t):
    return f"s_lshr_b32 {d}, s2, 6\n    s_lshl_b32 {d}, {d}, 3\n    s_and_b32 {t}, s2, 7\n    s_add_u32 {d}, {d}, {t}" if SPREAD else f"s_mov_b32 {d}, s61"
def rnd_bf16(a, v):
    a(f"v_cvt_pk_bf16_f32 v{v}, v{v}, v{v}\nv_and_b32 v{v}, 0xffff0000, v{v}")
def sum_q(a, v, t):
    a(f"""v_mov_b32 v{t}, v{v}
    v_permlane16_swap_b32 v{v}, v{t}
    v_add_f32 v{v}, v{v}, v{t}
    v_mov_b32 v{t}, v{v}
    v_permlane32_swap_b32 v{v}, v{t}
    v_add_f32 v{v}, v{v}, v{t}""")
def allsum64(a, v, t):
    for r in (8, 4, 2, 1):
        a(f"v_add_f32_dpp v{v}, v{v}, v{v} row_ror:{r} row_mask:0xf bank_mask:0xf")
    sum_q(a, v, t)
def ln_core(a, vsum, vsq):
    a(f"""v_mul_f32 v{vsum}, 0x3b000000, v{vsum}
    v_mul_f32 v{vsq}, 0x3b000000, v{vsq}
    v_fma_f32 v{vsq}, -v{vsum}, v{vsum}, v{vsq}
    v_max_f32 v{vsq}, 0, v{vsq}""")
    rnd_bf16(a, vsq)
    a(f"v_add_f32 v{vsq}, 0x3727c5ac, v{vsq}")
    rnd_bf16(a, vsq)
    a(f"v_sqrt_f32 v{vsq}, v{vsq}")
    rnd_bf16(a, vsq)
    rnd_bf16(a, vsum)
def signal(a, e, tv=(2, 3), barrier=True, local=False, vm=0):
    L = a.newlabel("sg")
    if isinstance(vm, str): a.vmneed(vm)
    else: a(f"s_waitcnt vmcnt({vm})")
    if barrier: a("s_barrier")
    a.nolog += 1
    a(f"""s_cmp_lg_u32 s{S_W}, 0
    s_cbranch_scc1 {L}
    s_add_u32 s36, s{S_GEN}, {e}
    v_mov_b32 v{tv[0]}, s36
    v_mov_b32 v{tv[1]}, s{S_FLAG}
    s_mov_b64 exec, 1""")
    if local: dstore(a, f"buffer_store_dword v{tv[0]}, v{tv[1]}, {WSR}, 0 offen {{F}}")
    else: a(f"buffer_store_dword v{tv[0]}, v{tv[1]}, {WSR}, 0 offen sc1")
    a(f"""s_mov_b64 exec, -1
    {L}:""")
    a.nolog -= 1
def wait_flags(a, voff, nld, e, T, etag=None):
    L = a.newlabel("wf")
    if etag is None:
        a(f"s_add_u32 s37, s{S_GEN}, {e}"); etag = 37
    a(f"s_mov_b32 s38, 0")
    a.nolog += 1
    a.label(L)
    for i in range(nld):
        if i == 0: a(f"buffer_load_dword v{T}, v{voff}, {WSR}, 0 offen sc1")
        else: a(f"s_movk_i32 s39, {4096*i}\nbuffer_load_dword v{T+i}, v{voff}, {WSR}, s39 offen sc1")
    a("s_add_u32 s38, s38, 1\ns_waitcnt vmcnt(0)")
    for k in range(nld):
        a(f"v_subrev_u32 v{T+k}, s{etag}, v{T+k}")
    for k in range(1, nld): a(f"v_max_u32 v{T}, v{T}, v{T+k}")
    a(f"""v_cmp_gt_u32 vcc, 16, v{T}
    s_cmp_gt_u32 s38, 200000
    s_cbranch_scc1 {L}_x
    s_cmp_eq_u64 vcc, -1
    s_cbranch_scc0 {L}
    {L}_x:""")
    a.nolog -= 1
def flagcheck(a, e, regs, voff, label, tmp, off=0):
    a(f"""s_add_u32 s37, s{S_GEN}, {e}
    v_subrev_u32 v{tmp[0]}, s37, v{regs[0]}
    v_subrev_u32 v{tmp[1]}, s37, v{regs[1]}
    v_max_u32 v{tmp[0]}, v{tmp[0]}, v{tmp[1]}
    v_subrev_u32 v{tmp[1]}, s37, v{regs[2]}
    v_max_u32 v{tmp[0]}, v{tmp[0]}, v{tmp[1]}
    v_subrev_u32 v{tmp[1]}, s37, v{regs[3]}
    v_max_u32 v{tmp[0]}, v{tmp[0]}, v{tmp[1]}
    v_cmp_gt_u32 vcc, 16, v{tmp[0]}
    s_cmp_eq_u64 vcc, -1
    s_cbranch_scc1 {label}
    s_mov_b32 s38, 0
    {label}_p:""")
    a.nolog += 1
    for i in range(4):
        if i == 0: a(f"buffer_load_dword v{regs[0]}, v{voff}, {WSR}, 0 offen offset:{off} sc1")
        else: a(f"s_movk_i32 s39, {4096*i}\nbuffer_load_dword v{regs[i]}, v{voff}, {WSR}, s39 offen offset:{off} sc1")
    a(f"""s_add_u32 s38, s38, 1
    s_waitcnt vmcnt(0)
    v_subrev_u32 v{tmp[0]}, s37, v{regs[0]}
    v_subrev_u32 v{tmp[1]}, s37, v{regs[1]}
    v_max_u32 v{tmp[0]}, v{tmp[0]}, v{tmp[1]}
    v_subrev_u32 v{tmp[1]}, s37, v{regs[2]}
    v_max_u32 v{tmp[0]}, v{tmp[0]}, v{tmp[1]}
    v_subrev_u32 v{tmp[1]}, s37, v{regs[3]}
    v_max_u32 v{tmp[0]}, v{tmp[0]}, v{tmp[1]}
    v_cmp_gt_u32 vcc, 16, v{tmp[0]}
    s_cmp_gt_u32 s38, 200000
    s_cbranch_scc1 {label}
    s_cmp_eq_u64 vcc, -1
    s_cbranch_scc0 {label}_p
    {label}:""")
    a.nolog -= 1
def wg_wait(a, setup, voff, nld, e, T, etag=None, wave=0):
    L = a.newlabel("ww")
    a(f"s_cmp_lg_u32 s{S_W}, {wave}\ns_cbranch_scc1 {L}")
    setup()
    wait_flags(a, voff, nld, e, T, etag)
    a.label(L)
    a("s_barrier")

HCS = 4160; XRO = 4 * HCS; CB = XRO + 4608; EXO = 49152
PL = 65536
PW = PL + 16384
W3OFF = 6144 + 32
L_TX = 131072; L_TY = L_TX + 8192; L_ST = L_TY + 8192
LDS_TOTAL = L_ST + 2048

def emit_prologue(a):
    a(f"""s_cmp_ge_u32 s2, 256
    s_cbranch_scc1 L_end""")
    emit_codepf(a)
    a(f"""s_load_dwordx4 s[4:7], s[0:1], {ARG['q']}
    s_load_dwordx4 s[8:11], s[0:1], {ARG['v']}
    s_load_dwordx4 s[12:15], s[0:1], {ARG['h']}
    s_load_dwordx2 s[16:17], s[0:1], {ARG['ws']}
    s_load_dwordx4 s[52:55], s[0:1], {ARG['w1']}
    s_load_dwordx2 s[56:57], s[0:1], {ARG['w2']}
    v_lshrrev_b32 v3, 6, v0
    v_and_b32 v1, 7, v0
    v_readfirstlane_b32 s{S_W}, v3
    s_and_b32 s60, s2, 7
    s_lshr_b32 s61, s2, 3
    v_lshrrev_b32 v2, 3, v0
    {PGs('s36')}
    s_lshl_b32 s36, s36, 7
    {PTs('s37', 's38')}
    s_lshl_b32 s37, s37, 16
    s_add_u32 s36, s36, s37
    v_lshlrev_b32 v4, 4, v1
    v_lshlrev_b32 v5, 11, v2
    v_add3_u32 v4, v4, v5, s36
    s_lshl_b32 s{S_FLAG}, s60, 5
    s_add_u32 s{S_FLAG}, s{S_FLAG}, s61
    s_mov_b32 s19, s{S_FLAG}
    s_lshl_b32 s{S_FLAG}, s{S_FLAG}, 6
    s_add_u32 s{S_FLAG}, s{S_FLAG}, {WS['SYNC'] + SYNC_FLAGS}
    s_waitcnt lgkmcnt(0)""")
    srd(a, 20, 4, S * D * 2)
    srd(a, 24, 6, S * D * 2)
    srd(a, 32, 8, S * D * 2)
    srd(a, 40, 10, D * 8)
    srd(a, 28, 16, WS['END'])
    a(f"""s_add_u32 s36, s16, {WS['SYNC'] + SYNC_GEN}
    s_addc_u32 s37, s17, 0
    s_load_dword s{S_GEN}, s[36:37], 0""")
    stamp(a, 0)

def emit_prep_loads(a):
    a(f"""v_and_b32 v9, 63, v0
    s_lshr_b32 s66, s{S_W}, 1
    s_and_b32 s67, s{S_W}, 1""")
    if WFIRST: emit_prep_loadsW(a)
    a(f"""{PGs('s36')}
    s_lshl_b32 s36, s36, 9
    v_lshlrev_b32 v8, 6, v1
    v_add_u32 v8, s36, v8
    buffer_load_dwordx4 v[44:47], v8, s[40:43], 0 offen
    buffer_load_dwordx4 v[48:51], v8, s[40:43], 0 offen offset:16
    buffer_load_dwordx4 v[52:55], v8, s[40:43], 0 offen offset:32
    buffer_load_dwordx4 v[56:59], v8, s[40:43], 0 offen offset:48
    v_subrev_u32 v5, 3072, v4
    v_subrev_u32 v6, 2048, v4
    v_subrev_u32 v7, 1024, v4
    buffer_load_dwordx4 v[16:19], v5, s[24:27], 0 offen
    buffer_load_dwordx4 v[20:23], v6, s[24:27], 0 offen
    buffer_load_dwordx4 v[24:27], v7, s[24:27], 0 offen
    buffer_load_dwordx4 v[28:31], v4, s[24:27], 0 offen
    buffer_load_dwordx4 v[32:35], v4, s[24:27], 0 offen offset:1024
    buffer_load_dwordx4 v[36:39], v4, s[32:35], 0 offen
    buffer_load_dwordx4 v[40:43], v4, s[32:35], 0 offen offset:1024""")
    if UPFRONT:
        emit_prep_loads2(a)
        emit_prep_loadsQ(a)
        emit_statrows(a)
        if UPFRONT == 1: emit_prep_loadsW(a)

def emit_statrows(a):
    a(f"""v_lshlrev_b32 v10, 4, v9
    s_lshl_b32 s36, s2, 13
    s_lshl_b32 s37, s{S_W}, 11
    s_add_u32 s36, s36, s37
    v_add_u32 v10, s36, v10
    buffer_load_dwordx4 v[68:71], v10, s[20:23], 0 offen
    buffer_load_dwordx4 v[72:75], v10, s[20:23], 0 offen offset:1024""")

def emit_prep_loadsW(a):
    a(f"""s_cmp_eq_u32 s66, 0
    s_cselect_b32 s52, s52, s54
    s_cselect_b32 s53, s53, s55
    s_mov_b32 s54, {D*F*2}
    s_mov_b32 s55, 0x20000
    s_mov_b32 s58, {D*F*2}
    s_mov_b32 s59, 0x20000
    s_mul_i32 s62, s60, {64*2752}
    s_mul_i32 s63, s61, 96
    s_add_u32 s62, s62, s63
    s_mul_i32 s63, s67, 192
    v_add_u32 v176, s63, v9
    s_mul_i32 s36, s66, {W3OFF}
    s_lshl_b32 s63, s63, 4
    s_add_u32 s36, s36, s63
    s_add_u32 s36, s36, {PW}""")
    for i in range(3):
        a(f"""v_add_u32 v177, {64*i}, v176
        v_mul_u32_u24 v178, 43691, v177
        v_lshrrev_b32 v178, 18, v178
        v_mul_u32_u24 v179, 6, v178
        v_sub_u32 v179, v177, v179
        v_mul_u32_u24 v178, 2752, v178
        v_lshl_add_u32 v{184+i}, v179, 4, v178
        s_add_u32 m0, s36, {1024*i}
        buffer_load_dwordx4 v{184+i}, s[52:55], s62 offen lds""")
    a(f"""v_lshrrev_b32 v178, 3, v9
    v_and_b32 v179, 7, v9
    v_lshlrev_b32 v178, 10, v178
    v_lshl_add_u32 v187, v179, 4, v178
    s_lshl_b32 s63, s{S_W}, 13
    {PTs('s36', 's37')}
    s_lshl_b32 s36, s36, 15
    s_add_u32 s36, s36, s63
    {PGs('s63')}
    s_lshl_b32 s63, s63, 7
    s_add_u32 s36, s36, s63
    s_lshl_b32 s63, s{S_W}, 10
    s_add_u32 s63, s63, {PW + 2*6144 + 64}
    s_mov_b32 m0, s63
    buffer_load_dwordx4 v187, s[56:59], s36 offen lds
    s_add_u32 s36, s36, {32*32*1024}
    s_add_u32 m0, s63, 4096
    buffer_load_dwordx4 v187, s[56:59], s36 offen lds""")

def emit_prep_loadsQ(a):
    a(f"""buffer_load_dwordx4 v[60:63], v4, s[20:23], 0 offen
    buffer_load_dwordx4 v[64:67], v4, s[20:23], 0 offen offset:1024""")
def emit_prep_loads2(a):
    a(f"""s_lshl_b32 s65, s19, 1
    s_add_u32 s65, s65, s66
    s_lshl_b32 s37, s65, 1
    s_lshl_b32 s65, s65, 12""")
    srd(a, 44, 12, 4096, offreg=65)
    srd(a, 48, 14, D * 2)
    a(f"""v_lshlrev_b32 v172, 4, v9
    s_lshl_b32 s36, s67, 11
    v_add_u32 v172, s36, v172
    buffer_load_dwordx4 v[192:195], v172, s[44:47], 0 offen
    buffer_load_dwordx4 v[196:199], v172, s[44:47], 0 offen offset:4
    buffer_load_dwordx4 v[200:203], v172, s[44:47], 0 offen offset:8
    buffer_load_dwordx4 v[204:207], v172, s[44:47], 0 offen offset:1024
    buffer_load_dwordx4 v[208:211], v172, s[44:47], 0 offen offset:1028
    buffer_load_dwordx4 v[212:215], v172, s[44:47], 0 offen offset:1032
    v_bfe_u32 v219, v9, 3, 2
    v_and_b32 v220, 7, v9
    v_lshlrev_b32 v13, 1, v220
    v_add_u32 v13, v13, v219
    v_subrev_u32 v13, 16, v13
    v_lshlrev_b32 v13, 1, v13
    v_add_u32 v14, 2, v13
    buffer_load_ushort v216, v13, s[44:47], 0 offen
    buffer_load_ushort v217, v14, s[44:47], 0 offen
    v_mov_b32 v173, s37
    buffer_load_ushort v218, v173, s[48:51], 0 offen""")

def emit_codepf(a):
    if CODEPF:
        a(f"""s_getpc_b64 s[68:69]
        L_pc:
        s_sub_u32 s68, s68, L_pc-{KN}
        s_subb_u32 s69, s69, 0
        v_and_b32 v190, 15, v0
        s_lshr_b32 s36, s2, 3
        s_lshl_b32 s36, s36, 4
        v_add_u32 v190, s36, v190
        v_lshlrev_b32 v190, 7, v190
        v_min_u32 v190, L_codeend-{KN}-4, v190
        global_load_dword v188, v190, s[68:69]""")

def emit_prep_compute(a):
    a(f"""v_sub_u32 v11, 31, v2
    v_lshlrev_b32 v12, 2, v1
    v_xor_b32 v11, v11, v12
    v_lshlrev_b32 v11, 2, v11
    v_lshlrev_b32 v13, 10, v1
    v_add_u32 v11, v11, v13
    v_add_u32 v11, {PL}, v11
    v_xor_b32 v12, v2, v12
    v_lshlrev_b32 v12, 2, v12
    v_add_u32 v12, v12, v13
    v_add_u32 v12, {PL + 8192}, v12
    """)
    a(f"s_waitcnt vmcnt({(25 if UPFRONT == 1 else 20) if UPFRONT else 7})")
    for j in range(8):
        a(f"""v_lshlrev_b32 v{80+j}, 16, v{44+2*j}
        v_and_b32 v{88+j}, 0xffff0000, v{44+2*j}
        v_lshlrev_b32 v{96+j}, 16, v{45+2*j}
        v_and_b32 v{104+j}, 0xffff0000, v{45+2*j}""")
    a(f"s_waitcnt vmcnt({(18 if UPFRONT == 1 else 13) if UPFRONT else 0})")
    stamp(a, 1)
    for i in range(5):
        for p in range(4):
            a(f"""v_lshlrev_b32 v{112+8*i+2*p}, 16, v{16+4*i+p}
            v_and_b32 v{113+8*i+2*p}, 0xffff0000, v{16+4*i+p}""")
    for row in range(2):
        for p in range(4):
            d = 152 + 8 * row + 2 * p
            a(f"v_pk_mul_f32 v[{d}:{d+1}], v[{112+8*row+2*p}:{113+8*row+2*p}], v[{104+2*p}:{105+2*p}]")
    for tt, tap in ((1, 2), (2, 1), (3, 0)):
        for row in range(2):
            for p in range(4):
                d = 152 + 8 * row + 2 * p
                k = 112 + 8 * (row + tt) + 2 * p
                s_ = 80 + 8 * tap + 2 * p
                a(f"v_pk_fma_f32 v[{d}:{d+1}], v[{k}:{k+1}], v[{s_}:{s_+1}], v[{d}:{d+1}]")
    for row in range(2):
        for p in range(4):
            a(f"""v_lshlrev_b32 v{112+8*row+2*p}, 16, v{36+4*row+p}
            v_and_b32 v{113+8*row+2*p}, 0xffff0000, v{36+4*row+p}""")
    for row in range(2):
        for p in range(4):
            d = 152 + 8 * row + 2 * p
            a(f"v_pk_mul_f32 v[{d}:{d+1}], v[{d}:{d+1}], v[{112+8*row+2*p}:{113+8*row+2*p}]")
    for j in range(8):
        a(f"v_cvt_pk_bf16_f32 v{80+j}, v{160+j}, v{152+j}")
    for j in range(8):
        a(f"ds_write_b32 v11, v{80+j} offset:{128*j}")
    a(f"""v_lshrrev_b32 v3, 6, v0
    v_xor_b32 v5, v1, v3
    v_lshlrev_b32 v5, 4, v5
    v_lshlrev_b32 v6, 7, v2
    v_add_u32 v5, v5, v6
    v_add_u32 v5, {PL}, v5
    v_xor_b32 v7, 64, v5
    {PGs('s36')}
    s_lshl_b32 s36, s36, 18
    {PTs('s37', 's38')}
    s_lshl_b32 s37, s37, 7
    s_sub_u32 s4, s36, s37
    s_add_u32 s4, s4, {WS['XR'] + 1984*2}
    s_add_u32 s5, s36, s37
    s_add_u32 s5, s5, {WS['QT']}
    v_lshlrev_b32 v8, 12, v2
    v_lshlrev_b32 v15, 4, v1
    v_add_u32 v8, v8, v15
    v_add_u32 v15, 0x20000, v8
    s_waitcnt lgkmcnt(0)
    s_barrier
    ds_read_b128 v[16:19], v5
    ds_read_b128 v[20:23], v7 offset:4096
    s_waitcnt lgkmcnt(1)
    buffer_store_dwordx4 v[16:19], v8, {WSR}, s4 offen {LS('xr')}
    s_waitcnt lgkmcnt(0)
    buffer_store_dwordx4 v[20:23], v15, {WSR}, s4 offen {LS('xr')}""")
    stamp(a, 2)
    if UPFRONT != 1: emit_prep_loadsW(a)
    if not UPFRONT: emit_prep_loadsQ(a)
    L = a.newlabel("sg1")
    a(f"""s_waitcnt vmcnt({(0 if UPFRONT == 1 else 5) if UPFRONT else 7})
    s_barrier
    s_cmp_lg_u32 s{S_W}, 0
    s_cbranch_scc1 {L}
    s_add_u32 s36, s{S_GEN}, 1
    v_mov_b32 v16, s36
    v_mov_b32 v17, s{S_FLAG}
    s_mov_b64 exec, 1
    buffer_store_dword v16, v17, {WSR}, 0 offen sc1
    s_mov_b64 exec, -1
    {L}:""")
    stamp(a, 3)
    if FINE == 'F': fstamp(a, 9)
    if not UPFRONT:
        emit_statrows(a)
        emit_prep_loads2(a)
    NPF = 0
    if UPFRONT == 2:
        if FINE == 'F': fstamp(a, 6)
        pass
        if FINE == 'F': fstamp(a, 7)
        a(f"""s_mul_i32 s62, s66, {CB}
        v_lshlrev_b32 v4, 4, v9
        s_lshl_b32 s36, s67, 11
        s_add_u32 s36, s36, s62
        s_add_u32 s36, s36, 32
        v_add_u32 v4, s36, v4""")
        for p in range(2):
            L0, L2, L4 = 192 + 12 * p, 196 + 12 * p, 200 + 12 * p
            for j in range(4):
                a(f"v_alignbit_b32 v{112+8*p+j}, v{L2+j}, v{L0+j}, 16")
                a(f"v_alignbit_b32 v{116+8*p+j}, v{L4+j}, v{L2+j}, 16")
            a(f"""ds_write_b128 v4, v[{L0}:{L0+3}] offset:{1024*p}
            ds_write_b128 v4, v[{112+8*p}:{115+8*p}] offset:{1024*p + HCS}
            ds_write_b128 v4, v[{L2}:{L2+3}] offset:{1024*p + 2*HCS}
            ds_write_b128 v4, v[{116+8*p}:{119+8*p}] offset:{1024*p + 3*HCS}""")
        a(f"""v_lshl_or_b32 v216, v217, 16, v216
        v_mul_u32_u24 v13, {HCS}, v219
        v_lshl_add_u32 v13, v220, 2, v13
        v_add_u32 v13, s62, v13
        ds_write_b32 v13, v216
        v_lshlrev_b32 v20, 16, v218
        v_mov_b32 v92, 0
        v_mov_b32 v93, 0
        v_mov_b32 v94, 0
        v_mov_b32 v95, 0
        v_and_b32 v16, 31, v9
        v_lshlrev_b32 v16, 4, v16
        v_add_u32 v16, s62, v16
        ds_write_b128 v16, v[92:95] offset:{XRO+4096}
        s_waitcnt lgkmcnt(0)""")
        if FINE == 'F': fstamp(a, 2)
        pass
        if FINE == 'F': fstamp(a, 3)
        a("s_mov_b32 s36, 0x05040100\ns_mov_b32 s37, 0x07060302")
        for p in range(4):
            a(f"""v_perm_b32 v{88+2*p}, v{64+p}, v{60+p}, s36
            v_perm_b32 v{89+2*p}, v{64+p}, v{60+p}, s37""")
        for j in range(8):
            a(f"ds_write_b32 v12, v{88+j} offset:{128*j}")
        if FINE == 'F': fstamp(a, 4)
        pass
        if FINE == 'F': fstamp(a, 5)
        a("v_mov_b32 v14, 0x3f803f80")
        for row in range(2):
            su, sq = 96 + 2 * row, 97 + 2 * row
            a(f"v_mov_b32 v{su}, 0\nv_mov_b32 v{sq}, 0")
        for p in range(4):
            for row in range(2):
                su, sq = 96 + 2 * row, 97 + 2 * row; b = 68 + 4 * row
                a(f"v_dot2_f32_bf16 v{su}, v{b+p}, v14, v{su}\nv_dot2_f32_bf16 v{sq}, v{b+p}, v{b+p}, v{sq}")
        for r in (8, 4, 2, 1):
            for v in (96, 97, 98, 99):
                a(f"v_add_f32_dpp v{v}, v{v}, v{v} row_ror:{r} row_mask:0xf bank_mask:0xf")
        for k, v in enumerate((96, 97, 98, 99)): a(f"v_mov_b32 v{100+k}, v{v}")
        for k, v in enumerate((96, 97, 98, 99)): a(f"v_permlane16_swap_b32 v{v}, v{100+k}")
        for k, v in enumerate((96, 97, 98, 99)): a(f"v_add_f32 v{v}, v{v}, v{100+k}")
        for k, v in enumerate((96, 97, 98, 99)): a(f"v_mov_b32 v{100+k}, v{v}")
        for k, v in enumerate((96, 97, 98, 99)): a(f"v_permlane32_swap_b32 v{v}, v{100+k}")
        for k, v in enumerate((96, 97, 98, 99)): a(f"v_add_f32 v{v}, v{v}, v{100+k}")
        ln_core(a, 96, 97); ln_core(a, 98, 99)
        a(f"""v_rcp_f32 v102, v97
        v_rcp_f32 v103, v99
        v_mul_f32 v104, -v96, v102
        v_mul_f32 v105, -v98, v103
        s_lshl_b32 s36, s2, 5
        s_lshl_b32 s37, s{S_W}, 3
        s_add_u32 s11, s36, s37
        s_add_u32 s11, s11, {WS['RS0']}""")
        a(f"""v_mov_b32 v101, s11
        s_mov_b32 s37, {WS['C0']-WS['RS0']}
        s_mov_b64 exec, 1
        buffer_store_dwordx2 v[102:103], v101, {WSR}, 0 offen sc1
        buffer_store_dwordx2 v[104:105], v101, {WSR}, s37 offen sc1
        s_mov_b64 exec, -1
        s_waitcnt lgkmcnt(0)
        s_barrier
        ds_read_b128 v[72:75], v5 offset:8192
        ds_read_b128 v[76:79], v7 offset:{8192+4096}
        s_waitcnt lgkmcnt(1)
        buffer_store_dwordx4 v[72:75], v8, {WSR}, s5 offen sc1
        s_waitcnt lgkmcnt(0)
        buffer_store_dwordx4 v[76:79], v15, {WSR}, s5 offen sc1""")
        a("s_waitcnt vmcnt(4)\ns_barrier")
        if FINE == 'F': fstamp(a, 1)
        a(f"""v_lshrrev_b32 v178, 4, v9
        v_bfe_u32 v179, v9, 2, 2
        v_and_b32 v180, 3, v9
        v_lshl_add_u32 v181, v178, 4, v179
        v_mul_u32_u24 v181, 96, v181
        v_and_b32 v182, 1, v180
        v_lshl_add_u32 v181, v182, 3, v181
        v_lshrrev_b32 v182, 1, v180
        v_mul_u32_u24 v182, {W3OFF}, v182
        v_add_u32 v181, v181, v182
        v_lshlrev_b32 v183, 4, v9""")
        for i in range(3):
            a(f"""s_mul_i32 s36, s{S_W}, 3
            s_add_u32 s36, s36, {i}
            s_lshr_b32 s37, s36, 1
            s_and_b32 s36, s36, 1
            s_lshl_b32 s38, s37, 4
            s_mul_i32 s39, s36, {8*96}
            s_add_u32 s38, s38, s39
            s_add_u32 s38, s38, {PW}
            v_add_u32 v182, s38, v181
            ds_read_b64_tr_b16 v[{144+4*i}:{145+4*i}], v182
            ds_read_b64_tr_b16 v[{146+4*i}:{147+4*i}], v182 offset:{4*96}
            s_mul_i32 s38, s61, 6
            s_add_u32 s38, s38, s37
            s_lshl_b32 s39, s38, 14
            s_lshl_b32 s37, s60, 11
            s_add_u32 s39, s39, s37
            s_lshl_b32 s36, s36, 10
            s_add_u32 s39, s39, s36
            s_add_u32 s39, s39, {WS['WF13']}
            s_cmp_lt_u32 s38, 172
            s_cselect_b32 s{6+i}, s39, {INV}""")
        a(f"""v_lshl_add_u32 v181, v178, 2, v179
        v_lshlrev_b32 v181, 7, v181
        v_lshl_add_u32 v181, v180, 5, v181
        s_lshl_b32 s36, s{S_W}, 3
        s_add_u32 s36, s36, {PW + 2*6144 + 64}
        v_add_u32 v181, s36, v181""")
        for i in range(2):
            a(f"""ds_read_b64_tr_b16 v[{156+4*i}:{157+4*i}], v181 offset:{4096*i}
            ds_read_b64_tr_b16 v[{158+4*i}:{159+4*i}], v181 offset:{4096*i + 2048}
            {PTs('s36', 's37')}
            s_add_u32 s36, s36, {32*i}
            {PGs('s37')}
            s_mul_i32 s37, s37, 43
            s_add_u32 s37, s37, s36
            s_lshl_b32 s37, s37, 12
            s_lshl_b32 s38, s{S_W}, 10
            s_add_u32 s37, s37, s38
            s_add_u32 s37, s37, {WS['WF2']}
            s_cmp_lt_u32 s36, 43
            s_cselect_b32 s{9+i}, s37, {INV}""")
        for i in range(5):
            a(f"s_waitcnt lgkmcnt({2*(4-i)})\nbuffer_store_dwordx4 {vr(144+4*i)}, v183, {WSR}, s{6+i} offen sc1")
        a("s_waitcnt lgkmcnt(0)")
        stamp(a, 4)
        return
    a(f"s_waitcnt vmcnt({2 + 2 + 9 + NPF})\ns_barrier")
    if FINE == 'F': fstamp(a, 1)
    a(f"""v_lshrrev_b32 v178, 4, v9
    v_bfe_u32 v179, v9, 2, 2
    v_and_b32 v180, 3, v9
    v_lshl_add_u32 v181, v178, 4, v179
    v_mul_u32_u24 v181, 96, v181
    v_and_b32 v182, 1, v180
    v_lshl_add_u32 v181, v182, 3, v181
    v_lshrrev_b32 v182, 1, v180
    v_mul_u32_u24 v182, {W3OFF}, v182
    v_add_u32 v181, v181, v182
    v_lshlrev_b32 v183, 4, v9""")
    for i in range(3):
        a(f"""s_mul_i32 s36, s{S_W}, 3
        s_add_u32 s36, s36, {i}
        s_lshr_b32 s37, s36, 1
        s_and_b32 s36, s36, 1
        s_lshl_b32 s38, s37, 4
        s_mul_i32 s39, s36, {8*96}
        s_add_u32 s38, s38, s39
        s_add_u32 s38, s38, {PW}
        v_add_u32 v182, s38, v181
        ds_read_b64_tr_b16 v[{144+4*i}:{145+4*i}], v182
        ds_read_b64_tr_b16 v[{146+4*i}:{147+4*i}], v182 offset:{4*96}
        s_mul_i32 s38, s61, 6
        s_add_u32 s38, s38, s37
        s_lshl_b32 s39, s38, 14
        s_lshl_b32 s37, s60, 11
        s_add_u32 s39, s39, s37
        s_lshl_b32 s36, s36, 10
        s_add_u32 s39, s39, s36
        s_add_u32 s39, s39, {WS['WF13']}
        s_cmp_lt_u32 s38, 172
        s_cselect_b32 s{6+i}, s39, {INV}""")
    a(f"""v_lshl_add_u32 v181, v178, 2, v179
    v_lshlrev_b32 v181, 7, v181
    v_lshl_add_u32 v181, v180, 5, v181
    s_lshl_b32 s36, s{S_W}, 3
    s_add_u32 s36, s36, {PW + 2*6144 + 64}
    v_add_u32 v181, s36, v181""")
    for i in range(2):
        a(f"""ds_read_b64_tr_b16 v[{156+4*i}:{157+4*i}], v181 offset:{4096*i}
        ds_read_b64_tr_b16 v[{158+4*i}:{159+4*i}], v181 offset:{4096*i + 2048}
        {PTs('s36', 's37')}
        s_add_u32 s36, s36, {32*i}
        {PGs('s37')}
        s_mul_i32 s37, s37, 43
        s_add_u32 s37, s37, s36
        s_lshl_b32 s37, s37, 12
        s_lshl_b32 s38, s{S_W}, 10
        s_add_u32 s37, s37, s38
        s_add_u32 s37, s37, {WS['WF2']}
        s_cmp_lt_u32 s36, 43
        s_cselect_b32 s{9+i}, s37, {INV}""")
    for i in range(5):
        a(f"s_waitcnt lgkmcnt({2*(4-i)})\nbuffer_store_dwordx4 {vr(144+4*i)}, v183, {WSR}, s{6+i} offen sc1")
    if FINE == 'F': fstamp(a, 2)
    a(f"s_waitcnt vmcnt({2 + 9 + NPF + 5})")
    if FINE == 'F': fstamp(a, 3)
    a("s_mov_b32 s36, 0x05040100\ns_mov_b32 s37, 0x07060302")
    for p in range(4):
        a(f"""v_perm_b32 v{88+2*p}, v{64+p}, v{60+p}, s36
        v_perm_b32 v{89+2*p}, v{64+p}, v{60+p}, s37""")
    for j in range(8):
        a(f"ds_write_b32 v12, v{88+j} offset:{128*j}")
    if FINE == 'F': fstamp(a, 4)
    a(f"s_waitcnt vmcnt({9 + NPF + 5})")
    if FINE == 'F': fstamp(a, 5)
    a("v_mov_b32 v14, 0x3f803f80")
    for row in range(2):
        su, sq = 96 + 2 * row, 97 + 2 * row
        a(f"v_mov_b32 v{su}, 0\nv_mov_b32 v{sq}, 0")
    for p in range(4):
        for row in range(2):
            su, sq = 96 + 2 * row, 97 + 2 * row; b = 68 + 4 * row
            a(f"v_dot2_f32_bf16 v{su}, v{b+p}, v14, v{su}\nv_dot2_f32_bf16 v{sq}, v{b+p}, v{b+p}, v{sq}")
    for r in (8, 4, 2, 1):
        for v in (96, 97, 98, 99):
            a(f"v_add_f32_dpp v{v}, v{v}, v{v} row_ror:{r} row_mask:0xf bank_mask:0xf")
    for k, v in enumerate((96, 97, 98, 99)): a(f"v_mov_b32 v{100+k}, v{v}")
    for k, v in enumerate((96, 97, 98, 99)): a(f"v_permlane16_swap_b32 v{v}, v{100+k}")
    for k, v in enumerate((96, 97, 98, 99)): a(f"v_add_f32 v{v}, v{v}, v{100+k}")
    for k, v in enumerate((96, 97, 98, 99)): a(f"v_mov_b32 v{100+k}, v{v}")
    for k, v in enumerate((96, 97, 98, 99)): a(f"v_permlane32_swap_b32 v{v}, v{100+k}")
    for k, v in enumerate((96, 97, 98, 99)): a(f"v_add_f32 v{v}, v{v}, v{100+k}")
    ln_core(a, 96, 97); ln_core(a, 98, 99)
    a(f"""v_rcp_f32 v102, v97
    v_rcp_f32 v103, v99
    v_mul_f32 v104, -v96, v102
    v_mul_f32 v105, -v98, v103
    s_lshl_b32 s36, s2, 5
    s_lshl_b32 s37, s{S_W}, 3
    s_add_u32 s11, s36, s37
    s_add_u32 s11, s11, {WS['RS0']}""")
    a(f"""v_mov_b32 v101, s11
    s_mov_b32 s37, {WS['C0']-WS['RS0']}
    s_mov_b64 exec, 1
    buffer_store_dwordx2 v[102:103], v101, {WSR}, 0 offen sc1
    buffer_store_dwordx2 v[104:105], v101, {WSR}, s37 offen sc1
    s_mov_b64 exec, -1
    s_waitcnt lgkmcnt(0)
    s_barrier
    ds_read_b128 v[72:75], v5 offset:8192
    ds_read_b128 v[76:79], v7 offset:{8192+4096}
    s_waitcnt lgkmcnt(1)
    buffer_store_dwordx4 v[72:75], v8, {WSR}, s5 offen sc1
    s_waitcnt lgkmcnt(0)
    buffer_store_dwordx4 v[76:79], v15, {WSR}, s5 offen sc1""")
    if FINE == 'F': fstamp(a, 6)
    a("s_waitcnt vmcnt(9)")
    if FINE == 'F': fstamp(a, 7)
    a(f"""s_mul_i32 s62, s66, {CB}
    v_lshlrev_b32 v4, 4, v9
    s_lshl_b32 s36, s67, 11
    s_add_u32 s36, s36, s62
    s_add_u32 s36, s36, 32
    v_add_u32 v4, s36, v4""")
    for p in range(2):
        L0, L2, L4 = 192 + 12 * p, 196 + 12 * p, 200 + 12 * p
        for j in range(4):
            a(f"v_alignbit_b32 v{112+8*p+j}, v{L2+j}, v{L0+j}, 16")
            a(f"v_alignbit_b32 v{116+8*p+j}, v{L4+j}, v{L2+j}, 16")
        a(f"""ds_write_b128 v4, v[{L0}:{L0+3}] offset:{1024*p}
        ds_write_b128 v4, v[{112+8*p}:{115+8*p}] offset:{1024*p + HCS}
        ds_write_b128 v4, v[{L2}:{L2+3}] offset:{1024*p + 2*HCS}
        ds_write_b128 v4, v[{116+8*p}:{119+8*p}] offset:{1024*p + 3*HCS}""")
    a(f"""v_lshl_or_b32 v216, v217, 16, v216
    v_mul_u32_u24 v13, {HCS}, v219
    v_lshl_add_u32 v13, v220, 2, v13
    v_add_u32 v13, s62, v13
    ds_write_b32 v13, v216
    v_lshlrev_b32 v20, 16, v218
    v_mov_b32 v92, 0
    v_mov_b32 v93, 0
    v_mov_b32 v94, 0
    v_mov_b32 v95, 0
    v_and_b32 v16, 31, v9
    v_lshlrev_b32 v16, 4, v16
    v_add_u32 v16, s62, v16
    ds_write_b128 v16, v[92:95] offset:{XRO+4096}
    s_waitcnt lgkmcnt(0)""")
    stamp(a, 4)
    if FINE == 'F': fstamp(a, 8)

def emit_conv(a, hooks):
    a("v_and_b32 v1, 63, v0")
    def su1():
        if SPREAD:
            a(f"""v_and_b32 v2, 7, v1
            v_lshlrev_b32 v2, 5, v2
            v_bfe_u32 v3, v1, 3, 2
            v_lshl_add_u32 v2, v3, 3, v2
            v_add_u32 v2, s60, v2
            v_lshlrev_b32 v2, 6, v2
            v_add_u32 v2, {WS['SYNC'] + SYNC_FLAGS}, v2""")
        else:
            a(f"""v_and_b32 v2, 31, v1
            s_lshl_b32 s36, s60, 5
            v_add_u32 v2, s36, v2
            v_lshlrev_b32 v2, 6, v2
            v_add_u32 v2, {WS['SYNC'] + SYNC_FLAGS}, v2""")
    signal(a, 2)
    wg_wait(a, su1, 2, 1, 1, 64)
    stamp(a, 5)
    a(f"""v_lshlrev_b32 v10, 4, v1
    s_lshl_b32 s36, s67, 11
    s_add_u32 s37, s65, s36
    s_add_u32 s37, s37, {WS['XR']}
    s_add_u32 s38, s62, s36
    s_add_u32 s38, s38, {XRO}
    s_mov_b32 m0, s38
    buffer_load_dwordx4 v10, {WSR}, s37 offen sc1 lds
    s_add_u32 s38, s38, 1024
    s_add_u32 s37, s37, 1024
    s_mov_b32 m0, s38
    buffer_load_dwordx4 v10, {WSR}, s37 offen sc1 lds
    v_and_b32 v11, 15, v1
    v_lshrrev_b32 v12, 4, v1
    v_lshlrev_b32 v13, 4, v11
    v_lshl_add_u32 v13, v12, 2, v13
    s_lshl_b32 s36, s67, 10
    v_add_u32 v13, s36, v13
    v_lshlrev_b32 v14, 1, v13
    v_lshlrev_b32 v15, 2, v13
    v_lshlrev_b32 v22, 6, v1
    v_add_u32 v22, {WS['SYNC'] + SYNC_FLAGS}, v22""")
    a(f"""v_add_u32 v17, 1, v11
    v_and_b32 v18, 3, v17
    v_mul_u32_u24 v18, {HCS}, v18
    v_lshrrev_b32 v17, 2, v17
    v_lshlrev_b32 v17, 3, v17
    v_lshl_add_u32 v17, v12, 4, v17
    v_add_u32 v17, v17, v18
    s_lshl_b32 s36, s67, 8
    s_add_u32 s37, s36, s62
    v_add_u32 v17, s37, v17
    v_lshlrev_b32 v18, 5, v11
    v_lshlrev_b32 v19, 4, v12
    v_sub_u32 v18, v19, v18
    s_add_u32 s37, s37, {XRO + 480}
    v_add_u32 v18, s37, v18""")
    for r in range(32, 64): a(f"v_mov_b32 v{r}, 0")
    a(f"s_waitcnt vmcnt(0)\ns_barrier")
    stamp(a, 6)
    pre = []
    for i in range(4):
        pre.append(f"buffer_load_dwordx2 v[{192+2*i}:{193+2*i}], v14, {WSR}, s10 offen offset:{512*i} sc1")
    for i in range(4):
        pre.append(f"buffer_load_dwordx4 v[{200+4*i}:{203+4*i}], v15, {WSR}, s8 offen offset:{1024*i} sc1")
        pre.append(f"buffer_load_dwordx4 v[{216+4*i}:{219+4*i}], v15, {WSR}, s9 offen offset:{1024*i} sc1")
    def load_frags(setbase, bi):
        ops = []
        for x in range(8):
            A = setbase + 4 * x
            ops.append(f"ds_read_b64 v[{A}:{A+1}], v17 offset:{512*x + 64*bi}")
            ops.append(f"ds_read_b64 v[{A+2}:{A+3}], v17 offset:{512*x + 64*bi + 8}")
            B = setbase + 32 + 4 * x
            ops.append(f"ds_read_b128 v[{B}:{B+3}], v18 offset:{512*(7-x) + 64*bi}")
        return ops
    sets = (64, 128)
    for op in load_frags(sets[0], 0): a(op)
    extra = []
    for bi in range(4):
        cur = sets[bi & 1]
        nxt = load_frags(sets[(bi + 1) & 1], bi + 1) if bi < 3 else []
        if bi == 0:
            for i in range(4):
                if i == 0: a(f"buffer_load_dword v24, v22, {WSR}, 0 offen sc1")
                else: a(f"s_movk_i32 s39, {4096*i}\nbuffer_load_dword v{24+i}, v22, {WSR}, s39 offen sc1")
            member_flag_off(a, 23, "0", 16)
            a(f"buffer_load_dword v28, v23, {WSR}, 0 offen offset:4 sc1")
        if bi == CHK1:
            a(f"""s_waitcnt vmcnt(0)
            v_cmp_eq_u32 vcc, s{S_IDW}, v28
            s_cmp_eq_u64 vcc, -1
            s_cselect_b32 s{S_LOC}, 1, 0""")
            flagcheck(a, 2, (24, 25, 26, 27), 22, "L_c_ok1", tmp=(29, 30))
            a(f"s_mov_b32 s8, {WS['RS0']}\ns_mov_b32 s9, {WS['C0']}\ns_add_u32 s10, s65, {WS['QT']}")
            extra0 = pre
            extra = pre + list(hooks['conv_loop_extra'])
        a("s_waitcnt lgkmcnt(0)")
        pairs = sorted([(jt, aa) for jt in range(8) for aa in range(jt + 1)], key=lambda p: (p[1], p[0]))
        k = 0
        for idx, (jt, aa) in enumerate(pairs):
            A = cur + 4 * aa; B = cur + 32 + 4 * (jt - aa); C = 32 + 4 * jt
            a(f"v_mfma_f32_16x16x32_bf16 v[{C}:{C+3}], v[{A}:{A+3}], v[{B}:{B+3}], v[{C}:{C+3}]")
            if idx < 24 and k < len(nxt):
                a(nxt[k]); k += 1
            if extra and idx % PACE == PACE - 1 or (extra and bi == CHK1 and idx < 12):
                a(extra.pop(0))
    for op in extra: a(op)
    stamp(a, 7)
    a(f"""v_lshlrev_b32 v4, 4, v1
    s_lshl_b32 s36, s{S_W}, 12
    s_add_u32 s36, s36, {EXO}
    v_add_u32 v5, s36, v4
    s_xor_b32 s36, s36, 4096
    v_add_u32 v6, s36, v4
    s_cmp_eq_u32 s67, 0
    s_cbranch_scc0 L_c_x1""")
    for half in range(2):
        own, oth = (32, 48) if half == 0 else (48, 32)
        for i in range(4): a(f"ds_write_b128 v5, v[{oth+4*i}:{oth+4*i+3}] offset:{1024*i}")
        a("s_waitcnt lgkmcnt(0)\ns_barrier")
        for i in range(4): a(f"ds_read_b128 v[{80+4*i}:{83+4*i}], v6 offset:{1024*i}")
        a("s_waitcnt lgkmcnt(0)")
        for i in range(4):
            for h in range(2):
                a(f"v_pk_add_f32 v[{64+4*i+2*h}:{65+4*i+2*h}], v[{own+4*i+2*h}:{own+4*i+2*h+1}], v[{80+4*i+2*h}:{81+4*i+2*h}]")
        if half == 0:
            a("s_branch L_c_x2\nL_c_x1:")
    a.label("L_c_x2")
    a(f"""v_lshlrev_b32 v7, 5, v11
    v_lshl_add_u32 v7, v12, 3, v7
    s_lshl_b32 s36, s67, 11
    s_sub_u32 s37, s62, s36
    s_add_u32 s37, s37, {XRO + 4088 - 1536}
    v_sub_u32 v7, s37, v7""")
    for i in range(4): a(f"ds_read_b64 v[{96+2*i}:{97+2*i}], v7 offset:{512*(3-i)}")
    a(f"""s_lshr_b32 s39, s65, 12
    s_mul_i32 s39, s39, {XP}
    s_add_u32 s38, s39, {WS['YT']}
    s_add_u32 s39, s39, {WS['X1T']}
    s_waitcnt vmcnt({hooks['n_conv_total_w']}) lgkmcnt(0)""")
    for op in hooks['conv_epi_extra']: a(op)
    O = lambda i: 64 + 4 * i
    T = lambda i: 104 + 10 * i
    for i in range(4):
        kv = 96 + 2 * i
        a(f"""v_and_b32 v{T(i)}, 0xffff0000, v{kv+1}
        v_lshlrev_b32 v{T(i)+1}, 16, v{kv+1}
        v_and_b32 v{T(i)+2}, 0xffff0000, v{kv}
        v_lshlrev_b32 v{T(i)+3}, 16, v{kv}""")
    for i in range(4):
        a(f"""v_pk_fma_f32 v[{O(i)}:{O(i)+1}], v[{T(i)}:{T(i)+1}], v[20:21], v[{O(i)}:{O(i)+1}] op_sel_hi:[1,0,1]
        v_pk_fma_f32 v[{O(i)+2}:{O(i)+3}], v[{T(i)+2}:{T(i)+3}], v[20:21], v[{O(i)+2}:{O(i)+3}] op_sel_hi:[1,0,1]""")
    for i in range(4):
        a(f"""v_cvt_pk_bf16_f32 v{T(i)+4}, v{O(i)}, v{O(i)+1}
        v_cvt_pk_bf16_f32 v{T(i)+5}, v{O(i)+2}, v{O(i)+3}""")
    for i in range(4):
        a(f"""v_lshlrev_b32 v{T(i)}, 16, v{192+2*i}
        v_and_b32 v{T(i)+1}, 0xffff0000, v{192+2*i}
        v_lshlrev_b32 v{T(i)+2}, 16, v{193+2*i}
        v_and_b32 v{T(i)+3}, 0xffff0000, v{193+2*i}
        buffer_store_dwordx2 v[{T(i)+4}:{T(i)+5}], v14, {WSR}, s38 offen offset:{512*i} sc1""")
    for i in range(4):
        a(f"""v_lshlrev_b32 v{O(i)}, 16, v{T(i)+4}
        v_and_b32 v{O(i)+1}, 0xffff0000, v{T(i)+4}
        v_lshlrev_b32 v{O(i)+2}, 16, v{T(i)+5}
        v_and_b32 v{O(i)+3}, 0xffff0000, v{T(i)+5}
        v_pk_fma_f32 v[{T(i)+6}:{T(i)+7}], v[{T(i)}:{T(i)+1}], v[{200+4*i}:{201+4*i}], v[{216+4*i}:{217+4*i}]
        v_pk_fma_f32 v[{T(i)+8}:{T(i)+9}], v[{T(i)+2}:{T(i)+3}], v[{202+4*i}:{203+4*i}], v[{218+4*i}:{219+4*i}]""")
    for i in range(4):
        a(f"""v_pk_fma_f32 v[{T(i)+6}:{T(i)+7}], v[{T(i)+6}:{T(i)+7}], v[{O(i)}:{O(i)+1}], v[{T(i)}:{T(i)+1}]
        v_pk_fma_f32 v[{T(i)+8}:{T(i)+9}], v[{T(i)+8}:{T(i)+9}], v[{O(i)+2}:{O(i)+3}], v[{T(i)+2}:{T(i)+3}]""")
    for i in range(4):
        a(f"""v_cvt_pk_bf16_f32 v{O(i)}, v{T(i)+6}, v{T(i)+7}
        v_cvt_pk_bf16_f32 v{O(i)+1}, v{T(i)+8}, v{T(i)+9}
        buffer_store_dwordx2 v[{O(i)}:{O(i)+1}], v14, {WSR}, s39 offen offset:{512*i} sc1""")
    stamp(a, 8)


def blk_addr(a):
    a(f"""v_sub_u32 v11, 31, v2
    v_lshlrev_b32 v12, 2, v1
    v_xor_b32 v11, v11, v12
    v_lshlrev_b32 v11, 2, v11
    v_lshlrev_b32 v13, 10, v1
    v_add_u32 v11, v11, v13
    v_add_u32 v11, {PL}, v11
    v_xor_b32 v12, v2, v12
    v_lshlrev_b32 v12, 2, v12
    v_add_u32 v12, v12, v13
    v_add_u32 v12, {PL + 8192}, v12
    """)

def blk_skun(a):
    for j in range(8):
        a(f"""v_lshlrev_b32 v{80+j}, 16, v{44+2*j}
        v_and_b32 v{88+j}, 0xffff0000, v{44+2*j}
        v_lshlrev_b32 v{96+j}, 16, v{45+2*j}
        v_and_b32 v{104+j}, 0xffff0000, v{45+2*j}""")

def blk_kv(a):
    for i in range(5):
        for p in range(4):
            a(f"""v_lshlrev_b32 v{112+8*i+2*p}, 16, v{16+4*i+p}
            v_and_b32 v{113+8*i+2*p}, 0xffff0000, v{16+4*i+p}""")
    for row in range(2):
        for p in range(4):
            d = 152 + 8 * row + 2 * p
            a(f"v_pk_mul_f32 v[{d}:{d+1}], v[{112+8*row+2*p}:{113+8*row+2*p}], v[{104+2*p}:{105+2*p}]")
    for tt, tap in ((1, 2), (2, 1), (3, 0)):
        for row in range(2):
            for p in range(4):
                d = 152 + 8 * row + 2 * p
                k = 112 + 8 * (row + tt) + 2 * p
                s_ = 80 + 8 * tap + 2 * p
                a(f"v_pk_fma_f32 v[{d}:{d+1}], v[{k}:{k+1}], v[{s_}:{s_+1}], v[{d}:{d+1}]")
    for row in range(2):
        for p in range(4):
            a(f"""v_lshlrev_b32 v{112+8*row+2*p}, 16, v{36+4*row+p}
            v_and_b32 v{113+8*row+2*p}, 0xffff0000, v{36+4*row+p}""")
    for row in range(2):
        for p in range(4):
            d = 152 + 8 * row + 2 * p
            a(f"v_pk_mul_f32 v[{d}:{d+1}], v[{d}:{d+1}], v[{112+8*row+2*p}:{113+8*row+2*p}]")
    for j in range(8):
        a(f"v_cvt_pk_bf16_f32 v{80+j}, v{160+j}, v{152+j}")
    for j in range(8):
        a(f"ds_write_b32 v11, v{80+j} offset:{128*j}")
    a(f"""v_lshrrev_b32 v3, 6, v0
    v_xor_b32 v5, v1, v3
    v_lshlrev_b32 v5, 4, v5
    v_lshlrev_b32 v6, 7, v2
    v_add_u32 v5, v5, v6
    v_add_u32 v5, {PL}, v5
    v_xor_b32 v7, 64, v5
    {PGs('s36')}
    s_lshl_b32 s36, s36, 18
    {PTs('s37', 's38')}
    s_lshl_b32 s37, s37, 7
    s_sub_u32 s4, s36, s37
    s_add_u32 s4, s4, {WS['XR'] + 1984*2}
    s_add_u32 s5, s36, s37
    s_add_u32 s5, s5, {WS['QT']}
    v_lshlrev_b32 v8, 12, v2
    v_lshlrev_b32 v15, 4, v1
    v_add_u32 v8, v8, v15
    v_add_u32 v15, 0x20000, v8
    s_waitcnt lgkmcnt(0)
    s_barrier
    ds_read_b128 v[16:19], v5
    ds_read_b128 v[20:23], v7 offset:4096
    s_waitcnt lgkmcnt(1)
    buffer_store_dwordx4 v[16:19], v8, {WSR}, s4 offen {LS('xr')}
    s_waitcnt lgkmcnt(0)
    buffer_store_dwordx4 v[20:23], v15, {WSR}, s4 offen {LS('xr')}""")

def blk_wtr(a):
    a(f"""v_lshrrev_b32 v178, 4, v9
    v_bfe_u32 v179, v9, 2, 2
    v_and_b32 v180, 3, v9
    v_lshl_add_u32 v181, v178, 4, v179
    v_mul_u32_u24 v181, 96, v181
    v_and_b32 v182, 1, v180
    v_lshl_add_u32 v181, v182, 3, v181
    v_lshrrev_b32 v182, 1, v180
    v_mul_u32_u24 v182, {W3OFF}, v182
    v_add_u32 v181, v181, v182
    v_lshlrev_b32 v183, 4, v9""")
    for i in range(3):
        a(f"""s_mul_i32 s36, s{S_W}, 3
        s_add_u32 s36, s36, {i}
        s_lshr_b32 s37, s36, 1
        s_and_b32 s36, s36, 1
        s_lshl_b32 s38, s37, 4
        s_mul_i32 s39, s36, {8*96}
        s_add_u32 s38, s38, s39
        s_add_u32 s38, s38, {PW}
        v_add_u32 v182, s38, v181
        ds_read_b64_tr_b16 v[{144+4*i}:{145+4*i}], v182
        ds_read_b64_tr_b16 v[{146+4*i}:{147+4*i}], v182 offset:{4*96}
        s_mul_i32 s38, s61, 6
        s_add_u32 s38, s38, s37
        s_lshl_b32 s39, s38, 14
        s_lshl_b32 s37, s60, 11
        s_add_u32 s39, s39, s37
        s_lshl_b32 s36, s36, 10
        s_add_u32 s39, s39, s36
        s_add_u32 s39, s39, {WS['WF13']}
        s_cmp_lt_u32 s38, 172
        s_cselect_b32 s{6+i}, s39, {INV}""")
    a(f"""v_lshl_add_u32 v181, v178, 2, v179
    v_lshlrev_b32 v181, 7, v181
    v_lshl_add_u32 v181, v180, 5, v181
    s_lshl_b32 s36, s{S_W}, 3
    s_add_u32 s36, s36, {PW + 2*6144 + 64}
    v_add_u32 v181, s36, v181""")
    for i in range(2):
        a(f"""ds_read_b64_tr_b16 v[{156+4*i}:{157+4*i}], v181 offset:{4096*i}
        ds_read_b64_tr_b16 v[{158+4*i}:{159+4*i}], v181 offset:{4096*i + 2048}
        {PTs('s36', 's37')}
        s_add_u32 s36, s36, {32*i}
        {PGs('s37')}
        s_mul_i32 s37, s37, 43
        s_add_u32 s37, s37, s36
        s_lshl_b32 s37, s37, 12
        s_lshl_b32 s38, s{S_W}, 10
        s_add_u32 s37, s37, s38
        s_add_u32 s37, s37, {WS['WF2']}
        s_cmp_lt_u32 s36, 43
        s_cselect_b32 s{9+i}, s37, {INV}""")

def blk_qperm(a):
    a("s_mov_b32 s36, 0x05040100\ns_mov_b32 s37, 0x07060302")
    for p in range(4):
        a(f"""v_perm_b32 v{88+2*p}, v{64+p}, v{60+p}, s36
        v_perm_b32 v{89+2*p}, v{64+p}, v{60+p}, s37""")
    for j in range(8):
        a(f"ds_write_b32 v12, v{88+j} offset:{128*j}")

def blk_stats(a):
    a("v_mov_b32 v14, 0x3f803f80")
    for row in range(2):
        su, sq = 96 + 2 * row, 97 + 2 * row
        a(f"v_mov_b32 v{su}, 0\nv_mov_b32 v{sq}, 0")
    for p in range(4):
        for row in range(2):
            su, sq = 96 + 2 * row, 97 + 2 * row; b = 68 + 4 * row
            a(f"v_dot2_f32_bf16 v{su}, v{b+p}, v14, v{su}\nv_dot2_f32_bf16 v{sq}, v{b+p}, v{b+p}, v{sq}")
    for r in (8, 4, 2, 1):
        for v in (96, 97, 98, 99):
            a(f"v_add_f32_dpp v{v}, v{v}, v{v} row_ror:{r} row_mask:0xf bank_mask:0xf")
    for k, v in enumerate((96, 97, 98, 99)): a(f"v_mov_b32 v{100+k}, v{v}")
    for k, v in enumerate((96, 97, 98, 99)): a(f"v_permlane16_swap_b32 v{v}, v{100+k}")
    for k, v in enumerate((96, 97, 98, 99)): a(f"v_add_f32 v{v}, v{v}, v{100+k}")
    for k, v in enumerate((96, 97, 98, 99)): a(f"v_mov_b32 v{100+k}, v{v}")
    for k, v in enumerate((96, 97, 98, 99)): a(f"v_permlane32_swap_b32 v{v}, v{100+k}")
    for k, v in enumerate((96, 97, 98, 99)): a(f"v_add_f32 v{v}, v{v}, v{100+k}")
    ln_core(a, 96, 97); ln_core(a, 98, 99)
    a(f"""v_rcp_f32 v102, v97
    v_rcp_f32 v103, v99
    v_mul_f32 v104, -v96, v102
    v_mul_f32 v105, -v98, v103
    s_lshl_b32 s36, s2, 5
    s_lshl_b32 s37, s{S_W}, 3
    s_add_u32 s11, s36, s37
    s_add_u32 s11, s11, {WS['RS0']}""")

def blk_hcop(a):
    a(f"""s_mul_i32 s62, s66, {CB}
    v_lshlrev_b32 v4, 4, v9
    s_lshl_b32 s36, s67, 11
    s_add_u32 s36, s36, s62
    s_add_u32 s36, s36, 32
    v_add_u32 v4, s36, v4""")
    for p in range(2):
        L0, L2, L4 = 192 + 12 * p, 196 + 12 * p, 200 + 12 * p
        for j in range(4):
            a(f"v_alignbit_b32 v{112+8*p+j}, v{L2+j}, v{L0+j}, 16")
            a(f"v_alignbit_b32 v{116+8*p+j}, v{L4+j}, v{L2+j}, 16")
        a(f"""ds_write_b128 v4, v[{L0}:{L0+3}] offset:{1024*p}
        ds_write_b128 v4, v[{112+8*p}:{115+8*p}] offset:{1024*p + HCS}
        ds_write_b128 v4, v[{L2}:{L2+3}] offset:{1024*p + 2*HCS}
        ds_write_b128 v4, v[{116+8*p}:{119+8*p}] offset:{1024*p + 3*HCS}""")
    a(f"""v_lshl_or_b32 v216, v217, 16, v216
    v_mul_u32_u24 v13, {HCS}, v219
    v_lshl_add_u32 v13, v220, 2, v13
    v_add_u32 v13, s62, v13
    ds_write_b32 v13, v216
    v_lshlrev_b32 v20, 16, v218
    v_mov_b32 v92, 0
    v_mov_b32 v93, 0
    v_mov_b32 v94, 0
    v_mov_b32 v95, 0
    v_and_b32 v16, 31, v9
    v_lshlrev_b32 v16, 4, v16
    v_add_u32 v16, s62, v16
    ds_write_b128 v16, v[92:95] offset:{XRO+4096}
    s_waitcnt lgkmcnt(0)""")


def w_stage_bulk(a):
    for k in range(7):
        a(f"""s_sub_u32 s36, s{S_W}, 1
        s_add_u32 s36, s36, {3*k}
        s_cmp_lt_u32 s36, 12
        s_cbranch_scc0 L_w2_{k}
        s_cmp_lt_u32 s36, 6
        s_cselect_b32 s4, s52, s54
        s_cselect_b32 s5, s53, s55
        s_cselect_b32 s37, 0, 6
        s_cselect_b32 s38, 0, {W3OFF}
        s_mov_b32 s6, {D*F*2}
        s_mov_b32 s7, 0x20000
        s_sub_u32 s36, s36, s37
        s_lshl_b32 s37, s36, 6
        v_add_u32 v177, s37, v9
        v_mul_u32_u24 v178, 43691, v177
        v_lshrrev_b32 v178, 18, v178
        v_mul_u32_u24 v179, 6, v178
        v_sub_u32 v179, v177, v179
        v_mul_u32_u24 v178, 2752, v178
        v_lshl_add_u32 v{184+(k%4)}, v179, 4, v178
        s_lshl_b32 s36, s36, 10
        s_add_u32 s36, s36, s38
        s_add_u32 s36, s36, {PW}
        s_mul_i32 s37, s60, {64*2752}
        s_mul_i32 s38, s61, 96
        s_add_u32 s37, s37, s38
        s_branch L_wgo_{k}
        L_w2_{k}:
        s_mov_b32 s4, s56
        s_mov_b32 s5, s57
        s_mov_b32 s6, {D*F*2}
        s_mov_b32 s7, 0x20000
        s_sub_u32 s36, s36, 12
        v_lshrrev_b32 v178, 3, v9
        v_and_b32 v179, 7, v9
        v_lshlrev_b32 v178, 10, v178
        v_lshl_add_u32 v{184+(k%4)}, v179, 4, v178
        {PTs('s37', 's38')}
        s_lshl_b32 s37, s37, 15
        {PGs('s38')}
        s_lshl_b32 s38, s38, 7
        s_add_u32 s37, s37, s38
        s_and_b32 s38, s36, 3
        s_lshl_b32 s38, s38, 13
        s_add_u32 s37, s37, s38
        s_lshr_b32 s38, s36, 2
        s_lshl_b32 s38, s38, 20
        s_add_u32 s37, s37, s38
        s_cmp_lt_u32 s36, 8
        s_cselect_b32 s37, s37, {INV}
        s_min_u32 s36, s36, 8
        s_lshl_b32 s36, s36, 10
        s_add_u32 s36, s36, {PW + 2*6144 + 64}
        L_wgo_{k}:
        s_mov_b32 m0, s36
        buffer_load_dwordx4 v{184+(k%4)}, s[4:7], s37 offen lds""")

def blk_wtr_hi(a):
    a(f"""v_lshrrev_b32 v250, 4, v9
    v_bfe_u32 v251, v9, 2, 2
    v_and_b32 v252, 3, v9
    v_lshl_add_u32 v253, v250, 4, v251
    v_mul_u32_u24 v253, 96, v253
    v_and_b32 v255, 1, v252
    v_lshl_add_u32 v253, v255, 3, v253
    v_lshrrev_b32 v255, 1, v252
    v_mul_u32_u24 v255, {W3OFF}, v255
    v_add_u32 v253, v253, v255
    v_lshlrev_b32 v254, 4, v9""")
    for i in range(3):
        a(f"""s_mul_i32 s36, s{S_W}, 3
        s_add_u32 s36, s36, {i}
        s_lshr_b32 s37, s36, 1
        s_and_b32 s36, s36, 1
        s_lshl_b32 s38, s37, 4
        s_mul_i32 s39, s36, {8*96}
        s_add_u32 s38, s38, s39
        s_add_u32 s38, s38, {PW}
        v_add_u32 v255, s38, v253
        ds_read_b64_tr_b16 v[{232+4*i}:{233+4*i}], v255
        ds_read_b64_tr_b16 v[{234+4*i}:{235+4*i}], v255 offset:{4*96}
        s_mul_i32 s38, s61, 6
        s_add_u32 s38, s38, s37
        s_lshl_b32 s39, s38, 14
        s_lshl_b32 s37, s60, 11
        s_add_u32 s39, s39, s37
        s_lshl_b32 s36, s36, 10
        s_add_u32 s39, s39, s36
        s_add_u32 s39, s39, {WS['WF13']}
        s_cmp_lt_u32 s38, 172
        s_cselect_b32 s{(6, 7, 12)[i]}, s39, {INV}""")
    a(f"""v_lshl_add_u32 v253, v250, 2, v251
    v_lshlrev_b32 v253, 7, v253
    v_lshl_add_u32 v253, v252, 5, v253
    s_lshl_b32 s36, s{S_W}, 3
    s_add_u32 s36, s36, {PW + 2*6144 + 64}
    v_add_u32 v253, s36, v253""")
    for i in range(2):
        a(f"""ds_read_b64_tr_b16 v[{244+4*i}:{245+4*i}], v253 offset:{4096*i}
        ds_read_b64_tr_b16 v[{246+4*i}:{247+4*i}], v253 offset:{4096*i + 2048}
        {PTs('s36', 's37')}
        s_add_u32 s36, s36, {32*i}
        {PGs('s37')}
        s_mul_i32 s37, s37, 43
        s_add_u32 s37, s37, s36
        s_lshl_b32 s37, s37, 12
        s_lshl_b32 s38, s{S_W}, 10
        s_add_u32 s37, s37, s38
        s_add_u32 s37, s37, {WS['WF2']}
        s_cmp_lt_u32 s36, 43
        s_cselect_b32 s{(13, 14)[i]}, s37, {INV}""")

def conv_epilogue(a):
    O = lambda i: 64 + 4 * i
    T = lambda i: 104 + 10 * i
    for i in range(4):
        kv = 96 + 2 * i
        a(f"""v_and_b32 v{T(i)}, 0xffff0000, v{kv+1}
        v_lshlrev_b32 v{T(i)+1}, 16, v{kv+1}
        v_and_b32 v{T(i)+2}, 0xffff0000, v{kv}
        v_lshlrev_b32 v{T(i)+3}, 16, v{kv}""")
    for i in range(4):
        a(f"""v_pk_fma_f32 v[{O(i)}:{O(i)+1}], v[{T(i)}:{T(i)+1}], v[20:21], v[{O(i)}:{O(i)+1}] op_sel_hi:[1,0,1]
        v_pk_fma_f32 v[{O(i)+2}:{O(i)+3}], v[{T(i)+2}:{T(i)+3}], v[20:21], v[{O(i)+2}:{O(i)+3}] op_sel_hi:[1,0,1]""")
    for i in range(4):
        a(f"""v_cvt_pk_bf16_f32 v{T(i)+4}, v{O(i)}, v{O(i)+1}
        v_cvt_pk_bf16_f32 v{T(i)+5}, v{O(i)+2}, v{O(i)+3}""")
    for i in range(4):
        a(f"""v_lshlrev_b32 v{T(i)}, 16, v{192+2*i}
        v_and_b32 v{T(i)+1}, 0xffff0000, v{192+2*i}
        v_lshlrev_b32 v{T(i)+2}, 16, v{193+2*i}
        v_and_b32 v{T(i)+3}, 0xffff0000, v{193+2*i}
        buffer_store_dwordx2 v[{T(i)+4}:{T(i)+5}], v14, {WSR}, s38 offen offset:{512*i} sc1""")
    for i in range(4):
        a(f"""v_lshlrev_b32 v{O(i)}, 16, v{T(i)+4}
        v_and_b32 v{O(i)+1}, 0xffff0000, v{T(i)+4}
        v_lshlrev_b32 v{O(i)+2}, 16, v{T(i)+5}
        v_and_b32 v{O(i)+3}, 0xffff0000, v{T(i)+5}
        v_pk_fma_f32 v[{T(i)+6}:{T(i)+7}], v[{T(i)}:{T(i)+1}], v[{200+4*i}:{201+4*i}], v[{216+4*i}:{217+4*i}]
        v_pk_fma_f32 v[{T(i)+8}:{T(i)+9}], v[{T(i)+2}:{T(i)+3}], v[{202+4*i}:{203+4*i}], v[{218+4*i}:{219+4*i}]""")
    for i in range(4):
        a(f"""v_pk_fma_f32 v[{T(i)+6}:{T(i)+7}], v[{T(i)+6}:{T(i)+7}], v[{O(i)}:{O(i)+1}], v[{T(i)}:{T(i)+1}]
        v_pk_fma_f32 v[{T(i)+8}:{T(i)+9}], v[{T(i)+8}:{T(i)+9}], v[{O(i)+2}:{O(i)+3}], v[{T(i)+2}:{T(i)+3}]""")
    for i in range(4):
        a(f"""v_cvt_pk_bf16_f32 v{O(i)}, v{T(i)+6}, v{T(i)+7}
        v_cvt_pk_bf16_f32 v{O(i)+1}, v{T(i)+8}, v{T(i)+9}
        buffer_store_dwordx2 v[{O(i)}:{O(i)+1}], v14, {WSR}, s39 offen offset:{512*i} sc1""")
    stamp(a, 8)

def emit_front4(a, hooks):
    blk_addr(a)
    a("s_waitcnt vmcnt(20)")
    blk_skun(a)
    a("s_waitcnt vmcnt(13)")
    stamp(a, 1)
    blk_kv(a)
    stamp(a, 2)
    a("s_mov_b32 s8, s5")
    a.nolog += 1
    a(f"""s_cmp_eq_u32 s{S_W}, 0
    s_cbranch_scc1 L_f_w0a""")
    w_stage_bulk(a)
    a(f"""s_waitcnt vmcnt(7)
    s_branch L_f_j1
    L_f_w0a:
    s_waitcnt vmcnt(0)
    L_f_j1:
    s_barrier
    s_cmp_lg_u32 s{S_W}, 0
    s_cbranch_scc1 L_f_s1
    s_add_u32 s36, s{S_GEN}, 1
    v_mov_b32 v16, s36
    v_mov_b32 v17, s{S_FLAG}
    s_mov_b64 exec, 1
    buffer_store_dword v16, v17, {WSR}, 0 offen sc1
    s_mov_b64 exec, -1
    L_f_s1:""")
    a.nolog -= 1
    stamp(a, 3)
    blk_hcop(a)
    a("v_and_b32 v1, 63, v0")
    a.nolog += 1
    a(f"""s_cmp_lg_u32 s{S_W}, 0
    s_cbranch_scc1 L_f_nx""")
    if SPREAD:
        a(f"""v_and_b32 v2, 7, v1
        v_lshlrev_b32 v2, 5, v2
        v_bfe_u32 v3, v1, 3, 2
        v_lshl_add_u32 v2, v3, 3, v2
        v_add_u32 v2, s60, v2
        v_lshlrev_b32 v2, 6, v2
        v_add_u32 v2, {WS['SYNC'] + SYNC_FLAGS}, v2""")
    else:
        a(f"""v_and_b32 v2, 31, v1
        s_lshl_b32 s36, s60, 5
        v_add_u32 v2, s36, v2
        v_lshlrev_b32 v2, 6, v2
        v_add_u32 v2, {WS['SYNC'] + SYNC_FLAGS}, v2""")
    wait_flags(a, 2, 1, 1, 18)
    a(f"""v_lshlrev_b32 v19, 4, v1
    s_lshl_b32 s36, s19, 13
    s_add_u32 s36, s36, {WS['XR']}""")
    for ch in range(2):
        for i in range(4):
            a(f"""s_mov_b32 m0, {ch * CB + XRO + i * 1024}
            buffer_load_dwordx4 v19, {WSR}, s36 offen sc1 lds
            s_add_u32 s36, s36, 1024""")
    a.label("L_f_nx")
    a.nolog -= 1
    stamp(a, 4)
    blk_qperm(a)
    blk_stats(a)
    a(f"""v_mov_b32 v101, s11
    s_mov_b32 s37, {WS['C0']-WS['RS0']}
    s_mov_b64 exec, 1
    buffer_store_dwordx2 v[102:103], v101, {WSR}, 0 offen sc1
    buffer_store_dwordx2 v[104:105], v101, {WSR}, s37 offen sc1
    s_mov_b64 exec, -1
    s_waitcnt lgkmcnt(0)
    s_barrier
    ds_read_b128 v[72:75], v5 offset:8192
    ds_read_b128 v[76:79], v7 offset:{8192+4096}
    s_waitcnt lgkmcnt(1)
    buffer_store_dwordx4 v[72:75], v8, {WSR}, s8 offen sc1
    s_waitcnt lgkmcnt(0)
    buffer_store_dwordx4 v[76:79], v15, {WSR}, s8 offen sc1""")
    emit_ffn_roles(a)
    a(f"""v_and_b32 v11, 15, v1
    v_lshrrev_b32 v12, 4, v1
    v_lshlrev_b32 v13, 4, v11
    v_lshl_add_u32 v13, v12, 2, v13
    s_lshl_b32 s36, s67, 10
    v_add_u32 v13, s36, v13
    v_lshlrev_b32 v14, 1, v13
    v_lshlrev_b32 v15, 2, v13
    v_lshlrev_b32 v22, 6, v1
    v_add_u32 v22, {WS['SYNC'] + SYNC_FLAGS}, v22
    v_add_u32 v17, 1, v11
    v_and_b32 v18, 3, v17
    v_mul_u32_u24 v18, {HCS}, v18
    v_lshrrev_b32 v17, 2, v17
    v_lshlrev_b32 v17, 3, v17
    v_lshl_add_u32 v17, v12, 4, v17
    v_add_u32 v17, v17, v18
    s_lshl_b32 s36, s67, 8
    s_add_u32 s37, s36, s62
    v_add_u32 v17, s37, v17
    v_lshlrev_b32 v18, 5, v11
    v_lshlrev_b32 v19, 4, v12
    v_sub_u32 v18, v19, v18
    s_add_u32 s37, s37, {XRO + 480}
    v_add_u32 v18, s37, v18""")
    for r in range(32, 64): a(f"v_mov_b32 v{r}, 0")
    a(f"""s_cmp_lg_u32 s{S_W}, 0
    s_cbranch_scc1 L_f_nw
    s_waitcnt vmcnt(4)
    L_f_nw:
    s_barrier""")
    stamp(a, 6)
    pre = []
    for i in range(4):
        pre.append(f"buffer_load_dwordx2 v[{192+2*i}:{193+2*i}], v14, {WSR}, s10 offen offset:{512*i} sc1")
    for i in range(4):
        pre.append(f"buffer_load_dwordx4 v[{200+4*i}:{203+4*i}], v15, {WSR}, s8 offen offset:{1024*i} sc1")
        pre.append(f"buffer_load_dwordx4 v[{216+4*i}:{219+4*i}], v15, {WSR}, s9 offen offset:{1024*i} sc1")
    def load_frags(setbase, bi):
        ops = []
        for x in range(8):
            A = setbase + 4 * x
            ops.append(f"ds_read_b64 v[{A}:{A+1}], v17 offset:{512*x + 64*bi}")
            ops.append(f"ds_read_b64 v[{A+2}:{A+3}], v17 offset:{512*x + 64*bi + 8}")
            B = setbase + 32 + 4 * x
            ops.append(f"ds_read_b128 v[{B}:{B+3}], v18 offset:{512*(7-x) + 64*bi}")
        return ops
    sets = (64, 128)
    for op in load_frags(sets[0], 0): a(op)
    def flagloads(off):
        for i in range(4):
            if i == 0: a(f"buffer_load_dword v24, v22, {WSR}, 0 offen offset:{off} sc1")
            else: a(f"s_movk_i32 s39, {4096*i}\nbuffer_load_dword v{24+i}, v22, {WSR}, s39 offen offset:{off} sc1")
    for bi in range(4):
        cur = sets[bi & 1]
        nxt = load_frags(sets[(bi + 1) & 1], bi + 1) if bi < 3 else []
        if bi == 2:
            signal(a, 2, tv=(24, 25))
            a("v_and_b32 v9, 63, v0")
            blk_wtr_hi(a)
        if bi == 3:
            flagloads(0)
            member_flag_off(a, 23, "0", 16)
            a(f"buffer_load_dword v28, v23, {WSR}, 0 offen offset:4 sc1")
            a("s_waitcnt lgkmcnt(0)")
            for i in range(5):
                a(f"buffer_store_dwordx4 {vr(232+4*i)}, v254, {WSR}, s{(6, 7, 12, 13, 14)[i]} offen sc1")
        a("s_waitcnt lgkmcnt(0)")
        pairs = sorted([(jt, aa) for jt in range(8) for aa in range(jt + 1)], key=lambda p: (p[1], p[0]))
        k = 0
        for idx, (jt, aa) in enumerate(pairs):
            A = cur + 4 * aa; B = cur + 32 + 4 * (jt - aa); C = 32 + 4 * jt
            a(f"v_mfma_f32_16x16x32_bf16 v[{C}:{C+3}], v[{A}:{A+3}], v[{B}:{B+3}], v[{C}:{C+3}]")
            if idx < 24 and k < len(nxt):
                a(nxt[k]); k += 1
    stamp(a, 7)
    a("s_waitcnt vmcnt(5)")
    a(f"""v_cmp_eq_u32 vcc, s{S_IDW}, v28
    s_cmp_eq_u64 vcc, -1
    s_cselect_b32 s{S_LOC}, 1, 0""")
    flagcheck(a, 2, (24, 25, 26, 27), 22, "L_c_ok1", tmp=(29, 30))
    a(f"s_mov_b32 s8, {WS['RS0']}\ns_mov_b32 s9, {WS['C0']}\ns_add_u32 s10, s65, {WS['QT']}")
    for op in pre: a(op)
    a(f"""v_lshlrev_b32 v4, 4, v1
    s_lshl_b32 s36, s{S_W}, 12
    s_add_u32 s36, s36, {EXO}
    v_add_u32 v5, s36, v4
    s_xor_b32 s36, s36, 4096
    v_add_u32 v6, s36, v4
    s_cmp_eq_u32 s67, 0
    s_cbranch_scc0 L_c_x1""")
    for half in range(2):
        own, oth = (32, 48) if half == 0 else (48, 32)
        for i in range(4): a(f"ds_write_b128 v5, v[{oth+4*i}:{oth+4*i+3}] offset:{1024*i}")
        a("s_waitcnt vmcnt(12) lgkmcnt(0)\ns_barrier")
        for i in range(4): a(f"ds_read_b128 v[{80+4*i}:{83+4*i}], v6 offset:{1024*i}")
        a("s_waitcnt lgkmcnt(0)")
        for i in range(4):
            for h in range(2):
                a(f"v_pk_add_f32 v[{64+4*i+2*h}:{65+4*i+2*h}], v[{own+4*i+2*h}:{own+4*i+2*h+1}], v[{80+4*i+2*h}:{81+4*i+2*h}]")
        if half == 0:
            a("s_branch L_c_x2\nL_c_x1:")
    a.label("L_c_x2")
    a.nolog += 1
    a(f"""s_cmp_lg_u32 s{S_W}, 0
    s_cbranch_scc1 L_f_wf
    s_add_u32 s36, s{S_GEN}, 1
    v_mov_b32 v24, s36
    v_mov_b32 v25, s{S_FLAG}
    s_mov_b64 exec, 1
    buffer_store_dword v24, v25, {WSR}, 0 offen offset:8 sc1
    s_mov_b64 exec, -1
    L_f_wf:""")
    a.nolog -= 1
    a(f"""v_lshlrev_b32 v7, 5, v11
    v_lshl_add_u32 v7, v12, 3, v7
    s_lshl_b32 s36, s67, 11
    s_sub_u32 s37, s62, s36
    s_add_u32 s37, s37, {XRO + 4088 - 1536}
    v_sub_u32 v7, s37, v7""")
    for i in range(4): a(f"ds_read_b64 v[{96+2*i}:{97+2*i}], v7 offset:{512*(3-i)}")
    a(f"""s_lshr_b32 s39, s65, 12
    s_mul_i32 s39, s39, {XP}
    s_add_u32 s38, s39, {WS['YT']}
    s_add_u32 s39, s39, {WS['X1T']}
    s_waitcnt vmcnt(0) lgkmcnt(0)""")
    conv_epilogue(a)

V_CS = 32; V_X3 = 44; V_ACC = 52; V_XB = 100; V_T = 116; V_HB = 116; V_W2 = 144
def w13(kb, t): b = (kb * 3 + t) * 4; return f"a[{b}:{b+3}]"
def w2(i, dt):
    idx = i * 4 + dt
    if idx < 16: b = 192 + idx * 4; return f"a[{b}:{b+3}]"
    b = V_W2 + (idx - 16) * 4; return f"v[{b}:{b+3}]"

def emit_ffn_roles_early(a):
    pass
def emit_ffn_roles(a):
    if HALF:
        a(f"""s_and_b32 s22, s60, 1
        s_lshr_b32 s20, s60, 1
        s_lshl_b32 s20, s20, 2
        s_and_b32 s36, s61, 3
        s_or_b32 s20, s20, s36
        s_lshr_b32 s23, s61, 2
        s_lshl_b32 s21, s22, 3
        s_or_b32 s21, s21, s23""")
    else:
        a(f"""s_and_b32 s20, s61, 1
        s_lshl_b32 s36, s60, 1
        s_or_b32 s20, s20, s36
        s_lshr_b32 s21, s61, 1
        s_lshr_b32 s22, s21, 3
        s_and_b32 s23, s21, 7""")
    for t in range(3):
        a(f"""s_mul_i32 s36, s{S_W}, 3
        s_add_u32 s36, s36, {t}
        s_mul_i32 s37, s21, 11
        s_add_u32 s37, s37, s36
        s_cmp_lt_u32 s36, 11
        s_cselect_b32 s38, s37, 0x7fff
        s_cmp_lt_u32 s38, 172
        s_cselect_b32 s39, 1, 0
        s_lshl_b32 s{40+t}, s37, 14
        s_add_u32 s{40+t}, s{40+t}, {WS['WF13']}
        s_lshr_b32 s{44+t}, s37, 1
        s_lshl_b32 s{44+t}, s{44+t}, 9
        s_and_b32 s37, s37, 1
        s_lshl_b32 s37, s37, 8
        s_add_u32 s{44+t}, s{44+t}, s37
        s_cmp_eq_u32 s39, 1
        s_cselect_b32 s{40+t}, s{40+t}, {INV}
        s_cselect_b32 s{44+t}, s{44+t}, {INV}""")
    a(f"""s_mul_i32 s36, s23, 43
    s_mul_i32 s37, s{S_W}, 11
    s_add_u32 s36, s36, s37
    s_lshl_b32 s48, s36, 12
    s_add_u32 s48, s48, {WS['WF2']}
    s_cmp_eq_u32 s{S_W}, 3
    s_cselect_b32 s49, {INV}, s48
    v_and_b32 v31, 63, v0
    v_lshlrev_b32 v31, 4, v31""")
def w13_loads(a):
    for kb in range(16):
        for t in range(3):
            a(f"s_add_u32 s36, s{40+t}, {kb*1024}\nbuffer_load_dwordx4 {w13(kb,t)}, v31, {WSR}, s36 offen sc1")
def w2_loads(a, lo, hi):
    for idx in range(lo, hi):
        i, dt = idx >> 2, idx & 3
        a(f"s_add_u32 s36, s{49 if i == 10 else 48}, {idx*1024}\nbuffer_load_dwordx4 {w2(i,dt)}, v31, {WSR}, s36 offen sc1")

def emit_cs(a, lo, hi):
    a(f"v_mov_b32 v{V_XB}, 0x3f803f80\nv_mov_b32 v{V_XB+1}, 0x3f803f80\nv_mov_b32 v{V_XB+2}, 0x3f803f80\nv_mov_b32 v{V_XB+3}, 0x3f803f80")
    for kb in range(lo, hi):
        for t in range(3):
            c = V_CS + 4 * t
            a(f"v_mfma_f32_16x16x32_bf16 {vr(c)}, {w13(kb,t)}, {vr(V_XB)}, {'0' if kb == 0 else vr(c)}")

def x1_dma_setup(a):
    a(f"""v_lshrrev_b32 v2, 3, v1
    v_bfe_u32 v3, v1, 1, 2
    v_bfe_u32 v6, v1, 4, 1
    v_xor_b32 v3, v3, v6
    s_and_b32 s36, s{S_W}, 2
    v_xor_b32 v3, s36, v3
    v_and_b32 v6, 1, v1
    v_lshlrev_b32 v6, 4, v6
    v_mul_u32_u24 v2, {XP}, v2
    v_add_u32 v6, v2, v6
    v_lshl_add_u32 v27, v3, 5, v6""")
def x1_dma_ops(hf):
    ops = [f"""s_mul_i32 s56, s{S_W}, {8 * XP}
    s_lshl_b32 s57, s20, 8
    s_add_u32 s56, s56, s57
    s_add_u32 s56, s56, {WS['X1T'] + hf * 128}
    s_lshl_b32 s57, s{S_W}, 10
    s_add_u32 s57, s57, {hf * 65536}"""]
    for n in range(16):
        ops.append(f"""s_add_u32 m0, s57, {n * 4096}
        buffer_load_dwordx4 v27, {WSR}, s56 offen sc1 lds
        s_add_u32 s56, s56, {32 * XP}""")
    return ops
def tiles_dma(a):
    a(f"""v_lshrrev_b32 v2, 3, v1
    v_and_b32 v3, 7, v1
    v_mul_u32_u24 v2, {XP}, v2
    v_lshl_add_u32 v2, v3, 4, v2
    s_mul_i32 s36, s23, {64 * XP}
    s_mul_i32 s37, s{S_W}, {16 * XP}
    s_add_u32 s36, s36, s37
    s_lshl_b32 s37, s20, 8
    s_add_u32 s36, s36, s37
    s_lshl_b32 s37, s22, 7
    s_add_u32 s36, s36, s37
    s_lshl_b32 s38, s{S_W}, 11""")
    for arr, lb in (('X1T', L_TX), ('YT', L_TY)):
        for i in range(2):
            a(f"""s_add_u32 s37, s36, {WS[arr] + i * 8 * XP}
            s_add_u32 m0, s38, {lb + i * 1024}
            buffer_load_dwordx4 v2, {WSR}, s37 offen sc1 lds""")
def x3_dma_ops(hf):
    ops = [f"""s_lshl_b32 s56, s20, 3
    s_add_u32 s56, s56, s{S_W}
    s_add_u32 s56, s56, {4*hf}
    s_lshl_b32 s56, s56, 14
    s_add_u32 s56, s56, {WS['X3']}
    s_lshl_b32 s57, s{S_W}, 14
    s_add_u32 s57, s57, {hf * 65536}"""]
    for n in range(16):
        ops.append(f"""s_add_u32 m0, s57, {n * 1024}
        buffer_load_dwordx4 v31, {WSR}, s56 offen sc1 lds
        s_add_u32 s56, s56, 1024""")
    return ops
def member_flag_off(a, vdst, base_member_sgpr_expr, nmemb):
    a(f"""v_and_b32 v{vdst}, {nmemb-1}, v1
    v_add_u32 v{vdst}, {base_member_sgpr_expr}, v{vdst}""")
    if HALF:
        a(f"""v_lshrrev_b32 v29, 3, v{vdst}
        v_and_b32 v{vdst}, 7, v{vdst}
        v_lshlrev_b32 v{vdst}, 2, v{vdst}
        v_lshl_add_u32 v{vdst}, v29, 5, v{vdst}
        s_lshr_b32 s36, s20, 2
        s_lshl_b32 s36, s36, 6
        s_and_b32 s37, s20, 3
        s_add_u32 s36, s36, s37""")
    else:
        a(f"""v_lshlrev_b32 v{vdst}, 1, v{vdst}
        s_lshr_b32 s36, s20, 1
        s_lshl_b32 s36, s36, 5
        s_and_b32 s37, s20, 1
        s_add_u32 s36, s36, s37""")
    a(f"""v_add_u32 v{vdst}, s36, v{vdst}
    v_lshlrev_b32 v{vdst}, 6, v{vdst}
    v_add_u32 v{vdst}, {WS['SYNC'] + SYNC_FLAGS}, v{vdst}""")

def stats_write(a, hf, vm, vsd):
    a(f"""v_rcp_f32 v24, v{vsd}
    v_mul_f32 v{V_T+1}, v{vsd}, v{vsd}
    v_sub_f32 v{V_T+2}, 0, v{vm}
    v_mul_f32 v{V_T}, 0xbfb8aa3b, v24
    v_mov_b32 v{V_T+3}, 0
    s_lshl_b32 s36, s{S_W}, 8
    s_add_u32 s36, s36, {L_ST + hf * 1024}
    v_lshl_add_u32 v25, v2, 4, s36
    ds_write_b128 v25, {vr(V_T)}""")
def st3_stats(a, hf):
    a(f"""s_lshl_b32 s36, s20, 3
    s_add_u32 s36, s36, s{S_W}
    s_add_u32 s36, s36, {4*hf}
    s_lshl_b32 s36, s36, 10
    s_add_u32 s36, s36, {WS['SYNC'] + SYNC_ST3}
    v_lshrrev_b32 v124, 4, v1
    v_lshlrev_b32 v124, 8, v124
    v_and_b32 v125, 15, v1
    v_lshl_add_u32 v124, v125, 3, v124
    buffer_load_dwordx2 v[120:121], v124, {WSR}, s36 offen sc1
    buffer_load_dwordx2 v[122:123], v124, {WSR}, s36 offen offset:128 sc1""")
def st3_finish(a, hf):
    a(f"""v_add_f32 v126, v120, v122
    v_add_f32 v127, v121, v123""")
    sum_q(a, 126, 120); sum_q(a, 127, 121)
    ln_core(a, 126, 127)
    a(f"""v_rcp_f32 v120, v127
    v_mul_f32 v117, v127, v127
    v_sub_f32 v118, 0, v126
    v_mul_f32 v116, 0xbfb8aa3b, v120
    v_mov_b32 v119, 0
    s_lshl_b32 s36, s{S_W}, 8
    s_add_u32 s36, s36, {L_ST + hf * 1024}
    v_lshl_add_u32 v124, v125, 4, s36
    ds_write_b128 v124, v[116:119]""")

def g1_addr(a, layer, hbase):
    tr = layer == 1
    a(f"""v_and_b32 v2, 15, v1
    v_lshrrev_b32 v3, 4, v1""")
    for x in range(4):
        a(f"""s_add_u32 s36, s{S_W}, {x}
        s_and_b32 s36, s36, 3""")
        if tr:
            a(f"""v_bfe_u32 v4, v1, 2, 2
            v_lshl_add_u32 v5, v3, 4, v4
            v_lshlrev_b32 v5, 7, v5
            v_lshrrev_b32 v4, 1, v4
            v_and_b32 v6, 1, v3
            v_lshl_or_b32 v4, v6, 1, v4
            v_xor_b32 v4, s36, v4
            v_lshl_add_u32 v5, v4, 5, v5
            v_and_b32 v6, 3, v1
            v_lshl_add_u32 v{8+x}, v6, 3, v5""")
        else:
            a(f"""s_lshl_b32 s37, s36, 14
            v_add_u32 v{8+x}, s37, v31""")
        a(f"""s_lshl_b32 s37, s36, 8
        s_add_u32 s37, s37, {L_ST}
        v_lshl_add_u32 v{15+x}, v2, 4, s37""")
    for p in range(2):
        a(f"""v_lshrrev_b32 v4, 5, v1
        v_add_u32 v4, s{S_W}, v4
        v_add_u32 v4, {2*p}, v4
        v_and_b32 v4, 3, v4
        v_mul_u32_u24 v5, {HT}, v4
        v_bfe_u32 v6, v1, 4, 1
        v_lshl_add_u32 v5, v6, 7, v5
        v_lshl_add_u32 v{12+p}, v2, 3, v5
        v_lshlrev_b32 v4, 8, v4
        v_lshl_add_u32 v4, v2, 4, v4
        v_add_u32 v{19+p}, {L_ST}, v4""")
    a(f"""s_mul_i32 s36, s20, {8*HT}
    s_add_u32 s36, s36, {hbase}""")
    for t in range(3): a(f"s_add_u32 s{52+t}, s{44+t}, s36")

def g1_sub(a, layer, sb, hook=None, cs_from=16):
    tr = layer == 1
    def rd(n):
        kb, x = n >> 2, n & 3
        B = V_XB + 4 * x
        if tr:
            off = (kb >> 1) * 8192 + (kb & 1) * 1024
            return [f"ds_read_b64_tr_b16 v[{B}:{B+1}], v{8+x} offset:{off}", f"ds_read_b64_tr_b16 v[{B+2}:{B+3}], v{8+x} offset:{off+512}"]
        return [f"ds_read_b128 {vr(B)}, v{8+x} offset:{kb*1024}"]
    per = 2 if tr else 1
    ONE, SA, SG = V_T, V_T + 4, V_T + 8
    if tr:
        for k in range(4): a(f"v_mov_b32 v{ONE+k}, 0x3f803f80")
    for n in range(3):
        for op in rd(n): a(op)
    for n in range(64):
        kb, x = n >> 2, n & 3
        if x == 0 and hook: hook(kb)
        infl = min(2, 63 - n)
        a(f"s_waitcnt lgkmcnt({infl*per})")
        B = V_XB + 4 * x
        for t in range(3):
            c = V_ACC + (x * 3 + t) * 4
            a(f"v_mfma_f32_16x16x32_bf16 {vr(c)}, {w13(kb,t)}, {vr(B)}, {'0' if kb == 0 else vr(c)}")
            if t == 0 and n + 3 < 64:
                for op in rd(n + 3): a(op)
        if tr and x == 1 and kb >= cs_from:
            for t in range(3):
                c = V_CS + 4 * t
                a(f"v_mfma_f32_16x16x32_bf16 {vr(c)}, {w13(kb,t)}, {vr(ONE)}, {vr(c)}")
        if tr and x == 0:
            a(f"v_mfma_f32_16x16x32_bf16 {vr(SA)}, {vr(ONE)}, {vr(B)}, {'0' if kb == 0 else vr(SA)}")
            a(f"v_mfma_f32_16x16x32_bf16 {vr(SG)}, {vr(B)}, {vr(B)}, {'0' if kb == 0 else vr(SG)}")
    if tr:
        a(f"""v_and_b32 v4, 3, v2
        v_cmp_eq_u32 vcc, 1, v4
        v_cndmask_b32 v23, v{SG}, v{SG+1}, vcc
        v_cmp_eq_u32 vcc, 2, v4
        v_cndmask_b32 v23, v23, v{SG+2}, vcc
        v_cmp_eq_u32 vcc, 3, v4
        v_cndmask_b32 v23, v23, v{SG+3}, vcc
        v_mov_b32 v22, v{SA}""")
        ln_core(a, 22, 23)
        a(f"""v_lshrrev_b32 v4, 2, v2
        v_cmp_eq_u32 vcc, v4, v3
        s_and_saveexec_b64 s[38:39], vcc""")
        stats_write(a, sb, 22, 23)
        a("s_mov_b64 exec, s[38:39]\ns_waitcnt lgkmcnt(0)\ns_barrier")

def g1_epi(a, sb):
    so = sb * 1024
    for x in range(4): a(f"ds_read_b32 v{V_T+2*x}, v{15+x} offset:{8+so}")
    for p in range(2): a(f"ds_read_b64 v[{V_T+8+2*p}:{V_T+9+2*p}], v{19+p} offset:{so}")
    a("s_waitcnt lgkmcnt(0)")
    A = lambda x, t: V_ACC + (x * 3 + t) * 4
    for t in range(3):
        cs = V_CS + 4 * t
        for x in range(4):
            for h in range(2):
                r = A(x, t) + 2 * h
                a(f"v_pk_fma_f32 v[{r}:{r+1}], v[{cs+2*h}:{cs+2*h+1}], v[{V_T+2*x}:{V_T+2*x+1}], v[{r}:{r+1}] op_sel_hi:[1,0,1]")
    for t in range(3):
        for p in range(2):
            for r in range(4): a(f"v_permlane32_swap_b32 v{A(2*p,t)+r}, v{A(2*p+1,t)+r}")
    for p in range(2):
        c1 = V_T + 8 + 2 * p
        T = lambda t: V_XB + 4 * t
        for t in range(3):
            for h in range(2):
                a(f"v_pk_mul_f32 v[{T(t)+2*h}:{T(t)+2*h+1}], v[{A(2*p,t)+2*h}:{A(2*p,t)+2*h+1}], v[{c1}:{c1+1}] op_sel_hi:[1,0]")
        for t in range(3):
            for r in range(4): a(f"v_exp_f32 v{T(t)+r}, v{T(t)+r}")
        for t in range(3):
            for h in range(2):
                g, u = A(2*p, t) + 2 * h, A(2*p+1, t) + 2 * h
                a(f"v_pk_mul_f32 v[{g}:{g+1}], v[{g}:{g+1}], v[{u}:{u+1}]")
        for t in range(3):
            for h in range(2):
                a(f"v_pk_fma_f32 v[{T(t)+2*h}:{T(t)+2*h+1}], v[{T(t)+2*h}:{T(t)+2*h+1}], v[{c1}:{c1+1}], v[{c1}:{c1+1}] op_sel:[0,1,1] op_sel_hi:[1,1,1]")
        for t in range(3):
            for r in range(4): a(f"v_rcp_f32 v{T(t)+r}, v{T(t)+r}")
        for t in range(3):
            for h in range(2):
                g = A(2*p, t) + 2 * h
                a(f"v_pk_mul_f32 v[{g}:{g+1}], v[{g}:{g+1}], v[{T(t)+2*h}:{T(t)+2*h+1}]")
        for t in range(3):
            g = A(2*p, t); u = A(2*p+1, t)
            a(f"""v_cvt_pk_bf16_f32 v{u}, v{g}, v{g+1}
            v_cvt_pk_bf16_f32 v{u+1}, v{g+2}, v{g+3}""")
        for t in range(3):
            u = A(2*p+1, t)
            a(f"buffer_store_dwordx2 v[{u}:{u+1}], v{12+p}, {WSR}, s{52+t} offen {LS('h')}")
def g1_next(a):
    for x in range(4): a(f"v_add_u32 v{8+x}, 0x10000, v{8+x}")
    for p in range(2): a(f"v_add_u32 v{12+p}, {4*HT}, v{12+p}")


NEG = (22, 24)
def epi_ops(P):
    p = P & 1; so = (P >> 1) * 1024
    A = lambda x, t: V_ACC + (x * 3 + t) * 4
    T = lambda t: V_T + 12 + 4 * t
    c1, ir = 26, 27
    ops = [f"ds_read_b32 v{NEG[0]}, v{15+2*p} offset:{8+so}", f"ds_read_b32 v{NEG[1]}, v{15+2*p+1} offset:{8+so}", f"ds_read_b64 v[26:27], v{19+p} offset:{so}"]
    ops += ["@gap"] * 10
    for t in range(3):
        for xl in range(2):
            for r in range(4): ops.append(f"v_fma_f32 v{A(2*p+xl,t)+r}, v{V_CS+4*t+r}, v{NEG[xl]}, v{A(2*p+xl,t)+r}")
    for t in range(3):
        for r in range(4): ops.append(f"v_permlane32_swap_b32 v{A(2*p,t)+r}, v{A(2*p+1,t)+r}")
    for t in range(3):
        for r in range(4): ops.append(f"v_mul_f32 v{T(t)+r}, v{A(2*p,t)+r}, v{c1}")
    for t in range(3):
        for r in range(4): ops.append(f"v_exp_f32 v{T(t)+r}, v{T(t)+r}")
        for r in range(4): ops.append(f"v_mul_f32 v{A(2*p,t)+r}, v{A(2*p,t)+r}, v{A(2*p+1,t)+r}")
    for t in range(3):
        for r in range(4): ops.append(f"v_fma_f32 v{T(t)+r}, v{T(t)+r}, v{ir}, v{ir}")
    for t in range(3):
        for r in range(4): ops.append(f"v_rcp_f32 v{T(t)+r}, v{T(t)+r}")
    for t in range(3):
        for r in range(4): ops.append(f"v_mul_f32 v{A(2*p,t)+r}, v{A(2*p,t)+r}, v{T(t)+r}")
    for t in range(3):
        g, u = A(2*p, t), A(2*p+1, t)
        ops += [f"v_cvt_pk_bf16_f32 v{u}, v{g}, v{g+1}", f"v_cvt_pk_bf16_f32 v{u+1}, v{g+2}, v{g+3}"]
    for t in range(3):
        u = A(2*p+1, t)
        ops.append(f"buffer_store_dwordx2 v[{u}:{u+1}], v{12+p}, {WSR}, s{52+t} offen {LS('h')}")
    ops.append(f"v_add_u32 v{12+p}, {4*HT}, v{12+p}")
    return ops

def epi_pk(a, P):
    p = P & 1; so = (P >> 1) * 1024
    A = lambda x, t: V_ACC + (x * 3 + t) * 4
    T = (lambda t: V_XB + 4 * t) if P == 3 else (lambda t: V_T + 12 + 4 * t)
    c1 = 26
    a(f"ds_read_b32 v{NEG[0]}, v{15+2*p} offset:{8+so}\nds_read_b32 v{NEG[1]}, v{15+2*p+1} offset:{8+so}\nds_read_b64 v[26:27], v{19+p} offset:{so}\ns_waitcnt lgkmcnt(0)")
    for t in range(3):
        cs = V_CS + 4 * t
        for xl in range(2):
            for h in range(2):
                r = A(2*p+xl, t) + 2 * h
                a(f"v_pk_fma_f32 v[{r}:{r+1}], v[{cs+2*h}:{cs+2*h+1}], v[{NEG[xl]}:{NEG[xl]+1}], v[{r}:{r+1}] op_sel_hi:[1,0,1]")
    for t in range(3):
        for r in range(4): a(f"v_permlane32_swap_b32 v{A(2*p,t)+r}, v{A(2*p+1,t)+r}")
    for t in range(3):
        for h in range(2):
            a(f"v_pk_mul_f32 v[{T(t)+2*h}:{T(t)+2*h+1}], v[{A(2*p,t)+2*h}:{A(2*p,t)+2*h+1}], v[{c1}:{c1+1}] op_sel_hi:[1,0]")
    for t in range(3):
        for r in range(4): a(f"v_exp_f32 v{T(t)+r}, v{T(t)+r}")
    for t in range(3):
        for h in range(2):
            g, u = A(2*p, t) + 2 * h, A(2*p+1, t) + 2 * h
            a(f"v_pk_mul_f32 v[{g}:{g+1}], v[{g}:{g+1}], v[{u}:{u+1}]")
    for t in range(3):
        for h in range(2):
            a(f"v_pk_fma_f32 v[{T(t)+2*h}:{T(t)+2*h+1}], v[{T(t)+2*h}:{T(t)+2*h+1}], v[{c1}:{c1+1}], v[{c1}:{c1+1}] op_sel:[0,1,1] op_sel_hi:[1,1,1]")
    for t in range(3):
        for r in range(4): a(f"v_rcp_f32 v{T(t)+r}, v{T(t)+r}")
    for t in range(3):
        for h in range(2):
            g = A(2*p, t) + 2 * h
            a(f"v_pk_mul_f32 v[{g}:{g+1}], v[{g}:{g+1}], v[{T(t)+2*h}:{T(t)+2*h+1}]")
    for t in range(3):
        g = A(2*p, t); u = A(2*p+1, t)
        a(f"v_cvt_pk_bf16_f32 v{u}, v{g}, v{g+1}\nv_cvt_pk_bf16_f32 v{u+1}, v{g+2}, v{g+3}")
    a.tag = f"E{P}"
    for t in range(3):
        u = A(2*p+1, t)
        a(f"buffer_store_dwordx2 v[{u}:{u+1}], v{12+p}, {WSR}, s{52+t} offen {LS('h')}")
    a.tag = None
    if P < 2: a(f"v_add_u32 v{12+p}, {4*HT}, v{12+p}")

def l1_stats(a, hf):
    SA, SG = V_T + 4, V_T + 8
    a(f"""v_and_b32 v4, 3, v2
    v_cmp_eq_u32 vcc, 1, v4
    v_cndmask_b32 v29, v{SG}, v{SG+1}, vcc
    v_cmp_eq_u32 vcc, 2, v4
    v_cndmask_b32 v29, v29, v{SG+2}, vcc
    v_cmp_eq_u32 vcc, 3, v4
    v_cndmask_b32 v29, v29, v{SG+3}, vcc
    v_mov_b32 v28, v{SA}""")
    ln_core(a, 28, 29)
    a(f"""v_rcp_f32 v5, v29
    v_mul_f32 v{SA+1}, v29, v29
    v_sub_f32 v{SA+2}, 0, v28
    v_mul_f32 v{SA}, 0xbfb8aa3b, v5
    v_mov_b32 v{SA+3}, 0
    s_lshl_b32 s36, s{S_W}, 8
    s_add_u32 s36, s36, {L_ST + hf * 1024}
    v_lshl_add_u32 v6, v2, 4, s36
    v_lshrrev_b32 v4, 2, v2
    v_cmp_eq_u32 vcc, v4, v3
    s_and_saveexec_b64 s[38:39], vcc
    ds_write_b128 v6, {vr(SA)}
    s_mov_b64 exec, s[38:39]
    s_waitcnt lgkmcnt(0)
    s_barrier""")

def g1_stream(a, layer, hook=None, cs_from=16, st=None):
    tr = layer == 1
    per = 2 if tr else 1
    def rd(N):
        P, n = N >> 5, N & 31
        kb, xl = n >> 1, n & 1
        x = 2 * (P & 1) + xl
        B = V_XB + 4 * (N & 3)
        if tr:
            off = (kb >> 1) * 8192 + (kb & 1) * 1024
            return [f"ds_read_b64_tr_b16 v[{B}:{B+1}], v{8+x} offset:{off}", f"ds_read_b64_tr_b16 v[{B+2}:{B+3}], v{8+x} offset:{off+512}"]
        return [f"ds_read_b128 {vr(B)}, v{8+x} offset:{kb*1024}"]
    ONE, SA, SG = V_T, V_T + 4, V_T + 8
    if tr:
        for k in range(4): a(f"v_mov_b32 v{ONE+k}, 0x3f803f80")
    for N in range(3):
        for op in rd(N): a(op)
    restart = set()
    for P in range(4):
        fill = epi_ops(P - 1) if (P > 0 and not (tr and L1PK)) else []
        if P == 1: fill = [f"v_add_u32 v{8+x}, 0x10000, v{8+x}" for x in (0, 1)] + fill
        if P == 2: fill = [f"v_add_u32 v{8+x}, 0x10000, v{8+x}" for x in (2, 3)][:0] + fill
        cost = lambda op: 2.0 if op.startswith(("v_exp", "v_rcp", "v_permlane")) else 1.0
        rate = sum(cost(o) for o in fill) / 92.0
        budget = 0.0
        for n in range(32):
            N = P * 32 + n
            kb, xl = n >> 1, n & 1
            if xl == 0 and hook: hook(P, kb)
            if P == 2 and n == 4:
                for x in (2, 3): a(f"v_add_u32 v{8+x}, 0x10000, v{8+x}")
            infl = min(2, 127 - N)
            a(f"s_waitcnt lgkmcnt({infl*per})")
            B = V_XB + 4 * (N & 3)
            x = 2 * (P & 1) + xl
            mf = [f"v_mfma_f32_16x16x32_bf16 {vr(V_ACC + (x*3+t)*4)}, {w13(kb,t)}, {vr(B)}, {'0' if kb == 0 else vr(V_ACC + (x*3+t)*4)}" for t in range(3)]
            if tr and P == 0 and xl == 1 and kb >= cs_from:
                mf += [f"v_mfma_f32_16x16x32_bf16 {vr(V_CS+4*t)}, {w13(kb,t)}, {vr(ONE)}, {vr(V_CS+4*t)}" for t in range(3)]
            if tr and P in (0, 2) and xl == 0:
                mf.append(f"v_mfma_f32_16x16x32_bf16 {vr(SA)}, {vr(ONE)}, {vr(B)}, {'0' if kb == 0 else vr(SA)}")
                mf.append(f"v_mfma_f32_16x16x32_bf16 {vr(SG)}, {vr(B)}, {vr(B)}, {'0' if kb == 0 else vr(SG)}")
            for i, m in enumerate(mf):
                a(m)
                if i == 0 and N + 3 < 128:
                    for op in rd(N + 3): a(op)
                if i < 3:
                    budget += rate
                    while fill and budget >= cost(fill[0]) - 0.5:
                        op = fill.pop(0); budget -= cost(op)
                        if op.startswith("buffer_store"): a.tag = f"E{P-1}"
                        if op != "@gap": a(op)
                        a.tag = None
        for op in fill:
            if op.startswith("buffer_store"): a.tag = f"E{P-1}"
            if op != "@gap": a(op)
            a.tag = None
        if st is not None and FINE == 'P': fstamp(a, st + P)
        if tr and P in (0, 2):
            l1_stats(a, P >> 1)
        if tr and L1PK and P < 3:
            epi_pk(a, P)
    epi_pk(a, 3)

def emit_g2(a, layer, hbase, etagA, st):
    ACC = V_ACC
    acc = lambda dt, x: ACC + (x * 4 + dt) * 4
    for x in range(4):
        a(f"""s_add_u32 s36, s{S_W}, {x}
        s_and_b32 s36, s36, 3
        s_lshl_b32 s37, s20, 3
        s_add_u32 s36, s36, s37
        s_lshl_b32 s37, s22, 2
        s_add_u32 s36, s36, s37
        s_mul_i32 s36, s36, {HT}
        s_mul_i32 s37, s{S_W}, {11*1024}
        s_add_u32 s36, s36, s37
        s_add_u32 s{56+x}, s36, {hbase}
        s_cmp_eq_u32 s{S_W}, 3
        s_cselect_b32 s{60+x}, {INV}, s{56+x}""")
    a(f"""s_lshl_b32 s51, s{S_W}, 15
    v_lshrrev_b32 v2, 4, v1
    v_and_b32 v3, 15, v1
    v_lshlrev_b32 v8, 7, v2
    v_lshl_add_u32 v8, v3, 3, v8
    v_add_u32 v8, s51, v8
    s_add_u32 s50, s{S_GEN}, s22
    s_add_u32 s50, s50, {etagA}""")
    def su():
        member_flag_off(a, 9, "0", 16)
    wg_wait(a, su, 9, 1, None, V_HB, etag=50)
    stamp(a, st)
    AHEAD = 4
    def dma1(i, x):
        a(f"""s_add_u32 s36, s{(60 if i == 10 else 56)+x}, {i*1024}
        s_add_u32 m0, s51, {(i % 8)*4096 + x*1024}
        buffer_load_dwordx4 v31, {WSR}, s36 offen sc1 lds""")
    for i in range(AHEAD):
        for x in range(4): dma1(i, x)
    def rd(n):
        i, x = n >> 2, n & 3
        B = V_HB + 4 * x; off = (i % 8) * 4096 + x * 1024
        return [f"ds_read_b64 v[{B}:{B+1}], v8 offset:{off}", f"ds_read_b64 v[{B+2}:{B+3}], v8 offset:{off+512}"]
    issued = AHEAD * 4
    def vmwait(n): a(f"s_waitcnt vmcnt({issued - 1 - n})")
    vmwait(2)
    stamp(a, st + 1)
    for n in range(3):
        for op in rd(n): a(op)
    for n in range(44):
        i, x = n >> 2, n & 3
        infl = min(2, 43 - n)
        a(f"s_waitcnt lgkmcnt({infl*2})")
        B = V_HB + 4 * x
        for dt in range(4):
            c = acc(dt, x)
            a(f"v_mfma_f32_16x16x32_bf16 {vr(c)}, {w2(i,dt)}, {vr(B)}, {'0' if i == 0 else vr(c)}")
            if dt == 0 and n + 3 < 44:
                vmwait(n + 3)
                for op in rd(n + 3): a(op)
            if dt == 2 and issued < 44:
                dma1(issued >> 2, issued & 3); issued += 1
    stamp(a, st + 2)
    a(f"v_add_u32 v9, s51, v31")
    for x in range(1, 4):
        for dt in range(4):
            a(f"ds_write_b128 v9, {vr(acc(dt,x))} offset:{((x-1)*4+dt)*1024}")
    for x in range(1, 4):
        a(f"""s_sub_u32 s36, s{S_W}, {x}
        s_and_b32 s36, s36, 3
        s_lshl_b32 s36, s36, 15
        v_add_u32 v{9+x}, s36, v31""")
    a("s_waitcnt lgkmcnt(0)\ns_barrier")
    for x in range(1, 4):
        for dt in range(4):
            a(f"ds_read_b128 {vr(acc(dt,x))}, v{9+x} offset:{((x-1)*4+dt)*1024}")
    if layer == 1:
        a(f"""v_bfe_u32 v4, v1, 2, 2
        v_lshl_add_u32 v4, v2, 4, v4
        v_lshlrev_b32 v4, 7, v4
        v_and_b32 v5, 3, v1
        v_lshl_add_u32 v4, v5, 3, v4
        s_lshl_b32 s36, s{S_W}, 5
        s_add_u32 s36, s36, {L_TX}
        v_add_u32 v4, s36, v4""")
        P = V_HB; Yp = V_HB + 8
        for dt in range(4):
            a(f"ds_read_b64_tr_b16 v[{P+2*dt}:{P+2*dt+1}], v4 offset:{dt*512}")
        for dt in range(4):
            a(f"ds_read_b64_tr_b16 v[{Yp+2*dt}:{Yp+2*dt+1}], v4 offset:{8192+dt*512}")
        nl = 8
    else:
        P = V_X3; nl = 0
    for x in range(1, 4):
        a(f"s_waitcnt lgkmcnt({min(15, (3-x)*4 + nl)})")
        for dt in range(4):
            for h in range(2):
                c, o = acc(dt, 0) + 2 * h, acc(dt, x) + 2 * h
                a(f"v_pk_add_f32 v[{c}:{c+1}], v[{c}:{c+1}], v[{o}:{o+1}]")
    stamp(a, st + 3)
    O = ACC; X = ACC + 16; PK = ACC + 48
    a("s_waitcnt lgkmcnt(0)")
    for k in range(8):
        a(f"v_lshlrev_b32 v{X+2*k}, 16, v{P+k}\nv_and_b32 v{X+2*k+1}, 0xffff0000, v{P+k}")
    for k in range(8): a(f"v_cvt_pk_bf16_f32 v{PK+k}, v{O+2*k}, v{O+2*k+1}")
    for k in range(8):
        a(f"v_lshlrev_b32 v{O+2*k}, 16, v{PK+k}\nv_and_b32 v{O+2*k+1}, 0xffff0000, v{PK+k}")
    for k in range(8):
        a(f"v_pk_add_f32 v[{O+2*k}:{O+2*k+1}], v[{O+2*k}:{O+2*k+1}], v[{X+2*k}:{X+2*k+1}]")
    for k in range(8): a(f"v_cvt_pk_bf16_f32 v{PK+k}, v{O+2*k}, v{O+2*k+1}")
    if layer == 2:
        a(f"""s_load_dwordx2 s[32:33], s[0:1], {ARG['out']}
        s_lshl_b32 s36, s20, 7
        s_lshl_b32 s37, s22, 6
        s_add_u32 s36, s36, s37
        s_lshl_b32 s37, s{S_W}, 4
        s_add_u32 s36, s36, s37
        s_lshl_b32 s36, s36, 10
        s_lshl_b32 s37, s23, 7
        s_add_u32 s36, s36, s37
        v_lshlrev_b32 v4, 10, v3
        v_lshl_add_u32 v4, v2, 5, v4
        s_waitcnt lgkmcnt(0)
        s_mov_b32 s34, {S*D*2}
        s_mov_b32 s35, 0x20000
        buffer_store_dwordx4 {vr(PK)}, v4, s[32:35], s36 offen {OUTF}
        buffer_store_dwordx4 {vr(PK+4)}, v4, s[32:35], s36 offen offset:16 {OUTF}""")
        return
    a(f"v_mov_b32 v22, 0\nv_mov_b32 v23, 0\nv_mov_b32 v21, 0x3f803f80\nv_mov_b32 v26, 0\nv_mov_b32 v27, 0")
    for k in range(0, 8, 2):
        a(f"""v_dot2_f32_bf16 v22, v{PK+k}, v21, v22
        v_dot2_f32_bf16 v23, v{PK+k}, v{PK+k}, v23
        v_dot2_f32_bf16 v26, v{PK+k+1}, v21, v26
        v_dot2_f32_bf16 v27, v{PK+k+1}, v{PK+k+1}, v27""")
    a("v_add_f32 v22, v22, v26\nv_add_f32 v23, v23, v27")
    a(f"""v_mov_b32 v24, v22
    v_mov_b32 v25, v23
    v_permlane16_swap_b32 v22, v24
    v_permlane16_swap_b32 v23, v25
    v_add_f32 v22, v22, v24
    v_add_f32 v23, v23, v25
    v_mov_b32 v24, v22
    v_mov_b32 v25, v23
    v_permlane32_swap_b32 v22, v24
    v_permlane32_swap_b32 v23, v25
    v_add_f32 v22, v22, v24
    v_add_f32 v23, v23, v25""")
    L = a.newlabel("hop")
    a(f"""s_add_u32 s50, s{S_GEN}, 12
    v_mov_b32 v24, s50
    v_mov_b32 v25, 0
    s_lshl_b32 s36, s20, 1
    s_add_u32 s36, s36, s22
    s_lshl_b32 s36, s36, 13
    s_lshl_b32 s37, s{S_W}, 8
    s_add_u32 s36, s36, s37
    s_add_u32 s36, s36, {WS['SYNC'] + SYNC_ST2}
    s_lshl_b32 s37, s23, 10
    s_add_u32 s37, s37, s36
    v_lshlrev_b32 v4, 4, v3
    s_mov_b64 exec, 0xffff""")
    dstore(a, f"buffer_store_dwordx4 v[22:25], v4, {WSR}, s37 offen {{F}}")
    a(f"""s_mov_b64 exec, -1
    v_lshl_add_u32 v5, v2, 11, v4""")
    for k in range(8):
        a(f"v_lshlrev_b32 v{X+2*k}, 16, v{PK+k}\nv_and_b32 v{X+2*k+1}, 0xffff0000, v{PK+k}")
    a(f"""s_mov_b32 s38, 0
    {L}_p:
    buffer_load_dwordx4 v[{O}:{O+3}], v5, {WSR}, s36 offen sc1
    buffer_load_dwordx4 v[{O+4}:{O+7}], v5, {WSR}, s36 offen offset:1024 sc1
    s_add_u32 s38, s38, 1
    s_waitcnt vmcnt(0)
    v_cmp_eq_u32 vcc, s50, v{O+2}
    v_cmp_eq_u32 s[40:41], s50, v{O+6}
    s_and_b64 vcc, vcc, s[40:41]
    s_cmp_gt_u32 s38, 200000
    s_cbranch_scc1 {L}_d
    s_cmp_eq_u64 vcc, -1
    s_cbranch_scc0 {L}_p
    {L}_d:
    v_add_f32 v22, v{O}, v{O+4}
    v_add_f32 v23, v{O+1}, v{O+5}
    v_mov_b32 v24, v22
    v_mov_b32 v25, v23
    v_permlane16_swap_b32 v22, v24
    v_permlane16_swap_b32 v23, v25
    v_add_f32 v22, v22, v24
    v_add_f32 v23, v23, v25
    v_mov_b32 v24, v22
    v_mov_b32 v25, v23
    v_permlane32_swap_b32 v22, v24
    v_permlane32_swap_b32 v23, v25
    v_add_f32 v22, v22, v24
    v_add_f32 v23, v23, v25""")
    ln_core(a, 22, 23)
    a(f"""v_rcp_f32 v24, v23
    v_sub_f32 v22, 0, v22
    v_mul_f32 v26, v22, v24""")
    Yf = ACC
    for k in range(8):
        a(f"v_lshlrev_b32 v{Yf+2*k}, 16, v{Yp+k}\nv_and_b32 v{Yf+2*k+1}, 0xffff0000, v{Yp+k}")
    N = ACC + 32
    for k in range(8):
        a(f"v_pk_fma_f32 v[{N+2*k}:{N+2*k+1}], v[{X+2*k}:{X+2*k+1}], v[24:25], v[26:27] op_sel_hi:[1,0,0]")
    for k in range(8):
        a(f"v_pk_fma_f32 v[{N+2*k}:{N+2*k+1}], v[{N+2*k}:{N+2*k+1}], v[{Yf+2*k}:{Yf+2*k+1}], v[{X+2*k}:{X+2*k+1}]")
    for k in range(8):
        a(f"v_cvt_pk_bf16_f32 v{V_X3+k}, v{N+2*k}, v{N+2*k+1}")
    a(f"""s_lshl_b32 s36, s20, 3
    s_lshl_b32 s37, s22, 2
    s_add_u32 s36, s36, s37
    s_add_u32 s36, s36, s{S_W}
    s_lshl_b32 s38, s36, 10
    s_lshl_b32 s36, s36, 14
    s_lshl_b32 s37, s23, 11
    s_add_u32 s36, s36, s37
    s_add_u32 s36, s36, {WS['X3']}""")
    dstore(a, f"""buffer_store_dwordx4 {vr(V_X3)}, v31, {WSR}, s36 offen {{F}}
    buffer_store_dwordx4 {vr(V_X3+4)}, v31, {WSR}, s36 offen offset:1024 {{F}}""", "x3")
    a(f"v_mov_b32 v22, 0\nv_mov_b32 v23, 0\nv_mov_b32 v26, 0\nv_mov_b32 v27, 0")
    for k in range(0, 8, 2):
        a(f"""v_dot2_f32_bf16 v22, v{V_X3+k}, v21, v22
        v_dot2_f32_bf16 v23, v{V_X3+k}, v{V_X3+k}, v23
        v_dot2_f32_bf16 v26, v{V_X3+k+1}, v21, v26
        v_dot2_f32_bf16 v27, v{V_X3+k+1}, v{V_X3+k+1}, v27""")
    a(f"""v_add_f32 v22, v22, v26
    v_add_f32 v23, v23, v27
    v_mov_b32 v24, v22
    v_mov_b32 v25, v23
    v_permlane16_swap_b32 v22, v24
    v_permlane16_swap_b32 v23, v25
    v_add_f32 v22, v22, v24
    v_add_f32 v23, v23, v25
    v_mov_b32 v24, v22
    v_mov_b32 v25, v23
    v_permlane32_swap_b32 v22, v24
    v_permlane32_swap_b32 v23, v25
    v_add_f32 v22, v22, v24
    v_add_f32 v23, v23, v25
    s_lshl_b32 s37, s23, 7
    s_add_u32 s38, s38, s37
    s_add_u32 s38, s38, {WS['SYNC'] + SYNC_ST3}
    v_lshlrev_b32 v4, 3, v3
    s_mov_b64 exec, 0xffff""")
    dstore(a, f"buffer_store_dwordx2 v[22:23], v4, {WSR}, s38 offen {{F}}")
    a("s_mov_b64 exec, -1")

NW13L = 12
NW13A = 12
NW13B = 30
PACE = 5
CHK1 = 2
FINE = None
OUTF = ''
FRONT4 = False
UPFRONT = False
L1PK = False
WFIRST = False
PROBE = None
CODEPF = True
DBG = 0
def build():
    a = Asm()
    global stamp
    if FINE:
        real = common.stamp
        def stamp_(a_, i):
            if i == 0: real(a_, 0)
        stamp = stamp_
        def fst(a_, i):
            real(a_, i)
            if FINE == 'P':
                a_(f"s_memtime s[70:71]\ns_waitcnt lgkmcnt(0)\ns_mov_b32 s{72+14+i}, s70")
        globals()['fstamp'] = fst
    else:
        globals()['fstamp'] = lambda a_, i: None
    kbegin(a, KN)
    emit_prologue(a)
    emit_prep_loads(a)
    if False:
        pass
    a("s_waitcnt lgkmcnt(0)")
    a(f"""s_getreg_b32 s36, hwreg(HW_REG_XCC_ID, 0, 4)
    s_add_u32 s{S_IDW}, s{S_GEN}, 13
    s_lshl_b32 s{S_IDW}, s{S_IDW}, 4
    s_or_b32 s{S_IDW}, s{S_IDW}, s36
    s_mov_b32 s{S_LOC}, 0
    s_cmp_lg_u32 s{S_W}, 0
    s_cbranch_scc1 L_noid
    v_mov_b32 v174, s{S_IDW}
    v_mov_b32 v175, s{S_FLAG}
    s_mov_b64 exec, 1
    buffer_store_dword v174, v175, {WSR}, 0 offen offset:4 sc1
    s_mov_b64 exec, -1
    L_noid:""")
    w13ops = [f"s_add_u32 s36, s{40+t}, {kb*1024}\nbuffer_load_dwordx4 {w13(kb,t)}, v31, {WSR}, s36 offen sc1" for kb in range(16) for t in range(3)]
    if FRONT4:
        emit_front4(a, None)
        signal(a, 3)
        stamp(a, 9)
        a("v_and_b32 v1, 63, v0")
        a(f"v_lshlrev_b32 v22, 6, v1\nv_add_u32 v22, {WS['SYNC'] + SYNC_FLAGS}, v22")
        for i in range(4):
            if i == 0: a(f"buffer_load_dword v24, v22, {WSR}, 0 offen offset:8 sc1")
            else: a(f"s_movk_i32 s39, {4096*i}\nbuffer_load_dword v{24+i}, v22, {WSR}, s39 offen offset:8 sc1")
        a("s_waitcnt vmcnt(0)")
        flagcheck(a, 1, (24, 25, 26, 27), 22, "L_w_ok", tmp=(29, 30), off=8)
        for op in w13ops[:NW13B]: a(op)
    else:
        emit_prep_compute(a)
        emit_ffn_roles(a)
        hooks = dict(conv_loop_extra=w13ops[:NW13L], n_conv_total_w=NW13L, conv_epi_extra=w13ops[NW13L:NW13A])
        emit_conv(a, hooks)
        signal(a, 3)
        stamp(a, 9)
        a("v_and_b32 v1, 63, v0")
        for op in w13ops[NW13A:NW13B]: a(op)
    if not FRONT4: emit_cs(a, 0, NW13A // 3)
    def su3():
        a(f"v_lshlrev_b32 v9, 6, v1\nv_add_u32 v9, {WS['SYNC'] + SYNC_FLAGS}, v9")
    wg_wait(a, su3, 9, 4, 3, V_T, wave=3)
    stamp(a, 10)
    x1_dma_setup(a)
    x1ops = x1_dma_ops(0)
    for op in x1ops: a(op)
    nC = 48 - NW13B
    a("s_waitcnt vmcnt(16)")
    emit_cs(a, 0 if FRONT4 else NW13A // 3, NW13B // 3)
    g1_addr(a, 1, WS['H1'])
    a(f"s_waitcnt vmcnt(8)\ns_barrier")
    stamp(a, 11)
    w13c = list(w13ops[NW13B:])
    kbC = NW13B // 3
    x1h1 = x1_dma_ops(1)
    w2q = list(range(44))
    cnt = dict(after=0, h1=0)
    def hook1(P, kb):
        if P == 0:
            if nC:
                if kb == 6: a(f"s_waitcnt vmcnt({nC - len(w13c)})\ns_barrier")
                if kb >= kbC:
                    a(f"s_waitcnt vmcnt({3 * (15 - kb) + cnt['h1']})")
                for _ in range(3):
                    if w13c: a(w13c.pop(0))
                if kb == 8: a(x1h1.pop(0))
                if kb >= 8:
                    a(x1h1.pop(0)); a(x1h1.pop(0)); cnt['h1'] += 2
            else:
                if kb == 6: a(f"s_waitcnt vmcnt({cnt['h1']})\ns_barrier")
                if kb == 0: a(x1h1.pop(0))
                if kb < 8:
                    a(x1h1.pop(0)); a(x1h1.pop(0)); cnt['h1'] += 2
        if P == 1 and kb == 0:
            tiles_dma(a)
            a("v_and_b32 v2, 15, v1\nv_lshrrev_b32 v3, 4, v1")
        if P == 1 and kb == 13:
            a(f"s_waitcnt vmcnt({cnt['after']})\ns_barrier")
        if (P, kb) == ((2, 8) if L1PK else (3, 6)):
            signal(a, 4, tv=(30, 29), local=True, vm='E1')
        if P >= 1 and w2q and not (P == 1 and kb < 2):
            n = 1 if P < 3 else 2
            for _ in range(n):
                if w2q:
                    i = w2q.pop(0); w2_loads(a, i, i + 1)
                    cnt['after'] += 1
                    if P == 3: cnt['sinceE1'] = cnt.get('sinceE1', 0) + 1
        if P == 1 and kb == 0: cnt['after'] = 0
    cnt['sinceE1'] = 0
    if FINE == 'P': fstamp(a, 1)
    g1_stream(a, 1, hook1, cs_from=kbC, st=2)
    if FINE == 'P': fstamp(a, 6)
    assert not w2q, w2q
    signal(a, 5, local=True)
    stamp(a, 14)
    emit_g2(a, 1, WS['H1'], 4, 15)
    signal(a, 6, local=True)
    stamp(a, 19)
    def su6a(): member_flag_off(a, 9, "0", 8)
    wg_wait(a, su6a, 9, 1, 6, V_T)
    stamp(a, 20)
    st3_stats(a, 0)
    for op in x3_dma_ops(0): a(op)
    g1_addr(a, 2, WS['H2'])
    a("s_waitcnt vmcnt(16)")
    st3_finish(a, 0)
    a("s_waitcnt vmcnt(8) lgkmcnt(0)\ns_barrier")
    stamp(a, 21)
    x3h1 = x3_dma_ops(1)
    def hook2(P, kb):
        if P == 0:
            if kb == 0:
                member_flag_off(a, 14, "8", 8)
                a(f"buffer_load_dword v30, v14, {WSR}, 0 offen sc1")
            if kb == 6: a("s_waitcnt vmcnt(1)\ns_barrier")
            if kb == 10:
                L = a.newlabel("x3b")
                a(f"""s_waitcnt vmcnt(0)
                s_add_u32 s37, s{S_GEN}, 6
                v_subrev_u32 v30, s37, v30
                v_cmp_gt_u32 vcc, 16, v30
                s_cmp_eq_u64 vcc, -1
                s_cbranch_scc1 {L}""")
                wait_flags(a, 14, 1, 6, 30)
                a.label(L)
                st3_stats(a, 1)
                a(x3h1.pop(0))
            if kb >= 10:
                for _ in range(2): a(x3h1.pop(0))
        if P == 1:
            if kb < 2:
                for _ in range(2): a(x3h1.pop(0))
            if kb == 6:
                a("s_waitcnt vmcnt(16)")
                st3_finish(a, 1)
            if kb == 13: a("s_waitcnt vmcnt(3) lgkmcnt(3)\ns_barrier" if False else "s_waitcnt vmcnt(0)\ns_barrier")
        if P == 3 and kb == 6:
            signal(a, 7, tv=(30, 29), local=True)
    if FINE == 'P': fstamp(a, 7)
    g1_stream(a, 2, hook2, st=8)
    if FINE == 'P': fstamp(a, 12)
    signal(a, 8, local=True)
    stamp(a, 23)
    emit_g2(a, 2, WS['H2'], 7, 24)
    a(f"""s_or_b32 s36, s2, s{S_W}
    s_cmp_lg_u32 s36, 0
    s_cbranch_scc1 L_nogen
    s_add_u32 s36, s{S_GEN}, 16
    v_mov_b32 v2, s36
    v_mov_b32 v3, {WS['SYNC'] + SYNC_GEN}
    s_mov_b64 exec, 1
    buffer_store_dword v2, v3, {WSR}, 0 offen
    s_mov_b64 exec, -1
    L_nogen:""")
    if PROBE is not None:
        pa, pb, K = PROBE
        a(f"""s_waitcnt vmcnt(0) lgkmcnt(0)
        s_memrealtime s[70:71]
        s_waitcnt lgkmcnt(0)
        s_mov_b32 s100, s70
        s_or_b32 s36, s2, s{S_W}
        s_cmp_lg_u32 s36, 0
        s_cbranch_scc1 L_end
        s_sub_u32 s36, s{72+pb if pb < 28 else 100}, s{72+pa}
        s_mul_i32 s36, s36, {K}
        s_add_u32 s36, s36, s100
        L_spin:
        s_memrealtime s[70:71]
        s_waitcnt lgkmcnt(0)
        s_sub_u32 s37, s70, s36
        s_cmp_lt_i32 s37, 0
        s_cbranch_scc1 L_spin
        s_branch L_end""")
    if common.STAMPS:
        a("s_waitcnt vmcnt(0)"); stamp(a, 28)
    if DBG:
        sel = [1, 2, 3, 4, 5, 6, 7, 9, 10, 11, 14, 15, 19, 21, 23, 28]
        a(f"""s_cmp_lg_u32 s2, {DBG - 1}
        s_cbranch_scc1 L_end
        s_cmp_lg_u32 s{S_W}, 0
        s_cbranch_scc1 L_end
        s_load_dwordx2 s[68:69], s[0:1], {ARG['dbg']}
        s_waitcnt lgkmcnt(0)
        s_mov_b64 exec, 1""")
        for i, k in enumerate(sel):
            a(f"s_sub_u32 s70, s{72+k}, s72\nv_mov_b32 v2, s70\nv_mov_b32 v3, {4*i}\nglobal_store_dword v3, v2, s[68:69]")
    else:
        stamp_flush(a, 0, 29)
    a.label("L_end")
    a("s_endpgm")
    a.label("L_codeend")
    a("s_endpgm")
    txt = header([(None, 256, 256, LDS_TOTAL)]) + a.text() + kernel_desc(KN, 512, 102, 256)
    return txt, a
if __name__ == "__main__":
    common.STAMPS = 's' in sys.argv[2:]
    LOCAL = any(x.startswith('l') for x in sys.argv[2:])
    for x in sys.argv[2:]:
        if x.startswith('l'): LOCSET.update(['flag'] + x[1:].split('+'))
    HALF = 'h' in sys.argv[2:]
    UPFRONT = 1 if 'up' in sys.argv[2:] else (2 if 'up2' in sys.argv[2:] else 0)
    FRONT4 = 'f4' in sys.argv[2:]
    if FRONT4: UPFRONT = 2
    SPREAD = 'nosp' not in sys.argv[2:]
    L1PK = 'pk' in sys.argv[2:]
    for x in sys.argv[2:]:
        if x.startswith('w:'): NW13L, NW13A, NW13B = (int(y) for y in x[2:].split(','))
    for x in sys.argv[2:]:
        if x.startswith('p:'): PROBE = tuple(int(y) for y in x[2:].split(','))
    CODEPF = 'nopf' not in sys.argv[2:]
    OUTF = 'sc1' if 'osc1' in sys.argv[2:] else ('nt' if 'ont' in sys.argv[2:] else '')
    if 'nox3' in sys.argv[2:]: DYNSET.discard('x3')
    DYN = 'nodyn' not in sys.argv[2:]
    DBG = max([int(x[1:]) + 1 for x in sys.argv[2:] if x[0] == 'd' and x[1:].isdigit()] + [0])
    FINE = 'A' if 'fa' in sys.argv[2:] else ('B' if 'fb' in sys.argv[2:] else ('P' if 'fp' in sys.argv[2:] else ('F' if 'ff' in sys.argv[2:] else None)))
    txt, a = build()
    open(sys.argv[1], "w").write(txt)
    print("nops:", a.nnop, "bytes", len(txt))
```

```python
import sys
from asmgen import *
from common import *
import common

KN = NAME + "_kernel"
WSR = "s[28:31]"
INV = "0x80000000"
S_GEN, S_W, S_FLAG = 3, 18, 64
LOCAL = False
HALF = False
S_LOC, S_IDW = 17, 16
DYN = True
DYNSET = {"flag", "x3"}
def LS(kind="flag"): return "" if (LOCAL and kind in LOCSET) else "sc1"
LOCSET = set()
def dstore(a, text, kind="flag"):
    if not DYN or kind not in DYNSET or LOCAL:
        a(text.replace("{F}", LS(kind))); return
    L = a.newlabel("ds")
    a(f"s_cmp_eq_u32 s{S_LOC}, 1\ns_cbranch_scc1 {L}_l")
    a(text.replace("{F}", "sc1"))
    a(f"s_branch {L}_e\n{L}_l:")
    a.nolog += 1
    a(text.replace("{F}", ""))
    a.nolog -= 1
    a.label(f"{L}_e")
def vr(b, n=4): return f"v[{b}:{b+n-1}]"

SPREAD = True
def PGs(d):
    return f"s_lshr_b32 {d}, s2, 3\n    s_and_b32 {d}, {d}, 7" if SPREAD else f"s_mov_b32 {d}, s60"
def PTs(d, t):
    return f"s_lshr_b32 {d}, s2, 6\n    s_lshl_b32 {d}, {d}, 3\n    s_and_b32 {t}, s2, 7\n    s_add_u32 {d}, {d}, {t}" if SPREAD else f"s_mov_b32 {d}, s61"
def rnd_bf16(a, v):
    a(f"v_cvt_pk_bf16_f32 v{v}, v{v}, v{v}\nv_and_b32 v{v}, 0xffff0000, v{v}")
def sum_q(a, v, t):
    a(f"""v_mov_b32 v{t}, v{v}
    v_permlane16_swap_b32 v{v}, v{t}
    v_add_f32 v{v}, v{v}, v{t}
    v_mov_b32 v{t}, v{v}
    v_permlane32_swap_b32 v{v}, v{t}
    v_add_f32 v{v}, v{v}, v{t}""")
def allsum64(a, v, t):
    for r in (8, 4, 2, 1):
        a(f"v_add_f32_dpp v{v}, v{v}, v{v} row_ror:{r} row_mask:0xf bank_mask:0xf")
    sum_q(a, v, t)
def ln_core(a, vsum, vsq):
    a(f"""v_mul_f32 v{vsum}, 0x3b000000, v{vsum}
    v_mul_f32 v{vsq}, 0x3b000000, v{vsq}
    v_fma_f32 v{vsq}, -v{vsum}, v{vsum}, v{vsq}
    v_max_f32 v{vsq}, 0, v{vsq}""")
    rnd_bf16(a, vsq)
    a(f"v_add_f32 v{vsq}, 0x3727c5ac, v{vsq}")
    rnd_bf16(a, vsq)
    a(f"v_sqrt_f32 v{vsq}, v{vsq}")
    rnd_bf16(a, vsq)
    rnd_bf16(a, vsum)
def signal(a, e, tv=(2, 3), barrier=True, local=False, vm=0):
    L = a.newlabel("sg")
    if isinstance(vm, str): a.vmneed(vm)
    else: a(f"s_waitcnt vmcnt({vm})")
    if barrier: a("s_barrier")
    a.nolog += 1
    a(f"""s_cmp_lg_u32 s{S_W}, 0
    s_cbranch_scc1 {L}
    s_add_u32 s36, s{S_GEN}, {e}
    v_mov_b32 v{tv[0]}, s36
    v_mov_b32 v{tv[1]}, s{S_FLAG}
    s_mov_b64 exec, 1""")
    if local: dstore(a, f"buffer_store_dword v{tv[0]}, v{tv[1]}, {WSR}, 0 offen {{F}}")
    else: a(f"buffer_store_dword v{tv[0]}, v{tv[1]}, {WSR}, 0 offen sc1")
    a(f"""s_mov_b64 exec, -1
    {L}:""")
    a.nolog -= 1
def wait_flags(a, voff, nld, e, T, etag=None):
    L = a.newlabel("wf")
    if etag is None:
        a(f"s_add_u32 s37, s{S_GEN}, {e}"); etag = 37
    a(f"s_mov_b32 s38, 0")
    a.nolog += 1
    a.label(L)
    for i in range(nld):
        if i == 0: a(f"buffer_load_dword v{T}, v{voff}, {WSR}, 0 offen sc1")
        else: a(f"s_movk_i32 s39, {4096*i}\nbuffer_load_dword v{T+i}, v{voff}, {WSR}, s39 offen sc1")
    a("s_add_u32 s38, s38, 1\ns_waitcnt vmcnt(0)")
    for k in range(nld):
        a(f"v_subrev_u32 v{T+k}, s{etag}, v{T+k}")
    for k in range(1, nld): a(f"v_max_u32 v{T}, v{T}, v{T+k}")
    a(f"""v_cmp_gt_u32 vcc, 16, v{T}
    s_cmp_gt_u32 s38, 200000
    s_cbranch_scc1 {L}_x
    s_cmp_eq_u64 vcc, -1
    s_cbranch_scc1 {L}_x""")
    if SLEEP and nld > 1: a(f"s_sleep {SLEEP}")
    a(f"""s_branch {L}
    {L}_x:""")
    a.nolog -= 1
def flagcheck(a, e, regs, voff, label, tmp, off=0):
    a(f"""s_add_u32 s37, s{S_GEN}, {e}
    v_subrev_u32 v{tmp[0]}, s37, v{regs[0]}
    v_subrev_u32 v{tmp[1]}, s37, v{regs[1]}
    v_max_u32 v{tmp[0]}, v{tmp[0]}, v{tmp[1]}
    v_subrev_u32 v{tmp[1]}, s37, v{regs[2]}
    v_max_u32 v{tmp[0]}, v{tmp[0]}, v{tmp[1]}
    v_subrev_u32 v{tmp[1]}, s37, v{regs[3]}
    v_max_u32 v{tmp[0]}, v{tmp[0]}, v{tmp[1]}
    v_cmp_gt_u32 vcc, 16, v{tmp[0]}
    s_cmp_eq_u64 vcc, -1
    s_cbranch_scc1 {label}
    s_mov_b32 s38, 0
    {label}_p:""")
    a.nolog += 1
    for i in range(4):
        if i == 0: a(f"buffer_load_dword v{regs[0]}, v{voff}, {WSR}, 0 offen offset:{off} sc1")
        else: a(f"s_movk_i32 s39, {4096*i}\nbuffer_load_dword v{regs[i]}, v{voff}, {WSR}, s39 offen offset:{off} sc1")
    a(f"""s_add_u32 s38, s38, 1
    s_waitcnt vmcnt(0)
    v_subrev_u32 v{tmp[0]}, s37, v{regs[0]}
    v_subrev_u32 v{tmp[1]}, s37, v{regs[1]}
    v_max_u32 v{tmp[0]}, v{tmp[0]}, v{tmp[1]}
    v_subrev_u32 v{tmp[1]}, s37, v{regs[2]}
    v_max_u32 v{tmp[0]}, v{tmp[0]}, v{tmp[1]}
    v_subrev_u32 v{tmp[1]}, s37, v{regs[3]}
    v_max_u32 v{tmp[0]}, v{tmp[0]}, v{tmp[1]}
    v_cmp_gt_u32 vcc, 16, v{tmp[0]}
    s_cmp_gt_u32 s38, 200000
    s_cbranch_scc1 {label}
    s_cmp_eq_u64 vcc, -1
    s_cbranch_scc0 {label}_p
    {label}:""")
    a.nolog -= 1
def wg_wait(a, setup, voff, nld, e, T, etag=None, wave=0):
    L = a.newlabel("ww")
    a(f"s_cmp_lg_u32 s{S_W}, {wave}\ns_cbranch_scc1 {L}")
    setup()
    wait_flags(a, voff, nld, e, T, etag)
    a.label(L)
    a("s_barrier")

HCS = 4160; XRO = 4 * HCS; CB = XRO + 4608; EXO = 49152
PL = 65536
PW = PL + 16384
W3OFF = 6144 + 32
L_TX = 131072; L_TY = L_TX + 8192; L_ST = L_TY + 8192
LDS_TOTAL = L_ST + 2048

def emit_prologue(a):
    a(f"""s_cmp_ge_u32 s2, 256
    s_cbranch_scc1 L_end""")
    emit_codepf(a)
    a(f"""s_load_dwordx4 s[4:7], s[0:1], {ARG['q']}
    s_load_dwordx4 s[8:11], s[0:1], {ARG['v']}
    s_load_dwordx4 s[12:15], s[0:1], {ARG['h']}
    s_load_dwordx2 s[16:17], s[0:1], {ARG['ws']}
    s_load_dwordx4 s[52:55], s[0:1], {ARG['w1']}
    s_load_dwordx2 s[56:57], s[0:1], {ARG['w2']}
    v_lshrrev_b32 v3, 6, v0
    v_and_b32 v1, 7, v0
    v_readfirstlane_b32 s{S_W}, v3
    s_and_b32 s60, s2, 7
    s_lshr_b32 s61, s2, 3
    v_lshrrev_b32 v2, 3, v0
    {PGs('s36')}
    s_lshl_b32 s36, s36, 7
    {PTs('s37', 's38')}
    s_lshl_b32 s37, s37, 16
    s_add_u32 s36, s36, s37
    v_lshlrev_b32 v4, 4, v1
    v_lshlrev_b32 v5, 11, v2
    v_add3_u32 v4, v4, v5, s36
    s_lshl_b32 s{S_FLAG}, s60, 5
    s_add_u32 s{S_FLAG}, s{S_FLAG}, s61
    s_mov_b32 s19, s{S_FLAG}
    s_lshl_b32 s{S_FLAG}, s{S_FLAG}, 6
    s_add_u32 s{S_FLAG}, s{S_FLAG}, {WS['SYNC'] + SYNC_FLAGS}
    s_waitcnt lgkmcnt(0)""")
    srd(a, 20, 4, S * D * 2)
    srd(a, 24, 6, S * D * 2)
    srd(a, 32, 8, S * D * 2)
    srd(a, 40, 10, D * 8)
    srd(a, 28, 16, WS['END'])
    a(f"""s_add_u32 s36, s16, {WS['SYNC'] + SYNC_GEN}
    s_addc_u32 s37, s17, 0
    s_load_dword s{S_GEN}, s[36:37], 0""")
    stamp(a, 0)

def emit_prep_loads(a):
    a(f"""v_and_b32 v9, 63, v0
    s_lshr_b32 s66, s{S_W}, 1
    s_and_b32 s67, s{S_W}, 1""")
    if WFIRST: emit_prep_loadsW(a)
    a(f"""{PGs('s36')}
    s_lshl_b32 s36, s36, 9
    v_lshlrev_b32 v8, 6, v1
    v_add_u32 v8, s36, v8
    buffer_load_dwordx4 v[44:47], v8, s[40:43], 0 offen
    buffer_load_dwordx4 v[48:51], v8, s[40:43], 0 offen offset:16
    buffer_load_dwordx4 v[52:55], v8, s[40:43], 0 offen offset:32
    buffer_load_dwordx4 v[56:59], v8, s[40:43], 0 offen offset:48
    v_subrev_u32 v5, 3072, v4
    v_subrev_u32 v6, 2048, v4
    v_subrev_u32 v7, 1024, v4
    buffer_load_dwordx4 v[16:19], v5, s[24:27], 0 offen
    buffer_load_dwordx4 v[20:23], v6, s[24:27], 0 offen
    buffer_load_dwordx4 v[24:27], v7, s[24:27], 0 offen
    buffer_load_dwordx4 v[28:31], v4, s[24:27], 0 offen
    buffer_load_dwordx4 v[32:35], v4, s[24:27], 0 offen offset:1024
    buffer_load_dwordx4 v[36:39], v4, s[32:35], 0 offen
    buffer_load_dwordx4 v[40:43], v4, s[32:35], 0 offen offset:1024""")
    if UPFRONT:
        emit_prep_loads2(a)
        emit_prep_loadsQ(a)
        emit_statrows(a)
        if UPFRONT == 1: emit_prep_loadsW(a)

def emit_statrows(a):
    a(f"""v_lshlrev_b32 v10, 4, v9
    s_lshl_b32 s36, s2, 13
    s_lshl_b32 s37, s{S_W}, 11
    s_add_u32 s36, s36, s37
    v_add_u32 v10, s36, v10
    buffer_load_dwordx4 v[68:71], v10, s[20:23], 0 offen
    buffer_load_dwordx4 v[72:75], v10, s[20:23], 0 offen offset:1024""")

def emit_prep_loadsW(a):
    a(f"""s_cmp_eq_u32 s66, 0
    s_cselect_b32 s52, s52, s54
    s_cselect_b32 s53, s53, s55
    s_mov_b32 s54, {D*F*2}
    s_mov_b32 s55, 0x20000
    s_mov_b32 s58, {D*F*2}
    s_mov_b32 s59, 0x20000
    s_mul_i32 s62, s60, {64*2752}
    s_mul_i32 s63, s61, 96
    s_add_u32 s62, s62, s63
    s_mul_i32 s63, s67, 192
    v_add_u32 v176, s63, v9
    s_mul_i32 s36, s66, {W3OFF}
    s_lshl_b32 s63, s63, 4
    s_add_u32 s36, s36, s63
    s_add_u32 s36, s36, {PW}""")
    for i in range(3):
        a(f"""v_add_u32 v177, {64*i}, v176
        v_mul_u32_u24 v178, 43691, v177
        v_lshrrev_b32 v178, 18, v178
        v_mul_u32_u24 v179, 6, v178
        v_sub_u32 v179, v177, v179
        v_mul_u32_u24 v178, 2752, v178
        v_lshl_add_u32 v{184+i}, v179, 4, v178
        s_add_u32 m0, s36, {1024*i}
        buffer_load_dwordx4 v{184+i}, s[52:55], s62 offen lds""")
    a(f"""v_lshrrev_b32 v178, 3, v9
    v_and_b32 v179, 7, v9
    v_lshlrev_b32 v178, 10, v178
    v_lshl_add_u32 v187, v179, 4, v178
    s_lshl_b32 s63, s{S_W}, 13
    {PTs('s36', 's37')}
    s_lshl_b32 s36, s36, 15
    s_add_u32 s36, s36, s63
    {PGs('s63')}
    s_lshl_b32 s63, s63, 7
    s_add_u32 s36, s36, s63
    s_lshl_b32 s63, s{S_W}, 10
    s_add_u32 s63, s63, {PW + 2*6144 + 64}
    s_mov_b32 m0, s63
    buffer_load_dwordx4 v187, s[56:59], s36 offen lds
    s_add_u32 s36, s36, {32*32*1024}
    s_add_u32 m0, s63, 4096
    buffer_load_dwordx4 v187, s[56:59], s36 offen lds""")

def emit_prep_loadsQ(a):
    a(f"""buffer_load_dwordx4 v[60:63], v4, s[20:23], 0 offen
    buffer_load_dwordx4 v[64:67], v4, s[20:23], 0 offen offset:1024""")
def emit_prep_loads2(a):
    a(f"""s_lshl_b32 s65, s19, 1
    s_add_u32 s65, s65, s66
    s_lshl_b32 s37, s65, 1
    s_lshl_b32 s65, s65, 12""")
    srd(a, 44, 12, 4096, offreg=65)
    srd(a, 48, 14, D * 2)
    a(f"""v_lshlrev_b32 v172, 4, v9
    s_lshl_b32 s36, s67, 11
    v_add_u32 v172, s36, v172
    buffer_load_dwordx4 v[192:195], v172, s[44:47], 0 offen
    buffer_load_dwordx4 v[196:199], v172, s[44:47], 0 offen offset:4
    buffer_load_dwordx4 v[200:203], v172, s[44:47], 0 offen offset:8
    buffer_load_dwordx4 v[204:207], v172, s[44:47], 0 offen offset:1024
    buffer_load_dwordx4 v[208:211], v172, s[44:47], 0 offen offset:1028
    buffer_load_dwordx4 v[212:215], v172, s[44:47], 0 offen offset:1032
    v_bfe_u32 v219, v9, 3, 2
    v_and_b32 v220, 7, v9
    v_lshlrev_b32 v13, 1, v220
    v_add_u32 v13, v13, v219
    v_subrev_u32 v13, 16, v13
    v_lshlrev_b32 v13, 1, v13
    v_add_u32 v14, 2, v13
    buffer_load_ushort v216, v13, s[44:47], 0 offen
    buffer_load_ushort v217, v14, s[44:47], 0 offen
    v_mov_b32 v173, s37
    buffer_load_ushort v218, v173, s[48:51], 0 offen""")

def emit_codepf(a):
    if CODEPF:
        a(f"""s_getpc_b64 s[68:69]
        L_pc:
        s_sub_u32 s68, s68, L_pc-{KN}
        s_subb_u32 s69, s69, 0
        v_and_b32 v190, 15, v0
        s_lshr_b32 s36, s2, 3
        s_lshl_b32 s36, s36, 4
        v_add_u32 v190, s36, v190
        v_lshlrev_b32 v190, 7, v190
        v_min_u32 v190, L_codeend-{KN}-4, v190
        global_load_dword v188, v190, s[68:69]""")

def emit_prep_compute(a):
    a(f"""v_sub_u32 v11, 31, v2
    v_lshlrev_b32 v12, 2, v1
    v_xor_b32 v11, v11, v12
    v_lshlrev_b32 v11, 2, v11
    v_lshlrev_b32 v13, 10, v1
    v_add_u32 v11, v11, v13
    v_add_u32 v11, {PL}, v11
    v_xor_b32 v12, v2, v12
    v_lshlrev_b32 v12, 2, v12
    v_add_u32 v12, v12, v13
    v_add_u32 v12, {PL + 8192}, v12
    """)
    a(f"s_waitcnt vmcnt({(25 if UPFRONT == 1 else 20) if UPFRONT else 7})")
    for j in range(8):
        a(f"""v_lshlrev_b32 v{80+j}, 16, v{44+2*j}
        v_and_b32 v{88+j}, 0xffff0000, v{44+2*j}
        v_lshlrev_b32 v{96+j}, 16, v{45+2*j}
        v_and_b32 v{104+j}, 0xffff0000, v{45+2*j}""")
    a(f"s_waitcnt vmcnt({(18 if UPFRONT == 1 else 13) if UPFRONT else 0})")
    stamp(a, 1)
    for i in range(5):
        for p in range(4):
            a(f"""v_lshlrev_b32 v{112+8*i+2*p}, 16, v{16+4*i+p}
            v_and_b32 v{113+8*i+2*p}, 0xffff0000, v{16+4*i+p}""")
    for row in range(2):
        for p in range(4):
            d = 152 + 8 * row + 2 * p
            a(f"v_pk_mul_f32 v[{d}:{d+1}], v[{112+8*row+2*p}:{113+8*row+2*p}], v[{104+2*p}:{105+2*p}]")
    for tt, tap in ((1, 2), (2, 1), (3, 0)):
        for row in range(2):
            for p in range(4):
                d = 152 + 8 * row + 2 * p
                k = 112 + 8 * (row + tt) + 2 * p
                s_ = 80 + 8 * tap + 2 * p
                a(f"v_pk_fma_f32 v[{d}:{d+1}], v[{k}:{k+1}], v[{s_}:{s_+1}], v[{d}:{d+1}]")
    for row in range(2):
        for p in range(4):
            a(f"""v_lshlrev_b32 v{112+8*row+2*p}, 16, v{36+4*row+p}
            v_and_b32 v{113+8*row+2*p}, 0xffff0000, v{36+4*row+p}""")
    for row in range(2):
        for p in range(4):
            d = 152 + 8 * row + 2 * p
            a(f"v_pk_mul_f32 v[{d}:{d+1}], v[{d}:{d+1}], v[{112+8*row+2*p}:{113+8*row+2*p}]")
    for j in range(8):
        a(f"v_cvt_pk_bf16_f32 v{80+j}, v{160+j}, v{152+j}")
    for j in range(8):
        a(f"ds_write_b32 v11, v{80+j} offset:{128*j}")
    a(f"""v_lshrrev_b32 v3, 6, v0
    v_xor_b32 v5, v1, v3
    v_lshlrev_b32 v5, 4, v5
    v_lshlrev_b32 v6, 7, v2
    v_add_u32 v5, v5, v6
    v_add_u32 v5, {PL}, v5
    v_xor_b32 v7, 64, v5
    {PGs('s36')}
    s_lshl_b32 s36, s36, 18
    {PTs('s37', 's38')}
    s_lshl_b32 s37, s37, 7
    s_sub_u32 s4, s36, s37
    s_add_u32 s4, s4, {WS['XR'] + 1984*2}
    s_add_u32 s5, s36, s37
    s_add_u32 s5, s5, {WS['QT']}
    v_lshlrev_b32 v8, 12, v2
    v_lshlrev_b32 v15, 4, v1
    v_add_u32 v8, v8, v15
    v_add_u32 v15, 0x20000, v8
    s_waitcnt lgkmcnt(0)
    s_barrier
    ds_read_b128 v[16:19], v5
    ds_read_b128 v[20:23], v7 offset:4096
    s_waitcnt lgkmcnt(1)
    buffer_store_dwordx4 v[16:19], v8, {WSR}, s4 offen {LS('xr')}
    s_waitcnt lgkmcnt(0)
    buffer_store_dwordx4 v[20:23], v15, {WSR}, s4 offen {LS('xr')}""")
    stamp(a, 2)
    if UPFRONT != 1: emit_prep_loadsW(a)
    if not UPFRONT: emit_prep_loadsQ(a)
    L = a.newlabel("sg1")
    a(f"""s_waitcnt vmcnt({(0 if UPFRONT == 1 else 5) if UPFRONT else 7})
    s_barrier
    s_cmp_lg_u32 s{S_W}, 0
    s_cbranch_scc1 {L}
    s_add_u32 s36, s{S_GEN}, 1
    v_mov_b32 v16, s36
    v_mov_b32 v17, s{S_FLAG}
    s_mov_b64 exec, 1
    buffer_store_dword v16, v17, {WSR}, 0 offen sc1
    s_mov_b64 exec, -1
    {L}:""")
    stamp(a, 3)
    if FINE == 'F': fstamp(a, 9)
    if not UPFRONT:
        emit_statrows(a)
        emit_prep_loads2(a)
    NPF = 0
    if UPFRONT == 2:
        if FINE == 'F': fstamp(a, 6)
        pass
        if FINE == 'F': fstamp(a, 7)
        a(f"""s_mul_i32 s62, s66, {CB}
        v_lshlrev_b32 v4, 4, v9
        s_lshl_b32 s36, s67, 11
        s_add_u32 s36, s36, s62
        s_add_u32 s36, s36, 32
        v_add_u32 v4, s36, v4""")
        for p in range(2):
            L0, L2, L4 = 192 + 12 * p, 196 + 12 * p, 200 + 12 * p
            for j in range(4):
                a(f"v_alignbit_b32 v{112+8*p+j}, v{L2+j}, v{L0+j}, 16")
                a(f"v_alignbit_b32 v{116+8*p+j}, v{L4+j}, v{L2+j}, 16")
            a(f"""ds_write_b128 v4, v[{L0}:{L0+3}] offset:{1024*p}
            ds_write_b128 v4, v[{112+8*p}:{115+8*p}] offset:{1024*p + HCS}
            ds_write_b128 v4, v[{L2}:{L2+3}] offset:{1024*p + 2*HCS}
            ds_write_b128 v4, v[{116+8*p}:{119+8*p}] offset:{1024*p + 3*HCS}""")
        a(f"""v_lshl_or_b32 v216, v217, 16, v216
        v_mul_u32_u24 v13, {HCS}, v219
        v_lshl_add_u32 v13, v220, 2, v13
        v_add_u32 v13, s62, v13
        ds_write_b32 v13, v216
        v_lshlrev_b32 v20, 16, v218
        v_mov_b32 v92, 0
        v_mov_b32 v93, 0
        v_mov_b32 v94, 0
        v_mov_b32 v95, 0
        v_and_b32 v16, 31, v9
        v_lshlrev_b32 v16, 4, v16
        v_add_u32 v16, s62, v16
        ds_write_b128 v16, v[92:95] offset:{XRO+4096}
        s_waitcnt lgkmcnt(0)""")
        if FINE == 'F': fstamp(a, 2)
        pass
        if FINE == 'F': fstamp(a, 3)
        a("s_mov_b32 s36, 0x05040100\ns_mov_b32 s37, 0x07060302")
        for p in range(4):
            a(f"""v_perm_b32 v{88+2*p}, v{64+p}, v{60+p}, s36
            v_perm_b32 v{89+2*p}, v{64+p}, v{60+p}, s37""")
        for j in range(8):
            a(f"ds_write_b32 v12, v{88+j} offset:{128*j}")
        if FINE == 'F': fstamp(a, 4)
        pass
        if FINE == 'F': fstamp(a, 5)
        a("v_mov_b32 v14, 0x3f803f80")
        for row in range(2):
            su, sq = 96 + 2 * row, 97 + 2 * row
            a(f"v_mov_b32 v{su}, 0\nv_mov_b32 v{sq}, 0")
        for p in range(4):
            for row in range(2):
                su, sq = 96 + 2 * row, 97 + 2 * row; b = 68 + 4 * row
                a(f"v_dot2_f32_bf16 v{su}, v{b+p}, v14, v{su}\nv_dot2_f32_bf16 v{sq}, v{b+p}, v{b+p}, v{sq}")
        for r in (8, 4, 2, 1):
            for v in (96, 97, 98, 99):
                a(f"v_add_f32_dpp v{v}, v{v}, v{v} row_ror:{r} row_mask:0xf bank_mask:0xf")
        for k, v in enumerate((96, 97, 98, 99)): a(f"v_mov_b32 v{100+k}, v{v}")
        for k, v in enumerate((96, 97, 98, 99)): a(f"v_permlane16_swap_b32 v{v}, v{100+k}")
        for k, v in enumerate((96, 97, 98, 99)): a(f"v_add_f32 v{v}, v{v}, v{100+k}")
        for k, v in enumerate((96, 97, 98, 99)): a(f"v_mov_b32 v{100+k}, v{v}")
        for k, v in enumerate((96, 97, 98, 99)): a(f"v_permlane32_swap_b32 v{v}, v{100+k}")
        for k, v in enumerate((96, 97, 98, 99)): a(f"v_add_f32 v{v}, v{v}, v{100+k}")
        ln_core(a, 96, 97); ln_core(a, 98, 99)
        a(f"""v_rcp_f32 v102, v97
        v_rcp_f32 v103, v99
        v_mul_f32 v104, -v96, v102
        v_mul_f32 v105, -v98, v103
        s_lshl_b32 s36, s2, 5
        s_lshl_b32 s37, s{S_W}, 3
        s_add_u32 s11, s36, s37
        s_add_u32 s11, s11, {WS['RS0']}""")
        a(f"""v_mov_b32 v101, s11
        s_mov_b32 s37, {WS['C0']-WS['RS0']}
        s_mov_b64 exec, 1
        buffer_store_dwordx2 v[102:103], v101, {WSR}, 0 offen sc1
        buffer_store_dwordx2 v[104:105], v101, {WSR}, s37 offen sc1
        s_mov_b64 exec, -1
        s_waitcnt lgkmcnt(0)
        s_barrier
        ds_read_b128 v[72:75], v5 offset:8192
        ds_read_b128 v[76:79], v7 offset:{8192+4096}
        s_waitcnt lgkmcnt(1)
        buffer_store_dwordx4 v[72:75], v8, {WSR}, s5 offen sc1
        s_waitcnt lgkmcnt(0)
        buffer_store_dwordx4 v[76:79], v15, {WSR}, s5 offen sc1""")
        a("s_waitcnt vmcnt(4)\ns_barrier")
        if FINE == 'F': fstamp(a, 1)
        a(f"""v_lshrrev_b32 v178, 4, v9
        v_bfe_u32 v179, v9, 2, 2
        v_and_b32 v180, 3, v9
        v_lshl_add_u32 v181, v178, 4, v179
        v_mul_u32_u24 v181, 96, v181
        v_and_b32 v182, 1, v180
        v_lshl_add_u32 v181, v182, 3, v181
        v_lshrrev_b32 v182, 1, v180
        v_mul_u32_u24 v182, {W3OFF}, v182
        v_add_u32 v181, v181, v182
        v_lshlrev_b32 v183, 4, v9""")
        for i in range(3):
            a(f"""s_mul_i32 s36, s{S_W}, 3
            s_add_u32 s36, s36, {i}
            s_lshr_b32 s37, s36, 1
            s_and_b32 s36, s36, 1
            s_lshl_b32 s38, s37, 4
            s_mul_i32 s39, s36, {8*96}
            s_add_u32 s38, s38, s39
            s_add_u32 s38, s38, {PW}
            v_add_u32 v182, s38, v181
            ds_read_b64_tr_b16 v[{144+4*i}:{145+4*i}], v182
            ds_read_b64_tr_b16 v[{146+4*i}:{147+4*i}], v182 offset:{4*96}
            s_mul_i32 s38, s61, 6
            s_add_u32 s38, s38, s37
            s_lshl_b32 s39, s38, 14
            s_lshl_b32 s37, s60, 11
            s_add_u32 s39, s39, s37
            s_lshl_b32 s36, s36, 10
            s_add_u32 s39, s39, s36
            s_add_u32 s39, s39, {WS['WF13']}
            s_cmp_lt_u32 s38, 172
            s_cselect_b32 s{6+i}, s39, {INV}""")
        a(f"""v_lshl_add_u32 v181, v178, 2, v179
        v_lshlrev_b32 v181, 7, v181
        v_lshl_add_u32 v181, v180, 5, v181
        s_lshl_b32 s36, s{S_W}, 3
        s_add_u32 s36, s36, {PW + 2*6144 + 64}
        v_add_u32 v181, s36, v181""")
        for i in range(2):
            a(f"""ds_read_b64_tr_b16 v[{156+4*i}:{157+4*i}], v181 offset:{4096*i}
            ds_read_b64_tr_b16 v[{158+4*i}:{159+4*i}], v181 offset:{4096*i + 2048}
            {PTs('s36', 's37')}
            s_add_u32 s36, s36, {32*i}
            {PGs('s37')}
            s_mul_i32 s37, s37, 43
            s_add_u32 s37, s37, s36
            s_lshl_b32 s37, s37, 12
            s_lshl_b32 s38, s{S_W}, 10
            s_add_u32 s37, s37, s38
            s_add_u32 s37, s37, {WS['WF2']}
            s_cmp_lt_u32 s36, 43
            s_cselect_b32 s{9+i}, s37, {INV}""")
        for i in range(5):
            a(f"s_waitcnt lgkmcnt({2*(4-i)})\nbuffer_store_dwordx4 {vr(144+4*i)}, v183, {WSR}, s{6+i} offen sc1")
        a("s_waitcnt lgkmcnt(0)")
        stamp(a, 4)
        return
    a(f"s_waitcnt vmcnt({2 + 2 + 9 + NPF})\ns_barrier")
    if FINE == 'F': fstamp(a, 1)
    a(f"""v_lshrrev_b32 v178, 4, v9
    v_bfe_u32 v179, v9, 2, 2
    v_and_b32 v180, 3, v9
    v_lshl_add_u32 v181, v178, 4, v179
    v_mul_u32_u24 v181, 96, v181
    v_and_b32 v182, 1, v180
    v_lshl_add_u32 v181, v182, 3, v181
    v_lshrrev_b32 v182, 1, v180
    v_mul_u32_u24 v182, {W3OFF}, v182
    v_add_u32 v181, v181, v182
    v_lshlrev_b32 v183, 4, v9""")
    for i in range(3):
        a(f"""s_mul_i32 s36, s{S_W}, 3
        s_add_u32 s36, s36, {i}
        s_lshr_b32 s37, s36, 1
        s_and_b32 s36, s36, 1
        s_lshl_b32 s38, s37, 4
        s_mul_i32 s39, s36, {8*96}
        s_add_u32 s38, s38, s39
        s_add_u32 s38, s38, {PW}
        v_add_u32 v182, s38, v181
        ds_read_b64_tr_b16 v[{144+4*i}:{145+4*i}], v182
        ds_read_b64_tr_b16 v[{146+4*i}:{147+4*i}], v182 offset:{4*96}
        s_mul_i32 s38, s61, 6
        s_add_u32 s38, s38, s37
        s_lshl_b32 s39, s38, 14
        s_lshl_b32 s37, s60, 11
        s_add_u32 s39, s39, s37
        s_lshl_b32 s36, s36, 10
        s_add_u32 s39, s39, s36
        s_add_u32 s39, s39, {WS['WF13']}
        s_cmp_lt_u32 s38, 172
        s_cselect_b32 s{6+i}, s39, {INV}""")
    a(f"""v_lshl_add_u32 v181, v178, 2, v179
    v_lshlrev_b32 v181, 7, v181
    v_lshl_add_u32 v181, v180, 5, v181
    s_lshl_b32 s36, s{S_W}, 3
    s_add_u32 s36, s36, {PW + 2*6144 + 64}
    v_add_u32 v181, s36, v181""")
    for i in range(2):
        a(f"""ds_read_b64_tr_b16 v[{156+4*i}:{157+4*i}], v181 offset:{4096*i}
        ds_read_b64_tr_b16 v[{158+4*i}:{159+4*i}], v181 offset:{4096*i + 2048}
        {PTs('s36', 's37')}
        s_add_u32 s36, s36, {32*i}
        {PGs('s37')}
        s_mul_i32 s37, s37, 43
        s_add_u32 s37, s37, s36
        s_lshl_b32 s37, s37, 12
        s_lshl_b32 s38, s{S_W}, 10
        s_add_u32 s37, s37, s38
        s_add_u32 s37, s37, {WS['WF2']}
        s_cmp_lt_u32 s36, 43
        s_cselect_b32 s{9+i}, s37, {INV}""")
    for i in range(5):
        a(f"s_waitcnt lgkmcnt({2*(4-i)})\nbuffer_store_dwordx4 {vr(144+4*i)}, v183, {WSR}, s{6+i} offen sc1")
    if FINE == 'F': fstamp(a, 2)
    a(f"s_waitcnt vmcnt({2 + 9 + NPF + 5})")
    if FINE == 'F': fstamp(a, 3)
    a("s_mov_b32 s36, 0x05040100\ns_mov_b32 s37, 0x07060302")
    for p in range(4):
        a(f"""v_perm_b32 v{88+2*p}, v{64+p}, v{60+p}, s36
        v_perm_b32 v{89+2*p}, v{64+p}, v{60+p}, s37""")
    for j in range(8):
        a(f"ds_write_b32 v12, v{88+j} offset:{128*j}")
    if FINE == 'F': fstamp(a, 4)
    a(f"s_waitcnt vmcnt({9 + NPF + 5})")
    if FINE == 'F': fstamp(a, 5)
    a("v_mov_b32 v14, 0x3f803f80")
    for row in range(2):
        su, sq = 96 + 2 * row, 97 + 2 * row
        a(f"v_mov_b32 v{su}, 0\nv_mov_b32 v{sq}, 0")
    for p in range(4):
        for row in range(2):
            su, sq = 96 + 2 * row, 97 + 2 * row; b = 68 + 4 * row
            a(f"v_dot2_f32_bf16 v{su}, v{b+p}, v14, v{su}\nv_dot2_f32_bf16 v{sq}, v{b+p}, v{b+p}, v{sq}")
    for r in (8, 4, 2, 1):
        for v in (96, 97, 98, 99):
            a(f"v_add_f32_dpp v{v}, v{v}, v{v} row_ror:{r} row_mask:0xf bank_mask:0xf")
    for k, v in enumerate((96, 97, 98, 99)): a(f"v_mov_b32 v{100+k}, v{v}")
    for k, v in enumerate((96, 97, 98, 99)): a(f"v_permlane16_swap_b32 v{v}, v{100+k}")
    for k, v in enumerate((96, 97, 98, 99)): a(f"v_add_f32 v{v}, v{v}, v{100+k}")
    for k, v in enumerate((96, 97, 98, 99)): a(f"v_mov_b32 v{100+k}, v{v}")
    for k, v in enumerate((96, 97, 98, 99)): a(f"v_permlane32_swap_b32 v{v}, v{100+k}")
    for k, v in enumerate((96, 97, 98, 99)): a(f"v_add_f32 v{v}, v{v}, v{100+k}")
    ln_core(a, 96, 97); ln_core(a, 98, 99)
    a(f"""v_rcp_f32 v102, v97
    v_rcp_f32 v103, v99
    v_mul_f32 v104, -v96, v102
    v_mul_f32 v105, -v98, v103
    s_lshl_b32 s36, s2, 5
    s_lshl_b32 s37, s{S_W}, 3
    s_add_u32 s11, s36, s37
    s_add_u32 s11, s11, {WS['RS0']}""")
    a(f"""v_mov_b32 v101, s11
    s_mov_b32 s37, {WS['C0']-WS['RS0']}
    s_mov_b64 exec, 1
    buffer_store_dwordx2 v[102:103], v101, {WSR}, 0 offen sc1
    buffer_store_dwordx2 v[104:105], v101, {WSR}, s37 offen sc1
    s_mov_b64 exec, -1
    s_waitcnt lgkmcnt(0)
    s_barrier
    ds_read_b128 v[72:75], v5 offset:8192
    ds_read_b128 v[76:79], v7 offset:{8192+4096}
    s_waitcnt lgkmcnt(1)
    buffer_store_dwordx4 v[72:75], v8, {WSR}, s5 offen sc1
    s_waitcnt lgkmcnt(0)
    buffer_store_dwordx4 v[76:79], v15, {WSR}, s5 offen sc1""")
    if FINE == 'F': fstamp(a, 6)
    a("s_waitcnt vmcnt(9)")
    if FINE == 'F': fstamp(a, 7)
    a(f"""s_mul_i32 s62, s66, {CB}
    v_lshlrev_b32 v4, 4, v9
    s_lshl_b32 s36, s67, 11
    s_add_u32 s36, s36, s62
    s_add_u32 s36, s36, 32
    v_add_u32 v4, s36, v4""")
    for p in range(2):
        L0, L2, L4 = 192 + 12 * p, 196 + 12 * p, 200 + 12 * p
        for j in range(4):
            a(f"v_alignbit_b32 v{112+8*p+j}, v{L2+j}, v{L0+j}, 16")
            a(f"v_alignbit_b32 v{116+8*p+j}, v{L4+j}, v{L2+j}, 16")
        a(f"""ds_write_b128 v4, v[{L0}:{L0+3}] offset:{1024*p}
        ds_write_b128 v4, v[{112+8*p}:{115+8*p}] offset:{1024*p + HCS}
        ds_write_b128 v4, v[{L2}:{L2+3}] offset:{1024*p + 2*HCS}
        ds_write_b128 v4, v[{116+8*p}:{119+8*p}] offset:{1024*p + 3*HCS}""")
    a(f"""v_lshl_or_b32 v216, v217, 16, v216
    v_mul_u32_u24 v13, {HCS}, v219
    v_lshl_add_u32 v13, v220, 2, v13
    v_add_u32 v13, s62, v13
    ds_write_b32 v13, v216
    v_lshlrev_b32 v20, 16, v218
    v_mov_b32 v92, 0
    v_mov_b32 v93, 0
    v_mov_b32 v94, 0
    v_mov_b32 v95, 0
    v_and_b32 v16, 31, v9
    v_lshlrev_b32 v16, 4, v16
    v_add_u32 v16, s62, v16
    ds_write_b128 v16, v[92:95] offset:{XRO+4096}
    s_waitcnt lgkmcnt(0)""")
    stamp(a, 4)
    if FINE == 'F': fstamp(a, 8)

def emit_conv(a, hooks):
    a("v_and_b32 v1, 63, v0")
    def su1():
        if SPREAD:
            a(f"""v_and_b32 v2, 7, v1
            v_lshlrev_b32 v2, 5, v2
            v_bfe_u32 v3, v1, 3, 2
            v_lshl_add_u32 v2, v3, 3, v2
            v_add_u32 v2, s60, v2
            v_lshlrev_b32 v2, 6, v2
            v_add_u32 v2, {WS['SYNC'] + SYNC_FLAGS}, v2""")
        else:
            a(f"""v_and_b32 v2, 31, v1
            s_lshl_b32 s36, s60, 5
            v_add_u32 v2, s36, v2
            v_lshlrev_b32 v2, 6, v2
            v_add_u32 v2, {WS['SYNC'] + SYNC_FLAGS}, v2""")
    signal(a, 2)
    wg_wait(a, su1, 2, 1, 1, 64)
    stamp(a, 5)
    a(f"""v_lshlrev_b32 v10, 4, v1
    s_lshl_b32 s36, s67, 11
    s_add_u32 s37, s65, s36
    s_add_u32 s37, s37, {WS['XR']}
    s_add_u32 s38, s62, s36
    s_add_u32 s38, s38, {XRO}
    s_mov_b32 m0, s38
    buffer_load_dwordx4 v10, {WSR}, s37 offen sc1 lds
    s_add_u32 s38, s38, 1024
    s_add_u32 s37, s37, 1024
    s_mov_b32 m0, s38
    buffer_load_dwordx4 v10, {WSR}, s37 offen sc1 lds
    v_and_b32 v11, 15, v1
    v_lshrrev_b32 v12, 4, v1
    v_lshlrev_b32 v13, 4, v11
    v_lshl_add_u32 v13, v12, 2, v13
    s_lshl_b32 s36, s67, 10
    v_add_u32 v13, s36, v13
    v_lshlrev_b32 v14, 1, v13
    v_lshlrev_b32 v15, 2, v13
    v_lshlrev_b32 v22, 6, v1
    v_add_u32 v22, {WS['SYNC'] + SYNC_FLAGS}, v22""")
    a(f"""v_add_u32 v17, 1, v11
    v_and_b32 v18, 3, v17
    v_mul_u32_u24 v18, {HCS}, v18
    v_lshrrev_b32 v17, 2, v17
    v_lshlrev_b32 v17, 3, v17
    v_lshl_add_u32 v17, v12, 4, v17
    v_add_u32 v17, v17, v18
    s_lshl_b32 s36, s67, 8
    s_add_u32 s37, s36, s62
    v_add_u32 v17, s37, v17
    v_lshlrev_b32 v18, 5, v11
    v_lshlrev_b32 v19, 4, v12
    v_sub_u32 v18, v19, v18
    s_add_u32 s37, s37, {XRO + 480}
    v_add_u32 v18, s37, v18""")
    for r in range(32, 64): a(f"v_mov_b32 v{r}, 0")
    a(f"s_waitcnt vmcnt(0)\ns_barrier")
    stamp(a, 6)
    pre = []
    for i in range(4):
        pre.append(f"buffer_load_dwordx2 v[{192+2*i}:{193+2*i}], v14, {WSR}, s10 offen offset:{512*i} sc1")
    for i in range(4):
        pre.append(f"buffer_load_dwordx4 v[{200+4*i}:{203+4*i}], v15, {WSR}, s8 offen offset:{1024*i} sc1")
        pre.append(f"buffer_load_dwordx4 v[{216+4*i}:{219+4*i}], v15, {WSR}, s9 offen offset:{1024*i} sc1")
    def load_frags(setbase, bi):
        ops = []
        for x in range(8):
            A = setbase + 4 * x
            ops.append(f"ds_read_b64 v[{A}:{A+1}], v17 offset:{512*x + 64*bi}")
            ops.append(f"ds_read_b64 v[{A+2}:{A+3}], v17 offset:{512*x + 64*bi + 8}")
            B = setbase + 32 + 4 * x
            ops.append(f"ds_read_b128 v[{B}:{B+3}], v18 offset:{512*(7-x) + 64*bi}")
        return ops
    sets = (64, 128)
    for op in load_frags(sets[0], 0): a(op)
    extra = []
    for bi in range(4):
        cur = sets[bi & 1]
        nxt = load_frags(sets[(bi + 1) & 1], bi + 1) if bi < 3 else []
        if bi == 0:
            for i in range(4):
                if i == 0: a(f"buffer_load_dword v24, v22, {WSR}, 0 offen sc1")
                else: a(f"s_movk_i32 s39, {4096*i}\nbuffer_load_dword v{24+i}, v22, {WSR}, s39 offen sc1")
            member_flag_off(a, 23, "0", 16)
            a(f"buffer_load_dword v28, v23, {WSR}, 0 offen offset:4 sc1")
        if bi == CHK1:
            a(f"""s_waitcnt vmcnt(0)
            v_cmp_eq_u32 vcc, s{S_IDW}, v28
            s_cmp_eq_u64 vcc, -1
            s_cselect_b32 s{S_LOC}, 1, 0""")
            flagcheck(a, 2, (24, 25, 26, 27), 22, "L_c_ok1", tmp=(29, 30))
            a(f"s_mov_b32 s8, {WS['RS0']}\ns_mov_b32 s9, {WS['C0']}\ns_add_u32 s10, s65, {WS['QT']}")
            extra0 = pre
            extra = pre + list(hooks['conv_loop_extra'])
        a("s_waitcnt lgkmcnt(0)")
        pairs = sorted([(jt, aa) for jt in range(8) for aa in range(jt + 1)], key=lambda p: (p[1], p[0]))
        k = 0
        for idx, (jt, aa) in enumerate(pairs):
            A = cur + 4 * aa; B = cur + 32 + 4 * (jt - aa); C = 32 + 4 * jt
            a(f"v_mfma_f32_16x16x32_bf16 v[{C}:{C+3}], v[{A}:{A+3}], v[{B}:{B+3}], v[{C}:{C+3}]")
            if idx < 24 and k < len(nxt):
                a(nxt[k]); k += 1
            if extra and idx % PACE == PACE - 1 or (extra and bi == CHK1 and idx < 12):
                a(extra.pop(0))
    for op in extra: a(op)
    stamp(a, 7)
    a(f"""v_lshlrev_b32 v4, 4, v1
    s_lshl_b32 s36, s{S_W}, 12
    s_add_u32 s36, s36, {EXO}
    v_add_u32 v5, s36, v4
    s_xor_b32 s36, s36, 4096
    v_add_u32 v6, s36, v4
    s_cmp_eq_u32 s67, 0
    s_cbranch_scc0 L_c_x1""")
    for half in range(2):
        own, oth = (32, 48) if half == 0 else (48, 32)
        for i in range(4): a(f"ds_write_b128 v5, v[{oth+4*i}:{oth+4*i+3}] offset:{1024*i}")
        a("s_waitcnt lgkmcnt(0)\ns_barrier")
        for i in range(4): a(f"ds_read_b128 v[{80+4*i}:{83+4*i}], v6 offset:{1024*i}")
        a("s_waitcnt lgkmcnt(0)")
        for i in range(4):
            for h in range(2):
                a(f"v_pk_add_f32 v[{64+4*i+2*h}:{65+4*i+2*h}], v[{own+4*i+2*h}:{own+4*i+2*h+1}], v[{80+4*i+2*h}:{81+4*i+2*h}]")
        if half == 0:
            a("s_branch L_c_x2\nL_c_x1:")
    a.label("L_c_x2")
    a(f"""v_lshlrev_b32 v7, 5, v11
    v_lshl_add_u32 v7, v12, 3, v7
    s_lshl_b32 s36, s67, 11
    s_sub_u32 s37, s62, s36
    s_add_u32 s37, s37, {XRO + 4088 - 1536}
    v_sub_u32 v7, s37, v7""")
    for i in range(4): a(f"ds_read_b64 v[{96+2*i}:{97+2*i}], v7 offset:{512*(3-i)}")
    a(f"""s_lshr_b32 s39, s65, 12
    s_mul_i32 s39, s39, {XP}
    s_add_u32 s38, s39, {WS['YT']}
    s_add_u32 s39, s39, {WS['X1T']}
    s_waitcnt vmcnt({hooks['n_conv_total_w']}) lgkmcnt(0)""")
    for op in hooks['conv_epi_extra']: a(op)
    O = lambda i: 64 + 4 * i
    T = lambda i: 104 + 10 * i
    for i in range(4):
        kv = 96 + 2 * i
        a(f"""v_and_b32 v{T(i)}, 0xffff0000, v{kv+1}
        v_lshlrev_b32 v{T(i)+1}, 16, v{kv+1}
        v_and_b32 v{T(i)+2}, 0xffff0000, v{kv}
        v_lshlrev_b32 v{T(i)+3}, 16, v{kv}""")
    for i in range(4):
        a(f"""v_pk_fma_f32 v[{O(i)}:{O(i)+1}], v[{T(i)}:{T(i)+1}], v[20:21], v[{O(i)}:{O(i)+1}] op_sel_hi:[1,0,1]
        v_pk_fma_f32 v[{O(i)+2}:{O(i)+3}], v[{T(i)+2}:{T(i)+3}], v[20:21], v[{O(i)+2}:{O(i)+3}] op_sel_hi:[1,0,1]""")
    for i in range(4):
        a(f"""v_cvt_pk_bf16_f32 v{T(i)+4}, v{O(i)}, v{O(i)+1}
        v_cvt_pk_bf16_f32 v{T(i)+5}, v{O(i)+2}, v{O(i)+3}""")
    for i in range(4):
        a(f"""v_lshlrev_b32 v{T(i)}, 16, v{192+2*i}
        v_and_b32 v{T(i)+1}, 0xffff0000, v{192+2*i}
        v_lshlrev_b32 v{T(i)+2}, 16, v{193+2*i}
        v_and_b32 v{T(i)+3}, 0xffff0000, v{193+2*i}
        buffer_store_dwordx2 v[{T(i)+4}:{T(i)+5}], v14, {WSR}, s38 offen offset:{512*i} sc1""")
    for i in range(4):
        a(f"""v_lshlrev_b32 v{O(i)}, 16, v{T(i)+4}
        v_and_b32 v{O(i)+1}, 0xffff0000, v{T(i)+4}
        v_lshlrev_b32 v{O(i)+2}, 16, v{T(i)+5}
        v_and_b32 v{O(i)+3}, 0xffff0000, v{T(i)+5}
        v_pk_fma_f32 v[{T(i)+6}:{T(i)+7}], v[{T(i)}:{T(i)+1}], v[{200+4*i}:{201+4*i}], v[{216+4*i}:{217+4*i}]
        v_pk_fma_f32 v[{T(i)+8}:{T(i)+9}], v[{T(i)+2}:{T(i)+3}], v[{202+4*i}:{203+4*i}], v[{218+4*i}:{219+4*i}]""")
    for i in range(4):
        a(f"""v_pk_fma_f32 v[{T(i)+6}:{T(i)+7}], v[{T(i)+6}:{T(i)+7}], v[{O(i)}:{O(i)+1}], v[{T(i)}:{T(i)+1}]
        v_pk_fma_f32 v[{T(i)+8}:{T(i)+9}], v[{T(i)+8}:{T(i)+9}], v[{O(i)+2}:{O(i)+3}], v[{T(i)+2}:{T(i)+3}]""")
    for i in range(4):
        a(f"""v_cvt_pk_bf16_f32 v{O(i)}, v{T(i)+6}, v{T(i)+7}
        v_cvt_pk_bf16_f32 v{O(i)+1}, v{T(i)+8}, v{T(i)+9}
        buffer_store_dwordx2 v[{O(i)}:{O(i)+1}], v14, {WSR}, s39 offen offset:{512*i} sc1""")
    stamp(a, 8)


def blk_addr(a):
    a(f"""v_sub_u32 v11, 31, v2
    v_lshlrev_b32 v12, 2, v1
    v_xor_b32 v11, v11, v12
    v_lshlrev_b32 v11, 2, v11
    v_lshlrev_b32 v13, 10, v1
    v_add_u32 v11, v11, v13
    v_add_u32 v11, {PL}, v11
    v_xor_b32 v12, v2, v12
    v_lshlrev_b32 v12, 2, v12
    v_add_u32 v12, v12, v13
    v_add_u32 v12, {PL + 8192}, v12
    """)

def blk_skun(a):
    for j in range(8):
        a(f"""v_lshlrev_b32 v{80+j}, 16, v{44+2*j}
        v_and_b32 v{88+j}, 0xffff0000, v{44+2*j}
        v_lshlrev_b32 v{96+j}, 16, v{45+2*j}
        v_and_b32 v{104+j}, 0xffff0000, v{45+2*j}""")

def blk_kv(a):
    for i in range(5):
        for p in range(4):
            a(f"""v_lshlrev_b32 v{112+8*i+2*p}, 16, v{16+4*i+p}
            v_and_b32 v{113+8*i+2*p}, 0xffff0000, v{16+4*i+p}""")
    for row in range(2):
        for p in range(4):
            d = 152 + 8 * row + 2 * p
            a(f"v_pk_mul_f32 v[{d}:{d+1}], v[{112+8*row+2*p}:{113+8*row+2*p}], v[{104+2*p}:{105+2*p}]")
    for tt, tap in ((1, 2), (2, 1), (3, 0)):
        for row in range(2):
            for p in range(4):
                d = 152 + 8 * row + 2 * p
                k = 112 + 8 * (row + tt) + 2 * p
                s_ = 80 + 8 * tap + 2 * p
                a(f"v_pk_fma_f32 v[{d}:{d+1}], v[{k}:{k+1}], v[{s_}:{s_+1}], v[{d}:{d+1}]")
    for row in range(2):
        for p in range(4):
            a(f"""v_lshlrev_b32 v{112+8*row+2*p}, 16, v{36+4*row+p}
            v_and_b32 v{113+8*row+2*p}, 0xffff0000, v{36+4*row+p}""")
    for row in range(2):
        for p in range(4):
            d = 152 + 8 * row + 2 * p
            a(f"v_pk_mul_f32 v[{d}:{d+1}], v[{d}:{d+1}], v[{112+8*row+2*p}:{113+8*row+2*p}]")
    for j in range(8):
        a(f"v_cvt_pk_bf16_f32 v{80+j}, v{160+j}, v{152+j}")
    for j in range(8):
        a(f"ds_write_b32 v11, v{80+j} offset:{128*j}")
    a(f"""v_lshrrev_b32 v3, 6, v0
    v_xor_b32 v5, v1, v3
    v_lshlrev_b32 v5, 4, v5
    v_lshlrev_b32 v6, 7, v2
    v_add_u32 v5, v5, v6
    v_add_u32 v5, {PL}, v5
    v_xor_b32 v7, 64, v5
    {PGs('s36')}
    s_lshl_b32 s36, s36, 18
    {PTs('s37', 's38')}
    s_lshl_b32 s37, s37, 7
    s_sub_u32 s4, s36, s37
    s_add_u32 s4, s4, {WS['XR'] + 1984*2}
    s_add_u32 s5, s36, s37
    s_add_u32 s5, s5, {WS['QT']}
    v_lshlrev_b32 v8, 12, v2
    v_lshlrev_b32 v15, 4, v1
    v_add_u32 v8, v8, v15
    v_add_u32 v15, 0x20000, v8
    s_waitcnt lgkmcnt(0)
    s_barrier
    ds_read_b128 v[16:19], v5
    ds_read_b128 v[20:23], v7 offset:4096
    s_waitcnt lgkmcnt(1)
    buffer_store_dwordx4 v[16:19], v8, {WSR}, s4 offen {LS('xr')}
    s_waitcnt lgkmcnt(0)
    buffer_store_dwordx4 v[20:23], v15, {WSR}, s4 offen {LS('xr')}""")

def blk_wtr(a):
    a(f"""v_lshrrev_b32 v178, 4, v9
    v_bfe_u32 v179, v9, 2, 2
    v_and_b32 v180, 3, v9
    v_lshl_add_u32 v181, v178, 4, v179
    v_mul_u32_u24 v181, 96, v181
    v_and_b32 v182, 1, v180
    v_lshl_add_u32 v181, v182, 3, v181
    v_lshrrev_b32 v182, 1, v180
    v_mul_u32_u24 v182, {W3OFF}, v182
    v_add_u32 v181, v181, v182
    v_lshlrev_b32 v183, 4, v9""")
    for i in range(3):
        a(f"""s_mul_i32 s36, s{S_W}, 3
        s_add_u32 s36, s36, {i}
        s_lshr_b32 s37, s36, 1
        s_and_b32 s36, s36, 1
        s_lshl_b32 s38, s37, 4
        s_mul_i32 s39, s36, {8*96}
        s_add_u32 s38, s38, s39
        s_add_u32 s38, s38, {PW}
        v_add_u32 v182, s38, v181
        ds_read_b64_tr_b16 v[{144+4*i}:{145+4*i}], v182
        ds_read_b64_tr_b16 v[{146+4*i}:{147+4*i}], v182 offset:{4*96}
        s_mul_i32 s38, s61, 6
        s_add_u32 s38, s38, s37
        s_lshl_b32 s39, s38, 14
        s_lshl_b32 s37, s60, 11
        s_add_u32 s39, s39, s37
        s_lshl_b32 s36, s36, 10
        s_add_u32 s39, s39, s36
        s_add_u32 s39, s39, {WS['WF13']}
        s_cmp_lt_u32 s38, 172
        s_cselect_b32 s{6+i}, s39, {INV}""")
    a(f"""v_lshl_add_u32 v181, v178, 2, v179
    v_lshlrev_b32 v181, 7, v181
    v_lshl_add_u32 v181, v180, 5, v181
    s_lshl_b32 s36, s{S_W}, 3
    s_add_u32 s36, s36, {PW + 2*6144 + 64}
    v_add_u32 v181, s36, v181""")
    for i in range(2):
        a(f"""ds_read_b64_tr_b16 v[{156+4*i}:{157+4*i}], v181 offset:{4096*i}
        ds_read_b64_tr_b16 v[{158+4*i}:{159+4*i}], v181 offset:{4096*i + 2048}
        {PTs('s36', 's37')}
        s_add_u32 s36, s36, {32*i}
        {PGs('s37')}
        s_mul_i32 s37, s37, 43
        s_add_u32 s37, s37, s36
        s_lshl_b32 s37, s37, 12
        s_lshl_b32 s38, s{S_W}, 10
        s_add_u32 s37, s37, s38
        s_add_u32 s37, s37, {WS['WF2']}
        s_cmp_lt_u32 s36, 43
        s_cselect_b32 s{9+i}, s37, {INV}""")

def blk_qperm(a):
    a("s_mov_b32 s36, 0x05040100\ns_mov_b32 s37, 0x07060302")
    for p in range(4):
        a(f"""v_perm_b32 v{88+2*p}, v{64+p}, v{60+p}, s36
        v_perm_b32 v{89+2*p}, v{64+p}, v{60+p}, s37""")
    for j in range(8):
        a(f"ds_write_b32 v12, v{88+j} offset:{128*j}")

def blk_stats(a):
    a("v_mov_b32 v14, 0x3f803f80")
    for row in range(2):
        su, sq = 96 + 2 * row, 97 + 2 * row
        a(f"v_mov_b32 v{su}, 0\nv_mov_b32 v{sq}, 0")
    for p in range(4):
        for row in range(2):
            su, sq = 96 + 2 * row, 97 + 2 * row; b = 68 + 4 * row
            a(f"v_dot2_f32_bf16 v{su}, v{b+p}, v14, v{su}\nv_dot2_f32_bf16 v{sq}, v{b+p}, v{b+p}, v{sq}")
    for r in (8, 4, 2, 1):
        for v in (96, 97, 98, 99):
            a(f"v_add_f32_dpp v{v}, v{v}, v{v} row_ror:{r} row_mask:0xf bank_mask:0xf")
    for k, v in enumerate((96, 97, 98, 99)): a(f"v_mov_b32 v{100+k}, v{v}")
    for k, v in enumerate((96, 97, 98, 99)): a(f"v_permlane16_swap_b32 v{v}, v{100+k}")
    for k, v in enumerate((96, 97, 98, 99)): a(f"v_add_f32 v{v}, v{v}, v{100+k}")
    for k, v in enumerate((96, 97, 98, 99)): a(f"v_mov_b32 v{100+k}, v{v}")
    for k, v in enumerate((96, 97, 98, 99)): a(f"v_permlane32_swap_b32 v{v}, v{100+k}")
    for k, v in enumerate((96, 97, 98, 99)): a(f"v_add_f32 v{v}, v{v}, v{100+k}")
    ln_core(a, 96, 97); ln_core(a, 98, 99)
    a(f"""v_rcp_f32 v102, v97
    v_rcp_f32 v103, v99
    v_mul_f32 v104, -v96, v102
    v_mul_f32 v105, -v98, v103
    s_lshl_b32 s36, s2, 5
    s_lshl_b32 s37, s{S_W}, 3
    s_add_u32 s11, s36, s37
    s_add_u32 s11, s11, {WS['RS0']}""")

def blk_hcop(a):
    a(f"""s_mul_i32 s62, s66, {CB}
    v_lshlrev_b32 v4, 4, v9
    s_lshl_b32 s36, s67, 11
    s_add_u32 s36, s36, s62
    s_add_u32 s36, s36, 32
    v_add_u32 v4, s36, v4""")
    for p in range(2):
        L0, L2, L4 = 192 + 12 * p, 196 + 12 * p, 200 + 12 * p
        for j in range(4):
            a(f"v_alignbit_b32 v{112+8*p+j}, v{L2+j}, v{L0+j}, 16")
            a(f"v_alignbit_b32 v{116+8*p+j}, v{L4+j}, v{L2+j}, 16")
        a(f"""ds_write_b128 v4, v[{L0}:{L0+3}] offset:{1024*p}
        ds_write_b128 v4, v[{112+8*p}:{115+8*p}] offset:{1024*p + HCS}
        ds_write_b128 v4, v[{L2}:{L2+3}] offset:{1024*p + 2*HCS}
        ds_write_b128 v4, v[{116+8*p}:{119+8*p}] offset:{1024*p + 3*HCS}""")
    a(f"""v_lshl_or_b32 v216, v217, 16, v216
    v_mul_u32_u24 v13, {HCS}, v219
    v_lshl_add_u32 v13, v220, 2, v13
    v_add_u32 v13, s62, v13
    ds_write_b32 v13, v216
    v_lshlrev_b32 v20, 16, v218
    v_mov_b32 v92, 0
    v_mov_b32 v93, 0
    v_mov_b32 v94, 0
    v_mov_b32 v95, 0
    v_and_b32 v16, 31, v9
    v_lshlrev_b32 v16, 4, v16
    v_add_u32 v16, s62, v16
    ds_write_b128 v16, v[92:95] offset:{XRO+4096}
    s_waitcnt lgkmcnt(0)""")


def w_stage_bulk(a):
    for k in range(7):
        a(f"""s_sub_u32 s36, s{S_W}, 1
        s_add_u32 s36, s36, {3*k}
        s_cmp_lt_u32 s36, 12
        s_cbranch_scc0 L_w2_{k}
        s_cmp_lt_u32 s36, 6
        s_cselect_b32 s4, s52, s54
        s_cselect_b32 s5, s53, s55
        s_cselect_b32 s37, 0, 6
        s_cselect_b32 s38, 0, {W3OFF}
        s_mov_b32 s6, {D*F*2}
        s_mov_b32 s7, 0x20000
        s_sub_u32 s36, s36, s37
        s_lshl_b32 s37, s36, 6
        v_add_u32 v177, s37, v9
        v_mul_u32_u24 v178, 43691, v177
        v_lshrrev_b32 v178, 18, v178
        v_mul_u32_u24 v179, 6, v178
        v_sub_u32 v179, v177, v179
        v_mul_u32_u24 v178, 2752, v178
        v_lshl_add_u32 v{184+(k%4)}, v179, 4, v178
        s_lshl_b32 s36, s36, 10
        s_add_u32 s36, s36, s38
        s_add_u32 s36, s36, {PW}
        s_mul_i32 s37, s60, {64*2752}
        s_mul_i32 s38, s61, 96
        s_add_u32 s37, s37, s38
        s_branch L_wgo_{k}
        L_w2_{k}:
        s_mov_b32 s4, s56
        s_mov_b32 s5, s57
        s_mov_b32 s6, {D*F*2}
        s_mov_b32 s7, 0x20000
        s_sub_u32 s36, s36, 12
        v_lshrrev_b32 v178, 3, v9
        v_and_b32 v179, 7, v9
        v_lshlrev_b32 v178, 10, v178
        v_lshl_add_u32 v{184+(k%4)}, v179, 4, v178
        {PTs('s37', 's38')}
        s_lshl_b32 s37, s37, 15
        {PGs('s38')}
        s_lshl_b32 s38, s38, 7
        s_add_u32 s37, s37, s38
        s_and_b32 s38, s36, 3
        s_lshl_b32 s38, s38, 13
        s_add_u32 s37, s37, s38
        s_lshr_b32 s38, s36, 2
        s_lshl_b32 s38, s38, 20
        s_add_u32 s37, s37, s38
        s_cmp_lt_u32 s36, 8
        s_cselect_b32 s37, s37, {INV}
        s_min_u32 s36, s36, 8
        s_lshl_b32 s36, s36, 10
        s_add_u32 s36, s36, {PW + 2*6144 + 64}
        L_wgo_{k}:
        s_mov_b32 m0, s36
        buffer_load_dwordx4 v{184+(k%4)}, s[4:7], s37 offen lds""")

def blk_wtr_hi(a):
    a(f"""v_lshrrev_b32 v250, 4, v9
    v_bfe_u32 v251, v9, 2, 2
    v_and_b32 v252, 3, v9
    v_lshl_add_u32 v253, v250, 4, v251
    v_mul_u32_u24 v253, 96, v253
    v_and_b32 v255, 1, v252
    v_lshl_add_u32 v253, v255, 3, v253
    v_lshrrev_b32 v255, 1, v252
    v_mul_u32_u24 v255, {W3OFF}, v255
    v_add_u32 v253, v253, v255
    v_lshlrev_b32 v254, 4, v9""")
    for i in range(3):
        a(f"""s_mul_i32 s36, s{S_W}, 3
        s_add_u32 s36, s36, {i}
        s_lshr_b32 s37, s36, 1
        s_and_b32 s36, s36, 1
        s_lshl_b32 s38, s37, 4
        s_mul_i32 s39, s36, {8*96}
        s_add_u32 s38, s38, s39
        s_add_u32 s38, s38, {PW}
        v_add_u32 v255, s38, v253
        ds_read_b64_tr_b16 v[{232+4*i}:{233+4*i}], v255
        ds_read_b64_tr_b16 v[{234+4*i}:{235+4*i}], v255 offset:{4*96}
        s_mul_i32 s38, s61, 6
        s_add_u32 s38, s38, s37
        s_lshl_b32 s39, s38, 14
        s_lshl_b32 s37, s60, 11
        s_add_u32 s39, s39, s37
        s_lshl_b32 s36, s36, 10
        s_add_u32 s39, s39, s36
        s_add_u32 s39, s39, {WS['WF13']}
        s_cmp_lt_u32 s38, 172
        s_cselect_b32 s{(6, 7, 12)[i]}, s39, {INV}""")
    a(f"""v_lshl_add_u32 v253, v250, 2, v251
    v_lshlrev_b32 v253, 7, v253
    v_lshl_add_u32 v253, v252, 5, v253
    s_lshl_b32 s36, s{S_W}, 3
    s_add_u32 s36, s36, {PW + 2*6144 + 64}
    v_add_u32 v253, s36, v253""")
    for i in range(2):
        a(f"""ds_read_b64_tr_b16 v[{244+4*i}:{245+4*i}], v253 offset:{4096*i}
        ds_read_b64_tr_b16 v[{246+4*i}:{247+4*i}], v253 offset:{4096*i + 2048}
        {PTs('s36', 's37')}
        s_add_u32 s36, s36, {32*i}
        {PGs('s37')}
        s_mul_i32 s37, s37, 43
        s_add_u32 s37, s37, s36
        s_lshl_b32 s37, s37, 12
        s_lshl_b32 s38, s{S_W}, 10
        s_add_u32 s37, s37, s38
        s_add_u32 s37, s37, {WS['WF2']}
        s_cmp_lt_u32 s36, 43
        s_cselect_b32 s{(13, 14)[i]}, s37, {INV}""")

def conv_epilogue(a):
    O = lambda i: 64 + 4 * i
    T = lambda i: 104 + 10 * i
    for i in range(4):
        kv = 96 + 2 * i
        a(f"""v_and_b32 v{T(i)}, 0xffff0000, v{kv+1}
        v_lshlrev_b32 v{T(i)+1}, 16, v{kv+1}
        v_and_b32 v{T(i)+2}, 0xffff0000, v{kv}
        v_lshlrev_b32 v{T(i)+3}, 16, v{kv}""")
    for i in range(4):
        a(f"""v_pk_fma_f32 v[{O(i)}:{O(i)+1}], v[{T(i)}:{T(i)+1}], v[20:21], v[{O(i)}:{O(i)+1}] op_sel_hi:[1,0,1]
        v_pk_fma_f32 v[{O(i)+2}:{O(i)+3}], v[{T(i)+2}:{T(i)+3}], v[20:21], v[{O(i)+2}:{O(i)+3}] op_sel_hi:[1,0,1]""")
    for i in range(4):
        a(f"""v_cvt_pk_bf16_f32 v{T(i)+4}, v{O(i)}, v{O(i)+1}
        v_cvt_pk_bf16_f32 v{T(i)+5}, v{O(i)+2}, v{O(i)+3}""")
    for i in range(4):
        a(f"""v_lshlrev_b32 v{T(i)}, 16, v{192+2*i}
        v_and_b32 v{T(i)+1}, 0xffff0000, v{192+2*i}
        v_lshlrev_b32 v{T(i)+2}, 16, v{193+2*i}
        v_and_b32 v{T(i)+3}, 0xffff0000, v{193+2*i}
        buffer_store_dwordx2 v[{T(i)+4}:{T(i)+5}], v14, {WSR}, s38 offen offset:{512*i} sc1""")
    for i in range(4):
        a(f"""v_lshlrev_b32 v{O(i)}, 16, v{T(i)+4}
        v_and_b32 v{O(i)+1}, 0xffff0000, v{T(i)+4}
        v_lshlrev_b32 v{O(i)+2}, 16, v{T(i)+5}
        v_and_b32 v{O(i)+3}, 0xffff0000, v{T(i)+5}
        v_pk_fma_f32 v[{T(i)+6}:{T(i)+7}], v[{T(i)}:{T(i)+1}], v[{200+4*i}:{201+4*i}], v[{216+4*i}:{217+4*i}]
        v_pk_fma_f32 v[{T(i)+8}:{T(i)+9}], v[{T(i)+2}:{T(i)+3}], v[{202+4*i}:{203+4*i}], v[{218+4*i}:{219+4*i}]""")
    for i in range(4):
        a(f"""v_pk_fma_f32 v[{T(i)+6}:{T(i)+7}], v[{T(i)+6}:{T(i)+7}], v[{O(i)}:{O(i)+1}], v[{T(i)}:{T(i)+1}]
        v_pk_fma_f32 v[{T(i)+8}:{T(i)+9}], v[{T(i)+8}:{T(i)+9}], v[{O(i)+2}:{O(i)+3}], v[{T(i)+2}:{T(i)+3}]""")
    for i in range(4):
        a(f"""v_cvt_pk_bf16_f32 v{O(i)}, v{T(i)+6}, v{T(i)+7}
        v_cvt_pk_bf16_f32 v{O(i)+1}, v{T(i)+8}, v{T(i)+9}
        buffer_store_dwordx2 v[{O(i)}:{O(i)+1}], v14, {WSR}, s39 offen offset:{512*i} sc1""")
    stamp(a, 8)

def emit_front4(a, hooks):
    blk_addr(a)
    a("s_waitcnt vmcnt(20)")
    blk_skun(a)
    a("s_waitcnt vmcnt(13)")
    stamp(a, 1)
    blk_kv(a)
    stamp(a, 2)
    a("s_mov_b32 s8, s5")
    a.nolog += 1
    a(f"""s_cmp_eq_u32 s{S_W}, 0
    s_cbranch_scc1 L_f_w0a""")
    w_stage_bulk(a)
    a(f"""s_waitcnt vmcnt(7)
    s_branch L_f_j1
    L_f_w0a:
    s_waitcnt vmcnt(0)
    L_f_j1:
    s_barrier
    s_cmp_lg_u32 s{S_W}, 0
    s_cbranch_scc1 L_f_s1
    s_add_u32 s36, s{S_GEN}, 1
    v_mov_b32 v16, s36
    v_mov_b32 v17, s{S_FLAG}
    s_mov_b64 exec, 1
    buffer_store_dword v16, v17, {WSR}, 0 offen sc1
    s_mov_b64 exec, -1
    L_f_s1:""")
    a.nolog -= 1
    stamp(a, 3)
    blk_hcop(a)
    a("v_and_b32 v1, 63, v0")
    a.nolog += 1
    a(f"""s_cmp_lg_u32 s{S_W}, 0
    s_cbranch_scc1 L_f_nx""")
    if SPREAD:
        a(f"""v_and_b32 v2, 7, v1
        v_lshlrev_b32 v2, 5, v2
        v_bfe_u32 v3, v1, 3, 2
        v_lshl_add_u32 v2, v3, 3, v2
        v_add_u32 v2, s60, v2
        v_lshlrev_b32 v2, 6, v2
        v_add_u32 v2, {WS['SYNC'] + SYNC_FLAGS}, v2""")
    else:
        a(f"""v_and_b32 v2, 31, v1
        s_lshl_b32 s36, s60, 5
        v_add_u32 v2, s36, v2
        v_lshlrev_b32 v2, 6, v2
        v_add_u32 v2, {WS['SYNC'] + SYNC_FLAGS}, v2""")
    wait_flags(a, 2, 1, 1, 18)
    a(f"""v_lshlrev_b32 v19, 4, v1
    s_lshl_b32 s36, s19, 13
    s_add_u32 s36, s36, {WS['XR']}""")
    for ch in range(2):
        for i in range(4):
            a(f"""s_mov_b32 m0, {ch * CB + XRO + i * 1024}
            buffer_load_dwordx4 v19, {WSR}, s36 offen sc1 lds
            s_add_u32 s36, s36, 1024""")
    a.label("L_f_nx")
    a.nolog -= 1
    stamp(a, 4)
    blk_qperm(a)
    blk_stats(a)
    a(f"""v_mov_b32 v101, s11
    s_mov_b32 s37, {WS['C0']-WS['RS0']}
    s_mov_b64 exec, 1
    buffer_store_dwordx2 v[102:103], v101, {WSR}, 0 offen sc1
    buffer_store_dwordx2 v[104:105], v101, {WSR}, s37 offen sc1
    s_mov_b64 exec, -1
    s_waitcnt lgkmcnt(0)
    s_barrier
    ds_read_b128 v[72:75], v5 offset:8192
    ds_read_b128 v[76:79], v7 offset:{8192+4096}
    s_waitcnt lgkmcnt(1)
    buffer_store_dwordx4 v[72:75], v8, {WSR}, s8 offen sc1
    s_waitcnt lgkmcnt(0)
    buffer_store_dwordx4 v[76:79], v15, {WSR}, s8 offen sc1""")
    emit_ffn_roles(a)
    a(f"""v_and_b32 v11, 15, v1
    v_lshrrev_b32 v12, 4, v1
    v_lshlrev_b32 v13, 4, v11
    v_lshl_add_u32 v13, v12, 2, v13
    s_lshl_b32 s36, s67, 10
    v_add_u32 v13, s36, v13
    v_lshlrev_b32 v14, 1, v13
    v_lshlrev_b32 v15, 2, v13
    v_lshlrev_b32 v22, 6, v1
    v_add_u32 v22, {WS['SYNC'] + SYNC_FLAGS}, v22
    v_add_u32 v17, 1, v11
    v_and_b32 v18, 3, v17
    v_mul_u32_u24 v18, {HCS}, v18
    v_lshrrev_b32 v17, 2, v17
    v_lshlrev_b32 v17, 3, v17
    v_lshl_add_u32 v17, v12, 4, v17
    v_add_u32 v17, v17, v18
    s_lshl_b32 s36, s67, 8
    s_add_u32 s37, s36, s62
    v_add_u32 v17, s37, v17
    v_lshlrev_b32 v18, 5, v11
    v_lshlrev_b32 v19, 4, v12
    v_sub_u32 v18, v19, v18
    s_add_u32 s37, s37, {XRO + 480}
    v_add_u32 v18, s37, v18""")
    for r in range(32, 64): a(f"v_mov_b32 v{r}, 0")
    a(f"""s_cmp_lg_u32 s{S_W}, 0
    s_cbranch_scc1 L_f_nw
    s_waitcnt vmcnt(4)
    L_f_nw:
    s_barrier""")
    stamp(a, 6)
    pre = []
    for i in range(4):
        pre.append(f"buffer_load_dwordx2 v[{192+2*i}:{193+2*i}], v14, {WSR}, s10 offen offset:{512*i} sc1")
    for i in range(4):
        pre.append(f"buffer_load_dwordx4 v[{200+4*i}:{203+4*i}], v15, {WSR}, s8 offen offset:{1024*i} sc1")
        pre.append(f"buffer_load_dwordx4 v[{216+4*i}:{219+4*i}], v15, {WSR}, s9 offen offset:{1024*i} sc1")
    def load_frags(setbase, bi):
        ops = []
        for x in range(8):
            A = setbase + 4 * x
            ops.append(f"ds_read_b64 v[{A}:{A+1}], v17 offset:{512*x + 64*bi}")
            ops.append(f"ds_read_b64 v[{A+2}:{A+3}], v17 offset:{512*x + 64*bi + 8}")
            B = setbase + 32 + 4 * x
            ops.append(f"ds_read_b128 v[{B}:{B+3}], v18 offset:{512*(7-x) + 64*bi}")
        return ops
    sets = (64, 128)
    for op in load_frags(sets[0], 0): a(op)
    def flagloads(off):
        for i in range(4):
            if i == 0: a(f"buffer_load_dword v24, v22, {WSR}, 0 offen offset:{off} sc1")
            else: a(f"s_movk_i32 s39, {4096*i}\nbuffer_load_dword v{24+i}, v22, {WSR}, s39 offen offset:{off} sc1")
    for bi in range(4):
        cur = sets[bi & 1]
        nxt = load_frags(sets[(bi + 1) & 1], bi + 1) if bi < 3 else []
        if bi == 2:
            signal(a, 2, tv=(24, 25))
            a("v_and_b32 v9, 63, v0")
            blk_wtr_hi(a)
        if bi == 3:
            flagloads(0)
            member_flag_off(a, 23, "0", 16)
            a(f"buffer_load_dword v28, v23, {WSR}, 0 offen offset:4 sc1")
            a("s_waitcnt lgkmcnt(0)")
            for i in range(5):
                a(f"buffer_store_dwordx4 {vr(232+4*i)}, v254, {WSR}, s{(6, 7, 12, 13, 14)[i]} offen sc1")
        a("s_waitcnt lgkmcnt(0)")
        pairs = sorted([(jt, aa) for jt in range(8) for aa in range(jt + 1)], key=lambda p: (p[1], p[0]))
        k = 0
        for idx, (jt, aa) in enumerate(pairs):
            A = cur + 4 * aa; B = cur + 32 + 4 * (jt - aa); C = 32 + 4 * jt
            a(f"v_mfma_f32_16x16x32_bf16 v[{C}:{C+3}], v[{A}:{A+3}], v[{B}:{B+3}], v[{C}:{C+3}]")
            if idx < 24 and k < len(nxt):
                a(nxt[k]); k += 1
    stamp(a, 7)
    a("s_waitcnt vmcnt(5)")
    a(f"""v_cmp_eq_u32 vcc, s{S_IDW}, v28
    s_cmp_eq_u64 vcc, -1
    s_cselect_b32 s{S_LOC}, 1, 0""")
    flagcheck(a, 2, (24, 25, 26, 27), 22, "L_c_ok1", tmp=(29, 30))
    a(f"s_mov_b32 s8, {WS['RS0']}\ns_mov_b32 s9, {WS['C0']}\ns_add_u32 s10, s65, {WS['QT']}")
    for op in pre: a(op)
    a(f"""v_lshlrev_b32 v4, 4, v1
    s_lshl_b32 s36, s{S_W}, 12
    s_add_u32 s36, s36, {EXO}
    v_add_u32 v5, s36, v4
    s_xor_b32 s36, s36, 4096
    v_add_u32 v6, s36, v4
    s_cmp_eq_u32 s67, 0
    s_cbranch_scc0 L_c_x1""")
    for half in range(2):
        own, oth = (32, 48) if half == 0 else (48, 32)
        for i in range(4): a(f"ds_write_b128 v5, v[{oth+4*i}:{oth+4*i+3}] offset:{1024*i}")
        a("s_waitcnt vmcnt(12) lgkmcnt(0)\ns_barrier")
        for i in range(4): a(f"ds_read_b128 v[{80+4*i}:{83+4*i}], v6 offset:{1024*i}")
        a("s_waitcnt lgkmcnt(0)")
        for i in range(4):
            for h in range(2):
                a(f"v_pk_add_f32 v[{64+4*i+2*h}:{65+4*i+2*h}], v[{own+4*i+2*h}:{own+4*i+2*h+1}], v[{80+4*i+2*h}:{81+4*i+2*h}]")
        if half == 0:
            a("s_branch L_c_x2\nL_c_x1:")
    a.label("L_c_x2")
    a.nolog += 1
    a(f"""s_cmp_lg_u32 s{S_W}, 0
    s_cbranch_scc1 L_f_wf
    s_add_u32 s36, s{S_GEN}, 1
    v_mov_b32 v24, s36
    v_mov_b32 v25, s{S_FLAG}
    s_mov_b64 exec, 1
    buffer_store_dword v24, v25, {WSR}, 0 offen offset:8 sc1
    s_mov_b64 exec, -1
    L_f_wf:""")
    a.nolog -= 1
    a(f"""v_lshlrev_b32 v7, 5, v11
    v_lshl_add_u32 v7, v12, 3, v7
    s_lshl_b32 s36, s67, 11
    s_sub_u32 s37, s62, s36
    s_add_u32 s37, s37, {XRO + 4088 - 1536}
    v_sub_u32 v7, s37, v7""")
    for i in range(4): a(f"ds_read_b64 v[{96+2*i}:{97+2*i}], v7 offset:{512*(3-i)}")
    a(f"""s_lshr_b32 s39, s65, 12
    s_mul_i32 s39, s39, {XP}
    s_add_u32 s38, s39, {WS['YT']}
    s_add_u32 s39, s39, {WS['X1T']}
    s_waitcnt vmcnt(0) lgkmcnt(0)""")
    conv_epilogue(a)

V_CS = 32; V_X3 = 44; V_ACC = 52; V_XB = 100; V_T = 116; V_HB = 116; V_W2 = 144
def w13(kb, t): b = (kb * 3 + t) * 4; return f"a[{b}:{b+3}]"
def w2(i, dt):
    idx = i * 4 + dt
    if idx < 16: b = 192 + idx * 4; return f"a[{b}:{b+3}]"
    b = V_W2 + (idx - 16) * 4; return f"v[{b}:{b+3}]"

def emit_ffn_roles_early(a):
    pass
def emit_ffn_roles(a):
    if HALF:
        a(f"""s_and_b32 s22, s60, 1
        s_lshr_b32 s20, s60, 1
        s_lshl_b32 s20, s20, 2
        s_and_b32 s36, s61, 3
        s_or_b32 s20, s20, s36
        s_lshr_b32 s23, s61, 2
        s_lshl_b32 s21, s22, 3
        s_or_b32 s21, s21, s23""")
    else:
        a(f"""s_and_b32 s20, s61, 1
        s_lshl_b32 s36, s60, 1
        s_or_b32 s20, s20, s36
        s_lshr_b32 s21, s61, 1
        s_lshr_b32 s22, s21, 3
        s_and_b32 s23, s21, 7""")
    for t in range(3):
        a(f"""s_mul_i32 s36, s{S_W}, 3
        s_add_u32 s36, s36, {t}
        s_mul_i32 s37, s21, 11
        s_add_u32 s37, s37, s36
        s_cmp_lt_u32 s36, 11
        s_cselect_b32 s38, s37, 0x7fff
        s_cmp_lt_u32 s38, 172
        s_cselect_b32 s39, 1, 0
        s_lshl_b32 s{40+t}, s37, 14
        s_add_u32 s{40+t}, s{40+t}, {WS['WF13']}
        s_lshr_b32 s{44+t}, s37, 1
        s_lshl_b32 s{44+t}, s{44+t}, 9
        s_and_b32 s37, s37, 1
        s_lshl_b32 s37, s37, 8
        s_add_u32 s{44+t}, s{44+t}, s37
        s_cmp_eq_u32 s39, 1
        s_cselect_b32 s{40+t}, s{40+t}, {INV}
        s_cselect_b32 s{44+t}, s{44+t}, {INV}""")
    a(f"""s_mul_i32 s36, s23, 43
    s_mul_i32 s37, s{S_W}, 11
    s_add_u32 s36, s36, s37
    s_lshl_b32 s48, s36, 12
    s_add_u32 s48, s48, {WS['WF2']}
    s_cmp_eq_u32 s{S_W}, 3
    s_cselect_b32 s49, {INV}, s48
    v_and_b32 v31, 63, v0
    v_lshlrev_b32 v31, 4, v31""")
def w13_loads(a):
    for kb in range(16):
        for t in range(3):
            a(f"s_add_u32 s36, s{40+t}, {kb*1024}\nbuffer_load_dwordx4 {w13(kb,t)}, v31, {WSR}, s36 offen sc1")
def w2_loads(a, lo, hi):
    for idx in range(lo, hi):
        i, dt = idx >> 2, idx & 3
        a(f"s_add_u32 s36, s{49 if i == 10 else 48}, {idx*1024}\nbuffer_load_dwordx4 {w2(i,dt)}, v31, {WSR}, s36 offen sc1")

def emit_cs(a, lo, hi):
    a(f"v_mov_b32 v{V_XB}, 0x3f803f80\nv_mov_b32 v{V_XB+1}, 0x3f803f80\nv_mov_b32 v{V_XB+2}, 0x3f803f80\nv_mov_b32 v{V_XB+3}, 0x3f803f80")
    for kb in range(lo, hi):
        for t in range(3):
            c = V_CS + 4 * t
            a(f"v_mfma_f32_16x16x32_bf16 {vr(c)}, {w13(kb,t)}, {vr(V_XB)}, {'0' if kb == 0 else vr(c)}")

def x1_dma_setup(a):
    a(f"""v_lshrrev_b32 v2, 3, v1
    v_bfe_u32 v3, v1, 1, 2
    v_bfe_u32 v6, v1, 4, 1
    v_xor_b32 v3, v3, v6
    s_and_b32 s36, s{S_W}, 2
    v_xor_b32 v3, s36, v3
    v_and_b32 v6, 1, v1
    v_lshlrev_b32 v6, 4, v6
    v_mul_u32_u24 v2, {XP}, v2
    v_add_u32 v6, v2, v6
    v_lshl_add_u32 v27, v3, 5, v6""")
def x1_dma_ops(hf):
    ops = [f"""s_mul_i32 s56, s{S_W}, {8 * XP}
    s_lshl_b32 s57, s20, 8
    s_add_u32 s56, s56, s57
    s_add_u32 s56, s56, {WS['X1T'] + hf * 128}
    s_lshl_b32 s57, s{S_W}, 10
    s_add_u32 s57, s57, {hf * 65536}"""]
    for n in range(16):
        ops.append(f"""s_add_u32 m0, s57, {n * 4096}
        buffer_load_dwordx4 v27, {WSR}, s56 offen sc1 lds
        s_add_u32 s56, s56, {32 * XP}""")
    return ops
def tiles_dma(a):
    a(f"""v_lshrrev_b32 v2, 3, v1
    v_and_b32 v3, 7, v1
    v_mul_u32_u24 v2, {XP}, v2
    v_lshl_add_u32 v2, v3, 4, v2
    s_mul_i32 s36, s23, {64 * XP}
    s_mul_i32 s37, s{S_W}, {16 * XP}
    s_add_u32 s36, s36, s37
    s_lshl_b32 s37, s20, 8
    s_add_u32 s36, s36, s37
    s_lshl_b32 s37, s22, 7
    s_add_u32 s36, s36, s37
    s_lshl_b32 s38, s{S_W}, 11""")
    for arr, lb in (('X1T', L_TX), ('YT', L_TY)):
        for i in range(2):
            a(f"""s_add_u32 s37, s36, {WS[arr] + i * 8 * XP}
            s_add_u32 m0, s38, {lb + i * 1024}
            buffer_load_dwordx4 v2, {WSR}, s37 offen sc1 lds""")
def x3_dma_ops(hf):
    ops = [f"""s_lshl_b32 s56, s20, 3
    s_add_u32 s56, s56, s{S_W}
    s_add_u32 s56, s56, {4*hf}
    s_lshl_b32 s56, s56, 14
    s_add_u32 s56, s56, {WS['X3']}
    s_lshl_b32 s57, s{S_W}, 14
    s_add_u32 s57, s57, {hf * 65536}"""]
    for n in range(16):
        ops.append(f"""s_add_u32 m0, s57, {n * 1024}
        buffer_load_dwordx4 v31, {WSR}, s56 offen sc1 lds
        s_add_u32 s56, s56, 1024""")
    return ops
def member_flag_off(a, vdst, base_member_sgpr_expr, nmemb):
    a(f"""v_and_b32 v{vdst}, {nmemb-1}, v1
    v_add_u32 v{vdst}, {base_member_sgpr_expr}, v{vdst}""")
    if HALF:
        a(f"""v_lshrrev_b32 v29, 3, v{vdst}
        v_and_b32 v{vdst}, 7, v{vdst}
        v_lshlrev_b32 v{vdst}, 2, v{vdst}
        v_lshl_add_u32 v{vdst}, v29, 5, v{vdst}
        s_lshr_b32 s36, s20, 2
        s_lshl_b32 s36, s36, 6
        s_and_b32 s37, s20, 3
        s_add_u32 s36, s36, s37""")
    else:
        a(f"""v_lshlrev_b32 v{vdst}, 1, v{vdst}
        s_lshr_b32 s36, s20, 1
        s_lshl_b32 s36, s36, 5
        s_and_b32 s37, s20, 1
        s_add_u32 s36, s36, s37""")
    a(f"""v_add_u32 v{vdst}, s36, v{vdst}
    v_lshlrev_b32 v{vdst}, 6, v{vdst}
    v_add_u32 v{vdst}, {WS['SYNC'] + SYNC_FLAGS}, v{vdst}""")

def stats_write(a, hf, vm, vsd):
    a(f"""v_rcp_f32 v24, v{vsd}
    v_mul_f32 v{V_T+1}, v{vsd}, v{vsd}
    v_sub_f32 v{V_T+2}, 0, v{vm}
    v_mul_f32 v{V_T}, 0xbfb8aa3b, v24
    v_mov_b32 v{V_T+3}, 0
    s_lshl_b32 s36, s{S_W}, 8
    s_add_u32 s36, s36, {L_ST + hf * 1024}
    v_lshl_add_u32 v25, v2, 4, s36
    ds_write_b128 v25, {vr(V_T)}""")
def st3_stats(a, hf):
    a(f"""s_lshl_b32 s36, s20, 3
    s_add_u32 s36, s36, s{S_W}
    s_add_u32 s36, s36, {4*hf}
    s_lshl_b32 s36, s36, 10
    s_add_u32 s36, s36, {WS['SYNC'] + SYNC_ST3}
    v_lshrrev_b32 v124, 4, v1
    v_lshlrev_b32 v124, 8, v124
    v_and_b32 v125, 15, v1
    v_lshl_add_u32 v124, v125, 3, v124
    buffer_load_dwordx2 v[120:121], v124, {WSR}, s36 offen sc1
    buffer_load_dwordx2 v[122:123], v124, {WSR}, s36 offen offset:128 sc1""")
def st3_finish(a, hf):
    a(f"""v_add_f32 v126, v120, v122
    v_add_f32 v127, v121, v123""")
    sum_q(a, 126, 120); sum_q(a, 127, 121)
    ln_core(a, 126, 127)
    a(f"""v_rcp_f32 v120, v127
    v_mul_f32 v117, v127, v127
    v_sub_f32 v118, 0, v126
    v_mul_f32 v116, 0xbfb8aa3b, v120
    v_mov_b32 v119, 0
    s_lshl_b32 s36, s{S_W}, 8
    s_add_u32 s36, s36, {L_ST + hf * 1024}
    v_lshl_add_u32 v124, v125, 4, s36
    ds_write_b128 v124, v[116:119]""")

def g1_addr(a, layer, hbase):
    tr = layer == 1
    a(f"""v_and_b32 v2, 15, v1
    v_lshrrev_b32 v3, 4, v1""")
    for x in range(4):
        a(f"""s_add_u32 s36, s{S_W}, {x}
        s_and_b32 s36, s36, 3""")
        if tr:
            a(f"""v_bfe_u32 v4, v1, 2, 2
            v_lshl_add_u32 v5, v3, 4, v4
            v_lshlrev_b32 v5, 7, v5
            v_lshrrev_b32 v4, 1, v4
            v_and_b32 v6, 1, v3
            v_lshl_or_b32 v4, v6, 1, v4
            v_xor_b32 v4, s36, v4
            v_lshl_add_u32 v5, v4, 5, v5
            v_and_b32 v6, 3, v1
            v_lshl_add_u32 v{8+x}, v6, 3, v5""")
        else:
            a(f"""s_lshl_b32 s37, s36, 14
            v_add_u32 v{8+x}, s37, v31""")
        a(f"""s_lshl_b32 s37, s36, 8
        s_add_u32 s37, s37, {L_ST}
        v_lshl_add_u32 v{15+x}, v2, 4, s37""")
    for p in range(2):
        a(f"""v_lshrrev_b32 v4, 5, v1
        v_add_u32 v4, s{S_W}, v4
        v_add_u32 v4, {2*p}, v4
        v_and_b32 v4, 3, v4
        v_mul_u32_u24 v5, {HT}, v4
        v_bfe_u32 v6, v1, 4, 1
        v_lshl_add_u32 v5, v6, 7, v5
        v_lshl_add_u32 v{12+p}, v2, 3, v5
        v_lshlrev_b32 v4, 8, v4
        v_lshl_add_u32 v4, v2, 4, v4
        v_add_u32 v{19+p}, {L_ST}, v4""")
    a(f"""s_mul_i32 s36, s20, {8*HT}
    s_add_u32 s36, s36, {hbase}""")
    for t in range(3): a(f"s_add_u32 s{52+t}, s{44+t}, s36")

def g1_sub(a, layer, sb, hook=None, cs_from=16):
    tr = layer == 1
    def rd(n):
        kb, x = n >> 2, n & 3
        B = V_XB + 4 * x
        if tr:
            off = (kb >> 1) * 8192 + (kb & 1) * 1024
            return [f"ds_read_b64_tr_b16 v[{B}:{B+1}], v{8+x} offset:{off}", f"ds_read_b64_tr_b16 v[{B+2}:{B+3}], v{8+x} offset:{off+512}"]
        return [f"ds_read_b128 {vr(B)}, v{8+x} offset:{kb*1024}"]
    per = 2 if tr else 1
    ONE, SA, SG = V_T, V_T + 4, V_T + 8
    if tr:
        for k in range(4): a(f"v_mov_b32 v{ONE+k}, 0x3f803f80")
    for n in range(3):
        for op in rd(n): a(op)
    for n in range(64):
        kb, x = n >> 2, n & 3
        if x == 0 and hook: hook(kb)
        infl = min(2, 63 - n)
        a(f"s_waitcnt lgkmcnt({infl*per})")
        B = V_XB + 4 * x
        for t in range(3):
            c = V_ACC + (x * 3 + t) * 4
            a(f"v_mfma_f32_16x16x32_bf16 {vr(c)}, {w13(kb,t)}, {vr(B)}, {'0' if kb == 0 else vr(c)}")
            if t == 0 and n + 3 < 64:
                for op in rd(n + 3): a(op)
        if tr and x == 1 and kb >= cs_from:
            for t in range(3):
                c = V_CS + 4 * t
                a(f"v_mfma_f32_16x16x32_bf16 {vr(c)}, {w13(kb,t)}, {vr(ONE)}, {vr(c)}")
        if tr and x == 0:
            a(f"v_mfma_f32_16x16x32_bf16 {vr(SA)}, {vr(ONE)}, {vr(B)}, {'0' if kb == 0 else vr(SA)}")
            a(f"v_mfma_f32_16x16x32_bf16 {vr(SG)}, {vr(B)}, {vr(B)}, {'0' if kb == 0 else vr(SG)}")
    if tr:
        a(f"""v_and_b32 v4, 3, v2
        v_cmp_eq_u32 vcc, 1, v4
        v_cndmask_b32 v23, v{SG}, v{SG+1}, vcc
        v_cmp_eq_u32 vcc, 2, v4
        v_cndmask_b32 v23, v23, v{SG+2}, vcc
        v_cmp_eq_u32 vcc, 3, v4
        v_cndmask_b32 v23, v23, v{SG+3}, vcc
        v_mov_b32 v22, v{SA}""")
        ln_core(a, 22, 23)
        a(f"""v_lshrrev_b32 v4, 2, v2
        v_cmp_eq_u32 vcc, v4, v3
        s_and_saveexec_b64 s[38:39], vcc""")
        stats_write(a, sb, 22, 23)
        a("s_mov_b64 exec, s[38:39]\ns_waitcnt lgkmcnt(0)\ns_barrier")

def g1_epi(a, sb):
    so = sb * 1024
    for x in range(4): a(f"ds_read_b32 v{V_T+2*x}, v{15+x} offset:{8+so}")
    for p in range(2): a(f"ds_read_b64 v[{V_T+8+2*p}:{V_T+9+2*p}], v{19+p} offset:{so}")
    a("s_waitcnt lgkmcnt(0)")
    A = lambda x, t: V_ACC + (x * 3 + t) * 4
    for t in range(3):
        cs = V_CS + 4 * t
        for x in range(4):
            for h in range(2):
                r = A(x, t) + 2 * h
                a(f"v_pk_fma_f32 v[{r}:{r+1}], v[{cs+2*h}:{cs+2*h+1}], v[{V_T+2*x}:{V_T+2*x+1}], v[{r}:{r+1}] op_sel_hi:[1,0,1]")
    for t in range(3):
        for p in range(2):
            for r in range(4): a(f"v_permlane32_swap_b32 v{A(2*p,t)+r}, v{A(2*p+1,t)+r}")
    for p in range(2):
        c1 = V_T + 8 + 2 * p
        T = lambda t: V_XB + 4 * t
        for t in range(3):
            for h in range(2):
                a(f"v_pk_mul_f32 v[{T(t)+2*h}:{T(t)+2*h+1}], v[{A(2*p,t)+2*h}:{A(2*p,t)+2*h+1}], v[{c1}:{c1+1}] op_sel_hi:[1,0]")
        for t in range(3):
            for r in range(4): a(f"v_exp_f32 v{T(t)+r}, v{T(t)+r}")
        for t in range(3):
            for h in range(2):
                g, u = A(2*p, t) + 2 * h, A(2*p+1, t) + 2 * h
                a(f"v_pk_mul_f32 v[{g}:{g+1}], v[{g}:{g+1}], v[{u}:{u+1}]")
        for t in range(3):
            for h in range(2):
                a(f"v_pk_fma_f32 v[{T(t)+2*h}:{T(t)+2*h+1}], v[{T(t)+2*h}:{T(t)+2*h+1}], v[{c1}:{c1+1}], v[{c1}:{c1+1}] op_sel:[0,1,1] op_sel_hi:[1,1,1]")
        for t in range(3):
            for r in range(4): a(f"v_rcp_f32 v{T(t)+r}, v{T(t)+r}")
        for t in range(3):
            for h in range(2):
                g = A(2*p, t) + 2 * h
                a(f"v_pk_mul_f32 v[{g}:{g+1}], v[{g}:{g+1}], v[{T(t)+2*h}:{T(t)+2*h+1}]")
        for t in range(3):
            g = A(2*p, t); u = A(2*p+1, t)
            a(f"""v_cvt_pk_bf16_f32 v{u}, v{g}, v{g+1}
            v_cvt_pk_bf16_f32 v{u+1}, v{g+2}, v{g+3}""")
        for t in range(3):
            u = A(2*p+1, t)
            a(f"buffer_store_dwordx2 v[{u}:{u+1}], v{12+p}, {WSR}, s{52+t} offen {LS('h')}")
def g1_next(a):
    for x in range(4): a(f"v_add_u32 v{8+x}, 0x10000, v{8+x}")
    for p in range(2): a(f"v_add_u32 v{12+p}, {4*HT}, v{12+p}")


NEG = (22, 24)
def epi_ops(P):
    p = P & 1; so = (P >> 1) * 1024
    A = lambda x, t: V_ACC + (x * 3 + t) * 4
    T = lambda t: V_T + 12 + 4 * t
    c1, ir = 26, 27
    ops = [f"ds_read_b32 v{NEG[0]}, v{15+2*p} offset:{8+so}", f"ds_read_b32 v{NEG[1]}, v{15+2*p+1} offset:{8+so}", f"ds_read_b64 v[26:27], v{19+p} offset:{so}"]
    ops += ["@gap"] * 10
    for t in range(3):
        for xl in range(2):
            for r in range(4): ops.append(f"v_fma_f32 v{A(2*p+xl,t)+r}, v{V_CS+4*t+r}, v{NEG[xl]}, v{A(2*p+xl,t)+r}")
    for t in range(3):
        for r in range(4): ops.append(f"v_permlane32_swap_b32 v{A(2*p,t)+r}, v{A(2*p+1,t)+r}")
    for t in range(3):
        for r in range(4): ops.append(f"v_mul_f32 v{T(t)+r}, v{A(2*p,t)+r}, v{c1}")
    for t in range(3):
        for r in range(4): ops.append(f"v_exp_f32 v{T(t)+r}, v{T(t)+r}")
        for r in range(4): ops.append(f"v_mul_f32 v{A(2*p,t)+r}, v{A(2*p,t)+r}, v{A(2*p+1,t)+r}")
    for t in range(3):
        for r in range(4): ops.append(f"v_fma_f32 v{T(t)+r}, v{T(t)+r}, v{ir}, v{ir}")
    for t in range(3):
        for r in range(4): ops.append(f"v_rcp_f32 v{T(t)+r}, v{T(t)+r}")
    for t in range(3):
        for r in range(4): ops.append(f"v_mul_f32 v{A(2*p,t)+r}, v{A(2*p,t)+r}, v{T(t)+r}")
    for t in range(3):
        g, u = A(2*p, t), A(2*p+1, t)
        ops += [f"v_cvt_pk_bf16_f32 v{u}, v{g}, v{g+1}", f"v_cvt_pk_bf16_f32 v{u+1}, v{g+2}, v{g+3}"]
    for t in range(3):
        u = A(2*p+1, t)
        ops.append(f"buffer_store_dwordx2 v[{u}:{u+1}], v{12+p}, {WSR}, s{52+t} offen {LS('h')}")
    ops.append(f"v_add_u32 v{12+p}, {4*HT}, v{12+p}")
    return ops

def epi_pk(a, P):
    p = P & 1; so = (P >> 1) * 1024
    A = lambda x, t: V_ACC + (x * 3 + t) * 4
    T = (lambda t: V_XB + 4 * t) if P == 3 else (lambda t: V_T + 12 + 4 * t)
    c1 = 26
    a(f"ds_read_b32 v{NEG[0]}, v{15+2*p} offset:{8+so}\nds_read_b32 v{NEG[1]}, v{15+2*p+1} offset:{8+so}\nds_read_b64 v[26:27], v{19+p} offset:{so}\ns_waitcnt lgkmcnt(0)")
    for t in range(3):
        cs = V_CS + 4 * t
        for xl in range(2):
            for h in range(2):
                r = A(2*p+xl, t) + 2 * h
                a(f"v_pk_fma_f32 v[{r}:{r+1}], v[{cs+2*h}:{cs+2*h+1}], v[{NEG[xl]}:{NEG[xl]+1}], v[{r}:{r+1}] op_sel_hi:[1,0,1]")
    for t in range(3):
        for r in range(4): a(f"v_permlane32_swap_b32 v{A(2*p,t)+r}, v{A(2*p+1,t)+r}")
    for t in range(3):
        for h in range(2):
            a(f"v_pk_mul_f32 v[{T(t)+2*h}:{T(t)+2*h+1}], v[{A(2*p,t)+2*h}:{A(2*p,t)+2*h+1}], v[{c1}:{c1+1}] op_sel_hi:[1,0]")
    for t in range(3):
        for r in range(4): a(f"v_exp_f32 v{T(t)+r}, v{T(t)+r}")
    for t in range(3):
        for h in range(2):
            g, u = A(2*p, t) + 2 * h, A(2*p+1, t) + 2 * h
            a(f"v_pk_mul_f32 v[{g}:{g+1}], v[{g}:{g+1}], v[{u}:{u+1}]")
    for t in range(3):
        for h in range(2):
            a(f"v_pk_fma_f32 v[{T(t)+2*h}:{T(t)+2*h+1}], v[{T(t)+2*h}:{T(t)+2*h+1}], v[{c1}:{c1+1}], v[{c1}:{c1+1}] op_sel:[0,1,1] op_sel_hi:[1,1,1]")
    for t in range(3):
        for r in range(4): a(f"v_rcp_f32 v{T(t)+r}, v{T(t)+r}")
    for t in range(3):
        for h in range(2):
            g = A(2*p, t) + 2 * h
            a(f"v_pk_mul_f32 v[{g}:{g+1}], v[{g}:{g+1}], v[{T(t)+2*h}:{T(t)+2*h+1}]")
    for t in range(3):
        g = A(2*p, t); u = A(2*p+1, t)
        a(f"v_cvt_pk_bf16_f32 v{u}, v{g}, v{g+1}\nv_cvt_pk_bf16_f32 v{u+1}, v{g+2}, v{g+3}")
    a.tag = f"E{P}"
    for t in range(3):
        u = A(2*p+1, t)
        a(f"buffer_store_dwordx2 v[{u}:{u+1}], v{12+p}, {WSR}, s{52+t} offen {LS('h')}")
    a.tag = None
    if P < 2: a(f"v_add_u32 v{12+p}, {4*HT}, v{12+p}")

def l1_stats(a, hf):
    SA, SG = V_T + 4, V_T + 8
    a(f"""v_and_b32 v4, 3, v2
    v_cmp_eq_u32 vcc, 1, v4
    v_cndmask_b32 v29, v{SG}, v{SG+1}, vcc
    v_cmp_eq_u32 vcc, 2, v4
    v_cndmask_b32 v29, v29, v{SG+2}, vcc
    v_cmp_eq_u32 vcc, 3, v4
    v_cndmask_b32 v29, v29, v{SG+3}, vcc
    v_mov_b32 v28, v{SA}""")
    ln_core(a, 28, 29)
    a(f"""v_rcp_f32 v5, v29
    v_mul_f32 v{SA+1}, v29, v29
    v_sub_f32 v{SA+2}, 0, v28
    v_mul_f32 v{SA}, 0xbfb8aa3b, v5
    v_mov_b32 v{SA+3}, 0
    s_lshl_b32 s36, s{S_W}, 8
    s_add_u32 s36, s36, {L_ST + hf * 1024}
    v_lshl_add_u32 v6, v2, 4, s36
    v_lshrrev_b32 v4, 2, v2
    v_cmp_eq_u32 vcc, v4, v3
    s_and_saveexec_b64 s[38:39], vcc
    ds_write_b128 v6, {vr(SA)}
    s_mov_b64 exec, s[38:39]
    s_waitcnt lgkmcnt(0)
    s_barrier""")

def g1_stream(a, layer, hook=None, cs_from=16, st=None):
    tr = layer == 1
    per = 2 if tr else 1
    def rd(N):
        P, n = N >> 5, N & 31
        kb, xl = n >> 1, n & 1
        x = 2 * (P & 1) + xl
        B = V_XB + 4 * (N & 3)
        if tr:
            off = (kb >> 1) * 8192 + (kb & 1) * 1024
            return [f"ds_read_b64_tr_b16 v[{B}:{B+1}], v{8+x} offset:{off}", f"ds_read_b64_tr_b16 v[{B+2}:{B+3}], v{8+x} offset:{off+512}"]
        return [f"ds_read_b128 {vr(B)}, v{8+x} offset:{kb*1024}"]
    ONE, SA, SG = V_T, V_T + 4, V_T + 8
    if tr:
        for k in range(4): a(f"v_mov_b32 v{ONE+k}, 0x3f803f80")
    for N in range(3):
        for op in rd(N): a(op)
    restart = set()
    for P in range(4):
        fill = epi_ops(P - 1) if (P > 0 and not (tr and L1PK)) else []
        if P == 1: fill = [f"v_add_u32 v{8+x}, 0x10000, v{8+x}" for x in (0, 1)] + fill
        if P == 2: fill = [f"v_add_u32 v{8+x}, 0x10000, v{8+x}" for x in (2, 3)][:0] + fill
        cost = lambda op: 2.0 if op.startswith(("v_exp", "v_rcp", "v_permlane")) else 1.0
        rate = sum(cost(o) for o in fill) / 92.0
        budget = 0.0
        for n in range(32):
            N = P * 32 + n
            kb, xl = n >> 1, n & 1
            if xl == 0 and hook: hook(P, kb)
            if P == 2 and n == 4:
                for x in (2, 3): a(f"v_add_u32 v{8+x}, 0x10000, v{8+x}")
            infl = min(2, 127 - N)
            a(f"s_waitcnt lgkmcnt({infl*per})")
            B = V_XB + 4 * (N & 3)
            x = 2 * (P & 1) + xl
            mf = [f"v_mfma_f32_16x16x32_bf16 {vr(V_ACC + (x*3+t)*4)}, {w13(kb,t)}, {vr(B)}, {'0' if kb == 0 else vr(V_ACC + (x*3+t)*4)}" for t in range(3)]
            if tr and P == 0 and xl == 1 and kb >= cs_from:
                mf += [f"v_mfma_f32_16x16x32_bf16 {vr(V_CS+4*t)}, {w13(kb,t)}, {vr(ONE)}, {vr(V_CS+4*t)}" for t in range(3)]
            if tr and P in (0, 2) and xl == 0:
                mf.append(f"v_mfma_f32_16x16x32_bf16 {vr(SA)}, {vr(ONE)}, {vr(B)}, {'0' if kb == 0 else vr(SA)}")
                mf.append(f"v_mfma_f32_16x16x32_bf16 {vr(SG)}, {vr(B)}, {vr(B)}, {'0' if kb == 0 else vr(SG)}")
            for i, m in enumerate(mf):
                a(m)
                if i == 0 and N + 3 < 128:
                    for op in rd(N + 3): a(op)
                if i < 3:
                    budget += rate
                    while fill and budget >= cost(fill[0]) - 0.5:
                        op = fill.pop(0); budget -= cost(op)
                        if op.startswith("buffer_store"): a.tag = f"E{P-1}"
                        if op != "@gap": a(op)
                        a.tag = None
        for op in fill:
            if op.startswith("buffer_store"): a.tag = f"E{P-1}"
            if op != "@gap": a(op)
            a.tag = None
        if st is not None and FINE == 'P': fstamp(a, st + P)
        if tr and P in (0, 2):
            l1_stats(a, P >> 1)
        if tr and L1PK and P < 3:
            epi_pk(a, P)
    epi_pk(a, 3)

def emit_g2(a, layer, hbase, etagA, st):
    ACC = V_ACC
    acc = lambda dt, x: ACC + (x * 4 + dt) * 4
    for x in range(4):
        a(f"""s_add_u32 s36, s{S_W}, {x}
        s_and_b32 s36, s36, 3
        s_lshl_b32 s37, s20, 3
        s_add_u32 s36, s36, s37
        s_lshl_b32 s37, s22, 2
        s_add_u32 s36, s36, s37
        s_mul_i32 s36, s36, {HT}
        s_mul_i32 s37, s{S_W}, {11*1024}
        s_add_u32 s36, s36, s37
        s_add_u32 s{56+x}, s36, {hbase}
        s_cmp_eq_u32 s{S_W}, 3
        s_cselect_b32 s{60+x}, {INV}, s{56+x}""")
    a(f"""s_lshl_b32 s51, s{S_W}, 15
    v_lshrrev_b32 v2, 4, v1
    v_and_b32 v3, 15, v1
    v_lshlrev_b32 v8, 7, v2
    v_lshl_add_u32 v8, v3, 3, v8
    v_add_u32 v8, s51, v8
    s_add_u32 s50, s{S_GEN}, s22
    s_add_u32 s50, s50, {etagA}""")
    def su():
        member_flag_off(a, 9, "0", 16)
    wg_wait(a, su, 9, 1, None, V_HB, etag=50)
    stamp(a, st)
    for x in range(4): a(f"v_add_u32 v{10+x}, s{56+x}, v31")
    a(f"""s_mov_b32 s56, 0
    s_movk_i32 s57, 4096
    s_movk_i32 s58, 8192
    s_cmp_eq_u32 s{S_W}, 3
    s_cselect_b32 s59, {INV}, s58""")
    def dma_m0(i, x): return f"s_add_u32 m0, s51, {x*8192 + ((i % 8) & ~3)*1024}"
    def dma_ld(i, x):
        sg = 59 if i == 10 else 56 + (i >> 2)
        return f"buffer_load_dwordx4 v{10+x}, {WSR}, s{sg} offen offset:{(i & 3)*1024} sc1 lds"
    for i in range(4):
        for x in range(4):
            a(dma_m0(i, x)); a.tag = f"g2_{layer}_{i}_{x}"; a(dma_ld(i, x)); a.tag = None
    q = [(i, x) for i in range(4, 11) for x in range(4)]
    def rd(n):
        i, x = n >> 2, n & 3
        B = V_HB + 4 * x; off = x * 8192 + (i % 8) * 1024
        return [f"ds_read_b64 v[{B}:{B+1}], v8 offset:{off}", f"ds_read_b64 v[{B+2}:{B+3}], v8 offset:{off+512}"]
    lastn = [None]
    def vmw(n):
        i, x = n >> 2, n & 3
        tag = f"g2_{layer}_{i}_{x}"
        pos = max(k for k, t in enumerate(a.vmlog) if t == tag)
        cnt = len(a.vmlog) - 1 - pos
        if lastn[0] is not None and pos <= lastn[0]: return
        a(f"s_waitcnt vmcnt({cnt})"); lastn[0] = pos
    vmw(2)
    stamp(a, st + 1)
    for n in range(3):
        for op in rd(n): a(op)
    for n in range(44):
        i, x = n >> 2, n & 3
        infl = min(2, 43 - n)
        a(f"s_waitcnt lgkmcnt({infl*2})")
        B = V_HB + 4 * x
        for dt in range(4):
            c = acc(dt, x)
            a(f"v_mfma_f32_16x16x32_bf16 {vr(c)}, {w2(i,dt)}, {vr(B)}, {'0' if i == 0 else vr(c)}")
            if dt == 0 and n + 3 < 44:
                vmw(n + 3)
                for op in rd(n + 3): a(op)
            if q and dt == 1: a(dma_m0(*q[0]))
            if q and dt == 2:
                i_, x_ = q.pop(0)
                a.tag = f"g2_{layer}_{i_}_{x_}"; a(dma_ld(i_, x_)); a.tag = None
    assert not q
    stamp(a, st + 2)
    a(f"v_add_u32 v9, s51, v31")
    for x in range(1, 4):
        for dt in range(4):
            a(f"ds_write_b128 v9, {vr(acc(dt,x))} offset:{((x-1)*4+dt)*1024}")
    for x in range(1, 4):
        a(f"""s_sub_u32 s36, s{S_W}, {x}
        s_and_b32 s36, s36, 3
        s_lshl_b32 s36, s36, 15
        v_add_u32 v{9+x}, s36, v31""")
    a("s_waitcnt lgkmcnt(0)\ns_barrier")
    for x in range(1, 4):
        for dt in range(4):
            a(f"ds_read_b128 {vr(acc(dt,x))}, v{9+x} offset:{((x-1)*4+dt)*1024}")
    if layer == 1:
        a(f"""v_bfe_u32 v4, v1, 2, 2
        v_lshl_add_u32 v4, v2, 4, v4
        v_lshlrev_b32 v4, 7, v4
        v_and_b32 v5, 3, v1
        v_lshl_add_u32 v4, v5, 3, v4
        s_lshl_b32 s36, s{S_W}, 5
        s_add_u32 s36, s36, {L_TX}
        v_add_u32 v4, s36, v4""")
        P = V_HB; Yp = V_HB + 8
        for dt in range(4):
            a(f"ds_read_b64_tr_b16 v[{P+2*dt}:{P+2*dt+1}], v4 offset:{dt*512}")
        for dt in range(4):
            a(f"ds_read_b64_tr_b16 v[{Yp+2*dt}:{Yp+2*dt+1}], v4 offset:{8192+dt*512}")
        nl = 8
    else:
        P = V_X3; nl = 0
    for x in range(1, 4):
        a(f"s_waitcnt lgkmcnt({min(15, (3-x)*4 + nl)})")
        for dt in range(4):
            for h in range(2):
                c, o = acc(dt, 0) + 2 * h, acc(dt, x) + 2 * h
                a(f"v_pk_add_f32 v[{c}:{c+1}], v[{c}:{c+1}], v[{o}:{o+1}]")
    stamp(a, st + 3)
    O = ACC; X = ACC + 16; PK = ACC + 48
    a("s_waitcnt lgkmcnt(0)")
    for k in range(8):
        a(f"v_lshlrev_b32 v{X+2*k}, 16, v{P+k}\nv_and_b32 v{X+2*k+1}, 0xffff0000, v{P+k}")
    for k in range(8): a(f"v_cvt_pk_bf16_f32 v{PK+k}, v{O+2*k}, v{O+2*k+1}")
    for k in range(8):
        a(f"v_lshlrev_b32 v{O+2*k}, 16, v{PK+k}\nv_and_b32 v{O+2*k+1}, 0xffff0000, v{PK+k}")
    for k in range(8):
        a(f"v_pk_add_f32 v[{O+2*k}:{O+2*k+1}], v[{O+2*k}:{O+2*k+1}], v[{X+2*k}:{X+2*k+1}]")
    for k in range(8): a(f"v_cvt_pk_bf16_f32 v{PK+k}, v{O+2*k}, v{O+2*k+1}")
    if layer == 2:
        a(f"""s_load_dwordx2 s[32:33], s[0:1], {ARG['out']}
        s_lshl_b32 s36, s20, 7
        s_lshl_b32 s37, s22, 6
        s_add_u32 s36, s36, s37
        s_lshl_b32 s37, s{S_W}, 4
        s_add_u32 s36, s36, s37
        s_lshl_b32 s36, s36, 10
        s_lshl_b32 s37, s23, 7
        s_add_u32 s36, s36, s37
        v_lshlrev_b32 v4, 10, v3
        v_lshl_add_u32 v4, v2, 5, v4
        s_waitcnt lgkmcnt(0)
        s_mov_b32 s34, {S*D*2}
        s_mov_b32 s35, 0x20000
        buffer_store_dwordx4 {vr(PK)}, v4, s[32:35], s36 offen {OUTF}
        buffer_store_dwordx4 {vr(PK+4)}, v4, s[32:35], s36 offen offset:16 {OUTF}""")
        return
    a(f"v_mov_b32 v22, 0\nv_mov_b32 v23, 0\nv_mov_b32 v21, 0x3f803f80\nv_mov_b32 v26, 0\nv_mov_b32 v27, 0")
    for k in range(0, 8, 2):
        a(f"""v_dot2_f32_bf16 v22, v{PK+k}, v21, v22
        v_dot2_f32_bf16 v23, v{PK+k}, v{PK+k}, v23
        v_dot2_f32_bf16 v26, v{PK+k+1}, v21, v26
        v_dot2_f32_bf16 v27, v{PK+k+1}, v{PK+k+1}, v27""")
    a("v_add_f32 v22, v22, v26\nv_add_f32 v23, v23, v27")
    a(f"""v_mov_b32 v24, v22
    v_mov_b32 v25, v23
    v_permlane16_swap_b32 v22, v24
    v_permlane16_swap_b32 v23, v25
    v_add_f32 v22, v22, v24
    v_add_f32 v23, v23, v25
    v_mov_b32 v24, v22
    v_mov_b32 v25, v23
    v_permlane32_swap_b32 v22, v24
    v_permlane32_swap_b32 v23, v25
    v_add_f32 v22, v22, v24
    v_add_f32 v23, v23, v25""")
    L = a.newlabel("hop")
    a(f"""s_add_u32 s50, s{S_GEN}, 12
    v_mov_b32 v24, s50
    v_mov_b32 v25, 0
    s_lshl_b32 s36, s20, 1
    s_add_u32 s36, s36, s22
    s_lshl_b32 s36, s36, 13
    s_lshl_b32 s37, s{S_W}, 8
    s_add_u32 s36, s36, s37
    s_add_u32 s36, s36, {WS['SYNC'] + SYNC_ST2}
    s_lshl_b32 s37, s23, 10
    s_add_u32 s37, s37, s36
    v_lshlrev_b32 v4, 4, v3
    s_mov_b64 exec, 0xffff""")
    dstore(a, f"buffer_store_dwordx4 v[22:25], v4, {WSR}, s37 offen {{F}}")
    a(f"""s_mov_b64 exec, -1
    v_lshl_add_u32 v5, v2, 11, v4""")
    for k in range(8):
        a(f"v_lshlrev_b32 v{X+2*k}, 16, v{PK+k}\nv_and_b32 v{X+2*k+1}, 0xffff0000, v{PK+k}")
    a(f"""s_mov_b32 s38, 0
    {L}_p:
    buffer_load_dwordx4 v[{O}:{O+3}], v5, {WSR}, s36 offen sc1
    buffer_load_dwordx4 v[{O+4}:{O+7}], v5, {WSR}, s36 offen offset:1024 sc1
    s_add_u32 s38, s38, 1
    s_waitcnt vmcnt(0)
    v_cmp_eq_u32 vcc, s50, v{O+2}
    v_cmp_eq_u32 s[40:41], s50, v{O+6}
    s_and_b64 vcc, vcc, s[40:41]
    s_cmp_gt_u32 s38, 200000
    s_cbranch_scc1 {L}_d
    s_cmp_eq_u64 vcc, -1
    s_cbranch_scc0 {L}_p
    {L}_d:
    v_add_f32 v22, v{O}, v{O+4}
    v_add_f32 v23, v{O+1}, v{O+5}
    v_mov_b32 v24, v22
    v_mov_b32 v25, v23
    v_permlane16_swap_b32 v22, v24
    v_permlane16_swap_b32 v23, v25
    v_add_f32 v22, v22, v24
    v_add_f32 v23, v23, v25
    v_mov_b32 v24, v22
    v_mov_b32 v25, v23
    v_permlane32_swap_b32 v22, v24
    v_permlane32_swap_b32 v23, v25
    v_add_f32 v22, v22, v24
    v_add_f32 v23, v23, v25""")
    ln_core(a, 22, 23)
    a(f"""v_rcp_f32 v24, v23
    v_sub_f32 v22, 0, v22
    v_mul_f32 v26, v22, v24""")
    Yf = ACC
    for k in range(8):
        a(f"v_lshlrev_b32 v{Yf+2*k}, 16, v{Yp+k}\nv_and_b32 v{Yf+2*k+1}, 0xffff0000, v{Yp+k}")
    N = ACC + 32
    for k in range(8):
        a(f"v_pk_fma_f32 v[{N+2*k}:{N+2*k+1}], v[{X+2*k}:{X+2*k+1}], v[24:25], v[26:27] op_sel_hi:[1,0,0]")
    for k in range(8):
        a(f"v_pk_fma_f32 v[{N+2*k}:{N+2*k+1}], v[{N+2*k}:{N+2*k+1}], v[{Yf+2*k}:{Yf+2*k+1}], v[{X+2*k}:{X+2*k+1}]")
    for k in range(8):
        a(f"v_cvt_pk_bf16_f32 v{V_X3+k}, v{N+2*k}, v{N+2*k+1}")
    a(f"""s_lshl_b32 s36, s20, 3
    s_lshl_b32 s37, s22, 2
    s_add_u32 s36, s36, s37
    s_add_u32 s36, s36, s{S_W}
    s_lshl_b32 s38, s36, 10
    s_lshl_b32 s36, s36, 14
    s_lshl_b32 s37, s23, 11
    s_add_u32 s36, s36, s37
    s_add_u32 s36, s36, {WS['X3']}""")
    dstore(a, f"""buffer_store_dwordx4 {vr(V_X3)}, v31, {WSR}, s36 offen {{F}}
    buffer_store_dwordx4 {vr(V_X3+4)}, v31, {WSR}, s36 offen offset:1024 {{F}}""", "x3")
    a(f"v_mov_b32 v22, 0\nv_mov_b32 v23, 0\nv_mov_b32 v26, 0\nv_mov_b32 v27, 0")
    for k in range(0, 8, 2):
        a(f"""v_dot2_f32_bf16 v22, v{V_X3+k}, v21, v22
        v_dot2_f32_bf16 v23, v{V_X3+k}, v{V_X3+k}, v23
        v_dot2_f32_bf16 v26, v{V_X3+k+1}, v21, v26
        v_dot2_f32_bf16 v27, v{V_X3+k+1}, v{V_X3+k+1}, v27""")
    a(f"""v_add_f32 v22, v22, v26
    v_add_f32 v23, v23, v27
    v_mov_b32 v24, v22
    v_mov_b32 v25, v23
    v_permlane16_swap_b32 v22, v24
    v_permlane16_swap_b32 v23, v25
    v_add_f32 v22, v22, v24
    v_add_f32 v23, v23, v25
    v_mov_b32 v24, v22
    v_mov_b32 v25, v23
    v_permlane32_swap_b32 v22, v24
    v_permlane32_swap_b32 v23, v25
    v_add_f32 v22, v22, v24
    v_add_f32 v23, v23, v25
    s_lshl_b32 s37, s23, 7
    s_add_u32 s38, s38, s37
    s_add_u32 s38, s38, {WS['SYNC'] + SYNC_ST3}
    v_lshlrev_b32 v4, 3, v3
    s_mov_b64 exec, 0xffff""")
    dstore(a, f"buffer_store_dwordx2 v[22:23], v4, {WSR}, s38 offen {{F}}")
    a("s_mov_b64 exec, -1")

NW13L = 12
NW13A = 12
NW13B = 39
PACE = 5
CHK1 = 2
FINE = None
NW2E = 0
SLEEP = 0
CNT3 = False
OUTF = ''
FRONT4 = False
UPFRONT = 1
L1PK = False
WFIRST = False
PROBE = None
CODEPF = True
DBG = 0
def build():
    a = Asm()
    global stamp
    if FINE:
        real = common.stamp
        def stamp_(a_, i):
            if i == 0: real(a_, 0)
        stamp = stamp_
        def fst(a_, i):
            real(a_, i)
            if FINE == 'P':
                a_(f"s_memtime s[70:71]\ns_waitcnt lgkmcnt(0)\ns_mov_b32 s{72+14+i}, s70")
        globals()['fstamp'] = fst
    else:
        globals()['fstamp'] = lambda a_, i: None
    kbegin(a, KN)
    emit_prologue(a)
    emit_prep_loads(a)
    if False:
        pass
    a("s_waitcnt lgkmcnt(0)")
    a(f"""s_getreg_b32 s36, hwreg(HW_REG_XCC_ID, 0, 4)
    s_add_u32 s{S_IDW}, s{S_GEN}, 13
    s_lshl_b32 s{S_IDW}, s{S_IDW}, 4
    s_or_b32 s{S_IDW}, s{S_IDW}, s36
    s_mov_b32 s{S_LOC}, 0
    s_cmp_lg_u32 s{S_W}, 0
    s_cbranch_scc1 L_noid
    v_mov_b32 v174, s{S_IDW}
    v_mov_b32 v175, s{S_FLAG}
    s_mov_b64 exec, 1
    buffer_store_dword v174, v175, {WSR}, 0 offen offset:4 sc1
    s_mov_b64 exec, -1
    L_noid:""")
    w13ops = [f"s_add_u32 s36, s{40+t}, {kb*1024}\nbuffer_load_dwordx4 {w13(kb,t)}, v31, {WSR}, s36 offen sc1" for kb in range(16) for t in range(3)]
    if FRONT4:
        emit_front4(a, None)
        signal(a, 3)
        stamp(a, 9)
        a("v_and_b32 v1, 63, v0")
        a(f"v_lshlrev_b32 v22, 6, v1\nv_add_u32 v22, {WS['SYNC'] + SYNC_FLAGS}, v22")
        for i in range(4):
            if i == 0: a(f"buffer_load_dword v24, v22, {WSR}, 0 offen offset:8 sc1")
            else: a(f"s_movk_i32 s39, {4096*i}\nbuffer_load_dword v{24+i}, v22, {WSR}, s39 offen offset:8 sc1")
        a("s_waitcnt vmcnt(0)")
        flagcheck(a, 1, (24, 25, 26, 27), 22, "L_w_ok", tmp=(29, 30), off=8)
        for op in w13ops[:NW13B]: a(op)
    else:
        emit_prep_compute(a)
        emit_ffn_roles(a)
        hooks = dict(conv_loop_extra=w13ops[:NW13L], n_conv_total_w=NW13L, conv_epi_extra=w13ops[NW13L:NW13A])
        emit_conv(a, hooks)
        if CNT3:
            a(f"""s_waitcnt vmcnt(0)
            s_barrier
            s_cmp_lg_u32 s{S_W}, 0
            s_cbranch_scc1 L_s3
            s_and_b32 s36, s2, 15
            s_lshl_b32 s36, s36, 7
            s_add_u32 s36, s36, {WS['SYNC'] + SYNC_CNT}
            v_mov_b32 v2, 1
            v_mov_b32 v3, s36
            s_mov_b64 exec, 1
            buffer_atomic_add v2, v3, {WSR}, 0 offen
            s_mov_b64 exec, -1
            L_s3:""")
        else:
            signal(a, 3)
        stamp(a, 9)
        a("v_and_b32 v1, 63, v0")
        for op in w13ops[NW13A:NW13B]: a(op)
    if not FRONT4: emit_cs(a, 0, NW13A // 3)
    x1_dma_setup(a)
    g1_addr(a, 1, WS['H1'])
    def su3():
        a(f"v_lshlrev_b32 v14, 6, v1\nv_add_u32 v14, {WS['SYNC'] + SYNC_FLAGS}, v14")
    if CNT3:
        a(f"""s_cmp_lg_u32 s{S_W}, 3
        s_cbranch_scc1 L_w3j
        v_and_b32 v14, 15, v1
        v_lshlrev_b32 v14, 7, v14
        v_add_u32 v14, {WS['SYNC'] + SYNC_CNT}, v14
        s_mov_b32 s38, 0
        L_w3p:
        buffer_load_dword v{V_T}, v14, {WSR}, 0 offen sc1
        s_add_u32 s38, s38, 1
        s_waitcnt vmcnt(0)
        v_cmp_eq_u32 vcc, 16, v{V_T}
        s_cmp_gt_u32 s38, 200000
        s_cbranch_scc1 L_w3j
        s_cmp_eq_u64 vcc, -1
        s_cbranch_scc0 L_w3p
        L_w3j:
        s_barrier""")
    else:
        wg_wait(a, su3, 14, 4, 3, V_T, wave=3)
    stamp(a, 10)
    x1ops = x1_dma_ops(0)
    a.tag = 'w13b'; a.vmlog.append('w13b')
    for n, op in enumerate(x1ops):
        a.tag = 'x0a' if n <= 8 else 'x0b'; a(op)
    w2q = list(range(44))
    a.tag = 'w2'
    for _ in range(NW2E):
        i = w2q.pop(0); w2_loads(a, i, i + 1)
    a.tag = None
    nC = 48 - NW13B
    a.vmlog.remove('w13b') if False else None
    pos = a.vmlog.index('w13b')
    a(f"s_waitcnt vmcnt({len(a.vmlog) - 1 - pos})")
    emit_cs(a, 0 if FRONT4 else NW13A // 3, NW13B // 3)
    a.vmneed('x0a'); a("s_barrier")
    stamp(a, 11)
    w13c = [(w13ops[i], f"wc{i // 3}") for i in range(NW13B, 48)]
    kbC = NW13B // 3
    x1h1 = x1_dma_ops(1)
    def hook1(P, kb):
        if P == 0:
            if kb == 6: a.vmneed('x0b'); a("s_barrier")
            if nC and kb >= kbC: a.vmneed(f"wc{kb}")
            for _ in range(3):
                if w13c:
                    op, tg = w13c.pop(0); a.tag = tg; a(op); a.tag = None
            k0 = 8 - (0 if nC > 9 else 4)
            if kb == k0: a(x1h1.pop(0))
            if kb >= k0:
                a.tag = 'x1h'
                for _ in range(2):
                    if x1h1: a(x1h1.pop(0))
                a.tag = None
        if P == 1 and kb == 0:
            tiles_dma(a)
            a("v_and_b32 v2, 15, v1\nv_lshrrev_b32 v3, 4, v1")
        if P == 1 and kb == 13:
            a.vmneed('x1h'); a("s_barrier")
        if (P, kb) == ((2, 8) if L1PK else (3, 6)):
            signal(a, 4, tv=(30, 29), local=True, vm='E1')
        if P >= 1 and w2q and not (P == 1 and kb < 2):
            i = w2q.pop(0); a.tag = 'w2'; w2_loads(a, i, i + 1); a.tag = None
    if FINE == 'P': fstamp(a, 1)
    g1_stream(a, 1, hook1, cs_from=kbC, st=2)
    if FINE == 'P': fstamp(a, 6)
    for i in w2q: w2_loads(a, i, i + 1)
    signal(a, 5, local=True)
    stamp(a, 14)
    emit_g2(a, 1, WS['H1'], 4, 15)
    signal(a, 6, local=True)
    stamp(a, 19)
    g1_addr(a, 2, WS['H2'])
    def su6a(): member_flag_off(a, 14, "0", 8)
    wg_wait(a, su6a, 14, 1, 6, V_T)
    stamp(a, 20)
    st3_stats(a, 0)
    for op in x3_dma_ops(0): a(op)
    a("s_waitcnt vmcnt(16)")
    st3_finish(a, 0)
    a("s_waitcnt vmcnt(8) lgkmcnt(0)\ns_barrier")
    stamp(a, 21)
    x3h1 = x3_dma_ops(1)
    def hook2(P, kb):
        if P == 0:
            if kb == 0:
                member_flag_off(a, 14, "8", 8)
                a(f"buffer_load_dword v30, v14, {WSR}, 0 offen sc1")
            if kb == 6: a("s_waitcnt vmcnt(1)\ns_barrier")
            if kb == 10:
                L = a.newlabel("x3b")
                a(f"""s_waitcnt vmcnt(0)
                s_add_u32 s37, s{S_GEN}, 6
                v_subrev_u32 v30, s37, v30
                v_cmp_gt_u32 vcc, 16, v30
                s_cmp_eq_u64 vcc, -1
                s_cbranch_scc1 {L}""")
                wait_flags(a, 14, 1, 6, 30)
                a.label(L)
                st3_stats(a, 1)
                a(x3h1.pop(0))
            if kb >= 10:
                for _ in range(2): a(x3h1.pop(0))
        if P == 1:
            if kb < 2:
                for _ in range(2): a(x3h1.pop(0))
            if kb == 6:
                a("s_waitcnt vmcnt(16)")
                st3_finish(a, 1)
            if kb == 13: a("s_waitcnt vmcnt(3) lgkmcnt(3)\ns_barrier" if False else "s_waitcnt vmcnt(0)\ns_barrier")
        if P == 3 and kb == 6:
            signal(a, 7, tv=(30, 29), local=True)
    if FINE == 'P': fstamp(a, 7)
    g1_stream(a, 2, hook2, st=8)
    if FINE == 'P': fstamp(a, 12)
    signal(a, 8, local=True)
    stamp(a, 23)
    emit_g2(a, 2, WS['H2'], 7, 24)
    a(f"""s_or_b32 s36, s2, s{S_W}
    s_cmp_lg_u32 s36, 0
    s_cbranch_scc1 L_nogen
    s_add_u32 s36, s{S_GEN}, 16
    v_mov_b32 v2, s36
    v_mov_b32 v3, {WS['SYNC'] + SYNC_GEN}
    s_mov_b64 exec, 1
    buffer_store_dword v2, v3, {WSR}, 0 offen
    s_mov_b64 exec, -1
    L_nogen:""")
    if PROBE is not None:
        pa, pb, K = PROBE
        a(f"""s_waitcnt vmcnt(0) lgkmcnt(0)
        s_memrealtime s[70:71]
        s_waitcnt lgkmcnt(0)
        s_mov_b32 s100, s70
        s_or_b32 s36, s2, s{S_W}
        s_cmp_lg_u32 s36, 0
        s_cbranch_scc1 L_end
        s_sub_u32 s36, s{72+pb if pb < 28 else 100}, s{72+pa}
        s_mul_i32 s36, s36, {K}
        s_add_u32 s36, s36, s100
        L_spin:
        s_memrealtime s[70:71]
        s_waitcnt lgkmcnt(0)
        s_sub_u32 s37, s70, s36
        s_cmp_lt_i32 s37, 0
        s_cbranch_scc1 L_spin
        s_branch L_end""")
    if common.STAMPS:
        a("s_waitcnt vmcnt(0)"); stamp(a, 28)
    if DBG:
        sel = [1, 2, 3, 4, 5, 6, 7, 9, 10, 11, 14, 15, 19, 21, 23, 28]
        a(f"""s_cmp_lg_u32 s2, {DBG - 1}
        s_cbranch_scc1 L_end
        s_cmp_lg_u32 s{S_W}, 0
        s_cbranch_scc1 L_end
        s_load_dwordx2 s[68:69], s[0:1], {ARG['dbg']}
        s_waitcnt lgkmcnt(0)
        s_mov_b64 exec, 1""")
        for i, k in enumerate(sel):
            a(f"s_sub_u32 s70, s{72+k}, s72\nv_mov_b32 v2, s70\nv_mov_b32 v3, {4*i}\nglobal_store_dword v3, v2, s[68:69]")
    else:
        stamp_flush(a, 0, 29)
    a.label("L_end")
    a("s_endpgm")
    a.label("L_codeend")
    a("s_endpgm")
    txt = header([(None, 256, 256, LDS_TOTAL)]) + a.text() + kernel_desc(KN, 512, 102, 256)
    return txt, a
if __name__ == "__main__":
    common.STAMPS = 's' in sys.argv[2:]
    LOCAL = any(x.startswith('l') for x in sys.argv[2:])
    for x in sys.argv[2:]:
        if x.startswith('l'): LOCSET.update(['flag'] + x[1:].split('+'))
    HALF = 'h' in sys.argv[2:]
    UPFRONT = 0 if 'noup' in sys.argv[2:] else (2 if 'up2' in sys.argv[2:] else 1)
    FRONT4 = 'f4' in sys.argv[2:]
    if FRONT4: UPFRONT = 2
    SPREAD = 'nosp' not in sys.argv[2:]
    L1PK = 'pk' in sys.argv[2:]
    for x in sys.argv[2:]:
        if x.startswith('w:'): NW13L, NW13A, NW13B = (int(y) for y in x[2:].split(','))
    for x in sys.argv[2:]:
        if x.startswith('p:'): PROBE = tuple(int(y) for y in x[2:].split(','))
    CODEPF = 'nopf' not in sys.argv[2:]
    NW2E = max([int(x[3:]) for x in sys.argv[2:] if x.startswith('w2:')] + [0])
    SLEEP = max([int(x[2:]) for x in sys.argv[2:] if x.startswith('sl')] + [0])
    CNT3 = 'cnt' in sys.argv[2:]
    OUTF = 'sc1' if 'osc1' in sys.argv[2:] else ('nt' if 'ont' in sys.argv[2:] else '')
    if 'nox3' in sys.argv[2:]: DYNSET.discard('x3')
    DYN = 'nodyn' not in sys.argv[2:]
    DBG = max([int(x[1:]) + 1 for x in sys.argv[2:] if x[0] == 'd' and x[1:].isdigit()] + [0])
    FINE = 'A' if 'fa' in sys.argv[2:] else ('B' if 'fb' in sys.argv[2:] else ('P' if 'fp' in sys.argv[2:] else ('F' if 'ff' in sys.argv[2:] else None)))
    txt, a = build()
    open(sys.argv[1], "w").write(txt)
    print("nops:", a.nnop, "bytes", len(txt))
```

```python
import sys
from asmgen import *
from common import *
import common

KN = NAME + "_kernel"
WSR = "s[28:31]"
INV = "0x80000000"
S_GEN, S_W, S_FLAG = 3, 18, 64
LOCAL = False
HALF = False
S_LOC, S_IDW = 17, 16
DYN = True
DYNSET = {"flag", "x3", "hop"}
def LS(kind="flag"): return "" if (LOCAL and kind in LOCSET) else "sc1"
LOCSET = set()
def dstore(a, text, kind="flag"):
    if not DYN or kind not in DYNSET or LOCAL:
        a(text.replace("{F}", LS(kind))); return
    L = a.newlabel("ds")
    a(f"s_cmp_eq_u32 s{S_LOC}, 1\ns_cbranch_scc1 {L}_l")
    a(text.replace("{F}", "sc1"))
    a(f"s_branch {L}_e\n{L}_l:")
    a.nolog += 1
    a(text.replace("{F}", ""))
    a.nolog -= 1
    a.label(f"{L}_e")
def vr(b, n=4): return f"v[{b}:{b+n-1}]"

SPREAD = True
def PGs(d):
    return f"s_lshr_b32 {d}, s2, 3\n    s_and_b32 {d}, {d}, 7" if SPREAD else f"s_mov_b32 {d}, s60"
def PTs(d, t):
    return f"s_lshr_b32 {d}, s2, 6\n    s_lshl_b32 {d}, {d}, 3\n    s_and_b32 {t}, s2, 7\n    s_add_u32 {d}, {d}, {t}" if SPREAD else f"s_mov_b32 {d}, s61"
def rnd_bf16(a, v):
    a(f"v_cvt_pk_bf16_f32 v{v}, v{v}, v{v}\nv_and_b32 v{v}, 0xffff0000, v{v}")
def sum_q(a, v, t):
    a(f"""v_mov_b32 v{t}, v{v}
    v_permlane16_swap_b32 v{v}, v{t}
    v_add_f32 v{v}, v{v}, v{t}
    v_mov_b32 v{t}, v{v}
    v_permlane32_swap_b32 v{v}, v{t}
    v_add_f32 v{v}, v{v}, v{t}""")
def allsum64(a, v, t):
    for r in (8, 4, 2, 1):
        a(f"v_add_f32_dpp v{v}, v{v}, v{v} row_ror:{r} row_mask:0xf bank_mask:0xf")
    sum_q(a, v, t)
def ln_core(a, vsum, vsq):
    a(f"""v_mul_f32 v{vsum}, 0x3b000000, v{vsum}
    v_mul_f32 v{vsq}, 0x3b000000, v{vsq}
    v_fma_f32 v{vsq}, -v{vsum}, v{vsum}, v{vsq}
    v_max_f32 v{vsq}, 0, v{vsq}""")
    rnd_bf16(a, vsq)
    a(f"v_add_f32 v{vsq}, 0x3727c5ac, v{vsq}")
    rnd_bf16(a, vsq)
    a(f"v_sqrt_f32 v{vsq}, v{vsq}")
    rnd_bf16(a, vsq)
    rnd_bf16(a, vsum)
def signal(a, e, tv=(2, 3), barrier=True, local=False, vm=0):
    L = a.newlabel("sg")
    a(f"""s_add_u32 s36, s{S_GEN}, {e}
    v_mov_b32 v{tv[0]}, s36
    v_mov_b32 v{tv[1]}, s{S_FLAG}""")
    if isinstance(vm, str): a.vmneed(vm)
    else: a(f"s_waitcnt vmcnt({vm})")
    if barrier: a("s_barrier")
    a.nolog += 1
    a(f"""s_cmp_lg_u32 s{S_W}, 0
    s_cbranch_scc1 {L}
    s_mov_b64 exec, 1""")
    if local: dstore(a, f"buffer_store_dword v{tv[0]}, v{tv[1]}, {WSR}, 0 offen {{F}}")
    else: a(f"buffer_store_dword v{tv[0]}, v{tv[1]}, {WSR}, 0 offen sc1")
    a(f"""s_mov_b64 exec, -1
    {L}:""")
    a.nolog -= 1
def wait_flags(a, voff, nld, e, T, etag=None):
    L = a.newlabel("wf")
    if etag is None:
        a(f"s_add_u32 s37, s{S_GEN}, {e}"); etag = 37
    a(f"s_mov_b32 s38, 0")
    a.nolog += 1
    a.label(L)
    for i in range(nld):
        if i == 0: a(f"buffer_load_dword v{T}, v{voff}, {WSR}, 0 offen sc1")
        else: a(f"s_movk_i32 s39, {4096*i}\nbuffer_load_dword v{T+i}, v{voff}, {WSR}, s39 offen sc1")
    a("s_add_u32 s38, s38, 1\ns_waitcnt vmcnt(0)")
    for k in range(nld):
        a(f"v_subrev_u32 v{T+k}, s{etag}, v{T+k}")
    for k in range(1, nld): a(f"v_max_u32 v{T}, v{T}, v{T+k}")
    a(f"""v_cmp_gt_u32 vcc, 16, v{T}
    s_cmp_gt_u32 s38, 200000
    s_cbranch_scc1 {L}_x
    s_cmp_eq_u64 vcc, -1
    s_cbranch_scc1 {L}_x""")
    if SLEEP and nld > 1: a(f"s_sleep {SLEEP}")
    a(f"""s_branch {L}
    {L}_x:""")
    a.nolog -= 1
def flagcheck(a, e, regs, voff, label, tmp, off=0):
    a(f"""s_add_u32 s37, s{S_GEN}, {e}
    v_subrev_u32 v{tmp[0]}, s37, v{regs[0]}
    v_subrev_u32 v{tmp[1]}, s37, v{regs[1]}
    v_max_u32 v{tmp[0]}, v{tmp[0]}, v{tmp[1]}
    v_subrev_u32 v{tmp[1]}, s37, v{regs[2]}
    v_max_u32 v{tmp[0]}, v{tmp[0]}, v{tmp[1]}
    v_subrev_u32 v{tmp[1]}, s37, v{regs[3]}
    v_max_u32 v{tmp[0]}, v{tmp[0]}, v{tmp[1]}
    v_cmp_gt_u32 vcc, 16, v{tmp[0]}
    s_cmp_eq_u64 vcc, -1
    s_cbranch_scc1 {label}
    s_mov_b32 s38, 0
    {label}_p:""")
    a.nolog += 1
    for i in range(4):
        if i == 0: a(f"buffer_load_dword v{regs[0]}, v{voff}, {WSR}, 0 offen offset:{off} sc1")
        else: a(f"s_movk_i32 s39, {4096*i}\nbuffer_load_dword v{regs[i]}, v{voff}, {WSR}, s39 offen offset:{off} sc1")
    a(f"""s_add_u32 s38, s38, 1
    s_waitcnt vmcnt(0)
    v_subrev_u32 v{tmp[0]}, s37, v{regs[0]}
    v_subrev_u32 v{tmp[1]}, s37, v{regs[1]}
    v_max_u32 v{tmp[0]}, v{tmp[0]}, v{tmp[1]}
    v_subrev_u32 v{tmp[1]}, s37, v{regs[2]}
    v_max_u32 v{tmp[0]}, v{tmp[0]}, v{tmp[1]}
    v_subrev_u32 v{tmp[1]}, s37, v{regs[3]}
    v_max_u32 v{tmp[0]}, v{tmp[0]}, v{tmp[1]}
    v_cmp_gt_u32 vcc, 16, v{tmp[0]}
    s_cmp_gt_u32 s38, 200000
    s_cbranch_scc1 {label}
    s_cmp_eq_u64 vcc, -1
    s_cbranch_scc0 {label}_p
    {label}:""")
    a.nolog -= 1
def wg_wait(a, setup, voff, nld, e, T, etag=None, wave=0):
    L = a.newlabel("ww")
    a(f"s_cmp_lg_u32 s{S_W}, {wave}\ns_cbranch_scc1 {L}")
    setup()
    wait_flags(a, voff, nld, e, T, etag)
    a.label(L)
    a("s_barrier")

HCS = 4160; XRO = 4 * HCS; CB = XRO + 4608; EXO = 49152
PL = 65536
PW = PL + 16384
W3OFF = 6144 + 32
L_TX = 131072; L_TY = L_TX + 8192; L_ST = L_TY + 8192
LDS_TOTAL = L_ST + 2048

def emit_prologue(a):
    a(f"""s_cmp_ge_u32 s2, 256
    s_cbranch_scc1 L_end""")
    emit_codepf(a)
    a(f"""s_load_dwordx4 s[4:7], s[0:1], {ARG['q']}
    s_load_dwordx4 s[8:11], s[0:1], {ARG['v']}
    s_load_dwordx4 s[12:15], s[0:1], {ARG['h']}
    s_load_dwordx2 s[16:17], s[0:1], {ARG['ws']}
    s_load_dwordx4 s[52:55], s[0:1], {ARG['w1']}
    s_load_dwordx2 s[56:57], s[0:1], {ARG['w2']}
    v_lshrrev_b32 v3, 6, v0
    v_and_b32 v1, 7, v0
    v_readfirstlane_b32 s{S_W}, v3
    s_and_b32 s60, s2, 7
    s_lshr_b32 s61, s2, 3
    v_lshrrev_b32 v2, 3, v0
    {PGs('s36')}
    s_lshl_b32 s36, s36, 7
    {PTs('s37', 's38')}
    s_lshl_b32 s37, s37, 16
    s_add_u32 s36, s36, s37
    v_lshlrev_b32 v4, 4, v1
    v_lshlrev_b32 v5, 11, v2
    v_add3_u32 v4, v4, v5, s36
    s_lshl_b32 s{S_FLAG}, s60, 5
    s_add_u32 s{S_FLAG}, s{S_FLAG}, s61
    s_mov_b32 s19, s{S_FLAG}
    s_lshl_b32 s{S_FLAG}, s{S_FLAG}, 6
    s_add_u32 s{S_FLAG}, s{S_FLAG}, {WS['SYNC'] + SYNC_FLAGS}
    s_waitcnt lgkmcnt(0)""")
    srd(a, 20, 4, S * D * 2)
    srd(a, 24, 6, S * D * 2)
    srd(a, 32, 8, S * D * 2)
    srd(a, 40, 10, D * 8)
    srd(a, 28, 16, WS['END'])
    a(f"""s_add_u32 s36, s16, {WS['SYNC'] + SYNC_GEN}
    s_addc_u32 s37, s17, 0
    s_load_dword s{S_GEN}, s[36:37], 0""")
    stamp(a, 0)

def emit_prep_loads(a):
    a(f"""v_and_b32 v9, 63, v0
    s_lshr_b32 s66, s{S_W}, 1
    s_and_b32 s67, s{S_W}, 1""")
    if WFIRST: emit_prep_loadsW(a)
    a(f"""{PGs('s36')}
    s_lshl_b32 s36, s36, 9
    v_lshlrev_b32 v8, 6, v1
    v_add_u32 v8, s36, v8
    buffer_load_dwordx4 v[44:47], v8, s[40:43], 0 offen
    buffer_load_dwordx4 v[48:51], v8, s[40:43], 0 offen offset:16
    buffer_load_dwordx4 v[52:55], v8, s[40:43], 0 offen offset:32
    buffer_load_dwordx4 v[56:59], v8, s[40:43], 0 offen offset:48
    v_subrev_u32 v5, 3072, v4
    v_subrev_u32 v6, 2048, v4
    v_subrev_u32 v7, 1024, v4
    buffer_load_dwordx4 v[16:19], v5, s[24:27], 0 offen
    buffer_load_dwordx4 v[20:23], v6, s[24:27], 0 offen
    buffer_load_dwordx4 v[24:27], v7, s[24:27], 0 offen
    buffer_load_dwordx4 v[28:31], v4, s[24:27], 0 offen
    buffer_load_dwordx4 v[32:35], v4, s[24:27], 0 offen offset:1024
    buffer_load_dwordx4 v[36:39], v4, s[32:35], 0 offen
    buffer_load_dwordx4 v[40:43], v4, s[32:35], 0 offen offset:1024""")
    if UPFRONT:
        emit_prep_loads2(a)
        emit_prep_loadsQ(a)
        emit_statrows(a)
        if UPFRONT == 1: emit_prep_loadsW(a)

def emit_statrows(a):
    a(f"""v_lshlrev_b32 v10, 4, v9
    s_lshl_b32 s36, s2, 13
    s_lshl_b32 s37, s{S_W}, 11
    s_add_u32 s36, s36, s37
    v_add_u32 v10, s36, v10
    buffer_load_dwordx4 v[68:71], v10, s[20:23], 0 offen
    buffer_load_dwordx4 v[72:75], v10, s[20:23], 0 offen offset:1024""")

def emit_prep_loadsW(a):
    a(f"""s_cmp_eq_u32 s66, 0
    s_cselect_b32 s52, s52, s54
    s_cselect_b32 s53, s53, s55
    s_mov_b32 s54, {D*F*2}
    s_mov_b32 s55, 0x20000
    s_mov_b32 s58, {D*F*2}
    s_mov_b32 s59, 0x20000
    s_mul_i32 s62, s60, {64*2752}
    s_mul_i32 s63, s61, 96
    s_add_u32 s62, s62, s63
    s_mul_i32 s63, s67, 192
    v_add_u32 v176, s63, v9
    s_mul_i32 s36, s66, {W3OFF}
    s_lshl_b32 s63, s63, 4
    s_add_u32 s36, s36, s63
    s_add_u32 s36, s36, {PW}""")
    for i in range(3):
        a(f"""v_add_u32 v177, {64*i}, v176
        v_mul_u32_u24 v178, 43691, v177
        v_lshrrev_b32 v178, 18, v178
        v_mul_u32_u24 v179, 6, v178
        v_sub_u32 v179, v177, v179
        v_mul_u32_u24 v178, 2752, v178
        v_lshl_add_u32 v{184+i}, v179, 4, v178
        s_add_u32 m0, s36, {1024*i}
        buffer_load_dwordx4 v{184+i}, s[52:55], s62 offen lds""")
    a(f"""v_lshrrev_b32 v178, 3, v9
    v_and_b32 v179, 7, v9
    v_lshlrev_b32 v178, 10, v178
    v_lshl_add_u32 v187, v179, 4, v178
    s_lshl_b32 s63, s{S_W}, 13
    {PTs('s36', 's37')}
    s_lshl_b32 s36, s36, 15
    s_add_u32 s36, s36, s63
    {PGs('s63')}
    s_lshl_b32 s63, s63, 7
    s_add_u32 s36, s36, s63
    s_lshl_b32 s63, s{S_W}, 10
    s_add_u32 s63, s63, {PW + 2*6144 + 64}
    s_mov_b32 m0, s63
    buffer_load_dwordx4 v187, s[56:59], s36 offen lds
    s_add_u32 s36, s36, {32*32*1024}
    s_add_u32 m0, s63, 4096
    buffer_load_dwordx4 v187, s[56:59], s36 offen lds""")

def emit_prep_loadsQ(a):
    a(f"""buffer_load_dwordx4 v[60:63], v4, s[20:23], 0 offen
    buffer_load_dwordx4 v[64:67], v4, s[20:23], 0 offen offset:1024""")
def emit_prep_loads2(a):
    a(f"""s_lshl_b32 s65, s19, 1
    s_add_u32 s65, s65, s66
    s_lshl_b32 s37, s65, 1
    s_lshl_b32 s65, s65, 12""")
    srd(a, 44, 12, 4096, offreg=65)
    srd(a, 48, 14, D * 2)
    a(f"""v_lshlrev_b32 v172, 4, v9
    s_lshl_b32 s36, s67, 11
    v_add_u32 v172, s36, v172
    buffer_load_dwordx4 v[192:195], v172, s[44:47], 0 offen
    buffer_load_dwordx4 v[196:199], v172, s[44:47], 0 offen offset:4
    buffer_load_dwordx4 v[200:203], v172, s[44:47], 0 offen offset:8
    buffer_load_dwordx4 v[204:207], v172, s[44:47], 0 offen offset:1024
    buffer_load_dwordx4 v[208:211], v172, s[44:47], 0 offen offset:1028
    buffer_load_dwordx4 v[212:215], v172, s[44:47], 0 offen offset:1032
    v_bfe_u32 v219, v9, 3, 2
    v_and_b32 v220, 7, v9
    v_lshlrev_b32 v13, 1, v220
    v_add_u32 v13, v13, v219
    v_subrev_u32 v13, 16, v13
    v_lshlrev_b32 v13, 1, v13
    v_add_u32 v14, 2, v13
    buffer_load_ushort v216, v13, s[44:47], 0 offen
    buffer_load_ushort v217, v14, s[44:47], 0 offen
    v_mov_b32 v173, s37
    buffer_load_ushort v218, v173, s[48:51], 0 offen""")

def emit_codepf(a):
    if CODEPF:
        a(f"""s_getpc_b64 s[68:69]
        L_pc:
        s_sub_u32 s68, s68, L_pc-{KN}
        s_subb_u32 s69, s69, 0
        v_and_b32 v190, 15, v0
        s_lshr_b32 s36, s2, 3
        s_lshl_b32 s36, s36, 4
        v_add_u32 v190, s36, v190
        v_lshlrev_b32 v190, 7, v190
        v_min_u32 v190, L_codeend-{KN}-4, v190
        global_load_dword v188, v190, s[68:69]""")

def emit_prep_compute(a):
    a(f"""v_sub_u32 v11, 31, v2
    v_lshlrev_b32 v12, 2, v1
    v_xor_b32 v11, v11, v12
    v_lshlrev_b32 v11, 2, v11
    v_lshlrev_b32 v13, 10, v1
    v_add_u32 v11, v11, v13
    v_add_u32 v11, {PL}, v11
    v_xor_b32 v12, v2, v12
    v_lshlrev_b32 v12, 2, v12
    v_add_u32 v12, v12, v13
    v_add_u32 v12, {PL + 8192}, v12
    """)
    a(f"s_waitcnt vmcnt({(25 if UPFRONT == 1 else 20) if UPFRONT else 7})")
    for j in range(8):
        a(f"""v_lshlrev_b32 v{80+j}, 16, v{44+2*j}
        v_and_b32 v{88+j}, 0xffff0000, v{44+2*j}
        v_lshlrev_b32 v{96+j}, 16, v{45+2*j}
        v_and_b32 v{104+j}, 0xffff0000, v{45+2*j}""")
    a(f"s_waitcnt vmcnt({(18 if UPFRONT == 1 else 13) if UPFRONT else 0})")
    stamp(a, 1)
    for i in range(5):
        for p in range(4):
            a(f"""v_lshlrev_b32 v{112+8*i+2*p}, 16, v{16+4*i+p}
            v_and_b32 v{113+8*i+2*p}, 0xffff0000, v{16+4*i+p}""")
    for row in range(2):
        for p in range(4):
            d = 152 + 8 * row + 2 * p
            a(f"v_pk_mul_f32 v[{d}:{d+1}], v[{112+8*row+2*p}:{113+8*row+2*p}], v[{104+2*p}:{105+2*p}]")
    for tt, tap in ((1, 2), (2, 1), (3, 0)):
        for row in range(2):
            for p in range(4):
                d = 152 + 8 * row + 2 * p
                k = 112 + 8 * (row + tt) + 2 * p
                s_ = 80 + 8 * tap + 2 * p
                a(f"v_pk_fma_f32 v[{d}:{d+1}], v[{k}:{k+1}], v[{s_}:{s_+1}], v[{d}:{d+1}]")
    for row in range(2):
        for p in range(4):
            a(f"""v_lshlrev_b32 v{112+8*row+2*p}, 16, v{36+4*row+p}
            v_and_b32 v{113+8*row+2*p}, 0xffff0000, v{36+4*row+p}""")
    for row in range(2):
        for p in range(4):
            d = 152 + 8 * row + 2 * p
            a(f"v_pk_mul_f32 v[{d}:{d+1}], v[{d}:{d+1}], v[{112+8*row+2*p}:{113+8*row+2*p}]")
    for j in range(8):
        a(f"v_cvt_pk_bf16_f32 v{80+j}, v{160+j}, v{152+j}")
    for j in range(8):
        a(f"ds_write_b32 v11, v{80+j} offset:{128*j}")
    a(f"""v_lshrrev_b32 v3, 6, v0
    v_xor_b32 v5, v1, v3
    v_lshlrev_b32 v5, 4, v5
    v_lshlrev_b32 v6, 7, v2
    v_add_u32 v5, v5, v6
    v_add_u32 v5, {PL}, v5
    v_xor_b32 v7, 64, v5
    {PGs('s36')}
    s_lshl_b32 s36, s36, 18
    {PTs('s37', 's38')}
    s_lshl_b32 s37, s37, 7
    s_sub_u32 s4, s36, s37
    s_add_u32 s4, s4, {WS['XR'] + 1984*2}
    s_add_u32 s5, s36, s37
    s_add_u32 s5, s5, {WS['QT']}
    v_lshlrev_b32 v8, 12, v2
    v_lshlrev_b32 v15, 4, v1
    v_add_u32 v8, v8, v15
    v_add_u32 v15, 0x20000, v8
    s_waitcnt lgkmcnt(0)
    s_barrier
    ds_read_b128 v[16:19], v5
    ds_read_b128 v[20:23], v7 offset:4096
    s_waitcnt lgkmcnt(1)
    buffer_store_dwordx4 v[16:19], v8, {WSR}, s4 offen {LS('xr')}
    s_waitcnt lgkmcnt(0)
    buffer_store_dwordx4 v[20:23], v15, {WSR}, s4 offen {LS('xr')}""")
    stamp(a, 2)
    if UPFRONT != 1: emit_prep_loadsW(a)
    if not UPFRONT: emit_prep_loadsQ(a)
    L = a.newlabel("sg1")
    a(f"""s_waitcnt vmcnt({(0 if UPFRONT == 1 else 5) if UPFRONT else 7})
    s_barrier
    s_cmp_lg_u32 s{S_W}, 0
    s_cbranch_scc1 {L}
    s_add_u32 s36, s{S_GEN}, 1
    v_mov_b32 v16, s36
    v_mov_b32 v17, s{S_FLAG}
    s_mov_b64 exec, 1
    buffer_store_dword v16, v17, {WSR}, 0 offen sc1
    s_mov_b64 exec, -1
    {L}:""")
    stamp(a, 3)
    if FINE == 'F': fstamp(a, 9)
    if not UPFRONT:
        emit_statrows(a)
        emit_prep_loads2(a)
    NPF = 0
    if UPFRONT == 2:
        if FINE == 'F': fstamp(a, 6)
        pass
        if FINE == 'F': fstamp(a, 7)
        a(f"""s_mul_i32 s62, s66, {CB}
        v_lshlrev_b32 v4, 4, v9
        s_lshl_b32 s36, s67, 11
        s_add_u32 s36, s36, s62
        s_add_u32 s36, s36, 32
        v_add_u32 v4, s36, v4""")
        for p in range(2):
            L0, L2, L4 = 192 + 12 * p, 196 + 12 * p, 200 + 12 * p
            for j in range(4):
                a(f"v_alignbit_b32 v{112+8*p+j}, v{L2+j}, v{L0+j}, 16")
                a(f"v_alignbit_b32 v{116+8*p+j}, v{L4+j}, v{L2+j}, 16")
            a(f"""ds_write_b128 v4, v[{L0}:{L0+3}] offset:{1024*p}
            ds_write_b128 v4, v[{112+8*p}:{115+8*p}] offset:{1024*p + HCS}
            ds_write_b128 v4, v[{L2}:{L2+3}] offset:{1024*p + 2*HCS}
            ds_write_b128 v4, v[{116+8*p}:{119+8*p}] offset:{1024*p + 3*HCS}""")
        a(f"""v_lshl_or_b32 v216, v217, 16, v216
        v_mul_u32_u24 v13, {HCS}, v219
        v_lshl_add_u32 v13, v220, 2, v13
        v_add_u32 v13, s62, v13
        ds_write_b32 v13, v216
        v_lshlrev_b32 v20, 16, v218
        v_mov_b32 v92, 0
        v_mov_b32 v93, 0
        v_mov_b32 v94, 0
        v_mov_b32 v95, 0
        v_and_b32 v16, 31, v9
        v_lshlrev_b32 v16, 4, v16
        v_add_u32 v16, s62, v16
        ds_write_b128 v16, v[92:95] offset:{XRO+4096}
        s_waitcnt lgkmcnt(0)""")
        if FINE == 'F': fstamp(a, 2)
        pass
        if FINE == 'F': fstamp(a, 3)
        a("s_mov_b32 s36, 0x05040100\ns_mov_b32 s37, 0x07060302")
        for p in range(4):
            a(f"""v_perm_b32 v{88+2*p}, v{64+p}, v{60+p}, s36
            v_perm_b32 v{89+2*p}, v{64+p}, v{60+p}, s37""")
        for j in range(8):
            a(f"ds_write_b32 v12, v{88+j} offset:{128*j}")
        if FINE == 'F': fstamp(a, 4)
        pass
        if FINE == 'F': fstamp(a, 5)
        a("v_mov_b32 v14, 0x3f803f80")
        for row in range(2):
            su, sq = 96 + 2 * row, 97 + 2 * row
            a(f"v_mov_b32 v{su}, 0\nv_mov_b32 v{sq}, 0")
        for p in range(4):
            for row in range(2):
                su, sq = 96 + 2 * row, 97 + 2 * row; b = 68 + 4 * row
                a(f"v_dot2_f32_bf16 v{su}, v{b+p}, v14, v{su}\nv_dot2_f32_bf16 v{sq}, v{b+p}, v{b+p}, v{sq}")
        for r in (8, 4, 2, 1):
            for v in (96, 97, 98, 99):
                a(f"v_add_f32_dpp v{v}, v{v}, v{v} row_ror:{r} row_mask:0xf bank_mask:0xf")
        for k, v in enumerate((96, 97, 98, 99)): a(f"v_mov_b32 v{100+k}, v{v}")
        for k, v in enumerate((96, 97, 98, 99)): a(f"v_permlane16_swap_b32 v{v}, v{100+k}")
        for k, v in enumerate((96, 97, 98, 99)): a(f"v_add_f32 v{v}, v{v}, v{100+k}")
        for k, v in enumerate((96, 97, 98, 99)): a(f"v_mov_b32 v{100+k}, v{v}")
        for k, v in enumerate((96, 97, 98, 99)): a(f"v_permlane32_swap_b32 v{v}, v{100+k}")
        for k, v in enumerate((96, 97, 98, 99)): a(f"v_add_f32 v{v}, v{v}, v{100+k}")
        ln_core(a, 96, 97); ln_core(a, 98, 99)
        a(f"""v_rcp_f32 v102, v97
        v_rcp_f32 v103, v99
        v_mul_f32 v104, -v96, v102
        v_mul_f32 v105, -v98, v103
        s_lshl_b32 s36, s2, 5
        s_lshl_b32 s37, s{S_W}, 3
        s_add_u32 s11, s36, s37
        s_add_u32 s11, s11, {WS['RS0']}""")
        a(f"""v_mov_b32 v101, s11
        s_mov_b32 s37, {WS['C0']-WS['RS0']}
        s_mov_b64 exec, 1
        buffer_store_dwordx2 v[102:103], v101, {WSR}, 0 offen sc1
        buffer_store_dwordx2 v[104:105], v101, {WSR}, s37 offen sc1
        s_mov_b64 exec, -1
        s_waitcnt lgkmcnt(0)
        s_barrier
        ds_read_b128 v[72:75], v5 offset:8192
        ds_read_b128 v[76:79], v7 offset:{8192+4096}
        s_waitcnt lgkmcnt(1)
        buffer_store_dwordx4 v[72:75], v8, {WSR}, s5 offen sc1
        s_waitcnt lgkmcnt(0)
        buffer_store_dwordx4 v[76:79], v15, {WSR}, s5 offen sc1""")
        a("s_waitcnt vmcnt(4)\ns_barrier")
        if FINE == 'F': fstamp(a, 1)
        a(f"""v_lshrrev_b32 v178, 4, v9
        v_bfe_u32 v179, v9, 2, 2
        v_and_b32 v180, 3, v9
        v_lshl_add_u32 v181, v178, 4, v179
        v_mul_u32_u24 v181, 96, v181
        v_and_b32 v182, 1, v180
        v_lshl_add_u32 v181, v182, 3, v181
        v_lshrrev_b32 v182, 1, v180
        v_mul_u32_u24 v182, {W3OFF}, v182
        v_add_u32 v181, v181, v182
        v_lshlrev_b32 v183, 4, v9""")
        for i in range(3):
            a(f"""s_mul_i32 s36, s{S_W}, 3
            s_add_u32 s36, s36, {i}
            s_lshr_b32 s37, s36, 1
            s_and_b32 s36, s36, 1
            s_lshl_b32 s38, s37, 4
            s_mul_i32 s39, s36, {8*96}
            s_add_u32 s38, s38, s39
            s_add_u32 s38, s38, {PW}
            v_add_u32 v182, s38, v181
            ds_read_b64_tr_b16 v[{144+4*i}:{145+4*i}], v182
            ds_read_b64_tr_b16 v[{146+4*i}:{147+4*i}], v182 offset:{4*96}
            s_mul_i32 s38, s61, 6
            s_add_u32 s38, s38, s37
            s_lshl_b32 s39, s38, 14
            s_lshl_b32 s37, s60, 11
            s_add_u32 s39, s39, s37
            s_lshl_b32 s36, s36, 10
            s_add_u32 s39, s39, s36
            s_add_u32 s39, s39, {WS['WF13']}
            s_cmp_lt_u32 s38, 172
            s_cselect_b32 s{6+i}, s39, {INV}""")
        a(f"""v_lshl_add_u32 v181, v178, 2, v179
        v_lshlrev_b32 v181, 7, v181
        v_lshl_add_u32 v181, v180, 5, v181
        s_lshl_b32 s36, s{S_W}, 3
        s_add_u32 s36, s36, {PW + 2*6144 + 64}
        v_add_u32 v181, s36, v181""")
        for i in range(2):
            a(f"""ds_read_b64_tr_b16 v[{156+4*i}:{157+4*i}], v181 offset:{4096*i}
            ds_read_b64_tr_b16 v[{158+4*i}:{159+4*i}], v181 offset:{4096*i + 2048}
            {PTs('s36', 's37')}
            s_add_u32 s36, s36, {32*i}
            {PGs('s37')}
            s_mul_i32 s37, s37, 43
            s_add_u32 s37, s37, s36
            s_lshl_b32 s37, s37, 12
            s_lshl_b32 s38, s{S_W}, 10
            s_add_u32 s37, s37, s38
            s_add_u32 s37, s37, {WS['WF2']}
            s_cmp_lt_u32 s36, 43
            s_cselect_b32 s{9+i}, s37, {INV}""")
        for i in range(5):
            a(f"s_waitcnt lgkmcnt({2*(4-i)})\nbuffer_store_dwordx4 {vr(144+4*i)}, v183, {WSR}, s{6+i} offen sc1")
        a("s_waitcnt lgkmcnt(0)")
        stamp(a, 4)
        return
    a(f"s_waitcnt vmcnt({2 + 2 + 9 + NPF})\ns_barrier")
    if FINE == 'F': fstamp(a, 1)
    a(f"""v_lshrrev_b32 v178, 4, v9
    v_bfe_u32 v179, v9, 2, 2
    v_and_b32 v180, 3, v9
    v_lshl_add_u32 v181, v178, 4, v179
    v_mul_u32_u24 v181, 96, v181
    v_and_b32 v182, 1, v180
    v_lshl_add_u32 v181, v182, 3, v181
    v_lshrrev_b32 v182, 1, v180
    v_mul_u32_u24 v182, {W3OFF}, v182
    v_add_u32 v181, v181, v182
    v_lshlrev_b32 v183, 4, v9""")
    for i in range(3):
        a(f"""s_mul_i32 s36, s{S_W}, 3
        s_add_u32 s36, s36, {i}
        s_lshr_b32 s37, s36, 1
        s_and_b32 s36, s36, 1
        s_lshl_b32 s38, s37, 4
        s_mul_i32 s39, s36, {8*96}
        s_add_u32 s38, s38, s39
        s_add_u32 s38, s38, {PW}
        v_add_u32 v182, s38, v181
        ds_read_b64_tr_b16 v[{144+4*i}:{145+4*i}], v182
        ds_read_b64_tr_b16 v[{146+4*i}:{147+4*i}], v182 offset:{4*96}
        s_mul_i32 s38, s61, 6
        s_add_u32 s38, s38, s37
        s_lshl_b32 s39, s38, 14
        s_lshl_b32 s37, s60, 11
        s_add_u32 s39, s39, s37
        s_lshl_b32 s36, s36, 10
        s_add_u32 s39, s39, s36
        s_add_u32 s39, s39, {WS['WF13']}
        s_cmp_lt_u32 s38, 172
        s_cselect_b32 s{6+i}, s39, {INV}""")
    a(f"""v_lshl_add_u32 v181, v178, 2, v179
    v_lshlrev_b32 v181, 7, v181
    v_lshl_add_u32 v181, v180, 5, v181
    s_lshl_b32 s36, s{S_W}, 3
    s_add_u32 s36, s36, {PW + 2*6144 + 64}
    v_add_u32 v181, s36, v181""")
    for i in range(2):
        a(f"""ds_read_b64_tr_b16 v[{156+4*i}:{157+4*i}], v181 offset:{4096*i}
        ds_read_b64_tr_b16 v[{158+4*i}:{159+4*i}], v181 offset:{4096*i + 2048}
        {PTs('s36', 's37')}
        s_add_u32 s36, s36, {32*i}
        {PGs('s37')}
        s_mul_i32 s37, s37, 43
        s_add_u32 s37, s37, s36
        s_lshl_b32 s37, s37, 12
        s_lshl_b32 s38, s{S_W}, 10
        s_add_u32 s37, s37, s38
        s_add_u32 s37, s37, {WS['WF2']}
        s_cmp_lt_u32 s36, 43
        s_cselect_b32 s{9+i}, s37, {INV}""")
    for i in range(5):
        a(f"s_waitcnt lgkmcnt({2*(4-i)})\nbuffer_store_dwordx4 {vr(144+4*i)}, v183, {WSR}, s{6+i} offen sc1")
    if FINE == 'F': fstamp(a, 2)
    a(f"s_waitcnt vmcnt({2 + 9 + NPF + 5})")
    if FINE == 'F': fstamp(a, 3)
    a("s_mov_b32 s36, 0x05040100\ns_mov_b32 s37, 0x07060302")
    for p in range(4):
        a(f"""v_perm_b32 v{88+2*p}, v{64+p}, v{60+p}, s36
        v_perm_b32 v{89+2*p}, v{64+p}, v{60+p}, s37""")
    for j in range(8):
        a(f"ds_write_b32 v12, v{88+j} offset:{128*j}")
    if FINE == 'F': fstamp(a, 4)
    a(f"s_waitcnt vmcnt({9 + NPF + 5})")
    if FINE == 'F': fstamp(a, 5)
    a("v_mov_b32 v14, 0x3f803f80")
    for row in range(2):
        su, sq = 96 + 2 * row, 97 + 2 * row
        a(f"v_mov_b32 v{su}, 0\nv_mov_b32 v{sq}, 0")
    for p in range(4):
        for row in range(2):
            su, sq = 96 + 2 * row, 97 + 2 * row; b = 68 + 4 * row
            a(f"v_dot2_f32_bf16 v{su}, v{b+p}, v14, v{su}\nv_dot2_f32_bf16 v{sq}, v{b+p}, v{b+p}, v{sq}")
    for r in (8, 4, 2, 1):
        for v in (96, 97, 98, 99):
            a(f"v_add_f32_dpp v{v}, v{v}, v{v} row_ror:{r} row_mask:0xf bank_mask:0xf")
    for k, v in enumerate((96, 97, 98, 99)): a(f"v_mov_b32 v{100+k}, v{v}")
    for k, v in enumerate((96, 97, 98, 99)): a(f"v_permlane16_swap_b32 v{v}, v{100+k}")
    for k, v in enumerate((96, 97, 98, 99)): a(f"v_add_f32 v{v}, v{v}, v{100+k}")
    for k, v in enumerate((96, 97, 98, 99)): a(f"v_mov_b32 v{100+k}, v{v}")
    for k, v in enumerate((96, 97, 98, 99)): a(f"v_permlane32_swap_b32 v{v}, v{100+k}")
    for k, v in enumerate((96, 97, 98, 99)): a(f"v_add_f32 v{v}, v{v}, v{100+k}")
    ln_core(a, 96, 97); ln_core(a, 98, 99)
    a(f"""v_rcp_f32 v102, v97
    v_rcp_f32 v103, v99
    v_mul_f32 v104, -v96, v102
    v_mul_f32 v105, -v98, v103
    s_lshl_b32 s36, s2, 5
    s_lshl_b32 s37, s{S_W}, 3
    s_add_u32 s11, s36, s37
    s_add_u32 s11, s11, {WS['RS0']}""")
    a(f"""v_mov_b32 v101, s11
    s_mov_b32 s37, {WS['C0']-WS['RS0']}
    s_mov_b64 exec, 1
    buffer_store_dwordx2 v[102:103], v101, {WSR}, 0 offen sc1
    buffer_store_dwordx2 v[104:105], v101, {WSR}, s37 offen sc1
    s_mov_b64 exec, -1
    s_waitcnt lgkmcnt(0)
    s_barrier
    ds_read_b128 v[72:75], v5 offset:8192
    ds_read_b128 v[76:79], v7 offset:{8192+4096}
    s_waitcnt lgkmcnt(1)
    buffer_store_dwordx4 v[72:75], v8, {WSR}, s5 offen sc1
    s_waitcnt lgkmcnt(0)
    buffer_store_dwordx4 v[76:79], v15, {WSR}, s5 offen sc1""")
    if FINE == 'F': fstamp(a, 6)
    a("s_waitcnt vmcnt(9)")
    if FINE == 'F': fstamp(a, 7)
    a(f"""s_mul_i32 s62, s66, {CB}
    v_lshlrev_b32 v4, 4, v9
    s_lshl_b32 s36, s67, 11
    s_add_u32 s36, s36, s62
    s_add_u32 s36, s36, 32
    v_add_u32 v4, s36, v4""")
    for p in range(2):
        L0, L2, L4 = 192 + 12 * p, 196 + 12 * p, 200 + 12 * p
        for j in range(4):
            a(f"v_alignbit_b32 v{112+8*p+j}, v{L2+j}, v{L0+j}, 16")
            a(f"v_alignbit_b32 v{116+8*p+j}, v{L4+j}, v{L2+j}, 16")
        a(f"""ds_write_b128 v4, v[{L0}:{L0+3}] offset:{1024*p}
        ds_write_b128 v4, v[{112+8*p}:{115+8*p}] offset:{1024*p + HCS}
        ds_write_b128 v4, v[{L2}:{L2+3}] offset:{1024*p + 2*HCS}
        ds_write_b128 v4, v[{116+8*p}:{119+8*p}] offset:{1024*p + 3*HCS}""")
    a(f"""v_lshl_or_b32 v216, v217, 16, v216
    v_mul_u32_u24 v13, {HCS}, v219
    v_lshl_add_u32 v13, v220, 2, v13
    v_add_u32 v13, s62, v13
    ds_write_b32 v13, v216
    v_lshlrev_b32 v20, 16, v218
    v_mov_b32 v92, 0
    v_mov_b32 v93, 0
    v_mov_b32 v94, 0
    v_mov_b32 v95, 0
    v_and_b32 v16, 31, v9
    v_lshlrev_b32 v16, 4, v16
    v_add_u32 v16, s62, v16
    ds_write_b128 v16, v[92:95] offset:{XRO+4096}
    s_waitcnt lgkmcnt(0)""")
    stamp(a, 4)
    if FINE == 'F': fstamp(a, 8)

def emit_conv(a, hooks):
    a("v_and_b32 v1, 63, v0")
    def su1():
        if SPREAD:
            a(f"""v_and_b32 v2, 7, v1
            v_lshlrev_b32 v2, 5, v2
            v_bfe_u32 v3, v1, 3, 2
            v_lshl_add_u32 v2, v3, 3, v2
            v_add_u32 v2, s60, v2
            v_lshlrev_b32 v2, 6, v2
            v_add_u32 v2, {WS['SYNC'] + SYNC_FLAGS}, v2""")
        else:
            a(f"""v_and_b32 v2, 31, v1
            s_lshl_b32 s36, s60, 5
            v_add_u32 v2, s36, v2
            v_lshlrev_b32 v2, 6, v2
            v_add_u32 v2, {WS['SYNC'] + SYNC_FLAGS}, v2""")
    signal(a, 2)
    wg_wait(a, su1, 2, 1, 1, 64)
    stamp(a, 5)
    a(f"""v_lshlrev_b32 v10, 4, v1
    s_lshl_b32 s36, s67, 11
    s_add_u32 s37, s65, s36
    s_add_u32 s37, s37, {WS['XR']}
    s_add_u32 s38, s62, s36
    s_add_u32 s38, s38, {XRO}
    s_mov_b32 m0, s38
    buffer_load_dwordx4 v10, {WSR}, s37 offen sc1 lds
    s_add_u32 s38, s38, 1024
    s_add_u32 s37, s37, 1024
    s_mov_b32 m0, s38
    buffer_load_dwordx4 v10, {WSR}, s37 offen sc1 lds
    v_and_b32 v11, 15, v1
    v_lshrrev_b32 v12, 4, v1
    v_lshlrev_b32 v13, 4, v11
    v_lshl_add_u32 v13, v12, 2, v13
    s_lshl_b32 s36, s67, 10
    v_add_u32 v13, s36, v13
    v_lshlrev_b32 v14, 1, v13
    v_lshlrev_b32 v15, 2, v13
    v_lshlrev_b32 v22, 6, v1
    v_add_u32 v22, {WS['SYNC'] + SYNC_FLAGS}, v22""")
    a(f"""v_add_u32 v17, 1, v11
    v_and_b32 v18, 3, v17
    v_mul_u32_u24 v18, {HCS}, v18
    v_lshrrev_b32 v17, 2, v17
    v_lshlrev_b32 v17, 3, v17
    v_lshl_add_u32 v17, v12, 4, v17
    v_add_u32 v17, v17, v18
    s_lshl_b32 s36, s67, 8
    s_add_u32 s37, s36, s62
    v_add_u32 v17, s37, v17
    v_lshlrev_b32 v18, 5, v11
    v_lshlrev_b32 v19, 4, v12
    v_sub_u32 v18, v19, v18
    s_add_u32 s37, s37, {XRO + 480}
    v_add_u32 v18, s37, v18""")
    for r in range(32, 64): a(f"v_mov_b32 v{r}, 0")
    a(f"s_waitcnt vmcnt(0)\ns_barrier")
    stamp(a, 6)
    pre = []
    for i in range(4):
        pre.append(f"buffer_load_dwordx2 v[{192+2*i}:{193+2*i}], v14, {WSR}, s10 offen offset:{512*i} sc1")
    for i in range(4):
        pre.append(f"buffer_load_dwordx4 v[{200+4*i}:{203+4*i}], v15, {WSR}, s8 offen offset:{1024*i} sc1")
        pre.append(f"buffer_load_dwordx4 v[{216+4*i}:{219+4*i}], v15, {WSR}, s9 offen offset:{1024*i} sc1")
    def load_frags(setbase, bi):
        ops = []
        for x in range(8):
            A = setbase + 4 * x
            ops.append(f"ds_read_b64 v[{A}:{A+1}], v17 offset:{512*x + 64*bi}")
            ops.append(f"ds_read_b64 v[{A+2}:{A+3}], v17 offset:{512*x + 64*bi + 8}")
            B = setbase + 32 + 4 * x
            ops.append(f"ds_read_b128 v[{B}:{B+3}], v18 offset:{512*(7-x) + 64*bi}")
        return ops
    sets = (64, 128)
    for op in load_frags(sets[0], 0): a(op)
    extra = []
    for bi in range(4):
        cur = sets[bi & 1]
        nxt = load_frags(sets[(bi + 1) & 1], bi + 1) if bi < 3 else []
        if bi == 0:
            for i in range(4):
                if i == 0: a(f"buffer_load_dword v24, v22, {WSR}, 0 offen sc1")
                else: a(f"s_movk_i32 s39, {4096*i}\nbuffer_load_dword v{24+i}, v22, {WSR}, s39 offen sc1")
            if HALF:
                a("s_lshl_b32 s38, s22, 3")
                member_flag_off(a, 23, "s38", 8)
            else:
                member_flag_off(a, 23, "0", 16)
            a(f"buffer_load_dword v28, v23, {WSR}, 0 offen offset:4 sc1")
        if bi == CHK1:
            a(f"""s_waitcnt vmcnt(0)
            v_cmp_eq_u32 vcc, s{S_IDW}, v28
            s_cmp_eq_u64 vcc, -1
            s_cselect_b32 s{S_LOC}, 1, 0""")
            flagcheck(a, 2, (24, 25, 26, 27), 22, "L_c_ok1", tmp=(29, 30))
            a(f"s_mov_b32 s8, {WS['RS0']}\ns_mov_b32 s9, {WS['C0']}\ns_add_u32 s10, s65, {WS['QT']}")
            extra0 = pre
            extra = pre + list(hooks['conv_loop_extra'])
        a("s_waitcnt lgkmcnt(0)")
        pairs = sorted([(jt, aa) for jt in range(8) for aa in range(jt + 1)], key=lambda p: (p[1], p[0]))
        k = 0
        for idx, (jt, aa) in enumerate(pairs):
            A = cur + 4 * aa; B = cur + 32 + 4 * (jt - aa); C = 32 + 4 * jt
            a(f"v_mfma_f32_16x16x32_bf16 v[{C}:{C+3}], v[{A}:{A+3}], v[{B}:{B+3}], v[{C}:{C+3}]")
            if idx < 24 and k < len(nxt):
                a(nxt[k]); k += 1
            if extra and idx % PACE == PACE - 1 or (extra and bi == CHK1 and idx < 12):
                a(extra.pop(0))
    for op in extra: a(op)
    stamp(a, 7)
    a(f"""v_lshlrev_b32 v4, 4, v1
    s_lshl_b32 s36, s{S_W}, 12
    s_add_u32 s36, s36, {EXO}
    v_add_u32 v5, s36, v4
    s_xor_b32 s36, s36, 4096
    v_add_u32 v6, s36, v4
    s_cmp_eq_u32 s67, 0
    s_cbranch_scc0 L_c_x1""")
    for half in range(2):
        own, oth = (32, 48) if half == 0 else (48, 32)
        for i in range(4): a(f"ds_write_b128 v5, v[{oth+4*i}:{oth+4*i+3}] offset:{1024*i}")
        a("s_waitcnt lgkmcnt(0)\ns_barrier")
        for i in range(4): a(f"ds_read_b128 v[{80+4*i}:{83+4*i}], v6 offset:{1024*i}")
        a("s_waitcnt lgkmcnt(0)")
        for i in range(4):
            for h in range(2):
                a(f"v_pk_add_f32 v[{64+4*i+2*h}:{65+4*i+2*h}], v[{own+4*i+2*h}:{own+4*i+2*h+1}], v[{80+4*i+2*h}:{81+4*i+2*h}]")
        if half == 0:
            a("s_branch L_c_x2\nL_c_x1:")
    a.label("L_c_x2")
    a(f"""v_lshlrev_b32 v7, 5, v11
    v_lshl_add_u32 v7, v12, 3, v7
    s_lshl_b32 s36, s67, 11
    s_sub_u32 s37, s62, s36
    s_add_u32 s37, s37, {XRO + 4088 - 1536}
    v_sub_u32 v7, s37, v7""")
    for i in range(4): a(f"ds_read_b64 v[{96+2*i}:{97+2*i}], v7 offset:{512*(3-i)}")
    a(f"""s_lshr_b32 s39, s65, 12
    s_mul_i32 s39, s39, {XP}
    s_add_u32 s38, s39, {WS['YT']}
    s_add_u32 s39, s39, {WS['X1T']}
    s_waitcnt vmcnt({hooks['n_conv_total_w']}) lgkmcnt(0)""")
    for op in hooks['conv_epi_extra']: a(op)
    O = lambda i: 64 + 4 * i
    T = lambda i: 104 + 10 * i
    for i in range(4):
        kv = 96 + 2 * i
        a(f"""v_and_b32 v{T(i)}, 0xffff0000, v{kv+1}
        v_lshlrev_b32 v{T(i)+1}, 16, v{kv+1}
        v_and_b32 v{T(i)+2}, 0xffff0000, v{kv}
        v_lshlrev_b32 v{T(i)+3}, 16, v{kv}""")
    for i in range(4):
        a(f"""v_pk_fma_f32 v[{O(i)}:{O(i)+1}], v[{T(i)}:{T(i)+1}], v[20:21], v[{O(i)}:{O(i)+1}] op_sel_hi:[1,0,1]
        v_pk_fma_f32 v[{O(i)+2}:{O(i)+3}], v[{T(i)+2}:{T(i)+3}], v[20:21], v[{O(i)+2}:{O(i)+3}] op_sel_hi:[1,0,1]""")
    for i in range(4):
        a(f"""v_cvt_pk_bf16_f32 v{T(i)+4}, v{O(i)}, v{O(i)+1}
        v_cvt_pk_bf16_f32 v{T(i)+5}, v{O(i)+2}, v{O(i)+3}""")
    for i in range(4):
        a(f"""v_lshlrev_b32 v{T(i)}, 16, v{192+2*i}
        v_and_b32 v{T(i)+1}, 0xffff0000, v{192+2*i}
        v_lshlrev_b32 v{T(i)+2}, 16, v{193+2*i}
        v_and_b32 v{T(i)+3}, 0xffff0000, v{193+2*i}
        buffer_store_dwordx2 v[{T(i)+4}:{T(i)+5}], v14, {WSR}, s38 offen offset:{512*i} sc1""")
    for i in range(4):
        a(f"""v_lshlrev_b32 v{O(i)}, 16, v{T(i)+4}
        v_and_b32 v{O(i)+1}, 0xffff0000, v{T(i)+4}
        v_lshlrev_b32 v{O(i)+2}, 16, v{T(i)+5}
        v_and_b32 v{O(i)+3}, 0xffff0000, v{T(i)+5}
        v_pk_fma_f32 v[{T(i)+6}:{T(i)+7}], v[{T(i)}:{T(i)+1}], v[{200+4*i}:{201+4*i}], v[{216+4*i}:{217+4*i}]
        v_pk_fma_f32 v[{T(i)+8}:{T(i)+9}], v[{T(i)+2}:{T(i)+3}], v[{202+4*i}:{203+4*i}], v[{218+4*i}:{219+4*i}]""")
    for i in range(4):
        a(f"""v_pk_fma_f32 v[{T(i)+6}:{T(i)+7}], v[{T(i)+6}:{T(i)+7}], v[{O(i)}:{O(i)+1}], v[{T(i)}:{T(i)+1}]
        v_pk_fma_f32 v[{T(i)+8}:{T(i)+9}], v[{T(i)+8}:{T(i)+9}], v[{O(i)+2}:{O(i)+3}], v[{T(i)+2}:{T(i)+3}]""")
    for i in range(4):
        a(f"""v_cvt_pk_bf16_f32 v{O(i)}, v{T(i)+6}, v{T(i)+7}
        v_cvt_pk_bf16_f32 v{O(i)+1}, v{T(i)+8}, v{T(i)+9}
        buffer_store_dwordx2 v[{O(i)}:{O(i)+1}], v14, {WSR}, s39 offen offset:{512*i} sc1""")
    stamp(a, 8)


def blk_addr(a):
    a(f"""v_sub_u32 v11, 31, v2
    v_lshlrev_b32 v12, 2, v1
    v_xor_b32 v11, v11, v12
    v_lshlrev_b32 v11, 2, v11
    v_lshlrev_b32 v13, 10, v1
    v_add_u32 v11, v11, v13
    v_add_u32 v11, {PL}, v11
    v_xor_b32 v12, v2, v12
    v_lshlrev_b32 v12, 2, v12
    v_add_u32 v12, v12, v13
    v_add_u32 v12, {PL + 8192}, v12
    """)

def blk_skun(a):
    for j in range(8):
        a(f"""v_lshlrev_b32 v{80+j}, 16, v{44+2*j}
        v_and_b32 v{88+j}, 0xffff0000, v{44+2*j}
        v_lshlrev_b32 v{96+j}, 16, v{45+2*j}
        v_and_b32 v{104+j}, 0xffff0000, v{45+2*j}""")

def blk_kv(a):
    for i in range(5):
        for p in range(4):
            a(f"""v_lshlrev_b32 v{112+8*i+2*p}, 16, v{16+4*i+p}
            v_and_b32 v{113+8*i+2*p}, 0xffff0000, v{16+4*i+p}""")
    for row in range(2):
        for p in range(4):
            d = 152 + 8 * row + 2 * p
            a(f"v_pk_mul_f32 v[{d}:{d+1}], v[{112+8*row+2*p}:{113+8*row+2*p}], v[{104+2*p}:{105+2*p}]")
    for tt, tap in ((1, 2), (2, 1), (3, 0)):
        for row in range(2):
            for p in range(4):
                d = 152 + 8 * row + 2 * p
                k = 112 + 8 * (row + tt) + 2 * p
                s_ = 80 + 8 * tap + 2 * p
                a(f"v_pk_fma_f32 v[{d}:{d+1}], v[{k}:{k+1}], v[{s_}:{s_+1}], v[{d}:{d+1}]")
    for row in range(2):
        for p in range(4):
            a(f"""v_lshlrev_b32 v{112+8*row+2*p}, 16, v{36+4*row+p}
            v_and_b32 v{113+8*row+2*p}, 0xffff0000, v{36+4*row+p}""")
    for row in range(2):
        for p in range(4):
            d = 152 + 8 * row + 2 * p
            a(f"v_pk_mul_f32 v[{d}:{d+1}], v[{d}:{d+1}], v[{112+8*row+2*p}:{113+8*row+2*p}]")
    for j in range(8):
        a(f"v_cvt_pk_bf16_f32 v{80+j}, v{160+j}, v{152+j}")
    for j in range(8):
        a(f"ds_write_b32 v11, v{80+j} offset:{128*j}")
    a(f"""v_lshrrev_b32 v3, 6, v0
    v_xor_b32 v5, v1, v3
    v_lshlrev_b32 v5, 4, v5
    v_lshlrev_b32 v6, 7, v2
    v_add_u32 v5, v5, v6
    v_add_u32 v5, {PL}, v5
    v_xor_b32 v7, 64, v5
    {PGs('s36')}
    s_lshl_b32 s36, s36, 18
    {PTs('s37', 's38')}
    s_lshl_b32 s37, s37, 7
    s_sub_u32 s4, s36, s37
    s_add_u32 s4, s4, {WS['XR'] + 1984*2}
    s_add_u32 s5, s36, s37
    s_add_u32 s5, s5, {WS['QT']}
    v_lshlrev_b32 v8, 12, v2
    v_lshlrev_b32 v15, 4, v1
    v_add_u32 v8, v8, v15
    v_add_u32 v15, 0x20000, v8
    s_waitcnt lgkmcnt(0)
    s_barrier
    ds_read_b128 v[16:19], v5
    ds_read_b128 v[20:23], v7 offset:4096
    s_waitcnt lgkmcnt(1)
    buffer_store_dwordx4 v[16:19], v8, {WSR}, s4 offen {LS('xr')}
    s_waitcnt lgkmcnt(0)
    buffer_store_dwordx4 v[20:23], v15, {WSR}, s4 offen {LS('xr')}""")

def blk_wtr(a):
    a(f"""v_lshrrev_b32 v178, 4, v9
    v_bfe_u32 v179, v9, 2, 2
    v_and_b32 v180, 3, v9
    v_lshl_add_u32 v181, v178, 4, v179
    v_mul_u32_u24 v181, 96, v181
    v_and_b32 v182, 1, v180
    v_lshl_add_u32 v181, v182, 3, v181
    v_lshrrev_b32 v182, 1, v180
    v_mul_u32_u24 v182, {W3OFF}, v182
    v_add_u32 v181, v181, v182
    v_lshlrev_b32 v183, 4, v9""")
    for i in range(3):
        a(f"""s_mul_i32 s36, s{S_W}, 3
        s_add_u32 s36, s36, {i}
        s_lshr_b32 s37, s36, 1
        s_and_b32 s36, s36, 1
        s_lshl_b32 s38, s37, 4
        s_mul_i32 s39, s36, {8*96}
        s_add_u32 s38, s38, s39
        s_add_u32 s38, s38, {PW}
        v_add_u32 v182, s38, v181
        ds_read_b64_tr_b16 v[{144+4*i}:{145+4*i}], v182
        ds_read_b64_tr_b16 v[{146+4*i}:{147+4*i}], v182 offset:{4*96}
        s_mul_i32 s38, s61, 6
        s_add_u32 s38, s38, s37
        s_lshl_b32 s39, s38, 14
        s_lshl_b32 s37, s60, 11
        s_add_u32 s39, s39, s37
        s_lshl_b32 s36, s36, 10
        s_add_u32 s39, s39, s36
        s_add_u32 s39, s39, {WS['WF13']}
        s_cmp_lt_u32 s38, 172
        s_cselect_b32 s{6+i}, s39, {INV}""")
    a(f"""v_lshl_add_u32 v181, v178, 2, v179
    v_lshlrev_b32 v181, 7, v181
    v_lshl_add_u32 v181, v180, 5, v181
    s_lshl_b32 s36, s{S_W}, 3
    s_add_u32 s36, s36, {PW + 2*6144 + 64}
    v_add_u32 v181, s36, v181""")
    for i in range(2):
        a(f"""ds_read_b64_tr_b16 v[{156+4*i}:{157+4*i}], v181 offset:{4096*i}
        ds_read_b64_tr_b16 v[{158+4*i}:{159+4*i}], v181 offset:{4096*i + 2048}
        {PTs('s36', 's37')}
        s_add_u32 s36, s36, {32*i}
        {PGs('s37')}
        s_mul_i32 s37, s37, 43
        s_add_u32 s37, s37, s36
        s_lshl_b32 s37, s37, 12
        s_lshl_b32 s38, s{S_W}, 10
        s_add_u32 s37, s37, s38
        s_add_u32 s37, s37, {WS['WF2']}
        s_cmp_lt_u32 s36, 43
        s_cselect_b32 s{9+i}, s37, {INV}""")

def blk_qperm(a):
    a("s_mov_b32 s36, 0x05040100\ns_mov_b32 s37, 0x07060302")
    for p in range(4):
        a(f"""v_perm_b32 v{88+2*p}, v{64+p}, v{60+p}, s36
        v_perm_b32 v{89+2*p}, v{64+p}, v{60+p}, s37""")
    for j in range(8):
        a(f"ds_write_b32 v12, v{88+j} offset:{128*j}")

def blk_stats(a):
    a("v_mov_b32 v14, 0x3f803f80")
    for row in range(2):
        su, sq = 96 + 2 * row, 97 + 2 * row
        a(f"v_mov_b32 v{su}, 0\nv_mov_b32 v{sq}, 0")
    for p in range(4):
        for row in range(2):
            su, sq = 96 + 2 * row, 97 + 2 * row; b = 68 + 4 * row
            a(f"v_dot2_f32_bf16 v{su}, v{b+p}, v14, v{su}\nv_dot2_f32_bf16 v{sq}, v{b+p}, v{b+p}, v{sq}")
    for r in (8, 4, 2, 1):
        for v in (96, 97, 98, 99):
            a(f"v_add_f32_dpp v{v}, v{v}, v{v} row_ror:{r} row_mask:0xf bank_mask:0xf")
    for k, v in enumerate((96, 97, 98, 99)): a(f"v_mov_b32 v{100+k}, v{v}")
    for k, v in enumerate((96, 97, 98, 99)): a(f"v_permlane16_swap_b32 v{v}, v{100+k}")
    for k, v in enumerate((96, 97, 98, 99)): a(f"v_add_f32 v{v}, v{v}, v{100+k}")
    for k, v in enumerate((96, 97, 98, 99)): a(f"v_mov_b32 v{100+k}, v{v}")
    for k, v in enumerate((96, 97, 98, 99)): a(f"v_permlane32_swap_b32 v{v}, v{100+k}")
    for k, v in enumerate((96, 97, 98, 99)): a(f"v_add_f32 v{v}, v{v}, v{100+k}")
    ln_core(a, 96, 97); ln_core(a, 98, 99)
    a(f"""v_rcp_f32 v102, v97
    v_rcp_f32 v103, v99
    v_mul_f32 v104, -v96, v102
    v_mul_f32 v105, -v98, v103
    s_lshl_b32 s36, s2, 5
    s_lshl_b32 s37, s{S_W}, 3
    s_add_u32 s11, s36, s37
    s_add_u32 s11, s11, {WS['RS0']}""")

def blk_hcop(a):
    a(f"""s_mul_i32 s62, s66, {CB}
    v_lshlrev_b32 v4, 4, v9
    s_lshl_b32 s36, s67, 11
    s_add_u32 s36, s36, s62
    s_add_u32 s36, s36, 32
    v_add_u32 v4, s36, v4""")
    for p in range(2):
        L0, L2, L4 = 192 + 12 * p, 196 + 12 * p, 200 + 12 * p
        for j in range(4):
            a(f"v_alignbit_b32 v{112+8*p+j}, v{L2+j}, v{L0+j}, 16")
            a(f"v_alignbit_b32 v{116+8*p+j}, v{L4+j}, v{L2+j}, 16")
        a(f"""ds_write_b128 v4, v[{L0}:{L0+3}] offset:{1024*p}
        ds_write_b128 v4, v[{112+8*p}:{115+8*p}] offset:{1024*p + HCS}
        ds_write_b128 v4, v[{L2}:{L2+3}] offset:{1024*p + 2*HCS}
        ds_write_b128 v4, v[{116+8*p}:{119+8*p}] offset:{1024*p + 3*HCS}""")
    a(f"""v_lshl_or_b32 v216, v217, 16, v216
    v_mul_u32_u24 v13, {HCS}, v219
    v_lshl_add_u32 v13, v220, 2, v13
    v_add_u32 v13, s62, v13
    ds_write_b32 v13, v216
    v_lshlrev_b32 v20, 16, v218
    v_mov_b32 v92, 0
    v_mov_b32 v93, 0
    v_mov_b32 v94, 0
    v_mov_b32 v95, 0
    v_and_b32 v16, 31, v9
    v_lshlrev_b32 v16, 4, v16
    v_add_u32 v16, s62, v16
    ds_write_b128 v16, v[92:95] offset:{XRO+4096}
    s_waitcnt lgkmcnt(0)""")


def w_stage_bulk(a):
    for k in range(7):
        a(f"""s_sub_u32 s36, s{S_W}, 1
        s_add_u32 s36, s36, {3*k}
        s_cmp_lt_u32 s36, 12
        s_cbranch_scc0 L_w2_{k}
        s_cmp_lt_u32 s36, 6
        s_cselect_b32 s4, s52, s54
        s_cselect_b32 s5, s53, s55
        s_cselect_b32 s37, 0, 6
        s_cselect_b32 s38, 0, {W3OFF}
        s_mov_b32 s6, {D*F*2}
        s_mov_b32 s7, 0x20000
        s_sub_u32 s36, s36, s37
        s_lshl_b32 s37, s36, 6
        v_add_u32 v177, s37, v9
        v_mul_u32_u24 v178, 43691, v177
        v_lshrrev_b32 v178, 18, v178
        v_mul_u32_u24 v179, 6, v178
        v_sub_u32 v179, v177, v179
        v_mul_u32_u24 v178, 2752, v178
        v_lshl_add_u32 v{184+(k%4)}, v179, 4, v178
        s_lshl_b32 s36, s36, 10
        s_add_u32 s36, s36, s38
        s_add_u32 s36, s36, {PW}
        s_mul_i32 s37, s60, {64*2752}
        s_mul_i32 s38, s61, 96
        s_add_u32 s37, s37, s38
        s_branch L_wgo_{k}
        L_w2_{k}:
        s_mov_b32 s4, s56
        s_mov_b32 s5, s57
        s_mov_b32 s6, {D*F*2}
        s_mov_b32 s7, 0x20000
        s_sub_u32 s36, s36, 12
        v_lshrrev_b32 v178, 3, v9
        v_and_b32 v179, 7, v9
        v_lshlrev_b32 v178, 10, v178
        v_lshl_add_u32 v{184+(k%4)}, v179, 4, v178
        {PTs('s37', 's38')}
        s_lshl_b32 s37, s37, 15
        {PGs('s38')}
        s_lshl_b32 s38, s38, 7
        s_add_u32 s37, s37, s38
        s_and_b32 s38, s36, 3
        s_lshl_b32 s38, s38, 13
        s_add_u32 s37, s37, s38
        s_lshr_b32 s38, s36, 2
        s_lshl_b32 s38, s38, 20
        s_add_u32 s37, s37, s38
        s_cmp_lt_u32 s36, 8
        s_cselect_b32 s37, s37, {INV}
        s_min_u32 s36, s36, 8
        s_lshl_b32 s36, s36, 10
        s_add_u32 s36, s36, {PW + 2*6144 + 64}
        L_wgo_{k}:
        s_mov_b32 m0, s36
        buffer_load_dwordx4 v{184+(k%4)}, s[4:7], s37 offen lds""")

def blk_wtr_hi(a):
    a(f"""v_lshrrev_b32 v250, 4, v9
    v_bfe_u32 v251, v9, 2, 2
    v_and_b32 v252, 3, v9
    v_lshl_add_u32 v253, v250, 4, v251
    v_mul_u32_u24 v253, 96, v253
    v_and_b32 v255, 1, v252
    v_lshl_add_u32 v253, v255, 3, v253
    v_lshrrev_b32 v255, 1, v252
    v_mul_u32_u24 v255, {W3OFF}, v255
    v_add_u32 v253, v253, v255
    v_lshlrev_b32 v254, 4, v9""")
    for i in range(3):
        a(f"""s_mul_i32 s36, s{S_W}, 3
        s_add_u32 s36, s36, {i}
        s_lshr_b32 s37, s36, 1
        s_and_b32 s36, s36, 1
        s_lshl_b32 s38, s37, 4
        s_mul_i32 s39, s36, {8*96}
        s_add_u32 s38, s38, s39
        s_add_u32 s38, s38, {PW}
        v_add_u32 v255, s38, v253
        ds_read_b64_tr_b16 v[{232+4*i}:{233+4*i}], v255
        ds_read_b64_tr_b16 v[{234+4*i}:{235+4*i}], v255 offset:{4*96}
        s_mul_i32 s38, s61, 6
        s_add_u32 s38, s38, s37
        s_lshl_b32 s39, s38, 14
        s_lshl_b32 s37, s60, 11
        s_add_u32 s39, s39, s37
        s_lshl_b32 s36, s36, 10
        s_add_u32 s39, s39, s36
        s_add_u32 s39, s39, {WS['WF13']}
        s_cmp_lt_u32 s38, 172
        s_cselect_b32 s{(6, 7, 12)[i]}, s39, {INV}""")
    a(f"""v_lshl_add_u32 v253, v250, 2, v251
    v_lshlrev_b32 v253, 7, v253
    v_lshl_add_u32 v253, v252, 5, v253
    s_lshl_b32 s36, s{S_W}, 3
    s_add_u32 s36, s36, {PW + 2*6144 + 64}
    v_add_u32 v253, s36, v253""")
    for i in range(2):
        a(f"""ds_read_b64_tr_b16 v[{244+4*i}:{245+4*i}], v253 offset:{4096*i}
        ds_read_b64_tr_b16 v[{246+4*i}:{247+4*i}], v253 offset:{4096*i + 2048}
        {PTs('s36', 's37')}
        s_add_u32 s36, s36, {32*i}
        {PGs('s37')}
        s_mul_i32 s37, s37, 43
        s_add_u32 s37, s37, s36
        s_lshl_b32 s37, s37, 12
        s_lshl_b32 s38, s{S_W}, 10
        s_add_u32 s37, s37, s38
        s_add_u32 s37, s37, {WS['WF2']}
        s_cmp_lt_u32 s36, 43
        s_cselect_b32 s{(13, 14)[i]}, s37, {INV}""")

def conv_epilogue(a):
    O = lambda i: 64 + 4 * i
    T = lambda i: 104 + 10 * i
    for i in range(4):
        kv = 96 + 2 * i
        a(f"""v_and_b32 v{T(i)}, 0xffff0000, v{kv+1}
        v_lshlrev_b32 v{T(i)+1}, 16, v{kv+1}
        v_and_b32 v{T(i)+2}, 0xffff0000, v{kv}
        v_lshlrev_b32 v{T(i)+3}, 16, v{kv}""")
    for i in range(4):
        a(f"""v_pk_fma_f32 v[{O(i)}:{O(i)+1}], v[{T(i)}:{T(i)+1}], v[20:21], v[{O(i)}:{O(i)+1}] op_sel_hi:[1,0,1]
        v_pk_fma_f32 v[{O(i)+2}:{O(i)+3}], v[{T(i)+2}:{T(i)+3}], v[20:21], v[{O(i)+2}:{O(i)+3}] op_sel_hi:[1,0,1]""")
    for i in range(4):
        a(f"""v_cvt_pk_bf16_f32 v{T(i)+4}, v{O(i)}, v{O(i)+1}
        v_cvt_pk_bf16_f32 v{T(i)+5}, v{O(i)+2}, v{O(i)+3}""")
    for i in range(4):
        a(f"""v_lshlrev_b32 v{T(i)}, 16, v{192+2*i}
        v_and_b32 v{T(i)+1}, 0xffff0000, v{192+2*i}
        v_lshlrev_b32 v{T(i)+2}, 16, v{193+2*i}
        v_and_b32 v{T(i)+3}, 0xffff0000, v{193+2*i}
        buffer_store_dwordx2 v[{T(i)+4}:{T(i)+5}], v14, {WSR}, s38 offen offset:{512*i} sc1""")
    for i in range(4):
        a(f"""v_lshlrev_b32 v{O(i)}, 16, v{T(i)+4}
        v_and_b32 v{O(i)+1}, 0xffff0000, v{T(i)+4}
        v_lshlrev_b32 v{O(i)+2}, 16, v{T(i)+5}
        v_and_b32 v{O(i)+3}, 0xffff0000, v{T(i)+5}
        v_pk_fma_f32 v[{T(i)+6}:{T(i)+7}], v[{T(i)}:{T(i)+1}], v[{200+4*i}:{201+4*i}], v[{216+4*i}:{217+4*i}]
        v_pk_fma_f32 v[{T(i)+8}:{T(i)+9}], v[{T(i)+2}:{T(i)+3}], v[{202+4*i}:{203+4*i}], v[{218+4*i}:{219+4*i}]""")
    for i in range(4):
        a(f"""v_pk_fma_f32 v[{T(i)+6}:{T(i)+7}], v[{T(i)+6}:{T(i)+7}], v[{O(i)}:{O(i)+1}], v[{T(i)}:{T(i)+1}]
        v_pk_fma_f32 v[{T(i)+8}:{T(i)+9}], v[{T(i)+8}:{T(i)+9}], v[{O(i)+2}:{O(i)+3}], v[{T(i)+2}:{T(i)+3}]""")
    for i in range(4):
        a(f"""v_cvt_pk_bf16_f32 v{O(i)}, v{T(i)+6}, v{T(i)+7}
        v_cvt_pk_bf16_f32 v{O(i)+1}, v{T(i)+8}, v{T(i)+9}
        buffer_store_dwordx2 v[{O(i)}:{O(i)+1}], v14, {WSR}, s39 offen offset:{512*i} sc1""")
    stamp(a, 8)

def emit_front4(a, hooks):
    blk_addr(a)
    a("s_waitcnt vmcnt(20)")
    blk_skun(a)
    a("s_waitcnt vmcnt(13)")
    stamp(a, 1)
    blk_kv(a)
    stamp(a, 2)
    a("s_mov_b32 s8, s5")
    a.nolog += 1
    a(f"""s_cmp_eq_u32 s{S_W}, 0
    s_cbranch_scc1 L_f_w0a""")
    w_stage_bulk(a)
    a(f"""s_waitcnt vmcnt(7)
    s_branch L_f_j1
    L_f_w0a:
    s_waitcnt vmcnt(0)
    L_f_j1:
    s_barrier
    s_cmp_lg_u32 s{S_W}, 0
    s_cbranch_scc1 L_f_s1
    s_add_u32 s36, s{S_GEN}, 1
    v_mov_b32 v16, s36
    v_mov_b32 v17, s{S_FLAG}
    s_mov_b64 exec, 1
    buffer_store_dword v16, v17, {WSR}, 0 offen sc1
    s_mov_b64 exec, -1
    L_f_s1:""")
    a.nolog -= 1
    stamp(a, 3)
    blk_hcop(a)
    a("v_and_b32 v1, 63, v0")
    a.nolog += 1
    a(f"""s_cmp_lg_u32 s{S_W}, 0
    s_cbranch_scc1 L_f_nx""")
    if SPREAD:
        a(f"""v_and_b32 v2, 7, v1
        v_lshlrev_b32 v2, 5, v2
        v_bfe_u32 v3, v1, 3, 2
        v_lshl_add_u32 v2, v3, 3, v2
        v_add_u32 v2, s60, v2
        v_lshlrev_b32 v2, 6, v2
        v_add_u32 v2, {WS['SYNC'] + SYNC_FLAGS}, v2""")
    else:
        a(f"""v_and_b32 v2, 31, v1
        s_lshl_b32 s36, s60, 5
        v_add_u32 v2, s36, v2
        v_lshlrev_b32 v2, 6, v2
        v_add_u32 v2, {WS['SYNC'] + SYNC_FLAGS}, v2""")
    wait_flags(a, 2, 1, 1, 18)
    a(f"""v_lshlrev_b32 v19, 4, v1
    s_lshl_b32 s36, s19, 13
    s_add_u32 s36, s36, {WS['XR']}""")
    for ch in range(2):
        for i in range(4):
            a(f"""s_mov_b32 m0, {ch * CB + XRO + i * 1024}
            buffer_load_dwordx4 v19, {WSR}, s36 offen sc1 lds
            s_add_u32 s36, s36, 1024""")
    a.label("L_f_nx")
    a.nolog -= 1
    stamp(a, 4)
    blk_qperm(a)
    blk_stats(a)
    a(f"""v_mov_b32 v101, s11
    s_mov_b32 s37, {WS['C0']-WS['RS0']}
    s_mov_b64 exec, 1
    buffer_store_dwordx2 v[102:103], v101, {WSR}, 0 offen sc1
    buffer_store_dwordx2 v[104:105], v101, {WSR}, s37 offen sc1
    s_mov_b64 exec, -1
    s_waitcnt lgkmcnt(0)
    s_barrier
    ds_read_b128 v[72:75], v5 offset:8192
    ds_read_b128 v[76:79], v7 offset:{8192+4096}
    s_waitcnt lgkmcnt(1)
    buffer_store_dwordx4 v[72:75], v8, {WSR}, s8 offen sc1
    s_waitcnt lgkmcnt(0)
    buffer_store_dwordx4 v[76:79], v15, {WSR}, s8 offen sc1""")
    emit_ffn_roles(a)
    a(f"""v_and_b32 v11, 15, v1
    v_lshrrev_b32 v12, 4, v1
    v_lshlrev_b32 v13, 4, v11
    v_lshl_add_u32 v13, v12, 2, v13
    s_lshl_b32 s36, s67, 10
    v_add_u32 v13, s36, v13
    v_lshlrev_b32 v14, 1, v13
    v_lshlrev_b32 v15, 2, v13
    v_lshlrev_b32 v22, 6, v1
    v_add_u32 v22, {WS['SYNC'] + SYNC_FLAGS}, v22
    v_add_u32 v17, 1, v11
    v_and_b32 v18, 3, v17
    v_mul_u32_u24 v18, {HCS}, v18
    v_lshrrev_b32 v17, 2, v17
    v_lshlrev_b32 v17, 3, v17
    v_lshl_add_u32 v17, v12, 4, v17
    v_add_u32 v17, v17, v18
    s_lshl_b32 s36, s67, 8
    s_add_u32 s37, s36, s62
    v_add_u32 v17, s37, v17
    v_lshlrev_b32 v18, 5, v11
    v_lshlrev_b32 v19, 4, v12
    v_sub_u32 v18, v19, v18
    s_add_u32 s37, s37, {XRO + 480}
    v_add_u32 v18, s37, v18""")
    for r in range(32, 64): a(f"v_mov_b32 v{r}, 0")
    a(f"""s_cmp_lg_u32 s{S_W}, 0
    s_cbranch_scc1 L_f_nw
    s_waitcnt vmcnt(4)
    L_f_nw:
    s_barrier""")
    stamp(a, 6)
    pre = []
    for i in range(4):
        pre.append(f"buffer_load_dwordx2 v[{192+2*i}:{193+2*i}], v14, {WSR}, s10 offen offset:{512*i} sc1")
    for i in range(4):
        pre.append(f"buffer_load_dwordx4 v[{200+4*i}:{203+4*i}], v15, {WSR}, s8 offen offset:{1024*i} sc1")
        pre.append(f"buffer_load_dwordx4 v[{216+4*i}:{219+4*i}], v15, {WSR}, s9 offen offset:{1024*i} sc1")
    def load_frags(setbase, bi):
        ops = []
        for x in range(8):
            A = setbase + 4 * x
            ops.append(f"ds_read_b64 v[{A}:{A+1}], v17 offset:{512*x + 64*bi}")
            ops.append(f"ds_read_b64 v[{A+2}:{A+3}], v17 offset:{512*x + 64*bi + 8}")
            B = setbase + 32 + 4 * x
            ops.append(f"ds_read_b128 v[{B}:{B+3}], v18 offset:{512*(7-x) + 64*bi}")
        return ops
    sets = (64, 128)
    for op in load_frags(sets[0], 0): a(op)
    def flagloads(off):
        for i in range(4):
            if i == 0: a(f"buffer_load_dword v24, v22, {WSR}, 0 offen offset:{off} sc1")
            else: a(f"s_movk_i32 s39, {4096*i}\nbuffer_load_dword v{24+i}, v22, {WSR}, s39 offen offset:{off} sc1")
    for bi in range(4):
        cur = sets[bi & 1]
        nxt = load_frags(sets[(bi + 1) & 1], bi + 1) if bi < 3 else []
        if bi == 2:
            signal(a, 2, tv=(24, 25))
            a("v_and_b32 v9, 63, v0")
            blk_wtr_hi(a)
        if bi == 3:
            flagloads(0)
            if HALF:
                a("s_lshl_b32 s38, s22, 3")
                member_flag_off(a, 23, "s38", 8)
            else:
                member_flag_off(a, 23, "0", 16)
            a(f"buffer_load_dword v28, v23, {WSR}, 0 offen offset:4 sc1")
            a("s_waitcnt lgkmcnt(0)")
            for i in range(5):
                a(f"buffer_store_dwordx4 {vr(232+4*i)}, v254, {WSR}, s{(6, 7, 12, 13, 14)[i]} offen sc1")
        a("s_waitcnt lgkmcnt(0)")
        pairs = sorted([(jt, aa) for jt in range(8) for aa in range(jt + 1)], key=lambda p: (p[1], p[0]))
        k = 0
        for idx, (jt, aa) in enumerate(pairs):
            A = cur + 4 * aa; B = cur + 32 + 4 * (jt - aa); C = 32 + 4 * jt
            a(f"v_mfma_f32_16x16x32_bf16 v[{C}:{C+3}], v[{A}:{A+3}], v[{B}:{B+3}], v[{C}:{C+3}]")
            if idx < 24 and k < len(nxt):
                a(nxt[k]); k += 1
    stamp(a, 7)
    a("s_waitcnt vmcnt(5)")
    a(f"""v_cmp_eq_u32 vcc, s{S_IDW}, v28
    s_cmp_eq_u64 vcc, -1
    s_cselect_b32 s{S_LOC}, 1, 0""")
    flagcheck(a, 2, (24, 25, 26, 27), 22, "L_c_ok1", tmp=(29, 30))
    a(f"s_mov_b32 s8, {WS['RS0']}\ns_mov_b32 s9, {WS['C0']}\ns_add_u32 s10, s65, {WS['QT']}")
    for op in pre: a(op)
    a(f"""v_lshlrev_b32 v4, 4, v1
    s_lshl_b32 s36, s{S_W}, 12
    s_add_u32 s36, s36, {EXO}
    v_add_u32 v5, s36, v4
    s_xor_b32 s36, s36, 4096
    v_add_u32 v6, s36, v4
    s_cmp_eq_u32 s67, 0
    s_cbranch_scc0 L_c_x1""")
    for half in range(2):
        own, oth = (32, 48) if half == 0 else (48, 32)
        for i in range(4): a(f"ds_write_b128 v5, v[{oth+4*i}:{oth+4*i+3}] offset:{1024*i}")
        a("s_waitcnt vmcnt(12) lgkmcnt(0)\ns_barrier")
        for i in range(4): a(f"ds_read_b128 v[{80+4*i}:{83+4*i}], v6 offset:{1024*i}")
        a("s_waitcnt lgkmcnt(0)")
        for i in range(4):
            for h in range(2):
                a(f"v_pk_add_f32 v[{64+4*i+2*h}:{65+4*i+2*h}], v[{own+4*i+2*h}:{own+4*i+2*h+1}], v[{80+4*i+2*h}:{81+4*i+2*h}]")
        if half == 0:
            a("s_branch L_c_x2\nL_c_x1:")
    a.label("L_c_x2")
    a.nolog += 1
    a(f"""s_cmp_lg_u32 s{S_W}, 0
    s_cbranch_scc1 L_f_wf
    s_add_u32 s36, s{S_GEN}, 1
    v_mov_b32 v24, s36
    v_mov_b32 v25, s{S_FLAG}
    s_mov_b64 exec, 1
    buffer_store_dword v24, v25, {WSR}, 0 offen offset:8 sc1
    s_mov_b64 exec, -1
    L_f_wf:""")
    a.nolog -= 1
    a(f"""v_lshlrev_b32 v7, 5, v11
    v_lshl_add_u32 v7, v12, 3, v7
    s_lshl_b32 s36, s67, 11
    s_sub_u32 s37, s62, s36
    s_add_u32 s37, s37, {XRO + 4088 - 1536}
    v_sub_u32 v7, s37, v7""")
    for i in range(4): a(f"ds_read_b64 v[{96+2*i}:{97+2*i}], v7 offset:{512*(3-i)}")
    a(f"""s_lshr_b32 s39, s65, 12
    s_mul_i32 s39, s39, {XP}
    s_add_u32 s38, s39, {WS['YT']}
    s_add_u32 s39, s39, {WS['X1T']}
    s_waitcnt vmcnt(0) lgkmcnt(0)""")
    conv_epilogue(a)


import re as _re
def renum(text, lo, shift):
    def f(m):
        n = int(m.group(1)); return f"v{n - shift}" if n >= lo else m.group(0)
    def g(m):
        x, y = int(m.group(1)), int(m.group(2))
        return f"v[{x - shift}:{y - shift}]" if x >= lo else m.group(0)
    return _re.sub(r"\bv(\d+)\b", f, _re.sub(r"v\[(\d+):(\d+)\]", g, text))
class Sub:
    def __init__(self): self.t = []
    def __call__(self, x): self.t.append(x)
def blk_rbaddr(a):
    a(f"""v_lshrrev_b32 v3, 6, v0
    v_xor_b32 v5, v1, v3
    v_lshlrev_b32 v5, 4, v5
    v_lshlrev_b32 v6, 7, v2
    v_add_u32 v5, v5, v6
    v_add_u32 v5, {PL}, v5
    v_xor_b32 v7, 64, v5
    {PGs('s36')}
    s_lshl_b32 s36, s36, 18
    {PTs('s37', 's38')}
    s_lshl_b32 s37, s37, 7
    s_add_u32 s5, s36, s37
    s_add_u32 s5, s5, {WS['QT']}
    v_lshlrev_b32 v8, 12, v2
    v_lshlrev_b32 v15, 4, v1
    v_add_u32 v8, v8, v15
    v_add_u32 v15, 0x20000, v8""")
def build_prep_kernel(a, name):
    kbegin(a, name)
    a(f"""s_cmp_ge_u32 s2, 256
    s_cbranch_scc1 P_end
    s_load_dwordx4 s[4:7], s[0:1], {ARG['q']}
    s_load_dwordx4 s[8:11], s[0:1], {ARG['v']}
    s_load_dwordx2 s[16:17], s[0:1], {ARG['ws']}
    s_load_dwordx4 s[52:55], s[0:1], {ARG['w1']}
    s_load_dwordx2 s[56:57], s[0:1], {ARG['w2']}
    v_lshrrev_b32 v3, 6, v0
    v_readfirstlane_b32 s19, v3
    v_and_b32 v0, 255, v0
    v_and_b32 v1, 7, v0
    v_lshrrev_b32 v2, 3, v0
    v_and_b32 v9, 63, v0
    s_and_b32 s{S_W}, s19, 3
    s_lshr_b32 s19, s19, 2
    s_and_b32 s60, s2, 7
    s_lshr_b32 s61, s2, 3
    s_lshr_b32 s66, s{S_W}, 1
    s_and_b32 s67, s{S_W}, 1
    {PGs('s36')}
    s_lshl_b32 s36, s36, 7
    {PTs('s37', 's38')}
    s_lshl_b32 s37, s37, 16
    s_add_u32 s36, s36, s37
    v_lshlrev_b32 v4, 4, v1
    v_lshlrev_b32 v5, 11, v2
    v_add3_u32 v4, v4, v5, s36
    s_waitcnt lgkmcnt(0)""")
    srd(a, 20, 4, S * D * 2)
    srd(a, 24, 6, S * D * 2)
    srd(a, 32, 8, S * D * 2)
    srd(a, 40, 10, D * 8)
    srd(a, 28, 16, WS['END'])
    a("s_cmp_eq_u32 s19, 1\ns_cbranch_scc1 P_q\ns_cmp_eq_u32 s19, 2\ns_cbranch_scc1 P_w")
    a(f"""{PGs('s36')}
    s_lshl_b32 s36, s36, 9
    v_lshlrev_b32 v8, 6, v1
    v_add_u32 v8, s36, v8
    buffer_load_dwordx4 v[44:47], v8, s[40:43], 0 offen
    buffer_load_dwordx4 v[48:51], v8, s[40:43], 0 offen offset:16
    buffer_load_dwordx4 v[52:55], v8, s[40:43], 0 offen offset:32
    buffer_load_dwordx4 v[56:59], v8, s[40:43], 0 offen offset:48
    v_subrev_u32 v5, 3072, v4
    v_subrev_u32 v6, 2048, v4
    v_subrev_u32 v7, 1024, v4
    buffer_load_dwordx4 v[16:19], v5, s[24:27], 0 offen
    buffer_load_dwordx4 v[20:23], v6, s[24:27], 0 offen
    buffer_load_dwordx4 v[24:27], v7, s[24:27], 0 offen
    buffer_load_dwordx4 v[28:31], v4, s[24:27], 0 offen
    buffer_load_dwordx4 v[32:35], v4, s[24:27], 0 offen offset:1024
    buffer_load_dwordx4 v[36:39], v4, s[32:35], 0 offen
    buffer_load_dwordx4 v[40:43], v4, s[32:35], 0 offen offset:1024""")
    blk_addr(a)
    a("s_waitcnt vmcnt(7)")
    blk_skun(a)
    a("s_waitcnt vmcnt(0)")
    blk_kv(a)
    a("s_endpgm")
    a.label("P_q")
    emit_prep_loadsQ(a)
    emit_statrows(a)
    blk_addr(a)
    blk_rbaddr(a)
    a("s_waitcnt vmcnt(2)")
    blk_qperm(a)
    a("s_waitcnt vmcnt(0)")
    blk_stats(a)
    a(f"""v_mov_b32 v101, s11
    s_mov_b32 s37, {WS['C0']-WS['RS0']}
    s_mov_b64 exec, 1
    buffer_store_dwordx2 v[102:103], v101, {WSR}, 0 offen {PST}
    buffer_store_dwordx2 v[104:105], v101, {WSR}, s37 offen {PST}
    s_mov_b64 exec, -1
    s_waitcnt lgkmcnt(0)
    s_barrier
    ds_read_b128 v[72:75], v5 offset:8192
    ds_read_b128 v[76:79], v7 offset:{8192+4096}
    s_waitcnt lgkmcnt(1)
    buffer_store_dwordx4 v[72:75], v8, {WSR}, s5 offen {PST}
    s_waitcnt lgkmcnt(0)
    buffer_store_dwordx4 v[76:79], v15, {WSR}, s5 offen {PST}
    s_endpgm""")
    a.label("P_w")
    sub = Sub()
    sub(f"""s_cmp_eq_u32 s66, 0
    s_cselect_b32 s52, s52, s54
    s_cselect_b32 s53, s53, s55
    s_mov_b32 s54, {D*F*2}
    s_mov_b32 s55, 0x20000
    s_mov_b32 s58, {D*F*2}
    s_mov_b32 s59, 0x20000""")
    saveW = emit_prep_loadsW.__code__
    emit_prep_loadsW(sub)
    sub.t.pop(0)
    sub("s_waitcnt vmcnt(0)\ns_barrier")
    blk_wtr(sub)
    for i in range(5):
        sub(f"s_waitcnt lgkmcnt({2*(4-i)})\nbuffer_store_dwordx4 {vr(144+4*i)}, v183, {WSR}, s{6+i} offen {PST}")
    for t in sub.t: a(renum(t, 144, 100))
    a.label("P_end")
    a("s_endpgm")

def emit_split_front(a, w13ops):
    a(f"""s_cmp_ge_u32 s2, 256
    s_cbranch_scc1 L_end""")
    emit_codepf(a)
    a(f"""s_load_dwordx4 s[12:15], s[0:1], {ARG['h']}
    s_load_dwordx2 s[16:17], s[0:1], {ARG['ws']}
    v_lshrrev_b32 v3, 6, v0
    v_and_b32 v9, 63, v0
    v_and_b32 v1, 63, v0
    v_readfirstlane_b32 s{S_W}, v3
    s_and_b32 s60, s2, 7
    s_lshr_b32 s61, s2, 3
    s_lshl_b32 s{S_FLAG}, s60, 5
    s_add_u32 s{S_FLAG}, s{S_FLAG}, s61
    s_mov_b32 s19, s{S_FLAG}
    s_lshl_b32 s{S_FLAG}, s{S_FLAG}, 6
    s_add_u32 s{S_FLAG}, s{S_FLAG}, {WS['SYNC'] + SYNC_FLAGS}
    s_lshr_b32 s66, s{S_W}, 1
    s_and_b32 s67, s{S_W}, 1
    s_mul_i32 s62, s66, {CB}
    s_waitcnt lgkmcnt(0)""")
    srd(a, 28, 16, WS['END'])
    a(f"""s_add_u32 s36, s16, {WS['SYNC'] + SYNC_GEN}
    s_addc_u32 s37, s17, 0
    s_load_dword s{S_GEN}, s[36:37], 0""")
    stamp(a, 0)
    a(f"""s_lshl_b32 s65, s19, 1
    s_add_u32 s65, s65, s66
    s_lshl_b32 s65, s65, 12
    v_lshlrev_b32 v10, 4, v1
    s_lshl_b32 s36, s67, 11
    s_add_u32 s37, s65, s36
    s_add_u32 s37, s37, {WS['XR']}
    s_add_u32 s38, s62, s36
    s_add_u32 s38, s38, {XRO}
    s_mov_b32 m0, s38
    buffer_load_dwordx4 v10, {WSR}, s37 offen lds
    s_add_u32 s38, s38, 1024
    s_add_u32 s37, s37, 1024
    s_mov_b32 m0, s38
    buffer_load_dwordx4 v10, {WSR}, s37 offen lds""")
    a.tag = 'h'; emit_prep_loads2(a); a.tag = None
    emit_ffn_roles(a)
    a("s_waitcnt lgkmcnt(0)")
    a(f"""s_getreg_b32 s36, hwreg(HW_REG_XCC_ID, 0, 4)
    s_add_u32 s{S_IDW}, s{S_GEN}, 13
    s_lshl_b32 s{S_IDW}, s{S_IDW}, 4
    s_or_b32 s{S_IDW}, s{S_IDW}, s36
    s_mov_b32 s{S_LOC}, 0""")
    a.nolog += 1
    a(f"""s_cmp_lg_u32 s{S_W}, 0
    s_cbranch_scc1 L_noid
    v_mov_b32 v174, s{S_IDW}
    v_mov_b32 v175, s{S_FLAG}
    s_mov_b64 exec, 1
    buffer_store_dword v174, v175, {WSR}, 0 offen offset:4 sc1
    s_mov_b64 exec, -1
    L_noid:""")
    a.nolog -= 1
    a(f"""v_and_b32 v11, 15, v1
    v_lshrrev_b32 v12, 4, v1
    v_lshlrev_b32 v13, 4, v11
    v_lshl_add_u32 v13, v12, 2, v13
    s_lshl_b32 s36, s67, 10
    v_add_u32 v13, s36, v13
    v_lshlrev_b32 v14, 1, v13
    v_lshlrev_b32 v15, 2, v13
    v_add_u32 v17, 1, v11
    v_and_b32 v18, 3, v17
    v_mul_u32_u24 v18, {HCS}, v18
    v_lshrrev_b32 v17, 2, v17
    v_lshlrev_b32 v17, 3, v17
    v_lshl_add_u32 v17, v12, 4, v17
    v_add_u32 v17, v17, v18
    s_lshl_b32 s36, s67, 8
    s_add_u32 s37, s36, s62
    v_add_u32 v17, s37, v17
    v_lshlrev_b32 v18, 5, v11
    v_lshlrev_b32 v19, 4, v12
    v_sub_u32 v18, v19, v18
    s_add_u32 s37, s37, {XRO + 480}
    v_add_u32 v18, s37, v18""")
    for r in range(32, 64): a(f"v_mov_b32 v{r}, 0")
    a.vmneed('h')
    stamp(a, 4)
    a.tag = 'w13'
    for op in w13ops[:NWS]: a(op)
    a.tag = None
    blk_hcop(a)
    a("s_barrier")
    stamp(a, 6)
    pre = []
    for i in range(4):
        pre.append(f"buffer_load_dwordx2 v[{192+2*i}:{193+2*i}], v14, {WSR}, s10 offen offset:{512*i}")
    for i in range(4):
        pre.append(f"buffer_load_dwordx4 v[{200+4*i}:{203+4*i}], v15, {WSR}, s8 offen offset:{1024*i}")
        pre.append(f"buffer_load_dwordx4 v[{216+4*i}:{219+4*i}], v15, {WSR}, s9 offen offset:{1024*i}")
    a(f"s_mov_b32 s8, {WS['RS0']}\ns_mov_b32 s9, {WS['C0']}\ns_add_u32 s10, s65, {WS['QT']}")
    def load_frags(setbase, bi):
        ops = []
        for x in range(8):
            A = setbase + 4 * x
            ops.append(f"ds_read_b64 v[{A}:{A+1}], v17 offset:{512*x + 64*bi}")
            ops.append(f"ds_read_b64 v[{A+2}:{A+3}], v17 offset:{512*x + 64*bi + 8}")
            B = setbase + 32 + 4 * x
            ops.append(f"ds_read_b128 v[{B}:{B+3}], v18 offset:{512*(7-x) + 64*bi}")
        return ops
    sets = (64, 128)
    for op in load_frags(sets[0], 0): a(op)
    extra = [(op, 'w13') for op in w13ops[NWS:NWS + NWL1]] + [(op, 'pre') for op in pre] + [(op, 'w13') for op in w13ops[NWS + NWL1:NW13A]]
    nx = len(extra); done = 0
    for bi in range(4):
        cur = sets[bi & 1]
        nxt = load_frags(sets[(bi + 1) & 1], bi + 1) if bi < 3 else []
        if bi == 3:
            member_flag_off(a, 23, "0", 16)
            a.tag = 'id'; a(f"buffer_load_dword v28, v23, {WSR}, 0 offen offset:4 sc1"); a.tag = None
        a("s_waitcnt lgkmcnt(0)")
        pairs = sorted([(jt, aa) for jt in range(8) for aa in range(jt + 1)], key=lambda p: (p[1], p[0]))
        k = 0
        for idx, (jt, aa) in enumerate(pairs):
            A = cur + 4 * aa; B = cur + 32 + 4 * (jt - aa); C = 32 + 4 * jt
            a(f"v_mfma_f32_16x16x32_bf16 v[{C}:{C+3}], v[{A}:{A+3}], v[{B}:{B+3}], v[{C}:{C+3}]")
            if idx < 24 and k < len(nxt):
                a(nxt[k]); k += 1
            want = (bi * 36 + idx + 1) * nx // 140
            while done < min(want, nx):
                op, tg = extra[done]; a.tag = tg; a(op); a.tag = None; done += 1
    while done < nx:
        op, tg = extra[done]; a.tag = tg; a(op); a.tag = None; done += 1
    stamp(a, 7)
    a(f"""v_lshlrev_b32 v4, 4, v1
    s_lshl_b32 s36, s{S_W}, 12
    s_add_u32 s36, s36, {EXO}
    v_add_u32 v5, s36, v4
    s_xor_b32 s36, s36, 4096
    v_add_u32 v6, s36, v4
    s_cmp_eq_u32 s67, 0
    s_cbranch_scc0 L_c_x1""")
    for half in range(2):
        own, oth = (32, 48) if half == 0 else (48, 32)
        for i in range(4): a(f"ds_write_b128 v5, v[{oth+4*i}:{oth+4*i+3}] offset:{1024*i}")
        a("s_waitcnt lgkmcnt(0)\ns_barrier")
        for i in range(4): a(f"ds_read_b128 v[{80+4*i}:{83+4*i}], v6 offset:{1024*i}")
        a("s_waitcnt lgkmcnt(0)")
        for i in range(4):
            for h in range(2):
                a(f"v_pk_add_f32 v[{64+4*i+2*h}:{65+4*i+2*h}], v[{own+4*i+2*h}:{own+4*i+2*h+1}], v[{80+4*i+2*h}:{81+4*i+2*h}]")
        if half == 0:
            a("s_branch L_c_x2\nL_c_x1:")
    a.label("L_c_x2")
    a(f"""v_lshlrev_b32 v7, 5, v11
    v_lshl_add_u32 v7, v12, 3, v7
    s_lshl_b32 s36, s67, 11
    s_sub_u32 s37, s62, s36
    s_add_u32 s37, s37, {XRO + 4088 - 1536}
    v_sub_u32 v7, s37, v7""")
    for i in range(4): a(f"ds_read_b64 v[{96+2*i}:{97+2*i}], v7 offset:{512*(3-i)}")
    a(f"""s_lshr_b32 s39, s65, 12
    s_mul_i32 s39, s39, {XP}
    s_add_u32 s38, s39, {WS['YT']}
    s_add_u32 s39, s39, {WS['X1T']}""")
    a.vmneed('id')
    a(f"""v_cmp_eq_u32 vcc, s{S_IDW}, v28
    s_cmp_eq_u64 vcc, -1
    s_cselect_b32 s{S_LOC}, 1, 0""")
    a.vmneed('pre', " lgkmcnt(0)")
    conv_epilogue(a)

V_CS = 32; V_X3 = 44; V_ACC = 52; V_XB = 100; V_T = 116; V_HB = 116; V_W2 = 144
def w13(kb, t): b = (kb * 3 + t) * 4; return f"a[{b}:{b+3}]"
def w2(i, dt):
    idx = i * 4 + dt
    if idx < 16: b = 192 + idx * 4; return f"a[{b}:{b+3}]"
    b = V_W2 + (idx - 16) * 4; return f"v[{b}:{b+3}]"

def emit_ffn_roles_early(a):
    pass
def emit_ffn_roles(a):
    if HALF:
        a(f"""s_and_b32 s22, s60, 1
        s_lshr_b32 s20, s60, 1
        s_lshl_b32 s20, s20, 2
        s_and_b32 s36, s61, 3
        s_or_b32 s20, s20, s36
        s_lshr_b32 s23, s61, 2
        s_lshl_b32 s21, s22, 3
        s_or_b32 s21, s21, s23""")
    else:
        a(f"""s_and_b32 s20, s61, 1
        s_lshl_b32 s36, s60, 1
        s_or_b32 s20, s20, s36
        s_lshr_b32 s21, s61, 1
        s_lshr_b32 s22, s21, 3
        s_and_b32 s23, s21, 7""")
    for t in range(3):
        a(f"""s_mul_i32 s36, s{S_W}, 3
        s_add_u32 s36, s36, {t}
        s_mul_i32 s37, s21, 11
        s_add_u32 s37, s37, s36
        s_cmp_lt_u32 s36, 11
        s_cselect_b32 s38, s37, 0x7fff
        s_cmp_lt_u32 s38, 172
        s_cselect_b32 s39, 1, 0
        s_lshl_b32 s{40+t}, s37, 14
        s_add_u32 s{40+t}, s{40+t}, {WS['WF13']}
        s_lshr_b32 s{44+t}, s37, 1
        s_lshl_b32 s{44+t}, s{44+t}, 9
        s_and_b32 s37, s37, 1
        s_lshl_b32 s37, s37, 8
        s_add_u32 s{44+t}, s{44+t}, s37
        s_cmp_eq_u32 s39, 1
        s_cselect_b32 s{40+t}, s{40+t}, {INV}
        s_cselect_b32 s{44+t}, s{44+t}, {INV}""")
    a(f"""s_mul_i32 s36, s23, 43
    s_mul_i32 s37, s{S_W}, 11
    s_add_u32 s36, s36, s37
    s_lshl_b32 s48, s36, 12
    s_add_u32 s48, s48, {WS['WF2']}
    s_cmp_eq_u32 s{S_W}, 3
    s_cselect_b32 s49, {INV}, s48
    v_and_b32 v31, 63, v0
    v_lshlrev_b32 v31, 4, v31""")
def w13_loads(a):
    for kb in range(16):
        for t in range(3):
            a(f"s_add_u32 s36, s{40+t}, {kb*1024}\nbuffer_load_dwordx4 {w13(kb,t)}, v31, {WSR}, s36 offen sc1")
def w2_loads(a, lo, hi):
    for idx in range(lo, hi):
        i, dt = idx >> 2, idx & 3
        a(f"s_add_u32 s36, s{49 if i == 10 else 48}, {idx*1024}\nbuffer_load_dwordx4 {w2(i,dt)}, v31, {WSR}, s36 offen sc1")


def w_batch(a, ops):
    if not WREV or len(ops) < 4:
        for op in ops: a(op)
        return
    L = a.newlabel("wb")
    a(f"s_bitcmp1_b32 s20, 0\ns_cbranch_scc1 {L}_r")
    for op in ops: a(op)
    a(f"s_branch {L}_e\n{L}_r:")
    a.nolog += 1
    for op in reversed(ops): a(op)
    a.nolog -= 1
    a.label(f"{L}_e")

def emit_cs(a, lo, hi):
    a(f"v_mov_b32 v{V_XB}, 0x3f803f80\nv_mov_b32 v{V_XB+1}, 0x3f803f80\nv_mov_b32 v{V_XB+2}, 0x3f803f80\nv_mov_b32 v{V_XB+3}, 0x3f803f80")
    for kb in range(lo, hi):
        for t in range(3):
            c = V_CS + 4 * t
            a(f"v_mfma_f32_16x16x32_bf16 {vr(c)}, {w13(kb,t)}, {vr(V_XB)}, {'0' if kb == 0 else vr(c)}")

def x1_dma_setup(a):
    a(f"""v_lshrrev_b32 v2, 3, v1
    v_bfe_u32 v3, v1, 1, 2
    v_bfe_u32 v6, v1, 4, 1
    v_xor_b32 v3, v3, v6
    s_and_b32 s36, s{S_W}, 2
    v_xor_b32 v3, s36, v3
    v_and_b32 v6, 1, v1
    v_lshlrev_b32 v6, 4, v6
    v_mul_u32_u24 v2, {XP}, v2
    v_add_u32 v6, v2, v6
    v_lshl_add_u32 v27, v3, 5, v6""")
def x1_dma_ops(hf):
    ops = [f"""s_mul_i32 s56, s{S_W}, {8 * XP}
    s_lshl_b32 s57, s20, 8
    s_add_u32 s56, s56, s57
    s_add_u32 s56, s56, {WS['X1T'] + hf * 128}
    s_lshl_b32 s57, s{S_W}, 10
    s_add_u32 s57, s57, {hf * 65536}"""]
    for n in range(16):
        ops.append(f"""s_add_u32 m0, s57, {n * 4096}
        buffer_load_dwordx4 v27, {WSR}, s56 offen sc1 lds
        s_add_u32 s56, s56, {32 * XP}""")
    return ops
def tiles_dma(a):
    a(f"""v_lshrrev_b32 v2, 3, v1
    v_and_b32 v3, 7, v1
    v_mul_u32_u24 v2, {XP}, v2
    v_lshl_add_u32 v2, v3, 4, v2
    s_mul_i32 s36, s23, {64 * XP}
    s_mul_i32 s37, s{S_W}, {16 * XP}
    s_add_u32 s36, s36, s37
    s_lshl_b32 s37, s20, 8
    s_add_u32 s36, s36, s37
    s_lshl_b32 s37, s22, 7
    s_add_u32 s36, s36, s37
    s_lshl_b32 s38, s{S_W}, 11""")
    for arr, lb in (('X1T', L_TX), ('YT', L_TY)):
        for i in range(2):
            a(f"""s_add_u32 s37, s36, {WS[arr] + i * 8 * XP}
            s_add_u32 m0, s38, {lb + i * 1024}
            buffer_load_dwordx4 v2, {WSR}, s37 offen sc1 lds""")
def x3_dma_ops(hf):
    ops = [f"""s_lshl_b32 s56, s20, 3
    s_add_u32 s56, s56, s{S_W}
    s_add_u32 s56, s56, {4*hf}
    s_lshl_b32 s56, s56, 14
    s_add_u32 s56, s56, {WS['X3']}
    s_lshl_b32 s57, s{S_W}, 14
    s_add_u32 s57, s57, {hf * 65536}"""]
    for n in range(16):
        ops.append(f"""s_add_u32 m0, s57, {n * 1024}
        buffer_load_dwordx4 v31, {WSR}, s56 offen sc1 lds
        s_add_u32 s56, s56, 1024""")
    return ops
def member_flag_off(a, vdst, base_member_sgpr_expr, nmemb):
    a(f"""v_and_b32 v{vdst}, {nmemb-1}, v1
    v_add_u32 v{vdst}, {base_member_sgpr_expr}, v{vdst}""")
    if HALF:
        a(f"""v_lshrrev_b32 v29, 3, v{vdst}
        v_and_b32 v{vdst}, 7, v{vdst}
        v_lshlrev_b32 v{vdst}, 2, v{vdst}
        v_lshl_add_u32 v{vdst}, v29, 5, v{vdst}
        s_lshr_b32 s36, s20, 2
        s_lshl_b32 s36, s36, 6
        s_and_b32 s37, s20, 3
        s_add_u32 s36, s36, s37""")
    else:
        a(f"""v_lshlrev_b32 v{vdst}, 1, v{vdst}
        s_lshr_b32 s36, s20, 1
        s_lshl_b32 s36, s36, 5
        s_and_b32 s37, s20, 1
        s_add_u32 s36, s36, s37""")
    a(f"""v_add_u32 v{vdst}, s36, v{vdst}
    v_lshlrev_b32 v{vdst}, 6, v{vdst}
    v_add_u32 v{vdst}, {WS['SYNC'] + SYNC_FLAGS}, v{vdst}""")

def stats_write(a, hf, vm, vsd):
    a(f"""v_rcp_f32 v24, v{vsd}
    v_mul_f32 v{V_T+1}, v{vsd}, v{vsd}
    v_sub_f32 v{V_T+2}, 0, v{vm}
    v_mul_f32 v{V_T}, 0xbfb8aa3b, v24
    v_mov_b32 v{V_T+3}, 0
    s_lshl_b32 s36, s{S_W}, 8
    s_add_u32 s36, s36, {L_ST + hf * 1024}
    v_lshl_add_u32 v25, v2, 4, s36
    ds_write_b128 v25, {vr(V_T)}""")
def st3_stats(a, hf):
    a(f"""s_lshl_b32 s36, s20, 3
    s_add_u32 s36, s36, s{S_W}
    s_add_u32 s36, s36, {4*hf}
    s_lshl_b32 s36, s36, 10
    s_add_u32 s36, s36, {WS['SYNC'] + SYNC_ST3}
    v_lshrrev_b32 v124, 4, v1
    v_lshlrev_b32 v124, 8, v124
    v_and_b32 v125, 15, v1
    v_lshl_add_u32 v124, v125, 3, v124
    buffer_load_dwordx2 v[120:121], v124, {WSR}, s36 offen sc1
    buffer_load_dwordx2 v[122:123], v124, {WSR}, s36 offen offset:128 sc1""")
def st3_finish(a, hf):
    a(f"""v_add_f32 v126, v120, v122
    v_add_f32 v127, v121, v123""")
    sum_q(a, 126, 120); sum_q(a, 127, 121)
    ln_core(a, 126, 127)
    a(f"""v_rcp_f32 v120, v127
    v_mul_f32 v117, v127, v127
    v_sub_f32 v118, 0, v126
    v_mul_f32 v116, 0xbfb8aa3b, v120
    v_mov_b32 v119, 0
    s_lshl_b32 s36, s{S_W}, 8
    s_add_u32 s36, s36, {L_ST + hf * 1024}
    v_lshl_add_u32 v124, v125, 4, s36
    ds_write_b128 v124, v[116:119]""")

def g1_addr(a, layer, hbase):
    tr = layer == 1
    a(f"""v_and_b32 v2, 15, v1
    v_lshrrev_b32 v3, 4, v1""")
    for x in range(4):
        a(f"""s_add_u32 s36, s{S_W}, {x}
        s_and_b32 s36, s36, 3""")
        if tr:
            a(f"""v_bfe_u32 v4, v1, 2, 2
            v_lshl_add_u32 v5, v3, 4, v4
            v_lshlrev_b32 v5, 7, v5
            v_lshrrev_b32 v4, 1, v4
            v_and_b32 v6, 1, v3
            v_lshl_or_b32 v4, v6, 1, v4
            v_xor_b32 v4, s36, v4
            v_lshl_add_u32 v5, v4, 5, v5
            v_and_b32 v6, 3, v1
            v_lshl_add_u32 v{8+x}, v6, 3, v5""")
        else:
            a(f"""s_lshl_b32 s37, s36, 14
            v_add_u32 v{8+x}, s37, v31""")
        a(f"""s_lshl_b32 s37, s36, 8
        s_add_u32 s37, s37, {L_ST}
        v_lshl_add_u32 v{15+x}, v2, 4, s37""")
    for p in range(2):
        a(f"""v_lshrrev_b32 v4, 5, v1
        v_add_u32 v4, s{S_W}, v4
        v_add_u32 v4, {2*p}, v4
        v_and_b32 v4, 3, v4
        v_mul_u32_u24 v5, {HT}, v4
        v_bfe_u32 v6, v1, 4, 1
        v_lshl_add_u32 v5, v6, 7, v5
        v_lshl_add_u32 v{12+p}, v2, 3, v5
        v_lshlrev_b32 v4, 8, v4
        v_lshl_add_u32 v4, v2, 4, v4
        v_add_u32 v{19+p}, {L_ST}, v4""")
    a(f"""s_mul_i32 s36, s20, {8*HT}
    s_add_u32 s36, s36, {hbase}""")
    for t in range(3): a(f"s_add_u32 s{52+t}, s{44+t}, s36")

def g1_sub(a, layer, sb, hook=None, cs_from=16):
    tr = layer == 1
    def rd(n):
        kb, x = n >> 2, n & 3
        B = V_XB + 4 * x
        if tr:
            off = (kb >> 1) * 8192 + (kb & 1) * 1024
            return [f"ds_read_b64_tr_b16 v[{B}:{B+1}], v{8+x} offset:{off}", f"ds_read_b64_tr_b16 v[{B+2}:{B+3}], v{8+x} offset:{off+512}"]
        return [f"ds_read_b128 {vr(B)}, v{8+x} offset:{kb*1024}"]
    per = 2 if tr else 1
    ONE, SA, SG = V_T, V_T + 4, V_T + 8
    if tr:
        for k in range(4): a(f"v_mov_b32 v{ONE+k}, 0x3f803f80")
    for n in range(3):
        for op in rd(n): a(op)
    for n in range(64):
        kb, x = n >> 2, n & 3
        if x == 0 and hook: hook(kb)
        infl = min(2, 63 - n)
        a(f"s_waitcnt lgkmcnt({infl*per})")
        B = V_XB + 4 * x
        for t in range(3):
            c = V_ACC + (x * 3 + t) * 4
            a(f"v_mfma_f32_16x16x32_bf16 {vr(c)}, {w13(kb,t)}, {vr(B)}, {'0' if kb == 0 else vr(c)}")
            if t == 0 and n + 3 < 64:
                for op in rd(n + 3): a(op)
        if tr and x == 1 and kb >= cs_from:
            for t in range(3):
                c = V_CS + 4 * t
                a(f"v_mfma_f32_16x16x32_bf16 {vr(c)}, {w13(kb,t)}, {vr(ONE)}, {vr(c)}")
        if tr and x == 0:
            a(f"v_mfma_f32_16x16x32_bf16 {vr(SA)}, {vr(ONE)}, {vr(B)}, {'0' if kb == 0 else vr(SA)}")
            a(f"v_mfma_f32_16x16x32_bf16 {vr(SG)}, {vr(B)}, {vr(B)}, {'0' if kb == 0 else vr(SG)}")
    if tr:
        a(f"""v_and_b32 v4, 3, v2
        v_cmp_eq_u32 vcc, 1, v4
        v_cndmask_b32 v23, v{SG}, v{SG+1}, vcc
        v_cmp_eq_u32 vcc, 2, v4
        v_cndmask_b32 v23, v23, v{SG+2}, vcc
        v_cmp_eq_u32 vcc, 3, v4
        v_cndmask_b32 v23, v23, v{SG+3}, vcc
        v_mov_b32 v22, v{SA}""")
        ln_core(a, 22, 23)
        a(f"""v_lshrrev_b32 v4, 2, v2
        v_cmp_eq_u32 vcc, v4, v3
        s_and_saveexec_b64 s[38:39], vcc""")
        stats_write(a, sb, 22, 23)
        a("s_mov_b64 exec, s[38:39]\ns_waitcnt lgkmcnt(0)\ns_barrier")

def g1_epi(a, sb):
    so = sb * 1024
    for x in range(4): a(f"ds_read_b32 v{V_T+2*x}, v{15+x} offset:{8+so}")
    for p in range(2): a(f"ds_read_b64 v[{V_T+8+2*p}:{V_T+9+2*p}], v{19+p} offset:{so}")
    a("s_waitcnt lgkmcnt(0)")
    A = lambda x, t: V_ACC + (x * 3 + t) * 4
    for t in range(3):
        cs = V_CS + 4 * t
        for x in range(4):
            for h in range(2):
                r = A(x, t) + 2 * h
                a(f"v_pk_fma_f32 v[{r}:{r+1}], v[{cs+2*h}:{cs+2*h+1}], v[{V_T+2*x}:{V_T+2*x+1}], v[{r}:{r+1}] op_sel_hi:[1,0,1]")
    for t in range(3):
        for p in range(2):
            for r in range(4): a(f"v_permlane32_swap_b32 v{A(2*p,t)+r}, v{A(2*p+1,t)+r}")
    for p in range(2):
        c1 = V_T + 8 + 2 * p
        T = lambda t: V_XB + 4 * t
        for t in range(3):
            for h in range(2):
                a(f"v_pk_mul_f32 v[{T(t)+2*h}:{T(t)+2*h+1}], v[{A(2*p,t)+2*h}:{A(2*p,t)+2*h+1}], v[{c1}:{c1+1}] op_sel_hi:[1,0]")
        for t in range(3):
            for r in range(4): a(f"v_exp_f32 v{T(t)+r}, v{T(t)+r}")
        for t in range(3):
            for h in range(2):
                g, u = A(2*p, t) + 2 * h, A(2*p+1, t) + 2 * h
                a(f"v_pk_mul_f32 v[{g}:{g+1}], v[{g}:{g+1}], v[{u}:{u+1}]")
        for t in range(3):
            for h in range(2):
                a(f"v_pk_fma_f32 v[{T(t)+2*h}:{T(t)+2*h+1}], v[{T(t)+2*h}:{T(t)+2*h+1}], v[{c1}:{c1+1}], v[{c1}:{c1+1}] op_sel:[0,1,1] op_sel_hi:[1,1,1]")
        for t in range(3):
            for r in range(4): a(f"v_rcp_f32 v{T(t)+r}, v{T(t)+r}")
        for t in range(3):
            for h in range(2):
                g = A(2*p, t) + 2 * h
                a(f"v_pk_mul_f32 v[{g}:{g+1}], v[{g}:{g+1}], v[{T(t)+2*h}:{T(t)+2*h+1}]")
        for t in range(3):
            g = A(2*p, t); u = A(2*p+1, t)
            a(f"""v_cvt_pk_bf16_f32 v{u}, v{g}, v{g+1}
            v_cvt_pk_bf16_f32 v{u+1}, v{g+2}, v{g+3}""")
        for t in range(3):
            u = A(2*p+1, t)
            a(f"buffer_store_dwordx2 v[{u}:{u+1}], v{12+p}, {WSR}, s{52+t} offen {LS('h')}")
def g1_next(a):
    for x in range(4): a(f"v_add_u32 v{8+x}, 0x10000, v{8+x}")
    for p in range(2): a(f"v_add_u32 v{12+p}, {4*HT}, v{12+p}")


NEG = (22, 24)
def epi_ops(P):
    p = P & 1; so = (P >> 1) * 1024
    A = lambda x, t: V_ACC + (x * 3 + t) * 4
    T = lambda t: V_T + 12 + 4 * t
    c1, ir = 26, 27
    ops = [f"ds_read_b32 v{NEG[0]}, v{15+2*p} offset:{8+so}", f"ds_read_b32 v{NEG[1]}, v{15+2*p+1} offset:{8+so}", f"ds_read_b64 v[26:27], v{19+p} offset:{so}"]
    ops += ["@gap"] * 10
    for t in range(3):
        for xl in range(2):
            for r in range(4): ops.append(f"v_fma_f32 v{A(2*p+xl,t)+r}, v{V_CS+4*t+r}, v{NEG[xl]}, v{A(2*p+xl,t)+r}")
    for t in range(3):
        for r in range(4): ops.append(f"v_permlane32_swap_b32 v{A(2*p,t)+r}, v{A(2*p+1,t)+r}")
    for t in range(3):
        for r in range(4): ops.append(f"v_mul_f32 v{T(t)+r}, v{A(2*p,t)+r}, v{c1}")
    for t in range(3):
        for r in range(4): ops.append(f"v_exp_f32 v{T(t)+r}, v{T(t)+r}")
        for r in range(4): ops.append(f"v_mul_f32 v{A(2*p,t)+r}, v{A(2*p,t)+r}, v{A(2*p+1,t)+r}")
    for t in range(3):
        for r in range(4): ops.append(f"v_fma_f32 v{T(t)+r}, v{T(t)+r}, v{ir}, v{ir}")
    for t in range(3):
        for r in range(4): ops.append(f"v_rcp_f32 v{T(t)+r}, v{T(t)+r}")
    for t in range(3):
        for r in range(4): ops.append(f"v_mul_f32 v{A(2*p,t)+r}, v{A(2*p,t)+r}, v{T(t)+r}")
    for t in range(3):
        g, u = A(2*p, t), A(2*p+1, t)
        ops += [f"v_cvt_pk_bf16_f32 v{u}, v{g}, v{g+1}", f"v_cvt_pk_bf16_f32 v{u+1}, v{g+2}, v{g+3}"]
    for t in range(3):
        u = A(2*p+1, t)
        ops.append(f"buffer_store_dwordx2 v[{u}:{u+1}], v{12+p}, {WSR}, s{52+t} offen {LS('h')}")
    ops.append(f"v_add_u32 v{12+p}, {4*HT}, v{12+p}")
    return ops

def epi_pk(a, P):
    p = P & 1; so = (P >> 1) * 1024
    A = lambda x, t: V_ACC + (x * 3 + t) * 4
    T = (lambda t: V_XB + 4 * t) if P == 3 else (lambda t: V_T + 12 + 4 * t)
    c1 = 26
    a(f"ds_read_b32 v{NEG[0]}, v{15+2*p} offset:{8+so}\nds_read_b32 v{NEG[1]}, v{15+2*p+1} offset:{8+so}\nds_read_b64 v[26:27], v{19+p} offset:{so}\ns_waitcnt lgkmcnt(0)")
    for t in range(3):
        cs = V_CS + 4 * t
        for xl in range(2):
            for h in range(2):
                r = A(2*p+xl, t) + 2 * h
                a(f"v_pk_fma_f32 v[{r}:{r+1}], v[{cs+2*h}:{cs+2*h+1}], v[{NEG[xl]}:{NEG[xl]+1}], v[{r}:{r+1}] op_sel_hi:[1,0,1]")
    for t in range(3):
        for r in range(4): a(f"v_permlane32_swap_b32 v{A(2*p,t)+r}, v{A(2*p+1,t)+r}")
    for t in range(3):
        for h in range(2):
            a(f"v_pk_mul_f32 v[{T(t)+2*h}:{T(t)+2*h+1}], v[{A(2*p,t)+2*h}:{A(2*p,t)+2*h+1}], v[{c1}:{c1+1}] op_sel_hi:[1,0]")
    for t in range(3):
        for r in range(4): a(f"v_exp_f32 v{T(t)+r}, v{T(t)+r}")
    for t in range(3):
        for h in range(2):
            g, u = A(2*p, t) + 2 * h, A(2*p+1, t) + 2 * h
            a(f"v_pk_mul_f32 v[{g}:{g+1}], v[{g}:{g+1}], v[{u}:{u+1}]")
    for t in range(3):
        for h in range(2):
            a(f"v_pk_fma_f32 v[{T(t)+2*h}:{T(t)+2*h+1}], v[{T(t)+2*h}:{T(t)+2*h+1}], v[{c1}:{c1+1}], v[{c1}:{c1+1}] op_sel:[0,1,1] op_sel_hi:[1,1,1]")
    for t in range(3):
        for r in range(4): a(f"v_rcp_f32 v{T(t)+r}, v{T(t)+r}")
    for t in range(3):
        for h in range(2):
            g = A(2*p, t) + 2 * h
            a(f"v_pk_mul_f32 v[{g}:{g+1}], v[{g}:{g+1}], v[{T(t)+2*h}:{T(t)+2*h+1}]")
    for t in range(3):
        g = A(2*p, t); u = A(2*p+1, t)
        a(f"v_cvt_pk_bf16_f32 v{u}, v{g}, v{g+1}\nv_cvt_pk_bf16_f32 v{u+1}, v{g+2}, v{g+3}")
    a.tag = f"E{P}"
    for t in range(3):
        u = A(2*p+1, t)
        a(f"buffer_store_dwordx2 v[{u}:{u+1}], v{12+p}, {WSR}, s{52+t} offen {LS('h')}")
    a.tag = None
    if P < 2: a(f"v_add_u32 v{12+p}, {4*HT}, v{12+p}")


def touch_h(a, half, T):
    if not TOUCH: return
    for p in range(2):
        adj = 4 * HT if (half == 0 or p == 0) else 0
        for t in range(3):
            a(f"s_sub_u32 s36, s{52+t}, {adj}\nbuffer_load_dword v{T}, v{12+p}, {WSR}, s36 offen sc1")

def l1_stats(a, hf):
    SA, SG = V_T + 4, V_T + 8
    a(f"""v_and_b32 v4, 3, v2
    v_cmp_eq_u32 vcc, 1, v4
    v_cndmask_b32 v29, v{SG}, v{SG+1}, vcc
    v_cmp_eq_u32 vcc, 2, v4
    v_cndmask_b32 v29, v29, v{SG+2}, vcc
    v_cmp_eq_u32 vcc, 3, v4
    v_cndmask_b32 v29, v29, v{SG+3}, vcc
    v_mov_b32 v28, v{SA}""")
    ln_core(a, 28, 29)
    a(f"""v_rcp_f32 v5, v29
    v_mul_f32 v{SA+1}, v29, v29
    v_sub_f32 v{SA+2}, 0, v28
    v_mul_f32 v{SA}, 0xbfb8aa3b, v5
    v_mov_b32 v{SA+3}, 0
    s_lshl_b32 s36, s{S_W}, 8
    s_add_u32 s36, s36, {L_ST + hf * 1024}
    v_lshl_add_u32 v6, v2, 4, s36
    v_lshrrev_b32 v4, 2, v2
    v_cmp_eq_u32 vcc, v4, v3
    s_and_saveexec_b64 s[38:39], vcc
    ds_write_b128 v6, {vr(SA)}
    s_mov_b64 exec, s[38:39]
    s_waitcnt lgkmcnt(0)
    s_barrier""")

def g1_stream(a, layer, hook=None, cs_from=16, st=None):
    tr = layer == 1
    per = 2 if tr else 1
    def rd(N):
        P, n = N >> 5, N & 31
        kb, xl = n >> 1, n & 1
        x = 2 * (P & 1) + xl
        B = V_XB + 4 * (N & 3)
        if tr:
            off = (kb >> 1) * 8192 + (kb & 1) * 1024
            return [f"ds_read_b64_tr_b16 v[{B}:{B+1}], v{8+x} offset:{off}", f"ds_read_b64_tr_b16 v[{B+2}:{B+3}], v{8+x} offset:{off+512}"]
        return [f"ds_read_b128 {vr(B)}, v{8+x} offset:{kb*1024}"]
    ONE, SA, SG = V_T, V_T + 4, V_T + 8
    if tr:
        for k in range(4): a(f"v_mov_b32 v{ONE+k}, 0x3f803f80")
    for N in range(3):
        for op in rd(N): a(op)
    restart = set()
    for P in range(4):
        fill = epi_ops(P - 1) if (P > 0 and not (tr and L1PK)) else []
        if P == 1: fill = [f"v_add_u32 v{8+x}, 0x10000, v{8+x}" for x in (0, 1)] + fill
        if P == 2: fill = [f"v_add_u32 v{8+x}, 0x10000, v{8+x}" for x in (2, 3)][:0] + fill
        cost = lambda op: 2.0 if op.startswith(("v_exp", "v_rcp", "v_permlane")) else 1.0
        rate = sum(cost(o) for o in fill) / 92.0
        budget = 0.0
        for n in range(32):
            N = P * 32 + n
            kb, xl = n >> 1, n & 1
            if xl == 0 and hook: hook(P, kb)
            if P == 2 and n == 4:
                for x in (2, 3): a(f"v_add_u32 v{8+x}, 0x10000, v{8+x}")
            infl = min(2, 127 - N)
            a(f"s_waitcnt lgkmcnt({infl*per})")
            B = V_XB + 4 * (N & 3)
            x = 2 * (P & 1) + xl
            mf = [f"v_mfma_f32_16x16x32_bf16 {vr(V_ACC + (x*3+t)*4)}, {w13(kb,t)}, {vr(B)}, {'0' if kb == 0 else vr(V_ACC + (x*3+t)*4)}" for t in range(3)]
            if tr and P == 0 and xl == 1 and kb >= cs_from:
                mf += [f"v_mfma_f32_16x16x32_bf16 {vr(V_CS+4*t)}, {w13(kb,t)}, {vr(ONE)}, {vr(V_CS+4*t)}" for t in range(3)]
            if tr and P in (0, 2) and xl == 0:
                mf.append(f"v_mfma_f32_16x16x32_bf16 {vr(SA)}, {vr(ONE)}, {vr(B)}, {'0' if kb == 0 else vr(SA)}")
                mf.append(f"v_mfma_f32_16x16x32_bf16 {vr(SG)}, {vr(B)}, {vr(B)}, {'0' if kb == 0 else vr(SG)}")
            for i, m in enumerate(mf):
                a(m)
                if i == 0 and N + 3 < 128:
                    for op in rd(N + 3): a(op)
                if i < 3:
                    budget += rate
                    while fill and budget >= cost(fill[0]) - 0.5:
                        op = fill.pop(0); budget -= cost(op)
                        if op.startswith("buffer_store"): a.tag = f"E{P-1}"
                        if op != "@gap": a(op)
                        a.tag = None
        for op in fill:
            if op.startswith("buffer_store"): a.tag = f"E{P-1}"
            if op != "@gap": a(op)
            a.tag = None
        if st is not None and FINE == 'P': fstamp(a, st + P)
        if tr and P in (0, 2):
            l1_stats(a, P >> 1)
        if tr and L1PK and P < 3:
            epi_pk(a, P)
    epi_pk(a, 3)

def emit_g2(a, layer, hbase, etagA, st):
    ACC = V_ACC
    acc = lambda dt, x: ACC + (x * 4 + dt) * 4
    for x in range(4):
        a(f"""s_add_u32 s36, s{S_W}, {x}
        s_and_b32 s36, s36, 3
        s_lshl_b32 s37, s20, 3
        s_add_u32 s36, s36, s37
        s_lshl_b32 s37, s22, 2
        s_add_u32 s36, s36, s37
        s_mul_i32 s36, s36, {HT}
        s_mul_i32 s37, s{S_W}, {11*1024}
        s_add_u32 s36, s36, s37
        s_add_u32 s{56+x}, s36, {hbase}
        s_cmp_eq_u32 s{S_W}, 3
        s_cselect_b32 s{60+x}, {INV}, s{56+x}""")
    a(f"""s_lshl_b32 s51, s{S_W}, 15
    v_lshrrev_b32 v2, 4, v1
    v_and_b32 v3, 15, v1
    v_lshlrev_b32 v8, 7, v2
    v_lshl_add_u32 v8, v3, 3, v8
    v_add_u32 v8, s51, v8
    s_add_u32 s50, s{S_GEN}, s22
    s_add_u32 s50, s50, {etagA}""")
    def su():
        member_flag_off(a, 9, "0", 16)
    wg_wait(a, su, 9, 1, None, V_HB, etag=50)
    stamp(a, st)
    for x in range(4): a(f"v_add_u32 v{10+x}, s{56+x}, v31")
    a(f"""s_mov_b32 s56, 0
    s_movk_i32 s57, 4096
    s_movk_i32 s58, 8192
    s_cmp_eq_u32 s{S_W}, 3
    s_cselect_b32 s59, {INV}, s58""")
    def dma_m0(i, x): return f"s_add_u32 m0, s51, {x*8192 + ((i % 8) & ~3)*1024}"
    def dma_ld(i, x):
        sg = 59 if i == 10 else 56 + (i >> 2)
        return f"buffer_load_dwordx4 v{10+x}, {WSR}, s{sg} offen offset:{(i & 3)*1024} sc1 lds"
    for i in range(4):
        for x in range(4):
            a(dma_m0(i, x)); a.tag = f"g2_{layer}_{i}_{x}"; a(dma_ld(i, x)); a.tag = None
    q = [(i, x) for i in range(4, 11) for x in range(4)]
    def sx(n):
        i, x = n >> 2, n & 3
        if i == 10 and EARLYW: x = (x + 1) & 3
        return i, x
    def rd(n):
        i, x = sx(n)
        B = V_HB + 4 * (n & 3); off = x * 8192 + (i % 8) * 1024
        return [f"ds_read_b64 v[{B}:{B+1}], v8 offset:{off}", f"ds_read_b64 v[{B+2}:{B+3}], v8 offset:{off+512}"]
    lastn = [None]
    def vmw(n):
        i, x = sx(n)
        tag = f"g2_{layer}_{i}_{x}"
        pos = max(k for k, t in enumerate(a.vmlog) if t == tag)
        cnt = len(a.vmlog) - 1 - pos
        if lastn[0] is not None and pos <= lastn[0]: return
        a(f"s_waitcnt vmcnt({cnt})"); lastn[0] = pos
    if FINE == 'G': fstamp(a, 1 + 6 * (layer - 1))
    vmw(2)
    stamp(a, st + 1)
    if FINE == 'G': fstamp(a, 2 + 6 * (layer - 1))
    for n in range(3):
        for op in rd(n): a(op)
    if EARLYW: a(f"v_add_u32 v9, s51, v31")
    for n in range(44):
        i, x = sx(n)
        infl = min(2, 43 - n)
        a(f"s_waitcnt lgkmcnt({infl*2 + (4 if (EARLYW and n == 43) else 0)})")
        B = V_HB + 4 * (n & 3)
        for dt in range(4):
            c = acc(dt, x)
            a(f"v_mfma_f32_16x16x32_bf16 {vr(c)}, {w2(i,dt)}, {vr(B)}, {'0' if i == 0 else vr(c)}")
            if dt == 0 and n + 3 < 44:
                vmw(n + 3)
                for op in rd(n + 3): a(op)
            if q and dt == 1: a(dma_m0(*q[0]))
            if q and dt == 2:
                i_, x_ = q.pop(0)
                a.tag = f"g2_{layer}_{i_}_{x_}"; a(dma_ld(i_, x_)); a.tag = None
        if EARLYW and n in (42, 43):
            xs = n - 41
            for dt in range(4): a(f"ds_write_b128 v9, {vr(acc(dt,xs))} offset:{((xs-1)*4+dt)*1024}")
    assert not q
    if FINE == 'G': fstamp(a, 3 + 6 * (layer - 1))
    stamp(a, st + 2)
    if not EARLYW: a(f"v_add_u32 v9, s51, v31")
    for x in range(3 if EARLYW else 1, 4):
        for dt in range(4):
            a(f"ds_write_b128 v9, {vr(acc(dt,x))} offset:{((x-1)*4+dt)*1024}")
    for x in range(1, 4):
        a(f"""s_sub_u32 s36, s{S_W}, {x}
        s_and_b32 s36, s36, 3
        s_lshl_b32 s36, s36, 15
        v_add_u32 v{9+x}, s36, v31""")
    a("s_waitcnt lgkmcnt(0)\ns_barrier")
    for x in range(1, 4):
        for dt in range(4):
            a(f"ds_read_b128 {vr(acc(dt,x))}, v{9+x} offset:{((x-1)*4+dt)*1024}")
    if layer == 1:
        a(f"""v_bfe_u32 v4, v1, 2, 2
        v_lshl_add_u32 v4, v2, 4, v4
        v_lshlrev_b32 v4, 7, v4
        v_and_b32 v5, 3, v1
        v_lshl_add_u32 v4, v5, 3, v4
        s_lshl_b32 s36, s{S_W}, 5
        s_add_u32 s36, s36, {L_TX}
        v_add_u32 v4, s36, v4""")
        P = V_HB; Yp = V_HB + 8
        for dt in range(4):
            a(f"ds_read_b64_tr_b16 v[{P+2*dt}:{P+2*dt+1}], v4 offset:{dt*512}")
        for dt in range(4):
            a(f"ds_read_b64_tr_b16 v[{Yp+2*dt}:{Yp+2*dt+1}], v4 offset:{8192+dt*512}")
        nl = 8
    else:
        P = V_X3; nl = 0
    for x in range(1, 4):
        a(f"s_waitcnt lgkmcnt({min(15, (3-x)*4 + nl)})")
        for dt in range(4):
            for h in range(2):
                c, o = acc(dt, 0) + 2 * h, acc(dt, x) + 2 * h
                a(f"v_pk_add_f32 v[{c}:{c+1}], v[{c}:{c+1}], v[{o}:{o+1}]")
    stamp(a, st + 3)
    if FINE == 'G': fstamp(a, 4 + 6 * (layer - 1))
    O = ACC; X = ACC + 16; PK = ACC + 48
    a("s_waitcnt lgkmcnt(0)")
    for k in range(8):
        a(f"v_lshlrev_b32 v{X+2*k}, 16, v{P+k}\nv_and_b32 v{X+2*k+1}, 0xffff0000, v{P+k}")
    for k in range(8): a(f"v_cvt_pk_bf16_f32 v{PK+k}, v{O+2*k}, v{O+2*k+1}")
    for k in range(8):
        a(f"v_lshlrev_b32 v{O+2*k}, 16, v{PK+k}\nv_and_b32 v{O+2*k+1}, 0xffff0000, v{PK+k}")
    for k in range(8):
        a(f"v_pk_add_f32 v[{O+2*k}:{O+2*k+1}], v[{O+2*k}:{O+2*k+1}], v[{X+2*k}:{X+2*k+1}]")
    for k in range(8): a(f"v_cvt_pk_bf16_f32 v{PK+k}, v{O+2*k}, v{O+2*k+1}")
    if layer == 2:
        a(f"""s_load_dwordx2 s[32:33], s[0:1], {ARG['out']}
        s_lshl_b32 s36, s20, 7
        s_lshl_b32 s37, s22, 6
        s_add_u32 s36, s36, s37
        s_lshl_b32 s37, s{S_W}, 4
        s_add_u32 s36, s36, s37
        s_lshl_b32 s36, s36, 10
        s_lshl_b32 s37, s23, 7
        s_add_u32 s36, s36, s37
        v_lshlrev_b32 v4, 10, v3
        v_lshl_add_u32 v4, v2, 5, v4
        s_waitcnt lgkmcnt(0)
        s_mov_b32 s34, {S*D*2}
        s_mov_b32 s35, 0x20000
        buffer_store_dwordx4 {vr(PK)}, v4, s[32:35], s36 offen {OUTF}
        buffer_store_dwordx4 {vr(PK+4)}, v4, s[32:35], s36 offen offset:16 {OUTF}""")
        return
    a(f"v_mov_b32 v22, 0\nv_mov_b32 v23, 0\nv_mov_b32 v21, 0x3f803f80\nv_mov_b32 v26, 0\nv_mov_b32 v27, 0")
    for k in range(0, 8, 2):
        a(f"""v_dot2_f32_bf16 v22, v{PK+k}, v21, v22
        v_dot2_f32_bf16 v23, v{PK+k}, v{PK+k}, v23
        v_dot2_f32_bf16 v26, v{PK+k+1}, v21, v26
        v_dot2_f32_bf16 v27, v{PK+k+1}, v{PK+k+1}, v27""")
    a("v_add_f32 v22, v22, v26\nv_add_f32 v23, v23, v27")
    a(f"""v_mov_b32 v24, v22
    v_mov_b32 v25, v23
    v_permlane16_swap_b32 v22, v24
    v_permlane16_swap_b32 v23, v25
    v_add_f32 v22, v22, v24
    v_add_f32 v23, v23, v25
    v_mov_b32 v24, v22
    v_mov_b32 v25, v23
    v_permlane32_swap_b32 v22, v24
    v_permlane32_swap_b32 v23, v25
    v_add_f32 v22, v22, v24
    v_add_f32 v23, v23, v25""")
    L = a.newlabel("hop")
    a(f"""s_add_u32 s50, s{S_GEN}, 12
    v_mov_b32 v24, s50
    v_mov_b32 v25, 0
    s_lshl_b32 s36, s20, 1
    s_add_u32 s36, s36, s22
    s_lshl_b32 s36, s36, 13
    s_lshl_b32 s37, s{S_W}, 8
    s_add_u32 s36, s36, s37
    s_add_u32 s36, s36, {WS['SYNC'] + SYNC_ST2}
    s_lshl_b32 s37, s23, 10
    s_add_u32 s37, s37, s36
    v_lshlrev_b32 v4, 4, v3
    s_mov_b64 exec, 0xffff""")
    dstore(a, f"buffer_store_dwordx4 v[22:25], v4, {WSR}, s37 offen {{F}}", "hop")
    a(f"""s_mov_b64 exec, -1
    v_lshl_add_u32 v5, v2, 11, v4""")
    for k in range(8):
        a(f"v_lshlrev_b32 v{X+2*k}, 16, v{PK+k}\nv_and_b32 v{X+2*k+1}, 0xffff0000, v{PK+k}")
    a(f"""s_mov_b32 s38, 0
    {L}_p:
    buffer_load_dwordx4 v[{O}:{O+3}], v5, {WSR}, s36 offen sc1
    buffer_load_dwordx4 v[{O+4}:{O+7}], v5, {WSR}, s36 offen offset:1024 sc1
    s_add_u32 s38, s38, 1
    s_waitcnt vmcnt(0)
    v_cmp_eq_u32 vcc, s50, v{O+2}
    v_cmp_eq_u32 s[40:41], s50, v{O+6}
    s_and_b64 vcc, vcc, s[40:41]
    s_cmp_gt_u32 s38, 200000
    s_cbranch_scc1 {L}_d
    s_cmp_eq_u64 vcc, -1
    s_cbranch_scc0 {L}_p
    {L}_d:
    v_add_f32 v22, v{O}, v{O+4}
    v_add_f32 v23, v{O+1}, v{O+5}
    v_mov_b32 v24, v22
    v_mov_b32 v25, v23
    v_permlane16_swap_b32 v22, v24
    v_permlane16_swap_b32 v23, v25
    v_add_f32 v22, v22, v24
    v_add_f32 v23, v23, v25
    v_mov_b32 v24, v22
    v_mov_b32 v25, v23
    v_permlane32_swap_b32 v22, v24
    v_permlane32_swap_b32 v23, v25
    v_add_f32 v22, v22, v24
    v_add_f32 v23, v23, v25""")
    ln_core(a, 22, 23)
    a(f"""v_rcp_f32 v24, v23
    v_sub_f32 v22, 0, v22
    v_mul_f32 v26, v22, v24""")
    Yf = ACC
    for k in range(8):
        a(f"v_lshlrev_b32 v{Yf+2*k}, 16, v{Yp+k}\nv_and_b32 v{Yf+2*k+1}, 0xffff0000, v{Yp+k}")
    N = ACC + 32
    for k in range(8):
        a(f"v_pk_fma_f32 v[{N+2*k}:{N+2*k+1}], v[{X+2*k}:{X+2*k+1}], v[24:25], v[26:27] op_sel_hi:[1,0,0]")
    for k in range(8):
        a(f"v_pk_fma_f32 v[{N+2*k}:{N+2*k+1}], v[{N+2*k}:{N+2*k+1}], v[{Yf+2*k}:{Yf+2*k+1}], v[{X+2*k}:{X+2*k+1}]")
    for k in range(8):
        a(f"v_cvt_pk_bf16_f32 v{V_X3+k}, v{N+2*k}, v{N+2*k+1}")
    a(f"""s_lshl_b32 s36, s20, 3
    s_lshl_b32 s37, s22, 2
    s_add_u32 s36, s36, s37
    s_add_u32 s36, s36, s{S_W}
    s_lshl_b32 s38, s36, 10
    s_lshl_b32 s36, s36, 14
    s_lshl_b32 s37, s23, 11
    s_add_u32 s36, s36, s37
    s_add_u32 s36, s36, {WS['X3']}""")
    dstore(a, f"""buffer_store_dwordx4 {vr(V_X3)}, v31, {WSR}, s36 offen {{F}}
    buffer_store_dwordx4 {vr(V_X3+4)}, v31, {WSR}, s36 offen offset:1024 {{F}}""", "x3")
    a(f"v_mov_b32 v22, 0\nv_mov_b32 v23, 0\nv_mov_b32 v26, 0\nv_mov_b32 v27, 0")
    for k in range(0, 8, 2):
        a(f"""v_dot2_f32_bf16 v22, v{V_X3+k}, v21, v22
        v_dot2_f32_bf16 v23, v{V_X3+k}, v{V_X3+k}, v23
        v_dot2_f32_bf16 v26, v{V_X3+k+1}, v21, v26
        v_dot2_f32_bf16 v27, v{V_X3+k+1}, v{V_X3+k+1}, v27""")
    a(f"""v_add_f32 v22, v22, v26
    v_add_f32 v23, v23, v27
    v_mov_b32 v24, v22
    v_mov_b32 v25, v23
    v_permlane16_swap_b32 v22, v24
    v_permlane16_swap_b32 v23, v25
    v_add_f32 v22, v22, v24
    v_add_f32 v23, v23, v25
    v_mov_b32 v24, v22
    v_mov_b32 v25, v23
    v_permlane32_swap_b32 v22, v24
    v_permlane32_swap_b32 v23, v25
    v_add_f32 v22, v22, v24
    v_add_f32 v23, v23, v25
    s_lshl_b32 s37, s23, 7
    s_add_u32 s38, s38, s37
    s_add_u32 s38, s38, {WS['SYNC'] + SYNC_ST3}
    v_lshlrev_b32 v4, 3, v3
    s_mov_b64 exec, 0xffff""")
    dstore(a, f"buffer_store_dwordx2 v[22:23], v4, {WSR}, s38 offen {{F}}")
    a("s_mov_b64 exec, -1")

NW13L = 12
NW13A = 12
NW13B = 39
PACE = 5
CHK1 = 2
FINE = None
WREV = False
EARLYW = True
TOUCH = False
SPLIT = False
PST = 'sc1'
NWS = 6
NWL1 = 6
NW2E = 0
SLEEP = 0
CNT3 = False
OUTF = ''
FRONT4 = False
UPFRONT = 1
L1PK = False
WFIRST = False
PROBE = None
CODEPF = True
DBG = 0
def build():
    a = Asm()
    global stamp
    if FINE:
        real = common.stamp
        def stamp_(a_, i):
            if i == 0: real(a_, 0)
        stamp = stamp_
        def fst(a_, i):
            real(a_, i)
            if FINE in ('P', 'G'):
                a_(f"s_memtime s[70:71]\ns_waitcnt lgkmcnt(0)\ns_mov_b32 s{72+14+i}, s70")
        globals()['fstamp'] = fst
    else:
        globals()['fstamp'] = lambda a_, i: None
    if SPLIT:
        build_prep_kernel(a, "prep_kernel")
    kbegin(a, KN)
    if not SPLIT:
        emit_prologue(a)
        emit_prep_loads(a)
    if not SPLIT:
        a("s_waitcnt lgkmcnt(0)")
        a(f"""s_getreg_b32 s36, hwreg(HW_REG_XCC_ID, 0, 4)
    s_add_u32 s{S_IDW}, s{S_GEN}, 13
    s_lshl_b32 s{S_IDW}, s{S_IDW}, 4
    s_or_b32 s{S_IDW}, s{S_IDW}, s36
    s_mov_b32 s{S_LOC}, 0
    s_cmp_lg_u32 s{S_W}, 0
    s_cbranch_scc1 L_noid
    v_mov_b32 v174, s{S_IDW}
    v_mov_b32 v175, s{S_FLAG}
    s_mov_b64 exec, 1
    buffer_store_dword v174, v175, {WSR}, 0 offen offset:4 sc1
    s_mov_b64 exec, -1
    L_noid:""")
    w13ops = [f"s_add_u32 s36, s{40+t}, {kb*1024}\nbuffer_load_dwordx4 {w13(kb,t)}, v31, {WSR}, s36 offen sc1" for kb in range(16) for t in range(3)]
    if SPLIT:
        emit_split_front(a, w13ops)
        signal(a, 3)
        stamp(a, 9)
        a("v_and_b32 v1, 63, v0")
        for op in w13ops[NW13A:NW13B]: a(op)
    elif FRONT4:
        emit_front4(a, None)
        signal(a, 3)
        stamp(a, 9)
        a("v_and_b32 v1, 63, v0")
        a(f"v_lshlrev_b32 v22, 6, v1\nv_add_u32 v22, {WS['SYNC'] + SYNC_FLAGS}, v22")
        for i in range(4):
            if i == 0: a(f"buffer_load_dword v24, v22, {WSR}, 0 offen offset:8 sc1")
            else: a(f"s_movk_i32 s39, {4096*i}\nbuffer_load_dword v{24+i}, v22, {WSR}, s39 offen offset:8 sc1")
        a("s_waitcnt vmcnt(0)")
        flagcheck(a, 1, (24, 25, 26, 27), 22, "L_w_ok", tmp=(29, 30), off=8)
        for op in w13ops[:NW13B]: a(op)
    else:
        emit_prep_compute(a)
        emit_ffn_roles(a)
        hooks = dict(conv_loop_extra=w13ops[:NW13L], n_conv_total_w=NW13L, conv_epi_extra=w13ops[NW13L:NW13A])
        emit_conv(a, hooks)
        if CNT3:
            a(f"""s_waitcnt vmcnt(0)
            s_barrier
            s_cmp_lg_u32 s{S_W}, 0
            s_cbranch_scc1 L_s3
            s_and_b32 s36, s2, 15
            s_lshl_b32 s36, s36, 7
            s_add_u32 s36, s36, {WS['SYNC'] + SYNC_CNT}
            v_mov_b32 v2, 1
            v_mov_b32 v3, s36
            s_mov_b64 exec, 1
            buffer_atomic_add v2, v3, {WSR}, 0 offen
            s_mov_b64 exec, -1
            L_s3:""")
        else:
            signal(a, 3)
        stamp(a, 9)
        a("v_and_b32 v1, 63, v0")
        w_batch(a, w13ops[NW13A:NW13B])
    if not FRONT4: emit_cs(a, 0, NW13A // 3)
    x1_dma_setup(a)
    g1_addr(a, 1, WS['H1'])
    def su3():
        a(f"v_lshlrev_b32 v14, 6, v1\nv_add_u32 v14, {WS['SYNC'] + SYNC_FLAGS}, v14")
    if CNT3:
        a(f"""s_cmp_lg_u32 s{S_W}, 3
        s_cbranch_scc1 L_w3j
        v_and_b32 v14, 15, v1
        v_lshlrev_b32 v14, 7, v14
        v_add_u32 v14, {WS['SYNC'] + SYNC_CNT}, v14
        s_mov_b32 s38, 0
        L_w3p:
        buffer_load_dword v{V_T}, v14, {WSR}, 0 offen sc1
        s_add_u32 s38, s38, 1
        s_waitcnt vmcnt(0)
        v_cmp_eq_u32 vcc, 16, v{V_T}
        s_cmp_gt_u32 s38, 200000
        s_cbranch_scc1 L_w3j
        s_cmp_eq_u64 vcc, -1
        s_cbranch_scc0 L_w3p
        L_w3j:
        s_barrier""")
    else:
        wg_wait(a, su3, 14, 4, 3, V_T, wave=3)
    stamp(a, 10)
    x1ops = x1_dma_ops(0)
    a.tag = 'w13b'; a.vmlog.append('w13b')
    for n, op in enumerate(x1ops):
        a.tag = 'x0a' if n <= 8 else 'x0b'; a(op)
    w2q = list(range(44))
    a.tag = 'w2'
    for _ in range(NW2E):
        i = w2q.pop(0); w2_loads(a, i, i + 1)
    a.tag = None
    nC = 48 - NW13B
    a.vmlog.remove('w13b') if False else None
    pos = a.vmlog.index('w13b')
    a(f"s_waitcnt vmcnt({len(a.vmlog) - 1 - pos})")
    emit_cs(a, 0 if FRONT4 else NW13A // 3, NW13B // 3)
    a.vmneed('x0a'); a("s_barrier")
    stamp(a, 11)
    w13c = [(w13ops[i], f"wc{i // 3}") for i in range(NW13B, 48)]
    kbC = NW13B // 3
    x1h1 = x1_dma_ops(1)
    def hook1(P, kb):
        if P == 0:
            if kb == 6: a.vmneed('x0b'); a("s_barrier")
            if nC and kb >= kbC: a.vmneed(f"wc{kb}")
            for _ in range(3):
                if w13c:
                    op, tg = w13c.pop(0); a.tag = tg; a(op); a.tag = None
            k0 = 8 - (0 if nC > 9 else 4)
            if kb == k0: a(x1h1.pop(0))
            if kb >= k0:
                a.tag = 'x1h'
                for _ in range(2):
                    if x1h1: a(x1h1.pop(0))
                a.tag = None
        if P == 1 and kb == 0:
            tiles_dma(a)
            a("v_and_b32 v2, 15, v1\nv_lshrrev_b32 v3, 4, v1")
        if P == 1 and kb == 13:
            a.vmneed('x1h'); a("s_barrier")
        if (P, kb) == ((2, 8) if L1PK else (3, 6)):
            signal(a, 4, tv=(30, 29), local=True, vm='E1')
            touch_h(a, 0, 14)
        if P >= 1 and w2q and not (P == 1 and kb < 2):
            i = w2q.pop(0); a.tag = 'w2'; w2_loads(a, i, i + 1); a.tag = None
    if FINE == 'P': fstamp(a, 1)
    g1_stream(a, 1, hook1, cs_from=kbC, st=2)
    if FINE == 'P': fstamp(a, 6)
    for i in w2q: w2_loads(a, i, i + 1)
    signal(a, 5, local=True)
    touch_h(a, 1, 14)
    stamp(a, 14)
    emit_g2(a, 1, WS['H1'], 4, 15)
    signal(a, 6, local=True)
    stamp(a, 19)
    g1_addr(a, 2, WS['H2'])
    def su6a(): member_flag_off(a, 14, "0", 8)
    wg_wait(a, su6a, 14, 1, 6, V_T)
    stamp(a, 20)
    st3_stats(a, 0)
    for op in x3_dma_ops(0): a(op)
    a("s_waitcnt vmcnt(16)")
    st3_finish(a, 0)
    a("s_waitcnt vmcnt(8) lgkmcnt(0)\ns_barrier")
    stamp(a, 21)
    x3h1 = x3_dma_ops(1)
    def hook2(P, kb):
        if P == 0:
            if kb == 0:
                member_flag_off(a, 14, "8", 8)
                a(f"buffer_load_dword v30, v14, {WSR}, 0 offen sc1")
            if kb == 6: a("s_waitcnt vmcnt(1)\ns_barrier")
            if kb == 10:
                L = a.newlabel("x3b")
                a(f"""s_waitcnt vmcnt(0)
                s_add_u32 s37, s{S_GEN}, 6
                v_subrev_u32 v30, s37, v30
                v_cmp_gt_u32 vcc, 16, v30
                s_cmp_eq_u64 vcc, -1
                s_cbranch_scc1 {L}""")
                wait_flags(a, 14, 1, 6, 30)
                a.label(L)
                st3_stats(a, 1)
                a(x3h1.pop(0))
            if kb >= 10:
                for _ in range(2): a(x3h1.pop(0))
        if P == 1:
            if kb < 2:
                for _ in range(2): a(x3h1.pop(0))
            if kb == 6:
                a("s_waitcnt vmcnt(16)")
                st3_finish(a, 1)
            if kb == 13: a("s_waitcnt vmcnt(3) lgkmcnt(3)\ns_barrier" if False else "s_waitcnt vmcnt(0)\ns_barrier")
        if P == 3 and kb == 6:
            signal(a, 7, tv=(30, 29), local=True)
            touch_h(a, 0, 14)
    if FINE == 'P': fstamp(a, 7)
    g1_stream(a, 2, hook2, st=8)
    if FINE == 'P': fstamp(a, 12)
    signal(a, 8, local=True)
    touch_h(a, 1, 14)
    stamp(a, 23)
    emit_g2(a, 2, WS['H2'], 7, 24)
    a(f"""s_or_b32 s36, s2, s{S_W}
    s_cmp_lg_u32 s36, 0
    s_cbranch_scc1 L_nogen
    s_add_u32 s36, s{S_GEN}, 16
    v_mov_b32 v2, s36
    v_mov_b32 v3, {WS['SYNC'] + SYNC_GEN}
    s_mov_b64 exec, 1
    buffer_store_dword v2, v3, {WSR}, 0 offen
    s_mov_b64 exec, -1
    L_nogen:""")
    if PROBE is not None:
        pa, pb, K = PROBE
        a(f"""s_waitcnt vmcnt(0) lgkmcnt(0)
        s_memrealtime s[70:71]
        s_waitcnt lgkmcnt(0)
        s_mov_b32 s100, s70
        s_or_b32 s36, s2, s{S_W}
        s_cmp_lg_u32 s36, 0
        s_cbranch_scc1 L_end
        s_sub_u32 s36, s{72+pb if pb < 28 else 100}, s{72+pa}
        s_mul_i32 s36, s36, {K}
        s_add_u32 s36, s36, s100
        L_spin:
        s_memrealtime s[70:71]
        s_waitcnt lgkmcnt(0)
        s_sub_u32 s37, s70, s36
        s_cmp_lt_i32 s37, 0
        s_cbranch_scc1 L_spin
        s_branch L_end""")
    if common.STAMPS:
        a("s_waitcnt vmcnt(0)"); stamp(a, 28)
    if DBG:
        sel = [1, 2, 3, 4, 5, 6, 7, 9, 10, 11, 14, 15, 19, 21, 23, 28]
        a(f"""s_cmp_lg_u32 s2, {DBG - 1}
        s_cbranch_scc1 L_end
        s_cmp_lg_u32 s{S_W}, 0
        s_cbranch_scc1 L_end
        s_load_dwordx2 s[68:69], s[0:1], {ARG['dbg']}
        s_waitcnt lgkmcnt(0)
        s_mov_b64 exec, 1""")
        for i, k in enumerate(sel):
            a(f"s_sub_u32 s70, s{72+k}, s72\nv_mov_b32 v2, s70\nv_mov_b32 v3, {4*i}\nglobal_store_dword v3, v2, s[68:69]")
    else:
        stamp_flush(a, 0, 29)
    a.label("L_end")
    a("s_endpgm")
    a.label("L_codeend")
    a("s_endpgm")
    if SPLIT:
        txt = header([("prep_kernel", 256, 768, PW + 2*6144 + 64 + 8192), (KN, 256, 256, LDS_TOTAL)]) + a.text() + kernel_desc("prep_kernel", 168, 72, 168) + kernel_desc(KN, 512, 102, 256)
    else:
        txt = header([(None, 256, 256, LDS_TOTAL)]) + a.text() + kernel_desc(KN, 512, 102, 256)
    return txt, a
if __name__ == "__main__":
    common.STAMPS = 's' in sys.argv[2:]
    LOCAL = any(x.startswith('l') for x in sys.argv[2:])
    for x in sys.argv[2:]:
        if x.startswith('l'): LOCSET.update(['flag'] + x[1:].split('+'))
    HALF = 'h' in sys.argv[2:]
    if HALF: DYNSET.intersection_update({'hop'})
    UPFRONT = 0 if 'noup' in sys.argv[2:] else (2 if 'up2' in sys.argv[2:] else 1)
    FRONT4 = 'f4' in sys.argv[2:]
    if FRONT4: UPFRONT = 2
    SPREAD = 'nosp' not in sys.argv[2:]
    L1PK = 'pk' in sys.argv[2:]
    for x in sys.argv[2:]:
        if x.startswith('w:'): NW13L, NW13A, NW13B = (int(y) for y in x[2:].split(','))
    for x in sys.argv[2:]:
        if x.startswith('p:'): PROBE = tuple(int(y) for y in x[2:].split(','))
    CODEPF = 'nopf' not in sys.argv[2:]
    WREV = 'wrev' in sys.argv[2:]
    EARLYW = 'noew' not in sys.argv[2:]
    for x in sys.argv[2:]:
        if x.startswith('chk'): CHK1 = int(x[3:])
    TOUCH = 'touch' in sys.argv[2:]
    SPLIT = 'split' in sys.argv[2:]
    if 'pplain' in sys.argv[2:]: PST = ''
    for x in sys.argv[2:]:
        if x.startswith('ws:'): NWS, NWL1 = (int(y) for y in x[3:].split(','))
    NW2E = max([int(x[3:]) for x in sys.argv[2:] if x.startswith('w2:')] + [0])
    SLEEP = max([int(x[2:]) for x in sys.argv[2:] if x.startswith('sl')] + [0])
    CNT3 = 'cnt' in sys.argv[2:]
    OUTF = 'sc1' if 'osc1' in sys.argv[2:] else ('nt' if 'ont' in sys.argv[2:] else '')
    if 'nox3' in sys.argv[2:]: DYNSET.discard('x3')
    DYN = 'nodyn' not in sys.argv[2:]
    DBG = max([int(x[1:]) + 1 for x in sys.argv[2:] if x[0] == 'd' and x[1:].isdigit()] + [0])
    FINE = 'A' if 'fa' in sys.argv[2:] else ('B' if 'fb' in sys.argv[2:] else ('P' if 'fp' in sys.argv[2:] else ('F' if 'ff' in sys.argv[2:] else ('G' if 'fg' in sys.argv[2:] else None))))
    txt, a = build()
    open(sys.argv[1], "w").write(txt)
    print("nops:", a.nnop, "bytes", len(txt))
```

```python
import sys
from asmgen import *
from common import *
import common

KN = NAME + "_kernel"
WSR = "s[28:31]"
INV = "0x80000000"
S_GEN, S_W, S_FLAG = 3, 18, 64
LOCAL = False
HALF = False
S_LOC, S_IDW = 17, 16
DYN = True
DYNSET = {"flag", "x3", "hop"}
def LS(kind="flag"): return "" if (LOCAL and kind in LOCSET) else "sc1"
LOCSET = set()
def dstore(a, text, kind="flag"):
    if not DYN or kind not in DYNSET or LOCAL:
        a(text.replace("{F}", LS(kind))); return
    L = a.newlabel("ds")
    a(f"s_cmp_eq_u32 s{S_LOC}, 1\ns_cbranch_scc1 {L}_l")
    a(text.replace("{F}", "sc1"))
    a(f"s_branch {L}_e\n{L}_l:")
    a.nolog += 1
    a(text.replace("{F}", ""))
    a.nolog -= 1
    a.label(f"{L}_e")
def vr(b, n=4): return f"v[{b}:{b+n-1}]"

SPREAD = True
def PGs(d):
    return f"s_lshr_b32 {d}, s2, 3\n    s_and_b32 {d}, {d}, 7" if SPREAD else f"s_mov_b32 {d}, s60"
def PTs(d, t):
    return f"s_lshr_b32 {d}, s2, 6\n    s_lshl_b32 {d}, {d}, 3\n    s_and_b32 {t}, s2, 7\n    s_add_u32 {d}, {d}, {t}" if SPREAD else f"s_mov_b32 {d}, s61"
def rnd_bf16(a, v):
    a(f"v_cvt_pk_bf16_f32 v{v}, v{v}, v{v}\nv_and_b32 v{v}, 0xffff0000, v{v}")
def sum_q(a, v, t):
    a(f"""v_mov_b32 v{t}, v{v}
    v_permlane16_swap_b32 v{v}, v{t}
    v_add_f32 v{v}, v{v}, v{t}
    v_mov_b32 v{t}, v{v}
    v_permlane32_swap_b32 v{v}, v{t}
    v_add_f32 v{v}, v{v}, v{t}""")
def allsum64(a, v, t):
    for r in (8, 4, 2, 1):
        a(f"v_add_f32_dpp v{v}, v{v}, v{v} row_ror:{r} row_mask:0xf bank_mask:0xf")
    sum_q(a, v, t)
def ln_core(a, vsum, vsq):
    a(f"""v_mul_f32 v{vsum}, 0x3b000000, v{vsum}
    v_mul_f32 v{vsq}, 0x3b000000, v{vsq}
    v_fma_f32 v{vsq}, -v{vsum}, v{vsum}, v{vsq}
    v_max_f32 v{vsq}, 0, v{vsq}""")
    rnd_bf16(a, vsq)
    a(f"v_add_f32 v{vsq}, 0x3727c5ac, v{vsq}")
    rnd_bf16(a, vsq)
    a(f"v_sqrt_f32 v{vsq}, v{vsq}")
    rnd_bf16(a, vsq)
    rnd_bf16(a, vsum)
def signal(a, e, tv=(2, 3), barrier=True, local=False, vm=0):
    L = a.newlabel("sg")
    a(f"""s_add_u32 s36, s{S_GEN}, {e}
    v_mov_b32 v{tv[0]}, s36
    v_mov_b32 v{tv[1]}, s{S_FLAG}""")
    if isinstance(vm, str): a.vmneed(vm)
    else: a(f"s_waitcnt vmcnt({vm})")
    if barrier: a("s_barrier")
    a.nolog += 1
    a(f"""s_cmp_lg_u32 s{S_W}, 0
    s_cbranch_scc1 {L}
    s_mov_b64 exec, 1""")
    if local: dstore(a, f"buffer_store_dword v{tv[0]}, v{tv[1]}, {WSR}, 0 offen {{F}}")
    else: a(f"buffer_store_dword v{tv[0]}, v{tv[1]}, {WSR}, 0 offen sc1")
    a(f"""s_mov_b64 exec, -1
    {L}:""")
    a.nolog -= 1
def wait_flags(a, voff, nld, e, T, etag=None):
    L = a.newlabel("wf")
    if etag is None:
        a(f"s_add_u32 s37, s{S_GEN}, {e}"); etag = 37
    a(f"s_mov_b32 s38, 0")
    a.nolog += 1
    a.label(L)
    for i in range(nld):
        if i == 0: a(f"buffer_load_dword v{T}, v{voff}, {WSR}, 0 offen sc1")
        else: a(f"s_movk_i32 s39, {4096*i}\nbuffer_load_dword v{T+i}, v{voff}, {WSR}, s39 offen sc1")
    a("s_add_u32 s38, s38, 1\ns_waitcnt vmcnt(0)")
    for k in range(nld):
        a(f"v_subrev_u32 v{T+k}, s{etag}, v{T+k}")
    for k in range(1, nld): a(f"v_max_u32 v{T}, v{T}, v{T+k}")
    a(f"""v_cmp_gt_u32 vcc, 16, v{T}
    s_cmp_gt_u32 s38, 200000
    s_cbranch_scc1 {L}_x
    s_cmp_eq_u64 vcc, -1
    s_cbranch_scc1 {L}_x""")
    if SLEEP and nld > 1: a(f"s_sleep {SLEEP}")
    a(f"""s_branch {L}
    {L}_x:""")
    a.nolog -= 1
def flagcheck(a, e, regs, voff, label, tmp, off=0):
    a(f"""s_add_u32 s37, s{S_GEN}, {e}
    v_subrev_u32 v{tmp[0]}, s37, v{regs[0]}
    v_subrev_u32 v{tmp[1]}, s37, v{regs[1]}
    v_max_u32 v{tmp[0]}, v{tmp[0]}, v{tmp[1]}
    v_subrev_u32 v{tmp[1]}, s37, v{regs[2]}
    v_max_u32 v{tmp[0]}, v{tmp[0]}, v{tmp[1]}
    v_subrev_u32 v{tmp[1]}, s37, v{regs[3]}
    v_max_u32 v{tmp[0]}, v{tmp[0]}, v{tmp[1]}
    v_cmp_gt_u32 vcc, 16, v{tmp[0]}
    s_cmp_eq_u64 vcc, -1
    s_cbranch_scc1 {label}
    s_mov_b32 s38, 0
    {label}_p:""")
    a.nolog += 1
    for i in range(4):
        if i == 0: a(f"buffer_load_dword v{regs[0]}, v{voff}, {WSR}, 0 offen offset:{off} sc1")
        else: a(f"s_movk_i32 s39, {4096*i}\nbuffer_load_dword v{regs[i]}, v{voff}, {WSR}, s39 offen offset:{off} sc1")
    a(f"""s_add_u32 s38, s38, 1
    s_waitcnt vmcnt(0)
    v_subrev_u32 v{tmp[0]}, s37, v{regs[0]}
    v_subrev_u32 v{tmp[1]}, s37, v{regs[1]}
    v_max_u32 v{tmp[0]}, v{tmp[0]}, v{tmp[1]}
    v_subrev_u32 v{tmp[1]}, s37, v{regs[2]}
    v_max_u32 v{tmp[0]}, v{tmp[0]}, v{tmp[1]}
    v_subrev_u32 v{tmp[1]}, s37, v{regs[3]}
    v_max_u32 v{tmp[0]}, v{tmp[0]}, v{tmp[1]}
    v_cmp_gt_u32 vcc, 16, v{tmp[0]}
    s_cmp_gt_u32 s38, 200000
    s_cbranch_scc1 {label}
    s_cmp_eq_u64 vcc, -1
    s_cbranch_scc0 {label}_p
    {label}:""")
    a.nolog -= 1
def wg_wait(a, setup, voff, nld, e, T, etag=None, wave=0):
    L = a.newlabel("ww")
    a(f"s_cmp_lg_u32 s{S_W}, {wave}\ns_cbranch_scc1 {L}")
    setup()
    wait_flags(a, voff, nld, e, T, etag)
    a.label(L)
    a("s_barrier")

HCS = 4160; XRO = 4 * HCS; CB = XRO + 4608; EXO = 49152
PL = 65536
PW = PL + 16384
W3OFF = 6144 + 32
L_TX = 131072; L_TY = L_TX + 8192; L_ST = L_TY + 8192
LDS_TOTAL = L_ST + 2048

def emit_prologue_old(a):
    a(f"""s_cmp_ge_u32 s2, 256
    s_cbranch_scc1 L_end""")
    emit_codepf(a)
    a(f"""s_load_dwordx4 s[4:7], s[0:1], {ARG['q']}
    s_load_dwordx4 s[8:11], s[0:1], {ARG['v']}
    s_load_dwordx4 s[12:15], s[0:1], {ARG['h']}
    s_load_dwordx2 s[16:17], s[0:1], {ARG['ws']}
    s_load_dwordx4 s[52:55], s[0:1], {ARG['w1']}
    s_load_dwordx2 s[56:57], s[0:1], {ARG['w2']}
    v_lshrrev_b32 v3, 6, v0
    v_and_b32 v1, 7, v0
    v_readfirstlane_b32 s{S_W}, v3
    s_and_b32 s60, s2, 7
    s_lshr_b32 s61, s2, 3
    v_lshrrev_b32 v2, 3, v0
    {PGs('s36')}
    s_lshl_b32 s36, s36, 7
    {PTs('s37', 's38')}
    s_lshl_b32 s37, s37, 16
    s_add_u32 s36, s36, s37
    v_lshlrev_b32 v4, 4, v1
    v_lshlrev_b32 v5, 11, v2
    v_add3_u32 v4, v4, v5, s36
    s_lshl_b32 s{S_FLAG}, s60, 5
    s_add_u32 s{S_FLAG}, s{S_FLAG}, s61
    s_mov_b32 s19, s{S_FLAG}
    s_lshl_b32 s{S_FLAG}, s{S_FLAG}, 6
    s_add_u32 s{S_FLAG}, s{S_FLAG}, {WS['SYNC'] + SYNC_FLAGS}
    s_waitcnt lgkmcnt(0)""")
    srd(a, 20, 4, S * D * 2)
    srd(a, 24, 6, S * D * 2)
    srd(a, 32, 8, S * D * 2)
    srd(a, 40, 10, D * 8)
    srd(a, 28, 16, WS['END'])
    a(f"""s_add_u32 s36, s16, {WS['SYNC'] + SYNC_GEN}
    s_addc_u32 s37, s17, 0
    s_load_dword s{S_GEN}, s[36:37], 0""")
    stamp(a, 0)

def emit_prologue(a):
    a(f"""s_cmp_ge_u32 s2, 256
    s_cbranch_scc1 L_end
    s_load_dwordx4 s[4:7], s[0:1], {ARG['q']}
    s_load_dwordx4 s[8:11], s[0:1], {ARG['v']}
    s_load_dwordx4 s[12:15], s[0:1], {ARG['h']}
    s_load_dwordx2 s[16:17], s[0:1], {ARG['ws']}
    s_load_dwordx4 s[52:55], s[0:1], {ARG['w1']}
    s_load_dwordx2 s[56:57], s[0:1], {ARG['w2']}
    v_and_b32 v1, 7, v0
    v_lshrrev_b32 v2, 3, v0
    {PGs('s36')}
    s_lshl_b32 s36, s36, 7
    {PTs('s37', 's38')}
    s_lshl_b32 s37, s37, 16
    s_add_u32 s36, s36, s37
    v_lshlrev_b32 v4, 4, v1
    v_lshlrev_b32 v5, 11, v2
    v_add3_u32 v4, v4, v5, s36
    v_subrev_u32 v5, 3072, v4
    v_subrev_u32 v6, 2048, v4
    v_subrev_u32 v7, 1024, v4
    s_mov_b32 s26, {S*D*2}
    s_mov_b32 s27, 0x20000
    s_mov_b32 s34, {S*D*2}
    s_mov_b32 s35, 0x20000
    s_waitcnt lgkmcnt(0)
    s_mov_b32 s24, s6
    s_mov_b32 s25, s7
    s_mov_b32 s32, s8
    s_mov_b32 s33, s9
    buffer_load_dwordx4 v[16:19], v5, s[24:27], 0 offen
    buffer_load_dwordx4 v[20:23], v6, s[24:27], 0 offen
    buffer_load_dwordx4 v[24:27], v7, s[24:27], 0 offen
    buffer_load_dwordx4 v[28:31], v4, s[24:27], 0 offen
    buffer_load_dwordx4 v[32:35], v4, s[24:27], 0 offen offset:1024
    buffer_load_dwordx4 v[36:39], v4, s[32:35], 0 offen
    buffer_load_dwordx4 v[40:43], v4, s[32:35], 0 offen offset:1024""")
    emit_codepf(a)
    a(f"""v_lshrrev_b32 v3, 6, v0
    v_readfirstlane_b32 s{S_W}, v3
    s_and_b32 s60, s2, 7
    s_lshr_b32 s61, s2, 3
    s_lshl_b32 s{S_FLAG}, s60, 5
    s_add_u32 s{S_FLAG}, s{S_FLAG}, s61
    s_mov_b32 s19, s{S_FLAG}
    s_lshl_b32 s{S_FLAG}, s{S_FLAG}, 6
    s_add_u32 s{S_FLAG}, s{S_FLAG}, {WS['SYNC'] + SYNC_FLAGS}""")
    srd(a, 20, 4, S * D * 2)
    srd(a, 40, 10, D * 8)
    srd(a, 28, 16, WS['END'])
    a(f"""s_add_u32 s36, s16, {WS['SYNC'] + SYNC_GEN}
    s_addc_u32 s37, s17, 0
    s_load_dword s{S_GEN}, s[36:37], 0""")
    stamp(a, 0)

def emit_prep_loads(a):
    a(f"""v_and_b32 v9, 63, v0
    s_lshr_b32 s66, s{S_W}, 1
    s_and_b32 s67, s{S_W}, 1""")
    if WFIRST: emit_prep_loadsW(a)
    a(f"""{PGs('s36')}
    s_lshl_b32 s36, s36, 9
    v_lshlrev_b32 v8, 6, v1
    v_add_u32 v8, s36, v8
    buffer_load_dwordx4 v[44:47], v8, s[40:43], 0 offen
    buffer_load_dwordx4 v[48:51], v8, s[40:43], 0 offen offset:16
    buffer_load_dwordx4 v[52:55], v8, s[40:43], 0 offen offset:32
    buffer_load_dwordx4 v[56:59], v8, s[40:43], 0 offen offset:48
""")
    if UPFRONT:
        emit_prep_loads2(a)
        emit_prep_loadsQ(a)
        emit_statrows(a)
        if UPFRONT == 1: emit_prep_loadsW(a)

def emit_statrows(a):
    a(f"""v_lshlrev_b32 v10, 4, v9
    s_lshl_b32 s36, s2, 13
    s_lshl_b32 s37, s{S_W}, 11
    s_add_u32 s36, s36, s37
    v_add_u32 v10, s36, v10
    buffer_load_dwordx4 v[68:71], v10, s[20:23], 0 offen
    buffer_load_dwordx4 v[72:75], v10, s[20:23], 0 offen offset:1024""")

def emit_prep_loadsW(a):
    a(f"""s_cmp_eq_u32 s66, 0
    s_cselect_b32 s52, s52, s54
    s_cselect_b32 s53, s53, s55
    s_mov_b32 s54, {D*F*2}
    s_mov_b32 s55, 0x20000
    s_mov_b32 s58, {D*F*2}
    s_mov_b32 s59, 0x20000
    s_mul_i32 s62, s60, {64*2752}
    s_mul_i32 s63, s61, 96
    s_add_u32 s62, s62, s63
    s_mul_i32 s63, s67, 192
    v_add_u32 v176, s63, v9
    s_mul_i32 s36, s66, {W3OFF}
    s_lshl_b32 s63, s63, 4
    s_add_u32 s36, s36, s63
    s_add_u32 s36, s36, {PW}""")
    for i in range(3):
        a(f"""v_add_u32 v177, {64*i}, v176
        v_mul_u32_u24 v178, 43691, v177
        v_lshrrev_b32 v178, 18, v178
        v_mul_u32_u24 v179, 6, v178
        v_sub_u32 v179, v177, v179
        v_mul_u32_u24 v178, 2752, v178
        v_lshl_add_u32 v{184+i}, v179, 4, v178
        s_add_u32 m0, s36, {1024*i}
        buffer_load_dwordx4 v{184+i}, s[52:55], s62 offen lds""")
    a(f"""v_lshrrev_b32 v178, 3, v9
    v_and_b32 v179, 7, v9
    v_lshlrev_b32 v178, 10, v178
    v_lshl_add_u32 v187, v179, 4, v178
    s_lshl_b32 s63, s{S_W}, 13
    {PTs('s36', 's37')}
    s_lshl_b32 s36, s36, 15
    s_add_u32 s36, s36, s63
    {PGs('s63')}
    s_lshl_b32 s63, s63, 7
    s_add_u32 s36, s36, s63
    s_lshl_b32 s63, s{S_W}, 10
    s_add_u32 s63, s63, {PW + 2*6144 + 64}
    s_mov_b32 m0, s63
    buffer_load_dwordx4 v187, s[56:59], s36 offen lds
    s_add_u32 s36, s36, {32*32*1024}
    s_add_u32 m0, s63, 4096
    buffer_load_dwordx4 v187, s[56:59], s36 offen lds""")

def emit_prep_loadsQ(a):
    a(f"""buffer_load_dwordx4 v[60:63], v4, s[20:23], 0 offen
    buffer_load_dwordx4 v[64:67], v4, s[20:23], 0 offen offset:1024""")
def emit_prep_loads2(a):
    a(f"""s_lshl_b32 s65, s19, 1
    s_add_u32 s65, s65, s66
    s_lshl_b32 s37, s65, 1
    s_lshl_b32 s65, s65, 12""")
    srd(a, 44, 12, 4096, offreg=65)
    srd(a, 48, 14, D * 2)
    a(f"""v_lshlrev_b32 v172, 4, v9
    s_lshl_b32 s36, s67, 11
    v_add_u32 v172, s36, v172
    buffer_load_dwordx4 v[192:195], v172, s[44:47], 0 offen
    buffer_load_dwordx4 v[196:199], v172, s[44:47], 0 offen offset:4
    buffer_load_dwordx4 v[200:203], v172, s[44:47], 0 offen offset:8
    buffer_load_dwordx4 v[204:207], v172, s[44:47], 0 offen offset:1024
    buffer_load_dwordx4 v[208:211], v172, s[44:47], 0 offen offset:1028
    buffer_load_dwordx4 v[212:215], v172, s[44:47], 0 offen offset:1032
    v_bfe_u32 v219, v9, 3, 2
    v_and_b32 v220, 7, v9
    v_lshlrev_b32 v13, 1, v220
    v_add_u32 v13, v13, v219
    v_subrev_u32 v13, 16, v13
    v_lshlrev_b32 v13, 1, v13
    v_add_u32 v14, 2, v13
    buffer_load_ushort v216, v13, s[44:47], 0 offen
    buffer_load_ushort v217, v14, s[44:47], 0 offen
    v_mov_b32 v173, s37
    buffer_load_ushort v218, v173, s[48:51], 0 offen""")

def emit_codepf(a):
    if CODEPF:
        a(f"""s_getpc_b64 s[68:69]
        L_pc:
        s_sub_u32 s68, s68, L_pc-{KN}
        s_subb_u32 s69, s69, 0
        v_and_b32 v190, 15, v0
        s_lshr_b32 s36, s2, 3
        s_lshl_b32 s36, s36, 4
        v_add_u32 v190, s36, v190
        v_lshlrev_b32 v190, 7, v190
        v_min_u32 v190, L_codeend-{KN}-4, v190
        global_load_dword v188, v190, s[68:69]""")

def emit_prep_compute(a):
    a(f"""v_sub_u32 v11, 31, v2
    v_lshlrev_b32 v12, 2, v1
    v_xor_b32 v11, v11, v12
    v_lshlrev_b32 v11, 2, v11
    v_lshlrev_b32 v13, 10, v1
    v_add_u32 v11, v11, v13
    v_add_u32 v11, {PL}, v11
    v_xor_b32 v12, v2, v12
    v_lshlrev_b32 v12, 2, v12
    v_add_u32 v12, v12, v13
    v_add_u32 v12, {PL + 8192}, v12
    """)
    a(f"s_waitcnt vmcnt({(18 if UPFRONT == 1 else 13) if UPFRONT else 0})")
    for j in range(8):
        a(f"""v_lshlrev_b32 v{80+j}, 16, v{44+2*j}
        v_and_b32 v{88+j}, 0xffff0000, v{44+2*j}
        v_lshlrev_b32 v{96+j}, 16, v{45+2*j}
        v_and_b32 v{104+j}, 0xffff0000, v{45+2*j}""")
    a(f"s_waitcnt vmcnt({(18 if UPFRONT == 1 else 13) if UPFRONT else 0})")
    stamp(a, 1)
    for i in range(5):
        for p in range(4):
            a(f"""v_lshlrev_b32 v{112+8*i+2*p}, 16, v{16+4*i+p}
            v_and_b32 v{113+8*i+2*p}, 0xffff0000, v{16+4*i+p}""")
    for row in range(2):
        for p in range(4):
            d = 152 + 8 * row + 2 * p
            a(f"v_pk_mul_f32 v[{d}:{d+1}], v[{112+8*row+2*p}:{113+8*row+2*p}], v[{104+2*p}:{105+2*p}]")
    for tt, tap in ((1, 2), (2, 1), (3, 0)):
        for row in range(2):
            for p in range(4):
                d = 152 + 8 * row + 2 * p
                k = 112 + 8 * (row + tt) + 2 * p
                s_ = 80 + 8 * tap + 2 * p
                a(f"v_pk_fma_f32 v[{d}:{d+1}], v[{k}:{k+1}], v[{s_}:{s_+1}], v[{d}:{d+1}]")
    for row in range(2):
        for p in range(4):
            a(f"""v_lshlrev_b32 v{112+8*row+2*p}, 16, v{36+4*row+p}
            v_and_b32 v{113+8*row+2*p}, 0xffff0000, v{36+4*row+p}""")
    for row in range(2):
        for p in range(4):
            d = 152 + 8 * row + 2 * p
            a(f"v_pk_mul_f32 v[{d}:{d+1}], v[{d}:{d+1}], v[{112+8*row+2*p}:{113+8*row+2*p}]")
    for j in range(8):
        a(f"v_cvt_pk_bf16_f32 v{80+j}, v{160+j}, v{152+j}")
    for j in range(8):
        a(f"ds_write_b32 v11, v{80+j} offset:{128*j}")
    a(f"""v_lshrrev_b32 v3, 6, v0
    v_xor_b32 v5, v1, v3
    v_lshlrev_b32 v5, 4, v5
    v_lshlrev_b32 v6, 7, v2
    v_add_u32 v5, v5, v6
    v_add_u32 v5, {PL}, v5
    v_xor_b32 v7, 64, v5
    {PGs('s36')}
    s_lshl_b32 s36, s36, 18
    {PTs('s37', 's38')}
    s_lshl_b32 s37, s37, 7
    s_sub_u32 s4, s36, s37
    s_add_u32 s4, s4, {WS['XR'] + 1984*2}
    s_add_u32 s5, s36, s37
    s_add_u32 s5, s5, {WS['QT']}
    v_lshlrev_b32 v8, 12, v2
    v_lshlrev_b32 v15, 4, v1
    v_add_u32 v8, v8, v15
    v_add_u32 v15, 0x20000, v8
    s_waitcnt lgkmcnt(0)
    s_barrier
    ds_read_b128 v[16:19], v5
    ds_read_b128 v[20:23], v7 offset:4096
    s_waitcnt lgkmcnt(1)
    buffer_store_dwordx4 v[16:19], v8, {WSR}, s4 offen {LS('xr')}
    s_waitcnt lgkmcnt(0)
    buffer_store_dwordx4 v[20:23], v15, {WSR}, s4 offen {LS('xr')}""")
    stamp(a, 2)
    if UPFRONT != 1: emit_prep_loadsW(a)
    if not UPFRONT: emit_prep_loadsQ(a)
    L = a.newlabel("sg1")
    a(f"""s_waitcnt vmcnt({(0 if UPFRONT == 1 else 5) if UPFRONT else 7})
    s_barrier
    s_cmp_lg_u32 s{S_W}, 0
    s_cbranch_scc1 {L}
    s_add_u32 s36, s{S_GEN}, 1
    v_mov_b32 v16, s36
    v_mov_b32 v17, s{S_FLAG}
    s_mov_b64 exec, 1
    buffer_store_dword v16, v17, {WSR}, 0 offen sc1
    s_mov_b64 exec, -1
    {L}:""")
    stamp(a, 3)
    if FINE == 'F': fstamp(a, 9)
    if not UPFRONT:
        emit_statrows(a)
        emit_prep_loads2(a)
    NPF = 0
    if UPFRONT == 2:
        if FINE == 'F': fstamp(a, 6)
        pass
        if FINE == 'F': fstamp(a, 7)
        a(f"""s_mul_i32 s62, s66, {CB}
        v_lshlrev_b32 v4, 4, v9
        s_lshl_b32 s36, s67, 11
        s_add_u32 s36, s36, s62
        s_add_u32 s36, s36, 32
        v_add_u32 v4, s36, v4""")
        for p in range(2):
            L0, L2, L4 = 192 + 12 * p, 196 + 12 * p, 200 + 12 * p
            for j in range(4):
                a(f"v_alignbit_b32 v{112+8*p+j}, v{L2+j}, v{L0+j}, 16")
                a(f"v_alignbit_b32 v{116+8*p+j}, v{L4+j}, v{L2+j}, 16")
            a(f"""ds_write_b128 v4, v[{L0}:{L0+3}] offset:{1024*p}
            ds_write_b128 v4, v[{112+8*p}:{115+8*p}] offset:{1024*p + HCS}
            ds_write_b128 v4, v[{L2}:{L2+3}] offset:{1024*p + 2*HCS}
            ds_write_b128 v4, v[{116+8*p}:{119+8*p}] offset:{1024*p + 3*HCS}""")
        a(f"""v_lshl_or_b32 v216, v217, 16, v216
        v_mul_u32_u24 v13, {HCS}, v219
        v_lshl_add_u32 v13, v220, 2, v13
        v_add_u32 v13, s62, v13
        ds_write_b32 v13, v216
        v_lshlrev_b32 v20, 16, v218
        v_mov_b32 v92, 0
        v_mov_b32 v93, 0
        v_mov_b32 v94, 0
        v_mov_b32 v95, 0
        v_and_b32 v16, 31, v9
        v_lshlrev_b32 v16, 4, v16
        v_add_u32 v16, s62, v16
        ds_write_b128 v16, v[92:95] offset:{XRO+4096}
        s_waitcnt lgkmcnt(0)""")
        if FINE == 'F': fstamp(a, 2)
        pass
        if FINE == 'F': fstamp(a, 3)
        a("s_mov_b32 s36, 0x05040100\ns_mov_b32 s37, 0x07060302")
        for p in range(4):
            a(f"""v_perm_b32 v{88+2*p}, v{64+p}, v{60+p}, s36
            v_perm_b32 v{89+2*p}, v{64+p}, v{60+p}, s37""")
        for j in range(8):
            a(f"ds_write_b32 v12, v{88+j} offset:{128*j}")
        if FINE == 'F': fstamp(a, 4)
        pass
        if FINE == 'F': fstamp(a, 5)
        a("v_mov_b32 v14, 0x3f803f80")
        for row in range(2):
            su, sq = 96 + 2 * row, 97 + 2 * row
            a(f"v_mov_b32 v{su}, 0\nv_mov_b32 v{sq}, 0")
        for p in range(4):
            for row in range(2):
                su, sq = 96 + 2 * row, 97 + 2 * row; b = 68 + 4 * row
                a(f"v_dot2_f32_bf16 v{su}, v{b+p}, v14, v{su}\nv_dot2_f32_bf16 v{sq}, v{b+p}, v{b+p}, v{sq}")
        for r in (8, 4, 2, 1):
            for v in (96, 97, 98, 99):
                a(f"v_add_f32_dpp v{v}, v{v}, v{v} row_ror:{r} row_mask:0xf bank_mask:0xf")
        for k, v in enumerate((96, 97, 98, 99)): a(f"v_mov_b32 v{100+k}, v{v}")
        for k, v in enumerate((96, 97, 98, 99)): a(f"v_permlane16_swap_b32 v{v}, v{100+k}")
        for k, v in enumerate((96, 97, 98, 99)): a(f"v_add_f32 v{v}, v{v}, v{100+k}")
        for k, v in enumerate((96, 97, 98, 99)): a(f"v_mov_b32 v{100+k}, v{v}")
        for k, v in enumerate((96, 97, 98, 99)): a(f"v_permlane32_swap_b32 v{v}, v{100+k}")
        for k, v in enumerate((96, 97, 98, 99)): a(f"v_add_f32 v{v}, v{v}, v{100+k}")
        ln_core(a, 96, 97); ln_core(a, 98, 99)
        a(f"""v_rcp_f32 v102, v97
        v_rcp_f32 v103, v99
        v_mul_f32 v104, -v96, v102
        v_mul_f32 v105, -v98, v103
        s_lshl_b32 s36, s2, 5
        s_lshl_b32 s37, s{S_W}, 3
        s_add_u32 s11, s36, s37
        s_add_u32 s11, s11, {WS['RS0']}""")
        a(f"""v_mov_b32 v101, s11
        s_mov_b32 s37, {WS['C0']-WS['RS0']}
        s_mov_b64 exec, 1
        buffer_store_dwordx2 v[102:103], v101, {WSR}, 0 offen sc1
        buffer_store_dwordx2 v[104:105], v101, {WSR}, s37 offen sc1
        s_mov_b64 exec, -1
        s_waitcnt lgkmcnt(0)
        s_barrier
        ds_read_b128 v[72:75], v5 offset:8192
        ds_read_b128 v[76:79], v7 offset:{8192+4096}
        s_waitcnt lgkmcnt(1)
        buffer_store_dwordx4 v[72:75], v8, {WSR}, s5 offen sc1
        s_waitcnt lgkmcnt(0)
        buffer_store_dwordx4 v[76:79], v15, {WSR}, s5 offen sc1""")
        a("s_waitcnt vmcnt(4)\ns_barrier")
        if FINE == 'F': fstamp(a, 1)
        a(f"""v_lshrrev_b32 v178, 4, v9
        v_bfe_u32 v179, v9, 2, 2
        v_and_b32 v180, 3, v9
        v_lshl_add_u32 v181, v178, 4, v179
        v_mul_u32_u24 v181, 96, v181
        v_and_b32 v182, 1, v180
        v_lshl_add_u32 v181, v182, 3, v181
        v_lshrrev_b32 v182, 1, v180
        v_mul_u32_u24 v182, {W3OFF}, v182
        v_add_u32 v181, v181, v182
        v_lshlrev_b32 v183, 4, v9""")
        for i in range(3):
            a(f"""s_mul_i32 s36, s{S_W}, 3
            s_add_u32 s36, s36, {i}
            s_lshr_b32 s37, s36, 1
            s_and_b32 s36, s36, 1
            s_lshl_b32 s38, s37, 4
            s_mul_i32 s39, s36, {8*96}
            s_add_u32 s38, s38, s39
            s_add_u32 s38, s38, {PW}
            v_add_u32 v182, s38, v181
            ds_read_b64_tr_b16 v[{144+4*i}:{145+4*i}], v182
            ds_read_b64_tr_b16 v[{146+4*i}:{147+4*i}], v182 offset:{4*96}
            s_mul_i32 s38, s61, 6
            s_add_u32 s38, s38, s37
            s_lshl_b32 s39, s38, 14
            s_lshl_b32 s37, s60, 11
            s_add_u32 s39, s39, s37
            s_lshl_b32 s36, s36, 10
            s_add_u32 s39, s39, s36
            s_add_u32 s39, s39, {WS['WF13']}
            s_cmp_lt_u32 s38, 172
            s_cselect_b32 s{6+i}, s39, {INV}""")
        a(f"""v_lshl_add_u32 v181, v178, 2, v179
        v_lshlrev_b32 v181, 7, v181
        v_lshl_add_u32 v181, v180, 5, v181
        s_lshl_b32 s36, s{S_W}, 3
        s_add_u32 s36, s36, {PW + 2*6144 + 64}
        v_add_u32 v181, s36, v181""")
        for i in range(2):
            a(f"""ds_read_b64_tr_b16 v[{156+4*i}:{157+4*i}], v181 offset:{4096*i}
            ds_read_b64_tr_b16 v[{158+4*i}:{159+4*i}], v181 offset:{4096*i + 2048}
            {PTs('s36', 's37')}
            s_add_u32 s36, s36, {32*i}
            {PGs('s37')}
            s_mul_i32 s37, s37, 43
            s_add_u32 s37, s37, s36
            s_lshl_b32 s37, s37, 12
            s_lshl_b32 s38, s{S_W}, 10
            s_add_u32 s37, s37, s38
            s_add_u32 s37, s37, {WS['WF2']}
            s_cmp_lt_u32 s36, 43
            s_cselect_b32 s{9+i}, s37, {INV}""")
        for i in range(5):
            a(f"s_waitcnt lgkmcnt({2*(4-i)})\nbuffer_store_dwordx4 {vr(144+4*i)}, v183, {WSR}, s{6+i} offen sc1")
        a("s_waitcnt lgkmcnt(0)")
        stamp(a, 4)
        return
    a(f"s_waitcnt vmcnt({2 + 2 + 9 + NPF})\ns_barrier")
    if FINE == 'F': fstamp(a, 1)
    a(f"""v_lshrrev_b32 v178, 4, v9
    v_bfe_u32 v179, v9, 2, 2
    v_and_b32 v180, 3, v9
    v_lshl_add_u32 v181, v178, 4, v179
    v_mul_u32_u24 v181, 96, v181
    v_and_b32 v182, 1, v180
    v_lshl_add_u32 v181, v182, 3, v181
    v_lshrrev_b32 v182, 1, v180
    v_mul_u32_u24 v182, {W3OFF}, v182
    v_add_u32 v181, v181, v182
    v_lshlrev_b32 v183, 4, v9""")
    for i in range(3):
        a(f"""s_mul_i32 s36, s{S_W}, 3
        s_add_u32 s36, s36, {i}
        s_lshr_b32 s37, s36, 1
        s_and_b32 s36, s36, 1
        s_lshl_b32 s38, s37, 4
        s_mul_i32 s39, s36, {8*96}
        s_add_u32 s38, s38, s39
        s_add_u32 s38, s38, {PW}
        v_add_u32 v182, s38, v181
        ds_read_b64_tr_b16 v[{144+4*i}:{145+4*i}], v182
        ds_read_b64_tr_b16 v[{146+4*i}:{147+4*i}], v182 offset:{4*96}
        s_mul_i32 s38, s61, 6
        s_add_u32 s38, s38, s37
        s_lshl_b32 s39, s38, 14
        s_lshl_b32 s37, s60, 11
        s_add_u32 s39, s39, s37
        s_lshl_b32 s36, s36, 10
        s_add_u32 s39, s39, s36
        s_add_u32 s39, s39, {WS['WF13']}
        s_cmp_lt_u32 s38, 172
        s_cselect_b32 s{6+i}, s39, {INV}""")
    a(f"""v_lshl_add_u32 v181, v178, 2, v179
    v_lshlrev_b32 v181, 7, v181
    v_lshl_add_u32 v181, v180, 5, v181
    s_lshl_b32 s36, s{S_W}, 3
    s_add_u32 s36, s36, {PW + 2*6144 + 64}
    v_add_u32 v181, s36, v181""")
    for i in range(2):
        a(f"""ds_read_b64_tr_b16 v[{156+4*i}:{157+4*i}], v181 offset:{4096*i}
        ds_read_b64_tr_b16 v[{158+4*i}:{159+4*i}], v181 offset:{4096*i + 2048}
        {PTs('s36', 's37')}
        s_add_u32 s36, s36, {32*i}
        {PGs('s37')}
        s_mul_i32 s37, s37, 43
        s_add_u32 s37, s37, s36
        s_lshl_b32 s37, s37, 12
        s_lshl_b32 s38, s{S_W}, 10
        s_add_u32 s37, s37, s38
        s_add_u32 s37, s37, {WS['WF2']}
        s_cmp_lt_u32 s36, 43
        s_cselect_b32 s{9+i}, s37, {INV}""")
    for i in range(5):
        a(f"s_waitcnt lgkmcnt({2*(4-i)})\nbuffer_store_dwordx4 {vr(144+4*i)}, v183, {WSR}, s{6+i} offen sc1")
    if FINE == 'F': fstamp(a, 2)
    a(f"s_waitcnt vmcnt({2 + 9 + NPF + 5})")
    if FINE == 'F': fstamp(a, 3)
    a("s_mov_b32 s36, 0x05040100\ns_mov_b32 s37, 0x07060302")
    for p in range(4):
        a(f"""v_perm_b32 v{88+2*p}, v{64+p}, v{60+p}, s36
        v_perm_b32 v{89+2*p}, v{64+p}, v{60+p}, s37""")
    for j in range(8):
        a(f"ds_write_b32 v12, v{88+j} offset:{128*j}")
    if FINE == 'F': fstamp(a, 4)
    a(f"s_waitcnt vmcnt({9 + NPF + 5})")
    if FINE == 'F': fstamp(a, 5)
    a("v_mov_b32 v14, 0x3f803f80")
    for row in range(2):
        su, sq = 96 + 2 * row, 97 + 2 * row
        a(f"v_mov_b32 v{su}, 0\nv_mov_b32 v{sq}, 0")
    for p in range(4):
        for row in range(2):
            su, sq = 96 + 2 * row, 97 + 2 * row; b = 68 + 4 * row
            a(f"v_dot2_f32_bf16 v{su}, v{b+p}, v14, v{su}\nv_dot2_f32_bf16 v{sq}, v{b+p}, v{b+p}, v{sq}")
    for r in (8, 4, 2, 1):
        for v in (96, 97, 98, 99):
            a(f"v_add_f32_dpp v{v}, v{v}, v{v} row_ror:{r} row_mask:0xf bank_mask:0xf")
    for k, v in enumerate((96, 97, 98, 99)): a(f"v_mov_b32 v{100+k}, v{v}")
    for k, v in enumerate((96, 97, 98, 99)): a(f"v_permlane16_swap_b32 v{v}, v{100+k}")
    for k, v in enumerate((96, 97, 98, 99)): a(f"v_add_f32 v{v}, v{v}, v{100+k}")
    for k, v in enumerate((96, 97, 98, 99)): a(f"v_mov_b32 v{100+k}, v{v}")
    for k, v in enumerate((96, 97, 98, 99)): a(f"v_permlane32_swap_b32 v{v}, v{100+k}")
    for k, v in enumerate((96, 97, 98, 99)): a(f"v_add_f32 v{v}, v{v}, v{100+k}")
    ln_core(a, 96, 97); ln_core(a, 98, 99)
    a(f"""v_rcp_f32 v102, v97
    v_rcp_f32 v103, v99
    v_mul_f32 v104, -v96, v102
    v_mul_f32 v105, -v98, v103
    s_lshl_b32 s36, s2, 5
    s_lshl_b32 s37, s{S_W}, 3
    s_add_u32 s11, s36, s37
    s_add_u32 s11, s11, {WS['RS0']}""")
    a(f"""v_mov_b32 v101, s11
    s_mov_b32 s37, {WS['C0']-WS['RS0']}
    s_mov_b64 exec, 1
    buffer_store_dwordx2 v[102:103], v101, {WSR}, 0 offen sc1
    buffer_store_dwordx2 v[104:105], v101, {WSR}, s37 offen sc1
    s_mov_b64 exec, -1
    s_waitcnt lgkmcnt(0)
    s_barrier
    ds_read_b128 v[72:75], v5 offset:8192
    ds_read_b128 v[76:79], v7 offset:{8192+4096}
    s_waitcnt lgkmcnt(1)
    buffer_store_dwordx4 v[72:75], v8, {WSR}, s5 offen sc1
    s_waitcnt lgkmcnt(0)
    buffer_store_dwordx4 v[76:79], v15, {WSR}, s5 offen sc1""")
    if FINE == 'F': fstamp(a, 6)
    a("s_waitcnt vmcnt(9)")
    if FINE == 'F': fstamp(a, 7)
    a(f"""s_mul_i32 s62, s66, {CB}
    v_lshlrev_b32 v4, 4, v9
    s_lshl_b32 s36, s67, 11
    s_add_u32 s36, s36, s62
    s_add_u32 s36, s36, 32
    v_add_u32 v4, s36, v4""")
    for p in range(2):
        L0, L2, L4 = 192 + 12 * p, 196 + 12 * p, 200 + 12 * p
        for j in range(4):
            a(f"v_alignbit_b32 v{112+8*p+j}, v{L2+j}, v{L0+j}, 16")
            a(f"v_alignbit_b32 v{116+8*p+j}, v{L4+j}, v{L2+j}, 16")
        a(f"""ds_write_b128 v4, v[{L0}:{L0+3}] offset:{1024*p}
        ds_write_b128 v4, v[{112+8*p}:{115+8*p}] offset:{1024*p + HCS}
        ds_write_b128 v4, v[{L2}:{L2+3}] offset:{1024*p + 2*HCS}
        ds_write_b128 v4, v[{116+8*p}:{119+8*p}] offset:{1024*p + 3*HCS}""")
    a(f"""v_lshl_or_b32 v216, v217, 16, v216
    v_mul_u32_u24 v13, {HCS}, v219
    v_lshl_add_u32 v13, v220, 2, v13
    v_add_u32 v13, s62, v13
    ds_write_b32 v13, v216
    v_lshlrev_b32 v20, 16, v218
    v_mov_b32 v92, 0
    v_mov_b32 v93, 0
    v_mov_b32 v94, 0
    v_mov_b32 v95, 0
    v_and_b32 v16, 31, v9
    v_lshlrev_b32 v16, 4, v16
    v_add_u32 v16, s62, v16
    ds_write_b128 v16, v[92:95] offset:{XRO+4096}
    s_waitcnt lgkmcnt(0)""")
    stamp(a, 4)
    if FINE == 'F': fstamp(a, 8)

def emit_conv(a, hooks):
    a("v_and_b32 v1, 63, v0")
    def su1():
        if SPREAD:
            a(f"""v_and_b32 v2, 7, v1
            v_lshlrev_b32 v2, 5, v2
            v_bfe_u32 v3, v1, 3, 2
            v_lshl_add_u32 v2, v3, 3, v2
            v_add_u32 v2, s60, v2
            v_lshlrev_b32 v2, 6, v2
            v_add_u32 v2, {WS['SYNC'] + SYNC_FLAGS}, v2""")
        else:
            a(f"""v_and_b32 v2, 31, v1
            s_lshl_b32 s36, s60, 5
            v_add_u32 v2, s36, v2
            v_lshlrev_b32 v2, 6, v2
            v_add_u32 v2, {WS['SYNC'] + SYNC_FLAGS}, v2""")
    signal(a, 2)
    wg_wait(a, su1, 2, 1, 1, 64)
    stamp(a, 5)
    a(f"""v_lshlrev_b32 v10, 4, v1
    s_lshl_b32 s36, s67, 11
    s_add_u32 s37, s65, s36
    s_add_u32 s37, s37, {WS['XR']}
    s_add_u32 s38, s62, s36
    s_add_u32 s38, s38, {XRO}
    s_mov_b32 m0, s38
    buffer_load_dwordx4 v10, {WSR}, s37 offen sc1 lds
    s_add_u32 s38, s38, 1024
    s_add_u32 s37, s37, 1024
    s_mov_b32 m0, s38
    buffer_load_dwordx4 v10, {WSR}, s37 offen sc1 lds
    v_and_b32 v11, 15, v1
    v_lshrrev_b32 v12, 4, v1
    v_lshlrev_b32 v13, 4, v11
    v_lshl_add_u32 v13, v12, 2, v13
    s_lshl_b32 s36, s67, 10
    v_add_u32 v13, s36, v13
    v_lshlrev_b32 v14, 1, v13
    v_lshlrev_b32 v15, 2, v13
    v_lshlrev_b32 v22, 6, v1
    v_add_u32 v22, {WS['SYNC'] + SYNC_FLAGS}, v22""")
    a(f"""v_add_u32 v17, 1, v11
    v_and_b32 v18, 3, v17
    v_mul_u32_u24 v18, {HCS}, v18
    v_lshrrev_b32 v17, 2, v17
    v_lshlrev_b32 v17, 3, v17
    v_lshl_add_u32 v17, v12, 4, v17
    v_add_u32 v17, v17, v18
    s_lshl_b32 s36, s67, 8
    s_add_u32 s37, s36, s62
    v_add_u32 v17, s37, v17
    v_lshlrev_b32 v18, 5, v11
    v_lshlrev_b32 v19, 4, v12
    v_sub_u32 v18, v19, v18
    s_add_u32 s37, s37, {XRO + 480}
    v_add_u32 v18, s37, v18""")
    for r in range(32, 64): a(f"v_mov_b32 v{r}, 0")
    a(f"s_waitcnt vmcnt(0)\ns_barrier")
    stamp(a, 6)
    pre = []
    for i in range(4):
        pre.append(f"buffer_load_dwordx2 v[{192+2*i}:{193+2*i}], v14, {WSR}, s10 offen offset:{512*i} sc1")
    for i in range(4):
        pre.append(f"buffer_load_dwordx4 v[{200+4*i}:{203+4*i}], v15, {WSR}, s8 offen offset:{1024*i} sc1")
        pre.append(f"buffer_load_dwordx4 v[{216+4*i}:{219+4*i}], v15, {WSR}, s9 offen offset:{1024*i} sc1")
    def load_frags(setbase, bi):
        ops = []
        for x in range(8):
            A = setbase + 4 * x
            ops.append(f"ds_read_b64 v[{A}:{A+1}], v17 offset:{512*x + 64*bi}")
            ops.append(f"ds_read_b64 v[{A+2}:{A+3}], v17 offset:{512*x + 64*bi + 8}")
            B = setbase + 32 + 4 * x
            ops.append(f"ds_read_b128 v[{B}:{B+3}], v18 offset:{512*(7-x) + 64*bi}")
        return ops
    sets = (64, 128)
    for op in load_frags(sets[0], 0): a(op)
    extra = []
    for bi in range(4):
        cur = sets[bi & 1]
        nxt = load_frags(sets[(bi + 1) & 1], bi + 1) if bi < 3 else []
        if bi == 0:
            for i in range(4):
                if i == 0: a(f"buffer_load_dword v24, v22, {WSR}, 0 offen sc1")
                else: a(f"s_movk_i32 s39, {4096*i}\nbuffer_load_dword v{24+i}, v22, {WSR}, s39 offen sc1")
            if HALF:
                a("s_lshl_b32 s38, s22, 3")
                member_flag_off(a, 23, "s38", 8)
            else:
                member_flag_off(a, 23, "0", 16)
            a(f"buffer_load_dword v28, v23, {WSR}, 0 offen offset:4 sc1")
        if bi == CHK1:
            a(f"""s_waitcnt vmcnt(0)
            v_cmp_eq_u32 vcc, s{S_IDW}, v28
            s_cmp_eq_u64 vcc, -1
            s_cselect_b32 s{S_LOC}, 1, 0""")
            flagcheck(a, 2, (24, 25, 26, 27), 22, "L_c_ok1", tmp=(29, 30))
            a(f"s_mov_b32 s8, {WS['RS0']}\ns_mov_b32 s9, {WS['C0']}\ns_add_u32 s10, s65, {WS['QT']}")
            extra0 = pre
            extra = pre + list(hooks['conv_loop_extra'])
        a("s_waitcnt lgkmcnt(0)")
        pairs = sorted([(jt, aa) for jt in range(8) for aa in range(jt + 1)], key=lambda p: (p[1], p[0]))
        k = 0
        for idx, (jt, aa) in enumerate(pairs):
            A = cur + 4 * aa; B = cur + 32 + 4 * (jt - aa); C = 32 + 4 * jt
            a(f"v_mfma_f32_16x16x32_bf16 v[{C}:{C+3}], v[{A}:{A+3}], v[{B}:{B+3}], v[{C}:{C+3}]")
            if idx < 24 and k < len(nxt):
                a(nxt[k]); k += 1
            if extra and idx % PACE == PACE - 1 or (extra and bi == CHK1 and idx < 12):
                a(extra.pop(0))
    for op in extra: a(op)
    stamp(a, 7)
    a(f"""v_lshlrev_b32 v4, 4, v1
    s_lshl_b32 s36, s{S_W}, 12
    s_add_u32 s36, s36, {EXO}
    v_add_u32 v5, s36, v4
    s_xor_b32 s36, s36, 4096
    v_add_u32 v6, s36, v4
    s_cmp_eq_u32 s67, 0
    s_cbranch_scc0 L_c_x1""")
    for half in range(2):
        own, oth = (32, 48) if half == 0 else (48, 32)
        for i in range(4): a(f"ds_write_b128 v5, v[{oth+4*i}:{oth+4*i+3}] offset:{1024*i}")
        a("s_waitcnt lgkmcnt(0)\ns_barrier")
        for i in range(4): a(f"ds_read_b128 v[{80+4*i}:{83+4*i}], v6 offset:{1024*i}")
        a("s_waitcnt lgkmcnt(0)")
        for i in range(4):
            for h in range(2):
                a(f"v_pk_add_f32 v[{64+4*i+2*h}:{65+4*i+2*h}], v[{own+4*i+2*h}:{own+4*i+2*h+1}], v[{80+4*i+2*h}:{81+4*i+2*h}]")
        if half == 0:
            a("s_branch L_c_x2\nL_c_x1:")
    a.label("L_c_x2")
    a(f"""v_lshlrev_b32 v7, 5, v11
    v_lshl_add_u32 v7, v12, 3, v7
    s_lshl_b32 s36, s67, 11
    s_sub_u32 s37, s62, s36
    s_add_u32 s37, s37, {XRO + 4088 - 1536}
    v_sub_u32 v7, s37, v7""")
    for i in range(4): a(f"ds_read_b64 v[{96+2*i}:{97+2*i}], v7 offset:{512*(3-i)}")
    a(f"""s_lshr_b32 s39, s65, 12
    s_mul_i32 s39, s39, {XP}
    s_add_u32 s38, s39, {WS['YT']}
    s_add_u32 s39, s39, {WS['X1T']}
    s_waitcnt vmcnt({hooks['n_conv_total_w']}) lgkmcnt(0)""")
    for op in hooks['conv_epi_extra']: a(op)
    O = lambda i: 64 + 4 * i
    T = lambda i: 104 + 10 * i
    for i in range(4):
        kv = 96 + 2 * i
        a(f"""v_and_b32 v{T(i)}, 0xffff0000, v{kv+1}
        v_lshlrev_b32 v{T(i)+1}, 16, v{kv+1}
        v_and_b32 v{T(i)+2}, 0xffff0000, v{kv}
        v_lshlrev_b32 v{T(i)+3}, 16, v{kv}""")
    for i in range(4):
        a(f"""v_pk_fma_f32 v[{O(i)}:{O(i)+1}], v[{T(i)}:{T(i)+1}], v[20:21], v[{O(i)}:{O(i)+1}] op_sel_hi:[1,0,1]
        v_pk_fma_f32 v[{O(i)+2}:{O(i)+3}], v[{T(i)+2}:{T(i)+3}], v[20:21], v[{O(i)+2}:{O(i)+3}] op_sel_hi:[1,0,1]""")
    for i in range(4):
        a(f"""v_cvt_pk_bf16_f32 v{T(i)+4}, v{O(i)}, v{O(i)+1}
        v_cvt_pk_bf16_f32 v{T(i)+5}, v{O(i)+2}, v{O(i)+3}""")
    for i in range(4):
        a(f"""v_lshlrev_b32 v{T(i)}, 16, v{192+2*i}
        v_and_b32 v{T(i)+1}, 0xffff0000, v{192+2*i}
        v_lshlrev_b32 v{T(i)+2}, 16, v{193+2*i}
        v_and_b32 v{T(i)+3}, 0xffff0000, v{193+2*i}
        buffer_store_dwordx2 v[{T(i)+4}:{T(i)+5}], v14, {WSR}, s38 offen offset:{512*i} sc1""")
    for i in range(4):
        a(f"""v_lshlrev_b32 v{O(i)}, 16, v{T(i)+4}
        v_and_b32 v{O(i)+1}, 0xffff0000, v{T(i)+4}
        v_lshlrev_b32 v{O(i)+2}, 16, v{T(i)+5}
        v_and_b32 v{O(i)+3}, 0xffff0000, v{T(i)+5}
        v_pk_fma_f32 v[{T(i)+6}:{T(i)+7}], v[{T(i)}:{T(i)+1}], v[{200+4*i}:{201+4*i}], v[{216+4*i}:{217+4*i}]
        v_pk_fma_f32 v[{T(i)+8}:{T(i)+9}], v[{T(i)+2}:{T(i)+3}], v[{202+4*i}:{203+4*i}], v[{218+4*i}:{219+4*i}]""")
    for i in range(4):
        a(f"""v_pk_fma_f32 v[{T(i)+6}:{T(i)+7}], v[{T(i)+6}:{T(i)+7}], v[{O(i)}:{O(i)+1}], v[{T(i)}:{T(i)+1}]
        v_pk_fma_f32 v[{T(i)+8}:{T(i)+9}], v[{T(i)+8}:{T(i)+9}], v[{O(i)+2}:{O(i)+3}], v[{T(i)+2}:{T(i)+3}]""")
    for i in range(4):
        a(f"""v_cvt_pk_bf16_f32 v{O(i)}, v{T(i)+6}, v{T(i)+7}
        v_cvt_pk_bf16_f32 v{O(i)+1}, v{T(i)+8}, v{T(i)+9}
        buffer_store_dwordx2 v[{O(i)}:{O(i)+1}], v14, {WSR}, s39 offen offset:{512*i} sc1""")
    stamp(a, 8)


def blk_addr(a):
    a(f"""v_sub_u32 v11, 31, v2
    v_lshlrev_b32 v12, 2, v1
    v_xor_b32 v11, v11, v12
    v_lshlrev_b32 v11, 2, v11
    v_lshlrev_b32 v13, 10, v1
    v_add_u32 v11, v11, v13
    v_add_u32 v11, {PL}, v11
    v_xor_b32 v12, v2, v12
    v_lshlrev_b32 v12, 2, v12
    v_add_u32 v12, v12, v13
    v_add_u32 v12, {PL + 8192}, v12
    """)

def blk_skun(a):
    for j in range(8):
        a(f"""v_lshlrev_b32 v{80+j}, 16, v{44+2*j}
        v_and_b32 v{88+j}, 0xffff0000, v{44+2*j}
        v_lshlrev_b32 v{96+j}, 16, v{45+2*j}
        v_and_b32 v{104+j}, 0xffff0000, v{45+2*j}""")

def blk_kv(a):
    for i in range(5):
        for p in range(4):
            a(f"""v_lshlrev_b32 v{112+8*i+2*p}, 16, v{16+4*i+p}
            v_and_b32 v{113+8*i+2*p}, 0xffff0000, v{16+4*i+p}""")
    for row in range(2):
        for p in range(4):
            d = 152 + 8 * row + 2 * p
            a(f"v_pk_mul_f32 v[{d}:{d+1}], v[{112+8*row+2*p}:{113+8*row+2*p}], v[{104+2*p}:{105+2*p}]")
    for tt, tap in ((1, 2), (2, 1), (3, 0)):
        for row in range(2):
            for p in range(4):
                d = 152 + 8 * row + 2 * p
                k = 112 + 8 * (row + tt) + 2 * p
                s_ = 80 + 8 * tap + 2 * p
                a(f"v_pk_fma_f32 v[{d}:{d+1}], v[{k}:{k+1}], v[{s_}:{s_+1}], v[{d}:{d+1}]")
    for row in range(2):
        for p in range(4):
            a(f"""v_lshlrev_b32 v{112+8*row+2*p}, 16, v{36+4*row+p}
            v_and_b32 v{113+8*row+2*p}, 0xffff0000, v{36+4*row+p}""")
    for row in range(2):
        for p in range(4):
            d = 152 + 8 * row + 2 * p
            a(f"v_pk_mul_f32 v[{d}:{d+1}], v[{d}:{d+1}], v[{112+8*row+2*p}:{113+8*row+2*p}]")
    for j in range(8):
        a(f"v_cvt_pk_bf16_f32 v{80+j}, v{160+j}, v{152+j}")
    for j in range(8):
        a(f"ds_write_b32 v11, v{80+j} offset:{128*j}")
    a(f"""v_lshrrev_b32 v3, 6, v0
    v_xor_b32 v5, v1, v3
    v_lshlrev_b32 v5, 4, v5
    v_lshlrev_b32 v6, 7, v2
    v_add_u32 v5, v5, v6
    v_add_u32 v5, {PL}, v5
    v_xor_b32 v7, 64, v5
    {PGs('s36')}
    s_lshl_b32 s36, s36, 18
    {PTs('s37', 's38')}
    s_lshl_b32 s37, s37, 7
    s_sub_u32 s4, s36, s37
    s_add_u32 s4, s4, {WS['XR'] + 1984*2}
    s_add_u32 s5, s36, s37
    s_add_u32 s5, s5, {WS['QT']}
    v_lshlrev_b32 v8, 12, v2
    v_lshlrev_b32 v15, 4, v1
    v_add_u32 v8, v8, v15
    v_add_u32 v15, 0x20000, v8
    s_waitcnt lgkmcnt(0)
    s_barrier
    ds_read_b128 v[16:19], v5
    ds_read_b128 v[20:23], v7 offset:4096
    s_waitcnt lgkmcnt(1)
    buffer_store_dwordx4 v[16:19], v8, {WSR}, s4 offen {LS('xr')}
    s_waitcnt lgkmcnt(0)
    buffer_store_dwordx4 v[20:23], v15, {WSR}, s4 offen {LS('xr')}""")

def blk_wtr(a):
    a(f"""v_lshrrev_b32 v178, 4, v9
    v_bfe_u32 v179, v9, 2, 2
    v_and_b32 v180, 3, v9
    v_lshl_add_u32 v181, v178, 4, v179
    v_mul_u32_u24 v181, 96, v181
    v_and_b32 v182, 1, v180
    v_lshl_add_u32 v181, v182, 3, v181
    v_lshrrev_b32 v182, 1, v180
    v_mul_u32_u24 v182, {W3OFF}, v182
    v_add_u32 v181, v181, v182
    v_lshlrev_b32 v183, 4, v9""")
    for i in range(3):
        a(f"""s_mul_i32 s36, s{S_W}, 3
        s_add_u32 s36, s36, {i}
        s_lshr_b32 s37, s36, 1
        s_and_b32 s36, s36, 1
        s_lshl_b32 s38, s37, 4
        s_mul_i32 s39, s36, {8*96}
        s_add_u32 s38, s38, s39
        s_add_u32 s38, s38, {PW}
        v_add_u32 v182, s38, v181
        ds_read_b64_tr_b16 v[{144+4*i}:{145+4*i}], v182
        ds_read_b64_tr_b16 v[{146+4*i}:{147+4*i}], v182 offset:{4*96}
        s_mul_i32 s38, s61, 6
        s_add_u32 s38, s38, s37
        s_lshl_b32 s39, s38, 14
        s_lshl_b32 s37, s60, 11
        s_add_u32 s39, s39, s37
        s_lshl_b32 s36, s36, 10
        s_add_u32 s39, s39, s36
        s_add_u32 s39, s39, {WS['WF13']}
        s_cmp_lt_u32 s38, 172
        s_cselect_b32 s{6+i}, s39, {INV}""")
    a(f"""v_lshl_add_u32 v181, v178, 2, v179
    v_lshlrev_b32 v181, 7, v181
    v_lshl_add_u32 v181, v180, 5, v181
    s_lshl_b32 s36, s{S_W}, 3
    s_add_u32 s36, s36, {PW + 2*6144 + 64}
    v_add_u32 v181, s36, v181""")
    for i in range(2):
        a(f"""ds_read_b64_tr_b16 v[{156+4*i}:{157+4*i}], v181 offset:{4096*i}
        ds_read_b64_tr_b16 v[{158+4*i}:{159+4*i}], v181 offset:{4096*i + 2048}
        {PTs('s36', 's37')}
        s_add_u32 s36, s36, {32*i}
        {PGs('s37')}
        s_mul_i32 s37, s37, 43
        s_add_u32 s37, s37, s36
        s_lshl_b32 s37, s37, 12
        s_lshl_b32 s38, s{S_W}, 10
        s_add_u32 s37, s37, s38
        s_add_u32 s37, s37, {WS['WF2']}
        s_cmp_lt_u32 s36, 43
        s_cselect_b32 s{9+i}, s37, {INV}""")

def blk_qperm(a):
    a("s_mov_b32 s36, 0x05040100\ns_mov_b32 s37, 0x07060302")
    for p in range(4):
        a(f"""v_perm_b32 v{88+2*p}, v{64+p}, v{60+p}, s36
        v_perm_b32 v{89+2*p}, v{64+p}, v{60+p}, s37""")
    for j in range(8):
        a(f"ds_write_b32 v12, v{88+j} offset:{128*j}")

def blk_stats(a):
    a("v_mov_b32 v14, 0x3f803f80")
    for row in range(2):
        su, sq = 96 + 2 * row, 97 + 2 * row
        a(f"v_mov_b32 v{su}, 0\nv_mov_b32 v{sq}, 0")
    for p in range(4):
        for row in range(2):
            su, sq = 96 + 2 * row, 97 + 2 * row; b = 68 + 4 * row
            a(f"v_dot2_f32_bf16 v{su}, v{b+p}, v14, v{su}\nv_dot2_f32_bf16 v{sq}, v{b+p}, v{b+p}, v{sq}")
    for r in (8, 4, 2, 1):
        for v in (96, 97, 98, 99):
            a(f"v_add_f32_dpp v{v}, v{v}, v{v} row_ror:{r} row_mask:0xf bank_mask:0xf")
    for k, v in enumerate((96, 97, 98, 99)): a(f"v_mov_b32 v{100+k}, v{v}")
    for k, v in enumerate((96, 97, 98, 99)): a(f"v_permlane16_swap_b32 v{v}, v{100+k}")
    for k, v in enumerate((96, 97, 98, 99)): a(f"v_add_f32 v{v}, v{v}, v{100+k}")
    for k, v in enumerate((96, 97, 98, 99)): a(f"v_mov_b32 v{100+k}, v{v}")
    for k, v in enumerate((96, 97, 98, 99)): a(f"v_permlane32_swap_b32 v{v}, v{100+k}")
    for k, v in enumerate((96, 97, 98, 99)): a(f"v_add_f32 v{v}, v{v}, v{100+k}")
    ln_core(a, 96, 97); ln_core(a, 98, 99)
    a(f"""v_rcp_f32 v102, v97
    v_rcp_f32 v103, v99
    v_mul_f32 v104, -v96, v102
    v_mul_f32 v105, -v98, v103
    s_lshl_b32 s36, s2, 5
    s_lshl_b32 s37, s{S_W}, 3
    s_add_u32 s11, s36, s37
    s_add_u32 s11, s11, {WS['RS0']}""")

def blk_hcop(a):
    a(f"""s_mul_i32 s62, s66, {CB}
    v_lshlrev_b32 v4, 4, v9
    s_lshl_b32 s36, s67, 11
    s_add_u32 s36, s36, s62
    s_add_u32 s36, s36, 32
    v_add_u32 v4, s36, v4""")
    for p in range(2):
        L0, L2, L4 = 192 + 12 * p, 196 + 12 * p, 200 + 12 * p
        for j in range(4):
            a(f"v_alignbit_b32 v{112+8*p+j}, v{L2+j}, v{L0+j}, 16")
            a(f"v_alignbit_b32 v{116+8*p+j}, v{L4+j}, v{L2+j}, 16")
        a(f"""ds_write_b128 v4, v[{L0}:{L0+3}] offset:{1024*p}
        ds_write_b128 v4, v[{112+8*p}:{115+8*p}] offset:{1024*p + HCS}
        ds_write_b128 v4, v[{L2}:{L2+3}] offset:{1024*p + 2*HCS}
        ds_write_b128 v4, v[{116+8*p}:{119+8*p}] offset:{1024*p + 3*HCS}""")
    a(f"""v_lshl_or_b32 v216, v217, 16, v216
    v_mul_u32_u24 v13, {HCS}, v219
    v_lshl_add_u32 v13, v220, 2, v13
    v_add_u32 v13, s62, v13
    ds_write_b32 v13, v216
    v_lshlrev_b32 v20, 16, v218
    v_mov_b32 v92, 0
    v_mov_b32 v93, 0
    v_mov_b32 v94, 0
    v_mov_b32 v95, 0
    v_and_b32 v16, 31, v9
    v_lshlrev_b32 v16, 4, v16
    v_add_u32 v16, s62, v16
    ds_write_b128 v16, v[92:95] offset:{XRO+4096}
    s_waitcnt lgkmcnt(0)""")


def w_stage_bulk(a):
    for k in range(7):
        a(f"""s_sub_u32 s36, s{S_W}, 1
        s_add_u32 s36, s36, {3*k}
        s_cmp_lt_u32 s36, 12
        s_cbranch_scc0 L_w2_{k}
        s_cmp_lt_u32 s36, 6
        s_cselect_b32 s4, s52, s54
        s_cselect_b32 s5, s53, s55
        s_cselect_b32 s37, 0, 6
        s_cselect_b32 s38, 0, {W3OFF}
        s_mov_b32 s6, {D*F*2}
        s_mov_b32 s7, 0x20000
        s_sub_u32 s36, s36, s37
        s_lshl_b32 s37, s36, 6
        v_add_u32 v177, s37, v9
        v_mul_u32_u24 v178, 43691, v177
        v_lshrrev_b32 v178, 18, v178
        v_mul_u32_u24 v179, 6, v178
        v_sub_u32 v179, v177, v179
        v_mul_u32_u24 v178, 2752, v178
        v_lshl_add_u32 v{184+(k%4)}, v179, 4, v178
        s_lshl_b32 s36, s36, 10
        s_add_u32 s36, s36, s38
        s_add_u32 s36, s36, {PW}
        s_mul_i32 s37, s60, {64*2752}
        s_mul_i32 s38, s61, 96
        s_add_u32 s37, s37, s38
        s_branch L_wgo_{k}
        L_w2_{k}:
        s_mov_b32 s4, s56
        s_mov_b32 s5, s57
        s_mov_b32 s6, {D*F*2}
        s_mov_b32 s7, 0x20000
        s_sub_u32 s36, s36, 12
        v_lshrrev_b32 v178, 3, v9
        v_and_b32 v179, 7, v9
        v_lshlrev_b32 v178, 10, v178
        v_lshl_add_u32 v{184+(k%4)}, v179, 4, v178
        {PTs('s37', 's38')}
        s_lshl_b32 s37, s37, 15
        {PGs('s38')}
        s_lshl_b32 s38, s38, 7
        s_add_u32 s37, s37, s38
        s_and_b32 s38, s36, 3
        s_lshl_b32 s38, s38, 13
        s_add_u32 s37, s37, s38
        s_lshr_b32 s38, s36, 2
        s_lshl_b32 s38, s38, 20
        s_add_u32 s37, s37, s38
        s_cmp_lt_u32 s36, 8
        s_cselect_b32 s37, s37, {INV}
        s_min_u32 s36, s36, 8
        s_lshl_b32 s36, s36, 10
        s_add_u32 s36, s36, {PW + 2*6144 + 64}
        L_wgo_{k}:
        s_mov_b32 m0, s36
        buffer_load_dwordx4 v{184+(k%4)}, s[4:7], s37 offen lds""")

def blk_wtr_hi(a):
    a(f"""v_lshrrev_b32 v250, 4, v9
    v_bfe_u32 v251, v9, 2, 2
    v_and_b32 v252, 3, v9
    v_lshl_add_u32 v253, v250, 4, v251
    v_mul_u32_u24 v253, 96, v253
    v_and_b32 v255, 1, v252
    v_lshl_add_u32 v253, v255, 3, v253
    v_lshrrev_b32 v255, 1, v252
    v_mul_u32_u24 v255, {W3OFF}, v255
    v_add_u32 v253, v253, v255
    v_lshlrev_b32 v254, 4, v9""")
    for i in range(3):
        a(f"""s_mul_i32 s36, s{S_W}, 3
        s_add_u32 s36, s36, {i}
        s_lshr_b32 s37, s36, 1
        s_and_b32 s36, s36, 1
        s_lshl_b32 s38, s37, 4
        s_mul_i32 s39, s36, {8*96}
        s_add_u32 s38, s38, s39
        s_add_u32 s38, s38, {PW}
        v_add_u32 v255, s38, v253
        ds_read_b64_tr_b16 v[{232+4*i}:{233+4*i}], v255
        ds_read_b64_tr_b16 v[{234+4*i}:{235+4*i}], v255 offset:{4*96}
        s_mul_i32 s38, s61, 6
        s_add_u32 s38, s38, s37
        s_lshl_b32 s39, s38, 14
        s_lshl_b32 s37, s60, 11
        s_add_u32 s39, s39, s37
        s_lshl_b32 s36, s36, 10
        s_add_u32 s39, s39, s36
        s_add_u32 s39, s39, {WS['WF13']}
        s_cmp_lt_u32 s38, 172
        s_cselect_b32 s{(6, 7, 12)[i]}, s39, {INV}""")
    a(f"""v_lshl_add_u32 v253, v250, 2, v251
    v_lshlrev_b32 v253, 7, v253
    v_lshl_add_u32 v253, v252, 5, v253
    s_lshl_b32 s36, s{S_W}, 3
    s_add_u32 s36, s36, {PW + 2*6144 + 64}
    v_add_u32 v253, s36, v253""")
    for i in range(2):
        a(f"""ds_read_b64_tr_b16 v[{244+4*i}:{245+4*i}], v253 offset:{4096*i}
        ds_read_b64_tr_b16 v[{246+4*i}:{247+4*i}], v253 offset:{4096*i + 2048}
        {PTs('s36', 's37')}
        s_add_u32 s36, s36, {32*i}
        {PGs('s37')}
        s_mul_i32 s37, s37, 43
        s_add_u32 s37, s37, s36
        s_lshl_b32 s37, s37, 12
        s_lshl_b32 s38, s{S_W}, 10
        s_add_u32 s37, s37, s38
        s_add_u32 s37, s37, {WS['WF2']}
        s_cmp_lt_u32 s36, 43
        s_cselect_b32 s{(13, 14)[i]}, s37, {INV}""")

def conv_epilogue(a):
    O = lambda i: 64 + 4 * i
    T = lambda i: 104 + 10 * i
    for i in range(4):
        kv = 96 + 2 * i
        a(f"""v_and_b32 v{T(i)}, 0xffff0000, v{kv+1}
        v_lshlrev_b32 v{T(i)+1}, 16, v{kv+1}
        v_and_b32 v{T(i)+2}, 0xffff0000, v{kv}
        v_lshlrev_b32 v{T(i)+3}, 16, v{kv}""")
    for i in range(4):
        a(f"""v_pk_fma_f32 v[{O(i)}:{O(i)+1}], v[{T(i)}:{T(i)+1}], v[20:21], v[{O(i)}:{O(i)+1}] op_sel_hi:[1,0,1]
        v_pk_fma_f32 v[{O(i)+2}:{O(i)+3}], v[{T(i)+2}:{T(i)+3}], v[20:21], v[{O(i)+2}:{O(i)+3}] op_sel_hi:[1,0,1]""")
    for i in range(4):
        a(f"""v_cvt_pk_bf16_f32 v{T(i)+4}, v{O(i)}, v{O(i)+1}
        v_cvt_pk_bf16_f32 v{T(i)+5}, v{O(i)+2}, v{O(i)+3}""")
    for i in range(4):
        a(f"""v_lshlrev_b32 v{T(i)}, 16, v{192+2*i}
        v_and_b32 v{T(i)+1}, 0xffff0000, v{192+2*i}
        v_lshlrev_b32 v{T(i)+2}, 16, v{193+2*i}
        v_and_b32 v{T(i)+3}, 0xffff0000, v{193+2*i}
        buffer_store_dwordx2 v[{T(i)+4}:{T(i)+5}], v14, {WSR}, s38 offen offset:{512*i} sc1""")
    for i in range(4):
        a(f"""v_lshlrev_b32 v{O(i)}, 16, v{T(i)+4}
        v_and_b32 v{O(i)+1}, 0xffff0000, v{T(i)+4}
        v_lshlrev_b32 v{O(i)+2}, 16, v{T(i)+5}
        v_and_b32 v{O(i)+3}, 0xffff0000, v{T(i)+5}
        v_pk_fma_f32 v[{T(i)+6}:{T(i)+7}], v[{T(i)}:{T(i)+1}], v[{200+4*i}:{201+4*i}], v[{216+4*i}:{217+4*i}]
        v_pk_fma_f32 v[{T(i)+8}:{T(i)+9}], v[{T(i)+2}:{T(i)+3}], v[{202+4*i}:{203+4*i}], v[{218+4*i}:{219+4*i}]""")
    for i in range(4):
        a(f"""v_pk_fma_f32 v[{T(i)+6}:{T(i)+7}], v[{T(i)+6}:{T(i)+7}], v[{O(i)}:{O(i)+1}], v[{T(i)}:{T(i)+1}]
        v_pk_fma_f32 v[{T(i)+8}:{T(i)+9}], v[{T(i)+8}:{T(i)+9}], v[{O(i)+2}:{O(i)+3}], v[{T(i)+2}:{T(i)+3}]""")
    for i in range(4):
        a(f"""v_cvt_pk_bf16_f32 v{O(i)}, v{T(i)+6}, v{T(i)+7}
        v_cvt_pk_bf16_f32 v{O(i)+1}, v{T(i)+8}, v{T(i)+9}
        buffer_store_dwordx2 v[{O(i)}:{O(i)+1}], v14, {WSR}, s39 offen offset:{512*i} sc1""")
    stamp(a, 8)

def emit_front4(a, hooks):
    blk_addr(a)
    a("s_waitcnt vmcnt(20)")
    blk_skun(a)
    a("s_waitcnt vmcnt(13)")
    stamp(a, 1)
    blk_kv(a)
    stamp(a, 2)
    a("s_mov_b32 s8, s5")
    a.nolog += 1
    a(f"""s_cmp_eq_u32 s{S_W}, 0
    s_cbranch_scc1 L_f_w0a""")
    w_stage_bulk(a)
    a(f"""s_waitcnt vmcnt(7)
    s_branch L_f_j1
    L_f_w0a:
    s_waitcnt vmcnt(0)
    L_f_j1:
    s_barrier
    s_cmp_lg_u32 s{S_W}, 0
    s_cbranch_scc1 L_f_s1
    s_add_u32 s36, s{S_GEN}, 1
    v_mov_b32 v16, s36
    v_mov_b32 v17, s{S_FLAG}
    s_mov_b64 exec, 1
    buffer_store_dword v16, v17, {WSR}, 0 offen sc1
    s_mov_b64 exec, -1
    L_f_s1:""")
    a.nolog -= 1
    stamp(a, 3)
    blk_hcop(a)
    a("v_and_b32 v1, 63, v0")
    a.nolog += 1
    a(f"""s_cmp_lg_u32 s{S_W}, 0
    s_cbranch_scc1 L_f_nx""")
    if SPREAD:
        a(f"""v_and_b32 v2, 7, v1
        v_lshlrev_b32 v2, 5, v2
        v_bfe_u32 v3, v1, 3, 2
        v_lshl_add_u32 v2, v3, 3, v2
        v_add_u32 v2, s60, v2
        v_lshlrev_b32 v2, 6, v2
        v_add_u32 v2, {WS['SYNC'] + SYNC_FLAGS}, v2""")
    else:
        a(f"""v_and_b32 v2, 31, v1
        s_lshl_b32 s36, s60, 5
        v_add_u32 v2, s36, v2
        v_lshlrev_b32 v2, 6, v2
        v_add_u32 v2, {WS['SYNC'] + SYNC_FLAGS}, v2""")
    wait_flags(a, 2, 1, 1, 18)
    a(f"""v_lshlrev_b32 v19, 4, v1
    s_lshl_b32 s36, s19, 13
    s_add_u32 s36, s36, {WS['XR']}""")
    for ch in range(2):
        for i in range(4):
            a(f"""s_mov_b32 m0, {ch * CB + XRO + i * 1024}
            buffer_load_dwordx4 v19, {WSR}, s36 offen sc1 lds
            s_add_u32 s36, s36, 1024""")
    a.label("L_f_nx")
    a.nolog -= 1
    stamp(a, 4)
    blk_qperm(a)
    blk_stats(a)
    a(f"""v_mov_b32 v101, s11
    s_mov_b32 s37, {WS['C0']-WS['RS0']}
    s_mov_b64 exec, 1
    buffer_store_dwordx2 v[102:103], v101, {WSR}, 0 offen sc1
    buffer_store_dwordx2 v[104:105], v101, {WSR}, s37 offen sc1
    s_mov_b64 exec, -1
    s_waitcnt lgkmcnt(0)
    s_barrier
    ds_read_b128 v[72:75], v5 offset:8192
    ds_read_b128 v[76:79], v7 offset:{8192+4096}
    s_waitcnt lgkmcnt(1)
    buffer_store_dwordx4 v[72:75], v8, {WSR}, s8 offen sc1
    s_waitcnt lgkmcnt(0)
    buffer_store_dwordx4 v[76:79], v15, {WSR}, s8 offen sc1""")
    emit_ffn_roles(a)
    a(f"""v_and_b32 v11, 15, v1
    v_lshrrev_b32 v12, 4, v1
    v_lshlrev_b32 v13, 4, v11
    v_lshl_add_u32 v13, v12, 2, v13
    s_lshl_b32 s36, s67, 10
    v_add_u32 v13, s36, v13
    v_lshlrev_b32 v14, 1, v13
    v_lshlrev_b32 v15, 2, v13
    v_lshlrev_b32 v22, 6, v1
    v_add_u32 v22, {WS['SYNC'] + SYNC_FLAGS}, v22
    v_add_u32 v17, 1, v11
    v_and_b32 v18, 3, v17
    v_mul_u32_u24 v18, {HCS}, v18
    v_lshrrev_b32 v17, 2, v17
    v_lshlrev_b32 v17, 3, v17
    v_lshl_add_u32 v17, v12, 4, v17
    v_add_u32 v17, v17, v18
    s_lshl_b32 s36, s67, 8
    s_add_u32 s37, s36, s62
    v_add_u32 v17, s37, v17
    v_lshlrev_b32 v18, 5, v11
    v_lshlrev_b32 v19, 4, v12
    v_sub_u32 v18, v19, v18
    s_add_u32 s37, s37, {XRO + 480}
    v_add_u32 v18, s37, v18""")
    for r in range(32, 64): a(f"v_mov_b32 v{r}, 0")
    a(f"""s_cmp_lg_u32 s{S_W}, 0
    s_cbranch_scc1 L_f_nw
    s_waitcnt vmcnt(4)
    L_f_nw:
    s_barrier""")
    stamp(a, 6)
    pre = []
    for i in range(4):
        pre.append(f"buffer_load_dwordx2 v[{192+2*i}:{193+2*i}], v14, {WSR}, s10 offen offset:{512*i} sc1")
    for i in range(4):
        pre.append(f"buffer_load_dwordx4 v[{200+4*i}:{203+4*i}], v15, {WSR}, s8 offen offset:{1024*i} sc1")
        pre.append(f"buffer_load_dwordx4 v[{216+4*i}:{219+4*i}], v15, {WSR}, s9 offen offset:{1024*i} sc1")
    def load_frags(setbase, bi):
        ops = []
        for x in range(8):
            A = setbase + 4 * x
            ops.append(f"ds_read_b64 v[{A}:{A+1}], v17 offset:{512*x + 64*bi}")
            ops.append(f"ds_read_b64 v[{A+2}:{A+3}], v17 offset:{512*x + 64*bi + 8}")
            B = setbase + 32 + 4 * x
            ops.append(f"ds_read_b128 v[{B}:{B+3}], v18 offset:{512*(7-x) + 64*bi}")
        return ops
    sets = (64, 128)
    for op in load_frags(sets[0], 0): a(op)
    def flagloads(off):
        for i in range(4):
            if i == 0: a(f"buffer_load_dword v24, v22, {WSR}, 0 offen offset:{off} sc1")
            else: a(f"s_movk_i32 s39, {4096*i}\nbuffer_load_dword v{24+i}, v22, {WSR}, s39 offen offset:{off} sc1")
    for bi in range(4):
        cur = sets[bi & 1]
        nxt = load_frags(sets[(bi + 1) & 1], bi + 1) if bi < 3 else []
        if bi == 2:
            signal(a, 2, tv=(24, 25))
            a("v_and_b32 v9, 63, v0")
            blk_wtr_hi(a)
        if bi == 3:
            flagloads(0)
            if HALF:
                a("s_lshl_b32 s38, s22, 3")
                member_flag_off(a, 23, "s38", 8)
            else:
                member_flag_off(a, 23, "0", 16)
            a(f"buffer_load_dword v28, v23, {WSR}, 0 offen offset:4 sc1")
            a("s_waitcnt lgkmcnt(0)")
            for i in range(5):
                a(f"buffer_store_dwordx4 {vr(232+4*i)}, v254, {WSR}, s{(6, 7, 12, 13, 14)[i]} offen sc1")
        a("s_waitcnt lgkmcnt(0)")
        pairs = sorted([(jt, aa) for jt in range(8) for aa in range(jt + 1)], key=lambda p: (p[1], p[0]))
        k = 0
        for idx, (jt, aa) in enumerate(pairs):
            A = cur + 4 * aa; B = cur + 32 + 4 * (jt - aa); C = 32 + 4 * jt
            a(f"v_mfma_f32_16x16x32_bf16 v[{C}:{C+3}], v[{A}:{A+3}], v[{B}:{B+3}], v[{C}:{C+3}]")
            if idx < 24 and k < len(nxt):
                a(nxt[k]); k += 1
    stamp(a, 7)
    a("s_waitcnt vmcnt(5)")
    a(f"""v_cmp_eq_u32 vcc, s{S_IDW}, v28
    s_cmp_eq_u64 vcc, -1
    s_cselect_b32 s{S_LOC}, 1, 0""")
    flagcheck(a, 2, (24, 25, 26, 27), 22, "L_c_ok1", tmp=(29, 30))
    a(f"s_mov_b32 s8, {WS['RS0']}\ns_mov_b32 s9, {WS['C0']}\ns_add_u32 s10, s65, {WS['QT']}")
    for op in pre: a(op)
    a(f"""v_lshlrev_b32 v4, 4, v1
    s_lshl_b32 s36, s{S_W}, 12
    s_add_u32 s36, s36, {EXO}
    v_add_u32 v5, s36, v4
    s_xor_b32 s36, s36, 4096
    v_add_u32 v6, s36, v4
    s_cmp_eq_u32 s67, 0
    s_cbranch_scc0 L_c_x1""")
    for half in range(2):
        own, oth = (32, 48) if half == 0 else (48, 32)
        for i in range(4): a(f"ds_write_b128 v5, v[{oth+4*i}:{oth+4*i+3}] offset:{1024*i}")
        a("s_waitcnt vmcnt(12) lgkmcnt(0)\ns_barrier")
        for i in range(4): a(f"ds_read_b128 v[{80+4*i}:{83+4*i}], v6 offset:{1024*i}")
        a("s_waitcnt lgkmcnt(0)")
        for i in range(4):
            for h in range(2):
                a(f"v_pk_add_f32 v[{64+4*i+2*h}:{65+4*i+2*h}], v[{own+4*i+2*h}:{own+4*i+2*h+1}], v[{80+4*i+2*h}:{81+4*i+2*h}]")
        if half == 0:
            a("s_branch L_c_x2\nL_c_x1:")
    a.label("L_c_x2")
    a.nolog += 1
    a(f"""s_cmp_lg_u32 s{S_W}, 0
    s_cbranch_scc1 L_f_wf
    s_add_u32 s36, s{S_GEN}, 1
    v_mov_b32 v24, s36
    v_mov_b32 v25, s{S_FLAG}
    s_mov_b64 exec, 1
    buffer_store_dword v24, v25, {WSR}, 0 offen offset:8 sc1
    s_mov_b64 exec, -1
    L_f_wf:""")
    a.nolog -= 1
    a(f"""v_lshlrev_b32 v7, 5, v11
    v_lshl_add_u32 v7, v12, 3, v7
    s_lshl_b32 s36, s67, 11
    s_sub_u32 s37, s62, s36
    s_add_u32 s37, s37, {XRO + 4088 - 1536}
    v_sub_u32 v7, s37, v7""")
    for i in range(4): a(f"ds_read_b64 v[{96+2*i}:{97+2*i}], v7 offset:{512*(3-i)}")
    a(f"""s_lshr_b32 s39, s65, 12
    s_mul_i32 s39, s39, {XP}
    s_add_u32 s38, s39, {WS['YT']}
    s_add_u32 s39, s39, {WS['X1T']}
    s_waitcnt vmcnt(0) lgkmcnt(0)""")
    conv_epilogue(a)


import re as _re
def renum(text, lo, shift):
    def f(m):
        n = int(m.group(1)); return f"v{n - shift}" if n >= lo else m.group(0)
    def g(m):
        x, y = int(m.group(1)), int(m.group(2))
        return f"v[{x - shift}:{y - shift}]" if x >= lo else m.group(0)
    return _re.sub(r"\bv(\d+)\b", f, _re.sub(r"v\[(\d+):(\d+)\]", g, text))
class Sub:
    def __init__(self): self.t = []
    def __call__(self, x): self.t.append(x)
def blk_rbaddr(a):
    a(f"""v_lshrrev_b32 v3, 6, v0
    v_xor_b32 v5, v1, v3
    v_lshlrev_b32 v5, 4, v5
    v_lshlrev_b32 v6, 7, v2
    v_add_u32 v5, v5, v6
    v_add_u32 v5, {PL}, v5
    v_xor_b32 v7, 64, v5
    {PGs('s36')}
    s_lshl_b32 s36, s36, 18
    {PTs('s37', 's38')}
    s_lshl_b32 s37, s37, 7
    s_add_u32 s5, s36, s37
    s_add_u32 s5, s5, {WS['QT']}
    v_lshlrev_b32 v8, 12, v2
    v_lshlrev_b32 v15, 4, v1
    v_add_u32 v8, v8, v15
    v_add_u32 v15, 0x20000, v8""")
def build_prep_kernel(a, name):
    kbegin(a, name)
    a(f"""s_cmp_ge_u32 s2, 256
    s_cbranch_scc1 P_end
    s_load_dwordx4 s[4:7], s[0:1], {ARG['q']}
    s_load_dwordx4 s[8:11], s[0:1], {ARG['v']}
    s_load_dwordx2 s[16:17], s[0:1], {ARG['ws']}
    s_load_dwordx4 s[52:55], s[0:1], {ARG['w1']}
    s_load_dwordx2 s[56:57], s[0:1], {ARG['w2']}
    v_lshrrev_b32 v3, 6, v0
    v_readfirstlane_b32 s19, v3
    v_and_b32 v0, 255, v0
    v_and_b32 v1, 7, v0
    v_lshrrev_b32 v2, 3, v0
    v_and_b32 v9, 63, v0
    s_and_b32 s{S_W}, s19, 3
    s_lshr_b32 s19, s19, 2
    s_and_b32 s60, s2, 7
    s_lshr_b32 s61, s2, 3
    s_lshr_b32 s66, s{S_W}, 1
    s_and_b32 s67, s{S_W}, 1
    {PGs('s36')}
    s_lshl_b32 s36, s36, 7
    {PTs('s37', 's38')}
    s_lshl_b32 s37, s37, 16
    s_add_u32 s36, s36, s37
    v_lshlrev_b32 v4, 4, v1
    v_lshlrev_b32 v5, 11, v2
    v_add3_u32 v4, v4, v5, s36
    s_waitcnt lgkmcnt(0)""")
    srd(a, 20, 4, S * D * 2)
    srd(a, 24, 6, S * D * 2)
    srd(a, 32, 8, S * D * 2)
    srd(a, 40, 10, D * 8)
    srd(a, 28, 16, WS['END'])
    a("s_cmp_eq_u32 s19, 1\ns_cbranch_scc1 P_q\ns_cmp_eq_u32 s19, 2\ns_cbranch_scc1 P_w")
    a(f"""{PGs('s36')}
    s_lshl_b32 s36, s36, 9
    v_lshlrev_b32 v8, 6, v1
    v_add_u32 v8, s36, v8
    buffer_load_dwordx4 v[44:47], v8, s[40:43], 0 offen
    buffer_load_dwordx4 v[48:51], v8, s[40:43], 0 offen offset:16
    buffer_load_dwordx4 v[52:55], v8, s[40:43], 0 offen offset:32
    buffer_load_dwordx4 v[56:59], v8, s[40:43], 0 offen offset:48
    v_subrev_u32 v5, 3072, v4
    v_subrev_u32 v6, 2048, v4
    v_subrev_u32 v7, 1024, v4
    buffer_load_dwordx4 v[16:19], v5, s[24:27], 0 offen
    buffer_load_dwordx4 v[20:23], v6, s[24:27], 0 offen
    buffer_load_dwordx4 v[24:27], v7, s[24:27], 0 offen
    buffer_load_dwordx4 v[28:31], v4, s[24:27], 0 offen
    buffer_load_dwordx4 v[32:35], v4, s[24:27], 0 offen offset:1024
    buffer_load_dwordx4 v[36:39], v4, s[32:35], 0 offen
    buffer_load_dwordx4 v[40:43], v4, s[32:35], 0 offen offset:1024""")
    blk_addr(a)
    a("s_waitcnt vmcnt(7)")
    blk_skun(a)
    a("s_waitcnt vmcnt(0)")
    blk_kv(a)
    a("s_endpgm")
    a.label("P_q")
    emit_prep_loadsQ(a)
    emit_statrows(a)
    blk_addr(a)
    blk_rbaddr(a)
    a("s_waitcnt vmcnt(2)")
    blk_qperm(a)
    a("s_waitcnt vmcnt(0)")
    blk_stats(a)
    a(f"""v_mov_b32 v101, s11
    s_mov_b32 s37, {WS['C0']-WS['RS0']}
    s_mov_b64 exec, 1
    buffer_store_dwordx2 v[102:103], v101, {WSR}, 0 offen {PST}
    buffer_store_dwordx2 v[104:105], v101, {WSR}, s37 offen {PST}
    s_mov_b64 exec, -1
    s_waitcnt lgkmcnt(0)
    s_barrier
    ds_read_b128 v[72:75], v5 offset:8192
    ds_read_b128 v[76:79], v7 offset:{8192+4096}
    s_waitcnt lgkmcnt(1)
    buffer_store_dwordx4 v[72:75], v8, {WSR}, s5 offen {PST}
    s_waitcnt lgkmcnt(0)
    buffer_store_dwordx4 v[76:79], v15, {WSR}, s5 offen {PST}
    s_endpgm""")
    a.label("P_w")
    sub = Sub()
    sub(f"""s_cmp_eq_u32 s66, 0
    s_cselect_b32 s52, s52, s54
    s_cselect_b32 s53, s53, s55
    s_mov_b32 s54, {D*F*2}
    s_mov_b32 s55, 0x20000
    s_mov_b32 s58, {D*F*2}
    s_mov_b32 s59, 0x20000""")
    saveW = emit_prep_loadsW.__code__
    emit_prep_loadsW(sub)
    sub.t.pop(0)
    sub("s_waitcnt vmcnt(0)\ns_barrier")
    blk_wtr(sub)
    for i in range(5):
        sub(f"s_waitcnt lgkmcnt({2*(4-i)})\nbuffer_store_dwordx4 {vr(144+4*i)}, v183, {WSR}, s{6+i} offen {PST}")
    for t in sub.t: a(renum(t, 144, 100))
    a.label("P_end")
    a("s_endpgm")

def emit_split_front(a, w13ops):
    a(f"""s_cmp_ge_u32 s2, 256
    s_cbranch_scc1 L_end""")
    emit_codepf(a)
    a(f"""s_load_dwordx4 s[12:15], s[0:1], {ARG['h']}
    s_load_dwordx2 s[16:17], s[0:1], {ARG['ws']}
    v_lshrrev_b32 v3, 6, v0
    v_and_b32 v9, 63, v0
    v_and_b32 v1, 63, v0
    v_readfirstlane_b32 s{S_W}, v3
    s_and_b32 s60, s2, 7
    s_lshr_b32 s61, s2, 3
    s_lshl_b32 s{S_FLAG}, s60, 5
    s_add_u32 s{S_FLAG}, s{S_FLAG}, s61
    s_mov_b32 s19, s{S_FLAG}
    s_lshl_b32 s{S_FLAG}, s{S_FLAG}, 6
    s_add_u32 s{S_FLAG}, s{S_FLAG}, {WS['SYNC'] + SYNC_FLAGS}
    s_lshr_b32 s66, s{S_W}, 1
    s_and_b32 s67, s{S_W}, 1
    s_mul_i32 s62, s66, {CB}
    s_waitcnt lgkmcnt(0)""")
    srd(a, 28, 16, WS['END'])
    a(f"""s_add_u32 s36, s16, {WS['SYNC'] + SYNC_GEN}
    s_addc_u32 s37, s17, 0
    s_load_dword s{S_GEN}, s[36:37], 0""")
    stamp(a, 0)
    a(f"""s_lshl_b32 s65, s19, 1
    s_add_u32 s65, s65, s66
    s_lshl_b32 s65, s65, 12
    v_lshlrev_b32 v10, 4, v1
    s_lshl_b32 s36, s67, 11
    s_add_u32 s37, s65, s36
    s_add_u32 s37, s37, {WS['XR']}
    s_add_u32 s38, s62, s36
    s_add_u32 s38, s38, {XRO}
    s_mov_b32 m0, s38
    buffer_load_dwordx4 v10, {WSR}, s37 offen lds
    s_add_u32 s38, s38, 1024
    s_add_u32 s37, s37, 1024
    s_mov_b32 m0, s38
    buffer_load_dwordx4 v10, {WSR}, s37 offen lds""")
    a.tag = 'h'; emit_prep_loads2(a); a.tag = None
    emit_ffn_roles(a)
    a("s_waitcnt lgkmcnt(0)")
    a(f"""s_getreg_b32 s36, hwreg(HW_REG_XCC_ID, 0, 4)
    s_add_u32 s{S_IDW}, s{S_GEN}, 13
    s_lshl_b32 s{S_IDW}, s{S_IDW}, 4
    s_or_b32 s{S_IDW}, s{S_IDW}, s36
    s_mov_b32 s{S_LOC}, 0""")
    a.nolog += 1
    a(f"""s_cmp_lg_u32 s{S_W}, 0
    s_cbranch_scc1 L_noid
    v_mov_b32 v174, s{S_IDW}
    v_mov_b32 v175, s{S_FLAG}
    s_mov_b64 exec, 1
    buffer_store_dword v174, v175, {WSR}, 0 offen offset:4 sc1
    s_mov_b64 exec, -1
    L_noid:""")
    a.nolog -= 1
    a(f"""v_and_b32 v11, 15, v1
    v_lshrrev_b32 v12, 4, v1
    v_lshlrev_b32 v13, 4, v11
    v_lshl_add_u32 v13, v12, 2, v13
    s_lshl_b32 s36, s67, 10
    v_add_u32 v13, s36, v13
    v_lshlrev_b32 v14, 1, v13
    v_lshlrev_b32 v15, 2, v13
    v_add_u32 v17, 1, v11
    v_and_b32 v18, 3, v17
    v_mul_u32_u24 v18, {HCS}, v18
    v_lshrrev_b32 v17, 2, v17
    v_lshlrev_b32 v17, 3, v17
    v_lshl_add_u32 v17, v12, 4, v17
    v_add_u32 v17, v17, v18
    s_lshl_b32 s36, s67, 8
    s_add_u32 s37, s36, s62
    v_add_u32 v17, s37, v17
    v_lshlrev_b32 v18, 5, v11
    v_lshlrev_b32 v19, 4, v12
    v_sub_u32 v18, v19, v18
    s_add_u32 s37, s37, {XRO + 480}
    v_add_u32 v18, s37, v18""")
    for r in range(32, 64): a(f"v_mov_b32 v{r}, 0")
    a.vmneed('h')
    stamp(a, 4)
    a.tag = 'w13'
    for op in w13ops[:NWS]: a(op)
    a.tag = None
    blk_hcop(a)
    a("s_barrier")
    stamp(a, 6)
    pre = []
    for i in range(4):
        pre.append(f"buffer_load_dwordx2 v[{192+2*i}:{193+2*i}], v14, {WSR}, s10 offen offset:{512*i}")
    for i in range(4):
        pre.append(f"buffer_load_dwordx4 v[{200+4*i}:{203+4*i}], v15, {WSR}, s8 offen offset:{1024*i}")
        pre.append(f"buffer_load_dwordx4 v[{216+4*i}:{219+4*i}], v15, {WSR}, s9 offen offset:{1024*i}")
    a(f"s_mov_b32 s8, {WS['RS0']}\ns_mov_b32 s9, {WS['C0']}\ns_add_u32 s10, s65, {WS['QT']}")
    def load_frags(setbase, bi):
        ops = []
        for x in range(8):
            A = setbase + 4 * x
            ops.append(f"ds_read_b64 v[{A}:{A+1}], v17 offset:{512*x + 64*bi}")
            ops.append(f"ds_read_b64 v[{A+2}:{A+3}], v17 offset:{512*x + 64*bi + 8}")
            B = setbase + 32 + 4 * x
            ops.append(f"ds_read_b128 v[{B}:{B+3}], v18 offset:{512*(7-x) + 64*bi}")
        return ops
    sets = (64, 128)
    for op in load_frags(sets[0], 0): a(op)
    extra = [(op, 'w13') for op in w13ops[NWS:NWS + NWL1]] + [(op, 'pre') for op in pre] + [(op, 'w13') for op in w13ops[NWS + NWL1:NW13A]]
    nx = len(extra); done = 0
    for bi in range(4):
        cur = sets[bi & 1]
        nxt = load_frags(sets[(bi + 1) & 1], bi + 1) if bi < 3 else []
        if bi == 3:
            member_flag_off(a, 23, "0", 16)
            a.tag = 'id'; a(f"buffer_load_dword v28, v23, {WSR}, 0 offen offset:4 sc1"); a.tag = None
        a("s_waitcnt lgkmcnt(0)")
        pairs = sorted([(jt, aa) for jt in range(8) for aa in range(jt + 1)], key=lambda p: (p[1], p[0]))
        k = 0
        for idx, (jt, aa) in enumerate(pairs):
            A = cur + 4 * aa; B = cur + 32 + 4 * (jt - aa); C = 32 + 4 * jt
            a(f"v_mfma_f32_16x16x32_bf16 v[{C}:{C+3}], v[{A}:{A+3}], v[{B}:{B+3}], v[{C}:{C+3}]")
            if idx < 24 and k < len(nxt):
                a(nxt[k]); k += 1
            want = (bi * 36 + idx + 1) * nx // 140
            while done < min(want, nx):
                op, tg = extra[done]; a.tag = tg; a(op); a.tag = None; done += 1
    while done < nx:
        op, tg = extra[done]; a.tag = tg; a(op); a.tag = None; done += 1
    stamp(a, 7)
    a(f"""v_lshlrev_b32 v4, 4, v1
    s_lshl_b32 s36, s{S_W}, 12
    s_add_u32 s36, s36, {EXO}
    v_add_u32 v5, s36, v4
    s_xor_b32 s36, s36, 4096
    v_add_u32 v6, s36, v4
    s_cmp_eq_u32 s67, 0
    s_cbranch_scc0 L_c_x1""")
    for half in range(2):
        own, oth = (32, 48) if half == 0 else (48, 32)
        for i in range(4): a(f"ds_write_b128 v5, v[{oth+4*i}:{oth+4*i+3}] offset:{1024*i}")
        a("s_waitcnt lgkmcnt(0)\ns_barrier")
        for i in range(4): a(f"ds_read_b128 v[{80+4*i}:{83+4*i}], v6 offset:{1024*i}")
        a("s_waitcnt lgkmcnt(0)")
        for i in range(4):
            for h in range(2):
                a(f"v_pk_add_f32 v[{64+4*i+2*h}:{65+4*i+2*h}], v[{own+4*i+2*h}:{own+4*i+2*h+1}], v[{80+4*i+2*h}:{81+4*i+2*h}]")
        if half == 0:
            a("s_branch L_c_x2\nL_c_x1:")
    a.label("L_c_x2")
    a(f"""v_lshlrev_b32 v7, 5, v11
    v_lshl_add_u32 v7, v12, 3, v7
    s_lshl_b32 s36, s67, 11
    s_sub_u32 s37, s62, s36
    s_add_u32 s37, s37, {XRO + 4088 - 1536}
    v_sub_u32 v7, s37, v7""")
    for i in range(4): a(f"ds_read_b64 v[{96+2*i}:{97+2*i}], v7 offset:{512*(3-i)}")
    a(f"""s_lshr_b32 s39, s65, 12
    s_mul_i32 s39, s39, {XP}
    s_add_u32 s38, s39, {WS['YT']}
    s_add_u32 s39, s39, {WS['X1T']}""")
    a.vmneed('id')
    a(f"""v_cmp_eq_u32 vcc, s{S_IDW}, v28
    s_cmp_eq_u64 vcc, -1
    s_cselect_b32 s{S_LOC}, 1, 0""")
    a.vmneed('pre', " lgkmcnt(0)")
    conv_epilogue(a)

V_CS = 32; V_X3 = 44; V_ACC = 52; V_XB = 100; V_T = 116; V_HB = 116; V_W2 = 144
def w13(kb, t): b = (kb * 3 + t) * 4; return f"a[{b}:{b+3}]"
def w2(i, dt):
    idx = i * 4 + dt
    if idx < 16: b = 192 + idx * 4; return f"a[{b}:{b+3}]"
    b = V_W2 + (idx - 16) * 4; return f"v[{b}:{b+3}]"

def emit_ffn_roles_early(a):
    pass
def emit_ffn_roles(a):
    if HALF:
        a(f"""s_and_b32 s22, s60, 1
        s_lshr_b32 s20, s60, 1
        s_lshl_b32 s20, s20, 2
        s_and_b32 s36, s61, 3
        s_or_b32 s20, s20, s36
        s_lshr_b32 s23, s61, 2
        s_lshl_b32 s21, s22, 3
        s_or_b32 s21, s21, s23""")
    else:
        a(f"""s_and_b32 s20, s61, 1
        s_lshl_b32 s36, s60, 1
        s_or_b32 s20, s20, s36
        s_lshr_b32 s21, s61, 1
        s_lshr_b32 s22, s21, 3
        s_and_b32 s23, s21, 7""")
    for t in range(3):
        a(f"""s_mul_i32 s36, s{S_W}, 3
        s_add_u32 s36, s36, {t}
        s_mul_i32 s37, s21, 11
        s_add_u32 s37, s37, s36
        s_cmp_lt_u32 s36, 11
        s_cselect_b32 s38, s37, 0x7fff
        s_cmp_lt_u32 s38, 172
        s_cselect_b32 s39, 1, 0
        s_lshl_b32 s{40+t}, s37, 14
        s_add_u32 s{40+t}, s{40+t}, {WS['WF13']}
        s_lshr_b32 s{44+t}, s37, 1
        s_lshl_b32 s{44+t}, s{44+t}, 9
        s_and_b32 s37, s37, 1
        s_lshl_b32 s37, s37, 8
        s_add_u32 s{44+t}, s{44+t}, s37
        s_cmp_eq_u32 s39, 1
        s_cselect_b32 s{40+t}, s{40+t}, {INV}
        s_cselect_b32 s{44+t}, s{44+t}, {INV}""")
    a(f"""s_mul_i32 s36, s23, 43
    s_mul_i32 s37, s{S_W}, 11
    s_add_u32 s36, s36, s37
    s_lshl_b32 s48, s36, 12
    s_add_u32 s48, s48, {WS['WF2']}
    s_cmp_eq_u32 s{S_W}, 3
    s_cselect_b32 s49, {INV}, s48
    v_and_b32 v31, 63, v0
    v_lshlrev_b32 v31, 4, v31""")
def w13_loads(a):
    for kb in range(16):
        for t in range(3):
            a(f"s_add_u32 s36, s{40+t}, {kb*1024}\nbuffer_load_dwordx4 {w13(kb,t)}, v31, {WSR}, s36 offen sc1")
def w2_loads(a, lo, hi):
    for idx in range(lo, hi):
        i, dt = idx >> 2, idx & 3
        a(f"s_add_u32 s36, s{49 if i == 10 else 48}, {idx*1024}\nbuffer_load_dwordx4 {w2(i,dt)}, v31, {WSR}, s36 offen sc1")


def w_batch(a, ops):
    if not WREV or len(ops) < 4:
        for op in ops: a(op)
        return
    L = a.newlabel("wb")
    a(f"s_bitcmp1_b32 s20, 0\ns_cbranch_scc1 {L}_r")
    for op in ops: a(op)
    a(f"s_branch {L}_e\n{L}_r:")
    a.nolog += 1
    for op in reversed(ops): a(op)
    a.nolog -= 1
    a.label(f"{L}_e")

def emit_cs(a, lo, hi):
    a(f"v_mov_b32 v{V_XB}, 0x3f803f80\nv_mov_b32 v{V_XB+1}, 0x3f803f80\nv_mov_b32 v{V_XB+2}, 0x3f803f80\nv_mov_b32 v{V_XB+3}, 0x3f803f80")
    for kb in range(lo, hi):
        for t in range(3):
            c = V_CS + 4 * t
            a(f"v_mfma_f32_16x16x32_bf16 {vr(c)}, {w13(kb,t)}, {vr(V_XB)}, {'0' if kb == 0 else vr(c)}")

def x1_dma_setup(a):
    a(f"""v_lshrrev_b32 v2, 3, v1
    v_bfe_u32 v3, v1, 1, 2
    v_bfe_u32 v6, v1, 4, 1
    v_xor_b32 v3, v3, v6
    s_and_b32 s36, s{S_W}, 2
    v_xor_b32 v3, s36, v3
    v_and_b32 v6, 1, v1
    v_lshlrev_b32 v6, 4, v6
    v_mul_u32_u24 v2, {XP}, v2
    v_add_u32 v6, v2, v6
    v_lshl_add_u32 v27, v3, 5, v6""")
def x1_dma_ops(hf):
    ops = [f"""s_mul_i32 s56, s{S_W}, {8 * XP}
    s_lshl_b32 s57, s20, 8
    s_add_u32 s56, s56, s57
    s_add_u32 s56, s56, {WS['X1T'] + hf * 128}
    s_lshl_b32 s57, s{S_W}, 10
    s_add_u32 s57, s57, {hf * 65536}"""]
    for n in range(16):
        ops.append(f"""s_add_u32 m0, s57, {n * 4096}
        buffer_load_dwordx4 v27, {WSR}, s56 offen sc1 lds
        s_add_u32 s56, s56, {32 * XP}""")
    return ops
def tiles_dma(a):
    if G2AB: return tiles_dma_ab(a)
    a(f"""v_lshrrev_b32 v2, 3, v1
    v_and_b32 v3, 7, v1
    v_mul_u32_u24 v2, {XP}, v2
    v_lshl_add_u32 v2, v3, 4, v2
    s_mul_i32 s36, s23, {64 * XP}
    s_mul_i32 s37, s{S_W}, {16 * XP}
    s_add_u32 s36, s36, s37
    s_lshl_b32 s37, s20, 8
    s_add_u32 s36, s36, s37
    s_lshl_b32 s37, s22, 7
    s_add_u32 s36, s36, s37
    s_lshl_b32 s38, s{S_W}, 11""")
    for arr, lb in (('X1T', L_TX), ('YT', L_TY)):
        for i in range(2):
            a(f"""s_add_u32 s37, s36, {WS[arr] + i * 8 * XP}
            s_add_u32 m0, s38, {lb + i * 1024}
            buffer_load_dwordx4 v2, {WSR}, s37 offen sc1 lds""")
def tiles_dma_ab(a):
    a(f"""v_lshrrev_b32 v2, 3, v1
    v_mul_u32_u24 v2, {XP}, v2
    v_bfe_u32 v3, v1, 1, 1
    v_lshlrev_b32 v3, 5, v3
    v_add_u32 v2, v2, v3
    v_bfe_u32 v3, v1, 2, 1
    v_lshlrev_b32 v3, 7, v3
    v_add_u32 v2, v2, v3
    v_and_b32 v3, 1, v1
    v_lshl_add_u32 v2, v3, 4, v2
    s_mul_i32 s36, s23, {64 * XP}
    s_mul_i32 s37, s{S_W}, {16 * XP}
    s_add_u32 s36, s36, s37
    s_lshl_b32 s37, s20, 8
    s_add_u32 s36, s36, s37
    s_lshl_b32 s37, s22, 6
    s_add_u32 s36, s36, s37
    s_lshl_b32 s38, s{S_W}, 11""")
    for arr, lb in (('X1T', L_TX), ('YT', L_TY)):
        for i in range(2):
            a(f"""s_add_u32 s37, s36, {WS[arr] + i * 8 * XP}
            s_add_u32 m0, s38, {lb + i * 1024}
            buffer_load_dwordx4 v2, {WSR}, s37 offen sc1 lds""")
def x3_dma_ops(hf):
    ops = [f"""s_lshl_b32 s56, s20, 3
    s_add_u32 s56, s56, s{S_W}
    s_add_u32 s56, s56, {4*hf}
    s_lshl_b32 s56, s56, 14
    s_add_u32 s56, s56, {WS['X3']}
    s_lshl_b32 s57, s{S_W}, 14
    s_add_u32 s57, s57, {hf * 65536}"""]
    for n in range(16):
        ops.append(f"""s_add_u32 m0, s57, {n * 1024}
        buffer_load_dwordx4 v31, {WSR}, s56 offen sc1 lds
        s_add_u32 s56, s56, 1024""")
    return ops
def member_flag_off(a, vdst, base_member_sgpr_expr, nmemb):
    a(f"""v_and_b32 v{vdst}, {nmemb-1}, v1
    v_add_u32 v{vdst}, {base_member_sgpr_expr}, v{vdst}""")
    if HALF:
        a(f"""v_lshrrev_b32 v29, 3, v{vdst}
        v_and_b32 v{vdst}, 7, v{vdst}
        v_lshlrev_b32 v{vdst}, 2, v{vdst}
        v_lshl_add_u32 v{vdst}, v29, 5, v{vdst}
        s_lshr_b32 s36, s20, 2
        s_lshl_b32 s36, s36, 6
        s_and_b32 s37, s20, 3
        s_add_u32 s36, s36, s37""")
    else:
        a(f"""v_lshlrev_b32 v{vdst}, 1, v{vdst}
        s_lshr_b32 s36, s20, 1
        s_lshl_b32 s36, s36, 5
        s_and_b32 s37, s20, 1
        s_add_u32 s36, s36, s37""")
    a(f"""v_add_u32 v{vdst}, s36, v{vdst}
    v_lshlrev_b32 v{vdst}, 6, v{vdst}
    v_add_u32 v{vdst}, {WS['SYNC'] + SYNC_FLAGS}, v{vdst}""")

def stats_write(a, hf, vm, vsd):
    a(f"""v_rcp_f32 v24, v{vsd}
    v_mul_f32 v{V_T+1}, v{vsd}, v{vsd}
    v_sub_f32 v{V_T+2}, 0, v{vm}
    v_mul_f32 v{V_T}, 0xbfb8aa3b, v24
    v_mov_b32 v{V_T+3}, 0
    s_lshl_b32 s36, s{S_W}, 8
    s_add_u32 s36, s36, {L_ST + hf * 1024}
    v_lshl_add_u32 v25, v2, 4, s36
    ds_write_b128 v25, {vr(V_T)}""")
def st3_stats(a, hf):
    a(f"""s_lshl_b32 s36, s20, 3
    s_add_u32 s36, s36, s{S_W}
    s_add_u32 s36, s36, {4*hf}
    s_lshl_b32 s36, s36, 10
    s_add_u32 s36, s36, {WS['SYNC'] + SYNC_ST3}
    v_lshrrev_b32 v124, 4, v1
    v_lshlrev_b32 v124, 8, v124
    v_and_b32 v125, 15, v1
    v_lshl_add_u32 v124, v125, 3, v124
    buffer_load_dwordx2 v[120:121], v124, {WSR}, s36 offen sc1
    buffer_load_dwordx2 v[122:123], v124, {WSR}, s36 offen offset:128 sc1""")
def st3_finish(a, hf):
    a(f"""v_add_f32 v126, v120, v122
    v_add_f32 v127, v121, v123""")
    sum_q(a, 126, 120); sum_q(a, 127, 121)
    ln_core(a, 126, 127)
    a(f"""v_rcp_f32 v120, v127
    v_mul_f32 v117, v127, v127
    v_sub_f32 v118, 0, v126
    v_mul_f32 v116, 0xbfb8aa3b, v120
    v_mov_b32 v119, 0
    s_lshl_b32 s36, s{S_W}, 8
    s_add_u32 s36, s36, {L_ST + hf * 1024}
    v_lshl_add_u32 v124, v125, 4, s36
    ds_write_b128 v124, v[116:119]""")

def g1_addr(a, layer, hbase):
    tr = layer == 1
    a(f"""v_and_b32 v2, 15, v1
    v_lshrrev_b32 v3, 4, v1""")
    for x in range(4):
        a(f"""s_add_u32 s36, s{S_W}, {x}
        s_and_b32 s36, s36, 3""")
        if tr:
            a(f"""v_bfe_u32 v4, v1, 2, 2
            v_lshl_add_u32 v5, v3, 4, v4
            v_lshlrev_b32 v5, 7, v5
            v_lshrrev_b32 v4, 1, v4
            v_and_b32 v6, 1, v3
            v_lshl_or_b32 v4, v6, 1, v4
            v_xor_b32 v4, s36, v4
            v_lshl_add_u32 v5, v4, 5, v5
            v_and_b32 v6, 3, v1
            v_lshl_add_u32 v{8+x}, v6, 3, v5""")
        else:
            a(f"""s_lshl_b32 s37, s36, 14
            v_add_u32 v{8+x}, s37, v31""")
        a(f"""s_lshl_b32 s37, s36, 8
        s_add_u32 s37, s37, {L_ST}
        v_lshl_add_u32 v{15+x}, v2, 4, s37""")
    for p in range(2):
        a(f"""v_lshrrev_b32 v4, 5, v1
        v_add_u32 v4, s{S_W}, v4
        v_add_u32 v4, {2*p}, v4
        v_and_b32 v4, 3, v4
        v_mul_u32_u24 v5, {HT}, v4
        v_bfe_u32 v6, v1, 4, 1
        v_lshl_add_u32 v5, v6, 7, v5
        v_lshl_add_u32 v{12+p}, v2, 3, v5
        v_lshlrev_b32 v4, 8, v4
        v_lshl_add_u32 v4, v2, 4, v4
        v_add_u32 v{19+p}, {L_ST}, v4""")
    a(f"""s_mul_i32 s36, s20, {8*HT}
    s_add_u32 s36, s36, {hbase}""")
    for t in range(3): a(f"s_add_u32 s{52+t}, s{44+t}, s36")

def g1_sub(a, layer, sb, hook=None, cs_from=16):
    tr = layer == 1
    def rd(n):
        kb, x = n >> 2, n & 3
        B = V_XB + 4 * x
        if tr:
            off = (kb >> 1) * 8192 + (kb & 1) * 1024
            return [f"ds_read_b64_tr_b16 v[{B}:{B+1}], v{8+x} offset:{off}", f"ds_read_b64_tr_b16 v[{B+2}:{B+3}], v{8+x} offset:{off+512}"]
        return [f"ds_read_b128 {vr(B)}, v{8+x} offset:{kb*1024}"]
    per = 2 if tr else 1
    ONE, SA, SG = V_T, V_T + 4, V_T + 8
    if tr:
        for k in range(4): a(f"v_mov_b32 v{ONE+k}, 0x3f803f80")
    for n in range(3):
        for op in rd(n): a(op)
    for n in range(64):
        kb, x = n >> 2, n & 3
        if x == 0 and hook: hook(kb)
        infl = min(2, 63 - n)
        a(f"s_waitcnt lgkmcnt({infl*per})")
        B = V_XB + 4 * x
        for t in range(3):
            c = V_ACC + (x * 3 + t) * 4
            a(f"v_mfma_f32_16x16x32_bf16 {vr(c)}, {w13(kb,t)}, {vr(B)}, {'0' if kb == 0 else vr(c)}")
            if t == 0 and n + 3 < 64:
                for op in rd(n + 3): a(op)
        if tr and x == 1 and kb >= cs_from:
            for t in range(3):
                c = V_CS + 4 * t
                a(f"v_mfma_f32_16x16x32_bf16 {vr(c)}, {w13(kb,t)}, {vr(ONE)}, {vr(c)}")
        if tr and x == 0:
            a(f"v_mfma_f32_16x16x32_bf16 {vr(SA)}, {vr(ONE)}, {vr(B)}, {'0' if kb == 0 else vr(SA)}")
            a(f"v_mfma_f32_16x16x32_bf16 {vr(SG)}, {vr(B)}, {vr(B)}, {'0' if kb == 0 else vr(SG)}")
    if tr:
        a(f"""v_and_b32 v4, 3, v2
        v_cmp_eq_u32 vcc, 1, v4
        v_cndmask_b32 v23, v{SG}, v{SG+1}, vcc
        v_cmp_eq_u32 vcc, 2, v4
        v_cndmask_b32 v23, v23, v{SG+2}, vcc
        v_cmp_eq_u32 vcc, 3, v4
        v_cndmask_b32 v23, v23, v{SG+3}, vcc
        v_mov_b32 v22, v{SA}""")
        ln_core(a, 22, 23)
        a(f"""v_lshrrev_b32 v4, 2, v2
        v_cmp_eq_u32 vcc, v4, v3
        s_and_saveexec_b64 s[38:39], vcc""")
        stats_write(a, sb, 22, 23)
        a("s_mov_b64 exec, s[38:39]\ns_waitcnt lgkmcnt(0)\ns_barrier")

def g1_epi(a, sb):
    so = sb * 1024
    for x in range(4): a(f"ds_read_b32 v{V_T+2*x}, v{15+x} offset:{8+so}")
    for p in range(2): a(f"ds_read_b64 v[{V_T+8+2*p}:{V_T+9+2*p}], v{19+p} offset:{so}")
    a("s_waitcnt lgkmcnt(0)")
    A = lambda x, t: V_ACC + (x * 3 + t) * 4
    for t in range(3):
        cs = V_CS + 4 * t
        for x in range(4):
            for h in range(2):
                r = A(x, t) + 2 * h
                a(f"v_pk_fma_f32 v[{r}:{r+1}], v[{cs+2*h}:{cs+2*h+1}], v[{V_T+2*x}:{V_T+2*x+1}], v[{r}:{r+1}] op_sel_hi:[1,0,1]")
    for t in range(3):
        for p in range(2):
            for r in range(4): a(f"v_permlane32_swap_b32 v{A(2*p,t)+r}, v{A(2*p+1,t)+r}")
    for p in range(2):
        c1 = V_T + 8 + 2 * p
        T = lambda t: V_XB + 4 * t
        for t in range(3):
            for h in range(2):
                a(f"v_pk_mul_f32 v[{T(t)+2*h}:{T(t)+2*h+1}], v[{A(2*p,t)+2*h}:{A(2*p,t)+2*h+1}], v[{c1}:{c1+1}] op_sel_hi:[1,0]")
        for t in range(3):
            for r in range(4): a(f"v_exp_f32 v{T(t)+r}, v{T(t)+r}")
        for t in range(3):
            for h in range(2):
                g, u = A(2*p, t) + 2 * h, A(2*p+1, t) + 2 * h
                a(f"v_pk_mul_f32 v[{g}:{g+1}], v[{g}:{g+1}], v[{u}:{u+1}]")
        for t in range(3):
            for h in range(2):
                a(f"v_pk_fma_f32 v[{T(t)+2*h}:{T(t)+2*h+1}], v[{T(t)+2*h}:{T(t)+2*h+1}], v[{c1}:{c1+1}], v[{c1}:{c1+1}] op_sel:[0,1,1] op_sel_hi:[1,1,1]")
        for t in range(3):
            for r in range(4): a(f"v_rcp_f32 v{T(t)+r}, v{T(t)+r}")
        for t in range(3):
            for h in range(2):
                g = A(2*p, t) + 2 * h
                a(f"v_pk_mul_f32 v[{g}:{g+1}], v[{g}:{g+1}], v[{T(t)+2*h}:{T(t)+2*h+1}]")
        for t in range(3):
            g = A(2*p, t); u = A(2*p+1, t)
            a(f"""v_cvt_pk_bf16_f32 v{u}, v{g}, v{g+1}
            v_cvt_pk_bf16_f32 v{u+1}, v{g+2}, v{g+3}""")
        for t in range(3):
            u = A(2*p+1, t)
            a(f"buffer_store_dwordx2 v[{u}:{u+1}], v{12+p}, {WSR}, s{52+t} offen {LS('h')}")
def g1_next(a):
    for x in range(4): a(f"v_add_u32 v{8+x}, 0x10000, v{8+x}")
    for p in range(2): a(f"v_add_u32 v{12+p}, {4*HT}, v{12+p}")


NEG = (22, 24)
def epi_ops(P):
    p = P & 1; so = (P >> 1) * 1024
    A = lambda x, t: V_ACC + (x * 3 + t) * 4
    T = lambda t: V_T + 12 + 4 * t
    c1, ir = 26, 27
    ops = [f"ds_read_b32 v{NEG[0]}, v{15+2*p} offset:{8+so}", f"ds_read_b32 v{NEG[1]}, v{15+2*p+1} offset:{8+so}", f"ds_read_b64 v[26:27], v{19+p} offset:{so}"]
    ops += ["@gap"] * 10
    for t in range(3):
        for xl in range(2):
            for r in range(4): ops.append(f"v_fma_f32 v{A(2*p+xl,t)+r}, v{V_CS+4*t+r}, v{NEG[xl]}, v{A(2*p+xl,t)+r}")
    for t in range(3):
        for r in range(4): ops.append(f"v_permlane32_swap_b32 v{A(2*p,t)+r}, v{A(2*p+1,t)+r}")
    for t in range(3):
        for r in range(4): ops.append(f"v_mul_f32 v{T(t)+r}, v{A(2*p,t)+r}, v{c1}")
    for t in range(3):
        for r in range(4): ops.append(f"v_exp_f32 v{T(t)+r}, v{T(t)+r}")
        for r in range(4): ops.append(f"v_mul_f32 v{A(2*p,t)+r}, v{A(2*p,t)+r}, v{A(2*p+1,t)+r}")
    for t in range(3):
        for r in range(4): ops.append(f"v_fma_f32 v{T(t)+r}, v{T(t)+r}, v{ir}, v{ir}")
    for t in range(3):
        for r in range(4): ops.append(f"v_rcp_f32 v{T(t)+r}, v{T(t)+r}")
    for t in range(3):
        for r in range(4): ops.append(f"v_mul_f32 v{A(2*p,t)+r}, v{A(2*p,t)+r}, v{T(t)+r}")
    for t in range(3):
        g, u = A(2*p, t), A(2*p+1, t)
        ops += [f"v_cvt_pk_bf16_f32 v{u}, v{g}, v{g+1}", f"v_cvt_pk_bf16_f32 v{u+1}, v{g+2}, v{g+3}"]
    for t in range(3):
        u = A(2*p+1, t)
        ops.append(f"buffer_store_dwordx2 v[{u}:{u+1}], v{12+p}, {WSR}, s{52+t} offen {LS('h')}")
    ops.append(f"v_add_u32 v{12+p}, {4*HT}, v{12+p}")
    return ops

def epi_pk(a, P):
    p = P & 1; so = (P >> 1) * 1024
    A = lambda x, t: V_ACC + (x * 3 + t) * 4
    T = (lambda t: V_XB + 4 * t) if P == 3 else (lambda t: V_T + 12 + 4 * t)
    c1 = 26
    a(f"ds_read_b32 v{NEG[0]}, v{15+2*p} offset:{8+so}\nds_read_b32 v{NEG[1]}, v{15+2*p+1} offset:{8+so}\nds_read_b64 v[26:27], v{19+p} offset:{so}\ns_waitcnt lgkmcnt(0)")
    for t in range(3):
        cs = V_CS + 4 * t
        for xl in range(2):
            for h in range(2):
                r = A(2*p+xl, t) + 2 * h
                a(f"v_pk_fma_f32 v[{r}:{r+1}], v[{cs+2*h}:{cs+2*h+1}], v[{NEG[xl]}:{NEG[xl]+1}], v[{r}:{r+1}] op_sel_hi:[1,0,1]")
    for t in range(3):
        for r in range(4): a(f"v_permlane32_swap_b32 v{A(2*p,t)+r}, v{A(2*p+1,t)+r}")
    for t in range(3):
        for h in range(2):
            a(f"v_pk_mul_f32 v[{T(t)+2*h}:{T(t)+2*h+1}], v[{A(2*p,t)+2*h}:{A(2*p,t)+2*h+1}], v[{c1}:{c1+1}] op_sel_hi:[1,0]")
    for t in range(3):
        for r in range(4): a(f"v_exp_f32 v{T(t)+r}, v{T(t)+r}")
    for t in range(3):
        for h in range(2):
            g, u = A(2*p, t) + 2 * h, A(2*p+1, t) + 2 * h
            a(f"v_pk_mul_f32 v[{g}:{g+1}], v[{g}:{g+1}], v[{u}:{u+1}]")
    for t in range(3):
        for h in range(2):
            a(f"v_pk_fma_f32 v[{T(t)+2*h}:{T(t)+2*h+1}], v[{T(t)+2*h}:{T(t)+2*h+1}], v[{c1}:{c1+1}], v[{c1}:{c1+1}] op_sel:[0,1,1] op_sel_hi:[1,1,1]")
    for t in range(3):
        for r in range(4): a(f"v_rcp_f32 v{T(t)+r}, v{T(t)+r}")
    for t in range(3):
        for h in range(2):
            g = A(2*p, t) + 2 * h
            a(f"v_pk_mul_f32 v[{g}:{g+1}], v[{g}:{g+1}], v[{T(t)+2*h}:{T(t)+2*h+1}]")
    for t in range(3):
        g = A(2*p, t); u = A(2*p+1, t)
        a(f"v_cvt_pk_bf16_f32 v{u}, v{g}, v{g+1}\nv_cvt_pk_bf16_f32 v{u+1}, v{g+2}, v{g+3}")
    a.tag = f"E{P}"
    if P == 3 and E3LOC:
        dstore(a, "\n".join(f"buffer_store_dwordx2 v[{A(2*p+1, t)}:{A(2*p+1, t)+1}], v{12+p}, {WSR}, s{52+t} offen {{F}}" for t in range(3)), "e3")
    else:
        for t in range(3):
            u = A(2*p+1, t)
            a(f"buffer_store_dwordx2 v[{u}:{u+1}], v{12+p}, {WSR}, s{52+t} offen {LS('h')}")
    a.tag = None
    if P < 2: a(f"v_add_u32 v{12+p}, {4*HT}, v{12+p}")


def touch_h(a, half, T):
    if not TOUCH: return
    for p in range(2):
        adj = 4 * HT if (half == 0 or p == 0) else 0
        for t in range(3):
            a(f"s_sub_u32 s36, s{52+t}, {adj}\nbuffer_load_dword v{T}, v{12+p}, {WSR}, s36 offen sc1")

def l1_stats(a, hf):
    SA, SG = V_T + 4, V_T + 8
    a(f"""v_and_b32 v4, 3, v2
    v_cmp_eq_u32 vcc, 1, v4
    v_cndmask_b32 v29, v{SG}, v{SG+1}, vcc
    v_cmp_eq_u32 vcc, 2, v4
    v_cndmask_b32 v29, v29, v{SG+2}, vcc
    v_cmp_eq_u32 vcc, 3, v4
    v_cndmask_b32 v29, v29, v{SG+3}, vcc
    v_mov_b32 v28, v{SA}""")
    ln_core(a, 28, 29)
    a(f"""v_rcp_f32 v5, v29
    v_mul_f32 v{SA+1}, v29, v29
    v_sub_f32 v{SA+2}, 0, v28
    v_mul_f32 v{SA}, 0xbfb8aa3b, v5
    v_mov_b32 v{SA+3}, 0
    s_lshl_b32 s36, s{S_W}, 8
    s_add_u32 s36, s36, {L_ST + hf * 1024}
    v_lshl_add_u32 v6, v2, 4, s36
    v_lshrrev_b32 v4, 2, v2
    v_cmp_eq_u32 vcc, v4, v3
    s_and_saveexec_b64 s[38:39], vcc
    ds_write_b128 v6, {vr(SA)}
    s_mov_b64 exec, s[38:39]
    s_waitcnt lgkmcnt(0)
    s_barrier""")

def g1_stream(a, layer, hook=None, cs_from=16, st=None, pre_last=None):
    tr = layer == 1
    per = 2 if tr else 1
    def rd(N):
        P, n = N >> 5, N & 31
        kb, xl = n >> 1, n & 1
        x = 2 * (P & 1) + xl
        B = V_XB + 4 * (N & 3)
        if tr:
            off = (kb >> 1) * 8192 + (kb & 1) * 1024
            return [f"ds_read_b64_tr_b16 v[{B}:{B+1}], v{8+x} offset:{off}", f"ds_read_b64_tr_b16 v[{B+2}:{B+3}], v{8+x} offset:{off+512}"]
        return [f"ds_read_b128 {vr(B)}, v{8+x} offset:{kb*1024}"]
    ONE, SA, SG = V_T, V_T + 4, V_T + 8
    if tr:
        for k in range(4): a(f"v_mov_b32 v{ONE+k}, 0x3f803f80")
    for N in range(3):
        for op in rd(N): a(op)
    restart = set()
    for P in range(4):
        fill = epi_ops(P - 1) if (P > 0 and not (tr and L1PK)) else []
        if P == 1: fill = [f"v_add_u32 v{8+x}, 0x10000, v{8+x}" for x in (0, 1)] + fill
        if P == 2: fill = [f"v_add_u32 v{8+x}, 0x10000, v{8+x}" for x in (2, 3)][:0] + fill
        cost = lambda op: 2.0 if op.startswith(("v_exp", "v_rcp", "v_permlane")) else 1.0
        rate = sum(cost(o) for o in fill) / 92.0
        budget = 0.0
        for n in range(32):
            N = P * 32 + n
            kb, xl = n >> 1, n & 1
            if xl == 0 and hook: hook(P, kb)
            if P == 2 and n == 4:
                for x in (2, 3): a(f"v_add_u32 v{8+x}, 0x10000, v{8+x}")
            infl = min(2, 127 - N)
            a(f"s_waitcnt lgkmcnt({infl*per})")
            B = V_XB + 4 * (N & 3)
            x = 2 * (P & 1) + xl
            mf = [f"v_mfma_f32_16x16x32_bf16 {vr(V_ACC + (x*3+t)*4)}, {w13(kb,t)}, {vr(B)}, {'0' if kb == 0 else vr(V_ACC + (x*3+t)*4)}" for t in range(3)]
            if tr and P == 0 and xl == 1 and kb >= cs_from:
                mf += [f"v_mfma_f32_16x16x32_bf16 {vr(V_CS+4*t)}, {w13(kb,t)}, {vr(ONE)}, {vr(V_CS+4*t)}" for t in range(3)]
            if tr and P in (0, 2) and xl == 0:
                mf.append(f"v_mfma_f32_16x16x32_bf16 {vr(SA)}, {vr(ONE)}, {vr(B)}, {'0' if kb == 0 else vr(SA)}")
                mf.append(f"v_mfma_f32_16x16x32_bf16 {vr(SG)}, {vr(B)}, {vr(B)}, {'0' if kb == 0 else vr(SG)}")
            for i, m in enumerate(mf):
                a(m)
                if i == 0 and N + 3 < 128:
                    for op in rd(N + 3): a(op)
                if i < 3:
                    budget += rate
                    while fill and budget >= cost(fill[0]) - 0.5:
                        op = fill.pop(0); budget -= cost(op)
                        if op.startswith("buffer_store"): a.tag = f"E{P-1}"
                        if op != "@gap": a(op)
                        a.tag = None
        for op in fill:
            if op.startswith("buffer_store"): a.tag = f"E{P-1}"
            if op != "@gap": a(op)
            a.tag = None
        if st is not None and FINE == 'P': fstamp(a, st + P)
        if tr and P in (0, 2):
            l1_stats(a, P >> 1)
        if tr and L1PK and P < 3:
            epi_pk(a, P)
    if pre_last: pre_last()
    epi_pk(a, 3)

def emit_g2(a, layer, hbase, etagA, st):
    ACC = V_ACC
    acc = lambda dt, x: ACC + (x * 4 + dt) * 4
    for x in range(4):
        a(f"""s_add_u32 s36, s{S_W}, {x}
        s_and_b32 s36, s36, 3
        s_lshl_b32 s37, s20, 3
        s_add_u32 s36, s36, s37
        s_lshl_b32 s37, s22, 2
        s_add_u32 s36, s36, s37
        s_mul_i32 s36, s36, {HT}
        s_mul_i32 s37, s{S_W}, {11*1024}
        s_add_u32 s36, s36, s37
        s_add_u32 s{56+x}, s36, {hbase}
        s_cmp_eq_u32 s{S_W}, 3
        s_cselect_b32 s{60+x}, {INV}, s{56+x}""")
    a(f"""s_lshl_b32 s51, s{S_W}, 15
    v_lshrrev_b32 v2, 4, v1
    v_and_b32 v3, 15, v1
    v_lshlrev_b32 v8, 7, v2
    v_lshl_add_u32 v8, v3, 3, v8
    v_add_u32 v8, s51, v8
    s_add_u32 s50, s{S_GEN}, s22
    s_add_u32 s50, s50, {etagA}""")
    def su():
        member_flag_off(a, 9, "0", 16)
    wg_wait(a, su, 9, 1, None, V_HB, etag=50)
    stamp(a, st)
    for x in range(4): a(f"v_add_u32 v{10+x}, s{56+x}, v31")
    a(f"""s_mov_b32 s56, 0
    s_movk_i32 s57, 4096
    s_movk_i32 s58, 8192
    s_cmp_eq_u32 s{S_W}, 3
    s_cselect_b32 s59, {INV}, s58""")
    def dma_m0(i, x): return f"s_add_u32 m0, s51, {x*8192 + ((i % 8) & ~3)*1024}"
    def dma_ld(i, x):
        sg = 59 if i == 10 else 56 + (i >> 2)
        return f"buffer_load_dwordx4 v{10+x}, {WSR}, s{sg} offen offset:{(i & 3)*1024} sc1 lds"
    for i in range(4):
        for x in range(4):
            a(dma_m0(i, x)); a.tag = f"g2_{layer}_{i}_{x}"; a(dma_ld(i, x)); a.tag = None
    q = [(i, x) for i in range(4, 11) for x in range(4)]
    def sx(n):
        i, x = n >> 2, n & 3
        if i == 10 and EARLYW: x = (x + 1) & 3
        return i, x
    def rd(n):
        i, x = sx(n)
        B = V_HB + 4 * (n & 3); off = x * 8192 + (i % 8) * 1024
        return [f"ds_read_b64 v[{B}:{B+1}], v8 offset:{off}", f"ds_read_b64 v[{B+2}:{B+3}], v8 offset:{off+512}"]
    lastn = [None]
    def vmw(n):
        i, x = sx(n)
        tag = f"g2_{layer}_{i}_{x}"
        pos = max(k for k, t in enumerate(a.vmlog) if t == tag)
        cnt = len(a.vmlog) - 1 - pos
        if lastn[0] is not None and pos <= lastn[0]: return
        a(f"s_waitcnt vmcnt({cnt})"); lastn[0] = pos
    if FINE == 'G': fstamp(a, 1 + 6 * (layer - 1))
    vmw(2)
    stamp(a, st + 1)
    if FINE == 'G': fstamp(a, 2 + 6 * (layer - 1))
    for n in range(3):
        for op in rd(n): a(op)
    if EARLYW: a(f"v_add_u32 v9, s51, v31")
    for n in range(44):
        i, x = sx(n)
        infl = min(2, 43 - n)
        a(f"s_waitcnt lgkmcnt({infl*2 + (4 if (EARLYW and n == 43) else 0)})")
        B = V_HB + 4 * (n & 3)
        for dt in range(4):
            c = acc(dt, x)
            a(f"v_mfma_f32_16x16x32_bf16 {vr(c)}, {w2(i,dt)}, {vr(B)}, {'0' if i == 0 else vr(c)}")
            if dt == 0 and n + 3 < 44:
                vmw(n + 3)
                for op in rd(n + 3): a(op)
            if q and dt == 1: a(dma_m0(*q[0]))
            if q and dt == 2:
                i_, x_ = q.pop(0)
                a.tag = f"g2_{layer}_{i_}_{x_}"; a(dma_ld(i_, x_)); a.tag = None
        if EARLYW and n in (42, 43):
            xs = n - 41
            for dt in range(4): a(f"ds_write_b128 v9, {vr(acc(dt,xs))} offset:{((xs-1)*4+dt)*1024}")
    assert not q
    if FINE == 'G': fstamp(a, 3 + 6 * (layer - 1))
    stamp(a, st + 2)
    if not EARLYW: a(f"v_add_u32 v9, s51, v31")
    for x in range(3 if EARLYW else 1, 4):
        for dt in range(4):
            a(f"ds_write_b128 v9, {vr(acc(dt,x))} offset:{((x-1)*4+dt)*1024}")
    for x in range(1, 4):
        a(f"""s_sub_u32 s36, s{S_W}, {x}
        s_and_b32 s36, s36, 3
        s_lshl_b32 s36, s36, 15
        v_add_u32 v{9+x}, s36, v31""")
    a("s_waitcnt lgkmcnt(0)\ns_barrier")
    for x in range(1, 4):
        for dt in range(4):
            a(f"ds_read_b128 {vr(acc(dt,x))}, v{9+x} offset:{((x-1)*4+dt)*1024}")
    if layer == 1:
        a(f"""v_bfe_u32 v4, v1, 2, 2
        v_lshl_add_u32 v4, v2, 4, v4
        v_lshlrev_b32 v4, 7, v4
        v_and_b32 v5, 3, v1
        v_lshl_add_u32 v4, v5, 3, v4
        s_lshl_b32 s36, s{S_W}, 5
        s_add_u32 s36, s36, {L_TX}
        v_add_u32 v4, s36, v4""")
        P = V_HB; Yp = V_HB + 8
        for dt in range(4):
            a(f"ds_read_b64_tr_b16 v[{P+2*dt}:{P+2*dt+1}], v4 offset:{dt*512}")
        for dt in range(4):
            a(f"ds_read_b64_tr_b16 v[{Yp+2*dt}:{Yp+2*dt+1}], v4 offset:{8192+dt*512}")
        nl = 8
    else:
        P = V_X3; nl = 0
    for x in range(1, 4):
        a(f"s_waitcnt lgkmcnt({min(15, (3-x)*4 + nl)})")
        for dt in range(4):
            for h in range(2):
                c, o = acc(dt, 0) + 2 * h, acc(dt, x) + 2 * h
                a(f"v_pk_add_f32 v[{c}:{c+1}], v[{c}:{c+1}], v[{o}:{o+1}]")
    stamp(a, st + 3)
    if FINE == 'G': fstamp(a, 4 + 6 * (layer - 1))
    O = ACC; X = ACC + 16; PK = ACC + 48
    a("s_waitcnt lgkmcnt(0)")
    for k in range(8):
        a(f"v_lshlrev_b32 v{X+2*k}, 16, v{P+k}\nv_and_b32 v{X+2*k+1}, 0xffff0000, v{P+k}")
    for k in range(8): a(f"v_cvt_pk_bf16_f32 v{PK+k}, v{O+2*k}, v{O+2*k+1}")
    for k in range(8):
        a(f"v_lshlrev_b32 v{O+2*k}, 16, v{PK+k}\nv_and_b32 v{O+2*k+1}, 0xffff0000, v{PK+k}")
    for k in range(8):
        a(f"v_pk_add_f32 v[{O+2*k}:{O+2*k+1}], v[{O+2*k}:{O+2*k+1}], v[{X+2*k}:{X+2*k+1}]")
    for k in range(8): a(f"v_cvt_pk_bf16_f32 v{PK+k}, v{O+2*k}, v{O+2*k+1}")
    if layer == 2:
        a(f"""s_load_dwordx2 s[32:33], s[0:1], {ARG['out']}
        s_lshl_b32 s36, s20, 7
        s_lshl_b32 s37, s22, 6
        s_add_u32 s36, s36, s37
        s_lshl_b32 s37, s{S_W}, 4
        s_add_u32 s36, s36, s37
        s_lshl_b32 s36, s36, 10
        s_lshl_b32 s37, s23, 7
        s_add_u32 s36, s36, s37
        v_lshlrev_b32 v4, 10, v3
        v_lshl_add_u32 v4, v2, 5, v4
        s_waitcnt lgkmcnt(0)
        s_mov_b32 s34, {S*D*2}
        s_mov_b32 s35, 0x20000
        buffer_store_dwordx4 {vr(PK)}, v4, s[32:35], s36 offen {OUTF}
        buffer_store_dwordx4 {vr(PK+4)}, v4, s[32:35], s36 offen offset:16 {OUTF}""")
        return
    a(f"v_mov_b32 v22, 0\nv_mov_b32 v23, 0\nv_mov_b32 v21, 0x3f803f80\nv_mov_b32 v26, 0\nv_mov_b32 v27, 0")
    for k in range(0, 8, 2):
        a(f"""v_dot2_f32_bf16 v22, v{PK+k}, v21, v22
        v_dot2_f32_bf16 v23, v{PK+k}, v{PK+k}, v23
        v_dot2_f32_bf16 v26, v{PK+k+1}, v21, v26
        v_dot2_f32_bf16 v27, v{PK+k+1}, v{PK+k+1}, v27""")
    a("v_add_f32 v22, v22, v26\nv_add_f32 v23, v23, v27")
    a(f"""v_mov_b32 v24, v22
    v_mov_b32 v25, v23
    v_permlane16_swap_b32 v22, v24
    v_permlane16_swap_b32 v23, v25
    v_add_f32 v22, v22, v24
    v_add_f32 v23, v23, v25
    v_mov_b32 v24, v22
    v_mov_b32 v25, v23
    v_permlane32_swap_b32 v22, v24
    v_permlane32_swap_b32 v23, v25
    v_add_f32 v22, v22, v24
    v_add_f32 v23, v23, v25""")
    L = a.newlabel("hop")
    a(f"""s_add_u32 s50, s{S_GEN}, 12
    v_mov_b32 v24, s50
    v_mov_b32 v25, 0
    s_lshl_b32 s36, s20, 1
    s_add_u32 s36, s36, s22
    s_lshl_b32 s36, s36, 13
    s_lshl_b32 s37, s{S_W}, 8
    s_add_u32 s36, s36, s37
    s_add_u32 s36, s36, {WS['SYNC'] + SYNC_ST2}
    s_lshl_b32 s37, s23, 10
    s_add_u32 s37, s37, s36
    v_lshlrev_b32 v4, 4, v3
    s_mov_b64 exec, 0xffff""")
    dstore(a, f"buffer_store_dwordx4 v[22:25], v4, {WSR}, s37 offen {{F}}", "hop")
    a(f"""s_mov_b64 exec, -1
    v_lshl_add_u32 v5, v2, 11, v4""")
    for k in range(8):
        a(f"v_lshlrev_b32 v{X+2*k}, 16, v{PK+k}\nv_and_b32 v{X+2*k+1}, 0xffff0000, v{PK+k}")
    a(f"""s_mov_b32 s38, 0
    {L}_p:
    buffer_load_dwordx4 v[{O}:{O+3}], v5, {WSR}, s36 offen sc1
    buffer_load_dwordx4 v[{O+4}:{O+7}], v5, {WSR}, s36 offen offset:1024 sc1
    s_add_u32 s38, s38, 1
    s_waitcnt vmcnt(0)
    v_cmp_eq_u32 vcc, s50, v{O+2}
    v_cmp_eq_u32 s[40:41], s50, v{O+6}
    s_and_b64 vcc, vcc, s[40:41]
    s_cmp_gt_u32 s38, 200000
    s_cbranch_scc1 {L}_d
    s_cmp_eq_u64 vcc, -1
    s_cbranch_scc0 {L}_p
    {L}_d:
    v_add_f32 v22, v{O}, v{O+4}
    v_add_f32 v23, v{O+1}, v{O+5}
    v_mov_b32 v24, v22
    v_mov_b32 v25, v23
    v_permlane16_swap_b32 v22, v24
    v_permlane16_swap_b32 v23, v25
    v_add_f32 v22, v22, v24
    v_add_f32 v23, v23, v25
    v_mov_b32 v24, v22
    v_mov_b32 v25, v23
    v_permlane32_swap_b32 v22, v24
    v_permlane32_swap_b32 v23, v25
    v_add_f32 v22, v22, v24
    v_add_f32 v23, v23, v25""")
    ln_core(a, 22, 23)
    a(f"""v_rcp_f32 v24, v23
    v_sub_f32 v22, 0, v22
    v_mul_f32 v26, v22, v24""")
    Yf = ACC
    for k in range(8):
        a(f"v_lshlrev_b32 v{Yf+2*k}, 16, v{Yp+k}\nv_and_b32 v{Yf+2*k+1}, 0xffff0000, v{Yp+k}")
    N = ACC + 32
    for k in range(8):
        a(f"v_pk_fma_f32 v[{N+2*k}:{N+2*k+1}], v[{X+2*k}:{X+2*k+1}], v[24:25], v[26:27] op_sel_hi:[1,0,0]")
    for k in range(8):
        a(f"v_pk_fma_f32 v[{N+2*k}:{N+2*k+1}], v[{N+2*k}:{N+2*k+1}], v[{Yf+2*k}:{Yf+2*k+1}], v[{X+2*k}:{X+2*k+1}]")
    for k in range(8):
        a(f"v_cvt_pk_bf16_f32 v{V_X3+k}, v{N+2*k}, v{N+2*k+1}")
    a(f"""s_lshl_b32 s36, s20, 3
    s_lshl_b32 s37, s22, 2
    s_add_u32 s36, s36, s37
    s_add_u32 s36, s36, s{S_W}
    s_lshl_b32 s38, s36, 10
    s_lshl_b32 s36, s36, 14
    s_lshl_b32 s37, s23, 11
    s_add_u32 s36, s36, s37
    s_add_u32 s36, s36, {WS['X3']}""")
    dstore(a, f"""buffer_store_dwordx4 {vr(V_X3)}, v31, {WSR}, s36 offen {{F}}
    buffer_store_dwordx4 {vr(V_X3+4)}, v31, {WSR}, s36 offen offset:1024 {{F}}""", "x3")
    a(f"v_mov_b32 v22, 0\nv_mov_b32 v23, 0\nv_mov_b32 v26, 0\nv_mov_b32 v27, 0")
    for k in range(0, 8, 2):
        a(f"""v_dot2_f32_bf16 v22, v{V_X3+k}, v21, v22
        v_dot2_f32_bf16 v23, v{V_X3+k}, v{V_X3+k}, v23
        v_dot2_f32_bf16 v26, v{V_X3+k+1}, v21, v26
        v_dot2_f32_bf16 v27, v{V_X3+k+1}, v{V_X3+k+1}, v27""")
    a(f"""v_add_f32 v22, v22, v26
    v_add_f32 v23, v23, v27
    v_mov_b32 v24, v22
    v_mov_b32 v25, v23
    v_permlane16_swap_b32 v22, v24
    v_permlane16_swap_b32 v23, v25
    v_add_f32 v22, v22, v24
    v_add_f32 v23, v23, v25
    v_mov_b32 v24, v22
    v_mov_b32 v25, v23
    v_permlane32_swap_b32 v22, v24
    v_permlane32_swap_b32 v23, v25
    v_add_f32 v22, v22, v24
    v_add_f32 v23, v23, v25
    s_lshl_b32 s37, s23, 7
    s_add_u32 s38, s38, s37
    s_add_u32 s38, s38, {WS['SYNC'] + SYNC_ST3}
    v_lshlrev_b32 v4, 3, v3
    s_mov_b64 exec, 0xffff""")
    dstore(a, f"buffer_store_dwordx2 v[22:23], v4, {WSR}, s38 offen {{F}}")
    a("s_mov_b64 exec, -1")

G2ST = {}
def g2ab_pre(a, layer, hbase, eA, st):
    for x in range(4):
        a(f"""s_xor_b32 s36, s{S_W}, {x}
        s_and_b32 s36, s36, 1
        s_add_u32 s36, s36, {4 * (x >> 1)}
        s_lshl_b32 s37, s22, 1
        s_add_u32 s36, s36, s37
        s_lshl_b32 s37, s20, 3
        s_add_u32 s36, s36, s37
        s_mul_i32 s36, s36, {HT}
        s_mul_i32 s37, s{S_W}, {11*1024}
        s_add_u32 s36, s36, s37
        s_add_u32 s36, s36, {hbase}
        v_add_u32 v{4+x}, s36, v31""")
    a(f"""s_lshl_b32 s51, s{S_W}, 14
    s_movk_i32 s58, 10240
    s_cmp_eq_u32 s{S_W}, 3
    s_cselect_b32 s59, {INV}, s58""")
    L = a.newlabel("g2a")
    a.vmneed('fA')
    a(f"""s_add_u32 s37, s{S_GEN}, {eA}
    v_subrev_u32 v30, s37, v30
    v_cmp_gt_u32 vcc, 16, v30
    s_cmp_eq_u64 vcc, -1
    s_cbranch_scc1 {L}""")
    wait_flags(a, 14, 1, eA, 30)
    a.label(L)
    def ring(m, xl): return xl * 8192 + (m % 8) * 1024
    def dma(n):
        hf, r = divmod(n, 22); i, xl = r >> 1, r & 1; m = hf * 11 + i
        pre = f"s_add_u32 m0, s51, {ring(m, xl)}" + ("" if i == 10 else f"\ns_movk_i32 s36, {i*1024}")
        so = "s59" if i == 10 else "s36"
        return pre, f"buffer_load_dwordx4 v{4 + 2*hf + xl}, {WSR}, {so} offen sc1 lds"
    for n in range(12):
        pre, ld = dma(n); a(pre); a.tag = f"g2_{layer}_{n}"; a(ld); a.tag = None
    G2ST[layer] = (ring, dma)
def emit_g2ab(a, layer, hbase, eA, st):
    ACC = V_ACC
    acc = lambda dt, x: ACC + (x * 4 + dt) * 4
    RB = 65536
    ring, dma = G2ST[layer]
    for x in range(4):
        a(f"""s_xor_b32 s36, s{S_W}, {x}
        s_and_b32 s36, s36, 1
        s_lshl_b32 s38, s36, 12
        s_add_u32 s38, s38, {(x & 2) * 4096 + RB}
        s_lshl_b32 s37, s{S_W}, 14
        s_add_u32 s38, s38, s37
        v_add_u32 v{10+x}, s38, v31""")
    a(f"""v_lshrrev_b32 v2, 4, v1
    v_and_b32 v3, 15, v1
    v_lshlrev_b32 v8, 7, v2
    v_lshl_add_u32 v8, v3, 3, v8
    v_add_u32 v8, s51, v8""")
    stamp(a, st)
    issued = 12
    cur = [-1]
    def issue():
        nonlocal issued
        assert issued < 16 or issued - 16 < cur[0], (issued, cur[0])
        pre, ld = dma(issued); a(pre); a.tag = f"g2_{layer}_{issued}"; a(ld); a.tag = None; issued += 1
    def rd(n):
        hf, r = divmod(n, 22); i, xl = r >> 1, r & 1; m = hf * 11 + i
        B = V_HB + 4 * (n & 3); off = ring(m, xl)
        return [f"ds_read_b64 v[{B}:{B+1}], v8 offset:{off}", f"ds_read_b64 v[{B+2}:{B+3}], v8 offset:{off+512}"]
    lastn = [None]
    def vmw(n):
        tag = f"g2_{layer}_{n}"
        pos = max(k for k, t in enumerate(a.vmlog) if t == tag)
        if lastn[0] is not None and pos <= lastn[0]: return
        a(f"s_waitcnt vmcnt({len(a.vmlog) - 1 - pos})"); lastn[0] = pos
    vmw(2)
    stamp(a, st + 1)
    for n in range(3):
        for op in rd(n): a(op)
    wq = [(x, dt) for x in (0, 1) for dt in range(4)]
    extra_lgkm = 0
    for n in range(44):
        hf, r = divmod(n, 22); i, xl = r >> 1, r & 1; x = 2 * hf + xl
        cur[0] = n
        if n == SIGB_STEP:
            signal(a, eA + 1, tv=(30, 29), local=True, vm='E3')
        if n == FB_LD:
            a.tag = 'fB'; a(f"buffer_load_dword v30, v14, {WSR}, 0 offen sc1"); a.tag = None
        if n == FB_CK:
            L = a.newlabel("g2b")
            a.vmneed('fB')
            a(f"""s_add_u32 s37, s{S_GEN}, {eA + 1}
            v_subrev_u32 v30, s37, v30
            v_cmp_gt_u32 vcc, 16, v30
            s_cmp_eq_u64 vcc, -1
            s_cbranch_scc1 {L}""")
            wait_flags(a, 14, 1, eA + 1, 30)
            a.label(L)
            lastn[0] = None
        infl = min(2, 43 - n)
        a(f"s_waitcnt lgkmcnt({infl*2})")
        B = V_HB + 4 * (n & 3)
        for dt in range(4):
            c = acc(dt, x)
            a(f"v_mfma_f32_16x16x32_bf16 {vr(c)}, {w2(i,dt)}, {vr(B)}, {'0' if i == 0 else vr(c)}")
            if dt == 0 and n + 3 < 44:
                vmw(n + 3)
                for op in rd(n + 3): a(op)
            if dt in (1, 3) and issued < 44:
                lim = 22 if n < FB_CK else 44
                want = n + 13 if dt == 1 else n + 14 if (n >= FB_CK and issued < n + 13) else 0
                if issued < min(lim, want): issue()
            if dt == 2 and n >= 24 and wq:
                xx, dd = wq.pop(0); a(f"ds_write_b128 v{10+xx}, {vr(acc(dd,xx))} offset:{dd*1024}")
    assert issued == 44 and not wq
    stamp(a, st + 2)
    for x in (2, 3):
        for dt in range(4): a(f"ds_write_b128 v{10+x}, {vr(acc(dt,x))} offset:{dt*1024}")
    for k in range(1, 4):
        a(f"""s_add_u32 s36, s{S_W}, {k}
        s_and_b32 s36, s36, 3
        s_lshl_b32 s36, s36, 14
        s_lshl_b32 s37, s{S_W}, 12
        s_add_u32 s36, s36, s37
        s_add_u32 s36, s36, {RB}
        v_add_u32 v{14+k}, s36, v31""")
    a("s_waitcnt lgkmcnt(0)\ns_barrier")
    R = lambda k, dt: ACC + 16 * (1 if k == 1 else 3 if k == 2 else 1) + 4 * dt
    RCV = (ACC + 16, ACC + 48, V_HB)
    for k in range(3):
        for dt in range(4): a(f"ds_read_b128 {vr(RCV[k] + 4*dt)}, v{15+k} offset:{dt*1024}")
    L = a.newlabel("own")
    a(f"s_waitcnt lgkmcnt(8)\ns_cmp_ge_u32 s{S_W}, 2\ns_cbranch_scc1 {L}_h")
    for k in range(8): a(f"v_pk_add_f32 v[{ACC+2*k}:{ACC+2*k+1}], v[{ACC+2*k}:{ACC+2*k+1}], v[{RCV[0]+2*k}:{RCV[0]+2*k+1}]")
    a(f"s_branch {L}_e\n{L}_h:")
    for k in range(8): a(f"v_pk_add_f32 v[{ACC+2*k}:{ACC+2*k+1}], v[{ACC+32+2*k}:{ACC+32+2*k+1}], v[{RCV[0]+2*k}:{RCV[0]+2*k+1}]")
    a.label(f"{L}_e")
    for k in (1, 2):
        a(f"s_waitcnt lgkmcnt({8 - 4*k})")
        for j in range(8): a(f"v_pk_add_f32 v[{ACC+2*j}:{ACC+2*j+1}], v[{ACC+2*j}:{ACC+2*j+1}], v[{RCV[k]+2*j}:{RCV[k]+2*j+1}]")
    if layer == 1:
        a(f"""v_bfe_u32 v4, v1, 2, 2
        v_lshl_add_u32 v4, v2, 4, v4
        v_lshlrev_b32 v4, 7, v4
        v_and_b32 v5, 3, v1
        v_lshl_add_u32 v4, v5, 3, v4
        s_lshl_b32 s36, s{S_W}, 5
        s_add_u32 s36, s36, {L_TX}
        v_add_u32 v4, s36, v4""")
        P = V_HB; Yp = V_HB + 8
        for dt in range(4): a(f"ds_read_b64_tr_b16 v[{P+2*dt}:{P+2*dt+1}], v4 offset:{dt*512}")
        for dt in range(4): a(f"ds_read_b64_tr_b16 v[{Yp+2*dt}:{Yp+2*dt+1}], v4 offset:{8192+dt*512}")
    else:
        P = V_X3
    stamp(a, st + 3)
    O = ACC; X = ACC + 16; PK = ACC + 48
    a("s_waitcnt lgkmcnt(0)")
    for k in range(8):
        a(f"v_lshlrev_b32 v{X+2*k}, 16, v{P+k}\nv_and_b32 v{X+2*k+1}, 0xffff0000, v{P+k}")
    for k in range(8): a(f"v_cvt_pk_bf16_f32 v{PK+k}, v{O+2*k}, v{O+2*k+1}")
    for k in range(8):
        a(f"v_lshlrev_b32 v{O+2*k}, 16, v{PK+k}\nv_and_b32 v{O+2*k+1}, 0xffff0000, v{PK+k}")
    for k in range(8):
        a(f"v_pk_add_f32 v[{O+2*k}:{O+2*k+1}], v[{O+2*k}:{O+2*k+1}], v[{X+2*k}:{X+2*k+1}]")
    for k in range(8): a(f"v_cvt_pk_bf16_f32 v{PK+k}, v{O+2*k}, v{O+2*k+1}")
    if layer == 2:
        a(f"""s_load_dwordx2 s[32:33], s[0:1], {ARG['out']}
        s_lshr_b32 s36, s{S_W}, 1
        s_lshl_b32 s36, s36, 2
        s_lshl_b32 s37, s22, 1
        s_add_u32 s36, s36, s37
        s_and_b32 s37, s{S_W}, 1
        s_add_u32 s36, s36, s37
        s_lshl_b32 s36, s36, 4
        s_lshl_b32 s37, s20, 7
        s_add_u32 s36, s36, s37
        s_lshl_b32 s36, s36, 10
        s_lshl_b32 s37, s23, 7
        s_add_u32 s36, s36, s37
        v_lshlrev_b32 v4, 10, v3
        v_lshl_add_u32 v4, v2, 5, v4
        s_waitcnt lgkmcnt(0)
        s_mov_b32 s34, {S*D*2}
        s_mov_b32 s35, 0x20000
        buffer_store_dwordx4 {vr(PK)}, v4, s[32:35], s36 offen {OUTF}
        buffer_store_dwordx4 {vr(PK+4)}, v4, s[32:35], s36 offen offset:16 {OUTF}""")
        return
    a(f"v_mov_b32 v22, 0\nv_mov_b32 v23, 0\nv_mov_b32 v21, 0x3f803f80\nv_mov_b32 v26, 0\nv_mov_b32 v27, 0")
    for k in range(0, 8, 2):
        a(f"""v_dot2_f32_bf16 v22, v{PK+k}, v21, v22
        v_dot2_f32_bf16 v23, v{PK+k}, v{PK+k}, v23
        v_dot2_f32_bf16 v26, v{PK+k+1}, v21, v26
        v_dot2_f32_bf16 v27, v{PK+k+1}, v{PK+k+1}, v27""")
    a("v_add_f32 v22, v22, v26\nv_add_f32 v23, v23, v27")
    a(f"""v_mov_b32 v24, v22
    v_mov_b32 v25, v23
    v_permlane16_swap_b32 v22, v24
    v_permlane16_swap_b32 v23, v25
    v_add_f32 v22, v22, v24
    v_add_f32 v23, v23, v25
    v_mov_b32 v24, v22
    v_mov_b32 v25, v23
    v_permlane32_swap_b32 v22, v24
    v_permlane32_swap_b32 v23, v25
    v_add_f32 v22, v22, v24
    v_add_f32 v23, v23, v25""")
    L = a.newlabel("hop")
    a(f"""s_add_u32 s50, s{S_GEN}, 12
    v_mov_b32 v24, s50
    v_mov_b32 v25, 0
    s_lshl_b32 s36, s20, 1
    s_add_u32 s36, s36, s22
    s_lshl_b32 s36, s36, 13
    s_lshl_b32 s37, s{S_W}, 8
    s_add_u32 s36, s36, s37
    s_add_u32 s36, s36, {WS['SYNC'] + SYNC_ST2}
    s_lshl_b32 s37, s23, 10
    s_add_u32 s37, s37, s36
    v_lshlrev_b32 v4, 4, v3
    s_mov_b64 exec, 0xffff""")
    dstore(a, f"buffer_store_dwordx4 v[22:25], v4, {WSR}, s37 offen {{F}}", "hop")
    a(f"""s_mov_b64 exec, -1
    v_lshl_add_u32 v5, v2, 11, v4""")
    for k in range(8):
        a(f"v_lshlrev_b32 v{X+2*k}, 16, v{PK+k}\nv_and_b32 v{X+2*k+1}, 0xffff0000, v{PK+k}")
    a(f"""s_mov_b32 s38, 0
    {L}_p:
    buffer_load_dwordx4 v[{O}:{O+3}], v5, {WSR}, s36 offen sc1
    buffer_load_dwordx4 v[{O+4}:{O+7}], v5, {WSR}, s36 offen offset:1024 sc1
    s_add_u32 s38, s38, 1
    s_waitcnt vmcnt(0)
    v_cmp_eq_u32 vcc, s50, v{O+2}
    v_cmp_eq_u32 s[40:41], s50, v{O+6}
    s_and_b64 vcc, vcc, s[40:41]
    s_cmp_gt_u32 s38, 200000
    s_cbranch_scc1 {L}_d
    s_cmp_eq_u64 vcc, -1
    s_cbranch_scc0 {L}_p
    {L}_d:
    v_add_f32 v22, v{O}, v{O+4}
    v_add_f32 v23, v{O+1}, v{O+5}
    v_mov_b32 v24, v22
    v_mov_b32 v25, v23
    v_permlane16_swap_b32 v22, v24
    v_permlane16_swap_b32 v23, v25
    v_add_f32 v22, v22, v24
    v_add_f32 v23, v23, v25
    v_mov_b32 v24, v22
    v_mov_b32 v25, v23
    v_permlane32_swap_b32 v22, v24
    v_permlane32_swap_b32 v23, v25
    v_add_f32 v22, v22, v24
    v_add_f32 v23, v23, v25""")
    ln_core(a, 22, 23)
    a(f"""v_rcp_f32 v24, v23
    v_sub_f32 v22, 0, v22
    v_mul_f32 v26, v22, v24""")
    Yf = ACC
    for k in range(8):
        a(f"v_lshlrev_b32 v{Yf+2*k}, 16, v{Yp+k}\nv_and_b32 v{Yf+2*k+1}, 0xffff0000, v{Yp+k}")
    N = ACC + 32
    for k in range(8):
        a(f"v_pk_fma_f32 v[{N+2*k}:{N+2*k+1}], v[{X+2*k}:{X+2*k+1}], v[24:25], v[26:27] op_sel_hi:[1,0,0]")
    for k in range(8):
        a(f"v_pk_fma_f32 v[{N+2*k}:{N+2*k+1}], v[{N+2*k}:{N+2*k+1}], v[{Yf+2*k}:{Yf+2*k+1}], v[{X+2*k}:{X+2*k+1}]")
    for k in range(8):
        a(f"v_cvt_pk_bf16_f32 v{V_X3+k}, v{N+2*k}, v{N+2*k+1}")
    a(f"""s_lshr_b32 s36, s{S_W}, 1
    s_lshl_b32 s36, s36, 2
    s_lshl_b32 s37, s22, 1
    s_add_u32 s36, s36, s37
    s_and_b32 s37, s{S_W}, 1
    s_add_u32 s36, s36, s37
    s_lshl_b32 s37, s20, 3
    s_add_u32 s36, s36, s37
    s_lshl_b32 s38, s36, 10
    s_lshl_b32 s36, s36, 14
    s_lshl_b32 s37, s23, 11
    s_add_u32 s36, s36, s37
    s_add_u32 s36, s36, {WS['X3']}""")
    dstore(a, f"""buffer_store_dwordx4 {vr(V_X3)}, v31, {WSR}, s36 offen {{F}}
    buffer_store_dwordx4 {vr(V_X3+4)}, v31, {WSR}, s36 offen offset:1024 {{F}}""", "x3")
    a(f"v_mov_b32 v22, 0\nv_mov_b32 v23, 0\nv_mov_b32 v26, 0\nv_mov_b32 v27, 0")
    for k in range(0, 8, 2):
        a(f"""v_dot2_f32_bf16 v22, v{V_X3+k}, v21, v22
        v_dot2_f32_bf16 v23, v{V_X3+k}, v{V_X3+k}, v23
        v_dot2_f32_bf16 v26, v{V_X3+k+1}, v21, v26
        v_dot2_f32_bf16 v27, v{V_X3+k+1}, v{V_X3+k+1}, v27""")
    a(f"""v_add_f32 v22, v22, v26
    v_add_f32 v23, v23, v27
    v_mov_b32 v24, v22
    v_mov_b32 v25, v23
    v_permlane16_swap_b32 v22, v24
    v_permlane16_swap_b32 v23, v25
    v_add_f32 v22, v22, v24
    v_add_f32 v23, v23, v25
    v_mov_b32 v24, v22
    v_mov_b32 v25, v23
    v_permlane32_swap_b32 v22, v24
    v_permlane32_swap_b32 v23, v25
    v_add_f32 v22, v22, v24
    v_add_f32 v23, v23, v25
    s_lshl_b32 s37, s23, 7
    s_add_u32 s38, s38, s37
    s_add_u32 s38, s38, {WS['SYNC'] + SYNC_ST3}
    v_lshlrev_b32 v4, 3, v3
    s_mov_b64 exec, 0xffff""")
    dstore(a, f"buffer_store_dwordx2 v[22:23], v4, {WSR}, s38 offen {{F}}")
    a("s_mov_b64 exec, -1")


NW13L = 12
NW13A = 12
NW13B = 39
PACE = 5
CHK1 = 2
FINE = None
G2AB = False
E3LOC = False
FA_KB = 11
SIGB_STEP = 7
FB_LD = 10
FB_CK = 13
NWPRE = 0
WREV = False
EARLYW = True
TOUCH = False
SPLIT = False
PST = 'sc1'
NWS = 6
NWL1 = 6
NW2E = 0
SLEEP = 0
CNT3 = False
OUTF = ''
FRONT4 = False
UPFRONT = 1
L1PK = False
WFIRST = False
PROBE = None
CODEPF = True
DBG = 0
def build():
    a = Asm()
    global stamp
    if FINE:
        real = common.stamp
        def stamp_(a_, i):
            if i == 0: real(a_, 0)
        stamp = stamp_
        def fst(a_, i):
            real(a_, i)
            if FINE in ('P', 'G'):
                a_(f"s_memtime s[70:71]\ns_waitcnt lgkmcnt(0)\ns_mov_b32 s{72+14+i}, s70")
        globals()['fstamp'] = fst
    else:
        globals()['fstamp'] = lambda a_, i: None
    if SPLIT:
        build_prep_kernel(a, "prep_kernel")
    kbegin(a, KN)
    if not SPLIT:
        emit_prologue(a)
        emit_prep_loads(a)
    if not SPLIT:
        a("s_waitcnt lgkmcnt(0)")
        a(f"""s_getreg_b32 s36, hwreg(HW_REG_XCC_ID, 0, 4)
    s_add_u32 s{S_IDW}, s{S_GEN}, 13
    s_lshl_b32 s{S_IDW}, s{S_IDW}, 4
    s_or_b32 s{S_IDW}, s{S_IDW}, s36
    s_mov_b32 s{S_LOC}, 0
    s_cmp_lg_u32 s{S_W}, 0
    s_cbranch_scc1 L_noid
    v_mov_b32 v174, s{S_IDW}
    v_mov_b32 v175, s{S_FLAG}
    s_mov_b64 exec, 1
    buffer_store_dword v174, v175, {WSR}, 0 offen offset:4 sc1
    s_mov_b64 exec, -1
    L_noid:""")
    w13ops = [f"s_add_u32 s36, s{40+t}, {kb*1024}\nbuffer_load_dwordx4 {w13(kb,t)}, v31, {WSR}, s36 offen sc1" for kb in range(16) for t in range(3)]
    if SPLIT:
        emit_split_front(a, w13ops)
        signal(a, 3)
        stamp(a, 9)
        a("v_and_b32 v1, 63, v0")
        for op in w13ops[NW13A:NW13B]: a(op)
    elif FRONT4:
        emit_front4(a, None)
        signal(a, 3)
        stamp(a, 9)
        a("v_and_b32 v1, 63, v0")
        a(f"v_lshlrev_b32 v22, 6, v1\nv_add_u32 v22, {WS['SYNC'] + SYNC_FLAGS}, v22")
        for i in range(4):
            if i == 0: a(f"buffer_load_dword v24, v22, {WSR}, 0 offen offset:8 sc1")
            else: a(f"s_movk_i32 s39, {4096*i}\nbuffer_load_dword v{24+i}, v22, {WSR}, s39 offen offset:8 sc1")
        a("s_waitcnt vmcnt(0)")
        flagcheck(a, 1, (24, 25, 26, 27), 22, "L_w_ok", tmp=(29, 30), off=8)
        for op in w13ops[:NW13B]: a(op)
    else:
        emit_prep_compute(a)
        emit_ffn_roles(a)
        hooks = dict(conv_loop_extra=w13ops[:NW13L], n_conv_total_w=NW13L, conv_epi_extra=w13ops[NW13L:NW13A])
        emit_conv(a, hooks)
        if CNT3:
            a(f"""s_waitcnt vmcnt(0)
            s_barrier
            s_cmp_lg_u32 s{S_W}, 0
            s_cbranch_scc1 L_s3
            s_and_b32 s36, s2, 15
            s_lshl_b32 s36, s36, 7
            s_add_u32 s36, s36, {WS['SYNC'] + SYNC_CNT}
            v_mov_b32 v2, 1
            v_mov_b32 v3, s36
            s_mov_b64 exec, 1
            buffer_atomic_add v2, v3, {WSR}, 0 offen
            s_mov_b64 exec, -1
            L_s3:""")
        else:
            for op in w13ops[NW13A:NW13A + NWPRE]: a(op)
            signal(a, 3, vm=NWPRE)
        stamp(a, 9)
        a("v_and_b32 v1, 63, v0")
        w_batch(a, w13ops[NW13A + NWPRE:NW13B])
    if not FRONT4:
        if NWPRE: a(f"s_waitcnt vmcnt({NW13B - NW13A})")
        emit_cs(a, 0, NW13A // 3)
    x1_dma_setup(a)
    g1_addr(a, 1, WS['H1'])
    def su3():
        a(f"v_lshlrev_b32 v14, 6, v1\nv_add_u32 v14, {WS['SYNC'] + SYNC_FLAGS}, v14")
    if CNT3:
        a(f"""s_cmp_lg_u32 s{S_W}, 3
        s_cbranch_scc1 L_w3j
        v_and_b32 v14, 15, v1
        v_lshlrev_b32 v14, 7, v14
        v_add_u32 v14, {WS['SYNC'] + SYNC_CNT}, v14
        s_mov_b32 s38, 0
        L_w3p:
        buffer_load_dword v{V_T}, v14, {WSR}, 0 offen sc1
        s_add_u32 s38, s38, 1
        s_waitcnt vmcnt(0)
        v_cmp_eq_u32 vcc, 16, v{V_T}
        s_cmp_gt_u32 s38, 200000
        s_cbranch_scc1 L_w3j
        s_cmp_eq_u64 vcc, -1
        s_cbranch_scc0 L_w3p
        L_w3j:
        s_barrier""")
    else:
        wg_wait(a, su3, 14, 4, 3, V_T, wave=3)
    stamp(a, 10)
    x1ops = x1_dma_ops(0)
    a.tag = 'w13b'; a.vmlog.append('w13b')
    for n, op in enumerate(x1ops):
        a.tag = 'x0a' if n <= 8 else 'x0b'; a(op)
    w2q = list(range(44))
    a.tag = 'w2'
    for _ in range(NW2E):
        i = w2q.pop(0); w2_loads(a, i, i + 1)
    a.tag = None
    nC = 48 - NW13B
    a.vmlog.remove('w13b') if False else None
    pos = a.vmlog.index('w13b')
    a(f"s_waitcnt vmcnt({len(a.vmlog) - 1 - pos})")
    emit_cs(a, 0 if FRONT4 else NW13A // 3, NW13B // 3)
    a.vmneed('x0a'); a("s_barrier")
    stamp(a, 11)
    w13c = [(w13ops[i], f"wc{i // 3}") for i in range(NW13B, 48)]
    kbC = NW13B // 3
    x1h1 = x1_dma_ops(1)
    def hook1(P, kb):
        if P == 0:
            if kb == 6: a.vmneed('x0b'); a("s_barrier")
            if nC and kb >= kbC: a.vmneed(f"wc{kb}")
            for _ in range(3):
                if w13c:
                    op, tg = w13c.pop(0); a.tag = tg; a(op); a.tag = None
            k0 = 8 - (0 if nC > 9 else 4)
            if kb == k0: a(x1h1.pop(0))
            if kb >= k0:
                a.tag = 'x1h'
                for _ in range(2):
                    if x1h1: a(x1h1.pop(0))
                a.tag = None
        if P == 1 and kb == 0:
            tiles_dma(a)
            a("v_and_b32 v2, 15, v1\nv_lshrrev_b32 v3, 4, v1")
        if P == 1 and kb == 13:
            a.vmneed('x1h'); a("s_barrier")
        if (P, kb) == ((2, 8) if L1PK else (3, 6)):
            signal(a, 4, tv=(30, 29), local=True, vm='E1')
            touch_h(a, 0, 14)
        if P >= 1 and w2q and not (P == 1 and kb < 2):
            i = w2q.pop(0); a.tag = 'w2'; w2_loads(a, i, i + 1); a.tag = None
        if G2AB and (P, kb) == (3, FA_KB):
            member_flag_off(a, 14, "0", 16)
            a.tag = 'fA'; a(f"buffer_load_dword v30, v14, {WSR}, 0 offen sc1"); a.tag = None
    if FINE == 'P': fstamp(a, 1)
    g1_stream(a, 1, hook1, cs_from=kbC, st=2, pre_last=(lambda: g2ab_pre(a, 1, WS['H1'], 4, 15)) if G2AB else None)
    if FINE == 'P': fstamp(a, 6)
    for i in w2q: w2_loads(a, i, i + 1)
    if G2AB:
        stamp(a, 14)
        emit_g2ab(a, 1, WS['H1'], 4, 15)
    else:
        signal(a, 5, local=True)
        touch_h(a, 1, 14)
        stamp(a, 14)
        emit_g2(a, 1, WS['H1'], 4, 15)
    signal(a, 6, local=True)
    stamp(a, 19)
    g1_addr(a, 2, WS['H2'])
    def su6a(): member_flag_off(a, 14, "0", 16 if G2AB else 8)
    wg_wait(a, su6a, 14, 1, 6, V_T)
    stamp(a, 20)
    st3_stats(a, 0)
    for op in x3_dma_ops(0): a(op)
    a("s_waitcnt vmcnt(16)")
    st3_finish(a, 0)
    a("s_waitcnt vmcnt(8) lgkmcnt(0)\ns_barrier")
    stamp(a, 21)
    x3h1 = x3_dma_ops(1)
    def hook2_old(P, kb):
        if P == 0:
            if kb == 0:
                member_flag_off(a, 14, "8", 8)
                a(f"buffer_load_dword v30, v14, {WSR}, 0 offen sc1")
            if kb == 6: a("s_waitcnt vmcnt(1)\ns_barrier")
            if kb == 10:
                L = a.newlabel("x3b")
                a(f"""s_waitcnt vmcnt(0)
                s_add_u32 s37, s{S_GEN}, 6
                v_subrev_u32 v30, s37, v30
                v_cmp_gt_u32 vcc, 16, v30
                s_cmp_eq_u64 vcc, -1
                s_cbranch_scc1 {L}""")
                wait_flags(a, 14, 1, 6, 30)
                a.label(L)
                st3_stats(a, 1)
                a(x3h1.pop(0))
            if kb >= 10:
                for _ in range(2): a(x3h1.pop(0))
        if P == 1:
            if kb < 2:
                for _ in range(2): a(x3h1.pop(0))
            if kb == 6:
                a("s_waitcnt vmcnt(16)")
                st3_finish(a, 1)
            if kb == 13: a("s_waitcnt vmcnt(3) lgkmcnt(3)\ns_barrier" if False else "s_waitcnt vmcnt(0)\ns_barrier")
        if P == 3 and kb == 6:
            signal(a, 7, tv=(30, 29), local=True)
            touch_h(a, 0, 14)
    def hook2_ab(P, kb):
        if P == 0:
            if kb == 0:
                st3_stats(a, 1)
                a(x3h1.pop(0))
            if kb == 6: a("s_waitcnt vmcnt(2)\ns_barrier")
            if kb >= 8:
                for _ in range(2): a(x3h1.pop(0))
            if kb == 10:
                pass
        if P == 1:
            if kb == 4:
                a("s_waitcnt vmcnt(16)")
                st3_finish(a, 1)
            if kb == 13: a("s_waitcnt vmcnt(0)\ns_barrier")
        if P == 3 and kb == 6:
            signal(a, 7, tv=(30, 29), local=True)
        if (P, kb) == (3, FA_KB):
            member_flag_off(a, 14, "0", 16)
            a.tag = 'fA'; a(f"buffer_load_dword v30, v14, {WSR}, 0 offen sc1"); a.tag = None
    hook2 = hook2_ab if G2AB else hook2_old
    if FINE == 'P': fstamp(a, 7)
    g1_stream(a, 2, hook2, st=8, pre_last=(lambda: g2ab_pre(a, 2, WS['H2'], 7, 24)) if G2AB else None)
    if FINE == 'P': fstamp(a, 12)
    if G2AB:
        stamp(a, 23)
        emit_g2ab(a, 2, WS['H2'], 7, 24)
    else:
        signal(a, 8, local=True)
        touch_h(a, 1, 14)
        stamp(a, 23)
        emit_g2(a, 2, WS['H2'], 7, 24)
    a(f"""s_or_b32 s36, s2, s{S_W}
    s_cmp_lg_u32 s36, 0
    s_cbranch_scc1 L_nogen
    s_add_u32 s36, s{S_GEN}, 16
    v_mov_b32 v2, s36
    v_mov_b32 v3, {WS['SYNC'] + SYNC_GEN}
    s_mov_b64 exec, 1
    buffer_store_dword v2, v3, {WSR}, 0 offen
    s_mov_b64 exec, -1
    L_nogen:""")
    if PROBE is not None:
        pa, pb, K = PROBE
        a(f"""s_waitcnt vmcnt(0) lgkmcnt(0)
        s_memrealtime s[70:71]
        s_waitcnt lgkmcnt(0)
        s_mov_b32 s100, s70
        s_or_b32 s36, s2, s{S_W}
        s_cmp_lg_u32 s36, 0
        s_cbranch_scc1 L_end
        s_sub_u32 s36, s{72+pb if pb < 28 else 100}, s{72+pa}
        s_mul_i32 s36, s36, {K}
        s_add_u32 s36, s36, s100
        L_spin:
        s_memrealtime s[70:71]
        s_waitcnt lgkmcnt(0)
        s_sub_u32 s37, s70, s36
        s_cmp_lt_i32 s37, 0
        s_cbranch_scc1 L_spin
        s_branch L_end""")
    if common.STAMPS:
        a("s_waitcnt vmcnt(0)"); stamp(a, 28)
    if DBG:
        sel = [1, 2, 3, 4, 5, 6, 7, 9, 10, 11, 14, 15, 19, 21, 23, 28]
        a(f"""s_cmp_lg_u32 s2, {DBG - 1}
        s_cbranch_scc1 L_end
        s_cmp_lg_u32 s{S_W}, 0
        s_cbranch_scc1 L_end
        s_load_dwordx2 s[68:69], s[0:1], {ARG['dbg']}
        s_waitcnt lgkmcnt(0)
        s_mov_b64 exec, 1""")
        for i, k in enumerate(sel):
            a(f"s_sub_u32 s70, s{72+k}, s72\nv_mov_b32 v2, s70\nv_mov_b32 v3, {4*i}\nglobal_store_dword v3, v2, s[68:69]")
    else:
        stamp_flush(a, 0, 29)
    a.label("L_end")
    a("s_endpgm")
    a.label("L_codeend")
    a("s_endpgm")
    if SPLIT:
        txt = header([("prep_kernel", 256, 768, PW + 2*6144 + 64 + 8192), (KN, 256, 256, LDS_TOTAL)]) + a.text() + kernel_desc("prep_kernel", 168, 72, 168) + kernel_desc(KN, 512, 102, 256)
    else:
        txt = header([(None, 256, 256, LDS_TOTAL)]) + a.text() + kernel_desc(KN, 512, 102, 256)
    return txt, a
if __name__ == "__main__":
    common.STAMPS = 's' in sys.argv[2:]
    LOCAL = any(x.startswith('l') for x in sys.argv[2:])
    for x in sys.argv[2:]:
        if x.startswith('l'): LOCSET.update(['flag'] + x[1:].split('+'))
    HALF = 'h' in sys.argv[2:]
    if HALF: DYNSET.intersection_update({'hop'})
    UPFRONT = 0 if 'noup' in sys.argv[2:] else (2 if 'up2' in sys.argv[2:] else 1)
    FRONT4 = 'f4' in sys.argv[2:]
    if FRONT4: UPFRONT = 2
    SPREAD = 'nosp' not in sys.argv[2:]
    L1PK = 'pk' in sys.argv[2:]
    for x in sys.argv[2:]:
        if x.startswith('w:'): NW13L, NW13A, NW13B = (int(y) for y in x[2:].split(','))
    for x in sys.argv[2:]:
        if x.startswith('p:'): PROBE = tuple(int(y) for y in x[2:].split(','))
    CODEPF = 'nopf' not in sys.argv[2:]
    G2AB = 'ab' in sys.argv[2:]
    E3LOC = 'e3' in sys.argv[2:]
    if E3LOC: DYNSET.add('e3')
    for x in sys.argv[2:]:
        if x.startswith('sig'): SIGB_STEP, FB_LD, FB_CK = (int(y) for y in x[3:].split(','))
    NWPRE = max([int(x[4:]) for x in sys.argv[2:] if x.startswith('pre:')] + [0])
    WREV = 'wrev' in sys.argv[2:]
    EARLYW = 'noew' not in sys.argv[2:]
    for x in sys.argv[2:]:
        if x.startswith('chk'): CHK1 = int(x[3:])
    TOUCH = 'touch' in sys.argv[2:]
    SPLIT = 'split' in sys.argv[2:]
    if 'pplain' in sys.argv[2:]: PST = ''
    for x in sys.argv[2:]:
        if x.startswith('ws:'): NWS, NWL1 = (int(y) for y in x[3:].split(','))
    NW2E = max([int(x[3:]) for x in sys.argv[2:] if x.startswith('w2:')] + [0])
    SLEEP = max([int(x[2:]) for x in sys.argv[2:] if x.startswith('sl')] + [0])
    CNT3 = 'cnt' in sys.argv[2:]
    OUTF = 'sc1' if 'osc1' in sys.argv[2:] else ('nt' if 'ont' in sys.argv[2:] else '')
    if 'nox3' in sys.argv[2:]: DYNSET.discard('x3')
    DYN = 'nodyn' not in sys.argv[2:]
    DBG = max([int(x[1:]) + 1 for x in sys.argv[2:] if x[0] == 'd' and x[1:].isdigit()] + [0])
    FINE = 'A' if 'fa' in sys.argv[2:] else ('B' if 'fb' in sys.argv[2:] else ('P' if 'fp' in sys.argv[2:] else ('F' if 'ff' in sys.argv[2:] else ('G' if 'fg' in sys.argv[2:] else None))))
    txt, a = build()
    open(sys.argv[1], "w").write(txt)
    print("nops:", a.nnop, "bytes", len(txt))
```

```python
import sys
from asmgen import *
from common import *
import common

KN = NAME + "_kernel"
WSR = "s[28:31]"
INV = "0x80000000"
S_GEN, S_W, S_FLAG = 3, 18, 64
LOCAL = False
HALF = False
S_LOC, S_IDW = 17, 16
DYN = True
DYNSET = {"flag", "x3", "hop"}
def LS(kind="flag"): return "" if (LOCAL and kind in LOCSET) else "sc1"
LOCSET = set()
def dstore(a, text, kind="flag"):
    if not DYN or kind not in DYNSET or LOCAL:
        a(text.replace("{F}", LS(kind))); return
    L = a.newlabel("ds")
    a(f"s_cmp_eq_u32 s{S_LOC}, 1\ns_cbranch_scc1 {L}_l")
    a(text.replace("{F}", "sc1"))
    a(f"s_branch {L}_e\n{L}_l:")
    a.nolog += 1
    a(text.replace("{F}", ""))
    a.nolog -= 1
    a.label(f"{L}_e")
def vr(b, n=4): return f"v[{b}:{b+n-1}]"

SPREAD = True
def PGs(d):
    return f"s_lshr_b32 {d}, s2, 3\n    s_and_b32 {d}, {d}, 7" if SPREAD else f"s_mov_b32 {d}, s60"
def PTs(d, t):
    return f"s_lshr_b32 {d}, s2, 6\n    s_lshl_b32 {d}, {d}, 3\n    s_and_b32 {t}, s2, 7\n    s_add_u32 {d}, {d}, {t}" if SPREAD else f"s_mov_b32 {d}, s61"
def rnd_bf16(a, v):
    a(f"v_cvt_pk_bf16_f32 v{v}, v{v}, v{v}\nv_and_b32 v{v}, 0xffff0000, v{v}")
def sum_q(a, v, t):
    a(f"""v_mov_b32 v{t}, v{v}
    v_permlane16_swap_b32 v{v}, v{t}
    v_add_f32 v{v}, v{v}, v{t}
    v_mov_b32 v{t}, v{v}
    v_permlane32_swap_b32 v{v}, v{t}
    v_add_f32 v{v}, v{v}, v{t}""")
def allsum64(a, v, t):
    for r in (8, 4, 2, 1):
        a(f"v_add_f32_dpp v{v}, v{v}, v{v} row_ror:{r} row_mask:0xf bank_mask:0xf")
    sum_q(a, v, t)
def ln_core(a, vsum, vsq):
    a(f"""v_mul_f32 v{vsum}, 0x3b000000, v{vsum}
    v_mul_f32 v{vsq}, 0x3b000000, v{vsq}
    v_fma_f32 v{vsq}, -v{vsum}, v{vsum}, v{vsq}
    v_max_f32 v{vsq}, 0, v{vsq}""")
    rnd_bf16(a, vsq)
    a(f"v_add_f32 v{vsq}, 0x3727c5ac, v{vsq}")
    rnd_bf16(a, vsq)
    a(f"v_sqrt_f32 v{vsq}, v{vsq}")
    rnd_bf16(a, vsq)
    rnd_bf16(a, vsum)
def signal(a, e, tv=(2, 3), barrier=True, local=False, vm=0):
    L = a.newlabel("sg")
    a(f"""s_add_u32 s36, s{S_GEN}, {e}
    v_mov_b32 v{tv[0]}, s36
    v_mov_b32 v{tv[1]}, s{S_FLAG}""")
    if isinstance(vm, str): a.vmneed(vm)
    else: a(f"s_waitcnt vmcnt({vm})")
    if barrier: a("s_barrier")
    a.nolog += 1
    a(f"""s_cmp_lg_u32 s{S_W}, 0
    s_cbranch_scc1 {L}
    s_mov_b64 exec, 1""")
    if local: dstore(a, f"buffer_store_dword v{tv[0]}, v{tv[1]}, {WSR}, 0 offen {{F}}")
    else: a(f"buffer_store_dword v{tv[0]}, v{tv[1]}, {WSR}, 0 offen sc1")
    a(f"""s_mov_b64 exec, -1
    {L}:""")
    a.nolog -= 1
def wait_flags(a, voff, nld, e, T, etag=None):
    L = a.newlabel("wf")
    if etag is None:
        a(f"s_add_u32 s37, s{S_GEN}, {e}"); etag = 37
    a(f"s_mov_b32 s38, 0")
    a.nolog += 1
    a.label(L)
    for i in range(nld):
        if i == 0: a(f"buffer_load_dword v{T}, v{voff}, {WSR}, 0 offen sc1")
        else: a(f"s_movk_i32 s39, {4096*i}\nbuffer_load_dword v{T+i}, v{voff}, {WSR}, s39 offen sc1")
    a("s_add_u32 s38, s38, 1\ns_waitcnt vmcnt(0)")
    for k in range(nld):
        a(f"v_subrev_u32 v{T+k}, s{etag}, v{T+k}")
    for k in range(1, nld): a(f"v_max_u32 v{T}, v{T}, v{T+k}")
    a(f"""v_cmp_gt_u32 vcc, 16, v{T}
    s_cmp_gt_u32 s38, 200000
    s_cbranch_scc1 {L}_x
    s_cmp_eq_u64 vcc, -1
    s_cbranch_scc1 {L}_x""")
    if SLEEP and nld > 1: a(f"s_sleep {SLEEP}")
    a(f"""s_branch {L}
    {L}_x:""")
    a.nolog -= 1
def flagcheck(a, e, regs, voff, label, tmp, off=0):
    a(f"""s_add_u32 s37, s{S_GEN}, {e}
    v_subrev_u32 v{tmp[0]}, s37, v{regs[0]}
    v_subrev_u32 v{tmp[1]}, s37, v{regs[1]}
    v_max_u32 v{tmp[0]}, v{tmp[0]}, v{tmp[1]}
    v_subrev_u32 v{tmp[1]}, s37, v{regs[2]}
    v_max_u32 v{tmp[0]}, v{tmp[0]}, v{tmp[1]}
    v_subrev_u32 v{tmp[1]}, s37, v{regs[3]}
    v_max_u32 v{tmp[0]}, v{tmp[0]}, v{tmp[1]}
    v_cmp_gt_u32 vcc, 16, v{tmp[0]}
    s_cmp_eq_u64 vcc, -1
    s_cbranch_scc1 {label}
    s_mov_b32 s38, 0
    {label}_p:""")
    a.nolog += 1
    for i in range(4):
        if i == 0: a(f"buffer_load_dword v{regs[0]}, v{voff}, {WSR}, 0 offen offset:{off} sc1")
        else: a(f"s_movk_i32 s39, {4096*i}\nbuffer_load_dword v{regs[i]}, v{voff}, {WSR}, s39 offen offset:{off} sc1")
    a(f"""s_add_u32 s38, s38, 1
    s_waitcnt vmcnt(0)
    v_subrev_u32 v{tmp[0]}, s37, v{regs[0]}
    v_subrev_u32 v{tmp[1]}, s37, v{regs[1]}
    v_max_u32 v{tmp[0]}, v{tmp[0]}, v{tmp[1]}
    v_subrev_u32 v{tmp[1]}, s37, v{regs[2]}
    v_max_u32 v{tmp[0]}, v{tmp[0]}, v{tmp[1]}
    v_subrev_u32 v{tmp[1]}, s37, v{regs[3]}
    v_max_u32 v{tmp[0]}, v{tmp[0]}, v{tmp[1]}
    v_cmp_gt_u32 vcc, 16, v{tmp[0]}
    s_cmp_gt_u32 s38, 200000
    s_cbranch_scc1 {label}
    s_cmp_eq_u64 vcc, -1
    s_cbranch_scc0 {label}_p
    {label}:""")
    a.nolog -= 1
def wg_wait(a, setup, voff, nld, e, T, etag=None, wave=0):
    L = a.newlabel("ww")
    a(f"s_cmp_lg_u32 s{S_W}, {wave}\ns_cbranch_scc1 {L}")
    setup()
    wait_flags(a, voff, nld, e, T, etag)
    a.label(L)
    a("s_barrier")

HCS = 4160; XRO = 4 * HCS; CB = XRO + 4608; EXO = 49152
PL = 65536
PW = PL + 16384
W3OFF = 6144 + 32
L_TX = 131072; L_TY = L_TX + 8192; L_ST = L_TY + 8192
LDS_TOTAL = L_ST + 2048

def emit_prologue_old(a):
    a(f"""s_cmp_ge_u32 s2, 256
    s_cbranch_scc1 L_end""")
    emit_codepf(a)
    a(f"""s_load_dwordx4 s[4:7], s[0:1], {ARG['q']}
    s_load_dwordx4 s[8:11], s[0:1], {ARG['v']}
    s_load_dwordx4 s[12:15], s[0:1], {ARG['h']}
    s_load_dwordx2 s[16:17], s[0:1], {ARG['ws']}
    s_load_dwordx4 s[52:55], s[0:1], {ARG['w1']}
    s_load_dwordx2 s[56:57], s[0:1], {ARG['w2']}
    v_lshrrev_b32 v3, 6, v0
    v_and_b32 v1, 7, v0
    v_readfirstlane_b32 s{S_W}, v3
    s_and_b32 s60, s2, 7
    s_lshr_b32 s61, s2, 3
    v_lshrrev_b32 v2, 3, v0
    {PGs('s36')}
    s_lshl_b32 s36, s36, 7
    {PTs('s37', 's38')}
    s_lshl_b32 s37, s37, 16
    s_add_u32 s36, s36, s37
    v_lshlrev_b32 v4, 4, v1
    v_lshlrev_b32 v5, 11, v2
    v_add3_u32 v4, v4, v5, s36
    s_lshl_b32 s{S_FLAG}, s60, 5
    s_add_u32 s{S_FLAG}, s{S_FLAG}, s61
    s_mov_b32 s19, s{S_FLAG}
    s_lshl_b32 s{S_FLAG}, s{S_FLAG}, 6
    s_add_u32 s{S_FLAG}, s{S_FLAG}, {WS['SYNC'] + SYNC_FLAGS}
    s_waitcnt lgkmcnt(0)""")
    srd(a, 20, 4, S * D * 2)
    srd(a, 24, 6, S * D * 2)
    srd(a, 32, 8, S * D * 2)
    srd(a, 40, 10, D * 8)
    srd(a, 28, 16, WS['END'])
    a(f"""s_add_u32 s36, s16, {WS['SYNC'] + SYNC_GEN}
    s_addc_u32 s37, s17, 0
    s_load_dword s{S_GEN}, s[36:37], 0""")
    stamp(a, 0)

def emit_prologue(a):
    a(f"""s_cmp_ge_u32 s2, 256
    s_cbranch_scc1 L_end
    s_load_dwordx4 s[4:7], s[0:1], {ARG['q']}
    s_load_dwordx4 s[8:11], s[0:1], {ARG['v']}
    s_load_dwordx4 s[12:15], s[0:1], {ARG['h']}
    s_load_dwordx2 s[16:17], s[0:1], {ARG['ws']}
    s_load_dwordx4 s[52:55], s[0:1], {ARG['w1']}
    s_load_dwordx2 s[56:57], s[0:1], {ARG['w2']}
    v_and_b32 v1, 7, v0
    v_lshrrev_b32 v2, 3, v0
    {PGs('s36')}
    s_lshl_b32 s36, s36, 7
    {PTs('s37', 's38')}
    s_lshl_b32 s37, s37, 16
    s_add_u32 s36, s36, s37
    v_lshlrev_b32 v4, 4, v1
    v_lshlrev_b32 v5, 11, v2
    v_add3_u32 v4, v4, v5, s36
    v_subrev_u32 v5, 3072, v4
    v_subrev_u32 v6, 2048, v4
    v_subrev_u32 v7, 1024, v4
    s_mov_b32 s26, {S*D*2}
    s_mov_b32 s27, 0x20000
    s_mov_b32 s34, {S*D*2}
    s_mov_b32 s35, 0x20000
    s_waitcnt lgkmcnt(0)
    s_mov_b32 s24, s6
    s_mov_b32 s25, s7
    s_mov_b32 s32, s8
    s_mov_b32 s33, s9
    buffer_load_dwordx4 v[16:19], v5, s[24:27], 0 offen
    buffer_load_dwordx4 v[20:23], v6, s[24:27], 0 offen
    buffer_load_dwordx4 v[24:27], v7, s[24:27], 0 offen
    buffer_load_dwordx4 v[28:31], v4, s[24:27], 0 offen
    buffer_load_dwordx4 v[32:35], v4, s[24:27], 0 offen offset:1024
    buffer_load_dwordx4 v[36:39], v4, s[32:35], 0 offen
    buffer_load_dwordx4 v[40:43], v4, s[32:35], 0 offen offset:1024""")
    emit_codepf(a)
    a(f"""v_lshrrev_b32 v3, 6, v0
    v_readfirstlane_b32 s{S_W}, v3
    s_and_b32 s60, s2, 7
    s_lshr_b32 s61, s2, 3
    s_lshl_b32 s{S_FLAG}, s60, 5
    s_add_u32 s{S_FLAG}, s{S_FLAG}, s61
    s_mov_b32 s19, s{S_FLAG}
    s_lshl_b32 s{S_FLAG}, s{S_FLAG}, 6
    s_add_u32 s{S_FLAG}, s{S_FLAG}, {WS['SYNC'] + SYNC_FLAGS}""")
    srd(a, 20, 4, S * D * 2)
    srd(a, 40, 10, D * 8)
    srd(a, 28, 16, WS['END'])
    a(f"""s_add_u32 s36, s16, {WS['SYNC'] + SYNC_GEN}
    s_addc_u32 s37, s17, 0
    s_load_dword s{S_GEN}, s[36:37], 0""")
    stamp(a, 0)

def emit_prep_loads(a):
    a(f"""v_and_b32 v9, 63, v0
    s_lshr_b32 s66, s{S_W}, 1
    s_and_b32 s67, s{S_W}, 1""")
    if WFIRST: emit_prep_loadsW(a)
    a(f"""{PGs('s36')}
    s_lshl_b32 s36, s36, 9
    v_lshlrev_b32 v8, 6, v1
    v_add_u32 v8, s36, v8
    buffer_load_dwordx4 v[44:47], v8, s[40:43], 0 offen
    buffer_load_dwordx4 v[48:51], v8, s[40:43], 0 offen offset:16
    buffer_load_dwordx4 v[52:55], v8, s[40:43], 0 offen offset:32
    buffer_load_dwordx4 v[56:59], v8, s[40:43], 0 offen offset:48
""")
    if UPFRONT:
        emit_prep_loads2(a)
        emit_prep_loadsQ(a)
        emit_statrows(a)
        if UPFRONT == 1: emit_prep_loadsW(a)

def emit_statrows(a):
    a(f"""v_lshlrev_b32 v10, 4, v9
    s_lshl_b32 s36, s2, 13
    s_lshl_b32 s37, s{S_W}, 11
    s_add_u32 s36, s36, s37
    v_add_u32 v10, s36, v10
    buffer_load_dwordx4 v[68:71], v10, s[20:23], 0 offen
    buffer_load_dwordx4 v[72:75], v10, s[20:23], 0 offen offset:1024""")

def emit_prep_loadsW(a):
    a(f"""s_cmp_eq_u32 s66, 0
    s_cselect_b32 s52, s52, s54
    s_cselect_b32 s53, s53, s55
    s_mov_b32 s54, {D*F*2}
    s_mov_b32 s55, 0x20000
    s_mov_b32 s58, {D*F*2}
    s_mov_b32 s59, 0x20000
    s_mul_i32 s62, s60, {64*2752}
    s_mul_i32 s63, s61, 96
    s_add_u32 s62, s62, s63
    s_mul_i32 s63, s67, 192
    v_add_u32 v176, s63, v9
    s_mul_i32 s36, s66, {W3OFF}
    s_lshl_b32 s63, s63, 4
    s_add_u32 s36, s36, s63
    s_add_u32 s36, s36, {PW}""")
    for i in range(3):
        a(f"""v_add_u32 v177, {64*i}, v176
        v_mul_u32_u24 v178, 43691, v177
        v_lshrrev_b32 v178, 18, v178
        v_mul_u32_u24 v179, 6, v178
        v_sub_u32 v179, v177, v179
        v_mul_u32_u24 v178, 2752, v178
        v_lshl_add_u32 v{184+i}, v179, 4, v178
        s_add_u32 m0, s36, {1024*i}
        buffer_load_dwordx4 v{184+i}, s[52:55], s62 offen lds""")
    a(f"""v_lshrrev_b32 v178, 3, v9
    v_and_b32 v179, 7, v9
    v_lshlrev_b32 v178, 10, v178
    v_lshl_add_u32 v187, v179, 4, v178
    s_lshl_b32 s63, s{S_W}, 13
    {PTs('s36', 's37')}
    s_lshl_b32 s36, s36, 15
    s_add_u32 s36, s36, s63
    {PGs('s63')}
    s_lshl_b32 s63, s63, 7
    s_add_u32 s36, s36, s63
    s_lshl_b32 s63, s{S_W}, 10
    s_add_u32 s63, s63, {PW + 2*6144 + 64}
    s_mov_b32 m0, s63
    buffer_load_dwordx4 v187, s[56:59], s36 offen lds
    s_add_u32 s36, s36, {32*32*1024}
    s_add_u32 m0, s63, 4096
    buffer_load_dwordx4 v187, s[56:59], s36 offen lds""")

def emit_prep_loadsQ(a):
    a(f"""buffer_load_dwordx4 v[60:63], v4, s[20:23], 0 offen
    buffer_load_dwordx4 v[64:67], v4, s[20:23], 0 offen offset:1024""")
def emit_prep_loads2(a):
    a(f"""s_lshl_b32 s65, s19, 1
    s_add_u32 s65, s65, s66
    s_lshl_b32 s37, s65, 1
    s_lshl_b32 s65, s65, 12""")
    srd(a, 44, 12, 4096, offreg=65)
    srd(a, 48, 14, D * 2)
    a(f"""v_lshlrev_b32 v172, 4, v9
    s_lshl_b32 s36, s67, 11
    v_add_u32 v172, s36, v172
    buffer_load_dwordx4 v[192:195], v172, s[44:47], 0 offen
    buffer_load_dwordx4 v[196:199], v172, s[44:47], 0 offen offset:4
    buffer_load_dwordx4 v[200:203], v172, s[44:47], 0 offen offset:8
    buffer_load_dwordx4 v[204:207], v172, s[44:47], 0 offen offset:1024
    buffer_load_dwordx4 v[208:211], v172, s[44:47], 0 offen offset:1028
    buffer_load_dwordx4 v[212:215], v172, s[44:47], 0 offen offset:1032
    v_bfe_u32 v219, v9, 3, 2
    v_and_b32 v220, 7, v9
    v_lshlrev_b32 v13, 1, v220
    v_add_u32 v13, v13, v219
    v_subrev_u32 v13, 16, v13
    v_lshlrev_b32 v13, 1, v13
    v_add_u32 v14, 2, v13
    buffer_load_ushort v216, v13, s[44:47], 0 offen
    buffer_load_ushort v217, v14, s[44:47], 0 offen
    v_mov_b32 v173, s37
    buffer_load_ushort v218, v173, s[48:51], 0 offen""")

def emit_codepf(a):
    if CODEPF:
        a(f"""s_getpc_b64 s[68:69]
        L_pc:
        s_sub_u32 s68, s68, L_pc-{KN}
        s_subb_u32 s69, s69, 0
        v_and_b32 v190, 15, v0
        s_lshr_b32 s36, s2, 3
        s_lshl_b32 s36, s36, 4
        v_add_u32 v190, s36, v190
        v_lshlrev_b32 v190, 7, v190
        v_min_u32 v190, L_codeend-{KN}-4, v190
        global_load_dword v188, v190, s[68:69]""")

def emit_prep_compute(a):
    a(f"""v_sub_u32 v11, 31, v2
    v_lshlrev_b32 v12, 2, v1
    v_xor_b32 v11, v11, v12
    v_lshlrev_b32 v11, 2, v11
    v_lshlrev_b32 v13, 10, v1
    v_add_u32 v11, v11, v13
    v_add_u32 v11, {PL}, v11
    v_xor_b32 v12, v2, v12
    v_lshlrev_b32 v12, 2, v12
    v_add_u32 v12, v12, v13
    v_add_u32 v12, {PL + 8192}, v12
    """)
    a(f"s_waitcnt vmcnt({(18 if UPFRONT == 1 else 13) if UPFRONT else 0})")
    for j in range(8):
        a(f"""v_lshlrev_b32 v{80+j}, 16, v{44+2*j}
        v_and_b32 v{88+j}, 0xffff0000, v{44+2*j}
        v_lshlrev_b32 v{96+j}, 16, v{45+2*j}
        v_and_b32 v{104+j}, 0xffff0000, v{45+2*j}""")
    a(f"s_waitcnt vmcnt({(18 if UPFRONT == 1 else 13) if UPFRONT else 0})")
    stamp(a, 1)
    for i in range(5):
        for p in range(4):
            a(f"""v_lshlrev_b32 v{112+8*i+2*p}, 16, v{16+4*i+p}
            v_and_b32 v{113+8*i+2*p}, 0xffff0000, v{16+4*i+p}""")
    for row in range(2):
        for p in range(4):
            d = 152 + 8 * row + 2 * p
            a(f"v_pk_mul_f32 v[{d}:{d+1}], v[{112+8*row+2*p}:{113+8*row+2*p}], v[{104+2*p}:{105+2*p}]")
    for tt, tap in ((1, 2), (2, 1), (3, 0)):
        for row in range(2):
            for p in range(4):
                d = 152 + 8 * row + 2 * p
                k = 112 + 8 * (row + tt) + 2 * p
                s_ = 80 + 8 * tap + 2 * p
                a(f"v_pk_fma_f32 v[{d}:{d+1}], v[{k}:{k+1}], v[{s_}:{s_+1}], v[{d}:{d+1}]")
    for row in range(2):
        for p in range(4):
            a(f"""v_lshlrev_b32 v{112+8*row+2*p}, 16, v{36+4*row+p}
            v_and_b32 v{113+8*row+2*p}, 0xffff0000, v{36+4*row+p}""")
    for row in range(2):
        for p in range(4):
            d = 152 + 8 * row + 2 * p
            a(f"v_pk_mul_f32 v[{d}:{d+1}], v[{d}:{d+1}], v[{112+8*row+2*p}:{113+8*row+2*p}]")
    for j in range(8):
        a(f"v_cvt_pk_bf16_f32 v{80+j}, v{160+j}, v{152+j}")
    for j in range(8):
        a(f"ds_write_b32 v11, v{80+j} offset:{128*j}")
    a(f"""v_lshrrev_b32 v3, 6, v0
    v_xor_b32 v5, v1, v3
    v_lshlrev_b32 v5, 4, v5
    v_lshlrev_b32 v6, 7, v2
    v_add_u32 v5, v5, v6
    v_add_u32 v5, {PL}, v5
    v_xor_b32 v7, 64, v5
    {PGs('s36')}
    s_lshl_b32 s36, s36, 18
    {PTs('s37', 's38')}
    s_lshl_b32 s37, s37, 7
    s_sub_u32 s4, s36, s37
    s_add_u32 s4, s4, {WS['XR'] + 1984*2}
    s_add_u32 s5, s36, s37
    s_add_u32 s5, s5, {WS['QT']}
    v_lshlrev_b32 v8, 12, v2
    v_lshlrev_b32 v15, 4, v1
    v_add_u32 v8, v8, v15
    v_add_u32 v15, 0x20000, v8
    s_waitcnt lgkmcnt(0)
    s_barrier
    ds_read_b128 v[16:19], v5
    ds_read_b128 v[20:23], v7 offset:4096
    s_waitcnt lgkmcnt(1)
    buffer_store_dwordx4 v[16:19], v8, {WSR}, s4 offen {LS('xr')}
    s_waitcnt lgkmcnt(0)
    buffer_store_dwordx4 v[20:23], v15, {WSR}, s4 offen {LS('xr')}""")
    stamp(a, 2)
    if UPFRONT != 1: emit_prep_loadsW(a)
    if not UPFRONT: emit_prep_loadsQ(a)
    L = a.newlabel("sg1")
    a(f"""s_waitcnt vmcnt({(0 if UPFRONT == 1 else 5) if UPFRONT else 7})
    s_barrier
    s_cmp_lg_u32 s{S_W}, 0
    s_cbranch_scc1 {L}
    s_add_u32 s36, s{S_GEN}, 1
    v_mov_b32 v16, s36
    v_mov_b32 v17, s{S_FLAG}
    s_mov_b64 exec, 1
    buffer_store_dword v16, v17, {WSR}, 0 offen sc1
    s_mov_b64 exec, -1
    {L}:""")
    stamp(a, 3)
    if FINE == 'F': fstamp(a, 9)
    if not UPFRONT:
        emit_statrows(a)
        emit_prep_loads2(a)
    NPF = 0
    if UPFRONT == 2:
        if FINE == 'F': fstamp(a, 6)
        pass
        if FINE == 'F': fstamp(a, 7)
        a(f"""s_mul_i32 s62, s66, {CB}
        v_lshlrev_b32 v4, 4, v9
        s_lshl_b32 s36, s67, 11
        s_add_u32 s36, s36, s62
        s_add_u32 s36, s36, 32
        v_add_u32 v4, s36, v4""")
        for p in range(2):
            L0, L2, L4 = 192 + 12 * p, 196 + 12 * p, 200 + 12 * p
            for j in range(4):
                a(f"v_alignbit_b32 v{112+8*p+j}, v{L2+j}, v{L0+j}, 16")
                a(f"v_alignbit_b32 v{116+8*p+j}, v{L4+j}, v{L2+j}, 16")
            a(f"""ds_write_b128 v4, v[{L0}:{L0+3}] offset:{1024*p}
            ds_write_b128 v4, v[{112+8*p}:{115+8*p}] offset:{1024*p + HCS}
            ds_write_b128 v4, v[{L2}:{L2+3}] offset:{1024*p + 2*HCS}
            ds_write_b128 v4, v[{116+8*p}:{119+8*p}] offset:{1024*p + 3*HCS}""")
        a(f"""v_lshl_or_b32 v216, v217, 16, v216
        v_mul_u32_u24 v13, {HCS}, v219
        v_lshl_add_u32 v13, v220, 2, v13
        v_add_u32 v13, s62, v13
        ds_write_b32 v13, v216
        v_lshlrev_b32 v20, 16, v218
        v_mov_b32 v92, 0
        v_mov_b32 v93, 0
        v_mov_b32 v94, 0
        v_mov_b32 v95, 0
        v_and_b32 v16, 31, v9
        v_lshlrev_b32 v16, 4, v16
        v_add_u32 v16, s62, v16
        ds_write_b128 v16, v[92:95] offset:{XRO+4096}
        s_waitcnt lgkmcnt(0)""")
        if FINE == 'F': fstamp(a, 2)
        pass
        if FINE == 'F': fstamp(a, 3)
        a("s_mov_b32 s36, 0x05040100\ns_mov_b32 s37, 0x07060302")
        for p in range(4):
            a(f"""v_perm_b32 v{88+2*p}, v{64+p}, v{60+p}, s36
            v_perm_b32 v{89+2*p}, v{64+p}, v{60+p}, s37""")
        for j in range(8):
            a(f"ds_write_b32 v12, v{88+j} offset:{128*j}")
        if FINE == 'F': fstamp(a, 4)
        pass
        if FINE == 'F': fstamp(a, 5)
        a("v_mov_b32 v14, 0x3f803f80")
        for row in range(2):
            su, sq = 96 + 2 * row, 97 + 2 * row
            a(f"v_mov_b32 v{su}, 0\nv_mov_b32 v{sq}, 0")
        for p in range(4):
            for row in range(2):
                su, sq = 96 + 2 * row, 97 + 2 * row; b = 68 + 4 * row
                a(f"v_dot2_f32_bf16 v{su}, v{b+p}, v14, v{su}\nv_dot2_f32_bf16 v{sq}, v{b+p}, v{b+p}, v{sq}")
        for r in (8, 4, 2, 1):
            for v in (96, 97, 98, 99):
                a(f"v_add_f32_dpp v{v}, v{v}, v{v} row_ror:{r} row_mask:0xf bank_mask:0xf")
        for k, v in enumerate((96, 97, 98, 99)): a(f"v_mov_b32 v{100+k}, v{v}")
        for k, v in enumerate((96, 97, 98, 99)): a(f"v_permlane16_swap_b32 v{v}, v{100+k}")
        for k, v in enumerate((96, 97, 98, 99)): a(f"v_add_f32 v{v}, v{v}, v{100+k}")
        for k, v in enumerate((96, 97, 98, 99)): a(f"v_mov_b32 v{100+k}, v{v}")
        for k, v in enumerate((96, 97, 98, 99)): a(f"v_permlane32_swap_b32 v{v}, v{100+k}")
        for k, v in enumerate((96, 97, 98, 99)): a(f"v_add_f32 v{v}, v{v}, v{100+k}")
        ln_core(a, 96, 97); ln_core(a, 98, 99)
        a(f"""v_rcp_f32 v102, v97
        v_rcp_f32 v103, v99
        v_mul_f32 v104, -v96, v102
        v_mul_f32 v105, -v98, v103
        s_lshl_b32 s36, s2, 5
        s_lshl_b32 s37, s{S_W}, 3
        s_add_u32 s11, s36, s37
        s_add_u32 s11, s11, {WS['RS0']}""")
        a(f"""v_mov_b32 v101, s11
        s_mov_b32 s37, {WS['C0']-WS['RS0']}
        s_mov_b64 exec, 1
        buffer_store_dwordx2 v[102:103], v101, {WSR}, 0 offen sc1
        buffer_store_dwordx2 v[104:105], v101, {WSR}, s37 offen sc1
        s_mov_b64 exec, -1
        s_waitcnt lgkmcnt(0)
        s_barrier
        ds_read_b128 v[72:75], v5 offset:8192
        ds_read_b128 v[76:79], v7 offset:{8192+4096}
        s_waitcnt lgkmcnt(1)
        buffer_store_dwordx4 v[72:75], v8, {WSR}, s5 offen sc1
        s_waitcnt lgkmcnt(0)
        buffer_store_dwordx4 v[76:79], v15, {WSR}, s5 offen sc1""")
        a("s_waitcnt vmcnt(4)\ns_barrier")
        if FINE == 'F': fstamp(a, 1)
        a(f"""v_lshrrev_b32 v178, 4, v9
        v_bfe_u32 v179, v9, 2, 2
        v_and_b32 v180, 3, v9
        v_lshl_add_u32 v181, v178, 4, v179
        v_mul_u32_u24 v181, 96, v181
        v_and_b32 v182, 1, v180
        v_lshl_add_u32 v181, v182, 3, v181
        v_lshrrev_b32 v182, 1, v180
        v_mul_u32_u24 v182, {W3OFF}, v182
        v_add_u32 v181, v181, v182
        v_lshlrev_b32 v183, 4, v9""")
        for i in range(3):
            a(f"""s_mul_i32 s36, s{S_W}, 3
            s_add_u32 s36, s36, {i}
            s_lshr_b32 s37, s36, 1
            s_and_b32 s36, s36, 1
            s_lshl_b32 s38, s37, 4
            s_mul_i32 s39, s36, {8*96}
            s_add_u32 s38, s38, s39
            s_add_u32 s38, s38, {PW}
            v_add_u32 v182, s38, v181
            ds_read_b64_tr_b16 v[{144+4*i}:{145+4*i}], v182
            ds_read_b64_tr_b16 v[{146+4*i}:{147+4*i}], v182 offset:{4*96}
            s_mul_i32 s38, s61, 6
            s_add_u32 s38, s38, s37
            s_lshl_b32 s39, s38, 14
            s_lshl_b32 s37, s60, 11
            s_add_u32 s39, s39, s37
            s_lshl_b32 s36, s36, 10
            s_add_u32 s39, s39, s36
            s_add_u32 s39, s39, {WS['WF13']}
            s_cmp_lt_u32 s38, 172
            s_cselect_b32 s{6+i}, s39, {INV}""")
        a(f"""v_lshl_add_u32 v181, v178, 2, v179
        v_lshlrev_b32 v181, 7, v181
        v_lshl_add_u32 v181, v180, 5, v181
        s_lshl_b32 s36, s{S_W}, 3
        s_add_u32 s36, s36, {PW + 2*6144 + 64}
        v_add_u32 v181, s36, v181""")
        for i in range(2):
            a(f"""ds_read_b64_tr_b16 v[{156+4*i}:{157+4*i}], v181 offset:{4096*i}
            ds_read_b64_tr_b16 v[{158+4*i}:{159+4*i}], v181 offset:{4096*i + 2048}
            {PTs('s36', 's37')}
            s_add_u32 s36, s36, {32*i}
            {PGs('s37')}
            s_mul_i32 s37, s37, 43
            s_add_u32 s37, s37, s36
            s_lshl_b32 s37, s37, 12
            s_lshl_b32 s38, s{S_W}, 10
            s_add_u32 s37, s37, s38
            s_add_u32 s37, s37, {WS['WF2']}
            s_cmp_lt_u32 s36, 43
            s_cselect_b32 s{9+i}, s37, {INV}""")
        for i in range(5):
            a(f"s_waitcnt lgkmcnt({2*(4-i)})\nbuffer_store_dwordx4 {vr(144+4*i)}, v183, {WSR}, s{6+i} offen sc1")
        a("s_waitcnt lgkmcnt(0)")
        stamp(a, 4)
        return
    a(f"s_waitcnt vmcnt({2 + 2 + 9 + NPF})\ns_barrier")
    if FINE == 'F': fstamp(a, 1)
    a(f"""v_lshrrev_b32 v178, 4, v9
    v_bfe_u32 v179, v9, 2, 2
    v_and_b32 v180, 3, v9
    v_lshl_add_u32 v181, v178, 4, v179
    v_mul_u32_u24 v181, 96, v181
    v_and_b32 v182, 1, v180
    v_lshl_add_u32 v181, v182, 3, v181
    v_lshrrev_b32 v182, 1, v180
    v_mul_u32_u24 v182, {W3OFF}, v182
    v_add_u32 v181, v181, v182
    v_lshlrev_b32 v183, 4, v9""")
    for i in range(3):
        a(f"""s_mul_i32 s36, s{S_W}, 3
        s_add_u32 s36, s36, {i}
        s_lshr_b32 s37, s36, 1
        s_and_b32 s36, s36, 1
        s_lshl_b32 s38, s37, 4
        s_mul_i32 s39, s36, {8*96}
        s_add_u32 s38, s38, s39
        s_add_u32 s38, s38, {PW}
        v_add_u32 v182, s38, v181
        ds_read_b64_tr_b16 v[{144+4*i}:{145+4*i}], v182
        ds_read_b64_tr_b16 v[{146+4*i}:{147+4*i}], v182 offset:{4*96}
        s_mul_i32 s38, s61, 6
        s_add_u32 s38, s38, s37
        s_lshl_b32 s39, s38, 14
        s_lshl_b32 s37, s60, 11
        s_add_u32 s39, s39, s37
        s_lshl_b32 s36, s36, 10
        s_add_u32 s39, s39, s36
        s_add_u32 s39, s39, {WS['WF13']}
        s_cmp_lt_u32 s38, 172
        s_cselect_b32 s{6+i}, s39, {INV}""")
    a(f"""v_lshl_add_u32 v181, v178, 2, v179
    v_lshlrev_b32 v181, 7, v181
    v_lshl_add_u32 v181, v180, 5, v181
    s_lshl_b32 s36, s{S_W}, 3
    s_add_u32 s36, s36, {PW + 2*6144 + 64}
    v_add_u32 v181, s36, v181""")
    for i in range(2):
        a(f"""ds_read_b64_tr_b16 v[{156+4*i}:{157+4*i}], v181 offset:{4096*i}
        ds_read_b64_tr_b16 v[{158+4*i}:{159+4*i}], v181 offset:{4096*i + 2048}
        {PTs('s36', 's37')}
        s_add_u32 s36, s36, {32*i}
        {PGs('s37')}
        s_mul_i32 s37, s37, 43
        s_add_u32 s37, s37, s36
        s_lshl_b32 s37, s37, 12
        s_lshl_b32 s38, s{S_W}, 10
        s_add_u32 s37, s37, s38
        s_add_u32 s37, s37, {WS['WF2']}
        s_cmp_lt_u32 s36, 43
        s_cselect_b32 s{9+i}, s37, {INV}""")
    for i in range(5):
        a(f"s_waitcnt lgkmcnt({2*(4-i)})\nbuffer_store_dwordx4 {vr(144+4*i)}, v183, {WSR}, s{6+i} offen sc1")
    if FINE == 'F': fstamp(a, 2)
    a(f"s_waitcnt vmcnt({2 + 9 + NPF + 5})")
    if FINE == 'F': fstamp(a, 3)
    a("s_mov_b32 s36, 0x05040100\ns_mov_b32 s37, 0x07060302")
    for p in range(4):
        a(f"""v_perm_b32 v{88+2*p}, v{64+p}, v{60+p}, s36
        v_perm_b32 v{89+2*p}, v{64+p}, v{60+p}, s37""")
    for j in range(8):
        a(f"ds_write_b32 v12, v{88+j} offset:{128*j}")
    if FINE == 'F': fstamp(a, 4)
    a(f"s_waitcnt vmcnt({9 + NPF + 5})")
    if FINE == 'F': fstamp(a, 5)
    a("v_mov_b32 v14, 0x3f803f80")
    for row in range(2):
        su, sq = 96 + 2 * row, 97 + 2 * row
        a(f"v_mov_b32 v{su}, 0\nv_mov_b32 v{sq}, 0")
    for p in range(4):
        for row in range(2):
            su, sq = 96 + 2 * row, 97 + 2 * row; b = 68 + 4 * row
            a(f"v_dot2_f32_bf16 v{su}, v{b+p}, v14, v{su}\nv_dot2_f32_bf16 v{sq}, v{b+p}, v{b+p}, v{sq}")
    for r in (8, 4, 2, 1):
        for v in (96, 97, 98, 99):
            a(f"v_add_f32_dpp v{v}, v{v}, v{v} row_ror:{r} row_mask:0xf bank_mask:0xf")
    for k, v in enumerate((96, 97, 98, 99)): a(f"v_mov_b32 v{100+k}, v{v}")
    for k, v in enumerate((96, 97, 98, 99)): a(f"v_permlane16_swap_b32 v{v}, v{100+k}")
    for k, v in enumerate((96, 97, 98, 99)): a(f"v_add_f32 v{v}, v{v}, v{100+k}")
    for k, v in enumerate((96, 97, 98, 99)): a(f"v_mov_b32 v{100+k}, v{v}")
    for k, v in enumerate((96, 97, 98, 99)): a(f"v_permlane32_swap_b32 v{v}, v{100+k}")
    for k, v in enumerate((96, 97, 98, 99)): a(f"v_add_f32 v{v}, v{v}, v{100+k}")
    ln_core(a, 96, 97); ln_core(a, 98, 99)
    a(f"""v_rcp_f32 v102, v97
    v_rcp_f32 v103, v99
    v_mul_f32 v104, -v96, v102
    v_mul_f32 v105, -v98, v103
    s_lshl_b32 s36, s2, 5
    s_lshl_b32 s37, s{S_W}, 3
    s_add_u32 s11, s36, s37
    s_add_u32 s11, s11, {WS['RS0']}""")
    a(f"""v_mov_b32 v101, s11
    s_mov_b32 s37, {WS['C0']-WS['RS0']}
    s_mov_b64 exec, 1
    buffer_store_dwordx2 v[102:103], v101, {WSR}, 0 offen sc1
    buffer_store_dwordx2 v[104:105], v101, {WSR}, s37 offen sc1
    s_mov_b64 exec, -1
    s_waitcnt lgkmcnt(0)
    s_barrier
    ds_read_b128 v[72:75], v5 offset:8192
    ds_read_b128 v[76:79], v7 offset:{8192+4096}
    s_waitcnt lgkmcnt(1)
    buffer_store_dwordx4 v[72:75], v8, {WSR}, s5 offen sc1
    s_waitcnt lgkmcnt(0)
    buffer_store_dwordx4 v[76:79], v15, {WSR}, s5 offen sc1""")
    if FINE == 'F': fstamp(a, 6)
    a("s_waitcnt vmcnt(9)")
    if FINE == 'F': fstamp(a, 7)
    a(f"""s_mul_i32 s62, s66, {CB}
    v_lshlrev_b32 v4, 4, v9
    s_lshl_b32 s36, s67, 11
    s_add_u32 s36, s36, s62
    s_add_u32 s36, s36, 32
    v_add_u32 v4, s36, v4""")
    for p in range(2):
        L0, L2, L4 = 192 + 12 * p, 196 + 12 * p, 200 + 12 * p
        for j in range(4):
            a(f"v_alignbit_b32 v{112+8*p+j}, v{L2+j}, v{L0+j}, 16")
            a(f"v_alignbit_b32 v{116+8*p+j}, v{L4+j}, v{L2+j}, 16")
        a(f"""ds_write_b128 v4, v[{L0}:{L0+3}] offset:{1024*p}
        ds_write_b128 v4, v[{112+8*p}:{115+8*p}] offset:{1024*p + HCS}
        ds_write_b128 v4, v[{L2}:{L2+3}] offset:{1024*p + 2*HCS}
        ds_write_b128 v4, v[{116+8*p}:{119+8*p}] offset:{1024*p + 3*HCS}""")
    a(f"""v_lshl_or_b32 v216, v217, 16, v216
    v_mul_u32_u24 v13, {HCS}, v219
    v_lshl_add_u32 v13, v220, 2, v13
    v_add_u32 v13, s62, v13
    ds_write_b32 v13, v216
    v_lshlrev_b32 v20, 16, v218
    v_mov_b32 v92, 0
    v_mov_b32 v93, 0
    v_mov_b32 v94, 0
    v_mov_b32 v95, 0
    v_and_b32 v16, 31, v9
    v_lshlrev_b32 v16, 4, v16
    v_add_u32 v16, s62, v16
    ds_write_b128 v16, v[92:95] offset:{XRO+4096}
    s_waitcnt lgkmcnt(0)""")
    stamp(a, 4)
    if FINE == 'F': fstamp(a, 8)

def emit_conv(a, hooks):
    a("v_and_b32 v1, 63, v0")
    def su1():
        if SPREAD:
            a(f"""v_and_b32 v2, 7, v1
            v_lshlrev_b32 v2, 5, v2
            v_bfe_u32 v3, v1, 3, 2
            v_lshl_add_u32 v2, v3, 3, v2
            v_add_u32 v2, s60, v2
            v_lshlrev_b32 v2, 6, v2
            v_add_u32 v2, {WS['SYNC'] + SYNC_FLAGS}, v2""")
        else:
            a(f"""v_and_b32 v2, 31, v1
            s_lshl_b32 s36, s60, 5
            v_add_u32 v2, s36, v2
            v_lshlrev_b32 v2, 6, v2
            v_add_u32 v2, {WS['SYNC'] + SYNC_FLAGS}, v2""")
    signal(a, 2)
    wg_wait(a, su1, 2, 1, 1, 64)
    stamp(a, 5)
    a(f"""v_lshlrev_b32 v10, 4, v1
    s_lshl_b32 s36, s67, 11
    s_add_u32 s37, s65, s36
    s_add_u32 s37, s37, {WS['XR']}
    s_add_u32 s38, s62, s36
    s_add_u32 s38, s38, {XRO}
    s_mov_b32 m0, s38
    buffer_load_dwordx4 v10, {WSR}, s37 offen sc1 lds
    s_add_u32 s38, s38, 1024
    s_add_u32 s37, s37, 1024
    s_mov_b32 m0, s38
    buffer_load_dwordx4 v10, {WSR}, s37 offen sc1 lds
    v_and_b32 v11, 15, v1
    v_lshrrev_b32 v12, 4, v1
    v_lshlrev_b32 v13, 4, v11
    v_lshl_add_u32 v13, v12, 2, v13
    s_lshl_b32 s36, s67, 10
    v_add_u32 v13, s36, v13
    v_lshlrev_b32 v14, 1, v13
    v_lshlrev_b32 v15, 2, v13
    v_lshlrev_b32 v22, 6, v1
    v_add_u32 v22, {WS['SYNC'] + SYNC_FLAGS}, v22""")
    a(f"""v_add_u32 v17, 1, v11
    v_and_b32 v18, 3, v17
    v_mul_u32_u24 v18, {HCS}, v18
    v_lshrrev_b32 v17, 2, v17
    v_lshlrev_b32 v17, 3, v17
    v_lshl_add_u32 v17, v12, 4, v17
    v_add_u32 v17, v17, v18
    s_lshl_b32 s36, s67, 8
    s_add_u32 s37, s36, s62
    v_add_u32 v17, s37, v17
    v_lshlrev_b32 v18, 5, v11
    v_lshlrev_b32 v19, 4, v12
    v_sub_u32 v18, v19, v18
    s_add_u32 s37, s37, {XRO + 480}
    v_add_u32 v18, s37, v18""")
    for r in range(32, 64): a(f"v_mov_b32 v{r}, 0")
    a(f"s_waitcnt vmcnt(0)\ns_barrier")
    stamp(a, 6)
    pre = []
    for i in range(4):
        pre.append(f"buffer_load_dwordx2 v[{192+2*i}:{193+2*i}], v14, {WSR}, s10 offen offset:{512*i} sc1")
    for i in range(4):
        pre.append(f"buffer_load_dwordx4 v[{200+4*i}:{203+4*i}], v15, {WSR}, s8 offen offset:{1024*i} sc1")
        pre.append(f"buffer_load_dwordx4 v[{216+4*i}:{219+4*i}], v15, {WSR}, s9 offen offset:{1024*i} sc1")
    def load_frags(setbase, bi):
        ops = []
        for x in range(8):
            A = setbase + 4 * x
            ops.append(f"ds_read_b64 v[{A}:{A+1}], v17 offset:{512*x + 64*bi}")
            ops.append(f"ds_read_b64 v[{A+2}:{A+3}], v17 offset:{512*x + 64*bi + 8}")
            B = setbase + 32 + 4 * x
            ops.append(f"ds_read_b128 v[{B}:{B+3}], v18 offset:{512*(7-x) + 64*bi}")
        return ops
    sets = (64, 128)
    for op in load_frags(sets[0], 0): a(op)
    extra = []
    for bi in range(4):
        cur = sets[bi & 1]
        nxt = load_frags(sets[(bi + 1) & 1], bi + 1) if bi < 3 else []
        if bi == 0:
            for i in range(4):
                if i == 0: a(f"buffer_load_dword v24, v22, {WSR}, 0 offen sc1")
                else: a(f"s_movk_i32 s39, {4096*i}\nbuffer_load_dword v{24+i}, v22, {WSR}, s39 offen sc1")
            if HALF:
                a("s_lshl_b32 s38, s22, 3")
                member_flag_off(a, 23, "s38", 8)
            else:
                member_flag_off(a, 23, "0", 16)
            a(f"buffer_load_dword v28, v23, {WSR}, 0 offen offset:4 sc1")
        if bi == CHK1:
            a(f"""s_waitcnt vmcnt(0)
            v_cmp_eq_u32 vcc, s{S_IDW}, v28
            s_cmp_eq_u64 vcc, -1
            s_cselect_b32 s{S_LOC}, 1, 0""")
            flagcheck(a, 2, (24, 25, 26, 27), 22, "L_c_ok1", tmp=(29, 30))
            a(f"s_mov_b32 s8, {WS['RS0']}\ns_mov_b32 s9, {WS['C0']}\ns_add_u32 s10, s65, {WS['QT']}")
            extra0 = pre
            extra = pre + list(hooks['conv_loop_extra'])
        a("s_waitcnt lgkmcnt(0)")
        pairs = sorted([(jt, aa) for jt in range(8) for aa in range(jt + 1)], key=lambda p: (p[1], p[0]))
        k = 0
        for idx, (jt, aa) in enumerate(pairs):
            A = cur + 4 * aa; B = cur + 32 + 4 * (jt - aa); C = 32 + 4 * jt
            a(f"v_mfma_f32_16x16x32_bf16 v[{C}:{C+3}], v[{A}:{A+3}], v[{B}:{B+3}], v[{C}:{C+3}]")
            if idx < 24 and k < len(nxt):
                a(nxt[k]); k += 1
            if extra and idx % PACE == PACE - 1 or (extra and bi == CHK1 and idx < 12):
                a(extra.pop(0))
    for op in extra: a(op)
    stamp(a, 7)
    a(f"""v_lshlrev_b32 v4, 4, v1
    s_lshl_b32 s36, s{S_W}, 12
    s_add_u32 s36, s36, {EXO}
    v_add_u32 v5, s36, v4
    s_xor_b32 s36, s36, 4096
    v_add_u32 v6, s36, v4
    s_cmp_eq_u32 s67, 0
    s_cbranch_scc0 L_c_x1""")
    for half in range(2):
        own, oth = (32, 48) if half == 0 else (48, 32)
        for i in range(4): a(f"ds_write_b128 v5, v[{oth+4*i}:{oth+4*i+3}] offset:{1024*i}")
        a("s_waitcnt lgkmcnt(0)\ns_barrier")
        for i in range(4): a(f"ds_read_b128 v[{80+4*i}:{83+4*i}], v6 offset:{1024*i}")
        a("s_waitcnt lgkmcnt(0)")
        for i in range(4):
            for h in range(2):
                a(f"v_pk_add_f32 v[{64+4*i+2*h}:{65+4*i+2*h}], v[{own+4*i+2*h}:{own+4*i+2*h+1}], v[{80+4*i+2*h}:{81+4*i+2*h}]")
        if half == 0:
            a("s_branch L_c_x2\nL_c_x1:")
    a.label("L_c_x2")
    a(f"""v_lshlrev_b32 v7, 5, v11
    v_lshl_add_u32 v7, v12, 3, v7
    s_lshl_b32 s36, s67, 11
    s_sub_u32 s37, s62, s36
    s_add_u32 s37, s37, {XRO + 4088 - 1536}
    v_sub_u32 v7, s37, v7""")
    for i in range(4): a(f"ds_read_b64 v[{96+2*i}:{97+2*i}], v7 offset:{512*(3-i)}")
    a(f"""s_lshr_b32 s39, s65, 12
    s_mul_i32 s39, s39, {XP}
    s_add_u32 s38, s39, {WS['YT']}
    s_add_u32 s39, s39, {WS['X1T']}
    s_waitcnt vmcnt({hooks['n_conv_total_w']}) lgkmcnt(0)""")
    for op in hooks['conv_epi_extra']: a(op)
    O = lambda i: 64 + 4 * i
    T = lambda i: 104 + 10 * i
    for i in range(4):
        kv = 96 + 2 * i
        a(f"""v_and_b32 v{T(i)}, 0xffff0000, v{kv+1}
        v_lshlrev_b32 v{T(i)+1}, 16, v{kv+1}
        v_and_b32 v{T(i)+2}, 0xffff0000, v{kv}
        v_lshlrev_b32 v{T(i)+3}, 16, v{kv}""")
    for i in range(4):
        a(f"""v_pk_fma_f32 v[{O(i)}:{O(i)+1}], v[{T(i)}:{T(i)+1}], v[20:21], v[{O(i)}:{O(i)+1}] op_sel_hi:[1,0,1]
        v_pk_fma_f32 v[{O(i)+2}:{O(i)+3}], v[{T(i)+2}:{T(i)+3}], v[20:21], v[{O(i)+2}:{O(i)+3}] op_sel_hi:[1,0,1]""")
    for i in range(4):
        a(f"""v_cvt_pk_bf16_f32 v{T(i)+4}, v{O(i)}, v{O(i)+1}
        v_cvt_pk_bf16_f32 v{T(i)+5}, v{O(i)+2}, v{O(i)+3}""")
    for i in range(4):
        a(f"""v_lshlrev_b32 v{T(i)}, 16, v{192+2*i}
        v_and_b32 v{T(i)+1}, 0xffff0000, v{192+2*i}
        v_lshlrev_b32 v{T(i)+2}, 16, v{193+2*i}
        v_and_b32 v{T(i)+3}, 0xffff0000, v{193+2*i}
        buffer_store_dwordx2 v[{T(i)+4}:{T(i)+5}], v14, {WSR}, s38 offen offset:{512*i} sc1""")
    for i in range(4):
        a(f"""v_lshlrev_b32 v{O(i)}, 16, v{T(i)+4}
        v_and_b32 v{O(i)+1}, 0xffff0000, v{T(i)+4}
        v_lshlrev_b32 v{O(i)+2}, 16, v{T(i)+5}
        v_and_b32 v{O(i)+3}, 0xffff0000, v{T(i)+5}
        v_pk_fma_f32 v[{T(i)+6}:{T(i)+7}], v[{T(i)}:{T(i)+1}], v[{200+4*i}:{201+4*i}], v[{216+4*i}:{217+4*i}]
        v_pk_fma_f32 v[{T(i)+8}:{T(i)+9}], v[{T(i)+2}:{T(i)+3}], v[{202+4*i}:{203+4*i}], v[{218+4*i}:{219+4*i}]""")
    for i in range(4):
        a(f"""v_pk_fma_f32 v[{T(i)+6}:{T(i)+7}], v[{T(i)+6}:{T(i)+7}], v[{O(i)}:{O(i)+1}], v[{T(i)}:{T(i)+1}]
        v_pk_fma_f32 v[{T(i)+8}:{T(i)+9}], v[{T(i)+8}:{T(i)+9}], v[{O(i)+2}:{O(i)+3}], v[{T(i)+2}:{T(i)+3}]""")
    for i in range(4):
        a(f"""v_cvt_pk_bf16_f32 v{O(i)}, v{T(i)+6}, v{T(i)+7}
        v_cvt_pk_bf16_f32 v{O(i)+1}, v{T(i)+8}, v{T(i)+9}
        buffer_store_dwordx2 v[{O(i)}:{O(i)+1}], v14, {WSR}, s39 offen offset:{512*i} sc1""")
    stamp(a, 8)


def blk_addr(a):
    a(f"""v_sub_u32 v11, 31, v2
    v_lshlrev_b32 v12, 2, v1
    v_xor_b32 v11, v11, v12
    v_lshlrev_b32 v11, 2, v11
    v_lshlrev_b32 v13, 10, v1
    v_add_u32 v11, v11, v13
    v_add_u32 v11, {PL}, v11
    v_xor_b32 v12, v2, v12
    v_lshlrev_b32 v12, 2, v12
    v_add_u32 v12, v12, v13
    v_add_u32 v12, {PL + 8192}, v12
    """)

def blk_skun(a):
    for j in range(8):
        a(f"""v_lshlrev_b32 v{80+j}, 16, v{44+2*j}
        v_and_b32 v{88+j}, 0xffff0000, v{44+2*j}
        v_lshlrev_b32 v{96+j}, 16, v{45+2*j}
        v_and_b32 v{104+j}, 0xffff0000, v{45+2*j}""")

def blk_kv(a):
    for i in range(5):
        for p in range(4):
            a(f"""v_lshlrev_b32 v{112+8*i+2*p}, 16, v{16+4*i+p}
            v_and_b32 v{113+8*i+2*p}, 0xffff0000, v{16+4*i+p}""")
    for row in range(2):
        for p in range(4):
            d = 152 + 8 * row + 2 * p
            a(f"v_pk_mul_f32 v[{d}:{d+1}], v[{112+8*row+2*p}:{113+8*row+2*p}], v[{104+2*p}:{105+2*p}]")
    for tt, tap in ((1, 2), (2, 1), (3, 0)):
        for row in range(2):
            for p in range(4):
                d = 152 + 8 * row + 2 * p
                k = 112 + 8 * (row + tt) + 2 * p
                s_ = 80 + 8 * tap + 2 * p
                a(f"v_pk_fma_f32 v[{d}:{d+1}], v[{k}:{k+1}], v[{s_}:{s_+1}], v[{d}:{d+1}]")
    for row in range(2):
        for p in range(4):
            a(f"""v_lshlrev_b32 v{112+8*row+2*p}, 16, v{36+4*row+p}
            v_and_b32 v{113+8*row+2*p}, 0xffff0000, v{36+4*row+p}""")
    for row in range(2):
        for p in range(4):
            d = 152 + 8 * row + 2 * p
            a(f"v_pk_mul_f32 v[{d}:{d+1}], v[{d}:{d+1}], v[{112+8*row+2*p}:{113+8*row+2*p}]")
    for j in range(8):
        a(f"v_cvt_pk_bf16_f32 v{80+j}, v{160+j}, v{152+j}")
    for j in range(8):
        a(f"ds_write_b32 v11, v{80+j} offset:{128*j}")
    a(f"""v_lshrrev_b32 v3, 6, v0
    v_xor_b32 v5, v1, v3
    v_lshlrev_b32 v5, 4, v5
    v_lshlrev_b32 v6, 7, v2
    v_add_u32 v5, v5, v6
    v_add_u32 v5, {PL}, v5
    v_xor_b32 v7, 64, v5
    {PGs('s36')}
    s_lshl_b32 s36, s36, 18
    {PTs('s37', 's38')}
    s_lshl_b32 s37, s37, 7
    s_sub_u32 s4, s36, s37
    s_add_u32 s4, s4, {WS['XR'] + 1984*2}
    s_add_u32 s5, s36, s37
    s_add_u32 s5, s5, {WS['QT']}
    v_lshlrev_b32 v8, 12, v2
    v_lshlrev_b32 v15, 4, v1
    v_add_u32 v8, v8, v15
    v_add_u32 v15, 0x20000, v8
    s_waitcnt lgkmcnt(0)
    s_barrier
    ds_read_b128 v[16:19], v5
    ds_read_b128 v[20:23], v7 offset:4096
    s_waitcnt lgkmcnt(1)
    buffer_store_dwordx4 v[16:19], v8, {WSR}, s4 offen {LS('xr')}
    s_waitcnt lgkmcnt(0)
    buffer_store_dwordx4 v[20:23], v15, {WSR}, s4 offen {LS('xr')}""")

def blk_wtr(a):
    a(f"""v_lshrrev_b32 v178, 4, v9
    v_bfe_u32 v179, v9, 2, 2
    v_and_b32 v180, 3, v9
    v_lshl_add_u32 v181, v178, 4, v179
    v_mul_u32_u24 v181, 96, v181
    v_and_b32 v182, 1, v180
    v_lshl_add_u32 v181, v182, 3, v181
    v_lshrrev_b32 v182, 1, v180
    v_mul_u32_u24 v182, {W3OFF}, v182
    v_add_u32 v181, v181, v182
    v_lshlrev_b32 v183, 4, v9""")
    for i in range(3):
        a(f"""s_mul_i32 s36, s{S_W}, 3
        s_add_u32 s36, s36, {i}
        s_lshr_b32 s37, s36, 1
        s_and_b32 s36, s36, 1
        s_lshl_b32 s38, s37, 4
        s_mul_i32 s39, s36, {8*96}
        s_add_u32 s38, s38, s39
        s_add_u32 s38, s38, {PW}
        v_add_u32 v182, s38, v181
        ds_read_b64_tr_b16 v[{144+4*i}:{145+4*i}], v182
        ds_read_b64_tr_b16 v[{146+4*i}:{147+4*i}], v182 offset:{4*96}
        s_mul_i32 s38, s61, 6
        s_add_u32 s38, s38, s37
        s_lshl_b32 s39, s38, 14
        s_lshl_b32 s37, s60, 11
        s_add_u32 s39, s39, s37
        s_lshl_b32 s36, s36, 10
        s_add_u32 s39, s39, s36
        s_add_u32 s39, s39, {WS['WF13']}
        s_cmp_lt_u32 s38, 172
        s_cselect_b32 s{6+i}, s39, {INV}""")
    a(f"""v_lshl_add_u32 v181, v178, 2, v179
    v_lshlrev_b32 v181, 7, v181
    v_lshl_add_u32 v181, v180, 5, v181
    s_lshl_b32 s36, s{S_W}, 3
    s_add_u32 s36, s36, {PW + 2*6144 + 64}
    v_add_u32 v181, s36, v181""")
    for i in range(2):
        a(f"""ds_read_b64_tr_b16 v[{156+4*i}:{157+4*i}], v181 offset:{4096*i}
        ds_read_b64_tr_b16 v[{158+4*i}:{159+4*i}], v181 offset:{4096*i + 2048}
        {PTs('s36', 's37')}
        s_add_u32 s36, s36, {32*i}
        {PGs('s37')}
        s_mul_i32 s37, s37, 43
        s_add_u32 s37, s37, s36
        s_lshl_b32 s37, s37, 12
        s_lshl_b32 s38, s{S_W}, 10
        s_add_u32 s37, s37, s38
        s_add_u32 s37, s37, {WS['WF2']}
        s_cmp_lt_u32 s36, 43
        s_cselect_b32 s{9+i}, s37, {INV}""")

def blk_qperm(a):
    a("s_mov_b32 s36, 0x05040100\ns_mov_b32 s37, 0x07060302")
    for p in range(4):
        a(f"""v_perm_b32 v{88+2*p}, v{64+p}, v{60+p}, s36
        v_perm_b32 v{89+2*p}, v{64+p}, v{60+p}, s37""")
    for j in range(8):
        a(f"ds_write_b32 v12, v{88+j} offset:{128*j}")

def blk_stats(a):
    a("v_mov_b32 v14, 0x3f803f80")
    for row in range(2):
        su, sq = 96 + 2 * row, 97 + 2 * row
        a(f"v_mov_b32 v{su}, 0\nv_mov_b32 v{sq}, 0")
    for p in range(4):
        for row in range(2):
            su, sq = 96 + 2 * row, 97 + 2 * row; b = 68 + 4 * row
            a(f"v_dot2_f32_bf16 v{su}, v{b+p}, v14, v{su}\nv_dot2_f32_bf16 v{sq}, v{b+p}, v{b+p}, v{sq}")
    for r in (8, 4, 2, 1):
        for v in (96, 97, 98, 99):
            a(f"v_add_f32_dpp v{v}, v{v}, v{v} row_ror:{r} row_mask:0xf bank_mask:0xf")
    for k, v in enumerate((96, 97, 98, 99)): a(f"v_mov_b32 v{100+k}, v{v}")
    for k, v in enumerate((96, 97, 98, 99)): a(f"v_permlane16_swap_b32 v{v}, v{100+k}")
    for k, v in enumerate((96, 97, 98, 99)): a(f"v_add_f32 v{v}, v{v}, v{100+k}")
    for k, v in enumerate((96, 97, 98, 99)): a(f"v_mov_b32 v{100+k}, v{v}")
    for k, v in enumerate((96, 97, 98, 99)): a(f"v_permlane32_swap_b32 v{v}, v{100+k}")
    for k, v in enumerate((96, 97, 98, 99)): a(f"v_add_f32 v{v}, v{v}, v{100+k}")
    ln_core(a, 96, 97); ln_core(a, 98, 99)
    a(f"""v_rcp_f32 v102, v97
    v_rcp_f32 v103, v99
    v_mul_f32 v104, -v96, v102
    v_mul_f32 v105, -v98, v103
    s_lshl_b32 s36, s2, 5
    s_lshl_b32 s37, s{S_W}, 3
    s_add_u32 s11, s36, s37
    s_add_u32 s11, s11, {WS['RS0']}""")

def blk_hcop(a):
    a(f"""s_mul_i32 s62, s66, {CB}
    v_lshlrev_b32 v4, 4, v9
    s_lshl_b32 s36, s67, 11
    s_add_u32 s36, s36, s62
    s_add_u32 s36, s36, 32
    v_add_u32 v4, s36, v4""")
    for p in range(2):
        L0, L2, L4 = 192 + 12 * p, 196 + 12 * p, 200 + 12 * p
        for j in range(4):
            a(f"v_alignbit_b32 v{112+8*p+j}, v{L2+j}, v{L0+j}, 16")
            a(f"v_alignbit_b32 v{116+8*p+j}, v{L4+j}, v{L2+j}, 16")
        a(f"""ds_write_b128 v4, v[{L0}:{L0+3}] offset:{1024*p}
        ds_write_b128 v4, v[{112+8*p}:{115+8*p}] offset:{1024*p + HCS}
        ds_write_b128 v4, v[{L2}:{L2+3}] offset:{1024*p + 2*HCS}
        ds_write_b128 v4, v[{116+8*p}:{119+8*p}] offset:{1024*p + 3*HCS}""")
    a(f"""v_lshl_or_b32 v216, v217, 16, v216
    v_mul_u32_u24 v13, {HCS}, v219
    v_lshl_add_u32 v13, v220, 2, v13
    v_add_u32 v13, s62, v13
    ds_write_b32 v13, v216
    v_lshlrev_b32 v20, 16, v218
    v_mov_b32 v92, 0
    v_mov_b32 v93, 0
    v_mov_b32 v94, 0
    v_mov_b32 v95, 0
    v_and_b32 v16, 31, v9
    v_lshlrev_b32 v16, 4, v16
    v_add_u32 v16, s62, v16
    ds_write_b128 v16, v[92:95] offset:{XRO+4096}
    s_waitcnt lgkmcnt(0)""")


def w_stage_bulk(a):
    for k in range(7):
        a(f"""s_sub_u32 s36, s{S_W}, 1
        s_add_u32 s36, s36, {3*k}
        s_cmp_lt_u32 s36, 12
        s_cbranch_scc0 L_w2_{k}
        s_cmp_lt_u32 s36, 6
        s_cselect_b32 s4, s52, s54
        s_cselect_b32 s5, s53, s55
        s_cselect_b32 s37, 0, 6
        s_cselect_b32 s38, 0, {W3OFF}
        s_mov_b32 s6, {D*F*2}
        s_mov_b32 s7, 0x20000
        s_sub_u32 s36, s36, s37
        s_lshl_b32 s37, s36, 6
        v_add_u32 v177, s37, v9
        v_mul_u32_u24 v178, 43691, v177
        v_lshrrev_b32 v178, 18, v178
        v_mul_u32_u24 v179, 6, v178
        v_sub_u32 v179, v177, v179
        v_mul_u32_u24 v178, 2752, v178
        v_lshl_add_u32 v{184+(k%4)}, v179, 4, v178
        s_lshl_b32 s36, s36, 10
        s_add_u32 s36, s36, s38
        s_add_u32 s36, s36, {PW}
        s_mul_i32 s37, s60, {64*2752}
        s_mul_i32 s38, s61, 96
        s_add_u32 s37, s37, s38
        s_branch L_wgo_{k}
        L_w2_{k}:
        s_mov_b32 s4, s56
        s_mov_b32 s5, s57
        s_mov_b32 s6, {D*F*2}
        s_mov_b32 s7, 0x20000
        s_sub_u32 s36, s36, 12
        v_lshrrev_b32 v178, 3, v9
        v_and_b32 v179, 7, v9
        v_lshlrev_b32 v178, 10, v178
        v_lshl_add_u32 v{184+(k%4)}, v179, 4, v178
        {PTs('s37', 's38')}
        s_lshl_b32 s37, s37, 15
        {PGs('s38')}
        s_lshl_b32 s38, s38, 7
        s_add_u32 s37, s37, s38
        s_and_b32 s38, s36, 3
        s_lshl_b32 s38, s38, 13
        s_add_u32 s37, s37, s38
        s_lshr_b32 s38, s36, 2
        s_lshl_b32 s38, s38, 20
        s_add_u32 s37, s37, s38
        s_cmp_lt_u32 s36, 8
        s_cselect_b32 s37, s37, {INV}
        s_min_u32 s36, s36, 8
        s_lshl_b32 s36, s36, 10
        s_add_u32 s36, s36, {PW + 2*6144 + 64}
        L_wgo_{k}:
        s_mov_b32 m0, s36
        buffer_load_dwordx4 v{184+(k%4)}, s[4:7], s37 offen lds""")

def blk_wtr_hi(a):
    a(f"""v_lshrrev_b32 v250, 4, v9
    v_bfe_u32 v251, v9, 2, 2
    v_and_b32 v252, 3, v9
    v_lshl_add_u32 v253, v250, 4, v251
    v_mul_u32_u24 v253, 96, v253
    v_and_b32 v255, 1, v252
    v_lshl_add_u32 v253, v255, 3, v253
    v_lshrrev_b32 v255, 1, v252
    v_mul_u32_u24 v255, {W3OFF}, v255
    v_add_u32 v253, v253, v255
    v_lshlrev_b32 v254, 4, v9""")
    for i in range(3):
        a(f"""s_mul_i32 s36, s{S_W}, 3
        s_add_u32 s36, s36, {i}
        s_lshr_b32 s37, s36, 1
        s_and_b32 s36, s36, 1
        s_lshl_b32 s38, s37, 4
        s_mul_i32 s39, s36, {8*96}
        s_add_u32 s38, s38, s39
        s_add_u32 s38, s38, {PW}
        v_add_u32 v255, s38, v253
        ds_read_b64_tr_b16 v[{232+4*i}:{233+4*i}], v255
        ds_read_b64_tr_b16 v[{234+4*i}:{235+4*i}], v255 offset:{4*96}
        s_mul_i32 s38, s61, 6
        s_add_u32 s38, s38, s37
        s_lshl_b32 s39, s38, 14
        s_lshl_b32 s37, s60, 11
        s_add_u32 s39, s39, s37
        s_lshl_b32 s36, s36, 10
        s_add_u32 s39, s39, s36
        s_add_u32 s39, s39, {WS['WF13']}
        s_cmp_lt_u32 s38, 172
        s_cselect_b32 s{(6, 7, 12)[i]}, s39, {INV}""")
    a(f"""v_lshl_add_u32 v253, v250, 2, v251
    v_lshlrev_b32 v253, 7, v253
    v_lshl_add_u32 v253, v252, 5, v253
    s_lshl_b32 s36, s{S_W}, 3
    s_add_u32 s36, s36, {PW + 2*6144 + 64}
    v_add_u32 v253, s36, v253""")
    for i in range(2):
        a(f"""ds_read_b64_tr_b16 v[{244+4*i}:{245+4*i}], v253 offset:{4096*i}
        ds_read_b64_tr_b16 v[{246+4*i}:{247+4*i}], v253 offset:{4096*i + 2048}
        {PTs('s36', 's37')}
        s_add_u32 s36, s36, {32*i}
        {PGs('s37')}
        s_mul_i32 s37, s37, 43
        s_add_u32 s37, s37, s36
        s_lshl_b32 s37, s37, 12
        s_lshl_b32 s38, s{S_W}, 10
        s_add_u32 s37, s37, s38
        s_add_u32 s37, s37, {WS['WF2']}
        s_cmp_lt_u32 s36, 43
        s_cselect_b32 s{(13, 14)[i]}, s37, {INV}""")

def conv_epilogue(a):
    O = lambda i: 64 + 4 * i
    T = lambda i: 104 + 10 * i
    for i in range(4):
        kv = 96 + 2 * i
        a(f"""v_and_b32 v{T(i)}, 0xffff0000, v{kv+1}
        v_lshlrev_b32 v{T(i)+1}, 16, v{kv+1}
        v_and_b32 v{T(i)+2}, 0xffff0000, v{kv}
        v_lshlrev_b32 v{T(i)+3}, 16, v{kv}""")
    for i in range(4):
        a(f"""v_pk_fma_f32 v[{O(i)}:{O(i)+1}], v[{T(i)}:{T(i)+1}], v[20:21], v[{O(i)}:{O(i)+1}] op_sel_hi:[1,0,1]
        v_pk_fma_f32 v[{O(i)+2}:{O(i)+3}], v[{T(i)+2}:{T(i)+3}], v[20:21], v[{O(i)+2}:{O(i)+3}] op_sel_hi:[1,0,1]""")
    for i in range(4):
        a(f"""v_cvt_pk_bf16_f32 v{T(i)+4}, v{O(i)}, v{O(i)+1}
        v_cvt_pk_bf16_f32 v{T(i)+5}, v{O(i)+2}, v{O(i)+3}""")
    for i in range(4):
        a(f"""v_lshlrev_b32 v{T(i)}, 16, v{192+2*i}
        v_and_b32 v{T(i)+1}, 0xffff0000, v{192+2*i}
        v_lshlrev_b32 v{T(i)+2}, 16, v{193+2*i}
        v_and_b32 v{T(i)+3}, 0xffff0000, v{193+2*i}
        buffer_store_dwordx2 v[{T(i)+4}:{T(i)+5}], v14, {WSR}, s38 offen offset:{512*i} sc1""")
    for i in range(4):
        a(f"""v_lshlrev_b32 v{O(i)}, 16, v{T(i)+4}
        v_and_b32 v{O(i)+1}, 0xffff0000, v{T(i)+4}
        v_lshlrev_b32 v{O(i)+2}, 16, v{T(i)+5}
        v_and_b32 v{O(i)+3}, 0xffff0000, v{T(i)+5}
        v_pk_fma_f32 v[{T(i)+6}:{T(i)+7}], v[{T(i)}:{T(i)+1}], v[{200+4*i}:{201+4*i}], v[{216+4*i}:{217+4*i}]
        v_pk_fma_f32 v[{T(i)+8}:{T(i)+9}], v[{T(i)+2}:{T(i)+3}], v[{202+4*i}:{203+4*i}], v[{218+4*i}:{219+4*i}]""")
    for i in range(4):
        a(f"""v_pk_fma_f32 v[{T(i)+6}:{T(i)+7}], v[{T(i)+6}:{T(i)+7}], v[{O(i)}:{O(i)+1}], v[{T(i)}:{T(i)+1}]
        v_pk_fma_f32 v[{T(i)+8}:{T(i)+9}], v[{T(i)+8}:{T(i)+9}], v[{O(i)+2}:{O(i)+3}], v[{T(i)+2}:{T(i)+3}]""")
    for i in range(4):
        a(f"""v_cvt_pk_bf16_f32 v{O(i)}, v{T(i)+6}, v{T(i)+7}
        v_cvt_pk_bf16_f32 v{O(i)+1}, v{T(i)+8}, v{T(i)+9}
        buffer_store_dwordx2 v[{O(i)}:{O(i)+1}], v14, {WSR}, s39 offen offset:{512*i} sc1""")
    stamp(a, 8)

def emit_front4(a, hooks):
    blk_addr(a)
    a("s_waitcnt vmcnt(20)")
    blk_skun(a)
    a("s_waitcnt vmcnt(13)")
    stamp(a, 1)
    blk_kv(a)
    stamp(a, 2)
    a("s_mov_b32 s8, s5")
    a.nolog += 1
    a(f"""s_cmp_eq_u32 s{S_W}, 0
    s_cbranch_scc1 L_f_w0a""")
    w_stage_bulk(a)
    a(f"""s_waitcnt vmcnt(7)
    s_branch L_f_j1
    L_f_w0a:
    s_waitcnt vmcnt(0)
    L_f_j1:
    s_barrier
    s_cmp_lg_u32 s{S_W}, 0
    s_cbranch_scc1 L_f_s1
    s_add_u32 s36, s{S_GEN}, 1
    v_mov_b32 v16, s36
    v_mov_b32 v17, s{S_FLAG}
    s_mov_b64 exec, 1
    buffer_store_dword v16, v17, {WSR}, 0 offen sc1
    s_mov_b64 exec, -1
    L_f_s1:""")
    a.nolog -= 1
    stamp(a, 3)
    blk_hcop(a)
    a("v_and_b32 v1, 63, v0")
    a.nolog += 1
    a(f"""s_cmp_lg_u32 s{S_W}, 0
    s_cbranch_scc1 L_f_nx""")
    if SPREAD:
        a(f"""v_and_b32 v2, 7, v1
        v_lshlrev_b32 v2, 5, v2
        v_bfe_u32 v3, v1, 3, 2
        v_lshl_add_u32 v2, v3, 3, v2
        v_add_u32 v2, s60, v2
        v_lshlrev_b32 v2, 6, v2
        v_add_u32 v2, {WS['SYNC'] + SYNC_FLAGS}, v2""")
    else:
        a(f"""v_and_b32 v2, 31, v1
        s_lshl_b32 s36, s60, 5
        v_add_u32 v2, s36, v2
        v_lshlrev_b32 v2, 6, v2
        v_add_u32 v2, {WS['SYNC'] + SYNC_FLAGS}, v2""")
    wait_flags(a, 2, 1, 1, 18)
    a(f"""v_lshlrev_b32 v19, 4, v1
    s_lshl_b32 s36, s19, 13
    s_add_u32 s36, s36, {WS['XR']}""")
    for ch in range(2):
        for i in range(4):
            a(f"""s_mov_b32 m0, {ch * CB + XRO + i * 1024}
            buffer_load_dwordx4 v19, {WSR}, s36 offen sc1 lds
            s_add_u32 s36, s36, 1024""")
    a.label("L_f_nx")
    a.nolog -= 1
    stamp(a, 4)
    blk_qperm(a)
    blk_stats(a)
    a(f"""v_mov_b32 v101, s11
    s_mov_b32 s37, {WS['C0']-WS['RS0']}
    s_mov_b64 exec, 1
    buffer_store_dwordx2 v[102:103], v101, {WSR}, 0 offen sc1
    buffer_store_dwordx2 v[104:105], v101, {WSR}, s37 offen sc1
    s_mov_b64 exec, -1
    s_waitcnt lgkmcnt(0)
    s_barrier
    ds_read_b128 v[72:75], v5 offset:8192
    ds_read_b128 v[76:79], v7 offset:{8192+4096}
    s_waitcnt lgkmcnt(1)
    buffer_store_dwordx4 v[72:75], v8, {WSR}, s8 offen sc1
    s_waitcnt lgkmcnt(0)
    buffer_store_dwordx4 v[76:79], v15, {WSR}, s8 offen sc1""")
    emit_ffn_roles(a)
    a(f"""v_and_b32 v11, 15, v1
    v_lshrrev_b32 v12, 4, v1
    v_lshlrev_b32 v13, 4, v11
    v_lshl_add_u32 v13, v12, 2, v13
    s_lshl_b32 s36, s67, 10
    v_add_u32 v13, s36, v13
    v_lshlrev_b32 v14, 1, v13
    v_lshlrev_b32 v15, 2, v13
    v_lshlrev_b32 v22, 6, v1
    v_add_u32 v22, {WS['SYNC'] + SYNC_FLAGS}, v22
    v_add_u32 v17, 1, v11
    v_and_b32 v18, 3, v17
    v_mul_u32_u24 v18, {HCS}, v18
    v_lshrrev_b32 v17, 2, v17
    v_lshlrev_b32 v17, 3, v17
    v_lshl_add_u32 v17, v12, 4, v17
    v_add_u32 v17, v17, v18
    s_lshl_b32 s36, s67, 8
    s_add_u32 s37, s36, s62
    v_add_u32 v17, s37, v17
    v_lshlrev_b32 v18, 5, v11
    v_lshlrev_b32 v19, 4, v12
    v_sub_u32 v18, v19, v18
    s_add_u32 s37, s37, {XRO + 480}
    v_add_u32 v18, s37, v18""")
    for r in range(32, 64): a(f"v_mov_b32 v{r}, 0")
    a(f"""s_cmp_lg_u32 s{S_W}, 0
    s_cbranch_scc1 L_f_nw
    s_waitcnt vmcnt(4)
    L_f_nw:
    s_barrier""")
    stamp(a, 6)
    pre = []
    for i in range(4):
        pre.append(f"buffer_load_dwordx2 v[{192+2*i}:{193+2*i}], v14, {WSR}, s10 offen offset:{512*i} sc1")
    for i in range(4):
        pre.append(f"buffer_load_dwordx4 v[{200+4*i}:{203+4*i}], v15, {WSR}, s8 offen offset:{1024*i} sc1")
        pre.append(f"buffer_load_dwordx4 v[{216+4*i}:{219+4*i}], v15, {WSR}, s9 offen offset:{1024*i} sc1")
    def load_frags(setbase, bi):
        ops = []
        for x in range(8):
            A = setbase + 4 * x
            ops.append(f"ds_read_b64 v[{A}:{A+1}], v17 offset:{512*x + 64*bi}")
            ops.append(f"ds_read_b64 v[{A+2}:{A+3}], v17 offset:{512*x + 64*bi + 8}")
            B = setbase + 32 + 4 * x
            ops.append(f"ds_read_b128 v[{B}:{B+3}], v18 offset:{512*(7-x) + 64*bi}")
        return ops
    sets = (64, 128)
    for op in load_frags(sets[0], 0): a(op)
    def flagloads(off):
        for i in range(4):
            if i == 0: a(f"buffer_load_dword v24, v22, {WSR}, 0 offen offset:{off} sc1")
            else: a(f"s_movk_i32 s39, {4096*i}\nbuffer_load_dword v{24+i}, v22, {WSR}, s39 offen offset:{off} sc1")
    for bi in range(4):
        cur = sets[bi & 1]
        nxt = load_frags(sets[(bi + 1) & 1], bi + 1) if bi < 3 else []
        if bi == 2:
            signal(a, 2, tv=(24, 25))
            a("v_and_b32 v9, 63, v0")
            blk_wtr_hi(a)
        if bi == 3:
            flagloads(0)
            if HALF:
                a("s_lshl_b32 s38, s22, 3")
                member_flag_off(a, 23, "s38", 8)
            else:
                member_flag_off(a, 23, "0", 16)
            a(f"buffer_load_dword v28, v23, {WSR}, 0 offen offset:4 sc1")
            a("s_waitcnt lgkmcnt(0)")
            for i in range(5):
                a(f"buffer_store_dwordx4 {vr(232+4*i)}, v254, {WSR}, s{(6, 7, 12, 13, 14)[i]} offen sc1")
        a("s_waitcnt lgkmcnt(0)")
        pairs = sorted([(jt, aa) for jt in range(8) for aa in range(jt + 1)], key=lambda p: (p[1], p[0]))
        k = 0
        for idx, (jt, aa) in enumerate(pairs):
            A = cur + 4 * aa; B = cur + 32 + 4 * (jt - aa); C = 32 + 4 * jt
            a(f"v_mfma_f32_16x16x32_bf16 v[{C}:{C+3}], v[{A}:{A+3}], v[{B}:{B+3}], v[{C}:{C+3}]")
            if idx < 24 and k < len(nxt):
                a(nxt[k]); k += 1
    stamp(a, 7)
    a("s_waitcnt vmcnt(5)")
    a(f"""v_cmp_eq_u32 vcc, s{S_IDW}, v28
    s_cmp_eq_u64 vcc, -1
    s_cselect_b32 s{S_LOC}, 1, 0""")
    flagcheck(a, 2, (24, 25, 26, 27), 22, "L_c_ok1", tmp=(29, 30))
    a(f"s_mov_b32 s8, {WS['RS0']}\ns_mov_b32 s9, {WS['C0']}\ns_add_u32 s10, s65, {WS['QT']}")
    for op in pre: a(op)
    a(f"""v_lshlrev_b32 v4, 4, v1
    s_lshl_b32 s36, s{S_W}, 12
    s_add_u32 s36, s36, {EXO}
    v_add_u32 v5, s36, v4
    s_xor_b32 s36, s36, 4096
    v_add_u32 v6, s36, v4
    s_cmp_eq_u32 s67, 0
    s_cbranch_scc0 L_c_x1""")
    for half in range(2):
        own, oth = (32, 48) if half == 0 else (48, 32)
        for i in range(4): a(f"ds_write_b128 v5, v[{oth+4*i}:{oth+4*i+3}] offset:{1024*i}")
        a("s_waitcnt vmcnt(12) lgkmcnt(0)\ns_barrier")
        for i in range(4): a(f"ds_read_b128 v[{80+4*i}:{83+4*i}], v6 offset:{1024*i}")
        a("s_waitcnt lgkmcnt(0)")
        for i in range(4):
            for h in range(2):
                a(f"v_pk_add_f32 v[{64+4*i+2*h}:{65+4*i+2*h}], v[{own+4*i+2*h}:{own+4*i+2*h+1}], v[{80+4*i+2*h}:{81+4*i+2*h}]")
        if half == 0:
            a("s_branch L_c_x2\nL_c_x1:")
    a.label("L_c_x2")
    a.nolog += 1
    a(f"""s_cmp_lg_u32 s{S_W}, 0
    s_cbranch_scc1 L_f_wf
    s_add_u32 s36, s{S_GEN}, 1
    v_mov_b32 v24, s36
    v_mov_b32 v25, s{S_FLAG}
    s_mov_b64 exec, 1
    buffer_store_dword v24, v25, {WSR}, 0 offen offset:8 sc1
    s_mov_b64 exec, -1
    L_f_wf:""")
    a.nolog -= 1
    a(f"""v_lshlrev_b32 v7, 5, v11
    v_lshl_add_u32 v7, v12, 3, v7
    s_lshl_b32 s36, s67, 11
    s_sub_u32 s37, s62, s36
    s_add_u32 s37, s37, {XRO + 4088 - 1536}
    v_sub_u32 v7, s37, v7""")
    for i in range(4): a(f"ds_read_b64 v[{96+2*i}:{97+2*i}], v7 offset:{512*(3-i)}")
    a(f"""s_lshr_b32 s39, s65, 12
    s_mul_i32 s39, s39, {XP}
    s_add_u32 s38, s39, {WS['YT']}
    s_add_u32 s39, s39, {WS['X1T']}
    s_waitcnt vmcnt(0) lgkmcnt(0)""")
    conv_epilogue(a)


import re as _re
def renum(text, lo, shift):
    def f(m):
        n = int(m.group(1)); return f"v{n - shift}" if n >= lo else m.group(0)
    def g(m):
        x, y = int(m.group(1)), int(m.group(2))
        return f"v[{x - shift}:{y - shift}]" if x >= lo else m.group(0)
    return _re.sub(r"\bv(\d+)\b", f, _re.sub(r"v\[(\d+):(\d+)\]", g, text))
class Sub:
    def __init__(self): self.t = []
    def __call__(self, x): self.t.append(x)
def blk_rbaddr(a):
    a(f"""v_lshrrev_b32 v3, 6, v0
    v_xor_b32 v5, v1, v3
    v_lshlrev_b32 v5, 4, v5
    v_lshlrev_b32 v6, 7, v2
    v_add_u32 v5, v5, v6
    v_add_u32 v5, {PL}, v5
    v_xor_b32 v7, 64, v5
    {PGs('s36')}
    s_lshl_b32 s36, s36, 18
    {PTs('s37', 's38')}
    s_lshl_b32 s37, s37, 7
    s_add_u32 s5, s36, s37
    s_add_u32 s5, s5, {WS['QT']}
    v_lshlrev_b32 v8, 12, v2
    v_lshlrev_b32 v15, 4, v1
    v_add_u32 v8, v8, v15
    v_add_u32 v15, 0x20000, v8""")
def build_prep_kernel(a, name):
    kbegin(a, name)
    a(f"""s_cmp_ge_u32 s2, 256
    s_cbranch_scc1 P_end
    s_load_dwordx4 s[4:7], s[0:1], {ARG['q']}
    s_load_dwordx4 s[8:11], s[0:1], {ARG['v']}
    s_load_dwordx2 s[16:17], s[0:1], {ARG['ws']}
    s_load_dwordx4 s[52:55], s[0:1], {ARG['w1']}
    s_load_dwordx2 s[56:57], s[0:1], {ARG['w2']}
    v_lshrrev_b32 v3, 6, v0
    v_readfirstlane_b32 s19, v3
    v_and_b32 v0, 255, v0
    v_and_b32 v1, 7, v0
    v_lshrrev_b32 v2, 3, v0
    v_and_b32 v9, 63, v0
    s_and_b32 s{S_W}, s19, 3
    s_lshr_b32 s19, s19, 2
    s_and_b32 s60, s2, 7
    s_lshr_b32 s61, s2, 3
    s_lshr_b32 s66, s{S_W}, 1
    s_and_b32 s67, s{S_W}, 1
    {PGs('s36')}
    s_lshl_b32 s36, s36, 7
    {PTs('s37', 's38')}
    s_lshl_b32 s37, s37, 16
    s_add_u32 s36, s36, s37
    v_lshlrev_b32 v4, 4, v1
    v_lshlrev_b32 v5, 11, v2
    v_add3_u32 v4, v4, v5, s36
    s_waitcnt lgkmcnt(0)""")
    srd(a, 20, 4, S * D * 2)
    srd(a, 24, 6, S * D * 2)
    srd(a, 32, 8, S * D * 2)
    srd(a, 40, 10, D * 8)
    srd(a, 28, 16, WS['END'])
    a("s_cmp_eq_u32 s19, 1\ns_cbranch_scc1 P_q\ns_cmp_eq_u32 s19, 2\ns_cbranch_scc1 P_w")
    a(f"""{PGs('s36')}
    s_lshl_b32 s36, s36, 9
    v_lshlrev_b32 v8, 6, v1
    v_add_u32 v8, s36, v8
    buffer_load_dwordx4 v[44:47], v8, s[40:43], 0 offen
    buffer_load_dwordx4 v[48:51], v8, s[40:43], 0 offen offset:16
    buffer_load_dwordx4 v[52:55], v8, s[40:43], 0 offen offset:32
    buffer_load_dwordx4 v[56:59], v8, s[40:43], 0 offen offset:48
    v_subrev_u32 v5, 3072, v4
    v_subrev_u32 v6, 2048, v4
    v_subrev_u32 v7, 1024, v4
    buffer_load_dwordx4 v[16:19], v5, s[24:27], 0 offen
    buffer_load_dwordx4 v[20:23], v6, s[24:27], 0 offen
    buffer_load_dwordx4 v[24:27], v7, s[24:27], 0 offen
    buffer_load_dwordx4 v[28:31], v4, s[24:27], 0 offen
    buffer_load_dwordx4 v[32:35], v4, s[24:27], 0 offen offset:1024
    buffer_load_dwordx4 v[36:39], v4, s[32:35], 0 offen
    buffer_load_dwordx4 v[40:43], v4, s[32:35], 0 offen offset:1024""")
    blk_addr(a)
    a("s_waitcnt vmcnt(7)")
    blk_skun(a)
    a("s_waitcnt vmcnt(0)")
    blk_kv(a)
    a("s_endpgm")
    a.label("P_q")
    emit_prep_loadsQ(a)
    emit_statrows(a)
    blk_addr(a)
    blk_rbaddr(a)
    a("s_waitcnt vmcnt(2)")
    blk_qperm(a)
    a("s_waitcnt vmcnt(0)")
    blk_stats(a)
    a(f"""v_mov_b32 v101, s11
    s_mov_b32 s37, {WS['C0']-WS['RS0']}
    s_mov_b64 exec, 1
    buffer_store_dwordx2 v[102:103], v101, {WSR}, 0 offen {PST}
    buffer_store_dwordx2 v[104:105], v101, {WSR}, s37 offen {PST}
    s_mov_b64 exec, -1
    s_waitcnt lgkmcnt(0)
    s_barrier
    ds_read_b128 v[72:75], v5 offset:8192
    ds_read_b128 v[76:79], v7 offset:{8192+4096}
    s_waitcnt lgkmcnt(1)
    buffer_store_dwordx4 v[72:75], v8, {WSR}, s5 offen {PST}
    s_waitcnt lgkmcnt(0)
    buffer_store_dwordx4 v[76:79], v15, {WSR}, s5 offen {PST}
    s_endpgm""")
    a.label("P_w")
    sub = Sub()
    sub(f"""s_cmp_eq_u32 s66, 0
    s_cselect_b32 s52, s52, s54
    s_cselect_b32 s53, s53, s55
    s_mov_b32 s54, {D*F*2}
    s_mov_b32 s55, 0x20000
    s_mov_b32 s58, {D*F*2}
    s_mov_b32 s59, 0x20000""")
    saveW = emit_prep_loadsW.__code__
    emit_prep_loadsW(sub)
    sub.t.pop(0)
    sub("s_waitcnt vmcnt(0)\ns_barrier")
    blk_wtr(sub)
    for i in range(5):
        sub(f"s_waitcnt lgkmcnt({2*(4-i)})\nbuffer_store_dwordx4 {vr(144+4*i)}, v183, {WSR}, s{6+i} offen {PST}")
    for t in sub.t: a(renum(t, 144, 100))
    a.label("P_end")
    a("s_endpgm")

def emit_split_front(a, w13ops):
    a(f"""s_cmp_ge_u32 s2, 256
    s_cbranch_scc1 L_end""")
    emit_codepf(a)
    a(f"""s_load_dwordx4 s[12:15], s[0:1], {ARG['h']}
    s_load_dwordx2 s[16:17], s[0:1], {ARG['ws']}
    v_lshrrev_b32 v3, 6, v0
    v_and_b32 v9, 63, v0
    v_and_b32 v1, 63, v0
    v_readfirstlane_b32 s{S_W}, v3
    s_and_b32 s60, s2, 7
    s_lshr_b32 s61, s2, 3
    s_lshl_b32 s{S_FLAG}, s60, 5
    s_add_u32 s{S_FLAG}, s{S_FLAG}, s61
    s_mov_b32 s19, s{S_FLAG}
    s_lshl_b32 s{S_FLAG}, s{S_FLAG}, 6
    s_add_u32 s{S_FLAG}, s{S_FLAG}, {WS['SYNC'] + SYNC_FLAGS}
    s_lshr_b32 s66, s{S_W}, 1
    s_and_b32 s67, s{S_W}, 1
    s_mul_i32 s62, s66, {CB}
    s_waitcnt lgkmcnt(0)""")
    srd(a, 28, 16, WS['END'])
    a(f"""s_add_u32 s36, s16, {WS['SYNC'] + SYNC_GEN}
    s_addc_u32 s37, s17, 0
    s_load_dword s{S_GEN}, s[36:37], 0""")
    stamp(a, 0)
    a(f"""s_lshl_b32 s65, s19, 1
    s_add_u32 s65, s65, s66
    s_lshl_b32 s65, s65, 12
    v_lshlrev_b32 v10, 4, v1
    s_lshl_b32 s36, s67, 11
    s_add_u32 s37, s65, s36
    s_add_u32 s37, s37, {WS['XR']}
    s_add_u32 s38, s62, s36
    s_add_u32 s38, s38, {XRO}
    s_mov_b32 m0, s38
    buffer_load_dwordx4 v10, {WSR}, s37 offen lds
    s_add_u32 s38, s38, 1024
    s_add_u32 s37, s37, 1024
    s_mov_b32 m0, s38
    buffer_load_dwordx4 v10, {WSR}, s37 offen lds""")
    a.tag = 'h'; emit_prep_loads2(a); a.tag = None
    emit_ffn_roles(a)
    a("s_waitcnt lgkmcnt(0)")
    a(f"""s_getreg_b32 s36, hwreg(HW_REG_XCC_ID, 0, 4)
    s_add_u32 s{S_IDW}, s{S_GEN}, 13
    s_lshl_b32 s{S_IDW}, s{S_IDW}, 4
    s_or_b32 s{S_IDW}, s{S_IDW}, s36
    s_mov_b32 s{S_LOC}, 0""")
    a.nolog += 1
    a(f"""s_cmp_lg_u32 s{S_W}, 0
    s_cbranch_scc1 L_noid
    v_mov_b32 v174, s{S_IDW}
    v_mov_b32 v175, s{S_FLAG}
    s_mov_b64 exec, 1
    buffer_store_dword v174, v175, {WSR}, 0 offen offset:4 sc1
    s_mov_b64 exec, -1
    L_noid:""")
    a.nolog -= 1
    a(f"""v_and_b32 v11, 15, v1
    v_lshrrev_b32 v12, 4, v1
    v_lshlrev_b32 v13, 4, v11
    v_lshl_add_u32 v13, v12, 2, v13
    s_lshl_b32 s36, s67, 10
    v_add_u32 v13, s36, v13
    v_lshlrev_b32 v14, 1, v13
    v_lshlrev_b32 v15, 2, v13
    v_add_u32 v17, 1, v11
    v_and_b32 v18, 3, v17
    v_mul_u32_u24 v18, {HCS}, v18
    v_lshrrev_b32 v17, 2, v17
    v_lshlrev_b32 v17, 3, v17
    v_lshl_add_u32 v17, v12, 4, v17
    v_add_u32 v17, v17, v18
    s_lshl_b32 s36, s67, 8
    s_add_u32 s37, s36, s62
    v_add_u32 v17, s37, v17
    v_lshlrev_b32 v18, 5, v11
    v_lshlrev_b32 v19, 4, v12
    v_sub_u32 v18, v19, v18
    s_add_u32 s37, s37, {XRO + 480}
    v_add_u32 v18, s37, v18""")
    for r in range(32, 64): a(f"v_mov_b32 v{r}, 0")
    a.vmneed('h')
    stamp(a, 4)
    a.tag = 'w13'
    for op in w13ops[:NWS]: a(op)
    a.tag = None
    blk_hcop(a)
    a("s_barrier")
    stamp(a, 6)
    pre = []
    for i in range(4):
        pre.append(f"buffer_load_dwordx2 v[{192+2*i}:{193+2*i}], v14, {WSR}, s10 offen offset:{512*i}")
    for i in range(4):
        pre.append(f"buffer_load_dwordx4 v[{200+4*i}:{203+4*i}], v15, {WSR}, s8 offen offset:{1024*i}")
        pre.append(f"buffer_load_dwordx4 v[{216+4*i}:{219+4*i}], v15, {WSR}, s9 offen offset:{1024*i}")
    a(f"s_mov_b32 s8, {WS['RS0']}\ns_mov_b32 s9, {WS['C0']}\ns_add_u32 s10, s65, {WS['QT']}")
    def load_frags(setbase, bi):
        ops = []
        for x in range(8):
            A = setbase + 4 * x
            ops.append(f"ds_read_b64 v[{A}:{A+1}], v17 offset:{512*x + 64*bi}")
            ops.append(f"ds_read_b64 v[{A+2}:{A+3}], v17 offset:{512*x + 64*bi + 8}")
            B = setbase + 32 + 4 * x
            ops.append(f"ds_read_b128 v[{B}:{B+3}], v18 offset:{512*(7-x) + 64*bi}")
        return ops
    sets = (64, 128)
    for op in load_frags(sets[0], 0): a(op)
    extra = [(op, 'w13') for op in w13ops[NWS:NWS + NWL1]] + [(op, 'pre') for op in pre] + [(op, 'w13') for op in w13ops[NWS + NWL1:NW13A]]
    nx = len(extra); done = 0
    for bi in range(4):
        cur = sets[bi & 1]
        nxt = load_frags(sets[(bi + 1) & 1], bi + 1) if bi < 3 else []
        if bi == 3:
            member_flag_off(a, 23, "0", 16)
            a.tag = 'id'; a(f"buffer_load_dword v28, v23, {WSR}, 0 offen offset:4 sc1"); a.tag = None
        a("s_waitcnt lgkmcnt(0)")
        pairs = sorted([(jt, aa) for jt in range(8) for aa in range(jt + 1)], key=lambda p: (p[1], p[0]))
        k = 0
        for idx, (jt, aa) in enumerate(pairs):
            A = cur + 4 * aa; B = cur + 32 + 4 * (jt - aa); C = 32 + 4 * jt
            a(f"v_mfma_f32_16x16x32_bf16 v[{C}:{C+3}], v[{A}:{A+3}], v[{B}:{B+3}], v[{C}:{C+3}]")
            if idx < 24 and k < len(nxt):
                a(nxt[k]); k += 1
            want = (bi * 36 + idx + 1) * nx // 140
            while done < min(want, nx):
                op, tg = extra[done]; a.tag = tg; a(op); a.tag = None; done += 1
    while done < nx:
        op, tg = extra[done]; a.tag = tg; a(op); a.tag = None; done += 1
    stamp(a, 7)
    a(f"""v_lshlrev_b32 v4, 4, v1
    s_lshl_b32 s36, s{S_W}, 12
    s_add_u32 s36, s36, {EXO}
    v_add_u32 v5, s36, v4
    s_xor_b32 s36, s36, 4096
    v_add_u32 v6, s36, v4
    s_cmp_eq_u32 s67, 0
    s_cbranch_scc0 L_c_x1""")
    for half in range(2):
        own, oth = (32, 48) if half == 0 else (48, 32)
        for i in range(4): a(f"ds_write_b128 v5, v[{oth+4*i}:{oth+4*i+3}] offset:{1024*i}")
        a("s_waitcnt lgkmcnt(0)\ns_barrier")
        for i in range(4): a(f"ds_read_b128 v[{80+4*i}:{83+4*i}], v6 offset:{1024*i}")
        a("s_waitcnt lgkmcnt(0)")
        for i in range(4):
            for h in range(2):
                a(f"v_pk_add_f32 v[{64+4*i+2*h}:{65+4*i+2*h}], v[{own+4*i+2*h}:{own+4*i+2*h+1}], v[{80+4*i+2*h}:{81+4*i+2*h}]")
        if half == 0:
            a("s_branch L_c_x2\nL_c_x1:")
    a.label("L_c_x2")
    a(f"""v_lshlrev_b32 v7, 5, v11
    v_lshl_add_u32 v7, v12, 3, v7
    s_lshl_b32 s36, s67, 11
    s_sub_u32 s37, s62, s36
    s_add_u32 s37, s37, {XRO + 4088 - 1536}
    v_sub_u32 v7, s37, v7""")
    for i in range(4): a(f"ds_read_b64 v[{96+2*i}:{97+2*i}], v7 offset:{512*(3-i)}")
    a(f"""s_lshr_b32 s39, s65, 12
    s_mul_i32 s39, s39, {XP}
    s_add_u32 s38, s39, {WS['YT']}
    s_add_u32 s39, s39, {WS['X1T']}""")
    a.vmneed('id')
    a(f"""v_cmp_eq_u32 vcc, s{S_IDW}, v28
    s_cmp_eq_u64 vcc, -1
    s_cselect_b32 s{S_LOC}, 1, 0""")
    a.vmneed('pre', " lgkmcnt(0)")
    conv_epilogue(a)

V_CS = 32; V_X3 = 44; V_ACC = 52; V_XB = 100; V_T = 116; V_HB = 116; V_W2 = 144
def w13(kb, t): b = (kb * 3 + t) * 4; return f"a[{b}:{b+3}]"
def w2(i, dt):
    idx = i * 4 + dt
    if idx < 16: b = 192 + idx * 4; return f"a[{b}:{b+3}]"
    b = V_W2 + (idx - 16) * 4; return f"v[{b}:{b+3}]"

def emit_ffn_roles_early(a):
    pass
def emit_ffn_roles(a):
    if HALF:
        a(f"""s_and_b32 s22, s60, 1
        s_lshr_b32 s20, s60, 1
        s_lshl_b32 s20, s20, 2
        s_and_b32 s36, s61, 3
        s_or_b32 s20, s20, s36
        s_lshr_b32 s23, s61, 2
        s_lshl_b32 s21, s22, 3
        s_or_b32 s21, s21, s23""")
    else:
        a(f"""s_and_b32 s20, s61, 1
        s_lshl_b32 s36, s60, 1
        s_or_b32 s20, s20, s36
        s_lshr_b32 s21, s61, 1
        s_lshr_b32 s22, s21, 3
        s_and_b32 s23, s21, 7""")
    for t in range(3):
        a(f"""s_mul_i32 s36, s{S_W}, 3
        s_add_u32 s36, s36, {t}
        s_mul_i32 s37, s21, 11
        s_add_u32 s37, s37, s36
        s_cmp_lt_u32 s36, 11
        s_cselect_b32 s38, s37, 0x7fff
        s_cmp_lt_u32 s38, 172
        s_cselect_b32 s39, 1, 0
        s_lshl_b32 s{40+t}, s37, 14
        s_add_u32 s{40+t}, s{40+t}, {WS['WF13']}
        s_lshr_b32 s{44+t}, s37, 1
        s_lshl_b32 s{44+t}, s{44+t}, 9
        s_and_b32 s37, s37, 1
        s_lshl_b32 s37, s37, 8
        s_add_u32 s{44+t}, s{44+t}, s37
        s_cmp_eq_u32 s39, 1
        s_cselect_b32 s{40+t}, s{40+t}, {INV}
        s_cselect_b32 s{44+t}, s{44+t}, {INV}""")
    a(f"""s_mul_i32 s36, s23, 43
    s_mul_i32 s37, s{S_W}, 11
    s_add_u32 s36, s36, s37
    s_lshl_b32 s48, s36, 12
    s_add_u32 s48, s48, {WS['WF2']}
    s_cmp_eq_u32 s{S_W}, 3
    s_cselect_b32 s49, {INV}, s48
    v_and_b32 v31, 63, v0
    v_lshlrev_b32 v31, 4, v31""")
def w13_loads(a):
    for kb in range(16):
        for t in range(3):
            a(f"s_add_u32 s36, s{40+t}, {kb*1024}\nbuffer_load_dwordx4 {w13(kb,t)}, v31, {WSR}, s36 offen sc1")
def w2_loads(a, lo, hi):
    for idx in range(lo, hi):
        i, dt = idx >> 2, idx & 3
        a(f"s_add_u32 s36, s{49 if i == 10 else 48}, {idx*1024}\nbuffer_load_dwordx4 {w2(i,dt)}, v31, {WSR}, s36 offen sc1")


def w_batch(a, ops):
    if not WREV or len(ops) < 4:
        for op in ops: a(op)
        return
    L = a.newlabel("wb")
    a(f"s_bitcmp1_b32 s20, 0\ns_cbranch_scc1 {L}_r")
    for op in ops: a(op)
    a(f"s_branch {L}_e\n{L}_r:")
    a.nolog += 1
    for op in reversed(ops): a(op)
    a.nolog -= 1
    a.label(f"{L}_e")

def emit_cs(a, lo, hi):
    a(f"v_mov_b32 v{V_XB}, 0x3f803f80\nv_mov_b32 v{V_XB+1}, 0x3f803f80\nv_mov_b32 v{V_XB+2}, 0x3f803f80\nv_mov_b32 v{V_XB+3}, 0x3f803f80")
    for kb in range(lo, hi):
        for t in range(3):
            c = V_CS + 4 * t
            a(f"v_mfma_f32_16x16x32_bf16 {vr(c)}, {w13(kb,t)}, {vr(V_XB)}, {'0' if kb == 0 else vr(c)}")

def x1_dma_setup(a):
    a(f"""v_lshrrev_b32 v2, 3, v1
    v_bfe_u32 v3, v1, 1, 2
    v_bfe_u32 v6, v1, 4, 1
    v_xor_b32 v3, v3, v6
    s_and_b32 s36, s{S_W}, 2
    v_xor_b32 v3, s36, v3
    v_and_b32 v6, 1, v1
    v_lshlrev_b32 v6, 4, v6
    v_mul_u32_u24 v2, {XP}, v2
    v_add_u32 v6, v2, v6
    v_lshl_add_u32 v27, v3, 5, v6""")
def x1_dma_ops(hf):
    ops = [f"""s_mul_i32 s56, s{S_W}, {8 * XP}
    s_lshl_b32 s57, s20, 8
    s_add_u32 s56, s56, s57
    s_add_u32 s56, s56, {WS['X1T'] + hf * 128}
    s_lshl_b32 s57, s{S_W}, 10
    s_add_u32 s57, s57, {hf * 65536}"""]
    for n in range(16):
        ops.append(f"""s_add_u32 m0, s57, {n * 4096}
        buffer_load_dwordx4 v27, {WSR}, s56 offen sc1 lds
        s_add_u32 s56, s56, {32 * XP}""")
    return ops
def tiles_dma(a):
    a(f"""v_lshrrev_b32 v2, 3, v1
    v_and_b32 v3, 7, v1
    v_mul_u32_u24 v2, {XP}, v2
    v_lshl_add_u32 v2, v3, 4, v2
    s_mul_i32 s36, s23, {64 * XP}
    s_mul_i32 s37, s{S_W}, {16 * XP}
    s_add_u32 s36, s36, s37
    s_lshl_b32 s37, s20, 8
    s_add_u32 s36, s36, s37
    s_lshl_b32 s37, s22, 7
    s_add_u32 s36, s36, s37
    s_lshl_b32 s38, s{S_W}, 11""")
    for arr, lb in (('X1T', L_TX), ('YT', L_TY)):
        for i in range(2):
            a(f"""s_add_u32 s37, s36, {WS[arr] + i * 8 * XP}
            s_add_u32 m0, s38, {lb + i * 1024}
            buffer_load_dwordx4 v2, {WSR}, s37 offen sc1 lds""")
def x3_dma_ops(hf):
    ops = [f"""s_lshl_b32 s56, s20, 3
    s_add_u32 s56, s56, s{S_W}
    s_add_u32 s56, s56, {4*hf}
    s_lshl_b32 s56, s56, 14
    s_add_u32 s56, s56, {WS['X3']}
    s_lshl_b32 s57, s{S_W}, 14
    s_add_u32 s57, s57, {hf * 65536}"""]
    for n in range(16):
        ops.append(f"""s_add_u32 m0, s57, {n * 1024}
        buffer_load_dwordx4 v31, {WSR}, s56 offen sc1 lds
        s_add_u32 s56, s56, 1024""")
    return ops
def member_flag_off(a, vdst, base_member_sgpr_expr, nmemb):
    a(f"""v_and_b32 v{vdst}, {nmemb-1}, v1
    v_add_u32 v{vdst}, {base_member_sgpr_expr}, v{vdst}""")
    if HALF:
        a(f"""v_lshrrev_b32 v29, 3, v{vdst}
        v_and_b32 v{vdst}, 7, v{vdst}
        v_lshlrev_b32 v{vdst}, 2, v{vdst}
        v_lshl_add_u32 v{vdst}, v29, 5, v{vdst}
        s_lshr_b32 s36, s20, 2
        s_lshl_b32 s36, s36, 6
        s_and_b32 s37, s20, 3
        s_add_u32 s36, s36, s37""")
    else:
        a(f"""v_lshlrev_b32 v{vdst}, 1, v{vdst}
        s_lshr_b32 s36, s20, 1
        s_lshl_b32 s36, s36, 5
        s_and_b32 s37, s20, 1
        s_add_u32 s36, s36, s37""")
    a(f"""v_add_u32 v{vdst}, s36, v{vdst}
    v_lshlrev_b32 v{vdst}, 6, v{vdst}
    v_add_u32 v{vdst}, {WS['SYNC'] + SYNC_FLAGS}, v{vdst}""")

def stats_write(a, hf, vm, vsd):
    a(f"""v_rcp_f32 v24, v{vsd}
    v_mul_f32 v{V_T+1}, v{vsd}, v{vsd}
    v_sub_f32 v{V_T+2}, 0, v{vm}
    v_mul_f32 v{V_T}, 0xbfb8aa3b, v24
    v_mov_b32 v{V_T+3}, 0
    s_lshl_b32 s36, s{S_W}, 8
    s_add_u32 s36, s36, {L_ST + hf * 1024}
    v_lshl_add_u32 v25, v2, 4, s36
    ds_write_b128 v25, {vr(V_T)}""")
def st3_stats(a, hf):
    a(f"""s_lshl_b32 s36, s20, 3
    s_add_u32 s36, s36, s{S_W}
    s_add_u32 s36, s36, {4*hf}
    s_lshl_b32 s36, s36, 10
    s_add_u32 s36, s36, {WS['SYNC'] + SYNC_ST3}
    v_lshrrev_b32 v124, 4, v1
    v_lshlrev_b32 v124, 8, v124
    v_and_b32 v125, 15, v1
    v_lshl_add_u32 v124, v125, 3, v124
    buffer_load_dwordx2 v[120:121], v124, {WSR}, s36 offen sc1
    buffer_load_dwordx2 v[122:123], v124, {WSR}, s36 offen offset:128 sc1""")
def st3_finish(a, hf):
    a(f"""v_add_f32 v126, v120, v122
    v_add_f32 v127, v121, v123""")
    sum_q(a, 126, 120); sum_q(a, 127, 121)
    ln_core(a, 126, 127)
    a(f"""v_rcp_f32 v120, v127
    v_mul_f32 v117, v127, v127
    v_sub_f32 v118, 0, v126
    v_mul_f32 v116, 0xbfb8aa3b, v120
    v_mov_b32 v119, 0
    s_lshl_b32 s36, s{S_W}, 8
    s_add_u32 s36, s36, {L_ST + hf * 1024}
    v_lshl_add_u32 v124, v125, 4, s36
    ds_write_b128 v124, v[116:119]""")

def g1_addr(a, layer, hbase):
    tr = layer == 1
    a(f"""v_and_b32 v2, 15, v1
    v_lshrrev_b32 v3, 4, v1""")
    for x in range(4):
        a(f"""s_add_u32 s36, s{S_W}, {x}
        s_and_b32 s36, s36, 3""")
        if tr:
            a(f"""v_bfe_u32 v4, v1, 2, 2
            v_lshl_add_u32 v5, v3, 4, v4
            v_lshlrev_b32 v5, 7, v5
            v_lshrrev_b32 v4, 1, v4
            v_and_b32 v6, 1, v3
            v_lshl_or_b32 v4, v6, 1, v4
            v_xor_b32 v4, s36, v4
            v_lshl_add_u32 v5, v4, 5, v5
            v_and_b32 v6, 3, v1
            v_lshl_add_u32 v{8+x}, v6, 3, v5""")
        else:
            a(f"""s_lshl_b32 s37, s36, 14
            v_add_u32 v{8+x}, s37, v31""")
        a(f"""s_lshl_b32 s37, s36, 8
        s_add_u32 s37, s37, {L_ST}
        v_lshl_add_u32 v{15+x}, v2, 4, s37""")
    for p in range(2):
        a(f"""v_lshrrev_b32 v4, 5, v1
        v_add_u32 v4, s{S_W}, v4
        v_add_u32 v4, {2*p}, v4
        v_and_b32 v4, 3, v4
        v_mul_u32_u24 v5, {HT}, v4
        v_bfe_u32 v6, v1, 4, 1
        v_lshl_add_u32 v5, v6, 7, v5
        v_lshl_add_u32 v{12+p}, v2, 3, v5
        v_lshlrev_b32 v4, 8, v4
        v_lshl_add_u32 v4, v2, 4, v4
        v_add_u32 v{19+p}, {L_ST}, v4""")
    a(f"""s_mul_i32 s36, s20, {8*HT}
    s_add_u32 s36, s36, {hbase}""")
    for t in range(3): a(f"s_add_u32 s{52+t}, s{44+t}, s36")

def g1_sub(a, layer, sb, hook=None, cs_from=16):
    tr = layer == 1
    def rd(n):
        kb, x = n >> 2, n & 3
        B = V_XB + 4 * x
        if tr:
            off = (kb >> 1) * 8192 + (kb & 1) * 1024
            return [f"ds_read_b64_tr_b16 v[{B}:{B+1}], v{8+x} offset:{off}", f"ds_read_b64_tr_b16 v[{B+2}:{B+3}], v{8+x} offset:{off+512}"]
        return [f"ds_read_b128 {vr(B)}, v{8+x} offset:{kb*1024}"]
    per = 2 if tr else 1
    ONE, SA, SG = V_T, V_T + 4, V_T + 8
    if tr:
        for k in range(4): a(f"v_mov_b32 v{ONE+k}, 0x3f803f80")
    for n in range(3):
        for op in rd(n): a(op)
    for n in range(64):
        kb, x = n >> 2, n & 3
        if x == 0 and hook: hook(kb)
        infl = min(2, 63 - n)
        a(f"s_waitcnt lgkmcnt({infl*per})")
        B = V_XB + 4 * x
        for t in range(3):
            c = V_ACC + (x * 3 + t) * 4
            a(f"v_mfma_f32_16x16x32_bf16 {vr(c)}, {w13(kb,t)}, {vr(B)}, {'0' if kb == 0 else vr(c)}")
            if t == 0 and n + 3 < 64:
                for op in rd(n + 3): a(op)
        if tr and x == 1 and kb >= cs_from:
            for t in range(3):
                c = V_CS + 4 * t
                a(f"v_mfma_f32_16x16x32_bf16 {vr(c)}, {w13(kb,t)}, {vr(ONE)}, {vr(c)}")
        if tr and x == 0:
            a(f"v_mfma_f32_16x16x32_bf16 {vr(SA)}, {vr(ONE)}, {vr(B)}, {'0' if kb == 0 else vr(SA)}")
            a(f"v_mfma_f32_16x16x32_bf16 {vr(SG)}, {vr(B)}, {vr(B)}, {'0' if kb == 0 else vr(SG)}")
    if tr:
        a(f"""v_and_b32 v4, 3, v2
        v_cmp_eq_u32 vcc, 1, v4
        v_cndmask_b32 v23, v{SG}, v{SG+1}, vcc
        v_cmp_eq_u32 vcc, 2, v4
        v_cndmask_b32 v23, v23, v{SG+2}, vcc
        v_cmp_eq_u32 vcc, 3, v4
        v_cndmask_b32 v23, v23, v{SG+3}, vcc
        v_mov_b32 v22, v{SA}""")
        ln_core(a, 22, 23)
        a(f"""v_lshrrev_b32 v4, 2, v2
        v_cmp_eq_u32 vcc, v4, v3
        s_and_saveexec_b64 s[38:39], vcc""")
        stats_write(a, sb, 22, 23)
        a("s_mov_b64 exec, s[38:39]\ns_waitcnt lgkmcnt(0)\ns_barrier")

def g1_epi(a, sb):
    so = sb * 1024
    for x in range(4): a(f"ds_read_b32 v{V_T+2*x}, v{15+x} offset:{8+so}")
    for p in range(2): a(f"ds_read_b64 v[{V_T+8+2*p}:{V_T+9+2*p}], v{19+p} offset:{so}")
    a("s_waitcnt lgkmcnt(0)")
    A = lambda x, t: V_ACC + (x * 3 + t) * 4
    for t in range(3):
        cs = V_CS + 4 * t
        for x in range(4):
            for h in range(2):
                r = A(x, t) + 2 * h
                a(f"v_pk_fma_f32 v[{r}:{r+1}], v[{cs+2*h}:{cs+2*h+1}], v[{V_T+2*x}:{V_T+2*x+1}], v[{r}:{r+1}] op_sel_hi:[1,0,1]")
    for t in range(3):
        for p in range(2):
            for r in range(4): a(f"v_permlane32_swap_b32 v{A(2*p,t)+r}, v{A(2*p+1,t)+r}")
    for p in range(2):
        c1 = V_T + 8 + 2 * p
        T = lambda t: V_XB + 4 * t
        for t in range(3):
            for h in range(2):
                a(f"v_pk_mul_f32 v[{T(t)+2*h}:{T(t)+2*h+1}], v[{A(2*p,t)+2*h}:{A(2*p,t)+2*h+1}], v[{c1}:{c1+1}] op_sel_hi:[1,0]")
        for t in range(3):
            for r in range(4): a(f"v_exp_f32 v{T(t)+r}, v{T(t)+r}")
        for t in range(3):
            for h in range(2):
                g, u = A(2*p, t) + 2 * h, A(2*p+1, t) + 2 * h
                a(f"v_pk_mul_f32 v[{g}:{g+1}], v[{g}:{g+1}], v[{u}:{u+1}]")
        for t in range(3):
            for h in range(2):
                a(f"v_pk_fma_f32 v[{T(t)+2*h}:{T(t)+2*h+1}], v[{T(t)+2*h}:{T(t)+2*h+1}], v[{c1}:{c1+1}], v[{c1}:{c1+1}] op_sel:[0,1,1] op_sel_hi:[1,1,1]")
        for t in range(3):
            for r in range(4): a(f"v_rcp_f32 v{T(t)+r}, v{T(t)+r}")
        for t in range(3):
            for h in range(2):
                g = A(2*p, t) + 2 * h
                a(f"v_pk_mul_f32 v[{g}:{g+1}], v[{g}:{g+1}], v[{T(t)+2*h}:{T(t)+2*h+1}]")
        for t in range(3):
            g = A(2*p, t); u = A(2*p+1, t)
            a(f"""v_cvt_pk_bf16_f32 v{u}, v{g}, v{g+1}
            v_cvt_pk_bf16_f32 v{u+1}, v{g+2}, v{g+3}""")
        for t in range(3):
            u = A(2*p+1, t)
            a(f"buffer_store_dwordx2 v[{u}:{u+1}], v{12+p}, {WSR}, s{52+t} offen {LS('h')}")
def g1_next(a):
    for x in range(4): a(f"v_add_u32 v{8+x}, 0x10000, v{8+x}")
    for p in range(2): a(f"v_add_u32 v{12+p}, {4*HT}, v{12+p}")


NEG = (22, 24)
def epi_ops(P):
    p = P & 1; so = (P >> 1) * 1024
    A = lambda x, t: V_ACC + (x * 3 + t) * 4
    T = lambda t: V_T + 12 + 4 * t
    c1, ir = 26, 27
    ops = [f"ds_read_b32 v{NEG[0]}, v{15+2*p} offset:{8+so}", f"ds_read_b32 v{NEG[1]}, v{15+2*p+1} offset:{8+so}", f"ds_read_b64 v[26:27], v{19+p} offset:{so}"]
    ops += ["@gap"] * 10
    for t in range(3):
        for xl in range(2):
            for r in range(4): ops.append(f"v_fma_f32 v{A(2*p+xl,t)+r}, v{V_CS+4*t+r}, v{NEG[xl]}, v{A(2*p+xl,t)+r}")
    for t in range(3):
        for r in range(4): ops.append(f"v_permlane32_swap_b32 v{A(2*p,t)+r}, v{A(2*p+1,t)+r}")
    for t in range(3):
        for r in range(4): ops.append(f"v_mul_f32 v{T(t)+r}, v{A(2*p,t)+r}, v{c1}")
    for t in range(3):
        for r in range(4): ops.append(f"v_exp_f32 v{T(t)+r}, v{T(t)+r}")
        for r in range(4): ops.append(f"v_mul_f32 v{A(2*p,t)+r}, v{A(2*p,t)+r}, v{A(2*p+1,t)+r}")
    for t in range(3):
        for r in range(4): ops.append(f"v_fma_f32 v{T(t)+r}, v{T(t)+r}, v{ir}, v{ir}")
    for t in range(3):
        for r in range(4): ops.append(f"v_rcp_f32 v{T(t)+r}, v{T(t)+r}")
    for t in range(3):
        for r in range(4): ops.append(f"v_mul_f32 v{A(2*p,t)+r}, v{A(2*p,t)+r}, v{T(t)+r}")
    for t in range(3):
        g, u = A(2*p, t), A(2*p+1, t)
        ops += [f"v_cvt_pk_bf16_f32 v{u}, v{g}, v{g+1}", f"v_cvt_pk_bf16_f32 v{u+1}, v{g+2}, v{g+3}"]
    for t in range(3):
        u = A(2*p+1, t)
        ops.append(f"buffer_store_dwordx2 v[{u}:{u+1}], v{12+p}, {WSR}, s{52+t} offen {LS('h')}")
    ops.append(f"v_add_u32 v{12+p}, {4*HT}, v{12+p}")
    return ops

def epi_pk(a, P):
    p = P & 1; so = (P >> 1) * 1024
    A = lambda x, t: V_ACC + (x * 3 + t) * 4
    T = (lambda t: V_XB + 4 * t) if P == 3 else (lambda t: V_T + 12 + 4 * t)
    c1 = 26
    a(f"ds_read_b32 v{NEG[0]}, v{15+2*p} offset:{8+so}\nds_read_b32 v{NEG[1]}, v{15+2*p+1} offset:{8+so}\nds_read_b64 v[26:27], v{19+p} offset:{so}\ns_waitcnt lgkmcnt(0)")
    for t in range(3):
        cs = V_CS + 4 * t
        for xl in range(2):
            for h in range(2):
                r = A(2*p+xl, t) + 2 * h
                a(f"v_pk_fma_f32 v[{r}:{r+1}], v[{cs+2*h}:{cs+2*h+1}], v[{NEG[xl]}:{NEG[xl]+1}], v[{r}:{r+1}] op_sel_hi:[1,0,1]")
    for t in range(3):
        for r in range(4): a(f"v_permlane32_swap_b32 v{A(2*p,t)+r}, v{A(2*p+1,t)+r}")
    for t in range(3):
        for h in range(2):
            a(f"v_pk_mul_f32 v[{T(t)+2*h}:{T(t)+2*h+1}], v[{A(2*p,t)+2*h}:{A(2*p,t)+2*h+1}], v[{c1}:{c1+1}] op_sel_hi:[1,0]")
    for t in range(3):
        for r in range(4): a(f"v_exp_f32 v{T(t)+r}, v{T(t)+r}")
    for t in range(3):
        for h in range(2):
            g, u = A(2*p, t) + 2 * h, A(2*p+1, t) + 2 * h
            a(f"v_pk_mul_f32 v[{g}:{g+1}], v[{g}:{g+1}], v[{u}:{u+1}]")
    for t in range(3):
        for h in range(2):
            a(f"v_pk_fma_f32 v[{T(t)+2*h}:{T(t)+2*h+1}], v[{T(t)+2*h}:{T(t)+2*h+1}], v[{c1}:{c1+1}], v[{c1}:{c1+1}] op_sel:[0,1,1] op_sel_hi:[1,1,1]")
    for t in range(3):
        for r in range(4): a(f"v_rcp_f32 v{T(t)+r}, v{T(t)+r}")
    for t in range(3):
        for h in range(2):
            g = A(2*p, t) + 2 * h
            a(f"v_pk_mul_f32 v[{g}:{g+1}], v[{g}:{g+1}], v[{T(t)+2*h}:{T(t)+2*h+1}]")
    for t in range(3):
        g = A(2*p, t); u = A(2*p+1, t)
        a(f"v_cvt_pk_bf16_f32 v{u}, v{g}, v{g+1}\nv_cvt_pk_bf16_f32 v{u+1}, v{g+2}, v{g+3}")
    a.tag = f"E{P}"
    for t in range(3):
        u = A(2*p+1, t)
        a(f"buffer_store_dwordx2 v[{u}:{u+1}], v{12+p}, {WSR}, s{52+t} offen {LS('h')}")
    a.tag = None
    if P < 2: a(f"v_add_u32 v{12+p}, {4*HT}, v{12+p}")


def touch_h(a, half, T):
    if not TOUCH: return
    for p in range(2):
        adj = 4 * HT if (half == 0 or p == 0) else 0
        for t in range(3):
            a(f"s_sub_u32 s36, s{52+t}, {adj}\nbuffer_load_dword v{T}, v{12+p}, {WSR}, s36 offen sc1")

def l1_stats(a, hf):
    SA, SG = V_T + 4, V_T + 8
    a(f"""v_and_b32 v4, 3, v2
    v_cmp_eq_u32 vcc, 1, v4
    v_cndmask_b32 v29, v{SG}, v{SG+1}, vcc
    v_cmp_eq_u32 vcc, 2, v4
    v_cndmask_b32 v29, v29, v{SG+2}, vcc
    v_cmp_eq_u32 vcc, 3, v4
    v_cndmask_b32 v29, v29, v{SG+3}, vcc
    v_mov_b32 v28, v{SA}""")
    ln_core(a, 28, 29)
    a(f"""v_rcp_f32 v5, v29
    v_mul_f32 v{SA+1}, v29, v29
    v_sub_f32 v{SA+2}, 0, v28
    v_mul_f32 v{SA}, 0xbfb8aa3b, v5
    v_mov_b32 v{SA+3}, 0
    s_lshl_b32 s36, s{S_W}, 8
    s_add_u32 s36, s36, {L_ST + hf * 1024}
    v_lshl_add_u32 v6, v2, 4, s36
    v_lshrrev_b32 v4, 2, v2
    v_cmp_eq_u32 vcc, v4, v3
    s_and_saveexec_b64 s[38:39], vcc
    ds_write_b128 v6, {vr(SA)}
    s_mov_b64 exec, s[38:39]
    s_waitcnt lgkmcnt(0)
    s_barrier""")

def g1_stream(a, layer, hook=None, cs_from=16, st=None):
    tr = layer == 1
    per = 2 if tr else 1
    def rd(N):
        P, n = N >> 5, N & 31
        kb, xl = n >> 1, n & 1
        x = 2 * (P & 1) + xl
        B = V_XB + 4 * (N & 3)
        if tr:
            off = (kb >> 1) * 8192 + (kb & 1) * 1024
            return [f"ds_read_b64_tr_b16 v[{B}:{B+1}], v{8+x} offset:{off}", f"ds_read_b64_tr_b16 v[{B+2}:{B+3}], v{8+x} offset:{off+512}"]
        return [f"ds_read_b128 {vr(B)}, v{8+x} offset:{kb*1024}"]
    ONE, SA, SG = V_T, V_T + 4, V_T + 8
    if tr:
        for k in range(4): a(f"v_mov_b32 v{ONE+k}, 0x3f803f80")
    for N in range(3):
        for op in rd(N): a(op)
    restart = set()
    for P in range(4):
        fill = epi_ops(P - 1) if (P > 0 and not (tr and L1PK)) else []
        if P == 1: fill = [f"v_add_u32 v{8+x}, 0x10000, v{8+x}" for x in (0, 1)] + fill
        if P == 2: fill = [f"v_add_u32 v{8+x}, 0x10000, v{8+x}" for x in (2, 3)][:0] + fill
        cost = lambda op: 2.0 if op.startswith(("v_exp", "v_rcp", "v_permlane")) else 1.0
        rate = sum(cost(o) for o in fill) / 92.0
        budget = 0.0
        for n in range(32):
            N = P * 32 + n
            kb, xl = n >> 1, n & 1
            if xl == 0 and hook: hook(P, kb)
            if P == 2 and n == 4:
                for x in (2, 3): a(f"v_add_u32 v{8+x}, 0x10000, v{8+x}")
            infl = min(2, 127 - N)
            a(f"s_waitcnt lgkmcnt({infl*per})")
            B = V_XB + 4 * (N & 3)
            x = 2 * (P & 1) + xl
            mf = [f"v_mfma_f32_16x16x32_bf16 {vr(V_ACC + (x*3+t)*4)}, {w13(kb,t)}, {vr(B)}, {'0' if kb == 0 else vr(V_ACC + (x*3+t)*4)}" for t in range(3)]
            if tr and P == 0 and xl == 1 and kb >= cs_from:
                mf += [f"v_mfma_f32_16x16x32_bf16 {vr(V_CS+4*t)}, {w13(kb,t)}, {vr(ONE)}, {vr(V_CS+4*t)}" for t in range(3)]
            if tr and P in (0, 2) and xl == 0:
                mf.append(f"v_mfma_f32_16x16x32_bf16 {vr(SA)}, {vr(ONE)}, {vr(B)}, {'0' if kb == 0 else vr(SA)}")
                mf.append(f"v_mfma_f32_16x16x32_bf16 {vr(SG)}, {vr(B)}, {vr(B)}, {'0' if kb == 0 else vr(SG)}")
            for i, m in enumerate(mf):
                a(m)
                if i == 0 and N + 3 < 128:
                    for op in rd(N + 3): a(op)
                if i < 3:
                    budget += rate
                    while fill and budget >= cost(fill[0]) - 0.5:
                        op = fill.pop(0); budget -= cost(op)
                        if op.startswith("buffer_store"): a.tag = f"E{P-1}"
                        if op != "@gap": a(op)
                        a.tag = None
        for op in fill:
            if op.startswith("buffer_store"): a.tag = f"E{P-1}"
            if op != "@gap": a(op)
            a.tag = None
        if st is not None and FINE == 'P': fstamp(a, st + P)
        if tr and P in (0, 2):
            l1_stats(a, P >> 1)
        if tr and L1PK and P < 3:
            epi_pk(a, P)
    epi_pk(a, 3)

def emit_g2(a, layer, hbase, etagA, st):
    ACC = V_ACC
    acc = lambda dt, x: ACC + (x * 4 + dt) * 4
    for x in range(4):
        a(f"""s_add_u32 s36, s{S_W}, {x}
        s_and_b32 s36, s36, 3
        s_lshl_b32 s37, s20, 3
        s_add_u32 s36, s36, s37
        s_lshl_b32 s37, s22, 2
        s_add_u32 s36, s36, s37
        s_mul_i32 s36, s36, {HT}
        s_mul_i32 s37, s{S_W}, {11*1024}
        s_add_u32 s36, s36, s37
        s_add_u32 s{56+x}, s36, {hbase}
        s_cmp_eq_u32 s{S_W}, 3
        s_cselect_b32 s{60+x}, {INV}, s{56+x}""")
    a(f"""s_lshl_b32 s51, s{S_W}, 15
    v_lshrrev_b32 v2, 4, v1
    v_and_b32 v3, 15, v1
    v_lshlrev_b32 v8, 7, v2
    v_lshl_add_u32 v8, v3, 3, v8
    v_add_u32 v8, s51, v8
    s_add_u32 s50, s{S_GEN}, s22
    s_add_u32 s50, s50, {etagA}""")
    def su():
        member_flag_off(a, 9, "0", 16)
    wg_wait(a, su, 9, 1, None, V_HB, etag=50)
    stamp(a, st)
    for x in range(4): a(f"v_add_u32 v{10+x}, s{56+x}, v31")
    a(f"""s_mov_b32 s56, 0
    s_movk_i32 s57, 4096
    s_movk_i32 s58, 8192
    s_cmp_eq_u32 s{S_W}, 3
    s_cselect_b32 s59, {INV}, s58""")
    def dma_m0(i, x): return f"s_add_u32 m0, s51, {x*8192 + ((i % 8) & ~3)*1024}"
    def dma_ld(i, x):
        sg = 59 if i == 10 else 56 + (i >> 2)
        return f"buffer_load_dwordx4 v{10+x}, {WSR}, s{sg} offen offset:{(i & 3)*1024} sc1 lds"
    for i in range(4):
        for x in range(4):
            a(dma_m0(i, x)); a.tag = f"g2_{layer}_{i}_{x}"; a(dma_ld(i, x)); a.tag = None
    q = [(i, x) for i in range(4, 11) for x in range(4)]
    def sx(n):
        i, x = n >> 2, n & 3
        if i == 10 and EARLYW: x = (x + 1) & 3
        return i, x
    def rd(n):
        i, x = sx(n)
        B = V_HB + 4 * (n & 3); off = x * 8192 + (i % 8) * 1024
        return [f"ds_read_b64 v[{B}:{B+1}], v8 offset:{off}", f"ds_read_b64 v[{B+2}:{B+3}], v8 offset:{off+512}"]
    lastn = [None]
    def vmw(n):
        i, x = sx(n)
        tag = f"g2_{layer}_{i}_{x}"
        pos = max(k for k, t in enumerate(a.vmlog) if t == tag)
        cnt = len(a.vmlog) - 1 - pos
        if lastn[0] is not None and pos <= lastn[0]: return
        a(f"s_waitcnt vmcnt({cnt})"); lastn[0] = pos
    if FINE == 'G': fstamp(a, 1 + 6 * (layer - 1))
    vmw(2)
    stamp(a, st + 1)
    if FINE == 'G': fstamp(a, 2 + 6 * (layer - 1))
    for n in range(3):
        for op in rd(n): a(op)
    if EARLYW: a(f"v_add_u32 v9, s51, v31")
    for n in range(44):
        i, x = sx(n)
        infl = min(2, 43 - n)
        a(f"s_waitcnt lgkmcnt({infl*2 + (4 if (EARLYW and n == 43) else 0)})")
        B = V_HB + 4 * (n & 3)
        for dt in range(4):
            c = acc(dt, x)
            a(f"v_mfma_f32_16x16x32_bf16 {vr(c)}, {w2(i,dt)}, {vr(B)}, {'0' if i == 0 else vr(c)}")
            if dt == 0 and n + 3 < 44:
                vmw(n + 3)
                for op in rd(n + 3): a(op)
            if q and dt == 1: a(dma_m0(*q[0]))
            if q and dt == 2:
                i_, x_ = q.pop(0)
                a.tag = f"g2_{layer}_{i_}_{x_}"; a(dma_ld(i_, x_)); a.tag = None
        if EARLYW and n in (42, 43):
            xs = n - 41
            for dt in range(4): a(f"ds_write_b128 v9, {vr(acc(dt,xs))} offset:{((xs-1)*4+dt)*1024}")
    assert not q
    if FINE == 'G': fstamp(a, 3 + 6 * (layer - 1))
    stamp(a, st + 2)
    if not EARLYW: a(f"v_add_u32 v9, s51, v31")
    for x in range(3 if EARLYW else 1, 4):
        for dt in range(4):
            a(f"ds_write_b128 v9, {vr(acc(dt,x))} offset:{((x-1)*4+dt)*1024}")
    for x in range(1, 4):
        a(f"""s_sub_u32 s36, s{S_W}, {x}
        s_and_b32 s36, s36, 3
        s_lshl_b32 s36, s36, 15
        v_add_u32 v{9+x}, s36, v31""")
    a("s_waitcnt lgkmcnt(0)\ns_barrier")
    for x in range(1, 4):
        for dt in range(4):
            a(f"ds_read_b128 {vr(acc(dt,x))}, v{9+x} offset:{((x-1)*4+dt)*1024}")
    if layer == 1:
        a(f"""v_bfe_u32 v4, v1, 2, 2
        v_lshl_add_u32 v4, v2, 4, v4
        v_lshlrev_b32 v4, 7, v4
        v_and_b32 v5, 3, v1
        v_lshl_add_u32 v4, v5, 3, v4
        s_lshl_b32 s36, s{S_W}, 5
        s_add_u32 s36, s36, {L_TX}
        v_add_u32 v4, s36, v4""")
        P = V_HB; Yp = V_HB + 8
        for dt in range(4):
            a(f"ds_read_b64_tr_b16 v[{P+2*dt}:{P+2*dt+1}], v4 offset:{dt*512}")
        for dt in range(4):
            a(f"ds_read_b64_tr_b16 v[{Yp+2*dt}:{Yp+2*dt+1}], v4 offset:{8192+dt*512}")
        nl = 8
    else:
        P = V_X3; nl = 0
    for x in range(1, 4):
        a(f"s_waitcnt lgkmcnt({min(15, (3-x)*4 + nl)})")
        for dt in range(4):
            for h in range(2):
                c, o = acc(dt, 0) + 2 * h, acc(dt, x) + 2 * h
                a(f"v_pk_add_f32 v[{c}:{c+1}], v[{c}:{c+1}], v[{o}:{o+1}]")
    stamp(a, st + 3)
    if FINE == 'G': fstamp(a, 4 + 6 * (layer - 1))
    O = ACC; X = ACC + 16; PK = ACC + 48
    a("s_waitcnt lgkmcnt(0)")
    for k in range(8):
        a(f"v_lshlrev_b32 v{X+2*k}, 16, v{P+k}\nv_and_b32 v{X+2*k+1}, 0xffff0000, v{P+k}")
    for k in range(8): a(f"v_cvt_pk_bf16_f32 v{PK+k}, v{O+2*k}, v{O+2*k+1}")
    for k in range(8):
        a(f"v_lshlrev_b32 v{O+2*k}, 16, v{PK+k}\nv_and_b32 v{O+2*k+1}, 0xffff0000, v{PK+k}")
    for k in range(8):
        a(f"v_pk_add_f32 v[{O+2*k}:{O+2*k+1}], v[{O+2*k}:{O+2*k+1}], v[{X+2*k}:{X+2*k+1}]")
    for k in range(8): a(f"v_cvt_pk_bf16_f32 v{PK+k}, v{O+2*k}, v{O+2*k+1}")
    if layer == 2:
        a(f"""s_load_dwordx2 s[32:33], s[0:1], {ARG['out']}
        s_lshl_b32 s36, s20, 7
        s_lshl_b32 s37, s22, 6
        s_add_u32 s36, s36, s37
        s_lshl_b32 s37, s{S_W}, 4
        s_add_u32 s36, s36, s37
        s_lshl_b32 s36, s36, 10
        s_lshl_b32 s37, s23, 7
        s_add_u32 s36, s36, s37
        v_lshlrev_b32 v4, 10, v3
        v_lshl_add_u32 v4, v2, 5, v4
        s_waitcnt lgkmcnt(0)
        s_mov_b32 s34, {S*D*2}
        s_mov_b32 s35, 0x20000
        buffer_store_dwordx4 {vr(PK)}, v4, s[32:35], s36 offen {OUTF}
        buffer_store_dwordx4 {vr(PK+4)}, v4, s[32:35], s36 offen offset:16 {OUTF}""")
        return
    a(f"v_mov_b32 v22, 0\nv_mov_b32 v23, 0\nv_mov_b32 v21, 0x3f803f80\nv_mov_b32 v26, 0\nv_mov_b32 v27, 0")
    for k in range(0, 8, 2):
        a(f"""v_dot2_f32_bf16 v22, v{PK+k}, v21, v22
        v_dot2_f32_bf16 v23, v{PK+k}, v{PK+k}, v23
        v_dot2_f32_bf16 v26, v{PK+k+1}, v21, v26
        v_dot2_f32_bf16 v27, v{PK+k+1}, v{PK+k+1}, v27""")
    a("v_add_f32 v22, v22, v26\nv_add_f32 v23, v23, v27")
    a(f"""v_mov_b32 v24, v22
    v_mov_b32 v25, v23
    v_permlane16_swap_b32 v22, v24
    v_permlane16_swap_b32 v23, v25
    v_add_f32 v22, v22, v24
    v_add_f32 v23, v23, v25
    v_mov_b32 v24, v22
    v_mov_b32 v25, v23
    v_permlane32_swap_b32 v22, v24
    v_permlane32_swap_b32 v23, v25
    v_add_f32 v22, v22, v24
    v_add_f32 v23, v23, v25""")
    L = a.newlabel("hop")
    a(f"""s_add_u32 s50, s{S_GEN}, 12
    v_mov_b32 v24, s50
    v_mov_b32 v25, 0
    s_lshl_b32 s36, s20, 1
    s_add_u32 s36, s36, s22
    s_lshl_b32 s36, s36, 13
    s_lshl_b32 s37, s{S_W}, 8
    s_add_u32 s36, s36, s37
    s_add_u32 s36, s36, {WS['SYNC'] + SYNC_ST2}
    s_lshl_b32 s37, s23, 10
    s_add_u32 s37, s37, s36
    v_lshlrev_b32 v4, 4, v3
    s_mov_b64 exec, 0xffff""")
    dstore(a, f"buffer_store_dwordx4 v[22:25], v4, {WSR}, s37 offen {{F}}", "hop")
    a(f"""s_mov_b64 exec, -1
    v_lshl_add_u32 v5, v2, 11, v4""")
    for k in range(8):
        a(f"v_lshlrev_b32 v{X+2*k}, 16, v{PK+k}\nv_and_b32 v{X+2*k+1}, 0xffff0000, v{PK+k}")
    a(f"""s_mov_b32 s38, 0
    {L}_p:
    buffer_load_dwordx4 v[{O}:{O+3}], v5, {WSR}, s36 offen sc1
    buffer_load_dwordx4 v[{O+4}:{O+7}], v5, {WSR}, s36 offen offset:1024 sc1
    s_add_u32 s38, s38, 1
    s_waitcnt vmcnt(0)
    v_cmp_eq_u32 vcc, s50, v{O+2}
    v_cmp_eq_u32 s[40:41], s50, v{O+6}
    s_and_b64 vcc, vcc, s[40:41]
    s_cmp_gt_u32 s38, 200000
    s_cbranch_scc1 {L}_d
    s_cmp_eq_u64 vcc, -1
    s_cbranch_scc0 {L}_p
    {L}_d:
    v_add_f32 v22, v{O}, v{O+4}
    v_add_f32 v23, v{O+1}, v{O+5}
    v_mov_b32 v24, v22
    v_mov_b32 v25, v23
    v_permlane16_swap_b32 v22, v24
    v_permlane16_swap_b32 v23, v25
    v_add_f32 v22, v22, v24
    v_add_f32 v23, v23, v25
    v_mov_b32 v24, v22
    v_mov_b32 v25, v23
    v_permlane32_swap_b32 v22, v24
    v_permlane32_swap_b32 v23, v25
    v_add_f32 v22, v22, v24
    v_add_f32 v23, v23, v25""")
    ln_core(a, 22, 23)
    a(f"""v_rcp_f32 v24, v23
    v_sub_f32 v22, 0, v22
    v_mul_f32 v26, v22, v24""")
    Yf = ACC
    for k in range(8):
        a(f"v_lshlrev_b32 v{Yf+2*k}, 16, v{Yp+k}\nv_and_b32 v{Yf+2*k+1}, 0xffff0000, v{Yp+k}")
    N = ACC + 32
    for k in range(8):
        a(f"v_pk_fma_f32 v[{N+2*k}:{N+2*k+1}], v[{X+2*k}:{X+2*k+1}], v[24:25], v[26:27] op_sel_hi:[1,0,0]")
    for k in range(8):
        a(f"v_pk_fma_f32 v[{N+2*k}:{N+2*k+1}], v[{N+2*k}:{N+2*k+1}], v[{Yf+2*k}:{Yf+2*k+1}], v[{X+2*k}:{X+2*k+1}]")
    for k in range(8):
        a(f"v_cvt_pk_bf16_f32 v{V_X3+k}, v{N+2*k}, v{N+2*k+1}")
    a(f"""s_lshl_b32 s36, s20, 3
    s_lshl_b32 s37, s22, 2
    s_add_u32 s36, s36, s37
    s_add_u32 s36, s36, s{S_W}
    s_lshl_b32 s38, s36, 10
    s_lshl_b32 s36, s36, 14
    s_lshl_b32 s37, s23, 11
    s_add_u32 s36, s36, s37
    s_add_u32 s36, s36, {WS['X3']}""")
    dstore(a, f"""buffer_store_dwordx4 {vr(V_X3)}, v31, {WSR}, s36 offen {{F}}
    buffer_store_dwordx4 {vr(V_X3+4)}, v31, {WSR}, s36 offen offset:1024 {{F}}""", "x3")
    a(f"v_mov_b32 v22, 0\nv_mov_b32 v23, 0\nv_mov_b32 v26, 0\nv_mov_b32 v27, 0")
    for k in range(0, 8, 2):
        a(f"""v_dot2_f32_bf16 v22, v{V_X3+k}, v21, v22
        v_dot2_f32_bf16 v23, v{V_X3+k}, v{V_X3+k}, v23
        v_dot2_f32_bf16 v26, v{V_X3+k+1}, v21, v26
        v_dot2_f32_bf16 v27, v{V_X3+k+1}, v{V_X3+k+1}, v27""")
    a(f"""v_add_f32 v22, v22, v26
    v_add_f32 v23, v23, v27
    v_mov_b32 v24, v22
    v_mov_b32 v25, v23
    v_permlane16_swap_b32 v22, v24
    v_permlane16_swap_b32 v23, v25
    v_add_f32 v22, v22, v24
    v_add_f32 v23, v23, v25
    v_mov_b32 v24, v22
    v_mov_b32 v25, v23
    v_permlane32_swap_b32 v22, v24
    v_permlane32_swap_b32 v23, v25
    v_add_f32 v22, v22, v24
    v_add_f32 v23, v23, v25
    s_lshl_b32 s37, s23, 7
    s_add_u32 s38, s38, s37
    s_add_u32 s38, s38, {WS['SYNC'] + SYNC_ST3}
    v_lshlrev_b32 v4, 3, v3
    s_mov_b64 exec, 0xffff""")
    dstore(a, f"buffer_store_dwordx2 v[22:23], v4, {WSR}, s38 offen {{F}}")
    a("s_mov_b64 exec, -1")

NW13L = 12
NW13A = 12
NW13B = 39
PACE = 5
CHK1 = 2
FINE = None
NWPRE = 0
WREV = False
EARLYW = True
TOUCH = False
SPLIT = False
PST = 'sc1'
NWS = 6
NWL1 = 6
NW2E = 0
SLEEP = 0
CNT3 = False
OUTF = ''
FRONT4 = False
UPFRONT = 1
L1PK = False
WFIRST = False
PROBE = None
CODEPF = True
DBG = 0
def build():
    a = Asm()
    global stamp
    if FINE:
        real = common.stamp
        def stamp_(a_, i):
            if i == 0: real(a_, 0)
        stamp = stamp_
        def fst(a_, i):
            real(a_, i)
            if FINE in ('P', 'G'):
                a_(f"s_memtime s[70:71]\ns_waitcnt lgkmcnt(0)\ns_mov_b32 s{72+14+i}, s70")
        globals()['fstamp'] = fst
    else:
        globals()['fstamp'] = lambda a_, i: None
    if SPLIT:
        build_prep_kernel(a, "prep_kernel")
    kbegin(a, KN)
    if not SPLIT:
        emit_prologue(a)
        emit_prep_loads(a)
    if not SPLIT:
        a("s_waitcnt lgkmcnt(0)")
        a(f"""s_getreg_b32 s36, hwreg(HW_REG_XCC_ID, 0, 4)
    s_add_u32 s{S_IDW}, s{S_GEN}, 13
    s_lshl_b32 s{S_IDW}, s{S_IDW}, 4
    s_or_b32 s{S_IDW}, s{S_IDW}, s36
    s_mov_b32 s{S_LOC}, 0
    s_cmp_lg_u32 s{S_W}, 0
    s_cbranch_scc1 L_noid
    v_mov_b32 v174, s{S_IDW}
    v_mov_b32 v175, s{S_FLAG}
    s_mov_b64 exec, 1
    buffer_store_dword v174, v175, {WSR}, 0 offen offset:4 sc1
    s_mov_b64 exec, -1
    L_noid:""")
    w13ops = [f"s_add_u32 s36, s{40+t}, {kb*1024}\nbuffer_load_dwordx4 {w13(kb,t)}, v31, {WSR}, s36 offen sc1" for kb in range(16) for t in range(3)]
    if SPLIT:
        emit_split_front(a, w13ops)
        signal(a, 3)
        stamp(a, 9)
        a("v_and_b32 v1, 63, v0")
        for op in w13ops[NW13A:NW13B]: a(op)
    elif FRONT4:
        emit_front4(a, None)
        signal(a, 3)
        stamp(a, 9)
        a("v_and_b32 v1, 63, v0")
        a(f"v_lshlrev_b32 v22, 6, v1\nv_add_u32 v22, {WS['SYNC'] + SYNC_FLAGS}, v22")
        for i in range(4):
            if i == 0: a(f"buffer_load_dword v24, v22, {WSR}, 0 offen offset:8 sc1")
            else: a(f"s_movk_i32 s39, {4096*i}\nbuffer_load_dword v{24+i}, v22, {WSR}, s39 offen offset:8 sc1")
        a("s_waitcnt vmcnt(0)")
        flagcheck(a, 1, (24, 25, 26, 27), 22, "L_w_ok", tmp=(29, 30), off=8)
        for op in w13ops[:NW13B]: a(op)
    else:
        emit_prep_compute(a)
        emit_ffn_roles(a)
        hooks = dict(conv_loop_extra=w13ops[:NW13L], n_conv_total_w=NW13L, conv_epi_extra=w13ops[NW13L:NW13A])
        emit_conv(a, hooks)
        if CNT3:
            a(f"""s_waitcnt vmcnt(0)
            s_barrier
            s_cmp_lg_u32 s{S_W}, 0
            s_cbranch_scc1 L_s3
            s_and_b32 s36, s2, 15
            s_lshl_b32 s36, s36, 7
            s_add_u32 s36, s36, {WS['SYNC'] + SYNC_CNT}
            v_mov_b32 v2, 1
            v_mov_b32 v3, s36
            s_mov_b64 exec, 1
            buffer_atomic_add v2, v3, {WSR}, 0 offen
            s_mov_b64 exec, -1
            L_s3:""")
        else:
            for op in w13ops[NW13A:NW13A + NWPRE]: a(op)
            signal(a, 3, vm=NWPRE)
        stamp(a, 9)
        a("v_and_b32 v1, 63, v0")
        w_batch(a, w13ops[NW13A + NWPRE:NW13B])
    if not FRONT4:
        if NWPRE: a(f"s_waitcnt vmcnt({NW13B - NW13A})")
        emit_cs(a, 0, NW13A // 3)
    x1_dma_setup(a)
    g1_addr(a, 1, WS['H1'])
    def su3():
        a(f"v_lshlrev_b32 v14, 6, v1\nv_add_u32 v14, {WS['SYNC'] + SYNC_FLAGS}, v14")
    if CNT3:
        a(f"""s_cmp_lg_u32 s{S_W}, 3
        s_cbranch_scc1 L_w3j
        v_and_b32 v14, 15, v1
        v_lshlrev_b32 v14, 7, v14
        v_add_u32 v14, {WS['SYNC'] + SYNC_CNT}, v14
        s_mov_b32 s38, 0
        L_w3p:
        buffer_load_dword v{V_T}, v14, {WSR}, 0 offen sc1
        s_add_u32 s38, s38, 1
        s_waitcnt vmcnt(0)
        v_cmp_eq_u32 vcc, 16, v{V_T}
        s_cmp_gt_u32 s38, 200000
        s_cbranch_scc1 L_w3j
        s_cmp_eq_u64 vcc, -1
        s_cbranch_scc0 L_w3p
        L_w3j:
        s_barrier""")
    else:
        wg_wait(a, su3, 14, 4, 3, V_T, wave=3)
    stamp(a, 10)
    x1ops = x1_dma_ops(0)
    a.tag = 'w13b'; a.vmlog.append('w13b')
    for n, op in enumerate(x1ops):
        a.tag = 'x0a' if n <= 8 else 'x0b'; a(op)
    w2q = list(range(44))
    a.tag = 'w2'
    for _ in range(NW2E):
        i = w2q.pop(0); w2_loads(a, i, i + 1)
    a.tag = None
    nC = 48 - NW13B
    a.vmlog.remove('w13b') if False else None
    pos = a.vmlog.index('w13b')
    a(f"s_waitcnt vmcnt({len(a.vmlog) - 1 - pos})")
    emit_cs(a, 0 if FRONT4 else NW13A // 3, NW13B // 3)
    a.vmneed('x0a'); a("s_barrier")
    stamp(a, 11)
    w13c = [(w13ops[i], f"wc{i // 3}") for i in range(NW13B, 48)]
    kbC = NW13B // 3
    x1h1 = x1_dma_ops(1)
    def hook1(P, kb):
        if P == 0:
            if kb == 6: a.vmneed('x0b'); a("s_barrier")
            if nC and kb >= kbC: a.vmneed(f"wc{kb}")
            for _ in range(3):
                if w13c:
                    op, tg = w13c.pop(0); a.tag = tg; a(op); a.tag = None
            k0 = 8 - (0 if nC > 9 else 4)
            if kb == k0: a(x1h1.pop(0))
            if kb >= k0:
                a.tag = 'x1h'
                for _ in range(2):
                    if x1h1: a(x1h1.pop(0))
                a.tag = None
        if P == 1 and kb == 0:
            tiles_dma(a)
            a("v_and_b32 v2, 15, v1\nv_lshrrev_b32 v3, 4, v1")
        if P == 1 and kb == 13:
            a.vmneed('x1h'); a("s_barrier")
        if (P, kb) == ((2, 8) if L1PK else (3, 6)):
            signal(a, 4, tv=(30, 29), local=True, vm='E1')
            touch_h(a, 0, 14)
        if P >= 1 and w2q and not (P == 1 and kb < 2):
            i = w2q.pop(0); a.tag = 'w2'; w2_loads(a, i, i + 1); a.tag = None
    if FINE == 'P': fstamp(a, 1)
    g1_stream(a, 1, hook1, cs_from=kbC, st=2)
    if FINE == 'P': fstamp(a, 6)
    for i in w2q: w2_loads(a, i, i + 1)
    signal(a, 5, local=True)
    touch_h(a, 1, 14)
    stamp(a, 14)
    emit_g2(a, 1, WS['H1'], 4, 15)
    signal(a, 6, local=True)
    stamp(a, 19)
    g1_addr(a, 2, WS['H2'])
    def su6a(): member_flag_off(a, 14, "0", 8)
    wg_wait(a, su6a, 14, 1, 6, V_T)
    stamp(a, 20)
    st3_stats(a, 0)
    for op in x3_dma_ops(0): a(op)
    a("s_waitcnt vmcnt(16)")
    st3_finish(a, 0)
    a("s_waitcnt vmcnt(8) lgkmcnt(0)\ns_barrier")
    stamp(a, 21)
    x3h1 = x3_dma_ops(1)
    def hook2(P, kb):
        if P == 0:
            if kb == 0:
                member_flag_off(a, 14, "8", 8)
                a(f"buffer_load_dword v30, v14, {WSR}, 0 offen sc1")
            if kb == 6: a("s_waitcnt vmcnt(1)\ns_barrier")
            if kb == 10:
                L = a.newlabel("x3b")
                a(f"""s_waitcnt vmcnt(0)
                s_add_u32 s37, s{S_GEN}, 6
                v_subrev_u32 v30, s37, v30
                v_cmp_gt_u32 vcc, 16, v30
                s_cmp_eq_u64 vcc, -1
                s_cbranch_scc1 {L}""")
                wait_flags(a, 14, 1, 6, 30)
                a.label(L)
                st3_stats(a, 1)
                a(x3h1.pop(0))
            if kb >= 10:
                for _ in range(2): a(x3h1.pop(0))
        if P == 1:
            if kb < 2:
                for _ in range(2): a(x3h1.pop(0))
            if kb == 6:
                a("s_waitcnt vmcnt(16)")
                st3_finish(a, 1)
            if kb == 13: a("s_waitcnt vmcnt(3) lgkmcnt(3)\ns_barrier" if False else "s_waitcnt vmcnt(0)\ns_barrier")
        if P == 3 and kb == 6:
            signal(a, 7, tv=(30, 29), local=True)
            touch_h(a, 0, 14)
    if FINE == 'P': fstamp(a, 7)
    g1_stream(a, 2, hook2, st=8)
    if FINE == 'P': fstamp(a, 12)
    signal(a, 8, local=True)
    touch_h(a, 1, 14)
    stamp(a, 23)
    emit_g2(a, 2, WS['H2'], 7, 24)
    a(f"""s_or_b32 s36, s2, s{S_W}
    s_cmp_lg_u32 s36, 0
    s_cbranch_scc1 L_nogen
    s_add_u32 s36, s{S_GEN}, 16
    v_mov_b32 v2, s36
    v_mov_b32 v3, {WS['SYNC'] + SYNC_GEN}
    s_mov_b64 exec, 1
    buffer_store_dword v2, v3, {WSR}, 0 offen
    s_mov_b64 exec, -1
    L_nogen:""")
    if PROBE is not None:
        pa, pb, K = PROBE
        a(f"""s_waitcnt vmcnt(0) lgkmcnt(0)
        s_memrealtime s[70:71]
        s_waitcnt lgkmcnt(0)
        s_mov_b32 s100, s70
        s_or_b32 s36, s2, s{S_W}
        s_cmp_lg_u32 s36, 0
        s_cbranch_scc1 L_end
        s_sub_u32 s36, s{72+pb if pb < 28 else 100}, s{72+pa}
        s_mul_i32 s36, s36, {K}
        s_add_u32 s36, s36, s100
        L_spin:
        s_memrealtime s[70:71]
        s_waitcnt lgkmcnt(0)
        s_sub_u32 s37, s70, s36
        s_cmp_lt_i32 s37, 0
        s_cbranch_scc1 L_spin
        s_branch L_end""")
    if common.STAMPS:
        a("s_waitcnt vmcnt(0)"); stamp(a, 28)
    if DBG:
        sel = [1, 2, 3, 4, 5, 6, 7, 9, 10, 11, 14, 15, 19, 21, 23, 28]
        a(f"""s_cmp_lg_u32 s2, {DBG - 1}
        s_cbranch_scc1 L_end
        s_cmp_lg_u32 s{S_W}, 0
        s_cbranch_scc1 L_end
        s_load_dwordx2 s[68:69], s[0:1], {ARG['dbg']}
        s_waitcnt lgkmcnt(0)
        s_mov_b64 exec, 1""")
        for i, k in enumerate(sel):
            a(f"s_sub_u32 s70, s{72+k}, s72\nv_mov_b32 v2, s70\nv_mov_b32 v3, {4*i}\nglobal_store_dword v3, v2, s[68:69]")
    else:
        stamp_flush(a, 0, 29)
    a.label("L_end")
    a("s_endpgm")
    a.label("L_codeend")
    a("s_endpgm")
    if SPLIT:
        txt = header([("prep_kernel", 256, 768, PW + 2*6144 + 64 + 8192), (KN, 256, 256, LDS_TOTAL)]) + a.text() + kernel_desc("prep_kernel", 168, 72, 168) + kernel_desc(KN, 512, 102, 256)
    else:
        txt = header([(None, 256, 256, LDS_TOTAL)]) + a.text() + kernel_desc(KN, 512, 102, 256)
    return txt, a
if __name__ == "__main__":
    common.STAMPS = 's' in sys.argv[2:]
    LOCAL = any(x.startswith('l') for x in sys.argv[2:])
    for x in sys.argv[2:]:
        if x.startswith('l'): LOCSET.update(['flag'] + x[1:].split('+'))
    HALF = 'h' in sys.argv[2:]
    if HALF: DYNSET.intersection_update({'hop'})
    UPFRONT = 0 if 'noup' in sys.argv[2:] else (2 if 'up2' in sys.argv[2:] else 1)
    FRONT4 = 'f4' in sys.argv[2:]
    if FRONT4: UPFRONT = 2
    SPREAD = 'nosp' not in sys.argv[2:]
    L1PK = 'pk' in sys.argv[2:]
    for x in sys.argv[2:]:
        if x.startswith('w:'): NW13L, NW13A, NW13B = (int(y) for y in x[2:].split(','))
    for x in sys.argv[2:]:
        if x.startswith('p:'): PROBE = tuple(int(y) for y in x[2:].split(','))
    CODEPF = 'nopf' not in sys.argv[2:]
    NWPRE = max([int(x[4:]) for x in sys.argv[2:] if x.startswith('pre:')] + [0])
    WREV = 'wrev' in sys.argv[2:]
    EARLYW = 'noew' not in sys.argv[2:]
    for x in sys.argv[2:]:
        if x.startswith('chk'): CHK1 = int(x[3:])
    TOUCH = 'touch' in sys.argv[2:]
    SPLIT = 'split' in sys.argv[2:]
    if 'pplain' in sys.argv[2:]: PST = ''
    for x in sys.argv[2:]:
        if x.startswith('ws:'): NWS, NWL1 = (int(y) for y in x[3:].split(','))
    NW2E = max([int(x[3:]) for x in sys.argv[2:] if x.startswith('w2:')] + [0])
    SLEEP = max([int(x[2:]) for x in sys.argv[2:] if x.startswith('sl')] + [0])
    CNT3 = 'cnt' in sys.argv[2:]
    OUTF = 'sc1' if 'osc1' in sys.argv[2:] else ('nt' if 'ont' in sys.argv[2:] else '')
    if 'nox3' in sys.argv[2:]: DYNSET.discard('x3')
    DYN = 'nodyn' not in sys.argv[2:]
    DBG = max([int(x[1:]) + 1 for x in sys.argv[2:] if x[0] == 'd' and x[1:].isdigit()] + [0])
    FINE = 'A' if 'fa' in sys.argv[2:] else ('B' if 'fb' in sys.argv[2:] else ('P' if 'fp' in sys.argv[2:] else ('F' if 'ff' in sys.argv[2:] else ('G' if 'fg' in sys.argv[2:] else None))))
    txt, a = build()
    open(sys.argv[1], "w").write(txt)
    print("nops:", a.nnop, "bytes", len(txt))
```

```python
import sys
from asmgen import *
from common import *
import common

KN = NAME + "_kernel"
WSR = "s[28:31]"
INV = "0x80000000"
S_GEN, S_W, S_FLAG = 3, 18, 64
LOCAL = False
HALF = False
S_LOC, S_IDW = 17, 16
DYN = True
DYNSET = {"flag", "x3", "hop"}
def LS(kind="flag"): return "" if (LOCAL and kind in LOCSET) else "sc1"
LOCSET = set()
def dstore(a, text, kind="flag"):
    if not DYN or kind not in DYNSET or LOCAL:
        a(text.replace("{F}", LS(kind))); return
    L = a.newlabel("ds")
    a(f"s_cmp_eq_u32 s{S_LOC}, 1\ns_cbranch_scc1 {L}_l")
    a(text.replace("{F}", "sc1"))
    a(f"s_branch {L}_e\n{L}_l:")
    a.nolog += 1
    a(text.replace("{F}", ""))
    a.nolog -= 1
    a.label(f"{L}_e")
def vr(b, n=4): return f"v[{b}:{b+n-1}]"

SPREAD = True
def PGs(d):
    return f"s_lshr_b32 {d}, s2, 3\n    s_and_b32 {d}, {d}, 7" if SPREAD else f"s_mov_b32 {d}, s60"
def PTs(d, t):
    return f"s_lshr_b32 {d}, s2, 6\n    s_lshl_b32 {d}, {d}, 3\n    s_and_b32 {t}, s2, 7\n    s_add_u32 {d}, {d}, {t}" if SPREAD else f"s_mov_b32 {d}, s61"
def rnd_bf16(a, v):
    a(f"v_cvt_pk_bf16_f32 v{v}, v{v}, v{v}\nv_and_b32 v{v}, 0xffff0000, v{v}")
def sum_q(a, v, t):
    a(f"""v_mov_b32 v{t}, v{v}
    v_permlane16_swap_b32 v{v}, v{t}
    v_add_f32 v{v}, v{v}, v{t}
    v_mov_b32 v{t}, v{v}
    v_permlane32_swap_b32 v{v}, v{t}
    v_add_f32 v{v}, v{v}, v{t}""")
def allsum64(a, v, t):
    for r in (8, 4, 2, 1):
        a(f"v_add_f32_dpp v{v}, v{v}, v{v} row_ror:{r} row_mask:0xf bank_mask:0xf")
    sum_q(a, v, t)
def ln_core(a, vsum, vsq):
    a(f"""v_mul_f32 v{vsum}, 0x3b000000, v{vsum}
    v_mul_f32 v{vsq}, 0x3b000000, v{vsq}
    v_fma_f32 v{vsq}, -v{vsum}, v{vsum}, v{vsq}
    v_max_f32 v{vsq}, 0, v{vsq}""")
    rnd_bf16(a, vsq)
    a(f"v_add_f32 v{vsq}, 0x3727c5ac, v{vsq}")
    rnd_bf16(a, vsq)
    a(f"v_sqrt_f32 v{vsq}, v{vsq}")
    rnd_bf16(a, vsq)
    rnd_bf16(a, vsum)
def signal(a, e, tv=(2, 3), barrier=True, local=False, vm=0):
    L = a.newlabel("sg")
    a(f"""s_add_u32 s36, s{S_GEN}, {e}
    v_mov_b32 v{tv[0]}, s36
    v_mov_b32 v{tv[1]}, s{S_FLAG}""")
    if isinstance(vm, str): a.vmneed(vm)
    else: a(f"s_waitcnt vmcnt({vm})")
    if barrier: a("s_barrier")
    a.nolog += 1
    a(f"""s_cmp_lg_u32 s{S_W}, 0
    s_cbranch_scc1 {L}
    s_mov_b64 exec, 1""")
    if local: dstore(a, f"buffer_store_dword v{tv[0]}, v{tv[1]}, {WSR}, 0 offen {{F}}")
    else: a(f"buffer_store_dword v{tv[0]}, v{tv[1]}, {WSR}, 0 offen sc1")
    a(f"""s_mov_b64 exec, -1
    {L}:""")
    a.nolog -= 1
def wait_flags(a, voff, nld, e, T, etag=None):
    L = a.newlabel("wf")
    if etag is None:
        a(f"s_add_u32 s37, s{S_GEN}, {e}"); etag = 37
    a(f"s_mov_b32 s38, 0")
    a.nolog += 1
    a.label(L)
    for i in range(nld):
        if i == 0: a(f"buffer_load_dword v{T}, v{voff}, {WSR}, 0 offen sc1")
        else: a(f"s_movk_i32 s39, {4096*i}\nbuffer_load_dword v{T+i}, v{voff}, {WSR}, s39 offen sc1")
    a("s_add_u32 s38, s38, 1\ns_waitcnt vmcnt(0)")
    for k in range(nld):
        a(f"v_subrev_u32 v{T+k}, s{etag}, v{T+k}")
    for k in range(1, nld): a(f"v_max_u32 v{T}, v{T}, v{T+k}")
    a(f"""v_cmp_gt_u32 vcc, 16, v{T}
    s_cmp_gt_u32 s38, 200000
    s_cbranch_scc1 {L}_x
    s_cmp_eq_u64 vcc, -1
    s_cbranch_scc1 {L}_x""")
    if SLEEP and nld > 1: a(f"s_sleep {SLEEP}")
    a(f"""s_branch {L}
    {L}_x:""")
    a.nolog -= 1
def flagcheck(a, e, regs, voff, label, tmp, off=0):
    a(f"""s_add_u32 s37, s{S_GEN}, {e}
    v_subrev_u32 v{tmp[0]}, s37, v{regs[0]}
    v_subrev_u32 v{tmp[1]}, s37, v{regs[1]}
    v_max_u32 v{tmp[0]}, v{tmp[0]}, v{tmp[1]}
    v_subrev_u32 v{tmp[1]}, s37, v{regs[2]}
    v_max_u32 v{tmp[0]}, v{tmp[0]}, v{tmp[1]}
    v_subrev_u32 v{tmp[1]}, s37, v{regs[3]}
    v_max_u32 v{tmp[0]}, v{tmp[0]}, v{tmp[1]}
    v_cmp_gt_u32 vcc, 16, v{tmp[0]}
    s_cmp_eq_u64 vcc, -1
    s_cbranch_scc1 {label}
    s_mov_b32 s38, 0
    {label}_p:""")
    a.nolog += 1
    for i in range(4):
        if i == 0: a(f"buffer_load_dword v{regs[0]}, v{voff}, {WSR}, 0 offen offset:{off} sc1")
        else: a(f"s_movk_i32 s39, {4096*i}\nbuffer_load_dword v{regs[i]}, v{voff}, {WSR}, s39 offen offset:{off} sc1")
    a(f"""s_add_u32 s38, s38, 1
    s_waitcnt vmcnt(0)
    v_subrev_u32 v{tmp[0]}, s37, v{regs[0]}
    v_subrev_u32 v{tmp[1]}, s37, v{regs[1]}
    v_max_u32 v{tmp[0]}, v{tmp[0]}, v{tmp[1]}
    v_subrev_u32 v{tmp[1]}, s37, v{regs[2]}
    v_max_u32 v{tmp[0]}, v{tmp[0]}, v{tmp[1]}
    v_subrev_u32 v{tmp[1]}, s37, v{regs[3]}
    v_max_u32 v{tmp[0]}, v{tmp[0]}, v{tmp[1]}
    v_cmp_gt_u32 vcc, 16, v{tmp[0]}
    s_cmp_gt_u32 s38, 200000
    s_cbranch_scc1 {label}
    s_cmp_eq_u64 vcc, -1
    s_cbranch_scc0 {label}_p
    {label}:""")
    a.nolog -= 1
def wg_wait(a, setup, voff, nld, e, T, etag=None, wave=0):
    L = a.newlabel("ww")
    a(f"s_cmp_lg_u32 s{S_W}, {wave}\ns_cbranch_scc1 {L}")
    setup()
    wait_flags(a, voff, nld, e, T, etag)
    a.label(L)
    a("s_barrier")

HCS = 4160; XRO = 4 * HCS; CB = XRO + 4608; EXO = 49152
PL = 65536
PW = PL + 16384
W3OFF = 6144 + 32
L_TX = 131072; L_TY = L_TX + 8192; L_ST = L_TY + 8192
LDS_TOTAL = L_ST + 2048

def emit_prologue_old(a):
    a(f"""s_cmp_ge_u32 s2, 256
    s_cbranch_scc1 L_end""")
    emit_codepf(a)
    a(f"""s_load_dwordx4 s[4:7], s[0:1], {ARG['q']}
    s_load_dwordx4 s[8:11], s[0:1], {ARG['v']}
    s_load_dwordx4 s[12:15], s[0:1], {ARG['h']}
    s_load_dwordx2 s[16:17], s[0:1], {ARG['ws']}
    s_load_dwordx4 s[52:55], s[0:1], {ARG['w1']}
    s_load_dwordx2 s[56:57], s[0:1], {ARG['w2']}
    v_lshrrev_b32 v3, 6, v0
    v_and_b32 v1, 7, v0
    v_readfirstlane_b32 s{S_W}, v3
    s_and_b32 s60, s2, 7
    s_lshr_b32 s61, s2, 3
    v_lshrrev_b32 v2, 3, v0
    {PGs('s36')}
    s_lshl_b32 s36, s36, 7
    {PTs('s37', 's38')}
    s_lshl_b32 s37, s37, 16
    s_add_u32 s36, s36, s37
    v_lshlrev_b32 v4, 4, v1
    v_lshlrev_b32 v5, 11, v2
    v_add3_u32 v4, v4, v5, s36
    s_lshl_b32 s{S_FLAG}, s60, 5
    s_add_u32 s{S_FLAG}, s{S_FLAG}, s61
    s_mov_b32 s19, s{S_FLAG}
    s_lshl_b32 s{S_FLAG}, s{S_FLAG}, 6
    s_add_u32 s{S_FLAG}, s{S_FLAG}, {WS['SYNC'] + SYNC_FLAGS}
    s_waitcnt lgkmcnt(0)""")
    srd(a, 20, 4, S * D * 2)
    srd(a, 24, 6, S * D * 2)
    srd(a, 32, 8, S * D * 2)
    srd(a, 40, 10, D * 8)
    srd(a, 28, 16, WS['END'])
    a(f"""s_add_u32 s36, s16, {WS['SYNC'] + SYNC_GEN}
    s_addc_u32 s37, s17, 0
    s_load_dword s{S_GEN}, s[36:37], 0""")
    stamp(a, 0)

def emit_prologue(a):
    a(f"""s_cmp_ge_u32 s2, 256
    s_cbranch_scc1 L_end
    s_load_dwordx4 s[4:7], s[0:1], {ARG['q']}
    s_load_dwordx4 s[8:11], s[0:1], {ARG['v']}
    s_load_dwordx4 s[12:15], s[0:1], {ARG['h']}
    s_load_dwordx2 s[16:17], s[0:1], {ARG['ws']}
    s_load_dwordx4 s[52:55], s[0:1], {ARG['w1']}
    s_load_dwordx2 s[56:57], s[0:1], {ARG['w2']}
    v_and_b32 v1, 7, v0
    v_lshrrev_b32 v2, 3, v0
    {PGs('s36')}
    s_lshl_b32 s36, s36, 7
    {PTs('s37', 's38')}
    s_lshl_b32 s37, s37, 16
    s_add_u32 s36, s36, s37
    v_lshlrev_b32 v4, 4, v1
    v_lshlrev_b32 v5, 11, v2
    v_add3_u32 v4, v4, v5, s36
    v_subrev_u32 v5, 3072, v4
    v_subrev_u32 v6, 2048, v4
    v_subrev_u32 v7, 1024, v4
    s_mov_b32 s26, {S*D*2}
    s_mov_b32 s27, 0x20000
    s_mov_b32 s34, {S*D*2}
    s_mov_b32 s35, 0x20000
    s_waitcnt lgkmcnt(0)
    s_mov_b32 s24, s6
    s_mov_b32 s25, s7
    s_mov_b32 s32, s8
    s_mov_b32 s33, s9
    buffer_load_dwordx4 v[16:19], v5, s[24:27], 0 offen
    buffer_load_dwordx4 v[20:23], v6, s[24:27], 0 offen
    buffer_load_dwordx4 v[24:27], v7, s[24:27], 0 offen
    buffer_load_dwordx4 v[28:31], v4, s[24:27], 0 offen
    buffer_load_dwordx4 v[32:35], v4, s[24:27], 0 offen offset:1024
    buffer_load_dwordx4 v[36:39], v4, s[32:35], 0 offen
    buffer_load_dwordx4 v[40:43], v4, s[32:35], 0 offen offset:1024""")
    emit_codepf(a)
    a(f"""v_lshrrev_b32 v3, 6, v0
    v_readfirstlane_b32 s{S_W}, v3
    s_and_b32 s60, s2, 7
    s_lshr_b32 s61, s2, 3
    s_lshl_b32 s{S_FLAG}, s60, 5
    s_add_u32 s{S_FLAG}, s{S_FLAG}, s61
    s_mov_b32 s19, s{S_FLAG}
    s_lshl_b32 s{S_FLAG}, s{S_FLAG}, 6
    s_add_u32 s{S_FLAG}, s{S_FLAG}, {WS['SYNC'] + SYNC_FLAGS}""")
    srd(a, 20, 4, S * D * 2)
    srd(a, 40, 10, D * 8)
    srd(a, 28, 16, WS['END'])
    a(f"""s_add_u32 s36, s16, {WS['SYNC'] + SYNC_GEN}
    s_addc_u32 s37, s17, 0
    s_load_dword s{S_GEN}, s[36:37], 0""")
    stamp(a, 0)

def emit_prep_loads(a):
    a(f"""v_and_b32 v9, 63, v0
    s_lshr_b32 s66, s{S_W}, 1
    s_and_b32 s67, s{S_W}, 1""")
    if WFIRST: emit_prep_loadsW(a)
    a(f"""{PGs('s36')}
    s_lshl_b32 s36, s36, 9
    v_lshlrev_b32 v8, 6, v1
    v_add_u32 v8, s36, v8
    buffer_load_dwordx4 v[44:47], v8, s[40:43], 0 offen
    buffer_load_dwordx4 v[48:51], v8, s[40:43], 0 offen offset:16
    buffer_load_dwordx4 v[52:55], v8, s[40:43], 0 offen offset:32
    buffer_load_dwordx4 v[56:59], v8, s[40:43], 0 offen offset:48
""")
    if UPFRONT:
        emit_prep_loads2(a)
        emit_prep_loadsQ(a)
        emit_statrows(a)
        if UPFRONT == 1: emit_prep_loadsW(a)

def emit_statrows(a):
    a(f"""v_lshlrev_b32 v10, 4, v9
    s_lshl_b32 s36, s2, 13
    s_lshl_b32 s37, s{S_W}, 11
    s_add_u32 s36, s36, s37
    v_add_u32 v10, s36, v10
    buffer_load_dwordx4 v[68:71], v10, s[20:23], 0 offen
    buffer_load_dwordx4 v[72:75], v10, s[20:23], 0 offen offset:1024""")

def emit_prep_loadsW(a):
    a(f"""s_cmp_eq_u32 s66, 0
    s_cselect_b32 s52, s52, s54
    s_cselect_b32 s53, s53, s55
    s_mov_b32 s54, {D*F*2}
    s_mov_b32 s55, 0x20000
    s_mov_b32 s58, {D*F*2}
    s_mov_b32 s59, 0x20000
    s_mul_i32 s62, s60, {64*2752}
    s_mul_i32 s63, s61, 96
    s_add_u32 s62, s62, s63
    s_mul_i32 s63, s67, 192
    v_add_u32 v176, s63, v9
    s_mul_i32 s36, s66, {W3OFF}
    s_lshl_b32 s63, s63, 4
    s_add_u32 s36, s36, s63
    s_add_u32 s36, s36, {PW}""")
    for i in range(3):
        a(f"""v_add_u32 v177, {64*i}, v176
        v_mul_u32_u24 v178, 43691, v177
        v_lshrrev_b32 v178, 18, v178
        v_mul_u32_u24 v179, 6, v178
        v_sub_u32 v179, v177, v179
        v_mul_u32_u24 v178, 2752, v178
        v_lshl_add_u32 v{184+i}, v179, 4, v178
        s_add_u32 m0, s36, {1024*i}
        buffer_load_dwordx4 v{184+i}, s[52:55], s62 offen lds""")
    a(f"""v_lshrrev_b32 v178, 3, v9
    v_and_b32 v179, 7, v9
    v_lshlrev_b32 v178, 10, v178
    v_lshl_add_u32 v187, v179, 4, v178
    s_lshl_b32 s63, s{S_W}, 13
    {PTs('s36', 's37')}
    s_lshl_b32 s36, s36, 15
    s_add_u32 s36, s36, s63
    {PGs('s63')}
    s_lshl_b32 s63, s63, 7
    s_add_u32 s36, s36, s63
    s_lshl_b32 s63, s{S_W}, 10
    s_add_u32 s63, s63, {PW + 2*6144 + 64}
    s_mov_b32 m0, s63
    buffer_load_dwordx4 v187, s[56:59], s36 offen lds
    s_add_u32 s36, s36, {32*32*1024}
    s_add_u32 m0, s63, 4096
    buffer_load_dwordx4 v187, s[56:59], s36 offen lds""")

def emit_prep_loadsQ(a):
    a(f"""buffer_load_dwordx4 v[60:63], v4, s[20:23], 0 offen
    buffer_load_dwordx4 v[64:67], v4, s[20:23], 0 offen offset:1024""")
def emit_prep_loads2(a):
    a(f"""s_lshl_b32 s65, s19, 1
    s_add_u32 s65, s65, s66
    s_lshl_b32 s37, s65, 1
    s_lshl_b32 s65, s65, 12""")
    srd(a, 44, 12, 4096, offreg=65)
    srd(a, 48, 14, D * 2)
    a(f"""v_lshlrev_b32 v172, 4, v9
    s_lshl_b32 s36, s67, 11
    v_add_u32 v172, s36, v172
    buffer_load_dwordx4 v[192:195], v172, s[44:47], 0 offen
    buffer_load_dwordx4 v[196:199], v172, s[44:47], 0 offen offset:4
    buffer_load_dwordx4 v[200:203], v172, s[44:47], 0 offen offset:8
    buffer_load_dwordx4 v[204:207], v172, s[44:47], 0 offen offset:1024
    buffer_load_dwordx4 v[208:211], v172, s[44:47], 0 offen offset:1028
    buffer_load_dwordx4 v[212:215], v172, s[44:47], 0 offen offset:1032
    v_bfe_u32 v219, v9, 3, 2
    v_and_b32 v220, 7, v9
    v_lshlrev_b32 v13, 1, v220
    v_add_u32 v13, v13, v219
    v_subrev_u32 v13, 16, v13
    v_lshlrev_b32 v13, 1, v13
    v_add_u32 v14, 2, v13
    buffer_load_ushort v216, v13, s[44:47], 0 offen
    buffer_load_ushort v217, v14, s[44:47], 0 offen
    v_mov_b32 v173, s37
    buffer_load_ushort v218, v173, s[48:51], 0 offen""")

def emit_codepf(a):
    if CODEPF:
        a(f"""s_getpc_b64 s[68:69]
        L_pc:
        s_sub_u32 s68, s68, L_pc-{KN}
        s_subb_u32 s69, s69, 0
        v_and_b32 v190, 15, v0
        s_lshr_b32 s36, s2, 3
        s_lshl_b32 s36, s36, 4
        v_add_u32 v190, s36, v190
        v_lshlrev_b32 v190, 7, v190
        v_min_u32 v190, L_codeend-{KN}-4, v190
        global_load_dword v188, v190, s[68:69]""")

def emit_prep_compute(a):
    a(f"""v_sub_u32 v11, 31, v2
    v_lshlrev_b32 v12, 2, v1
    v_xor_b32 v11, v11, v12
    v_lshlrev_b32 v11, 2, v11
    v_lshlrev_b32 v13, 10, v1
    v_add_u32 v11, v11, v13
    v_add_u32 v11, {PL}, v11
    v_xor_b32 v12, v2, v12
    v_lshlrev_b32 v12, 2, v12
    v_add_u32 v12, v12, v13
    v_add_u32 v12, {PL + 8192}, v12
    """)
    a(f"s_waitcnt vmcnt({(18 if UPFRONT == 1 else 13) if UPFRONT else 0})")
    for j in range(8):
        a(f"""v_lshlrev_b32 v{80+j}, 16, v{44+2*j}
        v_and_b32 v{88+j}, 0xffff0000, v{44+2*j}
        v_lshlrev_b32 v{96+j}, 16, v{45+2*j}
        v_and_b32 v{104+j}, 0xffff0000, v{45+2*j}""")
    a(f"s_waitcnt vmcnt({(18 if UPFRONT == 1 else 13) if UPFRONT else 0})")
    stamp(a, 1)
    for i in range(5):
        for p in range(4):
            a(f"""v_lshlrev_b32 v{112+8*i+2*p}, 16, v{16+4*i+p}
            v_and_b32 v{113+8*i+2*p}, 0xffff0000, v{16+4*i+p}""")
    for row in range(2):
        for p in range(4):
            d = 152 + 8 * row + 2 * p
            a(f"v_pk_mul_f32 v[{d}:{d+1}], v[{112+8*row+2*p}:{113+8*row+2*p}], v[{104+2*p}:{105+2*p}]")
    for tt, tap in ((1, 2), (2, 1), (3, 0)):
        for row in range(2):
            for p in range(4):
                d = 152 + 8 * row + 2 * p
                k = 112 + 8 * (row + tt) + 2 * p
                s_ = 80 + 8 * tap + 2 * p
                a(f"v_pk_fma_f32 v[{d}:{d+1}], v[{k}:{k+1}], v[{s_}:{s_+1}], v[{d}:{d+1}]")
    for row in range(2):
        for p in range(4):
            a(f"""v_lshlrev_b32 v{112+8*row+2*p}, 16, v{36+4*row+p}
            v_and_b32 v{113+8*row+2*p}, 0xffff0000, v{36+4*row+p}""")
    for row in range(2):
        for p in range(4):
            d = 152 + 8 * row + 2 * p
            a(f"v_pk_mul_f32 v[{d}:{d+1}], v[{d}:{d+1}], v[{112+8*row+2*p}:{113+8*row+2*p}]")
    for j in range(8):
        a(f"v_cvt_pk_bf16_f32 v{80+j}, v{160+j}, v{152+j}")
    for j in range(8):
        a(f"ds_write_b32 v11, v{80+j} offset:{128*j}")
    a(f"""v_lshrrev_b32 v3, 6, v0
    v_xor_b32 v5, v1, v3
    v_lshlrev_b32 v5, 4, v5
    v_lshlrev_b32 v6, 7, v2
    v_add_u32 v5, v5, v6
    v_add_u32 v5, {PL}, v5
    v_xor_b32 v7, 64, v5
    {PGs('s36')}
    s_lshl_b32 s36, s36, 18
    {PTs('s37', 's38')}
    s_lshl_b32 s37, s37, 7
    s_sub_u32 s4, s36, s37
    s_add_u32 s4, s4, {WS['XR'] + 1984*2}
    s_add_u32 s5, s36, s37
    s_add_u32 s5, s5, {WS['QT']}
    v_lshlrev_b32 v8, 12, v2
    v_lshlrev_b32 v15, 4, v1
    v_add_u32 v8, v8, v15
    v_add_u32 v15, 0x20000, v8
    s_waitcnt lgkmcnt(0)
    s_barrier
    ds_read_b128 v[16:19], v5
    ds_read_b128 v[20:23], v7 offset:4096
    s_waitcnt lgkmcnt(1)
    buffer_store_dwordx4 v[16:19], v8, {WSR}, s4 offen {LS('xr')}
    s_waitcnt lgkmcnt(0)
    buffer_store_dwordx4 v[20:23], v15, {WSR}, s4 offen {LS('xr')}""")
    stamp(a, 2)
    if UPFRONT != 1: emit_prep_loadsW(a)
    if not UPFRONT: emit_prep_loadsQ(a)
    L = a.newlabel("sg1")
    a(f"""s_waitcnt vmcnt({(0 if UPFRONT == 1 else 5) if UPFRONT else 7})
    s_barrier
    s_cmp_lg_u32 s{S_W}, 0
    s_cbranch_scc1 {L}
    s_add_u32 s36, s{S_GEN}, 1
    v_mov_b32 v16, s36
    v_mov_b32 v17, s{S_FLAG}
    s_mov_b64 exec, 1
    buffer_store_dword v16, v17, {WSR}, 0 offen sc1
    s_mov_b64 exec, -1
    {L}:""")
    stamp(a, 3)
    if FINE == 'F': fstamp(a, 9)
    if not UPFRONT:
        emit_statrows(a)
        emit_prep_loads2(a)
    NPF = 0
    if UPFRONT == 2:
        if FINE == 'F': fstamp(a, 6)
        pass
        if FINE == 'F': fstamp(a, 7)
        a(f"""s_mul_i32 s62, s66, {CB}
        v_lshlrev_b32 v4, 4, v9
        s_lshl_b32 s36, s67, 11
        s_add_u32 s36, s36, s62
        s_add_u32 s36, s36, 32
        v_add_u32 v4, s36, v4""")
        for p in range(2):
            L0, L2, L4 = 192 + 12 * p, 196 + 12 * p, 200 + 12 * p
            for j in range(4):
                a(f"v_alignbit_b32 v{112+8*p+j}, v{L2+j}, v{L0+j}, 16")
                a(f"v_alignbit_b32 v{116+8*p+j}, v{L4+j}, v{L2+j}, 16")
            a(f"""ds_write_b128 v4, v[{L0}:{L0+3}] offset:{1024*p}
            ds_write_b128 v4, v[{112+8*p}:{115+8*p}] offset:{1024*p + HCS}
            ds_write_b128 v4, v[{L2}:{L2+3}] offset:{1024*p + 2*HCS}
            ds_write_b128 v4, v[{116+8*p}:{119+8*p}] offset:{1024*p + 3*HCS}""")
        a(f"""v_lshl_or_b32 v216, v217, 16, v216
        v_mul_u32_u24 v13, {HCS}, v219
        v_lshl_add_u32 v13, v220, 2, v13
        v_add_u32 v13, s62, v13
        ds_write_b32 v13, v216
        v_lshlrev_b32 v20, 16, v218
        v_mov_b32 v92, 0
        v_mov_b32 v93, 0
        v_mov_b32 v94, 0
        v_mov_b32 v95, 0
        v_and_b32 v16, 31, v9
        v_lshlrev_b32 v16, 4, v16
        v_add_u32 v16, s62, v16
        ds_write_b128 v16, v[92:95] offset:{XRO+4096}
        s_waitcnt lgkmcnt(0)""")
        if FINE == 'F': fstamp(a, 2)
        pass
        if FINE == 'F': fstamp(a, 3)
        a("s_mov_b32 s36, 0x05040100\ns_mov_b32 s37, 0x07060302")
        for p in range(4):
            a(f"""v_perm_b32 v{88+2*p}, v{64+p}, v{60+p}, s36
            v_perm_b32 v{89+2*p}, v{64+p}, v{60+p}, s37""")
        for j in range(8):
            a(f"ds_write_b32 v12, v{88+j} offset:{128*j}")
        if FINE == 'F': fstamp(a, 4)
        pass
        if FINE == 'F': fstamp(a, 5)
        a("v_mov_b32 v14, 0x3f803f80")
        for row in range(2):
            su, sq = 96 + 2 * row, 97 + 2 * row
            a(f"v_mov_b32 v{su}, 0\nv_mov_b32 v{sq}, 0")
        for p in range(4):
            for row in range(2):
                su, sq = 96 + 2 * row, 97 + 2 * row; b = 68 + 4 * row
                a(f"v_dot2_f32_bf16 v{su}, v{b+p}, v14, v{su}\nv_dot2_f32_bf16 v{sq}, v{b+p}, v{b+p}, v{sq}")
        for r in (8, 4, 2, 1):
            for v in (96, 97, 98, 99):
                a(f"v_add_f32_dpp v{v}, v{v}, v{v} row_ror:{r} row_mask:0xf bank_mask:0xf")
        for k, v in enumerate((96, 97, 98, 99)): a(f"v_mov_b32 v{100+k}, v{v}")
        for k, v in enumerate((96, 97, 98, 99)): a(f"v_permlane16_swap_b32 v{v}, v{100+k}")
        for k, v in enumerate((96, 97, 98, 99)): a(f"v_add_f32 v{v}, v{v}, v{100+k}")
        for k, v in enumerate((96, 97, 98, 99)): a(f"v_mov_b32 v{100+k}, v{v}")
        for k, v in enumerate((96, 97, 98, 99)): a(f"v_permlane32_swap_b32 v{v}, v{100+k}")
        for k, v in enumerate((96, 97, 98, 99)): a(f"v_add_f32 v{v}, v{v}, v{100+k}")
        ln_core(a, 96, 97); ln_core(a, 98, 99)
        a(f"""v_rcp_f32 v102, v97
        v_rcp_f32 v103, v99
        v_mul_f32 v104, -v96, v102
        v_mul_f32 v105, -v98, v103
        s_lshl_b32 s36, s2, 5
        s_lshl_b32 s37, s{S_W}, 3
        s_add_u32 s11, s36, s37
        s_add_u32 s11, s11, {WS['RS0']}""")
        a(f"""v_mov_b32 v101, s11
        s_mov_b32 s37, {WS['C0']-WS['RS0']}
        s_mov_b64 exec, 1
        buffer_store_dwordx2 v[102:103], v101, {WSR}, 0 offen sc1
        buffer_store_dwordx2 v[104:105], v101, {WSR}, s37 offen sc1
        s_mov_b64 exec, -1
        s_waitcnt lgkmcnt(0)
        s_barrier
        ds_read_b128 v[72:75], v5 offset:8192
        ds_read_b128 v[76:79], v7 offset:{8192+4096}
        s_waitcnt lgkmcnt(1)
        buffer_store_dwordx4 v[72:75], v8, {WSR}, s5 offen sc1
        s_waitcnt lgkmcnt(0)
        buffer_store_dwordx4 v[76:79], v15, {WSR}, s5 offen sc1""")
        a("s_waitcnt vmcnt(4)\ns_barrier")
        if FINE == 'F': fstamp(a, 1)
        a(f"""v_lshrrev_b32 v178, 4, v9
        v_bfe_u32 v179, v9, 2, 2
        v_and_b32 v180, 3, v9
        v_lshl_add_u32 v181, v178, 4, v179
        v_mul_u32_u24 v181, 96, v181
        v_and_b32 v182, 1, v180
        v_lshl_add_u32 v181, v182, 3, v181
        v_lshrrev_b32 v182, 1, v180
        v_mul_u32_u24 v182, {W3OFF}, v182
        v_add_u32 v181, v181, v182
        v_lshlrev_b32 v183, 4, v9""")
        for i in range(3):
            a(f"""s_mul_i32 s36, s{S_W}, 3
            s_add_u32 s36, s36, {i}
            s_lshr_b32 s37, s36, 1
            s_and_b32 s36, s36, 1
            s_lshl_b32 s38, s37, 4
            s_mul_i32 s39, s36, {8*96}
            s_add_u32 s38, s38, s39
            s_add_u32 s38, s38, {PW}
            v_add_u32 v182, s38, v181
            ds_read_b64_tr_b16 v[{144+4*i}:{145+4*i}], v182
            ds_read_b64_tr_b16 v[{146+4*i}:{147+4*i}], v182 offset:{4*96}
            s_mul_i32 s38, s61, 6
            s_add_u32 s38, s38, s37
            s_lshl_b32 s39, s38, 14
            s_lshl_b32 s37, s60, 11
            s_add_u32 s39, s39, s37
            s_lshl_b32 s36, s36, 10
            s_add_u32 s39, s39, s36
            s_add_u32 s39, s39, {WS['WF13']}
            s_cmp_lt_u32 s38, 172
            s_cselect_b32 s{6+i}, s39, {INV}""")
        a(f"""v_lshl_add_u32 v181, v178, 2, v179
        v_lshlrev_b32 v181, 7, v181
        v_lshl_add_u32 v181, v180, 5, v181
        s_lshl_b32 s36, s{S_W}, 3
        s_add_u32 s36, s36, {PW + 2*6144 + 64}
        v_add_u32 v181, s36, v181""")
        for i in range(2):
            a(f"""ds_read_b64_tr_b16 v[{156+4*i}:{157+4*i}], v181 offset:{4096*i}
            ds_read_b64_tr_b16 v[{158+4*i}:{159+4*i}], v181 offset:{4096*i + 2048}
            {PTs('s36', 's37')}
            s_add_u32 s36, s36, {32*i}
            {PGs('s37')}
            s_mul_i32 s37, s37, 43
            s_add_u32 s37, s37, s36
            s_lshl_b32 s37, s37, 12
            s_lshl_b32 s38, s{S_W}, 10
            s_add_u32 s37, s37, s38
            s_add_u32 s37, s37, {WS['WF2']}
            s_cmp_lt_u32 s36, 43
            s_cselect_b32 s{9+i}, s37, {INV}""")
        for i in range(5):
            a(f"s_waitcnt lgkmcnt({2*(4-i)})\nbuffer_store_dwordx4 {vr(144+4*i)}, v183, {WSR}, s{6+i} offen sc1")
        a("s_waitcnt lgkmcnt(0)")
        stamp(a, 4)
        return
    a(f"s_waitcnt vmcnt({2 + 2 + 9 + NPF})\ns_barrier")
    if FINE == 'F': fstamp(a, 1)
    a(f"""v_lshrrev_b32 v178, 4, v9
    v_bfe_u32 v179, v9, 2, 2
    v_and_b32 v180, 3, v9
    v_lshl_add_u32 v181, v178, 4, v179
    v_mul_u32_u24 v181, 96, v181
    v_and_b32 v182, 1, v180
    v_lshl_add_u32 v181, v182, 3, v181
    v_lshrrev_b32 v182, 1, v180
    v_mul_u32_u24 v182, {W3OFF}, v182
    v_add_u32 v181, v181, v182
    v_lshlrev_b32 v183, 4, v9""")
    for i in range(3):
        a(f"""s_mul_i32 s36, s{S_W}, 3
        s_add_u32 s36, s36, {i}
        s_lshr_b32 s37, s36, 1
        s_and_b32 s36, s36, 1
        s_lshl_b32 s38, s37, 4
        s_mul_i32 s39, s36, {8*96}
        s_add_u32 s38, s38, s39
        s_add_u32 s38, s38, {PW}
        v_add_u32 v182, s38, v181
        ds_read_b64_tr_b16 v[{144+4*i}:{145+4*i}], v182
        ds_read_b64_tr_b16 v[{146+4*i}:{147+4*i}], v182 offset:{4*96}
        s_mul_i32 s38, s61, 6
        s_add_u32 s38, s38, s37
        s_lshl_b32 s39, s38, 14
        s_lshl_b32 s37, s60, 11
        s_add_u32 s39, s39, s37
        s_lshl_b32 s36, s36, 10
        s_add_u32 s39, s39, s36
        s_add_u32 s39, s39, {WS['WF13']}
        s_cmp_lt_u32 s38, 172
        s_cselect_b32 s{6+i}, s39, {INV}""")
    a(f"""v_lshl_add_u32 v181, v178, 2, v179
    v_lshlrev_b32 v181, 7, v181
    v_lshl_add_u32 v181, v180, 5, v181
    s_lshl_b32 s36, s{S_W}, 3
    s_add_u32 s36, s36, {PW + 2*6144 + 64}
    v_add_u32 v181, s36, v181""")
    for i in range(2):
        a(f"""ds_read_b64_tr_b16 v[{156+4*i}:{157+4*i}], v181 offset:{4096*i}
        ds_read_b64_tr_b16 v[{158+4*i}:{159+4*i}], v181 offset:{4096*i + 2048}
        {PTs('s36', 's37')}
        s_add_u32 s36, s36, {32*i}
        {PGs('s37')}
        s_mul_i32 s37, s37, 43
        s_add_u32 s37, s37, s36
        s_lshl_b32 s37, s37, 12
        s_lshl_b32 s38, s{S_W}, 10
        s_add_u32 s37, s37, s38
        s_add_u32 s37, s37, {WS['WF2']}
        s_cmp_lt_u32 s36, 43
        s_cselect_b32 s{9+i}, s37, {INV}""")
    for i in range(5):
        a(f"s_waitcnt lgkmcnt({2*(4-i)})\nbuffer_store_dwordx4 {vr(144+4*i)}, v183, {WSR}, s{6+i} offen sc1")
    if FINE == 'F': fstamp(a, 2)
    a(f"s_waitcnt vmcnt({2 + 9 + NPF + 5})")
    if FINE == 'F': fstamp(a, 3)
    a("s_mov_b32 s36, 0x05040100\ns_mov_b32 s37, 0x07060302")
    for p in range(4):
        a(f"""v_perm_b32 v{88+2*p}, v{64+p}, v{60+p}, s36
        v_perm_b32 v{89+2*p}, v{64+p}, v{60+p}, s37""")
    for j in range(8):
        a(f"ds_write_b32 v12, v{88+j} offset:{128*j}")
    if FINE == 'F': fstamp(a, 4)
    a(f"s_waitcnt vmcnt({9 + NPF + 5})")
    if FINE == 'F': fstamp(a, 5)
    a("v_mov_b32 v14, 0x3f803f80")
    for row in range(2):
        su, sq = 96 + 2 * row, 97 + 2 * row
        a(f"v_mov_b32 v{su}, 0\nv_mov_b32 v{sq}, 0")
    for p in range(4):
        for row in range(2):
            su, sq = 96 + 2 * row, 97 + 2 * row; b = 68 + 4 * row
            a(f"v_dot2_f32_bf16 v{su}, v{b+p}, v14, v{su}\nv_dot2_f32_bf16 v{sq}, v{b+p}, v{b+p}, v{sq}")
    for r in (8, 4, 2, 1):
        for v in (96, 97, 98, 99):
            a(f"v_add_f32_dpp v{v}, v{v}, v{v} row_ror:{r} row_mask:0xf bank_mask:0xf")
    for k, v in enumerate((96, 97, 98, 99)): a(f"v_mov_b32 v{100+k}, v{v}")
    for k, v in enumerate((96, 97, 98, 99)): a(f"v_permlane16_swap_b32 v{v}, v{100+k}")
    for k, v in enumerate((96, 97, 98, 99)): a(f"v_add_f32 v{v}, v{v}, v{100+k}")
    for k, v in enumerate((96, 97, 98, 99)): a(f"v_mov_b32 v{100+k}, v{v}")
    for k, v in enumerate((96, 97, 98, 99)): a(f"v_permlane32_swap_b32 v{v}, v{100+k}")
    for k, v in enumerate((96, 97, 98, 99)): a(f"v_add_f32 v{v}, v{v}, v{100+k}")
    ln_core(a, 96, 97); ln_core(a, 98, 99)
    a(f"""v_rcp_f32 v102, v97
    v_rcp_f32 v103, v99
    v_mul_f32 v104, -v96, v102
    v_mul_f32 v105, -v98, v103
    s_lshl_b32 s36, s2, 5
    s_lshl_b32 s37, s{S_W}, 3
    s_add_u32 s11, s36, s37
    s_add_u32 s11, s11, {WS['RS0']}""")
    a(f"""v_mov_b32 v101, s11
    s_mov_b32 s37, {WS['C0']-WS['RS0']}
    s_mov_b64 exec, 1
    buffer_store_dwordx2 v[102:103], v101, {WSR}, 0 offen sc1
    buffer_store_dwordx2 v[104:105], v101, {WSR}, s37 offen sc1
    s_mov_b64 exec, -1
    s_waitcnt lgkmcnt(0)
    s_barrier
    ds_read_b128 v[72:75], v5 offset:8192
    ds_read_b128 v[76:79], v7 offset:{8192+4096}
    s_waitcnt lgkmcnt(1)
    buffer_store_dwordx4 v[72:75], v8, {WSR}, s5 offen sc1
    s_waitcnt lgkmcnt(0)
    buffer_store_dwordx4 v[76:79], v15, {WSR}, s5 offen sc1""")
    if FINE == 'F': fstamp(a, 6)
    a("s_waitcnt vmcnt(9)")
    if FINE == 'F': fstamp(a, 7)
    a(f"""s_mul_i32 s62, s66, {CB}
    v_lshlrev_b32 v4, 4, v9
    s_lshl_b32 s36, s67, 11
    s_add_u32 s36, s36, s62
    s_add_u32 s36, s36, 32
    v_add_u32 v4, s36, v4""")
    for p in range(2):
        L0, L2, L4 = 192 + 12 * p, 196 + 12 * p, 200 + 12 * p
        for j in range(4):
            a(f"v_alignbit_b32 v{112+8*p+j}, v{L2+j}, v{L0+j}, 16")
            a(f"v_alignbit_b32 v{116+8*p+j}, v{L4+j}, v{L2+j}, 16")
        a(f"""ds_write_b128 v4, v[{L0}:{L0+3}] offset:{1024*p}
        ds_write_b128 v4, v[{112+8*p}:{115+8*p}] offset:{1024*p + HCS}
        ds_write_b128 v4, v[{L2}:{L2+3}] offset:{1024*p + 2*HCS}
        ds_write_b128 v4, v[{116+8*p}:{119+8*p}] offset:{1024*p + 3*HCS}""")
    a(f"""v_lshl_or_b32 v216, v217, 16, v216
    v_mul_u32_u24 v13, {HCS}, v219
    v_lshl_add_u32 v13, v220, 2, v13
    v_add_u32 v13, s62, v13
    ds_write_b32 v13, v216
    v_lshlrev_b32 v20, 16, v218
    v_mov_b32 v92, 0
    v_mov_b32 v93, 0
    v_mov_b32 v94, 0
    v_mov_b32 v95, 0
    v_and_b32 v16, 31, v9
    v_lshlrev_b32 v16, 4, v16
    v_add_u32 v16, s62, v16
    ds_write_b128 v16, v[92:95] offset:{XRO+4096}
    s_waitcnt lgkmcnt(0)""")
    stamp(a, 4)
    if FINE == 'F': fstamp(a, 8)

def emit_conv(a, hooks):
    a("v_and_b32 v1, 63, v0")
    def su1():
        if SPREAD:
            a(f"""v_and_b32 v2, 7, v1
            v_lshlrev_b32 v2, 5, v2
            v_bfe_u32 v3, v1, 3, 2
            v_lshl_add_u32 v2, v3, 3, v2
            v_add_u32 v2, s60, v2
            v_lshlrev_b32 v2, 6, v2
            v_add_u32 v2, {WS['SYNC'] + SYNC_FLAGS}, v2""")
        else:
            a(f"""v_and_b32 v2, 31, v1
            s_lshl_b32 s36, s60, 5
            v_add_u32 v2, s36, v2
            v_lshlrev_b32 v2, 6, v2
            v_add_u32 v2, {WS['SYNC'] + SYNC_FLAGS}, v2""")
    signal(a, 2)
    wg_wait(a, su1, 2, 1, 1, 64)
    stamp(a, 5)
    a(f"""v_lshlrev_b32 v10, 4, v1
    s_lshl_b32 s36, s67, 11
    s_add_u32 s37, s65, s36
    s_add_u32 s37, s37, {WS['XR']}
    s_add_u32 s38, s62, s36
    s_add_u32 s38, s38, {XRO}
    s_mov_b32 m0, s38
    buffer_load_dwordx4 v10, {WSR}, s37 offen sc1 lds
    s_add_u32 s38, s38, 1024
    s_add_u32 s37, s37, 1024
    s_mov_b32 m0, s38
    buffer_load_dwordx4 v10, {WSR}, s37 offen sc1 lds
    v_and_b32 v11, 15, v1
    v_lshrrev_b32 v12, 4, v1
    v_lshlrev_b32 v13, 4, v11
    v_lshl_add_u32 v13, v12, 2, v13
    s_lshl_b32 s36, s67, 10
    v_add_u32 v13, s36, v13
    v_lshlrev_b32 v14, 1, v13
    v_lshlrev_b32 v15, 2, v13
    v_lshlrev_b32 v22, 6, v1
    v_add_u32 v22, {WS['SYNC'] + SYNC_FLAGS}, v22""")
    a(f"""v_add_u32 v17, 1, v11
    v_and_b32 v18, 3, v17
    v_mul_u32_u24 v18, {HCS}, v18
    v_lshrrev_b32 v17, 2, v17
    v_lshlrev_b32 v17, 3, v17
    v_lshl_add_u32 v17, v12, 4, v17
    v_add_u32 v17, v17, v18
    s_lshl_b32 s36, s67, 8
    s_add_u32 s37, s36, s62
    v_add_u32 v17, s37, v17
    v_lshlrev_b32 v18, 5, v11
    v_lshlrev_b32 v19, 4, v12
    v_sub_u32 v18, v19, v18
    s_add_u32 s37, s37, {XRO + 480}
    v_add_u32 v18, s37, v18""")
    for r in range(32, 64): a(f"v_mov_b32 v{r}, 0")
    a(f"s_waitcnt vmcnt(0)\ns_barrier")
    stamp(a, 6)
    pre = []
    for i in range(4):
        pre.append(f"buffer_load_dwordx2 v[{192+2*i}:{193+2*i}], v14, {WSR}, s10 offen offset:{512*i} sc1")
    for i in range(4):
        pre.append(f"buffer_load_dwordx4 v[{200+4*i}:{203+4*i}], v15, {WSR}, s8 offen offset:{1024*i} sc1")
        pre.append(f"buffer_load_dwordx4 v[{216+4*i}:{219+4*i}], v15, {WSR}, s9 offen offset:{1024*i} sc1")
    def load_frags(setbase, bi):
        ops = []
        for x in range(8):
            A = setbase + 4 * x
            ops.append(f"ds_read_b64 v[{A}:{A+1}], v17 offset:{512*x + 64*bi}")
            ops.append(f"ds_read_b64 v[{A+2}:{A+3}], v17 offset:{512*x + 64*bi + 8}")
            B = setbase + 32 + 4 * x
            ops.append(f"ds_read_b128 v[{B}:{B+3}], v18 offset:{512*(7-x) + 64*bi}")
        return ops
    sets = (64, 128)
    for op in load_frags(sets[0], 0): a(op)
    extra = []
    for bi in range(4):
        cur = sets[bi & 1]
        nxt = load_frags(sets[(bi + 1) & 1], bi + 1) if bi < 3 else []
        if bi == 0:
            for i in range(4):
                if i == 0: a(f"buffer_load_dword v24, v22, {WSR}, 0 offen sc1")
                else: a(f"s_movk_i32 s39, {4096*i}\nbuffer_load_dword v{24+i}, v22, {WSR}, s39 offen sc1")
            if HALF:
                a("s_lshl_b32 s38, s22, 3")
                member_flag_off(a, 23, "s38", 8)
            else:
                member_flag_off(a, 23, "0", 16)
            a(f"buffer_load_dword v28, v23, {WSR}, 0 offen offset:4 sc1")
        if bi == CHK1:
            a(f"""s_waitcnt vmcnt(0)
            v_cmp_eq_u32 vcc, s{S_IDW}, v28
            s_cmp_eq_u64 vcc, -1
            s_cselect_b32 s{S_LOC}, 1, 0""")
            flagcheck(a, 2, (24, 25, 26, 27), 22, "L_c_ok1", tmp=(29, 30))
            a(f"s_mov_b32 s8, {WS['RS0']}\ns_mov_b32 s9, {WS['C0']}\ns_add_u32 s10, s65, {WS['QT']}")
            extra0 = pre
            extra = pre + list(hooks['conv_loop_extra'])
        a("s_waitcnt lgkmcnt(0)")
        pairs = sorted([(jt, aa) for jt in range(8) for aa in range(jt + 1)], key=lambda p: (p[1], p[0]))
        k = 0
        for idx, (jt, aa) in enumerate(pairs):
            A = cur + 4 * aa; B = cur + 32 + 4 * (jt - aa); C = 32 + 4 * jt
            a(f"v_mfma_f32_16x16x32_bf16 v[{C}:{C+3}], v[{A}:{A+3}], v[{B}:{B+3}], v[{C}:{C+3}]")
            if idx < 24 and k < len(nxt):
                a(nxt[k]); k += 1
            if extra and idx % PACE == PACE - 1 or (extra and bi == CHK1 and idx < 12):
                a(extra.pop(0))
    for op in extra: a(op)
    stamp(a, 7)
    a(f"""v_lshlrev_b32 v4, 4, v1
    s_lshl_b32 s36, s{S_W}, 12
    s_add_u32 s36, s36, {EXO}
    v_add_u32 v5, s36, v4
    s_xor_b32 s36, s36, 4096
    v_add_u32 v6, s36, v4
    s_cmp_eq_u32 s67, 0
    s_cbranch_scc0 L_c_x1""")
    for half in range(2):
        own, oth = (32, 48) if half == 0 else (48, 32)
        for i in range(4): a(f"ds_write_b128 v5, v[{oth+4*i}:{oth+4*i+3}] offset:{1024*i}")
        a("s_waitcnt lgkmcnt(0)\ns_barrier")
        for i in range(4): a(f"ds_read_b128 v[{80+4*i}:{83+4*i}], v6 offset:{1024*i}")
        a("s_waitcnt lgkmcnt(0)")
        for i in range(4):
            for h in range(2):
                a(f"v_pk_add_f32 v[{64+4*i+2*h}:{65+4*i+2*h}], v[{own+4*i+2*h}:{own+4*i+2*h+1}], v[{80+4*i+2*h}:{81+4*i+2*h}]")
        if half == 0:
            a("s_branch L_c_x2\nL_c_x1:")
    a.label("L_c_x2")
    a(f"""v_lshlrev_b32 v7, 5, v11
    v_lshl_add_u32 v7, v12, 3, v7
    s_lshl_b32 s36, s67, 11
    s_sub_u32 s37, s62, s36
    s_add_u32 s37, s37, {XRO + 4088 - 1536}
    v_sub_u32 v7, s37, v7""")
    for i in range(4): a(f"ds_read_b64 v[{96+2*i}:{97+2*i}], v7 offset:{512*(3-i)}")
    a(f"""s_lshr_b32 s39, s65, 12
    s_mul_i32 s39, s39, {XP}
    s_add_u32 s38, s39, {WS['YT']}
    s_add_u32 s39, s39, {WS['X1T']}
    s_waitcnt vmcnt({hooks['n_conv_total_w']}) lgkmcnt(0)""")
    for op in hooks['conv_epi_extra']: a(op)
    O = lambda i: 64 + 4 * i
    T = lambda i: 104 + 10 * i
    for i in range(4):
        kv = 96 + 2 * i
        a(f"""v_and_b32 v{T(i)}, 0xffff0000, v{kv+1}
        v_lshlrev_b32 v{T(i)+1}, 16, v{kv+1}
        v_and_b32 v{T(i)+2}, 0xffff0000, v{kv}
        v_lshlrev_b32 v{T(i)+3}, 16, v{kv}""")
    for i in range(4):
        a(f"""v_pk_fma_f32 v[{O(i)}:{O(i)+1}], v[{T(i)}:{T(i)+1}], v[20:21], v[{O(i)}:{O(i)+1}] op_sel_hi:[1,0,1]
        v_pk_fma_f32 v[{O(i)+2}:{O(i)+3}], v[{T(i)+2}:{T(i)+3}], v[20:21], v[{O(i)+2}:{O(i)+3}] op_sel_hi:[1,0,1]""")
    for i in range(4):
        a(f"""v_cvt_pk_bf16_f32 v{T(i)+4}, v{O(i)}, v{O(i)+1}
        v_cvt_pk_bf16_f32 v{T(i)+5}, v{O(i)+2}, v{O(i)+3}""")
    for i in range(4):
        a(f"""v_lshlrev_b32 v{T(i)}, 16, v{192+2*i}
        v_and_b32 v{T(i)+1}, 0xffff0000, v{192+2*i}
        v_lshlrev_b32 v{T(i)+2}, 16, v{193+2*i}
        v_and_b32 v{T(i)+3}, 0xffff0000, v{193+2*i}
        buffer_store_dwordx2 v[{T(i)+4}:{T(i)+5}], v14, {WSR}, s38 offen offset:{512*i} sc1""")
    for i in range(4):
        a(f"""v_lshlrev_b32 v{O(i)}, 16, v{T(i)+4}
        v_and_b32 v{O(i)+1}, 0xffff0000, v{T(i)+4}
        v_lshlrev_b32 v{O(i)+2}, 16, v{T(i)+5}
        v_and_b32 v{O(i)+3}, 0xffff0000, v{T(i)+5}
        v_pk_fma_f32 v[{T(i)+6}:{T(i)+7}], v[{T(i)}:{T(i)+1}], v[{200+4*i}:{201+4*i}], v[{216+4*i}:{217+4*i}]
        v_pk_fma_f32 v[{T(i)+8}:{T(i)+9}], v[{T(i)+2}:{T(i)+3}], v[{202+4*i}:{203+4*i}], v[{218+4*i}:{219+4*i}]""")
    for i in range(4):
        a(f"""v_pk_fma_f32 v[{T(i)+6}:{T(i)+7}], v[{T(i)+6}:{T(i)+7}], v[{O(i)}:{O(i)+1}], v[{T(i)}:{T(i)+1}]
        v_pk_fma_f32 v[{T(i)+8}:{T(i)+9}], v[{T(i)+8}:{T(i)+9}], v[{O(i)+2}:{O(i)+3}], v[{T(i)+2}:{T(i)+3}]""")
    for i in range(4):
        a(f"""v_cvt_pk_bf16_f32 v{O(i)}, v{T(i)+6}, v{T(i)+7}
        v_cvt_pk_bf16_f32 v{O(i)+1}, v{T(i)+8}, v{T(i)+9}
        buffer_store_dwordx2 v[{O(i)}:{O(i)+1}], v14, {WSR}, s39 offen offset:{512*i} sc1""")
    stamp(a, 8)


def blk_addr(a):
    a(f"""v_sub_u32 v11, 31, v2
    v_lshlrev_b32 v12, 2, v1
    v_xor_b32 v11, v11, v12
    v_lshlrev_b32 v11, 2, v11
    v_lshlrev_b32 v13, 10, v1
    v_add_u32 v11, v11, v13
    v_add_u32 v11, {PL}, v11
    v_xor_b32 v12, v2, v12
    v_lshlrev_b32 v12, 2, v12
    v_add_u32 v12, v12, v13
    v_add_u32 v12, {PL + 8192}, v12
    """)

def blk_skun(a):
    for j in range(8):
        a(f"""v_lshlrev_b32 v{80+j}, 16, v{44+2*j}
        v_and_b32 v{88+j}, 0xffff0000, v{44+2*j}
        v_lshlrev_b32 v{96+j}, 16, v{45+2*j}
        v_and_b32 v{104+j}, 0xffff0000, v{45+2*j}""")

def blk_kv(a):
    for i in range(5):
        for p in range(4):
            a(f"""v_lshlrev_b32 v{112+8*i+2*p}, 16, v{16+4*i+p}
            v_and_b32 v{113+8*i+2*p}, 0xffff0000, v{16+4*i+p}""")
    for row in range(2):
        for p in range(4):
            d = 152 + 8 * row + 2 * p
            a(f"v_pk_mul_f32 v[{d}:{d+1}], v[{112+8*row+2*p}:{113+8*row+2*p}], v[{104+2*p}:{105+2*p}]")
    for tt, tap in ((1, 2), (2, 1), (3, 0)):
        for row in range(2):
            for p in range(4):
                d = 152 + 8 * row + 2 * p
                k = 112 + 8 * (row + tt) + 2 * p
                s_ = 80 + 8 * tap + 2 * p
                a(f"v_pk_fma_f32 v[{d}:{d+1}], v[{k}:{k+1}], v[{s_}:{s_+1}], v[{d}:{d+1}]")
    for row in range(2):
        for p in range(4):
            a(f"""v_lshlrev_b32 v{112+8*row+2*p}, 16, v{36+4*row+p}
            v_and_b32 v{113+8*row+2*p}, 0xffff0000, v{36+4*row+p}""")
    for row in range(2):
        for p in range(4):
            d = 152 + 8 * row + 2 * p
            a(f"v_pk_mul_f32 v[{d}:{d+1}], v[{d}:{d+1}], v[{112+8*row+2*p}:{113+8*row+2*p}]")
    for j in range(8):
        a(f"v_cvt_pk_bf16_f32 v{80+j}, v{160+j}, v{152+j}")
    for j in range(8):
        a(f"ds_write_b32 v11, v{80+j} offset:{128*j}")
    a(f"""v_lshrrev_b32 v3, 6, v0
    v_xor_b32 v5, v1, v3
    v_lshlrev_b32 v5, 4, v5
    v_lshlrev_b32 v6, 7, v2
    v_add_u32 v5, v5, v6
    v_add_u32 v5, {PL}, v5
    v_xor_b32 v7, 64, v5
    {PGs('s36')}
    s_lshl_b32 s36, s36, 18
    {PTs('s37', 's38')}
    s_lshl_b32 s37, s37, 7
    s_sub_u32 s4, s36, s37
    s_add_u32 s4, s4, {WS['XR'] + 1984*2}
    s_add_u32 s5, s36, s37
    s_add_u32 s5, s5, {WS['QT']}
    v_lshlrev_b32 v8, 12, v2
    v_lshlrev_b32 v15, 4, v1
    v_add_u32 v8, v8, v15
    v_add_u32 v15, 0x20000, v8
    s_waitcnt lgkmcnt(0)
    s_barrier
    ds_read_b128 v[16:19], v5
    ds_read_b128 v[20:23], v7 offset:4096
    s_waitcnt lgkmcnt(1)
    buffer_store_dwordx4 v[16:19], v8, {WSR}, s4 offen {LS('xr')}
    s_waitcnt lgkmcnt(0)
    buffer_store_dwordx4 v[20:23], v15, {WSR}, s4 offen {LS('xr')}""")

def blk_wtr(a):
    a(f"""v_lshrrev_b32 v178, 4, v9
    v_bfe_u32 v179, v9, 2, 2
    v_and_b32 v180, 3, v9
    v_lshl_add_u32 v181, v178, 4, v179
    v_mul_u32_u24 v181, 96, v181
    v_and_b32 v182, 1, v180
    v_lshl_add_u32 v181, v182, 3, v181
    v_lshrrev_b32 v182, 1, v180
    v_mul_u32_u24 v182, {W3OFF}, v182
    v_add_u32 v181, v181, v182
    v_lshlrev_b32 v183, 4, v9""")
    for i in range(3):
        a(f"""s_mul_i32 s36, s{S_W}, 3
        s_add_u32 s36, s36, {i}
        s_lshr_b32 s37, s36, 1
        s_and_b32 s36, s36, 1
        s_lshl_b32 s38, s37, 4
        s_mul_i32 s39, s36, {8*96}
        s_add_u32 s38, s38, s39
        s_add_u32 s38, s38, {PW}
        v_add_u32 v182, s38, v181
        ds_read_b64_tr_b16 v[{144+4*i}:{145+4*i}], v182
        ds_read_b64_tr_b16 v[{146+4*i}:{147+4*i}], v182 offset:{4*96}
        s_mul_i32 s38, s61, 6
        s_add_u32 s38, s38, s37
        s_lshl_b32 s39, s38, 14
        s_lshl_b32 s37, s60, 11
        s_add_u32 s39, s39, s37
        s_lshl_b32 s36, s36, 10
        s_add_u32 s39, s39, s36
        s_add_u32 s39, s39, {WS['WF13']}
        s_cmp_lt_u32 s38, 172
        s_cselect_b32 s{6+i}, s39, {INV}""")
    a(f"""v_lshl_add_u32 v181, v178, 2, v179
    v_lshlrev_b32 v181, 7, v181
    v_lshl_add_u32 v181, v180, 5, v181
    s_lshl_b32 s36, s{S_W}, 3
    s_add_u32 s36, s36, {PW + 2*6144 + 64}
    v_add_u32 v181, s36, v181""")
    for i in range(2):
        a(f"""ds_read_b64_tr_b16 v[{156+4*i}:{157+4*i}], v181 offset:{4096*i}
        ds_read_b64_tr_b16 v[{158+4*i}:{159+4*i}], v181 offset:{4096*i + 2048}
        {PTs('s36', 's37')}
        s_add_u32 s36, s36, {32*i}
        {PGs('s37')}
        s_mul_i32 s37, s37, 43
        s_add_u32 s37, s37, s36
        s_lshl_b32 s37, s37, 12
        s_lshl_b32 s38, s{S_W}, 10
        s_add_u32 s37, s37, s38
        s_add_u32 s37, s37, {WS['WF2']}
        s_cmp_lt_u32 s36, 43
        s_cselect_b32 s{9+i}, s37, {INV}""")

def blk_qperm(a):
    a("s_mov_b32 s36, 0x05040100\ns_mov_b32 s37, 0x07060302")
    for p in range(4):
        a(f"""v_perm_b32 v{88+2*p}, v{64+p}, v{60+p}, s36
        v_perm_b32 v{89+2*p}, v{64+p}, v{60+p}, s37""")
    for j in range(8):
        a(f"ds_write_b32 v12, v{88+j} offset:{128*j}")

def blk_stats(a):
    a("v_mov_b32 v14, 0x3f803f80")
    for row in range(2):
        su, sq = 96 + 2 * row, 97 + 2 * row
        a(f"v_mov_b32 v{su}, 0\nv_mov_b32 v{sq}, 0")
    for p in range(4):
        for row in range(2):
            su, sq = 96 + 2 * row, 97 + 2 * row; b = 68 + 4 * row
            a(f"v_dot2_f32_bf16 v{su}, v{b+p}, v14, v{su}\nv_dot2_f32_bf16 v{sq}, v{b+p}, v{b+p}, v{sq}")
    for r in (8, 4, 2, 1):
        for v in (96, 97, 98, 99):
            a(f"v_add_f32_dpp v{v}, v{v}, v{v} row_ror:{r} row_mask:0xf bank_mask:0xf")
    for k, v in enumerate((96, 97, 98, 99)): a(f"v_mov_b32 v{100+k}, v{v}")
    for k, v in enumerate((96, 97, 98, 99)): a(f"v_permlane16_swap_b32 v{v}, v{100+k}")
    for k, v in enumerate((96, 97, 98, 99)): a(f"v_add_f32 v{v}, v{v}, v{100+k}")
    for k, v in enumerate((96, 97, 98, 99)): a(f"v_mov_b32 v{100+k}, v{v}")
    for k, v in enumerate((96, 97, 98, 99)): a(f"v_permlane32_swap_b32 v{v}, v{100+k}")
    for k, v in enumerate((96, 97, 98, 99)): a(f"v_add_f32 v{v}, v{v}, v{100+k}")
    ln_core(a, 96, 97); ln_core(a, 98, 99)
    a(f"""v_rcp_f32 v102, v97
    v_rcp_f32 v103, v99
    v_mul_f32 v104, -v96, v102
    v_mul_f32 v105, -v98, v103
    s_lshl_b32 s36, s2, 5
    s_lshl_b32 s37, s{S_W}, 3
    s_add_u32 s11, s36, s37
    s_add_u32 s11, s11, {WS['RS0']}""")

def blk_hcop(a):
    a(f"""s_mul_i32 s62, s66, {CB}
    v_lshlrev_b32 v4, 4, v9
    s_lshl_b32 s36, s67, 11
    s_add_u32 s36, s36, s62
    s_add_u32 s36, s36, 32
    v_add_u32 v4, s36, v4""")
    for p in range(2):
        L0, L2, L4 = 192 + 12 * p, 196 + 12 * p, 200 + 12 * p
        for j in range(4):
            a(f"v_alignbit_b32 v{112+8*p+j}, v{L2+j}, v{L0+j}, 16")
            a(f"v_alignbit_b32 v{116+8*p+j}, v{L4+j}, v{L2+j}, 16")
        a(f"""ds_write_b128 v4, v[{L0}:{L0+3}] offset:{1024*p}
        ds_write_b128 v4, v[{112+8*p}:{115+8*p}] offset:{1024*p + HCS}
        ds_write_b128 v4, v[{L2}:{L2+3}] offset:{1024*p + 2*HCS}
        ds_write_b128 v4, v[{116+8*p}:{119+8*p}] offset:{1024*p + 3*HCS}""")
    a(f"""v_lshl_or_b32 v216, v217, 16, v216
    v_mul_u32_u24 v13, {HCS}, v219
    v_lshl_add_u32 v13, v220, 2, v13
    v_add_u32 v13, s62, v13
    ds_write_b32 v13, v216
    v_lshlrev_b32 v20, 16, v218
    v_mov_b32 v92, 0
    v_mov_b32 v93, 0
    v_mov_b32 v94, 0
    v_mov_b32 v95, 0
    v_and_b32 v16, 31, v9
    v_lshlrev_b32 v16, 4, v16
    v_add_u32 v16, s62, v16
    ds_write_b128 v16, v[92:95] offset:{XRO+4096}
    s_waitcnt lgkmcnt(0)""")


def w_stage_bulk(a):
    for k in range(7):
        a(f"""s_sub_u32 s36, s{S_W}, 1
        s_add_u32 s36, s36, {3*k}
        s_cmp_lt_u32 s36, 12
        s_cbranch_scc0 L_w2_{k}
        s_cmp_lt_u32 s36, 6
        s_cselect_b32 s4, s52, s54
        s_cselect_b32 s5, s53, s55
        s_cselect_b32 s37, 0, 6
        s_cselect_b32 s38, 0, {W3OFF}
        s_mov_b32 s6, {D*F*2}
        s_mov_b32 s7, 0x20000
        s_sub_u32 s36, s36, s37
        s_lshl_b32 s37, s36, 6
        v_add_u32 v177, s37, v9
        v_mul_u32_u24 v178, 43691, v177
        v_lshrrev_b32 v178, 18, v178
        v_mul_u32_u24 v179, 6, v178
        v_sub_u32 v179, v177, v179
        v_mul_u32_u24 v178, 2752, v178
        v_lshl_add_u32 v{184+(k%4)}, v179, 4, v178
        s_lshl_b32 s36, s36, 10
        s_add_u32 s36, s36, s38
        s_add_u32 s36, s36, {PW}
        s_mul_i32 s37, s60, {64*2752}
        s_mul_i32 s38, s61, 96
        s_add_u32 s37, s37, s38
        s_branch L_wgo_{k}
        L_w2_{k}:
        s_mov_b32 s4, s56
        s_mov_b32 s5, s57
        s_mov_b32 s6, {D*F*2}
        s_mov_b32 s7, 0x20000
        s_sub_u32 s36, s36, 12
        v_lshrrev_b32 v178, 3, v9
        v_and_b32 v179, 7, v9
        v_lshlrev_b32 v178, 10, v178
        v_lshl_add_u32 v{184+(k%4)}, v179, 4, v178
        {PTs('s37', 's38')}
        s_lshl_b32 s37, s37, 15
        {PGs('s38')}
        s_lshl_b32 s38, s38, 7
        s_add_u32 s37, s37, s38
        s_and_b32 s38, s36, 3
        s_lshl_b32 s38, s38, 13
        s_add_u32 s37, s37, s38
        s_lshr_b32 s38, s36, 2
        s_lshl_b32 s38, s38, 20
        s_add_u32 s37, s37, s38
        s_cmp_lt_u32 s36, 8
        s_cselect_b32 s37, s37, {INV}
        s_min_u32 s36, s36, 8
        s_lshl_b32 s36, s36, 10
        s_add_u32 s36, s36, {PW + 2*6144 + 64}
        L_wgo_{k}:
        s_mov_b32 m0, s36
        buffer_load_dwordx4 v{184+(k%4)}, s[4:7], s37 offen lds""")

def blk_wtr_hi(a):
    a(f"""v_lshrrev_b32 v250, 4, v9
    v_bfe_u32 v251, v9, 2, 2
    v_and_b32 v252, 3, v9
    v_lshl_add_u32 v253, v250, 4, v251
    v_mul_u32_u24 v253, 96, v253
    v_and_b32 v255, 1, v252
    v_lshl_add_u32 v253, v255, 3, v253
    v_lshrrev_b32 v255, 1, v252
    v_mul_u32_u24 v255, {W3OFF}, v255
    v_add_u32 v253, v253, v255
    v_lshlrev_b32 v254, 4, v9""")
    for i in range(3):
        a(f"""s_mul_i32 s36, s{S_W}, 3
        s_add_u32 s36, s36, {i}
        s_lshr_b32 s37, s36, 1
        s_and_b32 s36, s36, 1
        s_lshl_b32 s38, s37, 4
        s_mul_i32 s39, s36, {8*96}
        s_add_u32 s38, s38, s39
        s_add_u32 s38, s38, {PW}
        v_add_u32 v255, s38, v253
        ds_read_b64_tr_b16 v[{232+4*i}:{233+4*i}], v255
        ds_read_b64_tr_b16 v[{234+4*i}:{235+4*i}], v255 offset:{4*96}
        s_mul_i32 s38, s61, 6
        s_add_u32 s38, s38, s37
        s_lshl_b32 s39, s38, 14
        s_lshl_b32 s37, s60, 11
        s_add_u32 s39, s39, s37
        s_lshl_b32 s36, s36, 10
        s_add_u32 s39, s39, s36
        s_add_u32 s39, s39, {WS['WF13']}
        s_cmp_lt_u32 s38, 172
        s_cselect_b32 s{(6, 7, 12)[i]}, s39, {INV}""")
    a(f"""v_lshl_add_u32 v253, v250, 2, v251
    v_lshlrev_b32 v253, 7, v253
    v_lshl_add_u32 v253, v252, 5, v253
    s_lshl_b32 s36, s{S_W}, 3
    s_add_u32 s36, s36, {PW + 2*6144 + 64}
    v_add_u32 v253, s36, v253""")
    for i in range(2):
        a(f"""ds_read_b64_tr_b16 v[{244+4*i}:{245+4*i}], v253 offset:{4096*i}
        ds_read_b64_tr_b16 v[{246+4*i}:{247+4*i}], v253 offset:{4096*i + 2048}
        {PTs('s36', 's37')}
        s_add_u32 s36, s36, {32*i}
        {PGs('s37')}
        s_mul_i32 s37, s37, 43
        s_add_u32 s37, s37, s36
        s_lshl_b32 s37, s37, 12
        s_lshl_b32 s38, s{S_W}, 10
        s_add_u32 s37, s37, s38
        s_add_u32 s37, s37, {WS['WF2']}
        s_cmp_lt_u32 s36, 43
        s_cselect_b32 s{(13, 14)[i]}, s37, {INV}""")

def conv_epilogue(a):
    O = lambda i: 64 + 4 * i
    T = lambda i: 104 + 10 * i
    for i in range(4):
        kv = 96 + 2 * i
        a(f"""v_and_b32 v{T(i)}, 0xffff0000, v{kv+1}
        v_lshlrev_b32 v{T(i)+1}, 16, v{kv+1}
        v_and_b32 v{T(i)+2}, 0xffff0000, v{kv}
        v_lshlrev_b32 v{T(i)+3}, 16, v{kv}""")
    for i in range(4):
        a(f"""v_pk_fma_f32 v[{O(i)}:{O(i)+1}], v[{T(i)}:{T(i)+1}], v[20:21], v[{O(i)}:{O(i)+1}] op_sel_hi:[1,0,1]
        v_pk_fma_f32 v[{O(i)+2}:{O(i)+3}], v[{T(i)+2}:{T(i)+3}], v[20:21], v[{O(i)+2}:{O(i)+3}] op_sel_hi:[1,0,1]""")
    for i in range(4):
        a(f"""v_cvt_pk_bf16_f32 v{T(i)+4}, v{O(i)}, v{O(i)+1}
        v_cvt_pk_bf16_f32 v{T(i)+5}, v{O(i)+2}, v{O(i)+3}""")
    for i in range(4):
        a(f"""v_lshlrev_b32 v{T(i)}, 16, v{192+2*i}
        v_and_b32 v{T(i)+1}, 0xffff0000, v{192+2*i}
        v_lshlrev_b32 v{T(i)+2}, 16, v{193+2*i}
        v_and_b32 v{T(i)+3}, 0xffff0000, v{193+2*i}
        buffer_store_dwordx2 v[{T(i)+4}:{T(i)+5}], v14, {WSR}, s38 offen offset:{512*i} sc1""")
    for i in range(4):
        a(f"""v_lshlrev_b32 v{O(i)}, 16, v{T(i)+4}
        v_and_b32 v{O(i)+1}, 0xffff0000, v{T(i)+4}
        v_lshlrev_b32 v{O(i)+2}, 16, v{T(i)+5}
        v_and_b32 v{O(i)+3}, 0xffff0000, v{T(i)+5}
        v_pk_fma_f32 v[{T(i)+6}:{T(i)+7}], v[{T(i)}:{T(i)+1}], v[{200+4*i}:{201+4*i}], v[{216+4*i}:{217+4*i}]
        v_pk_fma_f32 v[{T(i)+8}:{T(i)+9}], v[{T(i)+2}:{T(i)+3}], v[{202+4*i}:{203+4*i}], v[{218+4*i}:{219+4*i}]""")
    for i in range(4):
        a(f"""v_pk_fma_f32 v[{T(i)+6}:{T(i)+7}], v[{T(i)+6}:{T(i)+7}], v[{O(i)}:{O(i)+1}], v[{T(i)}:{T(i)+1}]
        v_pk_fma_f32 v[{T(i)+8}:{T(i)+9}], v[{T(i)+8}:{T(i)+9}], v[{O(i)+2}:{O(i)+3}], v[{T(i)+2}:{T(i)+3}]""")
    for i in range(4):
        a(f"""v_cvt_pk_bf16_f32 v{O(i)}, v{T(i)+6}, v{T(i)+7}
        v_cvt_pk_bf16_f32 v{O(i)+1}, v{T(i)+8}, v{T(i)+9}
        buffer_store_dwordx2 v[{O(i)}:{O(i)+1}], v14, {WSR}, s39 offen offset:{512*i} sc1""")
    stamp(a, 8)

def emit_front4(a, hooks):
    blk_addr(a)
    a("s_waitcnt vmcnt(20)")
    blk_skun(a)
    a("s_waitcnt vmcnt(13)")
    stamp(a, 1)
    blk_kv(a)
    stamp(a, 2)
    a("s_mov_b32 s8, s5")
    a.nolog += 1
    a(f"""s_cmp_eq_u32 s{S_W}, 0
    s_cbranch_scc1 L_f_w0a""")
    w_stage_bulk(a)
    a(f"""s_waitcnt vmcnt(7)
    s_branch L_f_j1
    L_f_w0a:
    s_waitcnt vmcnt(0)
    L_f_j1:
    s_barrier
    s_cmp_lg_u32 s{S_W}, 0
    s_cbranch_scc1 L_f_s1
    s_add_u32 s36, s{S_GEN}, 1
    v_mov_b32 v16, s36
    v_mov_b32 v17, s{S_FLAG}
    s_mov_b64 exec, 1
    buffer_store_dword v16, v17, {WSR}, 0 offen sc1
    s_mov_b64 exec, -1
    L_f_s1:""")
    a.nolog -= 1
    stamp(a, 3)
    blk_hcop(a)
    a("v_and_b32 v1, 63, v0")
    a.nolog += 1
    a(f"""s_cmp_lg_u32 s{S_W}, 0
    s_cbranch_scc1 L_f_nx""")
    if SPREAD:
        a(f"""v_and_b32 v2, 7, v1
        v_lshlrev_b32 v2, 5, v2
        v_bfe_u32 v3, v1, 3, 2
        v_lshl_add_u32 v2, v3, 3, v2
        v_add_u32 v2, s60, v2
        v_lshlrev_b32 v2, 6, v2
        v_add_u32 v2, {WS['SYNC'] + SYNC_FLAGS}, v2""")
    else:
        a(f"""v_and_b32 v2, 31, v1
        s_lshl_b32 s36, s60, 5
        v_add_u32 v2, s36, v2
        v_lshlrev_b32 v2, 6, v2
        v_add_u32 v2, {WS['SYNC'] + SYNC_FLAGS}, v2""")
    wait_flags(a, 2, 1, 1, 18)
    a(f"""v_lshlrev_b32 v19, 4, v1
    s_lshl_b32 s36, s19, 13
    s_add_u32 s36, s36, {WS['XR']}""")
    for ch in range(2):
        for i in range(4):
            a(f"""s_mov_b32 m0, {ch * CB + XRO + i * 1024}
            buffer_load_dwordx4 v19, {WSR}, s36 offen sc1 lds
            s_add_u32 s36, s36, 1024""")
    a.label("L_f_nx")
    a.nolog -= 1
    stamp(a, 4)
    blk_qperm(a)
    blk_stats(a)
    a(f"""v_mov_b32 v101, s11
    s_mov_b32 s37, {WS['C0']-WS['RS0']}
    s_mov_b64 exec, 1
    buffer_store_dwordx2 v[102:103], v101, {WSR}, 0 offen sc1
    buffer_store_dwordx2 v[104:105], v101, {WSR}, s37 offen sc1
    s_mov_b64 exec, -1
    s_waitcnt lgkmcnt(0)
    s_barrier
    ds_read_b128 v[72:75], v5 offset:8192
    ds_read_b128 v[76:79], v7 offset:{8192+4096}
    s_waitcnt lgkmcnt(1)
    buffer_store_dwordx4 v[72:75], v8, {WSR}, s8 offen sc1
    s_waitcnt lgkmcnt(0)
    buffer_store_dwordx4 v[76:79], v15, {WSR}, s8 offen sc1""")
    emit_ffn_roles(a)
    a(f"""v_and_b32 v11, 15, v1
    v_lshrrev_b32 v12, 4, v1
    v_lshlrev_b32 v13, 4, v11
    v_lshl_add_u32 v13, v12, 2, v13
    s_lshl_b32 s36, s67, 10
    v_add_u32 v13, s36, v13
    v_lshlrev_b32 v14, 1, v13
    v_lshlrev_b32 v15, 2, v13
    v_lshlrev_b32 v22, 6, v1
    v_add_u32 v22, {WS['SYNC'] + SYNC_FLAGS}, v22
    v_add_u32 v17, 1, v11
    v_and_b32 v18, 3, v17
    v_mul_u32_u24 v18, {HCS}, v18
    v_lshrrev_b32 v17, 2, v17
    v_lshlrev_b32 v17, 3, v17
    v_lshl_add_u32 v17, v12, 4, v17
    v_add_u32 v17, v17, v18
    s_lshl_b32 s36, s67, 8
    s_add_u32 s37, s36, s62
    v_add_u32 v17, s37, v17
    v_lshlrev_b32 v18, 5, v11
    v_lshlrev_b32 v19, 4, v12
    v_sub_u32 v18, v19, v18
    s_add_u32 s37, s37, {XRO + 480}
    v_add_u32 v18, s37, v18""")
    for r in range(32, 64): a(f"v_mov_b32 v{r}, 0")
    a(f"""s_cmp_lg_u32 s{S_W}, 0
    s_cbranch_scc1 L_f_nw
    s_waitcnt vmcnt(4)
    L_f_nw:
    s_barrier""")
    stamp(a, 6)
    pre = []
    for i in range(4):
        pre.append(f"buffer_load_dwordx2 v[{192+2*i}:{193+2*i}], v14, {WSR}, s10 offen offset:{512*i} sc1")
    for i in range(4):
        pre.append(f"buffer_load_dwordx4 v[{200+4*i}:{203+4*i}], v15, {WSR}, s8 offen offset:{1024*i} sc1")
        pre.append(f"buffer_load_dwordx4 v[{216+4*i}:{219+4*i}], v15, {WSR}, s9 offen offset:{1024*i} sc1")
    def load_frags(setbase, bi):
        ops = []
        for x in range(8):
            A = setbase + 4 * x
            ops.append(f"ds_read_b64 v[{A}:{A+1}], v17 offset:{512*x + 64*bi}")
            ops.append(f"ds_read_b64 v[{A+2}:{A+3}], v17 offset:{512*x + 64*bi + 8}")
            B = setbase + 32 + 4 * x
            ops.append(f"ds_read_b128 v[{B}:{B+3}], v18 offset:{512*(7-x) + 64*bi}")
        return ops
    sets = (64, 128)
    for op in load_frags(sets[0], 0): a(op)
    def flagloads(off):
        for i in range(4):
            if i == 0: a(f"buffer_load_dword v24, v22, {WSR}, 0 offen offset:{off} sc1")
            else: a(f"s_movk_i32 s39, {4096*i}\nbuffer_load_dword v{24+i}, v22, {WSR}, s39 offen offset:{off} sc1")
    for bi in range(4):
        cur = sets[bi & 1]
        nxt = load_frags(sets[(bi + 1) & 1], bi + 1) if bi < 3 else []
        if bi == 2:
            signal(a, 2, tv=(24, 25))
            a("v_and_b32 v9, 63, v0")
            blk_wtr_hi(a)
        if bi == 3:
            flagloads(0)
            if HALF:
                a("s_lshl_b32 s38, s22, 3")
                member_flag_off(a, 23, "s38", 8)
            else:
                member_flag_off(a, 23, "0", 16)
            a(f"buffer_load_dword v28, v23, {WSR}, 0 offen offset:4 sc1")
            a("s_waitcnt lgkmcnt(0)")
            for i in range(5):
                a(f"buffer_store_dwordx4 {vr(232+4*i)}, v254, {WSR}, s{(6, 7, 12, 13, 14)[i]} offen sc1")
        a("s_waitcnt lgkmcnt(0)")
        pairs = sorted([(jt, aa) for jt in range(8) for aa in range(jt + 1)], key=lambda p: (p[1], p[0]))
        k = 0
        for idx, (jt, aa) in enumerate(pairs):
            A = cur + 4 * aa; B = cur + 32 + 4 * (jt - aa); C = 32 + 4 * jt
            a(f"v_mfma_f32_16x16x32_bf16 v[{C}:{C+3}], v[{A}:{A+3}], v[{B}:{B+3}], v[{C}:{C+3}]")
            if idx < 24 and k < len(nxt):
                a(nxt[k]); k += 1
    stamp(a, 7)
    a("s_waitcnt vmcnt(5)")
    a(f"""v_cmp_eq_u32 vcc, s{S_IDW}, v28
    s_cmp_eq_u64 vcc, -1
    s_cselect_b32 s{S_LOC}, 1, 0""")
    flagcheck(a, 2, (24, 25, 26, 27), 22, "L_c_ok1", tmp=(29, 30))
    a(f"s_mov_b32 s8, {WS['RS0']}\ns_mov_b32 s9, {WS['C0']}\ns_add_u32 s10, s65, {WS['QT']}")
    for op in pre: a(op)
    a(f"""v_lshlrev_b32 v4, 4, v1
    s_lshl_b32 s36, s{S_W}, 12
    s_add_u32 s36, s36, {EXO}
    v_add_u32 v5, s36, v4
    s_xor_b32 s36, s36, 4096
    v_add_u32 v6, s36, v4
    s_cmp_eq_u32 s67, 0
    s_cbranch_scc0 L_c_x1""")
    for half in range(2):
        own, oth = (32, 48) if half == 0 else (48, 32)
        for i in range(4): a(f"ds_write_b128 v5, v[{oth+4*i}:{oth+4*i+3}] offset:{1024*i}")
        a("s_waitcnt vmcnt(12) lgkmcnt(0)\ns_barrier")
        for i in range(4): a(f"ds_read_b128 v[{80+4*i}:{83+4*i}], v6 offset:{1024*i}")
        a("s_waitcnt lgkmcnt(0)")
        for i in range(4):
            for h in range(2):
                a(f"v_pk_add_f32 v[{64+4*i+2*h}:{65+4*i+2*h}], v[{own+4*i+2*h}:{own+4*i+2*h+1}], v[{80+4*i+2*h}:{81+4*i+2*h}]")
        if half == 0:
            a("s_branch L_c_x2\nL_c_x1:")
    a.label("L_c_x2")
    a.nolog += 1
    a(f"""s_cmp_lg_u32 s{S_W}, 0
    s_cbranch_scc1 L_f_wf
    s_add_u32 s36, s{S_GEN}, 1
    v_mov_b32 v24, s36
    v_mov_b32 v25, s{S_FLAG}
    s_mov_b64 exec, 1
    buffer_store_dword v24, v25, {WSR}, 0 offen offset:8 sc1
    s_mov_b64 exec, -1
    L_f_wf:""")
    a.nolog -= 1
    a(f"""v_lshlrev_b32 v7, 5, v11
    v_lshl_add_u32 v7, v12, 3, v7
    s_lshl_b32 s36, s67, 11
    s_sub_u32 s37, s62, s36
    s_add_u32 s37, s37, {XRO + 4088 - 1536}
    v_sub_u32 v7, s37, v7""")
    for i in range(4): a(f"ds_read_b64 v[{96+2*i}:{97+2*i}], v7 offset:{512*(3-i)}")
    a(f"""s_lshr_b32 s39, s65, 12
    s_mul_i32 s39, s39, {XP}
    s_add_u32 s38, s39, {WS['YT']}
    s_add_u32 s39, s39, {WS['X1T']}
    s_waitcnt vmcnt(0) lgkmcnt(0)""")
    conv_epilogue(a)


import re as _re
def renum(text, lo, shift):
    def f(m):
        n = int(m.group(1)); return f"v{n - shift}" if n >= lo else m.group(0)
    def g(m):
        x, y = int(m.group(1)), int(m.group(2))
        return f"v[{x - shift}:{y - shift}]" if x >= lo else m.group(0)
    return _re.sub(r"\bv(\d+)\b", f, _re.sub(r"v\[(\d+):(\d+)\]", g, text))
class Sub:
    def __init__(self): self.t = []
    def __call__(self, x): self.t.append(x)
def blk_rbaddr(a):
    a(f"""v_lshrrev_b32 v3, 6, v0
    v_xor_b32 v5, v1, v3
    v_lshlrev_b32 v5, 4, v5
    v_lshlrev_b32 v6, 7, v2
    v_add_u32 v5, v5, v6
    v_add_u32 v5, {PL}, v5
    v_xor_b32 v7, 64, v5
    {PGs('s36')}
    s_lshl_b32 s36, s36, 18
    {PTs('s37', 's38')}
    s_lshl_b32 s37, s37, 7
    s_add_u32 s5, s36, s37
    s_add_u32 s5, s5, {WS['QT']}
    v_lshlrev_b32 v8, 12, v2
    v_lshlrev_b32 v15, 4, v1
    v_add_u32 v8, v8, v15
    v_add_u32 v15, 0x20000, v8""")
def build_prep_kernel(a, name):
    kbegin(a, name)
    a(f"""s_cmp_ge_u32 s2, 256
    s_cbranch_scc1 P_end
    s_load_dwordx4 s[4:7], s[0:1], {ARG['q']}
    s_load_dwordx4 s[8:11], s[0:1], {ARG['v']}
    s_load_dwordx2 s[16:17], s[0:1], {ARG['ws']}
    s_load_dwordx4 s[52:55], s[0:1], {ARG['w1']}
    s_load_dwordx2 s[56:57], s[0:1], {ARG['w2']}
    v_lshrrev_b32 v3, 6, v0
    v_readfirstlane_b32 s19, v3
    v_and_b32 v0, 255, v0
    v_and_b32 v1, 7, v0
    v_lshrrev_b32 v2, 3, v0
    v_and_b32 v9, 63, v0
    s_and_b32 s{S_W}, s19, 3
    s_lshr_b32 s19, s19, 2
    s_and_b32 s60, s2, 7
    s_lshr_b32 s61, s2, 3
    s_lshr_b32 s66, s{S_W}, 1
    s_and_b32 s67, s{S_W}, 1
    {PGs('s36')}
    s_lshl_b32 s36, s36, 7
    {PTs('s37', 's38')}
    s_lshl_b32 s37, s37, 16
    s_add_u32 s36, s36, s37
    v_lshlrev_b32 v4, 4, v1
    v_lshlrev_b32 v5, 11, v2
    v_add3_u32 v4, v4, v5, s36
    s_waitcnt lgkmcnt(0)""")
    srd(a, 20, 4, S * D * 2)
    srd(a, 24, 6, S * D * 2)
    srd(a, 32, 8, S * D * 2)
    srd(a, 40, 10, D * 8)
    srd(a, 28, 16, WS['END'])
    a("s_cmp_eq_u32 s19, 1\ns_cbranch_scc1 P_q\ns_cmp_eq_u32 s19, 2\ns_cbranch_scc1 P_w")
    a(f"""{PGs('s36')}
    s_lshl_b32 s36, s36, 9
    v_lshlrev_b32 v8, 6, v1
    v_add_u32 v8, s36, v8
    buffer_load_dwordx4 v[44:47], v8, s[40:43], 0 offen
    buffer_load_dwordx4 v[48:51], v8, s[40:43], 0 offen offset:16
    buffer_load_dwordx4 v[52:55], v8, s[40:43], 0 offen offset:32
    buffer_load_dwordx4 v[56:59], v8, s[40:43], 0 offen offset:48
    v_subrev_u32 v5, 3072, v4
    v_subrev_u32 v6, 2048, v4
    v_subrev_u32 v7, 1024, v4
    buffer_load_dwordx4 v[16:19], v5, s[24:27], 0 offen
    buffer_load_dwordx4 v[20:23], v6, s[24:27], 0 offen
    buffer_load_dwordx4 v[24:27], v7, s[24:27], 0 offen
    buffer_load_dwordx4 v[28:31], v4, s[24:27], 0 offen
    buffer_load_dwordx4 v[32:35], v4, s[24:27], 0 offen offset:1024
    buffer_load_dwordx4 v[36:39], v4, s[32:35], 0 offen
    buffer_load_dwordx4 v[40:43], v4, s[32:35], 0 offen offset:1024""")
    blk_addr(a)
    a("s_waitcnt vmcnt(7)")
    blk_skun(a)
    a("s_waitcnt vmcnt(0)")
    blk_kv(a)
    a("s_endpgm")
    a.label("P_q")
    emit_prep_loadsQ(a)
    emit_statrows(a)
    blk_addr(a)
    blk_rbaddr(a)
    a("s_waitcnt vmcnt(2)")
    blk_qperm(a)
    a("s_waitcnt vmcnt(0)")
    blk_stats(a)
    a(f"""v_mov_b32 v101, s11
    s_mov_b32 s37, {WS['C0']-WS['RS0']}
    s_mov_b64 exec, 1
    buffer_store_dwordx2 v[102:103], v101, {WSR}, 0 offen {PST}
    buffer_store_dwordx2 v[104:105], v101, {WSR}, s37 offen {PST}
    s_mov_b64 exec, -1
    s_waitcnt lgkmcnt(0)
    s_barrier
    ds_read_b128 v[72:75], v5 offset:8192
    ds_read_b128 v[76:79], v7 offset:{8192+4096}
    s_waitcnt lgkmcnt(1)
    buffer_store_dwordx4 v[72:75], v8, {WSR}, s5 offen {PST}
    s_waitcnt lgkmcnt(0)
    buffer_store_dwordx4 v[76:79], v15, {WSR}, s5 offen {PST}
    s_endpgm""")
    a.label("P_w")
    sub = Sub()
    sub(f"""s_cmp_eq_u32 s66, 0
    s_cselect_b32 s52, s52, s54
    s_cselect_b32 s53, s53, s55
    s_mov_b32 s54, {D*F*2}
    s_mov_b32 s55, 0x20000
    s_mov_b32 s58, {D*F*2}
    s_mov_b32 s59, 0x20000""")
    saveW = emit_prep_loadsW.__code__
    emit_prep_loadsW(sub)
    sub.t.pop(0)
    sub("s_waitcnt vmcnt(0)\ns_barrier")
    blk_wtr(sub)
    for i in range(5):
        sub(f"s_waitcnt lgkmcnt({2*(4-i)})\nbuffer_store_dwordx4 {vr(144+4*i)}, v183, {WSR}, s{6+i} offen {PST}")
    for t in sub.t: a(renum(t, 144, 100))
    a.label("P_end")
    a("s_endpgm")

def emit_split_front(a, w13ops):
    a(f"""s_cmp_ge_u32 s2, 256
    s_cbranch_scc1 L_end""")
    emit_codepf(a)
    a(f"""s_load_dwordx4 s[12:15], s[0:1], {ARG['h']}
    s_load_dwordx2 s[16:17], s[0:1], {ARG['ws']}
    v_lshrrev_b32 v3, 6, v0
    v_and_b32 v9, 63, v0
    v_and_b32 v1, 63, v0
    v_readfirstlane_b32 s{S_W}, v3
    s_and_b32 s60, s2, 7
    s_lshr_b32 s61, s2, 3
    s_lshl_b32 s{S_FLAG}, s60, 5
    s_add_u32 s{S_FLAG}, s{S_FLAG}, s61
    s_mov_b32 s19, s{S_FLAG}
    s_lshl_b32 s{S_FLAG}, s{S_FLAG}, 6
    s_add_u32 s{S_FLAG}, s{S_FLAG}, {WS['SYNC'] + SYNC_FLAGS}
    s_lshr_b32 s66, s{S_W}, 1
    s_and_b32 s67, s{S_W}, 1
    s_mul_i32 s62, s66, {CB}
    s_waitcnt lgkmcnt(0)""")
    srd(a, 28, 16, WS['END'])
    a(f"""s_add_u32 s36, s16, {WS['SYNC'] + SYNC_GEN}
    s_addc_u32 s37, s17, 0
    s_load_dword s{S_GEN}, s[36:37], 0""")
    stamp(a, 0)
    a(f"""s_lshl_b32 s65, s19, 1
    s_add_u32 s65, s65, s66
    s_lshl_b32 s65, s65, 12
    v_lshlrev_b32 v10, 4, v1
    s_lshl_b32 s36, s67, 11
    s_add_u32 s37, s65, s36
    s_add_u32 s37, s37, {WS['XR']}
    s_add_u32 s38, s62, s36
    s_add_u32 s38, s38, {XRO}
    s_mov_b32 m0, s38
    buffer_load_dwordx4 v10, {WSR}, s37 offen lds
    s_add_u32 s38, s38, 1024
    s_add_u32 s37, s37, 1024
    s_mov_b32 m0, s38
    buffer_load_dwordx4 v10, {WSR}, s37 offen lds""")
    a.tag = 'h'; emit_prep_loads2(a); a.tag = None
    emit_ffn_roles(a)
    a("s_waitcnt lgkmcnt(0)")
    a(f"""s_getreg_b32 s36, hwreg(HW_REG_XCC_ID, 0, 4)
    s_add_u32 s{S_IDW}, s{S_GEN}, 13
    s_lshl_b32 s{S_IDW}, s{S_IDW}, 4
    s_or_b32 s{S_IDW}, s{S_IDW}, s36
    s_mov_b32 s{S_LOC}, 0""")
    a.nolog += 1
    a(f"""s_cmp_lg_u32 s{S_W}, 0
    s_cbranch_scc1 L_noid
    v_mov_b32 v174, s{S_IDW}
    v_mov_b32 v175, s{S_FLAG}
    s_mov_b64 exec, 1
    buffer_store_dword v174, v175, {WSR}, 0 offen offset:4 sc1
    s_mov_b64 exec, -1
    L_noid:""")
    a.nolog -= 1
    a(f"""v_and_b32 v11, 15, v1
    v_lshrrev_b32 v12, 4, v1
    v_lshlrev_b32 v13, 4, v11
    v_lshl_add_u32 v13, v12, 2, v13
    s_lshl_b32 s36, s67, 10
    v_add_u32 v13, s36, v13
    v_lshlrev_b32 v14, 1, v13
    v_lshlrev_b32 v15, 2, v13
    v_add_u32 v17, 1, v11
    v_and_b32 v18, 3, v17
    v_mul_u32_u24 v18, {HCS}, v18
    v_lshrrev_b32 v17, 2, v17
    v_lshlrev_b32 v17, 3, v17
    v_lshl_add_u32 v17, v12, 4, v17
    v_add_u32 v17, v17, v18
    s_lshl_b32 s36, s67, 8
    s_add_u32 s37, s36, s62
    v_add_u32 v17, s37, v17
    v_lshlrev_b32 v18, 5, v11
    v_lshlrev_b32 v19, 4, v12
    v_sub_u32 v18, v19, v18
    s_add_u32 s37, s37, {XRO + 480}
    v_add_u32 v18, s37, v18""")
    for r in range(32, 64): a(f"v_mov_b32 v{r}, 0")
    a.vmneed('h')
    stamp(a, 4)
    a.tag = 'w13'
    for op in w13ops[:NWS]: a(op)
    a.tag = None
    blk_hcop(a)
    a("s_barrier")
    stamp(a, 6)
    pre = []
    for i in range(4):
        pre.append(f"buffer_load_dwordx2 v[{192+2*i}:{193+2*i}], v14, {WSR}, s10 offen offset:{512*i}")
    for i in range(4):
        pre.append(f"buffer_load_dwordx4 v[{200+4*i}:{203+4*i}], v15, {WSR}, s8 offen offset:{1024*i}")
        pre.append(f"buffer_load_dwordx4 v[{216+4*i}:{219+4*i}], v15, {WSR}, s9 offen offset:{1024*i}")
    a(f"s_mov_b32 s8, {WS['RS0']}\ns_mov_b32 s9, {WS['C0']}\ns_add_u32 s10, s65, {WS['QT']}")
    def load_frags(setbase, bi):
        ops = []
        for x in range(8):
            A = setbase + 4 * x
            ops.append(f"ds_read_b64 v[{A}:{A+1}], v17 offset:{512*x + 64*bi}")
            ops.append(f"ds_read_b64 v[{A+2}:{A+3}], v17 offset:{512*x + 64*bi + 8}")
            B = setbase + 32 + 4 * x
            ops.append(f"ds_read_b128 v[{B}:{B+3}], v18 offset:{512*(7-x) + 64*bi}")
        return ops
    sets = (64, 128)
    for op in load_frags(sets[0], 0): a(op)
    extra = [(op, 'w13') for op in w13ops[NWS:NWS + NWL1]] + [(op, 'pre') for op in pre] + [(op, 'w13') for op in w13ops[NWS + NWL1:NW13A]]
    nx = len(extra); done = 0
    for bi in range(4):
        cur = sets[bi & 1]
        nxt = load_frags(sets[(bi + 1) & 1], bi + 1) if bi < 3 else []
        if bi == 3:
            member_flag_off(a, 23, "0", 16)
            a.tag = 'id'; a(f"buffer_load_dword v28, v23, {WSR}, 0 offen offset:4 sc1"); a.tag = None
        a("s_waitcnt lgkmcnt(0)")
        pairs = sorted([(jt, aa) for jt in range(8) for aa in range(jt + 1)], key=lambda p: (p[1], p[0]))
        k = 0
        for idx, (jt, aa) in enumerate(pairs):
            A = cur + 4 * aa; B = cur + 32 + 4 * (jt - aa); C = 32 + 4 * jt
            a(f"v_mfma_f32_16x16x32_bf16 v[{C}:{C+3}], v[{A}:{A+3}], v[{B}:{B+3}], v[{C}:{C+3}]")
            if idx < 24 and k < len(nxt):
                a(nxt[k]); k += 1
            want = (bi * 36 + idx + 1) * nx // 140
            while done < min(want, nx):
                op, tg = extra[done]; a.tag = tg; a(op); a.tag = None; done += 1
    while done < nx:
        op, tg = extra[done]; a.tag = tg; a(op); a.tag = None; done += 1
    stamp(a, 7)
    a(f"""v_lshlrev_b32 v4, 4, v1
    s_lshl_b32 s36, s{S_W}, 12
    s_add_u32 s36, s36, {EXO}
    v_add_u32 v5, s36, v4
    s_xor_b32 s36, s36, 4096
    v_add_u32 v6, s36, v4
    s_cmp_eq_u32 s67, 0
    s_cbranch_scc0 L_c_x1""")
    for half in range(2):
        own, oth = (32, 48) if half == 0 else (48, 32)
        for i in range(4): a(f"ds_write_b128 v5, v[{oth+4*i}:{oth+4*i+3}] offset:{1024*i}")
        a("s_waitcnt lgkmcnt(0)\ns_barrier")
        for i in range(4): a(f"ds_read_b128 v[{80+4*i}:{83+4*i}], v6 offset:{1024*i}")
        a("s_waitcnt lgkmcnt(0)")
        for i in range(4):
            for h in range(2):
                a(f"v_pk_add_f32 v[{64+4*i+2*h}:{65+4*i+2*h}], v[{own+4*i+2*h}:{own+4*i+2*h+1}], v[{80+4*i+2*h}:{81+4*i+2*h}]")
        if half == 0:
            a("s_branch L_c_x2\nL_c_x1:")
    a.label("L_c_x2")
    a(f"""v_lshlrev_b32 v7, 5, v11
    v_lshl_add_u32 v7, v12, 3, v7
    s_lshl_b32 s36, s67, 11
    s_sub_u32 s37, s62, s36
    s_add_u32 s37, s37, {XRO + 4088 - 1536}
    v_sub_u32 v7, s37, v7""")
    for i in range(4): a(f"ds_read_b64 v[{96+2*i}:{97+2*i}], v7 offset:{512*(3-i)}")
    a(f"""s_lshr_b32 s39, s65, 12
    s_mul_i32 s39, s39, {XP}
    s_add_u32 s38, s39, {WS['YT']}
    s_add_u32 s39, s39, {WS['X1T']}""")
    a.vmneed('id')
    a(f"""v_cmp_eq_u32 vcc, s{S_IDW}, v28
    s_cmp_eq_u64 vcc, -1
    s_cselect_b32 s{S_LOC}, 1, 0""")
    a.vmneed('pre', " lgkmcnt(0)")
    conv_epilogue(a)

V_CS = 32; V_X3 = 44; V_ACC = 52; V_XB = 100; V_T = 116; V_HB = 116; V_W2 = 144
def w13(kb, t): b = (kb * 3 + t) * 4; return f"a[{b}:{b+3}]"
def w2(i, dt):
    idx = i * 4 + dt
    if idx < 16: b = 192 + idx * 4; return f"a[{b}:{b+3}]"
    b = V_W2 + (idx - 16) * 4; return f"v[{b}:{b+3}]"

def emit_ffn_roles_early(a):
    pass
def emit_ffn_roles(a):
    if HALF:
        a(f"""s_and_b32 s22, s60, 1
        s_lshr_b32 s20, s60, 1
        s_lshl_b32 s20, s20, 2
        s_and_b32 s36, s61, 3
        s_or_b32 s20, s20, s36
        s_lshr_b32 s23, s61, 2
        s_lshl_b32 s21, s22, 3
        s_or_b32 s21, s21, s23""")
    else:
        a(f"""s_and_b32 s20, s61, 1
        s_lshl_b32 s36, s60, 1
        s_or_b32 s20, s20, s36
        s_lshr_b32 s21, s61, 1
        s_lshr_b32 s22, s21, 3
        s_and_b32 s23, s21, 7""")
    for t in range(3):
        a(f"""s_mul_i32 s36, s{S_W}, 3
        s_add_u32 s36, s36, {t}
        s_mul_i32 s37, s21, 11
        s_add_u32 s37, s37, s36
        s_cmp_lt_u32 s36, 11
        s_cselect_b32 s38, s37, 0x7fff
        s_cmp_lt_u32 s38, 172
        s_cselect_b32 s39, 1, 0
        s_lshl_b32 s{40+t}, s37, 14
        s_add_u32 s{40+t}, s{40+t}, {WS['WF13']}
        s_lshr_b32 s{44+t}, s37, 1
        s_lshl_b32 s{44+t}, s{44+t}, 9
        s_and_b32 s37, s37, 1
        s_lshl_b32 s37, s37, 8
        s_add_u32 s{44+t}, s{44+t}, s37
        s_cmp_eq_u32 s39, 1
        s_cselect_b32 s{40+t}, s{40+t}, {INV}
        s_cselect_b32 s{44+t}, s{44+t}, {INV}""")
    a(f"""s_mul_i32 s36, s23, 43
    s_mul_i32 s37, s{S_W}, 11
    s_add_u32 s36, s36, s37
    s_lshl_b32 s48, s36, 12
    s_add_u32 s48, s48, {WS['WF2']}
    s_cmp_eq_u32 s{S_W}, 3
    s_cselect_b32 s49, {INV}, s48
    v_and_b32 v31, 63, v0
    v_lshlrev_b32 v31, 4, v31""")
def w13_loads(a):
    for kb in range(16):
        for t in range(3):
            a(f"s_add_u32 s36, s{40+t}, {kb*1024}\nbuffer_load_dwordx4 {w13(kb,t)}, v31, {WSR}, s36 offen sc1")
def w2_loads(a, lo, hi):
    for idx in range(lo, hi):
        i, dt = idx >> 2, idx & 3
        a(f"s_add_u32 s36, s{49 if i == 10 else 48}, {idx*1024}\nbuffer_load_dwordx4 {w2(i,dt)}, v31, {WSR}, s36 offen sc1")


def w_batch(a, ops):
    if not WREV or len(ops) < 4:
        for op in ops: a(op)
        return
    L = a.newlabel("wb")
    a(f"s_bitcmp1_b32 s20, 0\ns_cbranch_scc1 {L}_r")
    for op in ops: a(op)
    a(f"s_branch {L}_e\n{L}_r:")
    a.nolog += 1
    for op in reversed(ops): a(op)
    a.nolog -= 1
    a.label(f"{L}_e")

def emit_cs(a, lo, hi):
    a(f"v_mov_b32 v{V_XB}, 0x3f803f80\nv_mov_b32 v{V_XB+1}, 0x3f803f80\nv_mov_b32 v{V_XB+2}, 0x3f803f80\nv_mov_b32 v{V_XB+3}, 0x3f803f80")
    for kb in range(lo, hi):
        for t in range(3):
            c = V_CS + 4 * t
            a(f"v_mfma_f32_16x16x32_bf16 {vr(c)}, {w13(kb,t)}, {vr(V_XB)}, {'0' if kb == 0 else vr(c)}")

def x1_dma_setup(a):
    a(f"""v_lshrrev_b32 v2, 3, v1
    v_bfe_u32 v3, v1, 1, 2
    v_bfe_u32 v6, v1, 4, 1
    v_xor_b32 v3, v3, v6
    s_and_b32 s36, s{S_W}, 2
    v_xor_b32 v3, s36, v3
    v_and_b32 v6, 1, v1
    v_lshlrev_b32 v6, 4, v6
    v_mul_u32_u24 v2, {XP}, v2
    v_add_u32 v6, v2, v6
    v_lshl_add_u32 v27, v3, 5, v6""")
def x1_dma_ops(hf):
    ops = [f"""s_mul_i32 s56, s{S_W}, {8 * XP}
    s_lshl_b32 s57, s20, 8
    s_add_u32 s56, s56, s57
    s_add_u32 s56, s56, {WS['X1T'] + hf * 128}
    s_lshl_b32 s57, s{S_W}, 10
    s_add_u32 s57, s57, {hf * 65536}"""]
    for n in range(16):
        ops.append(f"""s_add_u32 m0, s57, {n * 4096}
        buffer_load_dwordx4 v27, {WSR}, s56 offen sc1 lds
        s_add_u32 s56, s56, {32 * XP}""")
    return ops
def tiles_dma(a):
    if G2AB: return tiles_dma_ab(a)
    a(f"""v_lshrrev_b32 v2, 3, v1
    v_and_b32 v3, 7, v1
    v_mul_u32_u24 v2, {XP}, v2
    v_lshl_add_u32 v2, v3, 4, v2
    s_mul_i32 s36, s23, {64 * XP}
    s_mul_i32 s37, s{S_W}, {16 * XP}
    s_add_u32 s36, s36, s37
    s_lshl_b32 s37, s20, 8
    s_add_u32 s36, s36, s37
    s_lshl_b32 s37, s22, 7
    s_add_u32 s36, s36, s37
    s_lshl_b32 s38, s{S_W}, 11""")
    for arr, lb in (('X1T', L_TX), ('YT', L_TY)):
        for i in range(2):
            a(f"""s_add_u32 s37, s36, {WS[arr] + i * 8 * XP}
            s_add_u32 m0, s38, {lb + i * 1024}
            buffer_load_dwordx4 v2, {WSR}, s37 offen sc1 lds""")
def tiles_dma_ab(a):
    a(f"""v_lshrrev_b32 v2, 3, v1
    v_mul_u32_u24 v2, {XP}, v2
    v_bfe_u32 v3, v1, 1, 2
    v_lshlrev_b32 v3, 6, v3
    v_add_u32 v2, v2, v3
    v_and_b32 v3, 1, v1
    v_lshl_add_u32 v2, v3, 4, v2
    s_mul_i32 s36, s23, {64 * XP}
    s_mul_i32 s37, s{S_W}, {16 * XP}
    s_add_u32 s36, s36, s37
    s_lshl_b32 s37, s20, 8
    s_add_u32 s36, s36, s37
    s_lshl_b32 s37, s22, 5
    s_add_u32 s36, s36, s37
    s_lshl_b32 s38, s{S_W}, 11""")
    for arr, lb in (('X1T', L_TX), ('YT', L_TY)):
        for i in range(2):
            a(f"""s_add_u32 s37, s36, {WS[arr] + i * 8 * XP}
            s_add_u32 m0, s38, {lb + i * 1024}
            buffer_load_dwordx4 v2, {WSR}, s37 offen sc1 lds""")
def x3_dma_ops(hf):
    ops = [f"""s_lshl_b32 s56, s20, 3
    s_add_u32 s56, s56, s{S_W}
    s_add_u32 s56, s56, {4*hf}
    s_lshl_b32 s56, s56, 14
    s_add_u32 s56, s56, {WS['X3']}
    s_lshl_b32 s57, s{S_W}, 14
    s_add_u32 s57, s57, {hf * 65536}"""]
    for n in range(16):
        ops.append(f"""s_add_u32 m0, s57, {n * 1024}
        buffer_load_dwordx4 v31, {WSR}, s56 offen sc1 lds
        s_add_u32 s56, s56, 1024""")
    return ops
def member_flag_off(a, vdst, base_member_sgpr_expr, nmemb):
    a(f"""v_and_b32 v{vdst}, {nmemb-1}, v1
    v_add_u32 v{vdst}, {base_member_sgpr_expr}, v{vdst}""")
    if HALF:
        a(f"""v_lshrrev_b32 v29, 3, v{vdst}
        v_and_b32 v{vdst}, 7, v{vdst}
        v_lshlrev_b32 v{vdst}, 2, v{vdst}
        v_lshl_add_u32 v{vdst}, v29, 5, v{vdst}
        s_lshr_b32 s36, s20, 2
        s_lshl_b32 s36, s36, 6
        s_and_b32 s37, s20, 3
        s_add_u32 s36, s36, s37""")
    else:
        a(f"""v_lshlrev_b32 v{vdst}, 1, v{vdst}
        s_lshr_b32 s36, s20, 1
        s_lshl_b32 s36, s36, 5
        s_and_b32 s37, s20, 1
        s_add_u32 s36, s36, s37""")
    a(f"""v_add_u32 v{vdst}, s36, v{vdst}
    v_lshlrev_b32 v{vdst}, 6, v{vdst}
    v_add_u32 v{vdst}, {WS['SYNC'] + SYNC_FLAGS}, v{vdst}""")

def stats_write(a, hf, vm, vsd):
    a(f"""v_rcp_f32 v24, v{vsd}
    v_mul_f32 v{V_T+1}, v{vsd}, v{vsd}
    v_sub_f32 v{V_T+2}, 0, v{vm}
    v_mul_f32 v{V_T}, 0xbfb8aa3b, v24
    v_mov_b32 v{V_T+3}, 0
    s_lshl_b32 s36, s{S_W}, 8
    s_add_u32 s36, s36, {L_ST + hf * 1024}
    v_lshl_add_u32 v25, v2, 4, s36
    ds_write_b128 v25, {vr(V_T)}""")
def st3_stats(a, hf):
    a(f"""s_lshl_b32 s36, s20, 3
    s_add_u32 s36, s36, s{S_W}
    s_add_u32 s36, s36, {4*hf}
    s_lshl_b32 s36, s36, 10
    s_add_u32 s36, s36, {WS['SYNC'] + SYNC_ST3}
    v_lshrrev_b32 v124, 4, v1
    v_lshlrev_b32 v124, 8, v124
    v_and_b32 v125, 15, v1
    v_lshl_add_u32 v124, v125, 3, v124
    buffer_load_dwordx2 v[120:121], v124, {WSR}, s36 offen sc1
    buffer_load_dwordx2 v[122:123], v124, {WSR}, s36 offen offset:128 sc1""")
def st3_finish(a, hf):
    a(f"""v_add_f32 v126, v120, v122
    v_add_f32 v127, v121, v123""")
    sum_q(a, 126, 120); sum_q(a, 127, 121)
    ln_core(a, 126, 127)
    a(f"""v_rcp_f32 v120, v127
    v_mul_f32 v117, v127, v127
    v_sub_f32 v118, 0, v126
    v_mul_f32 v116, 0xbfb8aa3b, v120
    v_mov_b32 v119, 0
    s_lshl_b32 s36, s{S_W}, 8
    s_add_u32 s36, s36, {L_ST + hf * 1024}
    v_lshl_add_u32 v124, v125, 4, s36
    ds_write_b128 v124, v[116:119]""")

def g1_addr(a, layer, hbase):
    tr = layer == 1
    a(f"""v_and_b32 v2, 15, v1
    v_lshrrev_b32 v3, 4, v1""")
    norot = (layer == 2 and G2Q)
    for x in range(4):
        if norot: a(f"s_mov_b32 s36, {x}")
        else: a(f"""s_add_u32 s36, s{S_W}, {x}
        s_and_b32 s36, s36, 3""")
        if tr:
            a(f"""v_bfe_u32 v4, v1, 2, 2
            v_lshl_add_u32 v5, v3, 4, v4
            v_lshlrev_b32 v5, 7, v5
            v_lshrrev_b32 v4, 1, v4
            v_and_b32 v6, 1, v3
            v_lshl_or_b32 v4, v6, 1, v4
            v_xor_b32 v4, s36, v4
            v_lshl_add_u32 v5, v4, 5, v5
            v_and_b32 v6, 3, v1
            v_lshl_add_u32 v{8+x}, v6, 3, v5""")
        else:
            a(f"""s_lshl_b32 s37, s36, 14
            v_add_u32 v{8+x}, s37, v31""")
        a(f"""s_lshl_b32 s37, s36, 8
        s_add_u32 s37, s37, {L_ST}
        v_lshl_add_u32 v{15+x}, v2, 4, s37""")
    for p in range(2):
        a(f"""v_lshrrev_b32 v4, 5, v1
        {'' if norot else f'v_add_u32 v4, s{S_W}, v4'}
        v_add_u32 v4, {2*p}, v4
        v_and_b32 v4, 3, v4
        v_mul_u32_u24 v5, {HT}, v4
        v_bfe_u32 v6, v1, 4, 1
        v_lshl_add_u32 v5, v6, 7, v5
        v_lshl_add_u32 v{12+p}, v2, 3, v5
        v_lshlrev_b32 v4, 8, v4
        v_lshl_add_u32 v4, v2, 4, v4
        v_add_u32 v{19+p}, {L_ST}, v4""")
    a(f"""s_mul_i32 s36, s20, {8*HT}
    s_add_u32 s36, s36, {hbase}""")
    for t in range(3): a(f"s_add_u32 s{52+t}, s{44+t}, s36")

def g1_sub(a, layer, sb, hook=None, cs_from=16):
    tr = layer == 1
    def rd(n):
        kb, x = n >> 2, n & 3
        B = V_XB + 4 * x
        if tr:
            off = (kb >> 1) * 8192 + (kb & 1) * 1024
            return [f"ds_read_b64_tr_b16 v[{B}:{B+1}], v{8+x} offset:{off}", f"ds_read_b64_tr_b16 v[{B+2}:{B+3}], v{8+x} offset:{off+512}"]
        return [f"ds_read_b128 {vr(B)}, v{8+x} offset:{kb*1024}"]
    per = 2 if tr else 1
    ONE, SA, SG = V_T, V_T + 4, V_T + 8
    if tr:
        for k in range(4): a(f"v_mov_b32 v{ONE+k}, 0x3f803f80")
    for n in range(3):
        for op in rd(n): a(op)
    for n in range(64):
        kb, x = n >> 2, n & 3
        if x == 0 and hook: hook(kb)
        infl = min(2, 63 - n)
        a(f"s_waitcnt lgkmcnt({infl*per})")
        B = V_XB + 4 * x
        for t in range(3):
            c = V_ACC + (x * 3 + t) * 4
            a(f"v_mfma_f32_16x16x32_bf16 {vr(c)}, {w13(kb,t)}, {vr(B)}, {'0' if kb == 0 else vr(c)}")
            if t == 0 and n + 3 < 64:
                for op in rd(n + 3): a(op)
        if tr and x == 1 and kb >= cs_from:
            for t in range(3):
                c = V_CS + 4 * t
                a(f"v_mfma_f32_16x16x32_bf16 {vr(c)}, {w13(kb,t)}, {vr(ONE)}, {vr(c)}")
        if tr and x == 0:
            a(f"v_mfma_f32_16x16x32_bf16 {vr(SA)}, {vr(ONE)}, {vr(B)}, {'0' if kb == 0 else vr(SA)}")
            a(f"v_mfma_f32_16x16x32_bf16 {vr(SG)}, {vr(B)}, {vr(B)}, {'0' if kb == 0 else vr(SG)}")
    if tr:
        a(f"""v_and_b32 v4, 3, v2
        v_cmp_eq_u32 vcc, 1, v4
        v_cndmask_b32 v23, v{SG}, v{SG+1}, vcc
        v_cmp_eq_u32 vcc, 2, v4
        v_cndmask_b32 v23, v23, v{SG+2}, vcc
        v_cmp_eq_u32 vcc, 3, v4
        v_cndmask_b32 v23, v23, v{SG+3}, vcc
        v_mov_b32 v22, v{SA}""")
        ln_core(a, 22, 23)
        a(f"""v_lshrrev_b32 v4, 2, v2
        v_cmp_eq_u32 vcc, v4, v3
        s_and_saveexec_b64 s[38:39], vcc""")
        stats_write(a, sb, 22, 23)
        a("s_mov_b64 exec, s[38:39]\ns_waitcnt lgkmcnt(0)\ns_barrier")

def g1_epi(a, sb):
    so = sb * 1024
    for x in range(4): a(f"ds_read_b32 v{V_T+2*x}, v{15+x} offset:{8+so}")
    for p in range(2): a(f"ds_read_b64 v[{V_T+8+2*p}:{V_T+9+2*p}], v{19+p} offset:{so}")
    a("s_waitcnt lgkmcnt(0)")
    A = lambda x, t: V_ACC + (x * 3 + t) * 4
    for t in range(3):
        cs = V_CS + 4 * t
        for x in range(4):
            for h in range(2):
                r = A(x, t) + 2 * h
                a(f"v_pk_fma_f32 v[{r}:{r+1}], v[{cs+2*h}:{cs+2*h+1}], v[{V_T+2*x}:{V_T+2*x+1}], v[{r}:{r+1}] op_sel_hi:[1,0,1]")
    for t in range(3):
        for p in range(2):
            for r in range(4): a(f"v_permlane32_swap_b32 v{A(2*p,t)+r}, v{A(2*p+1,t)+r}")
    for p in range(2):
        c1 = V_T + 8 + 2 * p
        T = lambda t: V_XB + 4 * t
        for t in range(3):
            for h in range(2):
                a(f"v_pk_mul_f32 v[{T(t)+2*h}:{T(t)+2*h+1}], v[{A(2*p,t)+2*h}:{A(2*p,t)+2*h+1}], v[{c1}:{c1+1}] op_sel_hi:[1,0]")
        for t in range(3):
            for r in range(4): a(f"v_exp_f32 v{T(t)+r}, v{T(t)+r}")
        for t in range(3):
            for h in range(2):
                g, u = A(2*p, t) + 2 * h, A(2*p+1, t) + 2 * h
                a(f"v_pk_mul_f32 v[{g}:{g+1}], v[{g}:{g+1}], v[{u}:{u+1}]")
        for t in range(3):
            for h in range(2):
                a(f"v_pk_fma_f32 v[{T(t)+2*h}:{T(t)+2*h+1}], v[{T(t)+2*h}:{T(t)+2*h+1}], v[{c1}:{c1+1}], v[{c1}:{c1+1}] op_sel:[0,1,1] op_sel_hi:[1,1,1]")
        for t in range(3):
            for r in range(4): a(f"v_rcp_f32 v{T(t)+r}, v{T(t)+r}")
        for t in range(3):
            for h in range(2):
                g = A(2*p, t) + 2 * h
                a(f"v_pk_mul_f32 v[{g}:{g+1}], v[{g}:{g+1}], v[{T(t)+2*h}:{T(t)+2*h+1}]")
        for t in range(3):
            g = A(2*p, t); u = A(2*p+1, t)
            a(f"""v_cvt_pk_bf16_f32 v{u}, v{g}, v{g+1}
            v_cvt_pk_bf16_f32 v{u+1}, v{g+2}, v{g+3}""")
        for t in range(3):
            u = A(2*p+1, t)
            a(f"buffer_store_dwordx2 v[{u}:{u+1}], v{12+p}, {WSR}, s{52+t} offen {LS('h')}")
def g1_next(a):
    for x in range(4): a(f"v_add_u32 v{8+x}, 0x10000, v{8+x}")
    for p in range(2): a(f"v_add_u32 v{12+p}, {4*HT}, v{12+p}")


NEG = (22, 24)
def epi_ops(P):
    p = P & 1; so = (P >> 1) * 1024
    A = lambda x, t: V_ACC + (x * 3 + t) * 4
    T = lambda t: V_T + 12 + 4 * t
    c1, ir = 26, 27
    ops = [f"ds_read_b32 v{NEG[0]}, v{15+2*p} offset:{8+so}", f"ds_read_b32 v{NEG[1]}, v{15+2*p+1} offset:{8+so}", f"ds_read_b64 v[26:27], v{19+p} offset:{so}"]
    ops += ["@gap"] * 10
    for t in range(3):
        for xl in range(2):
            for r in range(4): ops.append(f"v_fma_f32 v{A(2*p+xl,t)+r}, v{V_CS+4*t+r}, v{NEG[xl]}, v{A(2*p+xl,t)+r}")
    for t in range(3):
        for r in range(4): ops.append(f"v_permlane32_swap_b32 v{A(2*p,t)+r}, v{A(2*p+1,t)+r}")
    for t in range(3):
        for r in range(4): ops.append(f"v_mul_f32 v{T(t)+r}, v{A(2*p,t)+r}, v{c1}")
    for t in range(3):
        for r in range(4): ops.append(f"v_exp_f32 v{T(t)+r}, v{T(t)+r}")
        for r in range(4): ops.append(f"v_mul_f32 v{A(2*p,t)+r}, v{A(2*p,t)+r}, v{A(2*p+1,t)+r}")
    for t in range(3):
        for r in range(4): ops.append(f"v_fma_f32 v{T(t)+r}, v{T(t)+r}, v{ir}, v{ir}")
    for t in range(3):
        for r in range(4): ops.append(f"v_rcp_f32 v{T(t)+r}, v{T(t)+r}")
    for t in range(3):
        for r in range(4): ops.append(f"v_mul_f32 v{A(2*p,t)+r}, v{A(2*p,t)+r}, v{T(t)+r}")
    for t in range(3):
        g, u = A(2*p, t), A(2*p+1, t)
        ops += [f"v_cvt_pk_bf16_f32 v{u}, v{g}, v{g+1}", f"v_cvt_pk_bf16_f32 v{u+1}, v{g+2}, v{g+3}"]
    for t in range(3):
        u = A(2*p+1, t)
        ops.append(f"buffer_store_dwordx2 v[{u}:{u+1}], v{12+p}, {WSR}, s{52+t} offen {LS('h')}")
    ops.append(f"v_add_u32 v{12+p}, {4*HT}, v{12+p}")
    return ops

def epi_pk(a, P):
    p = P & 1; so = (P >> 1) * 1024
    A = lambda x, t: V_ACC + (x * 3 + t) * 4
    T = (lambda t: V_XB + 4 * t) if P == 3 else (lambda t: V_T + 12 + 4 * t)
    c1 = 26
    a(f"ds_read_b32 v{NEG[0]}, v{15+2*p} offset:{8+so}\nds_read_b32 v{NEG[1]}, v{15+2*p+1} offset:{8+so}\nds_read_b64 v[26:27], v{19+p} offset:{so}\ns_waitcnt lgkmcnt(0)")
    for t in range(3):
        cs = V_CS + 4 * t
        for xl in range(2):
            for h in range(2):
                r = A(2*p+xl, t) + 2 * h
                a(f"v_pk_fma_f32 v[{r}:{r+1}], v[{cs+2*h}:{cs+2*h+1}], v[{NEG[xl]}:{NEG[xl]+1}], v[{r}:{r+1}] op_sel_hi:[1,0,1]")
    for t in range(3):
        for r in range(4): a(f"v_permlane32_swap_b32 v{A(2*p,t)+r}, v{A(2*p+1,t)+r}")
    for t in range(3):
        for h in range(2):
            a(f"v_pk_mul_f32 v[{T(t)+2*h}:{T(t)+2*h+1}], v[{A(2*p,t)+2*h}:{A(2*p,t)+2*h+1}], v[{c1}:{c1+1}] op_sel_hi:[1,0]")
    for t in range(3):
        for r in range(4): a(f"v_exp_f32 v{T(t)+r}, v{T(t)+r}")
    for t in range(3):
        for h in range(2):
            g, u = A(2*p, t) + 2 * h, A(2*p+1, t) + 2 * h
            a(f"v_pk_mul_f32 v[{g}:{g+1}], v[{g}:{g+1}], v[{u}:{u+1}]")
    for t in range(3):
        for h in range(2):
            a(f"v_pk_fma_f32 v[{T(t)+2*h}:{T(t)+2*h+1}], v[{T(t)+2*h}:{T(t)+2*h+1}], v[{c1}:{c1+1}], v[{c1}:{c1+1}] op_sel:[0,1,1] op_sel_hi:[1,1,1]")
    for t in range(3):
        for r in range(4): a(f"v_rcp_f32 v{T(t)+r}, v{T(t)+r}")
    for t in range(3):
        for h in range(2):
            g = A(2*p, t) + 2 * h
            a(f"v_pk_mul_f32 v[{g}:{g+1}], v[{g}:{g+1}], v[{T(t)+2*h}:{T(t)+2*h+1}]")
    for t in range(3):
        g = A(2*p, t); u = A(2*p+1, t)
        a(f"v_cvt_pk_bf16_f32 v{u}, v{g}, v{g+1}\nv_cvt_pk_bf16_f32 v{u+1}, v{g+2}, v{g+3}")
    a.tag = f"E{P}"
    if P == 3 and E3LOC:
        dstore(a, "\n".join(f"buffer_store_dwordx2 v[{A(2*p+1, t)}:{A(2*p+1, t)+1}], v{12+p}, {WSR}, s{52+t} offen {{F}}" for t in range(3)), "e3")
    else:
        for t in range(3):
            u = A(2*p+1, t)
            a(f"buffer_store_dwordx2 v[{u}:{u+1}], v{12+p}, {WSR}, s{52+t} offen {LS('h')}")
    a.tag = None
    if P < 2: a(f"v_add_u32 v{12+p}, {4*HT}, v{12+p}")


def touch_h(a, half, T):
    if not TOUCH: return
    for p in range(2):
        adj = 4 * HT if (half == 0 or p == 0) else 0
        for t in range(3):
            a(f"s_sub_u32 s36, s{52+t}, {adj}\nbuffer_load_dword v{T}, v{12+p}, {WSR}, s36 offen sc1")

def l1_stats(a, hf):
    SA, SG = V_T + 4, V_T + 8
    a(f"""v_and_b32 v4, 3, v2
    v_cmp_eq_u32 vcc, 1, v4
    v_cndmask_b32 v29, v{SG}, v{SG+1}, vcc
    v_cmp_eq_u32 vcc, 2, v4
    v_cndmask_b32 v29, v29, v{SG+2}, vcc
    v_cmp_eq_u32 vcc, 3, v4
    v_cndmask_b32 v29, v29, v{SG+3}, vcc
    v_mov_b32 v28, v{SA}""")
    ln_core(a, 28, 29)
    a(f"""v_rcp_f32 v5, v29
    v_mul_f32 v{SA+1}, v29, v29
    v_sub_f32 v{SA+2}, 0, v28
    v_mul_f32 v{SA}, 0xbfb8aa3b, v5
    v_mov_b32 v{SA+3}, 0
    s_lshl_b32 s36, s{S_W}, 8
    s_add_u32 s36, s36, {L_ST + hf * 1024}
    v_lshl_add_u32 v6, v2, 4, s36
    v_lshrrev_b32 v4, 2, v2
    v_cmp_eq_u32 vcc, v4, v3
    s_and_saveexec_b64 s[38:39], vcc
    ds_write_b128 v6, {vr(SA)}
    s_mov_b64 exec, s[38:39]
    s_waitcnt lgkmcnt(0)
    s_barrier""")

def g1_stream(a, layer, hook=None, cs_from=16, st=None, pre_last=None):
    tr = layer == 1
    per = 2 if tr else 1
    def rd(N):
        P, n = N >> 5, N & 31
        kb, xl = n >> 1, n & 1
        x = 2 * (P & 1) + xl
        B = V_XB + 4 * (N & 3)
        if tr:
            off = (kb >> 1) * 8192 + (kb & 1) * 1024
            return [f"ds_read_b64_tr_b16 v[{B}:{B+1}], v{8+x} offset:{off}", f"ds_read_b64_tr_b16 v[{B+2}:{B+3}], v{8+x} offset:{off+512}"]
        return [f"ds_read_b128 {vr(B)}, v{8+x} offset:{kb*1024}"]
    ONE, SA, SG = V_T, V_T + 4, V_T + 8
    if tr:
        for k in range(4): a(f"v_mov_b32 v{ONE+k}, 0x3f803f80")
    for N in range(3):
        for op in rd(N): a(op)
    restart = set()
    for P in range(4):
        fill = epi_ops(P - 1) if (P > 0 and not (tr and L1PK)) else []
        if P == 1: fill = [f"v_add_u32 v{8+x}, 0x10000, v{8+x}" for x in (0, 1)] + fill
        if P == 2: fill = [f"v_add_u32 v{8+x}, 0x10000, v{8+x}" for x in (2, 3)][:0] + fill
        cost = lambda op: 2.0 if op.startswith(("v_exp", "v_rcp", "v_permlane")) else 1.0
        rate = sum(cost(o) for o in fill) / 92.0
        budget = 0.0
        for n in range(32):
            N = P * 32 + n
            kb, xl = n >> 1, n & 1
            if xl == 0 and hook: hook(P, kb)
            if P == 2 and n == 4:
                for x in (2, 3): a(f"v_add_u32 v{8+x}, 0x10000, v{8+x}")
            infl = min(2, 127 - N)
            a(f"s_waitcnt lgkmcnt({infl*per})")
            B = V_XB + 4 * (N & 3)
            x = 2 * (P & 1) + xl
            mf = [f"v_mfma_f32_16x16x32_bf16 {vr(V_ACC + (x*3+t)*4)}, {w13(kb,t)}, {vr(B)}, {'0' if kb == 0 else vr(V_ACC + (x*3+t)*4)}" for t in range(3)]
            if tr and P == 0 and xl == 1 and kb >= cs_from:
                mf += [f"v_mfma_f32_16x16x32_bf16 {vr(V_CS+4*t)}, {w13(kb,t)}, {vr(ONE)}, {vr(V_CS+4*t)}" for t in range(3)]
            if tr and P in (0, 2) and xl == 0:
                mf.append(f"v_mfma_f32_16x16x32_bf16 {vr(SA)}, {vr(ONE)}, {vr(B)}, {'0' if kb == 0 else vr(SA)}")
                mf.append(f"v_mfma_f32_16x16x32_bf16 {vr(SG)}, {vr(B)}, {vr(B)}, {'0' if kb == 0 else vr(SG)}")
            for i, m in enumerate(mf):
                a(m)
                if i == 0 and N + 3 < 128:
                    for op in rd(N + 3): a(op)
                if i < 3:
                    budget += rate
                    while fill and budget >= cost(fill[0]) - 0.5:
                        op = fill.pop(0); budget -= cost(op)
                        if op.startswith("buffer_store"): a.tag = f"E{P-1}"
                        if op != "@gap": a(op)
                        a.tag = None
        for op in fill:
            if op.startswith("buffer_store"): a.tag = f"E{P-1}"
            if op != "@gap": a(op)
            a.tag = None
        if st is not None and FINE == 'P': fstamp(a, st + P)
        if tr and P in (0, 2):
            l1_stats(a, P >> 1)
        if tr and L1PK and P < 3:
            epi_pk(a, P)
    if pre_last: pre_last()
    epi_pk(a, 3)

def emit_g2(a, layer, hbase, etagA, st):
    ACC = V_ACC
    acc = lambda dt, x: ACC + (x * 4 + dt) * 4
    for x in range(4):
        a(f"""s_add_u32 s36, s{S_W}, {x}
        s_and_b32 s36, s36, 3
        s_lshl_b32 s37, s20, 3
        s_add_u32 s36, s36, s37
        s_lshl_b32 s37, s22, 2
        s_add_u32 s36, s36, s37
        s_mul_i32 s36, s36, {HT}
        s_mul_i32 s37, s{S_W}, {11*1024}
        s_add_u32 s36, s36, s37
        s_add_u32 s{56+x}, s36, {hbase}
        s_cmp_eq_u32 s{S_W}, 3
        s_cselect_b32 s{60+x}, {INV}, s{56+x}""")
    a(f"""s_lshl_b32 s51, s{S_W}, 15
    v_lshrrev_b32 v2, 4, v1
    v_and_b32 v3, 15, v1
    v_lshlrev_b32 v8, 7, v2
    v_lshl_add_u32 v8, v3, 3, v8
    v_add_u32 v8, s51, v8
    s_add_u32 s50, s{S_GEN}, s22
    s_add_u32 s50, s50, {etagA}""")
    def su():
        member_flag_off(a, 9, "0", 16)
    wg_wait(a, su, 9, 1, None, V_HB, etag=50)
    stamp(a, st)
    for x in range(4): a(f"v_add_u32 v{10+x}, s{56+x}, v31")
    a(f"""s_mov_b32 s56, 0
    s_movk_i32 s57, 4096
    s_movk_i32 s58, 8192
    s_cmp_eq_u32 s{S_W}, 3
    s_cselect_b32 s59, {INV}, s58""")
    def dma_m0(i, x): return f"s_add_u32 m0, s51, {x*8192 + ((i % 8) & ~3)*1024}"
    def dma_ld(i, x):
        sg = 59 if i == 10 else 56 + (i >> 2)
        return f"buffer_load_dwordx4 v{10+x}, {WSR}, s{sg} offen offset:{(i & 3)*1024} sc1 lds"
    for i in range(4):
        for x in range(4):
            a(dma_m0(i, x)); a.tag = f"g2_{layer}_{i}_{x}"; a(dma_ld(i, x)); a.tag = None
    q = [(i, x) for i in range(4, 11) for x in range(4)]
    def sx(n):
        i, x = n >> 2, n & 3
        if i == 10 and EARLYW: x = (x + 1) & 3
        return i, x
    def rd(n):
        i, x = sx(n)
        B = V_HB + 4 * (n & 3); off = x * 8192 + (i % 8) * 1024
        return [f"ds_read_b64 v[{B}:{B+1}], v8 offset:{off}", f"ds_read_b64 v[{B+2}:{B+3}], v8 offset:{off+512}"]
    lastn = [None]
    def vmw(n):
        i, x = sx(n)
        tag = f"g2_{layer}_{i}_{x}"
        pos = max(k for k, t in enumerate(a.vmlog) if t == tag)
        cnt = len(a.vmlog) - 1 - pos
        if lastn[0] is not None and pos <= lastn[0]: return
        a(f"s_waitcnt vmcnt({cnt})"); lastn[0] = pos
    if FINE == 'G': fstamp(a, 1 + 6 * (layer - 1))
    vmw(2)
    stamp(a, st + 1)
    if FINE == 'G': fstamp(a, 2 + 6 * (layer - 1))
    for n in range(3):
        for op in rd(n): a(op)
    if EARLYW: a(f"v_add_u32 v9, s51, v31")
    for n in range(44):
        i, x = sx(n)
        infl = min(2, 43 - n)
        a(f"s_waitcnt lgkmcnt({infl*2 + (4 if (EARLYW and n == 43) else 0)})")
        B = V_HB + 4 * (n & 3)
        for dt in range(4):
            c = acc(dt, x)
            a(f"v_mfma_f32_16x16x32_bf16 {vr(c)}, {w2(i,dt)}, {vr(B)}, {'0' if i == 0 else vr(c)}")
            if dt == 0 and n + 3 < 44:
                vmw(n + 3)
                for op in rd(n + 3): a(op)
            if q and dt == 1: a(dma_m0(*q[0]))
            if q and dt == 2:
                i_, x_ = q.pop(0)
                a.tag = f"g2_{layer}_{i_}_{x_}"; a(dma_ld(i_, x_)); a.tag = None
        if EARLYW and n in (42, 43):
            xs = n - 41
            for dt in range(4): a(f"ds_write_b128 v9, {vr(acc(dt,xs))} offset:{((xs-1)*4+dt)*1024}")
    assert not q
    if FINE == 'G': fstamp(a, 3 + 6 * (layer - 1))
    stamp(a, st + 2)
    if not EARLYW: a(f"v_add_u32 v9, s51, v31")
    for x in range(3 if EARLYW else 1, 4):
        for dt in range(4):
            a(f"ds_write_b128 v9, {vr(acc(dt,x))} offset:{((x-1)*4+dt)*1024}")
    for x in range(1, 4):
        a(f"""s_sub_u32 s36, s{S_W}, {x}
        s_and_b32 s36, s36, 3
        s_lshl_b32 s36, s36, 15
        v_add_u32 v{9+x}, s36, v31""")
    a("s_waitcnt lgkmcnt(0)\ns_barrier")
    for x in range(1, 4):
        for dt in range(4):
            a(f"ds_read_b128 {vr(acc(dt,x))}, v{9+x} offset:{((x-1)*4+dt)*1024}")
    if layer == 1:
        a(f"""v_bfe_u32 v4, v1, 2, 2
        v_lshl_add_u32 v4, v2, 4, v4
        v_lshlrev_b32 v4, 7, v4
        v_and_b32 v5, 3, v1
        v_lshl_add_u32 v4, v5, 3, v4
        s_lshl_b32 s36, s{S_W}, 5
        s_add_u32 s36, s36, {L_TX}
        v_add_u32 v4, s36, v4""")
        P = V_HB; Yp = V_HB + 8
        for dt in range(4):
            a(f"ds_read_b64_tr_b16 v[{P+2*dt}:{P+2*dt+1}], v4 offset:{dt*512}")
        for dt in range(4):
            a(f"ds_read_b64_tr_b16 v[{Yp+2*dt}:{Yp+2*dt+1}], v4 offset:{8192+dt*512}")
        nl = 8
    else:
        P = V_X3; nl = 0
    for x in range(1, 4):
        a(f"s_waitcnt lgkmcnt({min(15, (3-x)*4 + nl)})")
        for dt in range(4):
            for h in range(2):
                c, o = acc(dt, 0) + 2 * h, acc(dt, x) + 2 * h
                a(f"v_pk_add_f32 v[{c}:{c+1}], v[{c}:{c+1}], v[{o}:{o+1}]")
    stamp(a, st + 3)
    if FINE == 'G': fstamp(a, 4 + 6 * (layer - 1))
    O = ACC; X = ACC + 16; PK = ACC + 48
    a("s_waitcnt lgkmcnt(0)")
    for k in range(8):
        a(f"v_lshlrev_b32 v{X+2*k}, 16, v{P+k}\nv_and_b32 v{X+2*k+1}, 0xffff0000, v{P+k}")
    for k in range(8): a(f"v_cvt_pk_bf16_f32 v{PK+k}, v{O+2*k}, v{O+2*k+1}")
    for k in range(8):
        a(f"v_lshlrev_b32 v{O+2*k}, 16, v{PK+k}\nv_and_b32 v{O+2*k+1}, 0xffff0000, v{PK+k}")
    for k in range(8):
        a(f"v_pk_add_f32 v[{O+2*k}:{O+2*k+1}], v[{O+2*k}:{O+2*k+1}], v[{X+2*k}:{X+2*k+1}]")
    for k in range(8): a(f"v_cvt_pk_bf16_f32 v{PK+k}, v{O+2*k}, v{O+2*k+1}")
    if layer == 2:
        a(f"""s_load_dwordx2 s[32:33], s[0:1], {ARG['out']}
        s_lshl_b32 s36, s20, 7
        s_lshl_b32 s37, s22, 6
        s_add_u32 s36, s36, s37
        s_lshl_b32 s37, s{S_W}, 4
        s_add_u32 s36, s36, s37
        s_lshl_b32 s36, s36, 10
        s_lshl_b32 s37, s23, 7
        s_add_u32 s36, s36, s37
        v_lshlrev_b32 v4, 10, v3
        v_lshl_add_u32 v4, v2, 5, v4
        s_waitcnt lgkmcnt(0)
        s_mov_b32 s34, {S*D*2}
        s_mov_b32 s35, 0x20000
        buffer_store_dwordx4 {vr(PK)}, v4, s[32:35], s36 offen {OUTF}
        buffer_store_dwordx4 {vr(PK+4)}, v4, s[32:35], s36 offen offset:16 {OUTF}""")
        return
    a(f"v_mov_b32 v22, 0\nv_mov_b32 v23, 0\nv_mov_b32 v21, 0x3f803f80\nv_mov_b32 v26, 0\nv_mov_b32 v27, 0")
    for k in range(0, 8, 2):
        a(f"""v_dot2_f32_bf16 v22, v{PK+k}, v21, v22
        v_dot2_f32_bf16 v23, v{PK+k}, v{PK+k}, v23
        v_dot2_f32_bf16 v26, v{PK+k+1}, v21, v26
        v_dot2_f32_bf16 v27, v{PK+k+1}, v{PK+k+1}, v27""")
    a("v_add_f32 v22, v22, v26\nv_add_f32 v23, v23, v27")
    a(f"""v_mov_b32 v24, v22
    v_mov_b32 v25, v23
    v_permlane16_swap_b32 v22, v24
    v_permlane16_swap_b32 v23, v25
    v_add_f32 v22, v22, v24
    v_add_f32 v23, v23, v25
    v_mov_b32 v24, v22
    v_mov_b32 v25, v23
    v_permlane32_swap_b32 v22, v24
    v_permlane32_swap_b32 v23, v25
    v_add_f32 v22, v22, v24
    v_add_f32 v23, v23, v25""")
    L = a.newlabel("hop")
    a(f"""s_add_u32 s50, s{S_GEN}, 12
    v_mov_b32 v24, s50
    v_mov_b32 v25, 0
    s_lshl_b32 s36, s20, 1
    s_add_u32 s36, s36, s22
    s_lshl_b32 s36, s36, 13
    s_lshl_b32 s37, s{S_W}, 8
    s_add_u32 s36, s36, s37
    s_add_u32 s36, s36, {WS['SYNC'] + SYNC_ST2}
    s_lshl_b32 s37, s23, 10
    s_add_u32 s37, s37, s36
    v_lshlrev_b32 v4, 4, v3
    s_mov_b64 exec, 0xffff""")
    dstore(a, f"buffer_store_dwordx4 v[22:25], v4, {WSR}, s37 offen {{F}}", "hop")
    a(f"""s_mov_b64 exec, -1
    v_lshl_add_u32 v5, v2, 11, v4""")
    for k in range(8):
        a(f"v_lshlrev_b32 v{X+2*k}, 16, v{PK+k}\nv_and_b32 v{X+2*k+1}, 0xffff0000, v{PK+k}")
    a(f"""s_mov_b32 s38, 0
    {L}_p:
    buffer_load_dwordx4 v[{O}:{O+3}], v5, {WSR}, s36 offen sc1
    buffer_load_dwordx4 v[{O+4}:{O+7}], v5, {WSR}, s36 offen offset:1024 sc1
    s_add_u32 s38, s38, 1
    s_waitcnt vmcnt(0)
    v_cmp_eq_u32 vcc, s50, v{O+2}
    v_cmp_eq_u32 s[40:41], s50, v{O+6}
    s_and_b64 vcc, vcc, s[40:41]
    s_cmp_gt_u32 s38, 200000
    s_cbranch_scc1 {L}_d
    s_cmp_eq_u64 vcc, -1
    s_cbranch_scc0 {L}_p
    {L}_d:
    v_add_f32 v22, v{O}, v{O+4}
    v_add_f32 v23, v{O+1}, v{O+5}
    v_mov_b32 v24, v22
    v_mov_b32 v25, v23
    v_permlane16_swap_b32 v22, v24
    v_permlane16_swap_b32 v23, v25
    v_add_f32 v22, v22, v24
    v_add_f32 v23, v23, v25
    v_mov_b32 v24, v22
    v_mov_b32 v25, v23
    v_permlane32_swap_b32 v22, v24
    v_permlane32_swap_b32 v23, v25
    v_add_f32 v22, v22, v24
    v_add_f32 v23, v23, v25""")
    ln_core(a, 22, 23)
    a(f"""v_rcp_f32 v24, v23
    v_sub_f32 v22, 0, v22
    v_mul_f32 v26, v22, v24""")
    Yf = ACC
    for k in range(8):
        a(f"v_lshlrev_b32 v{Yf+2*k}, 16, v{Yp+k}\nv_and_b32 v{Yf+2*k+1}, 0xffff0000, v{Yp+k}")
    N = ACC + 32
    for k in range(8):
        a(f"v_pk_fma_f32 v[{N+2*k}:{N+2*k+1}], v[{X+2*k}:{X+2*k+1}], v[24:25], v[26:27] op_sel_hi:[1,0,0]")
    for k in range(8):
        a(f"v_pk_fma_f32 v[{N+2*k}:{N+2*k+1}], v[{N+2*k}:{N+2*k+1}], v[{Yf+2*k}:{Yf+2*k+1}], v[{X+2*k}:{X+2*k+1}]")
    for k in range(8):
        a(f"v_cvt_pk_bf16_f32 v{V_X3+k}, v{N+2*k}, v{N+2*k+1}")
    a(f"""s_lshl_b32 s36, s20, 3
    s_lshl_b32 s37, s22, 2
    s_add_u32 s36, s36, s37
    s_add_u32 s36, s36, s{S_W}
    s_lshl_b32 s38, s36, 10
    s_lshl_b32 s36, s36, 14
    s_lshl_b32 s37, s23, 11
    s_add_u32 s36, s36, s37
    s_add_u32 s36, s36, {WS['X3']}""")
    dstore(a, f"""buffer_store_dwordx4 {vr(V_X3)}, v31, {WSR}, s36 offen {{F}}
    buffer_store_dwordx4 {vr(V_X3+4)}, v31, {WSR}, s36 offen offset:1024 {{F}}""", "x3")
    a(f"v_mov_b32 v22, 0\nv_mov_b32 v23, 0\nv_mov_b32 v26, 0\nv_mov_b32 v27, 0")
    for k in range(0, 8, 2):
        a(f"""v_dot2_f32_bf16 v22, v{V_X3+k}, v21, v22
        v_dot2_f32_bf16 v23, v{V_X3+k}, v{V_X3+k}, v23
        v_dot2_f32_bf16 v26, v{V_X3+k+1}, v21, v26
        v_dot2_f32_bf16 v27, v{V_X3+k+1}, v{V_X3+k+1}, v27""")
    a(f"""v_add_f32 v22, v22, v26
    v_add_f32 v23, v23, v27
    v_mov_b32 v24, v22
    v_mov_b32 v25, v23
    v_permlane16_swap_b32 v22, v24
    v_permlane16_swap_b32 v23, v25
    v_add_f32 v22, v22, v24
    v_add_f32 v23, v23, v25
    v_mov_b32 v24, v22
    v_mov_b32 v25, v23
    v_permlane32_swap_b32 v22, v24
    v_permlane32_swap_b32 v23, v25
    v_add_f32 v22, v22, v24
    v_add_f32 v23, v23, v25
    s_lshl_b32 s37, s23, 7
    s_add_u32 s38, s38, s37
    s_add_u32 s38, s38, {WS['SYNC'] + SYNC_ST3}
    v_lshlrev_b32 v4, 3, v3
    s_mov_b64 exec, 0xffff""")
    dstore(a, f"buffer_store_dwordx2 v[22:23], v4, {WSR}, s38 offen {{F}}")
    a("s_mov_b64 exec, -1")

G2ST = {}
def g2_steps(layer):
    if layer == 1 or not G2Q: return [(2 * hf + xl, i) for hf in range(2) for i in range(11) for xl in range(2)]
    return [(x, i) for x in range(4) for i in range(11)]
def g2ab_pre(a, layer, hbase, eA, st):
    for x in range(4):
        a(f"""s_lshl_b32 s37, s20, 3
        s_add_u32 s36, s37, s22
        s_add_u32 s36, s36, {2 * x}
        s_mul_i32 s36, s36, {HT}
        s_mul_i32 s37, s{S_W}, {11*1024}
        s_add_u32 s36, s36, s37
        s_add_u32 s36, s36, {hbase}
        v_add_u32 v{4+x}, s36, v31""")
    a(f"""s_lshl_b32 s51, s{S_W}, 14
    s_movk_i32 s58, 10240
    s_cmp_eq_u32 s{S_W}, 3
    s_cselect_b32 s59, {INV}, s58""")
    L = a.newlabel("g2a")
    a.vmneed('fA')
    a(f"""s_add_u32 s37, s{S_GEN}, {eA}
    v_subrev_u32 v30, s37, v30
    v_cmp_gt_u32 vcc, 16, v30
    s_cmp_eq_u64 vcc, -1
    s_cbranch_scc1 {L}""")
    wait_flags(a, 14, 1, eA, 30)
    a.label(L)
    steps = g2_steps(layer)
    def dma(n):
        x, i = steps[n]
        pre = f"s_add_u32 m0, s51, {(n & 15) * 1024}" + ("" if i == 10 else f"\ns_movk_i32 s36, {i*1024}")
        so = "s59" if i == 10 else "s36"
        return pre, f"buffer_load_dwordx4 v{4 + x}, {WSR}, {so} offen sc1 lds"
    n0 = 12 if (layer == 1 or not G2Q) else 11
    for n in range(n0):
        pre, ld = dma(n); a(pre); a.tag = f"g2_{layer}_{n}"; a(ld); a.tag = None
    G2ST[layer] = (steps, dma, n0)
def emit_g2ab(a, layer, hbase, eA, st):
    ACC = V_ACC
    acc = lambda dt, x: ACC + (x * 4 + dt) * 4
    RB = 65536
    steps, dma, issued = G2ST[layer]
    quad = layer == 2 and G2Q
    a(f"""s_lshl_b32 s37, s{S_W}, 14
    s_add_u32 s37, s37, {RB}
    v_add_u32 v10, s37, v31
    v_lshrrev_b32 v2, 4, v1
    v_and_b32 v3, 15, v1
    v_lshlrev_b32 v8, 7, v2
    v_lshl_add_u32 v8, v3, 3, v8
    v_add_u32 v8, s51, v8""")
    stamp(a, st)
    if quad:
        sig = {Q_S[0]: (eA + 1, 'E2'), Q_S[1]: (eA + 2, 'E3')}
        lds_ = {Q_L[0]: eA + 1, Q_L[1]: eA + 2}; cks = {Q_C[0]: eA + 1, Q_C[1]: eA + 2}
        gate = lambda d, n: 22 if n < Q_C[0] else (33 if n < Q_C[1] else 44)
    else:
        sig = {SIGB_STEP: (eA + 1, 'E3')}; lds_ = {FB_LD: eA + 1}; cks = {FB_CK: eA + 1}
        gate = lambda d, n: 22 if n < FB_CK else 44
    cur = [-1]
    def issue():
        nonlocal issued
        assert issued < 16 or issued - 16 < cur[0], (issued, cur[0])
        pre, ld = dma(issued); a(pre); a.tag = f"g2_{layer}_{issued}"; a(ld); a.tag = None; issued += 1
    def rd(n):
        B = V_HB + 4 * (n & 3); off = (n & 15) * 1024
        return [f"ds_read_b64 v[{B}:{B+1}], v8 offset:{off}", f"ds_read_b64 v[{B+2}:{B+3}], v8 offset:{off+512}"]
    lastn = [None]
    def vmw(n):
        tag = f"g2_{layer}_{n}"
        pos = max(k for k, t in enumerate(a.vmlog) if t == tag)
        if lastn[0] is not None and pos <= lastn[0]: return
        a(f"s_waitcnt vmcnt({len(a.vmlog) - 1 - pos})"); lastn[0] = pos
    vmw(2)
    stamp(a, st + 1)
    for n in range(3):
        for op in rd(n): a(op)
    last_step = {x: max(n for n, (xx, i) in enumerate(steps) if xx == x) for x in range(4)}
    wq = [(x, dt) for x in sorted(range(4), key=lambda x: last_step[x]) for dt in range(4)]
    for n in range(44):
        x, i = steps[n]
        cur[0] = n
        if n in sig: signal(a, sig[n][0], tv=(28, 29), local=True, vm=sig[n][1])
        if n in lds_:
            a.tag = 'fB'; a(f"buffer_load_dword v30, v14, {WSR}, 0 offen sc1"); a.tag = None
        if n in cks:
            L = a.newlabel("g2b")
            a.vmneed('fB')
            a(f"""s_add_u32 s37, s{S_GEN}, {cks[n]}
            v_subrev_u32 v30, s37, v30
            v_cmp_gt_u32 vcc, 16, v30
            s_cmp_eq_u64 vcc, -1
            s_cbranch_scc1 {L}""")
            wait_flags(a, 14, 1, cks[n], 30)
            a.label(L)
            lastn[0] = None
        infl = min(2, 43 - n)
        a(f"s_waitcnt lgkmcnt({infl*2})")
        B = V_HB + 4 * (n & 3)
        for dt in range(4):
            c = acc(dt, x)
            a(f"v_mfma_f32_16x16x32_bf16 {vr(c)}, {w2(i,dt)}, {vr(B)}, {'0' if i == 0 else vr(c)}")
            if dt == 0 and n + 3 < 44:
                assert n + 3 < issued, (n, issued)
                vmw(n + 3)
                for op in rd(n + 3): a(op)
            if dt in (1, 3) and issued < 44:
                want = n + 13 if dt == 1 else (n + 13 if issued < n + 12 else 0)
                if issued < min(gate(issued, n), want, n + 15): issue()
            if dt == 2 and wq and last_step[wq[0][0]] + 2 <= n:
                xx, dd = wq.pop(0); a(f"ds_write_b128 v10, {vr(acc(dd,xx))} offset:{xx*4096 + dd*1024}")
    assert issued == 44
    stamp(a, st + 2)
    for xx, dd in wq: a(f"ds_write_b128 v10, {vr(acc(dd,xx))} offset:{xx*4096 + dd*1024}")
    for k in range(4):
        a(f"""s_add_u32 s36, s{S_W}, {k}
        s_and_b32 s36, s36, 3
        s_lshl_b32 s36, s36, 14
        s_lshl_b32 s37, s{S_W}, 12
        s_add_u32 s36, s36, s37
        s_add_u32 s36, s36, {RB}
        v_add_u32 v{15+k}, s36, v31""")
    a("s_waitcnt lgkmcnt(0)\ns_barrier")
    for k in range(4):
        for dt in range(4): a(f"ds_read_b128 {vr(ACC + 16*k + 4*dt)}, v{15+k} offset:{dt*1024}")
    if layer == 1:
        a(f"""v_bfe_u32 v4, v1, 2, 2
        v_lshl_add_u32 v4, v2, 4, v4
        v_lshlrev_b32 v4, 7, v4
        v_and_b32 v5, 3, v1
        v_lshl_add_u32 v4, v5, 3, v4
        s_lshl_b32 s36, s{S_W}, 5
        s_add_u32 s36, s36, {L_TX}
        v_add_u32 v4, s36, v4""")
        P = V_HB; Yp = V_HB + 8
    else:
        P = V_X3
    for k in (1, 2, 3):
        a(f"s_waitcnt lgkmcnt({12 - 4*k})")
        for j in range(8): a(f"v_pk_add_f32 v[{ACC+2*j}:{ACC+2*j+1}], v[{ACC+2*j}:{ACC+2*j+1}], v[{ACC+16*k+2*j}:{ACC+16*k+2*j+1}]")
        if k == 1 and layer == 1:
            pass
    if layer == 1:
        for dt in range(4): a(f"ds_read_b64_tr_b16 v[{P+2*dt}:{P+2*dt+1}], v4 offset:{dt*512}")
        for dt in range(4): a(f"ds_read_b64_tr_b16 v[{Yp+2*dt}:{Yp+2*dt+1}], v4 offset:{8192+dt*512}")
    stamp(a, st + 3)
    O = ACC; X = ACC + 16; PK = ACC + 48
    a("s_waitcnt lgkmcnt(0)")
    for k in range(8):
        a(f"v_lshlrev_b32 v{X+2*k}, 16, v{P+k}\nv_and_b32 v{X+2*k+1}, 0xffff0000, v{P+k}")
    for k in range(8): a(f"v_cvt_pk_bf16_f32 v{PK+k}, v{O+2*k}, v{O+2*k+1}")
    for k in range(8):
        a(f"v_lshlrev_b32 v{O+2*k}, 16, v{PK+k}\nv_and_b32 v{O+2*k+1}, 0xffff0000, v{PK+k}")
    for k in range(8):
        a(f"v_pk_add_f32 v[{O+2*k}:{O+2*k+1}], v[{O+2*k}:{O+2*k+1}], v[{X+2*k}:{X+2*k+1}]")
    for k in range(8): a(f"v_cvt_pk_bf16_f32 v{PK+k}, v{O+2*k}, v{O+2*k+1}")
    if layer == 2:
        a(f"""s_load_dwordx2 s[32:33], s[0:1], {ARG['out']}
        s_lshl_b32 s36, s{S_W}, 1
        s_add_u32 s36, s36, s22
        s_lshl_b32 s36, s36, 4
        s_lshl_b32 s37, s20, 7
        s_add_u32 s36, s36, s37
        s_lshl_b32 s36, s36, 10
        s_lshl_b32 s37, s23, 7
        s_add_u32 s36, s36, s37
        v_lshlrev_b32 v4, 10, v3
        v_lshl_add_u32 v4, v2, 5, v4
        s_waitcnt lgkmcnt(0)
        s_mov_b32 s34, {S*D*2}
        s_mov_b32 s35, 0x20000
        buffer_store_dwordx4 {vr(PK)}, v4, s[32:35], s36 offen {OUTF}
        buffer_store_dwordx4 {vr(PK+4)}, v4, s[32:35], s36 offen offset:16 {OUTF}""")
        return
    a(f"v_mov_b32 v22, 0\nv_mov_b32 v23, 0\nv_mov_b32 v21, 0x3f803f80\nv_mov_b32 v26, 0\nv_mov_b32 v27, 0")
    for k in range(0, 8, 2):
        a(f"""v_dot2_f32_bf16 v22, v{PK+k}, v21, v22
        v_dot2_f32_bf16 v23, v{PK+k}, v{PK+k}, v23
        v_dot2_f32_bf16 v26, v{PK+k+1}, v21, v26
        v_dot2_f32_bf16 v27, v{PK+k+1}, v{PK+k+1}, v27""")
    a("v_add_f32 v22, v22, v26\nv_add_f32 v23, v23, v27")
    a(f"""v_mov_b32 v24, v22
    v_mov_b32 v25, v23
    v_permlane16_swap_b32 v22, v24
    v_permlane16_swap_b32 v23, v25
    v_add_f32 v22, v22, v24
    v_add_f32 v23, v23, v25
    v_mov_b32 v24, v22
    v_mov_b32 v25, v23
    v_permlane32_swap_b32 v22, v24
    v_permlane32_swap_b32 v23, v25
    v_add_f32 v22, v22, v24
    v_add_f32 v23, v23, v25""")
    L = a.newlabel("hop")
    a(f"""s_add_u32 s50, s{S_GEN}, 12
    v_mov_b32 v24, s50
    v_mov_b32 v25, 0
    s_lshl_b32 s36, s20, 1
    s_add_u32 s36, s36, s22
    s_lshl_b32 s36, s36, 13
    s_lshl_b32 s37, s{S_W}, 8
    s_add_u32 s36, s36, s37
    s_add_u32 s36, s36, {WS['SYNC'] + SYNC_ST2}
    s_lshl_b32 s37, s23, 10
    s_add_u32 s37, s37, s36
    v_lshlrev_b32 v4, 4, v3
    s_mov_b64 exec, 0xffff""")
    dstore(a, f"buffer_store_dwordx4 v[22:25], v4, {WSR}, s37 offen {{F}}", "hop")
    a(f"""s_mov_b64 exec, -1
    v_lshl_add_u32 v5, v2, 11, v4""")
    for k in range(8):
        a(f"v_lshlrev_b32 v{X+2*k}, 16, v{PK+k}\nv_and_b32 v{X+2*k+1}, 0xffff0000, v{PK+k}")
    a(f"""s_mov_b32 s38, 0
    {L}_p:
    buffer_load_dwordx4 v[{O}:{O+3}], v5, {WSR}, s36 offen sc1
    buffer_load_dwordx4 v[{O+4}:{O+7}], v5, {WSR}, s36 offen offset:1024 sc1
    s_add_u32 s38, s38, 1
    s_waitcnt vmcnt(0)
    v_cmp_eq_u32 vcc, s50, v{O+2}
    v_cmp_eq_u32 s[40:41], s50, v{O+6}
    s_and_b64 vcc, vcc, s[40:41]
    s_cmp_gt_u32 s38, 200000
    s_cbranch_scc1 {L}_d
    s_cmp_eq_u64 vcc, -1
    s_cbranch_scc0 {L}_p
    {L}_d:
    v_add_f32 v22, v{O}, v{O+4}
    v_add_f32 v23, v{O+1}, v{O+5}
    v_mov_b32 v24, v22
    v_mov_b32 v25, v23
    v_permlane16_swap_b32 v22, v24
    v_permlane16_swap_b32 v23, v25
    v_add_f32 v22, v22, v24
    v_add_f32 v23, v23, v25
    v_mov_b32 v24, v22
    v_mov_b32 v25, v23
    v_permlane32_swap_b32 v22, v24
    v_permlane32_swap_b32 v23, v25
    v_add_f32 v22, v22, v24
    v_add_f32 v23, v23, v25""")
    ln_core(a, 22, 23)
    a(f"""v_rcp_f32 v24, v23
    v_sub_f32 v22, 0, v22
    v_mul_f32 v26, v22, v24""")
    Yf = ACC
    for k in range(8):
        a(f"v_lshlrev_b32 v{Yf+2*k}, 16, v{Yp+k}\nv_and_b32 v{Yf+2*k+1}, 0xffff0000, v{Yp+k}")
    N = ACC + 32
    for k in range(8):
        a(f"v_pk_fma_f32 v[{N+2*k}:{N+2*k+1}], v[{X+2*k}:{X+2*k+1}], v[24:25], v[26:27] op_sel_hi:[1,0,0]")
    for k in range(8):
        a(f"v_pk_fma_f32 v[{N+2*k}:{N+2*k+1}], v[{N+2*k}:{N+2*k+1}], v[{Yf+2*k}:{Yf+2*k+1}], v[{X+2*k}:{X+2*k+1}]")
    for k in range(8):
        a(f"v_cvt_pk_bf16_f32 v{V_X3+k}, v{N+2*k}, v{N+2*k+1}")
    a(f"""s_lshl_b32 s36, s{S_W}, 1
    s_add_u32 s36, s36, s22
    s_lshl_b32 s37, s20, 3
    s_add_u32 s36, s36, s37
    s_lshl_b32 s38, s36, 10
    s_lshl_b32 s36, s36, 14
    s_lshl_b32 s37, s23, 11
    s_add_u32 s36, s36, s37
    s_add_u32 s36, s36, {WS['X3']}""")
    dstore(a, f"""buffer_store_dwordx4 {vr(V_X3)}, v31, {WSR}, s36 offen {{F}}
    buffer_store_dwordx4 {vr(V_X3+4)}, v31, {WSR}, s36 offen offset:1024 {{F}}""", "x3")
    a(f"v_mov_b32 v22, 0\nv_mov_b32 v23, 0\nv_mov_b32 v26, 0\nv_mov_b32 v27, 0")
    for k in range(0, 8, 2):
        a(f"""v_dot2_f32_bf16 v22, v{V_X3+k}, v21, v22
        v_dot2_f32_bf16 v23, v{V_X3+k}, v{V_X3+k}, v23
        v_dot2_f32_bf16 v26, v{V_X3+k+1}, v21, v26
        v_dot2_f32_bf16 v27, v{V_X3+k+1}, v{V_X3+k+1}, v27""")
    a(f"""v_add_f32 v22, v22, v26
    v_add_f32 v23, v23, v27
    v_mov_b32 v24, v22
    v_mov_b32 v25, v23
    v_permlane16_swap_b32 v22, v24
    v_permlane16_swap_b32 v23, v25
    v_add_f32 v22, v22, v24
    v_add_f32 v23, v23, v25
    v_mov_b32 v24, v22
    v_mov_b32 v25, v23
    v_permlane32_swap_b32 v22, v24
    v_permlane32_swap_b32 v23, v25
    v_add_f32 v22, v22, v24
    v_add_f32 v23, v23, v25
    s_lshl_b32 s37, s23, 7
    s_add_u32 s38, s38, s37
    s_add_u32 s38, s38, {WS['SYNC'] + SYNC_ST3}
    v_lshlrev_b32 v4, 3, v3
    s_mov_b64 exec, 0xffff""")
    dstore(a, f"buffer_store_dwordx2 v[22:23], v4, {WSR}, s38 offen {{F}}")
    a("s_mov_b64 exec, -1")


NW13L = 12
NW13A = 12
NW13B = 39
PACE = 5
CHK1 = 2
FINE = None
G2AB = False
X3SPLIT = False
G2Q = False
Q_S = (2, 8)
Q_L = (6, 14)
Q_C = (9, 18)
E3LOC = False
FA_KB = 11
SIGB_STEP = 8
FB_LD = 13
FB_CK = 16
NWPRE = 0
WREV = False
EARLYW = True
TOUCH = False
SPLIT = False
PST = 'sc1'
NWS = 6
NWL1 = 6
NW2E = 0
SLEEP = 0
CNT3 = False
OUTF = ''
FRONT4 = False
UPFRONT = 1
L1PK = False
WFIRST = False
PROBE = None
CODEPF = True
DBG = 0
def build():
    a = Asm()
    global stamp
    if FINE:
        real = common.stamp
        def stamp_(a_, i):
            if i == 0: real(a_, 0)
        stamp = stamp_
        def fst(a_, i):
            real(a_, i)
            if FINE in ('P', 'G'):
                a_(f"s_memtime s[70:71]\ns_waitcnt lgkmcnt(0)\ns_mov_b32 s{72+14+i}, s70")
        globals()['fstamp'] = fst
    else:
        globals()['fstamp'] = lambda a_, i: None
    if SPLIT:
        build_prep_kernel(a, "prep_kernel")
    kbegin(a, KN)
    if not SPLIT:
        emit_prologue(a)
        emit_prep_loads(a)
    if not SPLIT:
        a("s_waitcnt lgkmcnt(0)")
        a(f"""s_getreg_b32 s36, hwreg(HW_REG_XCC_ID, 0, 4)
    s_add_u32 s{S_IDW}, s{S_GEN}, 13
    s_lshl_b32 s{S_IDW}, s{S_IDW}, 4
    s_or_b32 s{S_IDW}, s{S_IDW}, s36
    s_mov_b32 s{S_LOC}, 0
    s_cmp_lg_u32 s{S_W}, 0
    s_cbranch_scc1 L_noid
    v_mov_b32 v174, s{S_IDW}
    v_mov_b32 v175, s{S_FLAG}
    s_mov_b64 exec, 1
    buffer_store_dword v174, v175, {WSR}, 0 offen offset:4 sc1
    s_mov_b64 exec, -1
    L_noid:""")
    w13ops = [f"s_add_u32 s36, s{40+t}, {kb*1024}\nbuffer_load_dwordx4 {w13(kb,t)}, v31, {WSR}, s36 offen sc1" for kb in range(16) for t in range(3)]
    if SPLIT:
        emit_split_front(a, w13ops)
        signal(a, 3)
        stamp(a, 9)
        a("v_and_b32 v1, 63, v0")
        for op in w13ops[NW13A:NW13B]: a(op)
    elif FRONT4:
        emit_front4(a, None)
        signal(a, 3)
        stamp(a, 9)
        a("v_and_b32 v1, 63, v0")
        a(f"v_lshlrev_b32 v22, 6, v1\nv_add_u32 v22, {WS['SYNC'] + SYNC_FLAGS}, v22")
        for i in range(4):
            if i == 0: a(f"buffer_load_dword v24, v22, {WSR}, 0 offen offset:8 sc1")
            else: a(f"s_movk_i32 s39, {4096*i}\nbuffer_load_dword v{24+i}, v22, {WSR}, s39 offen offset:8 sc1")
        a("s_waitcnt vmcnt(0)")
        flagcheck(a, 1, (24, 25, 26, 27), 22, "L_w_ok", tmp=(29, 30), off=8)
        for op in w13ops[:NW13B]: a(op)
    else:
        emit_prep_compute(a)
        emit_ffn_roles(a)
        hooks = dict(conv_loop_extra=w13ops[:NW13L], n_conv_total_w=NW13L, conv_epi_extra=w13ops[NW13L:NW13A])
        emit_conv(a, hooks)
        if CNT3:
            a(f"""s_waitcnt vmcnt(0)
            s_barrier
            s_cmp_lg_u32 s{S_W}, 0
            s_cbranch_scc1 L_s3
            s_and_b32 s36, s2, 15
            s_lshl_b32 s36, s36, 7
            s_add_u32 s36, s36, {WS['SYNC'] + SYNC_CNT}
            v_mov_b32 v2, 1
            v_mov_b32 v3, s36
            s_mov_b64 exec, 1
            buffer_atomic_add v2, v3, {WSR}, 0 offen
            s_mov_b64 exec, -1
            L_s3:""")
        else:
            for op in w13ops[NW13A:NW13A + NWPRE]: a(op)
            signal(a, 3, vm=NWPRE)
        stamp(a, 9)
        a("v_and_b32 v1, 63, v0")
        w_batch(a, w13ops[NW13A + NWPRE:NW13B])
    if not FRONT4:
        if NWPRE: a(f"s_waitcnt vmcnt({NW13B - NW13A})")
        emit_cs(a, 0, NW13A // 3)
    x1_dma_setup(a)
    g1_addr(a, 1, WS['H1'])
    def su3():
        a(f"v_lshlrev_b32 v14, 6, v1\nv_add_u32 v14, {WS['SYNC'] + SYNC_FLAGS}, v14")
    if CNT3:
        a(f"""s_cmp_lg_u32 s{S_W}, 3
        s_cbranch_scc1 L_w3j
        v_and_b32 v14, 15, v1
        v_lshlrev_b32 v14, 7, v14
        v_add_u32 v14, {WS['SYNC'] + SYNC_CNT}, v14
        s_mov_b32 s38, 0
        L_w3p:
        buffer_load_dword v{V_T}, v14, {WSR}, 0 offen sc1
        s_add_u32 s38, s38, 1
        s_waitcnt vmcnt(0)
        v_cmp_eq_u32 vcc, 16, v{V_T}
        s_cmp_gt_u32 s38, 200000
        s_cbranch_scc1 L_w3j
        s_cmp_eq_u64 vcc, -1
        s_cbranch_scc0 L_w3p
        L_w3j:
        s_barrier""")
    else:
        wg_wait(a, su3, 14, 4, 3, V_T, wave=3)
    stamp(a, 10)
    x1ops = x1_dma_ops(0)
    a.tag = 'w13b'; a.vmlog.append('w13b')
    for n, op in enumerate(x1ops):
        a.tag = 'x0a' if n <= 8 else 'x0b'; a(op)
    w2q = list(range(44))
    a.tag = 'w2'
    for _ in range(NW2E):
        i = w2q.pop(0); w2_loads(a, i, i + 1)
    a.tag = None
    nC = 48 - NW13B
    a.vmlog.remove('w13b') if False else None
    pos = a.vmlog.index('w13b')
    a(f"s_waitcnt vmcnt({len(a.vmlog) - 1 - pos})")
    emit_cs(a, 0 if FRONT4 else NW13A // 3, NW13B // 3)
    a.vmneed('x0a'); a("s_barrier")
    stamp(a, 11)
    w13c = [(w13ops[i], f"wc{i // 3}") for i in range(NW13B, 48)]
    kbC = NW13B // 3
    x1h1 = x1_dma_ops(1)
    def hook1(P, kb):
        if P == 0:
            if kb == 6: a.vmneed('x0b'); a("s_barrier")
            if nC and kb >= kbC: a.vmneed(f"wc{kb}")
            for _ in range(3):
                if w13c:
                    op, tg = w13c.pop(0); a.tag = tg; a(op); a.tag = None
            k0 = 8 - (0 if nC > 9 else 4)
            if kb == k0: a(x1h1.pop(0))
            if kb >= k0:
                a.tag = 'x1h'
                for _ in range(2):
                    if x1h1: a(x1h1.pop(0))
                a.tag = None
        if P == 1 and kb == 0:
            tiles_dma(a)
            a("v_and_b32 v2, 15, v1\nv_lshrrev_b32 v3, 4, v1")
        if P == 1 and kb == 13:
            a.vmneed('x1h'); a("s_barrier")
        if (P, kb) == ((2, 8) if L1PK else (3, 6)):
            signal(a, 4, tv=(30, 29), local=True, vm='E1')
            touch_h(a, 0, 14)
        if P >= 1 and w2q and not (P == 1 and kb < 2):
            i = w2q.pop(0); a.tag = 'w2'; w2_loads(a, i, i + 1); a.tag = None
        if G2AB and (P, kb) == (3, FA_KB):
            member_flag_off(a, 14, "0", 16)
            a.tag = 'fA'; a(f"buffer_load_dword v30, v14, {WSR}, 0 offen sc1"); a.tag = None
    if FINE == 'P': fstamp(a, 1)
    g1_stream(a, 1, hook1, cs_from=kbC, st=2, pre_last=(lambda: g2ab_pre(a, 1, WS['H1'], 4, 15)) if G2AB else None)
    if FINE == 'P': fstamp(a, 6)
    for i in w2q: w2_loads(a, i, i + 1)
    if G2AB:
        stamp(a, 14)
        emit_g2ab(a, 1, WS['H1'], 4, 15)
    else:
        signal(a, 5, local=True)
        touch_h(a, 1, 14)
        stamp(a, 14)
        emit_g2(a, 1, WS['H1'], 4, 15)
    signal(a, 6, local=True)
    stamp(a, 19)
    g1_addr(a, 2, WS['H2'])
    def su6a(): member_flag_off(a, 14, "0", 16 if G2AB else 8)
    wg_wait(a, su6a, 14, 1, 6, V_T)
    stamp(a, 20)
    st3_stats(a, 0)
    x3h0 = x3_dma_ops(0)
    nfirst = 9 if X3SPLIT else 17
    for op in x3h0[:nfirst]: a(op)
    x3h0 = x3h0[nfirst:]
    a(f"s_waitcnt vmcnt({nfirst - 1})")
    st3_finish(a, 0)
    a(f"s_waitcnt vmcnt({0 if X3SPLIT else 8}) lgkmcnt(0)\ns_barrier")
    stamp(a, 21)
    x3h1 = x3_dma_ops(1)
    def hook2_old(P, kb):
        if P == 0:
            if kb == 0:
                member_flag_off(a, 14, "8", 8)
                a(f"buffer_load_dword v30, v14, {WSR}, 0 offen sc1")
            if kb == 6: a("s_waitcnt vmcnt(1)\ns_barrier")
            if kb == 10:
                L = a.newlabel("x3b")
                a(f"""s_waitcnt vmcnt(0)
                s_add_u32 s37, s{S_GEN}, 6
                v_subrev_u32 v30, s37, v30
                v_cmp_gt_u32 vcc, 16, v30
                s_cmp_eq_u64 vcc, -1
                s_cbranch_scc1 {L}""")
                wait_flags(a, 14, 1, 6, 30)
                a.label(L)
                st3_stats(a, 1)
                a(x3h1.pop(0))
            if kb >= 10:
                for _ in range(2): a(x3h1.pop(0))
        if P == 1:
            if kb < 2:
                for _ in range(2): a(x3h1.pop(0))
            if kb == 6:
                a("s_waitcnt vmcnt(16)")
                st3_finish(a, 1)
            if kb == 13: a("s_waitcnt vmcnt(3) lgkmcnt(3)\ns_barrier" if False else "s_waitcnt vmcnt(0)\ns_barrier")
        if P == 3 and kb == 6:
            signal(a, 7, tv=(30, 29), local=True)
            touch_h(a, 0, 14)
    def hook2_ab(P, kb):
        if P == 0:
            if X3SPLIT and kb < 4:
                a(x3h0.pop(0)); a(x3h0.pop(0))
            if kb == (4 if X3SPLIT else 0):
                st3_stats(a, 1)
                a(x3h1.pop(0))
            if kb == 6: a("s_waitcnt vmcnt(2)\ns_barrier")
            if kb >= 8:
                for _ in range(2): a(x3h1.pop(0))
            if kb == 10:
                pass
        if P == 1:
            if kb == 4:
                a("s_waitcnt vmcnt(16)")
                st3_finish(a, 1)
            if kb == 13: a("s_waitcnt vmcnt(0)\ns_barrier")
        if P == 3 and kb == 6:
            signal(a, 7, tv=(30, 29), local=True)
        if (P, kb) == (3, FA_KB):
            member_flag_off(a, 14, "0", 16)
            a.tag = 'fA'; a(f"buffer_load_dword v30, v14, {WSR}, 0 offen sc1"); a.tag = None
    hook2 = hook2_ab if G2AB else hook2_old
    if FINE == 'P': fstamp(a, 7)
    g1_stream(a, 2, hook2, st=8, pre_last=(lambda: g2ab_pre(a, 2, WS['H2'], 7, 24)) if G2AB else None)
    if FINE == 'P': fstamp(a, 12)
    if G2AB:
        stamp(a, 23)
        emit_g2ab(a, 2, WS['H2'], 7, 24)
    else:
        signal(a, 8, local=True)
        touch_h(a, 1, 14)
        stamp(a, 23)
        emit_g2(a, 2, WS['H2'], 7, 24)
    a(f"""s_or_b32 s36, s2, s{S_W}
    s_cmp_lg_u32 s36, 0
    s_cbranch_scc1 L_nogen
    s_add_u32 s36, s{S_GEN}, 16
    v_mov_b32 v2, s36
    v_mov_b32 v3, {WS['SYNC'] + SYNC_GEN}
    s_mov_b64 exec, 1
    buffer_store_dword v2, v3, {WSR}, 0 offen
    s_mov_b64 exec, -1
    L_nogen:""")
    if PROBE is not None:
        pa, pb, K = PROBE
        a(f"""s_waitcnt vmcnt(0) lgkmcnt(0)
        s_memrealtime s[70:71]
        s_waitcnt lgkmcnt(0)
        s_mov_b32 s100, s70
        s_or_b32 s36, s2, s{S_W}
        s_cmp_lg_u32 s36, 0
        s_cbranch_scc1 L_end
        s_sub_u32 s36, s{72+pb if pb < 28 else 100}, s{72+pa}
        s_mul_i32 s36, s36, {K}
        s_add_u32 s36, s36, s100
        L_spin:
        s_memrealtime s[70:71]
        s_waitcnt lgkmcnt(0)
        s_sub_u32 s37, s70, s36
        s_cmp_lt_i32 s37, 0
        s_cbranch_scc1 L_spin
        s_branch L_end""")
    if common.STAMPS:
        a("s_waitcnt vmcnt(0)"); stamp(a, 28)
    if DBG:
        sel = [1, 2, 3, 4, 5, 6, 7, 9, 10, 11, 14, 15, 19, 21, 23, 28]
        a(f"""s_cmp_lg_u32 s2, {DBG - 1}
        s_cbranch_scc1 L_end
        s_cmp_lg_u32 s{S_W}, 0
        s_cbranch_scc1 L_end
        s_load_dwordx2 s[68:69], s[0:1], {ARG['dbg']}
        s_waitcnt lgkmcnt(0)
        s_mov_b64 exec, 1""")
        for i, k in enumerate(sel):
            a(f"s_sub_u32 s70, s{72+k}, s72\nv_mov_b32 v2, s70\nv_mov_b32 v3, {4*i}\nglobal_store_dword v3, v2, s[68:69]")
    else:
        stamp_flush(a, 0, 29)
    a.label("L_end")
    a("s_endpgm")
    a.label("L_codeend")
    a("s_endpgm")
    if SPLIT:
        txt = header([("prep_kernel", 256, 768, PW + 2*6144 + 64 + 8192), (KN, 256, 256, LDS_TOTAL)]) + a.text() + kernel_desc("prep_kernel", 168, 72, 168) + kernel_desc(KN, 512, 102, 256)
    else:
        txt = header([(None, 256, 256, LDS_TOTAL)]) + a.text() + kernel_desc(KN, 512, 102, 256)
    return txt, a
if __name__ == "__main__":
    common.STAMPS = 's' in sys.argv[2:]
    LOCAL = any(x.startswith('l') for x in sys.argv[2:])
    for x in sys.argv[2:]:
        if x.startswith('l'): LOCSET.update(['flag'] + x[1:].split('+'))
    HALF = 'h' in sys.argv[2:]
    if HALF: DYNSET.intersection_update({'hop'})
    UPFRONT = 0 if 'noup' in sys.argv[2:] else (2 if 'up2' in sys.argv[2:] else 1)
    FRONT4 = 'f4' in sys.argv[2:]
    if FRONT4: UPFRONT = 2
    SPREAD = 'nosp' not in sys.argv[2:]
    L1PK = 'pk' in sys.argv[2:]
    for x in sys.argv[2:]:
        if x.startswith('w:'): NW13L, NW13A, NW13B = (int(y) for y in x[2:].split(','))
    for x in sys.argv[2:]:
        if x.startswith('p:'): PROBE = tuple(int(y) for y in x[2:].split(','))
    CODEPF = 'nopf' not in sys.argv[2:]
    G2AB = 'ab' in sys.argv[2:] or 'q' in sys.argv[2:]
    G2Q = 'q' in sys.argv[2:]
    X3SPLIT = 'xs' in sys.argv[2:]
    for x in sys.argv[2:]:
        if x.startswith('qq:'):
            v = [int(y) for y in x[3:].split(',')]; Q_S, Q_L, Q_C = (v[0], v[1]), (v[2], v[3]), (v[4], v[5])
    E3LOC = 'e3' in sys.argv[2:]
    if E3LOC: DYNSET.add('e3')
    for x in sys.argv[2:]:
        if x.startswith('sig'): SIGB_STEP, FB_LD, FB_CK = (int(y) for y in x[3:].split(','))
    NWPRE = max([int(x[4:]) for x in sys.argv[2:] if x.startswith('pre:')] + [0])
    WREV = 'wrev' in sys.argv[2:]
    EARLYW = 'noew' not in sys.argv[2:]
    for x in sys.argv[2:]:
        if x.startswith('chk'): CHK1 = int(x[3:])
    TOUCH = 'touch' in sys.argv[2:]
    SPLIT = 'split' in sys.argv[2:]
    if 'pplain' in sys.argv[2:]: PST = ''
    for x in sys.argv[2:]:
        if x.startswith('ws:'): NWS, NWL1 = (int(y) for y in x[3:].split(','))
    NW2E = max([int(x[3:]) for x in sys.argv[2:] if x.startswith('w2:')] + [0])
    SLEEP = max([int(x[2:]) for x in sys.argv[2:] if x.startswith('sl')] + [0])
    CNT3 = 'cnt' in sys.argv[2:]
    OUTF = 'sc1' if 'osc1' in sys.argv[2:] else ('nt' if 'ont' in sys.argv[2:] else '')
    if 'nox3' in sys.argv[2:]: DYNSET.discard('x3')
    DYN = 'nodyn' not in sys.argv[2:]
    DBG = max([int(x[1:]) + 1 for x in sys.argv[2:] if x[0] == 'd' and x[1:].isdigit()] + [0])
    FINE = 'A' if 'fa' in sys.argv[2:] else ('B' if 'fb' in sys.argv[2:] else ('P' if 'fp' in sys.argv[2:] else ('F' if 'ff' in sys.argv[2:] else ('G' if 'fg' in sys.argv[2:] else None))))
    txt, a = build()
    open(sys.argv[1], "w").write(txt)
    print("nops:", a.nnop, "bytes", len(txt))
```
